```python
import torch

def _softmax(x, axis=-1):
    return torch.softmax(x, dim=axis)

def _gelu(x):
    return torch.nn.functional.gelu(x, approximate='tanh')

def _silu(x):
    return torch.nn.functional.silu(x)

def _sigmoid(x):
    return torch.sigmoid(x)

def _layernorm(x, axis=-1, eps=1e-05):
    m = x.mean(dim=axis, keepdim=True)
    v = x.var(dim=axis, keepdim=True, unbiased=False)
    return (x - m) / torch.sqrt(v + eps)

def _scatter_add(tgt, idx, src, axis=0):
    return tgt.clone().index_add_(axis, idx, src)

def _segment_sum(src, seg, n):
    out = torch.zeros((n,) + src.shape[1:], dtype=src.dtype)
    return out.index_add_(0, seg, src)

def _pad(x, pw):
    flat = tuple((v for pair in reversed(pw) for v in pair))
    return torch.nn.functional.pad(x, flat)
kernel_name = 'gated_mix__memory_aug_recurrent_mem_tr__glu_gated_geglu__prompt'

def setup_inputs():

    _w = lambda a: (lambda t: t.to(torch.bfloat16) if t.is_floating_point() else t)(torch.as_tensor(a))

    def _A_setup():
        B, S, Dm = (1, 2048, 640)
        H, Dh = (32, 192)
        M, seg = (8, 32)
        seg = min(seg, S)
        S = S // seg * seg
        return {'x': _w((lambda *s: torch.randn(*s, dtype=torch.bfloat16) * 0.05)(B, S, Dm)), 'mem0': _w((lambda *s: torch.randn(*s, dtype=torch.bfloat16) * 0.4)(B, M, Dm)), 'Wq': _w((lambda *s: torch.randn(*s, dtype=torch.bfloat16) * 6.4)(Dm, H, Dh) * Dm ** (-0.5)), 'Wk': _w((lambda *s: torch.randn(*s, dtype=torch.bfloat16) * 6.4)(Dm, H, Dh) * Dm ** (-0.5)), 'Wv': _w((lambda *s: torch.randn(*s, dtype=torch.bfloat16) * 0.4)(Dm, H, Dh) * Dm ** (-0.5)), 'Wo': _w((lambda *s: torch.randn(*s, dtype=torch.bfloat16) * 0.4)(H, Dh, Dm) * (H * Dh) ** (-0.5)), 'seg_len': seg}
    _A_in = _A_setup()

    def _B_setup():
        B, S, Dm, Df = (1, 2048, 640, 1536)
        return {'x': _w((lambda *s: torch.randn(*s, dtype=torch.bfloat16) * 0.05)(B, S, Dm)), 'w_gate': _w((lambda *s: torch.randn(*s, dtype=torch.bfloat16) * 1.6)(Dm, Df) * Dm ** (-0.5)), 'w_up': _w((lambda *s: torch.randn(*s, dtype=torch.bfloat16) * 1.6)(Dm, Df) * Dm ** (-0.5)), 'w_down': _w((lambda *s: torch.randn(*s, dtype=torch.bfloat16) * 1.6)(Df, Dm) * Df ** (-0.5))}
    _B_in = _B_setup()
    return {'A_x': _A_in['x'], 'A_mem0': _A_in['mem0'], 'A_Wq': _A_in['Wq'], 'A_Wk': _A_in['Wk'], 'A_Wv': _A_in['Wv'], 'A_Wo': _A_in['Wo'], 'A_seg_len': _A_in['seg_len'], 'B_x': _B_in['x'], 'B_w_gate': _B_in['w_gate'], 'B_w_up': _B_in['w_up'], 'B_w_down': _B_in['w_down'], 'gate_w': _w((lambda *s: torch.randn(*s, dtype=torch.bfloat16) * 0.05)(640) * 16.0)}

def reference(A_x, A_mem0, A_Wq, A_Wk, A_Wv, A_Wo, A_seg_len, B_x, B_w_gate, B_w_up, B_w_down, gate_w):

    def _A_ref(x, mem0, Wq, Wk, Wv, Wo, seg_len):
        B, S, Dm = x.shape
        H, Dh = (Wq.shape[1], Wq.shape[2])
        M = mem0.shape[1]
        scale = Dh ** (-0.5)
        n_seg = S // seg_len
        L = M + seg_len
        idx = torch.arange(L)
        mask = (idx[:, None] < M) | (idx[:, None] >= idx[None, :])
        mem = mem0
        outs = []
        for s in range(n_seg):
            xs = x[:, s * seg_len:(s + 1) * seg_len, :].clone()
            h = torch.concatenate([mem, xs], axis=1)
            q = torch.einsum('btd,dhe->bhte', h, Wq)
            k = torch.einsum('btd,dhe->bhte', h, Wk)
            v = torch.einsum('btd,dhe->bhte', h, Wv)
            scores = torch.einsum('bhqe,bhke->bhqk', q, k) * scale
            scores = torch.where(mask[None, None], scores, -1000000000.0)
            p = _softmax(scores, axis=-1)
            o = torch.einsum('bhqk,bhke->bhqe', p, v)
            o = torch.einsum('bhte,hed->btd', o, Wo)
            mem = o[:, :M, :].clone()
            outs.append(o[:, M:, :])
        return torch.concatenate(outs, axis=1)

    def _B_ref(x, w_gate, w_up, w_down):
        g = torch.einsum('bsd,df->bsf', x, w_gate)
        u = torch.einsum('bsd,df->bsf', x, w_up)
        h = _gelu(g) * u
        return torch.einsum('bsf,fd->bsd', h, w_down)
    x = A_x
    g = _sigmoid((x * gate_w).sum(-1, keepdims=True))
    a = _A_ref(x, A_mem0, A_Wq, A_Wk, A_Wv, A_Wo, A_seg_len)
    b = _B_ref(x, B_w_gate, B_w_up, B_w_down)
    return g * a + (1 - g) * b
```

```python
class Asm:
    def __init__(self):
        self.lines = []
        self._lab = 0
    def __call__(self, s):
        for l in s.strip('\n').split('\n'):
            l = l.strip()
            if not l:
                continue
            if l.endswith(':') or l.startswith('.') or l.startswith(';'):
                self.lines.append(l)
            else:
                self.lines.append('    ' + l)
    def c(self, s):
        self.lines.append('    ; ' + s)
    def newlabel(self, base='L'):
        self._lab += 1
        return '%s_%d' % (base, self._lab)
    def label(self, name):
        self.lines.append(name + ':')
    def text(self):
        return '\n'.join(self.lines) + '\n'

def vr(a, n=1):
    return 'v%d' % a if n == 1 else 'v[%d:%d]' % (a, a + n - 1)
def sr(a, n=1):
    return 's%d' % a if n == 1 else 's[%d:%d]' % (a, a + n - 1)

class Alloc:
    def __init__(self, start, limit, name='v'):
        self.p = start; self.limit = limit; self.name = name
    def __call__(self, n=1, align=None):
        if align is None:
            align = 1 if n == 1 else 2
        align = min(align, 2) if self.name == 'v' else align
        p = (self.p + align - 1) // align * align
        self.p = p + n
        assert self.p <= self.limit, '%s regs exhausted: %d > %d' % (self.name, self.p, self.limit)
        return p
```

```python
from asmlib import *
from layout import *
import math

LM, LO, LDUMMY, LQK, LW5, LR, LOX, LBUF = 0, 10240, 13312, 16384, 22528, 34816, 35840, 38912
LBUF_SZ = 27648
LK_OFF, LV_OFF, LQ_OFF = 0, 12288, 24576
CHAIN_LDS = LBUF + 2 * LBUF_SZ

sWS, sDBG, sT = 4, 8, 12
sPTR = 16
def ptr(i): return sPTR + 2 * i
sW, sJ, sC, sH, sG, sMIX, sBUD, sSTEP = 48, 49, 50, 51, 52, 53, 54, 55
sA_N, sA_R, sB_C, sB_R, sC_W, sC_RS, sC_RD, sO_C = 56, 57, 58, 59, 60, 61, 62, 63
sKQ, sVX, sLB, sRED, sSCL, sT0, sT1, sT2, sT3 = 64, 65, 66, 67, 68, 69, 76, 77, 78
sMN8, sML32, sMH8 = 70, 72, 74
sSELLO, sSELHI = 80, 81
sST = 82
sPADD, sPOR, sA_P, sPF, sPFD = 94, 95, 96, 97, 79
NSTAMP = 6

def srd(a, base_ptr, nbytes):
    a(f'''s_mov_b32 s{sT}, s{base_ptr}
          s_mov_b32 s{sT+1}, s{base_ptr+1}
          s_mov_b32 s{sT+2}, {nbytes}
          s_mov_b32 s{sT+3}, 0x20000''')

class Chain:
    def __init__(self, a, opt):
        self.a = a
        self.opt = opt
        self.tail = []
        self.nstamp = 0

    def lstore(self, insts):
        a = self.a
        slow, back = a.newlabel('Lslow'), a.newlabel('Lback')
        a(f's_cmp_lg_u32 s{sMIX}, 0')
        a(f's_cbranch_scc1 {slow}')
        for i in insts: a(i)
        a.label(back)
        self.tail.append((slow, [i + ' sc1' if i.startswith('buffer_') else i for i in insts], back))

    def emit_tail(self):
        a = self.a
        for slow, insts, back in self.tail:
            a.label(slow)
            for i in insts: a(i)
            a(f's_branch {back}')
        self.tail = []

    def stamp(self, k, ahead=0):
        if not self.opt.get('stamps'): return
        a = self.a
        l = a.newlabel('Lst')
        a(f'''s_cmp_lg_u32 s{sSTEP}, {self.opt['stamps'] + ahead}
              s_cbranch_scc1 {l}
              {self.opt.get('clock', 's_memtime')} s[{sST+2*k}:{sST+2*k+1}]
              s_waitcnt lgkmcnt(0)''')
        a.label(l)

    def mark(self, k):
        if not self.opt.get('prof'): return
        self.a(f's_memrealtime s[{sST+2*k}:{sST+2*k+1}]')
        self.a('s_waitcnt lgkmcnt(0)')

    def dump_stamps(self):
        self.mark(3)
        if not (self.opt.get('stamps') or self.opt.get('prof')): return
        a = self.a
        a(f'''s_lshl_b32 s{sT0}, s{sJ}, 4
              s_add_u32 s{sT0}, s{sT0}, s{sC}
              s_lshl_b32 s{sT0}, s{sT0}, 3
              s_add_u32 s{sT0}, s{sT0}, s{sW}
              s_lshl_b32 s{sT0}, s{sT0}, 6
              s_add_u32 s{sT0}, s{sT0}, {WS_DBG + 0x100000}
              s_mov_b64 exec, -1
              v_mov_b32 v2, 0''')
        for k in range(NSTAMP):
            a(f'v_mov_b32 v3, s{sST+2*k}')
            a(f'buffer_store_dword v3, v2, s[{sWS}:{sWS+3}], s{sT0} offen offset:{4*k}')
        for k in range(4):
            a(f'v_mov_b32 v3, s{98+k}')
            a(f'buffer_store_dword v3, v2, s[{sWS}:{sWS+3}], s{sT0} offen offset:{4*(8+k)}')
        a('s_waitcnt vmcnt(0)')

    def retry(self, label, kind=None):
        a = self.a
        if kind is not None and self.opt.get('stamps'):
            a(f's_add_u32 s{98+kind}, s{98+kind}, 1')
        a(f'''s_sub_u32 s{sBUD}, s{sBUD}, 1
              s_cbranch_scc0 {label}
              s_mov_b32 s{sBUD}, 0''')

    def slots(self):
        a = self.a
        a(f'''s_and_b32 s{sT0}, s{sSTEP}, 3
              s_add_u32 s{sT1}, s{sSTEP}, 1
              s_and_b32 s{sT1}, s{sT1}, 3
              s_xor_b32 s{sT2}, s{sT0}, 2
              s_mul_i32 s{sT3}, s{sJ}, 10240
              s_add_u32 s{sT3}, s{sT3}, {WS_RA}
              s_mul_i32 s{sA_N}, s{sT1}, {RA_SLOT}
              s_add_u32 s{sA_N}, s{sA_N}, s{sT3}
              s_mul_i32 s{sA_R}, s{sT2}, {RA_SLOT}
              s_add_u32 s{sA_R}, s{sA_R}, s{sT3}
              s_mul_i32 s{sT3}, s{sH}, 9216
              s_add_u32 s{sT3}, s{sT3}, {WS_RB}
              s_mul_i32 s{sB_C}, s{sT0}, {RB_SLOT}
              s_add_u32 s{sB_C}, s{sB_C}, s{sT3}
              s_mul_i32 s{sB_R}, s{sT2}, {RB_SLOT}
              s_add_u32 s{sB_R}, s{sB_R}, s{sT3}
              s_and_b32 s{sC_RD}, s{sSTEP}, {RC_N - 1}
              s_mul_i32 s{sC_RD}, s{sC_RD}, {RC_SLOT}
              s_add_u32 s{sC_RD}, s{sC_RD}, {WS_RC}
              s_lshl_b32 s{sT3}, s{sH}, 8
              s_add_u32 s{sC_W}, s{sC_RD}, s{sT3}
              s_lshl_b32 s{sPOR}, s{sSTEP}, {16 - RC_LOG}
              s_and_b32 s{sPOR}, s{sPOR}, 0x10000
              s_xor_b32 s{sPADD}, s{sPOR}, 0x10000
              s_mul_i32 s{sO_C}, s{sSTEP}, {32*12288}
              s_add_u32 s{sO_C}, s{sO_C}, {WS_O}''')

    def load_pair(self, WA, WB, nks, voff, rowstride, tmp):
        a = self.a
        items = []
        for ks in range(nks):
            for R in range(8):
                hi, p = R >> 2, R & 3
                b, tt = p & 1, p >> 1
                d = 64 * ks + 32 * hi + 8 * b + 2 * tt
                items.append((WA + ks * 8 + R, WB + ks * 8 + R, d))
        def issue(it):
            ra, rb, d = it
            a(f's_mov_b32 s{sT0}, {d * rowstride}')
            a(f'buffer_load_dword v{ra}, v{voff}, s[{sT}:{sT+3}], s{sT0} offen')
            a(f's_mov_b32 s{sT1}, {(d + 1) * rowstride}')
            a(f'buffer_load_dword v{rb}, v{voff}, s[{sT}:{sT+3}], s{sT1} offen')
        def fix(it):
            ra, rb, d = it
            a(f'v_perm_b32 v{tmp}, v{rb}, v{ra}, s{sSELLO}')
            a(f'v_perm_b32 v{rb}, v{rb}, v{ra}, s{sSELHI}')
            a(f'v_mov_b32 v{ra}, v{tmp}')
        groups = [items[i:i + 8] for i in range(0, len(items), 8)]
        depth = 3
        for gi in range(min(depth, len(groups))):
            for it in groups[gi]: issue(it)
        for gi in range(len(groups)):
            inflight = min(len(groups), gi + depth) - gi - 1
            a(f's_waitcnt vmcnt({16 * inflight})')
            for it in groups[gi]: fix(it)
            if gi + depth < len(groups):
                for it in groups[gi + depth]: issue(it)

    def load_single(self, W, nks, voff, vsel, rowstride, tmps):
        a = self.a
        items = []
        for ks in range(nks):
            for R in range(8):
                hi, p = R >> 2, R & 3
                b, tt = p & 1, p >> 1
                items.append((W + ks * 8 + R, 64 * ks + 32 * hi + 8 * b + 2 * tt))
        groups = [items[i:i + 8] for i in range(0, len(items), 8)]
        depth = 3
        def issue(gi):
            for k, (r, d) in enumerate(groups[gi]):
                t = tmps + (gi % depth) * 8 + k
                a(f's_mov_b32 s{sT0}, {d * rowstride}')
                a(f'buffer_load_dword v{r}, v{voff}, s[{sT}:{sT+3}], s{sT0} offen')
                a(f's_mov_b32 s{sT1}, {(d + 1) * rowstride}')
                a(f'buffer_load_dword v{t}, v{voff}, s[{sT}:{sT+3}], s{sT1} offen')
        for gi in range(min(depth, len(groups))): issue(gi)
        for gi in range(len(groups)):
            inflight = min(len(groups), gi + depth) - gi - 1
            a(f's_waitcnt vmcnt({16 * inflight})')
            for k, (r, d) in enumerate(groups[gi]):
                t = tmps + (gi % depth) * 8 + k
                a(f'v_perm_b32 v{r}, v{t}, v{r}, v{vsel}')
            if gi + depth < len(groups): issue(gi + depth)

    def lanes(self, al):
        a = self.a
        self.vL, self.vN, self.vQ = al(), al(), al()
        self.vT0, self.vT1, self.vT2 = al(), al(), al()
        self.vMask = 0
        a(f'''v_and_b32 v{self.vL}, 63, v0
              v_and_b32 v{self.vN}, 15, v0
              v_bfe_u32 v{self.vQ}, v0, 4, 2
              v_mov_b32 v0, 0xfffe0000''')

    def frag_addr(self, dst):
        a = self.a
        a(f'''v_lshlrev_b32 v{dst}, 8, v{self.vQ}
              v_and_b32 v{self.vT0}, 1, v{self.vN}
              v_lshl_add_u32 v{dst}, v{self.vT0}, 7, v{dst}
              v_lshrrev_b32 v{self.vT0}, 1, v{self.vN}
              v_lshl_add_u32 v{dst}, v{self.vT0}, 4, v{dst}''')

    def idx_reg(self, dst):
        a = self.a
        a(f'''v_and_b32 v{self.vT0}, 1, v{self.vN}
              v_cmp_eq_u32 vcc, 1, v{self.vT0}
              v_mov_b32 v{dst}, 0x44444444
              v_mov_b32 v{self.vT0}, 0xeeeeeeee
              s_nop 1
              v_cndmask_b32 v{dst}, v{dst}, v{self.vT0}, vcc''')

    def wrow_lane(self, dst, rowstride):
        a = self.a
        a(f'''v_lshrrev_b32 v{self.vT0}, 1, v{self.vQ}
              v_lshlrev_b32 v{self.vT0}, 4, v{self.vT0}
              v_and_b32 v{self.vT1}, 1, v{self.vQ}
              v_lshl_add_u32 v{self.vT0}, v{self.vT1}, 2, v{self.vT0}
              s_mov_b32 s{sT0}, {rowstride}
              v_mul_lo_u32 v{dst}, v{self.vT0}, s{sT0}''')

    def wait_all_registered(self):
        a = self.a
        lp, done = a.newlabel('Lreg'), a.newlabel('Lregd')
        T0, T1 = self.vT0, self.vT1
        a(f'v_lshlrev_b32 v{T1}, 2, v{self.vN}')
        a.label(lp)
        a(f'''buffer_load_dword v{T0}, v{T1}, s[{sDBG}:{sDBG+3}], 0 offen sc0 sc1
              s_waitcnt vmcnt(0)
              v_readlane_b32 s{sT0}, v{T0}, 8
              s_cmp_ge_u32 s{sT0}, 256
              s_cbranch_scc1 {done}
              s_sleep 8''')
        self.retry(lp)
        a.label(done)

    def a_poll(self, vAoff, R, first=False):
        a = self.a
        lp, ok = a.newlabel('LpA'), a.newlabel('LpAok')
        t = self.vT0
        a(f's_mov_b32 s{sA_P}, s{sA_N}')
        a(f's_add_u32 s{sSTEP}, s{sSTEP}, 1')
        self.slots()
        a('s_barrier')
        if self.opt.get('a_first'): a(f"s_sleep {self.opt['a_first']}")
        a.label(lp)
        a(f'''buffer_load_dwordx4 v[{R}:{R+3}], v{vAoff}, s[{sWS}:{sWS+3}], s{sA_P} offen sc1
              buffer_load_dwordx4 v[{R+4}:{R+7}], v{vAoff}, s[{sWS}:{sWS+3}], s{sA_P} offen offset:1024 sc1
              s_waitcnt vmcnt(0)
              ds_write_b128 v{vAoff}, v[{R}:{R+3}] offset:{LM}
              ds_write_b128 v{vAoff}, v[{R+4}:{R+7}] offset:{LM+1024}
              v_max3_u32 v{t}, v{R}, v{R+1}, v{R+2}
              v_max3_u32 v{t}, v{t}, v{R+3}, v{R+4}
              v_max3_u32 v{t}, v{t}, v{R+5}, v{R+6}
              v_max_u32 v{t}, v{t}, v{R+7}
              v_cmp_eq_u32 vcc, -1, v{t}
              s_cbranch_vccz {ok}''')
        if self.opt.get('a_sleep'): a(f"s_sleep {self.opt['a_sleep']}")
        self.retry(lp, 2)
        a.label(ok)
        a('s_waitcnt lgkmcnt(0)')

    def mem0_load(self, vAoff, R):
        a = self.a
        srd(a, ptr(1), 10240)
        T0, T1 = self.vT0, self.vT1
        a(f'''v_bfe_u32 v{T0}, v{vAoff}, 4, 3
              v_mul_u32_u24 v{T0}, 1280, v{T0}
              v_lshrrev_b32 v{T1}, 7, v{vAoff}
              v_lshl_add_u32 v{T0}, v{T1}, 4, v{T0}
              buffer_load_dwordx4 v[{R}:{R+3}], v{T0}, s[{sT}:{sT+3}], 0 offen
              buffer_load_dwordx4 v[{R+4}:{R+7}], v{T0}, s[{sT}:{sT+3}], 0 offen offset:128
              s_waitcnt vmcnt(0)
              ds_write_b128 v{vAoff}, v[{R}:{R+3}] offset:{LM}
              ds_write_b128 v{vAoff}, v[{R+4}:{R+7}] offset:{LM+1024}
              s_waitcnt lgkmcnt(0)''')

    def a_off(self, dst):
        a = self.a
        a(f'''s_sub_u32 s{sT0}, s{sW}, 3
              s_lshl_b32 s{sT0}, s{sT0}, 11
              v_lshlrev_b32 v{dst}, 4, v{self.vL}
              v_add_u32 v{dst}, s{sT0}, v{dst}''')

    def dma_seg_regs(self, seg_expr_sgpr):
        a = self.a
        sg = seg_expr_sgpr
        a(f'''s_lshl_b32 s{sT0}, s{sH}, 6
              s_add_u32 s{sT0}, s{sT0}, s{sg}
              s_mul_i32 s{sKQ}, s{sT0}, 12288
              s_add_u32 s{sVX}, s{sKQ}, {WS_VT}
              s_and_b32 s{sT0}, s{sg}, 1
              s_mul_i32 s{sLB}, s{sT0}, {LBUF_SZ}
              s_add_u32 s{sLB}, s{sLB}, {LBUF}''')

    def dma_kq(self, vK, vQx):
        a = self.a
        a(f's_add_u32 s{sT1}, s{sKQ}, {WS_K}')
        a(f's_add_u32 s{sT2}, s{sT1}, {16*384}')
        for tile in range(2):
            for ks in range(6):
                a(f's_add_u32 m0, s{sLB}, {LK_OFF + (tile*6+ks)*1024 - 64*ks}')
                a('s_nop 0')
                a(f'buffer_load_dwordx4 v{vK}, s[{sWS}:{sWS+3}], s{sT2 if tile else sT1} offen offset:{64*ks} lds')
        for p in range(3):
            a(f's_add_u32 m0, s{sLB}, {LQ_OFF + p*1024 - 128*p}')
            a('s_nop 0')
            a(f'buffer_load_dwordx4 v{vQx}, s[{sWS}:{sWS+3}], s{sKQ} offen offset:{128*p} lds')

    def dma_v(self, vV):
        a = self.a
        for grp in range(3):
            a(f's_add_u32 m0, s{sLB}, {LV_OFF + grp*4096}')
            a(f's_add_u32 s{sT1}, s{sVX}, {grp*4096}')
            for t in range(4):
                a(f'buffer_load_dwordx4 v{vV}, s[{sWS}:{sWS+3}], s{sT1} offen offset:{1024*t} lds')

    def wo_stage(self, pairs, vFrag, vIdx, F, vCoff, RR):
        a = self.a
        for ks in range(3):
            a(f'ds_read_b128 v[{F+4*ks}:{F+4*ks+3}], v{vFrag} offset:{LO + 1024*ks}')
        a(f'v_lshlrev_b32 v{self.vT0}, 3, v{self.vQ}')
        a(f'ds_read_b64 v[{RR}:{RR+1}], v{self.vT0} offset:{LR}')
        for ks in range(3):
            a(f's_waitcnt lgkmcnt({3-ks})')
            for (WA, WB, TA, TB, coff) in pairs:
                a(f'v_smfmac_f32_16x16x64_bf16 v[{TA}:{TA+3}], v[{F+4*ks}:{F+4*ks+3}], v[{WA+8*ks}:{WA+8*ks+7}], v{vIdx}')
                a(f'v_smfmac_f32_16x16x64_bf16 v[{TB}:{TB+3}], v[{F+4*ks}:{F+4*ks+3}], v[{WB+8*ks}:{WB+8*ks+7}], v{vIdx}')
        a('s_waitcnt lgkmcnt(0)')
        a('s_nop 5')
        for (WA, WB, TA, TB, coff) in pairs:
            self.pair_epilogue(TA, TB, RR)
            a(f'buffer_store_dword v{TA}, v{vCoff}, s[{sWS}:{sWS+3}], s{sC_W} offen offset:{coff} sc1')
            a(f'buffer_store_dword v{TB}, v{vCoff}, s[{sWS}:{sWS+3}], s{sC_W} offen offset:{coff+128} sc1')

    def pair_epilogue(self, TA, TB, RR=None):
        a = self.a
        a(f"""v_add_f32 v{TA}, v{TA}, v{TA+1}
              v_add_f32 v{TA+2}, v{TA+2}, v{TA+3}
              v_add_f32 v{TB}, v{TB}, v{TB+1}
              v_add_f32 v{TB+2}, v{TB+2}, v{TB+3}""")
        if RR is not None:
            a(f"""v_mul_f32 v{TA}, v{TA}, v{RR}
                  v_mul_f32 v{TA+2}, v{TA+2}, v{RR+1}
                  v_mul_f32 v{TB}, v{TB}, v{RR}
                  v_mul_f32 v{TB+2}, v{TB+2}, v{RR+1}""")
            a(f"""v_add_u32 v{TA}, s{sPADD}, v{TA}
                  v_add_u32 v{TA+2}, s{sPADD}, v{TA+2}
                  v_and_or_b32 v{TA}, v{TA}, v{self.vMask}, s{sPOR}
                  v_and_or_b32 v{TA+2}, v{TA+2}, v{self.vMask}, s{sPOR}
                  v_cvt_pk_bf16_f32 v{TA}, v{TA}, v{TB}
                  v_cvt_pk_bf16_f32 v{TB}, v{TA+2}, v{TB+2}""")
            return
        a(f"""v_cvt_pk_bf16_f32 v{TA}, v{TA}, v{TB}
              v_cvt_pk_bf16_f32 v{TB}, v{TA+2}, v{TB+2}
              v_min_u32 v{TA}, -2, v{TA}
              v_min_u32 v{TB}, -2, v{TB}""")

    def zero(self, r, n):
        for k in range(n): self.a(f'v_mov_b32 v{r+k}, 0')

    def c_off(self, dst, pw_sgpr_or_int):
        a = self.a
        T0 = self.vT0
        a(f'''v_lshrrev_b32 v{dst}, 3, v{self.vN}
              v_lshlrev_b32 v{dst}, 13, v{dst}
              v_bfe_u32 v{T0}, v{self.vN}, 2, 1
              v_lshl_add_u32 v{dst}, v{T0}, 6, v{dst}
              v_lshl_add_u32 v{dst}, v{self.vQ}, 4, v{dst}
              v_and_b32 v{T0}, 3, v{self.vN}
              v_lshl_add_u32 v{dst}, v{T0}, 2, v{dst}
              s_mul_i32 s{sT0}, s{sG}, 81920''')
        if isinstance(pw_sgpr_or_int, int):
            a(f's_add_u32 s{sT0}, s{sT0}, {16384*pw_sgpr_or_int}')
        else:
            a(f's_lshl_b32 s{sT1}, {pw_sgpr_or_int}, 14')
            a(f's_add_u32 s{sT0}, s{sT0}, s{sT1}')
        a(f'v_add_u32 v{dst}, s{sT0}, v{dst}')

    def wo_weights(self, WA, WB, pw, vtmp, tmp):
        a = self.a
        srd(a, ptr(5), NH * DH * DM * 2)
        self.wrow_lane(vtmp, 1280)
        a(f'''s_mul_i32 s{sT0}, s{sH}, {DH*DM*2}
              s_mul_i32 s{sT1}, s{sG}, 320
              s_add_u32 s{sT0}, s{sT0}, s{sT1}''')
        if isinstance(pw, int):
            a(f's_add_u32 s{sT0}, s{sT0}, {64*pw}')
        else:
            a(f's_lshl_b32 s{sT1}, {pw}, 6')
            a(f's_add_u32 s{sT0}, s{sT0}, s{sT1}')
        a(f'''v_lshl_add_u32 v{vtmp}, v{self.vN}, 2, v{vtmp}
              v_add_u32 v{vtmp}, s{sT0}, v{vtmp}''')
        self.load_pair(WA, WB, 3, vtmp, 1280, tmp)

    def finish(self):
        self.dump_stamps()
        self.a('s_endpgm')

    def role_qk(self):
        a = self.a
        al = Alloc(1, 256)
        self.lanes(al)
        WA, WB = al(80, 4), al(80, 4)
        M = al(40, 4)
        TA, TB = al(4, 4), al(4, 4)
        SEL = al(4, 4)
        RC = al(2)
        vFrag, vIdx, vB, vAst, vSent = al(), al(), al(), al(), al(2)
        T0, T1, T2 = self.vT0, self.vT1, self.vT2
        self.frag_addr(vFrag); self.idx_reg(vIdx)
        a(f'''s_mul_i32 s{sT2}, s{sG}, 3
              s_add_u32 s{sT2}, s{sT2}, s{sW}
              s_cmp_ge_u32 s{sT2}, 6
              s_cselect_b32 s{sT}, s{ptr(3)}, s{ptr(2)}
              s_cselect_b32 s{sT+1}, s{ptr(3)+1}, s{ptr(2)+1}
              s_cselect_b32 s{sT1}, 6, 0
              s_lshl_b32 s{sT3}, s{sT2}, 9
              s_sub_u32 s{sT2}, s{sT2}, s{sT1}
              s_mov_b32 s{sT+2}, {DM*NH*DH*2}
              s_mov_b32 s{sT+3}, 0x20000
              s_lshl_b32 s{sT2}, s{sT2}, 6
              v_lshlrev_b32 v{vB}, 7, v{self.vQ}
              v_lshl_add_u32 v{vB}, v{self.vN}, 2, v{vB}
              v_add_u32 v{vB}, s{sT3}, v{vB}''')
        vW = M
        self.wrow_lane(vW, 12288)
        a(f'''v_lshlrev_b32 v{T0}, 1, v{self.vN}
              v_and_b32 v{T1}, 0x13, v{T0}
              v_and_b32 v{T2}, 4, v{T0}
              v_lshl_add_u32 v{T1}, v{T2}, 1, v{T1}
              v_and_b32 v{T2}, 8, v{T0}
              v_lshrrev_b32 v{T2}, 1, v{T2}
              v_add_u32 v{T1}, v{T1}, v{T2}
              v_lshl_add_u32 v{vW}, v{T1}, 1, v{vW}
              s_mul_i32 s{sT0}, s{sH}, 384
              s_add_u32 s{sT0}, s{sT0}, s{sT2}
              v_add_u32 v{vW}, s{sT0}, v{vW}''')
        self.load_pair(WA, WB, 10, vW, 12288, T2)
        a(f'''s_lshl_b32 s{sRED}, s{sW}, 4
              s_add_u32 s{sRED}, s{sRED}, s{sC}
              s_lshl_b32 s{sT0}, s{sRED}, 8
              s_lshl_b32 s{sT1}, s{sRED}, 13
              v_lshlrev_b32 v{RC}, 8, v{self.vQ}
              v_and_b32 v{T0}, 1, v{self.vN}
              v_lshl_add_u32 v{RC}, v{T0}, 7, v{RC}
              v_lshrrev_b32 v{T0}, 3, v{self.vN}
              v_lshl_add_u32 v{RC}, v{T0}, 6, v{RC}
              v_bfe_u32 v{T0}, v{self.vN}, 1, 2
              v_lshl_add_u32 v{RC}, v{T0}, 4, v{RC}
              v_add_u32 v{RC}, s{sT1}, v{RC}
              v_add_u32 v{RC+1}, 4096, v{RC}''')
        a(f'''v_lshlrev_b32 v{vAst}, 4, v{self.vN}
              v_lshl_add_u32 v{vAst}, v{self.vQ}, 3, v{vAst}
              v_add_u32 v{vAst}, s{sT0}, v{vAst}
              v_mov_b32 v{vSent}, -1
              v_mov_b32 v{vSent+1}, -1''')
        for p in range(4):
            a(f'''v_mov_b32 v{SEL+p}, 0
                  v_mov_b32 v{T0}, 0x3f80
                  v_cmp_eq_u32 vcc, {2*p}, v{self.vN}
                  s_nop 1
                  v_cndmask_b32 v{SEL+p}, v{SEL+p}, v{T0}, vcc
                  v_mov_b32 v{T0}, 0x3f800000
                  v_cmp_eq_u32 vcc, {2*p+1}, v{self.vN}
                  s_nop 1
                  v_cndmask_b32 v{SEL+p}, v{SEL+p}, v{T0}, vcc''')
        self.zero(TA, 8)
        self.slots()
        PFD = self.opt.get('pf_dist', 4)
        a(f'''s_cmp_eq_u32 s{sW}, 0
              s_cselect_b32 s{sPF}, {WS_K}, {WS_Q}
              s_cmp_eq_u32 s{sW}, 1
              s_cselect_b32 s{sPF}, {WS_VT}, s{sPF}
              s_mul_i32 s{sT0}, s{sH}, {64*12288}
              s_add_u32 s{sPF}, s{sPF}, s{sT0}
              s_mul_i32 s{sT0}, s{sG}, 3072
              s_add_u32 s{sPF}, s{sPF}, s{sT0}
              s_add_u32 s{sPF}, s{sPF}, {2*12288}''')
        def prefetch(lo, hi):
            if self.opt.get('no_pf'): return
            for k in range(lo, hi):
                a(f's_buffer_load_dword s{sPFD}, s[{sWS}:{sWS+3}], s{sPF} offset:{128*k}')
        for sg in range(2, PFD):
            prefetch(0, 12); a('s_waitcnt lgkmcnt(0)'); prefetch(12, 24); a('s_waitcnt lgkmcnt(0)')
            a(f's_add_u32 s{sPF}, s{sPF}, 12288')
        self.mark(1)
        self.wait_all_registered()
        a('s_barrier')
        self.mark(2)
        loop, nored, end = a.newlabel('Lqk'), a.newlabel('Lqknr'), a.newlabel('Lqkend')
        a.label(loop)
        a('s_barrier')
        self.stamp(0)
        for ks in range(10):
            a(f'ds_read_b128 v[{M+4*ks}:{M+4*ks+3}], v{vFrag} offset:{LM + 1024*ks}')
        for ks in range(10):
            a(f's_waitcnt lgkmcnt({9-ks})')
            a(f'v_smfmac_f32_16x16x64_bf16 v[{TA}:{TA+3}], v[{M+4*ks}:{M+4*ks+3}], v[{WA+8*ks}:{WA+8*ks+7}], v{vIdx}')
            a(f'v_smfmac_f32_16x16x64_bf16 v[{TB}:{TB+3}], v[{M+4*ks}:{M+4*ks+3}], v[{WB+8*ks}:{WB+8*ks+7}], v{vIdx}')
        a('s_nop 7')
        self.pair_epilogue(TA, TB)
        self.lstore([f'buffer_store_dword v{TA}, v{vB}, s[{sWS}:{sWS+3}], s{sB_C} offen',
                     f'buffer_store_dword v{TB}, v{vB}, s[{sWS}:{sWS+3}], s{sB_C} offen offset:64'])
        a('s_barrier')
        self.stamp(1)
        def resets():
            self.lstore([f'buffer_store_dword v{vSent}, v{vB}, s[{sWS}:{sWS+3}], s{sB_R} offen',
                         f'buffer_store_dword v{vSent}, v{vB}, s[{sWS}:{sWS+3}], s{sB_R} offen offset:64'])
            skipar = a.newlabel('Lqkar')
            a(f'''s_cmp_ge_u32 s{sRED}, 40
                  s_cbranch_scc1 {skipar}
                  s_mov_b64 exec, s[{sML32}:{sML32+1}]''')
            self.lstore([f'buffer_store_dwordx2 v[{vSent}:{vSent+1}], v{vAst}, s[{sWS}:{sWS+3}], s{sA_R} offen'])
            a('s_mov_b64 exec, -1')
            a.label(skipar)
        self.zero(TA, 8)
        a('s_barrier')
        resets()
        prefetch(0, 12)
        a('s_barrier')
        a(f'''s_cmp_eq_u32 s{sSTEP}, 63
              s_cbranch_scc1 {end}''')
        prefetch(12, 24)
        a(f's_add_u32 s{sPF}, s{sPF}, 12288')
        a(f'''s_cmp_ge_u32 s{sRED}, 40
              s_cbranch_scc1 {nored}''')
        if self.opt.get('c_sleep'): a(f"s_sleep {self.opt['c_sleep']}")
        ok, ph1 = a.newlabel('LpCok'), a.newlabel('LpC1')
        ACC = M + 32
        if self.opt.get('fine'): self.stamp(5)
        a(f's_bitcmp1_b32 s{sSTEP}, {RC_LOG}')
        a(f's_cbranch_scc1 {ph1}')
        for ph in range(2):
            lp = a.newlabel('LpC')
            if ph: a.label(ph1)
            a.label(lp)
            for t in range(8):
                a(f'buffer_load_dwordx4 v[{M+4*t}:{M+4*t+3}], v{RC+(t>>2)}, s[{sWS}:{sWS+3}], s{sC_RD} offen offset:{1024*(t&3)} sc1')
            a('s_mov_b64 exec, -1')
            op3 = (lambda d, x, y, z: f'v_bitop3_b32 v{d}, v{x}, v{y}, v{z} bitop3:0x80') if ph else (lambda d, x, y, z: f'v_or3_b32 v{d}, v{x}, v{y}, v{z}')
            for t in range(8):
                a(f's_waitcnt vmcnt({7-t})')
                if t == 0 and self.opt.get('fine'): self.stamp(2)
                a(f'v_mfma_f32_16x16x32_bf16 v[{ACC}:{ACC+3}], v[{SEL}:{SEL+3}], v[{M+4*t}:{M+4*t+3}], ' + ('0' if t == 0 else f'v[{ACC}:{ACC+3}]'))
                if t == 0:
                    a(op3(T0, M, M+1, M+2)); a(op3(T0, T0, M+3, M+3))
                else:
                    a(op3(T0, T0, M+4*t, M+4*t+1)); a(op3(T0, T0, M+4*t+2, M+4*t+3))
            a(f'''v_and_b32 v{T0}, 1, v{T0}
                  v_cmp_ne_u32 vcc, {ph}, v{T0}
                  s_cbranch_vccz {ok}
                  s_mov_b64 exec, vcc''')
            self.retry(lp, 3)
            a('s_mov_b64 exec, -1')
            if ph == 0: a(f's_branch {ok}')
        a.label(ok)
        self.stamp(3)
        a(f'''s_nop 2
              v_cvt_pk_bf16_f32 v{ACC}, v{ACC}, v{ACC+1}
              v_cvt_pk_bf16_f32 v{ACC+1}, v{ACC+2}, v{ACC+3}
              s_mov_b64 exec, s[{sML32}:{sML32+1}]
              v_min_u32 v{ACC}, -2, v{ACC}
              v_min_u32 v{ACC+1}, -2, v{ACC+1}''')
        self.lstore([f'buffer_store_dwordx2 v[{ACC}:{ACC+1}], v{vAst}, s[{sWS}:{sWS+3}], s{sA_N} offen'])
        if self.opt.get('dump_mem'):
            l = a.newlabel('Ldm')
            a(f'''s_cmp_lg_u32 s{sJ}, 0
                  s_cbranch_scc1 {l}
                  s_mul_i32 s{sT0}, s{sSTEP}, 10240
                  s_add_u32 s{sT0}, s{sT0}, {WS_DBG}
                  buffer_store_dwordx2 v[{ACC}:{ACC+1}], v{vAst}, s[{sWS}:{sWS+3}], s{sT0} offen''')
            a.label(l)
        a('s_mov_b64 exec, -1')
        a('s_barrier')
        a('s_waitcnt lgkmcnt(0)')
        self.stamp(4)
        a(f's_add_u32 s{sSTEP}, s{sSTEP}, 1')
        self.slots()
        a(f's_branch {loop}')
        a.label(nored)
        a('s_barrier')
        a(f's_add_u32 s{sSTEP}, s{sSTEP}, 1')
        self.slots()
        a('s_waitcnt vmcnt(0) lgkmcnt(0)')
        a(f's_branch {loop}')
        a.label(end)
        self.finish()
        self.emit_tail()

    def role_v(self):
        a = self.a
        al = Alloc(1, 256)
        self.lanes(al)
        WA, WB = al(80, 4), al(80, 4)
        M = al(48, 4)
        TA, TB = al(4, 4), al(4, 4)
        F = al(12, 4); RR = al(2, 2)
        vFrag, vIdx, vB, vAoff, vV, vSent, vCoff, vLin = [al() for _ in range(8)]
        self.frag_addr(vFrag); self.idx_reg(vIdx)
        a(f"""v_lshlrev_b32 v{vV}, 6, v{self.vN}
              v_lshl_add_u32 v{vV}, v{self.vQ}, 4, v{vV}
              v_lshlrev_b32 v{vLin}, 4, v{self.vL}
              v_mov_b32 v{vSent}, -1""")
        for sg in range(2):
            a(f's_mov_b32 s{sT3}, {sg}')
            self.dma_seg_regs(sT3); self.dma_v(vV)
        self.c_off(vCoff, 4)
        self.wo_weights(M, M + 24, 4, vAoff, self.vT2)
        for k in range(12):
            a(f'ds_write_b128 v{vLin}, v[{M+4*k}:{M+4*k+3}] offset:{LW5 + 1024*k}')
        a('s_waitcnt lgkmcnt(0)')
        a(f"""s_mul_i32 s{sT0}, s{sG}, 768
              s_add_u32 s{sT0}, s{sT0}, 6144
              v_lshlrev_b32 v{vB}, 5, v{self.vN}
              v_lshl_add_u32 v{vB}, v{self.vQ}, 2, v{vB}
              v_add_u32 v{vB}, s{sT0}, v{vB}""")
        srd(a, ptr(4), DM * NH * DH * 2)
        vW = M
        self.wrow_lane(vW, 12288)
        a(f"""s_mul_i32 s{sT0}, s{sH}, 384
              s_mul_i32 s{sT1}, s{sG}, 96
              s_add_u32 s{sT0}, s{sT0}, s{sT1}
              v_lshl_add_u32 v{vW}, v{self.vN}, 2, v{vW}
              v_add_u32 v{vW}, s{sT0}, v{vW}""")
        self.load_pair(WA, WB, 10, vW, 12288, self.vT2)
        self.a_off(vAoff)
        self.mem0_load(vAoff, F)
        self.zero(TA, 8)
        self.slots()
        self.mark(1)
        self.wait_all_registered()
        a('s_barrier')
        self.mark(2)
        loop, end = a.newlabel('Lv'), a.newlabel('Lvend')
        a.label(loop)
        a('s_barrier')
        self.stamp(0)
        for ks in range(10):
            a(f'ds_read_b128 v[{M+4*ks}:{M+4*ks+3}], v{vFrag} offset:{LM + 1024*ks}')
        for ks in range(10):
            a(f's_waitcnt lgkmcnt({9-ks})')
            a(f'v_smfmac_f32_16x16x64_bf16 v[{TA}:{TA+3}], v[{M+4*ks}:{M+4*ks+3}], v[{WA+8*ks}:{WA+8*ks+7}], v{vIdx}')
            a(f'v_smfmac_f32_16x16x64_bf16 v[{TB}:{TB+3}], v[{M+4*ks}:{M+4*ks+3}], v[{WB+8*ks}:{WB+8*ks+7}], v{vIdx}')
            if ks == self.opt.get('v_bar', 8): a('s_barrier')
        a(f"""s_nop 7
              v_add_f32 v{TA}, v{TA}, v{TA+1}
              v_add_f32 v{TA+2}, v{TA+2}, v{TA+3}
              v_add_f32 v{TB}, v{TB}, v{TB+1}
              v_add_f32 v{TB+2}, v{TB+2}, v{TB+3}
              v_cvt_pk_bf16_f32 v{TA}, v{TA}, v{TA+2}
              v_cvt_pk_bf16_f32 v{TB}, v{TB}, v{TB+2}
              v_min_u32 v{TA}, -2, v{TA}
              v_min_u32 v{TB}, -2, v{TB}""")
        self.lstore([f'buffer_store_dword v{TA}, v{vB}, s[{sWS}:{sWS+3}], s{sB_C} offen',
                     f'buffer_store_dword v{TB}, v{vB}, s[{sWS}:{sWS+3}], s{sB_C} offen offset:16'])
        self.stamp(1)
        for k in range(12):
            a(f'ds_read_b128 v[{M+4*k}:{M+4*k+3}], v{vLin} offset:{LW5 + 1024*k}')
        self.zero(TA, 8)
        a(f's_add_u32 s{sT3}, s{sSTEP}, 2')
        self.dma_seg_regs(sT3)
        a('s_barrier')
        self.lstore([f'buffer_store_dword v{vSent}, v{vB}, s[{sWS}:{sWS+3}], s{sB_R} offen',
                     f'buffer_store_dword v{vSent}, v{vB}, s[{sWS}:{sWS+3}], s{sB_R} offen offset:16'])
        a(f"s_sleep {self.opt.get('d_sleep', 7)}")
        if not self.opt.get('no_dma'): self.dma_v(vV)
        a('s_waitcnt lgkmcnt(0)')
        self.stamp(5)
        a('s_barrier')
        self.stamp(2)
        a(f"""s_cmp_eq_u32 s{sSTEP}, 63
              s_cbranch_scc1 {end}""")
        self.wo_stage([(M, M + 24, TA, TB, 0)], vFrag, vIdx, F, vCoff, RR)
        self.stamp(3)
        self.zero(TA, 8)
        self.a_poll(vAoff, F)
        self.stamp(4, 1)
        a(f's_branch {loop}')
        a.label(end)
        self.finish()
        self.emit_tail()

    def role_w7(self):
        a = self.a
        al = Alloc(1, 256)
        self.lanes(al)
        WV = al(80, 4)
        P = [(al(24, 4), al(24, 4), al(4, 4), al(4, 4), 0)]
        M = al(40, 4)
        TV = al(4, 4)
        SENT = al(4, 4); RR = al(2, 2)
        vFrag, vIdx, vB, vAoff, vK, vQx, vCoff, vCr = [al() for _ in range(8)]
        vSel = TV
        T0, T1 = self.vT0, self.vT1
        self.frag_addr(vFrag); self.idx_reg(vIdx)
        a(f"""v_mul_u32_u24 v{vK}, 384, v{self.vN}
              v_lshl_add_u32 v{vK}, v{self.vQ}, 4, v{vK}
              v_and_b32 v{T0}, 7, v{self.vL}
              v_mul_u32_u24 v{vQx}, 384, v{T0}
              v_lshrrev_b32 v{T0}, 5, v{self.vL}
              v_lshl_add_u32 v{vQx}, v{T0}, 6, v{vQx}
              v_bfe_u32 v{T0}, v{self.vL}, 3, 2
              v_lshl_add_u32 v{vQx}, v{T0}, 4, v{vQx}
              s_mul_i32 s{sT0}, s{sG}, {8*384}
              s_add_u32 s{sT0}, s{sT0}, {WS_Q}
              v_add_u32 v{vQx}, s{sT0}, v{vQx}""")
        for sg in range(2):
            a(f's_mov_b32 s{sT3}, {sg}')
            self.dma_seg_regs(sT3); self.dma_kq(vK, vQx)
        for k in range(4): a(f'v_mov_b32 v{SENT+k}, -1')
        a(f"""s_mul_i32 s{sT0}, s{sG}, 768
              s_add_u32 s{sT0}, s{sT0}, {6144 + 512}
              v_lshlrev_b32 v{vB}, 4, v{self.vN}
              v_lshl_add_u32 v{vB}, v{self.vQ}, 2, v{vB}
              v_add_u32 v{vB}, s{sT0}, v{vB}
              s_mul_i32 s{sT0}, s{sG}, 2560
              v_lshlrev_b32 v{vCr}, 4, v{self.vL}
              v_add_u32 v{vCr}, s{sT0}, v{vCr}""")
        self.c_off(vCoff, 3)
        srd(a, ptr(4), DM * NH * DH * 2)
        self.wrow_lane(vAoff, 12288)
        a(f"""s_mul_i32 s{sT0}, s{sH}, 384
              s_mul_i32 s{sT1}, s{sG}, 96
              s_add_u32 s{sT0}, s{sT0}, s{sT1}
              s_add_u32 s{sT0}, s{sT0}, 64
              v_and_b32 v{T0}, 14, v{self.vN}
              v_lshl_add_u32 v{vAoff}, v{T0}, 1, v{vAoff}
              v_add_u32 v{vAoff}, s{sT0}, v{vAoff}
              v_and_b32 v{T0}, 1, v{self.vN}
              v_cmp_eq_u32 vcc, 1, v{T0}
              v_mov_b32 v{vSel}, s{sSELLO}
              v_mov_b32 v{T0}, s{sSELHI}
              s_nop 1
              v_cndmask_b32 v{vSel}, v{vSel}, v{T0}, vcc""")
        self.load_single(WV, 10, vAoff, vSel, 12288, M)
        self.wo_weights(P[0][0], P[0][1], 3, vAoff, self.vT2)
        self.a_off(vAoff)
        self.mem0_load(vAoff, M)
        self.zero(TV, 4)
        for p in P: self.zero(p[2], 8)
        self.slots()
        self.mark(1)
        self.wait_all_registered()
        a('s_barrier')
        self.mark(2)
        loop, end = a.newlabel('Lw7'), a.newlabel('Lw7end')
        a.label(loop)
        a('s_barrier')
        self.stamp(0)
        for ks in range(10):
            a(f'ds_read_b128 v[{M+4*ks}:{M+4*ks+3}], v{vFrag} offset:{LM + 1024*ks}')
        for ks in range(10):
            a(f's_waitcnt lgkmcnt({9-ks})')
            a(f'v_smfmac_f32_16x16x64_bf16 v[{TV}:{TV+3}], v[{M+4*ks}:{M+4*ks+3}], v[{WV+8*ks}:{WV+8*ks+7}], v{vIdx}')
        a(f"""s_nop 7
              v_add_f32 v{TV}, v{TV}, v{TV+1}
              v_add_f32 v{TV+2}, v{TV+2}, v{TV+3}
              v_cvt_pk_bf16_f32 v{TV}, v{TV}, v{TV+2}
              v_min_u32 v{TV}, -2, v{TV}""")
        self.lstore([f'buffer_store_dword v{TV}, v{vB}, s[{sWS}:{sWS+3}], s{sB_C} offen'])
        a('s_barrier')
        self.stamp(1)
        self.zero(TV, 4)
        a(f's_add_u32 s{sT3}, s{sSTEP}, 2')
        self.dma_seg_regs(sT3)
        a('s_barrier')
        self.lstore([f'buffer_store_dword v{SENT}, v{vB}, s[{sWS}:{sWS+3}], s{sB_R} offen'])
        a(f"s_sleep {self.opt.get('d_sleep', 7)}")
        if self.opt.get('dma_time'): self.stamp(1)
        if not self.opt.get('no_dma'): self.dma_kq(vK, vQx)
        if self.opt.get('dma_time'): a('s_waitcnt vmcnt(0)')
        self.stamp(5)
        a('s_barrier')
        self.stamp(2)
        a(f"""s_cmp_eq_u32 s{sSTEP}, 63
              s_cbranch_scc1 {end}""")
        self.wo_stage(P, vFrag, vIdx, M, vCoff, RR)
        self.stamp(3)
        for p in P: self.zero(p[2], 8)
        self.a_poll(vAoff, M)
        self.stamp(4, 1)
        a(f's_branch {loop}')
        a.label(end)
        self.finish()
        self.emit_tail()

    def role_att(self):
        a = self.a
        al = Alloc(1, 256)
        self.lanes(al)
        TM = al(2, 2)
        WA, WB = al(24, 4), al(24, 4)
        TA, TB = al(4, 4), al(4, 4)
        KX = al(48, 4); X = al(24, 4); Y = al(24, 4)
        VX = al(16, 4); VM = al(8, 2)
        BI = al(12, 4); SS = al(12, 4)
        PP = al(6, 2); RR = PP
        OO = al(16, 4); LL = al(4, 4)
        ONES = al(4, 4)
        F = SS
        vFrag, vIdx, vAoff, vXY, vVM, vOw, vOst, vCoff, vLin, vQr, vBp, vRw, vOx, vBp2 = [al() for _ in range(14)]
        T0, T1, T2 = self.vT0, self.vT1, self.vT2
        sWP = sRED
        a(f's_sub_u32 s{sWP}, s{sW}, 4')
        self.frag_addr(vFrag); self.idx_reg(vIdx)
        self.c_off(vCoff, f's{sWP}')
        self.wo_weights(WA, WB, f's{sWP}', vAoff, T2)
        self.a_off(vAoff)
        a(f"""v_lshlrev_b32 v{vXY}, 6, v{self.vN}
              v_lshl_add_u32 v{vXY}, v{self.vQ}, 4, v{vXY}
              s_lshl_b32 s{sT0}, s{sWP}, 10
              s_add_u32 s{sT0}, s{sT0}, 6144
              v_lshlrev_b32 v{vVM}, 4, v{self.vN}
              v_lshl_add_u32 v{vVM}, v{self.vQ}, 3, v{vVM}
              v_add_u32 v{vVM}, s{sT0}, v{vVM}
              v_lshlrev_b32 v{vLin}, 4, v{self.vL}
              s_lshl_b32 s{sT0}, s{sWP}, 11
              v_add_u32 v{vBp}, s{sT0}, v{vLin}
              v_and_b32 v{T0}, 7, v{self.vN}
              v_lshlrev_b32 v{vQr}, 4, v{T0}
              v_lshl_add_u32 v{vQr}, v{self.vQ}, 7, v{vQr}""")
        a(f"""v_lshlrev_b32 v{vRw}, 2, v{self.vL}
              v_add_u32 v{T1}, {LDUMMY}, v{vRw}
              v_add_u32 v{vRw}, {LR}, v{vRw}
              v_cmp_gt_u32 vcc, 8, v{self.vL}
              s_nop 1
              v_cndmask_b32 v{vRw}, v{T1}, v{vRw}, vcc""")
        a(f"""v_lshrrev_b32 v{T1}, 1, v{self.vQ}
              v_lshlrev_b32 v{vOw}, 7, v{T1}
              v_lshl_add_u32 v{vOw}, v{T0}, 4, v{vOw}
              v_and_b32 v{T1}, 1, v{self.vQ}
              v_lshl_add_u32 v{vOw}, v{T1}, 3, v{vOw}
              v_lshrrev_b32 v{T1}, 3, v{self.vN}
              v_mul_u32_u24 v{T1}, 3072, v{T1}
              v_add_u32 v{vOw}, v{vOw}, v{T1}
              s_lshl_b32 s{sT0}, s{sWP}, 10
              s_add_u32 s{sT0}, s{sT0}, {LO}
              v_add_u32 v{vOw}, s{sT0}, v{vOw}""")
        a(f"""s_mov_b32 s{sT0}, 12288
              v_lshrrev_b32 v{T1}, 3, v{self.vL}
              v_mul_lo_u32 v{vOst}, v{T1}, s{sT0}
              v_and_b32 v{T1}, 7, v{self.vL}
              v_lshl_add_u32 v{vOst}, v{T1}, 4, v{vOst}
              s_mul_i32 s{sT0}, s{sG}, {8*12288}
              s_mul_i32 s{sT1}, s{sH}, 384
              s_add_u32 s{sT0}, s{sT0}, s{sT1}
              s_lshl_b32 s{sT1}, s{sWP}, 7
              s_add_u32 s{sT0}, s{sT0}, s{sT1}
              v_add_u32 v{vOst}, s{sT0}, v{vOst}
              s_lshl_b32 s{sT0}, s{sWP}, 10
              s_add_u32 s{sT0}, s{sT0}, {LOX}
              v_add_u32 v{vBp2}, s{sT0}, v{vLin}
              v_lshlrev_b32 v{vOx}, 7, v{T0}
              v_lshl_add_u32 v{vOx}, v{self.vQ}, 3, v{vOx}
              v_add_u32 v{vOx}, s{sT0}, v{vOx}""")
        a(f"""s_lshl_b32 s{sT0}, s{sG}, 3
              v_add_u32 v{T1}, s{sT0}, v{T0}
              v_cmp_gt_u32 vcc, 8, v{self.vN}
              v_mov_b32 v{T2}, 31
              s_nop 1
              v_cndmask_b32 v{T1}, v{T1}, v{T2}, vcc
              v_lshlrev_b32 v{T2}, 2, v{self.vQ}
              v_sub_u32 v{T1}, v{T1}, v{T2}
              v_mov_b32 v{T2}, 0xf149f2ca""")
        for tile in range(2):
            for r in range(4):
                a(f"""v_cmp_gt_i32 vcc, {16*tile + r}, v{T1}
                      v_mov_b32 v{BI+4*tile+r}, 0
                      s_nop 1
                      v_cndmask_b32 v{BI+4*tile+r}, v{BI+4*tile+r}, v{T2}, vcc""")
        a(f"""v_cmp_lt_u32 vcc, 1, v{self.vQ}
              v_mov_b32 v{BI+8}, 0
              s_nop 1
              v_cndmask_b32 v{BI+8}, v{BI+8}, v{T2}, vcc""")
        for r in range(1, 4): a(f'v_mov_b32 v{BI+8+r}, v{BI+8}')
        for k in range(4): a(f'v_mov_b32 v{ONES+k}, 0x3f803f80')
        self.zero(Y, 24); self.zero(VM, 8); self.zero(TA, 8)
        self.mem0_load(vAoff, F)
        self.slots()
        self.mark(1)
        self.wait_all_registered()
        def read_seg():
            a(f'v_add_u32 v{T0}, s{sLB}, v{vLin}')
            a(f'v_add_u32 v{T1}, s{sLB}, v{vQr}')
            a(f's_lshl_b32 s{sT0}, s{sWP}, 12')
            a(f'v_add_u32 v{T2}, s{sT0}, v{T0}')
            for k in range(12):
                a(f'ds_read_b128 v[{KX+4*k}:{KX+4*k+3}], v{T0} offset:{LK_OFF + 1024*k}')
            for ks in range(6):
                a(f'ds_read_b128 v[{X+4*ks}:{X+4*ks+3}], v{T1} offset:{LQ_OFF + 512*ks}')
            for t in range(4):
                a(f'ds_read_b128 v[{VX+4*t}:{VX+4*t+3}], v{T2} offset:{LV_OFF + 1024*t}')
        def vm_loads():
            a(f's_mov_b64 exec, s[{sML32}:{sML32+1}]')
            for t in range(4):
                a(f'buffer_load_dwordx2 v[{VM+2*t}:{VM+2*t+1}], v{vVM}, s[{sWS}:{sWS+3}], s{sB_C} offen offset:{256*t} sc1')
            a('s_mov_b64 exec, -1')
        a('s_barrier')
        self.mark(2)
        a(f's_mov_b32 s{sLB}, {LBUF}')
        read_seg()
        a('s_waitcnt lgkmcnt(0)')
        loop, end = a.newlabel('Lat'), a.newlabel('Latend')
        lp, ok, vlp, vok, vrt = a.newlabel('LpB'), a.newlabel('LpBok'), a.newlabel('LpV'), a.newlabel('LpVok'), a.newlabel('LpVr')
        a.label(loop)
        a('s_barrier')
        a('s_barrier')
        if self.opt.get('b_sleep'): a(f"s_sleep {self.opt['b_sleep']}")
        R = OO
        if self.opt.get('fine'): self.stamp(0)
        a.label(lp)
        a(f"""buffer_load_dwordx4 v[{R}:{R+3}], v{vBp}, s[{sWS}:{sWS+3}], s{sB_C} offen sc1
              buffer_load_dwordx4 v[{R+4}:{R+7}], v{vBp}, s[{sWS}:{sWS+3}], s{sB_C} offen offset:1024 sc1
              s_waitcnt vmcnt(0)""")
        if self.opt.get('fine'): self.stamp(3)
        a(f"""ds_write_b128 v{vBp}, v[{R}:{R+3}] offset:{LQK}
              ds_write_b128 v{vBp}, v[{R+4}:{R+7}] offset:{LQK+1024}
              v_max3_u32 v{T0}, v{R}, v{R+1}, v{R+2}
              v_max3_u32 v{T1}, v{R+3}, v{R+4}, v{R+5}
              v_max3_u32 v{T0}, v{T0}, v{R+6}, v{R+7}
              v_max_u32 v{T0}, v{T0}, v{T1}
              v_cmp_eq_u32 vcc, -1, v{T0}
              s_cbranch_vccz {ok}""")
        self.retry(lp, 0)
        a.label(ok)
        a(f's_mov_b64 exec, s[{sMN8}:{sMN8+1}]')
        a('s_waitcnt lgkmcnt(0)')
        a('s_barrier')
        for ks in range(6):
            a(f'ds_read_b128 v[{X+4*ks}:{X+4*ks+3}], v{vXY} offset:{LQK + 512*ks}')
            a(f'ds_read_b128 v[{Y+4*ks}:{Y+4*ks+3}], v{vXY} offset:{LQK + 3072 + 512*ks}')
        a('s_mov_b64 exec, -1')
        self.stamp(5)
        for ks in range(6):
            a(f's_waitcnt lgkmcnt({11 - 2*ks})')
            for tile, A in ((0, KX + 4*ks), (1, KX + 24 + 4*ks), (2, Y + 4*ks)):
                if tile == 2: a(f's_waitcnt lgkmcnt({10 - 2*ks})')
                c = BI + 4*tile if ks == 0 else SS + 4*tile
                a(f'v_mfma_f32_16x16x32_bf16 v[{SS+4*tile}:{SS+4*tile+3}], v[{A}:{A+3}], v[{X+4*ks}:{X+4*ks+3}], v[{c}:{c+3}]')
        vm_loads()
        self.stamp(1)
        a(f"""v_max3_f32 v{T0}, v{SS}, v{SS+1}, v{SS+2}
              v_max3_f32 v{T1}, v{SS+3}, v{SS+4}, v{SS+5}
              v_max3_f32 v{T0}, v{T0}, v{SS+6}, v{SS+7}
              v_max3_f32 v{T1}, v{T1}, v{SS+8}, v{SS+9}
              v_max3_f32 v{T0}, v{T0}, v{SS+10}, v{SS+11}
              v_max_f32 v{T0}, v{T0}, v{T1}
              v_mov_b32 v{T1}, v{T0}
              s_nop 1
              v_permlane32_swap_b32 v{T0}, v{T1}
              v_max_f32 v{T0}, v{T0}, v{T1}
              v_mov_b32 v{T1}, v{T0}
              s_nop 1
              v_permlane16_swap_b32 v{T0}, v{T1}
              v_max_f32 v{T0}, v{T0}, v{T1}
              v_mul_f32 v{TM}, s{sSCL}, v{T0}""")
        def pkfma(r):
            a(f'v_pk_fma_f32 v[{SS+r}:{SS+r+1}], v[{SS+r}:{SS+r+1}], s[{sSCL}:{sSCL+1}], v[{TM}:{TM+1}] op_sel_hi:[1,0,0] neg_lo:[0,0,1] neg_hi:[0,0,1]')
        for r in range(0, 8, 2): pkfma(r)
        for r in range(8): a(f'v_exp_f32 v{SS+r}, v{SS+r}')
        for r in range(8, 12, 2): pkfma(r)
        for r in range(4): a(f'v_cvt_pk_bf16_f32 v{PP+r}, v{SS+2*r}, v{SS+2*r+1}')
        a(f'v_exp_f32 v{SS+8}, v{SS+8}')
        a(f'v_exp_f32 v{SS+9}, v{SS+9}')
        a(f'v_mfma_f32_16x16x32_bf16 v[{LL}:{LL+3}], v[{ONES}:{ONES+3}], v[{PP}:{PP+3}], 0')
        a(f'v_exp_f32 v{SS+10}, v{SS+10}')
        a(f'v_mfma_f32_16x16x32_bf16 v[{OO}:{OO+3}], v[{VX}:{VX+3}], v[{PP}:{PP+3}], 0')
        a(f'v_exp_f32 v{SS+11}, v{SS+11}')
        a(f'v_mfma_f32_16x16x32_bf16 v[{OO+4}:{OO+7}], v[{VX+4}:{VX+7}], v[{PP}:{PP+3}], 0')
        a(f'v_cvt_pk_bf16_f32 v{PP+4}, v{SS+8}, v{SS+9}')
        a(f'v_cvt_pk_bf16_f32 v{PP+5}, v{SS+10}, v{SS+11}')
        a(f'v_mfma_f32_16x16x32_bf16 v[{OO+8}:{OO+11}], v[{VX+8}:{VX+11}], v[{PP}:{PP+3}], 0')
        a.label(vlp)
        a(f"""s_waitcnt vmcnt(0)
              v_max3_u32 v{T1}, v{VM}, v{VM+1}, v{VM+2}
              v_max3_u32 v{T2}, v{VM+3}, v{VM+4}, v{VM+5}
              v_mfma_f32_16x16x32_bf16 v[{OO+12}:{OO+15}], v[{VX+12}:{VX+15}], v[{PP}:{PP+3}], 0
              v_max3_u32 v{T1}, v{T1}, v{VM+6}, v{VM+7}
              v_max_u32 v{T1}, v{T1}, v{T2}
              v_cmp_eq_u32 vcc, -1, v{T1}
              s_cbranch_vccnz {vrt}""")
        a.label(vok)
        if not self.opt.get('fine'): self.stamp(0)
        a(f'v_mfma_f32_16x16x16_bf16 v[{LL}:{LL+3}], v[{ONES}:{ONES+1}], v[{PP+4}:{PP+5}], v[{LL}:{LL+3}]')
        for t in range(4):
            a(f'v_mfma_f32_16x16x16_bf16 v[{OO+4*t}:{OO+4*t+3}], v[{VM+2*t}:{VM+2*t+1}], v[{PP+4}:{PP+5}], v[{OO+4*t}:{OO+4*t+3}]')
        a(f"""s_nop 3
              v_rcp_f32 v{LL}, v{LL}""")
        for t in range(4):
            a(f'v_cvt_pk_bf16_f32 v{X+2*t}, v{OO+4*t}, v{OO+4*t+1}')
            a(f'v_cvt_pk_bf16_f32 v{X+2*t+1}, v{OO+4*t+2}, v{OO+4*t+3}')
            a(f'ds_write_b64 v{vOw}, v[{X+2*t}:{X+2*t+1}] offset:{256*t}')
            if t == 0: a(f'ds_write_b32 v{vRw}, v{LL}')
        a('s_waitcnt lgkmcnt(0)')
        a('s_barrier')
        self.stamp(2)
        skipwo = a.newlabel('Latsk')
        a(f"""s_cmp_eq_u32 s{sSTEP}, 63
              s_cbranch_scc1 {skipwo}""")
        self.wo_stage([(WA, WB, TA, TB, 0)], vFrag, vIdx, F, vCoff, RR)
        a.label(skipwo)
        if not self.opt.get('fine'): self.stamp(3)
        for t in range(4):
            for r in range(4):
                a(f'v_mul_f32 v{OO+4*t+r}, v{OO+4*t+r}, v{LL}')
            a(f'v_cvt_pk_bf16_f32 v{OO+4*t}, v{OO+4*t}, v{OO+4*t+1}')
            a(f'v_cvt_pk_bf16_f32 v{OO+4*t+1}, v{OO+4*t+2}, v{OO+4*t+3}')
        a(f's_mov_b64 exec, s[{sMH8}:{sMH8+1}]')
        for t in range(4):
            a(f'ds_write_b64 v{vOx}, v[{OO+4*t}:{OO+4*t+1}] offset:{32*t}')
        a('s_mov_b64 exec, -1')
        a(f'ds_read_b128 v[{OO}:{OO+3}], v{vBp2}')
        a('s_waitcnt lgkmcnt(0)')
        if not self.opt.get('no_ost'):
            self.lstore([f'buffer_store_dwordx4 v[{OO}:{OO+3}], v{vOst}, s[{sWS}:{sWS+3}], s{sO_C} offen'])
        a(f"""s_cmp_eq_u32 s{sSTEP}, 63
              s_cbranch_scc1 {end}
              s_add_u32 s{sT3}, s{sSTEP}, 1
              s_and_b32 s{sT3}, s{sT3}, 1
              s_mul_i32 s{sLB}, s{sT3}, {LBUF_SZ}
              s_add_u32 s{sLB}, s{sLB}, {LBUF}""")
        read_seg()
        self.zero(TA, 8)
        self.a_poll(vAoff, F)
        self.stamp(4, 1)
        a(f's_branch {loop}')
        a.label(end)
        a('s_waitcnt vmcnt(0)')
        self.finish()
        a.label(vrt)
        vm_loads()
        self.retry(vlp, 1)
        a(f's_branch {vok}')
        self.emit_tail()

def emit_entry(a, opt, exit_label):
    a(f'''s_cmp_ge_u32 s2, 256
          s_cbranch_scc1 {exit_label}
          s_load_dwordx16 s[16:31], s[0:1], 0
          s_load_dwordx8 s[32:39], s[0:1], 64
          s_load_dwordx4 s[40:43], s[0:1], 96
          s_load_dwordx2 s[44:45], s[0:1], 112
          v_lshrrev_b32 v1, 6, v0
          s_getreg_b32 s{sJ}, hwreg(HW_REG_XCC_ID)
          v_readfirstlane_b32 s{sW}, v1
          s_and_b32 s{sJ}, s{sJ}, 7
          s_mov_b32 s{sBUD}, {opt.get('budget', 1 << 20)}
          s_mov_b32 s{sSTEP}, 0
          s_mov_b64 s[98:99], 0
          s_mov_b64 s[100:101], 0
          s_mov_b32 s{sMIX}, {1 if opt.get('force_mixed') else 0}
          s_mov_b32 s{sMN8}, 0x00ff00ff
          s_mov_b32 s{sMN8+1}, 0x00ff00ff
          s_mov_b32 s{sMH8}, 0xff00ff00
          s_mov_b32 s{sMH8+1}, 0xff00ff00
          s_mov_b32 s{sML32}, -1
          s_mov_b32 s{sML32+1}, 0
          s_mov_b32 s{sSELLO}, 0x05040100
          s_mov_b32 s{sSELHI}, 0x07060302
          s_mov_b32 s{sSCL}, {hex(f32bits(DH ** -0.5 * math.log2(math.e)))}
          s_waitcnt lgkmcnt(0)
          s_mov_b32 s{sWS}, s{ptr(14)}
          s_mov_b32 s{sWS+1}, s{ptr(14)+1}
          s_mov_b32 s{sWS+2}, {WS_SIZE}
          s_mov_b32 s{sWS+3}, 0x20000
          s_mov_b32 s{sDBG}, s{ptr(13)}
          s_mov_b32 s{sDBG+1}, s{ptr(13)+1}
          s_mov_b32 s{sDBG+2}, 256
          s_mov_b32 s{sDBG+3}, 0x20000''')
    if opt.get('prof'):
        a(f's_memrealtime s[{sST}:{sST+1}]')
        a('s_waitcnt lgkmcnt(0)')
    if opt.get('fake_xcc'):
        a(f'''s_mul_i32 s{sJ}, s2, 5
              s_lshr_b32 s{sJ}, s{sJ}, 3
              s_and_b32 s{sJ}, s{sJ}, 7''')
    l1, l2 = a.newlabel('Le'), a.newlabel('Le')
    a(f'''s_cmp_lg_u32 s{sW}, 0
          s_cbranch_scc1 {l1}
          s_mov_b64 exec, 1
          v_mov_b32 v2, 1
          s_lshl_b32 s{sT0}, s{sJ}, 2
          v_mov_b32 v3, s{sT0}
          buffer_atomic_add v2, v3, s[{sDBG}:{sDBG+3}], 0 offen sc0 sc1
          s_mov_b64 exec, -1''')
    a.label(l1)
    a(f'''v_mov_b32 v4, -1
          v_mov_b32 v5, -1
          v_mov_b32 v6, -1
          v_mov_b32 v7, -1
          v_lshlrev_b32 v8, 4, v0
          s_mul_i32 s{sT0}, s2, {RING_PER_WG}
          s_add_u32 s{sT0}, s{sT0}, {WS_RA}''')
    for k in range(RING_PER_WG // 8192):
        a(f'''buffer_store_dwordx4 v[4:7], v8, s[{sWS}:{sWS+3}], s{sT0} offen sc1
              s_add_u32 s{sT0}, s{sT0}, 8192''')
    a(f'''v_cmp_gt_u32 vcc, {RING_PER_WG % 8192 // 16}, v0
          s_and_saveexec_b64 s[{sT1}:{sT1+1}], vcc
          s_cbranch_execz {l2}
          buffer_store_dwordx4 v[4:7], v8, s[{sWS}:{sWS+3}], s{sT0} offen sc1''')
    a.label(l2)
    l3, l4, l5 = a.newlabel('Le'), a.newlabel('Le'), a.newlabel('Le')
    a(f'''s_mov_b64 exec, -1
          s_cmp_lg_u32 s{sW}, 1
          s_cbranch_scc1 {l5}
          v_mov_b32 v10, 0
          v_mov_b32 v11, 0
          v_mov_b32 v12, 0
          v_mov_b32 v13, 0
          s_lshl_b32 s{sT0}, s2, 10
          s_add_u32 s{sT0}, s{sT0}, {WS_FLAG - 1024}
          buffer_store_dwordx4 v[10:13], v8, s[{sWS}:{sWS+3}], s{sT0} offen sc1''')
    a.label(l5)
    srd(a, ptr(0), S * DM * 2)
    a(f'''v_and_b32 v9, 63, v0
          v_lshlrev_b32 v9, 2, v9
          s_lshl_b32 s{sT0}, s2, 3
          s_add_u32 s{sT0}, s{sT0}, s{sW}
          s_mul_i32 s{sT1}, s{sT0}, 1280''')
    for i in range(5):
        a(f'buffer_load_dword v{14+i}, v9, s[{sT}:{sT+3}], s{sT1} offen offset:{256*i}')
    srd(a, ptr(11), DM * 2)
    for i in range(5):
        a(f'buffer_load_dword v{20+i}, v9, s[{sT}:{sT+3}], 0 offen offset:{256*i}')
    a('s_waitcnt vmcnt(0)')
    a('v_mov_b32 v26, 0')
    for i in range(5):
        a(f'''v_lshlrev_b32 v27, 16, v{14+i}
              v_lshlrev_b32 v28, 16, v{20+i}
              v_fmac_f32 v26, v27, v28
              v_and_b32 v27, 0xffff0000, v{14+i}
              v_and_b32 v28, 0xffff0000, v{20+i}
              v_fmac_f32 v26, v27, v28''')
    for sh in (8, 4, 2, 1):
        a(f'''s_nop 1
              v_add_f32_dpp v26, v26, v26 row_ror:{sh} row_mask:0xf bank_mask:0xf''')
    for sw in ('v_permlane16_swap_b32', 'v_permlane32_swap_b32'):
        a(f'''v_mov_b32 v27, v26
              s_nop 1
              {sw} v26, v27
              v_add_f32 v26, v26, v27''')
    a(f'''v_mul_f32 v26, {hex(f32bits(-math.log2(math.e)))}, v26
          v_exp_f32 v26, v26
          s_nop 0
          v_add_f32 v26, 1.0, v26
          v_rcp_f32 v26, v26
          v_mov_b32 v27, 0
          s_lshl_b32 s{sT0}, s{sT0}, 2
          s_add_u32 s{sT0}, s{sT0}, {WS_G}
          s_mov_b64 exec, 1
          buffer_store_dword v26, v27, s[{sWS}:{sWS+3}], s{sT0} offen sc1
          s_mov_b64 exec, -1
          s_waitcnt vmcnt(0)
          s_cmp_lg_u32 s{sW}, 0
          s_cbranch_scc1 {l3}
          s_mov_b64 exec, 1
          v_mov_b32 v3, 0
          ds_write_b32 v3, v2
          s_mov_b64 exec, -1
          s_waitcnt lgkmcnt(0)''')
    a.label(l3)
    a(f'''s_barrier
          v_mov_b32 v3, 0
          ds_read_b32 v2, v3
          s_cmp_lg_u32 s{sW}, 0
          s_cbranch_scc1 {l4}
          s_mov_b64 exec, 1
          v_mov_b32 v4, 1
          v_mov_b32 v5, 32
          buffer_atomic_add v4, v5, s[{sDBG}:{sDBG+3}], 0 offen sc1
          s_mov_b64 exec, -1''')
    a.label(l4)
    a(f'''s_waitcnt lgkmcnt(0)
          v_readfirstlane_b32 s{sC}, v2
          s_barrier''')
    if opt.get('prof'):
        a(f's_memrealtime s[{sST+8}:{sST+9}]')
        a('s_waitcnt lgkmcnt(0)')

import struct
def f32bits(x): return struct.unpack('<I', struct.pack('<f', x))[0]

def emit_chain_body(a, opt):
    ch = Chain(a, opt)
    lv, l7, lat = a.newlabel('Lrole_v'), a.newlabel('Lrole_w7'), a.newlabel('Lrole_att')
    a(f'''s_lshr_b32 s{sH}, s{sC}, 2
          s_lshl_b32 s{sT0}, s{sJ}, 2
          s_add_u32 s{sH}, s{sH}, s{sT0}
          s_and_b32 s{sG}, s{sC}, 3
          s_setprio 2
          s_cmp_eq_u32 s{sW}, 3
          s_cbranch_scc1 {lv}
          s_cmp_eq_u32 s{sW}, 7
          s_cbranch_scc1 {l7}
          s_cmp_ge_u32 s{sW}, 4
          s_cbranch_scc1 {lat}''')
    ch.role_qk()
    a.label(lv); ch.role_v()
    a.label(l7); ch.role_w7()
    a.label(lat); ch.role_att()
```

```python
from asmlib import *
from layout import *
from chain import (sWS, sDBG, sT, ptr, sW, sJ, sC, sMIX, sBUD, sT0, sT1, sT2, sT3, f32bits)
import math

XB, WB_OFF, STAGE = 32768, 32768, 57344
GEMM1_LDS = 2 * STAGE

sX = 56
sWD = 60
sTile, sXo, sWo, sWrs, sKind, sOut, sNK, sNOut, sIt, sM0x, sM0w, sWstep = 64, 65, 66, 67, 68, 70, 71, 72, 73, 74, 75, 79
sFlagP = 80
sNFlag = 81
sC1, sC2 = 82, 83

class Gemm1:
    def __init__(self, a, opt, nworkers, rank0):
        self.a, self.opt, self.NW, self.rank0 = a, opt, nworkers, rank0
        self.tail = []

    def lstore(self, insts):
        a = self.a
        slow, back = a.newlabel('Lgslow'), a.newlabel('Lgback')
        a(f's_cmp_lg_u32 s{sMIX}, 0')
        a(f's_cbranch_scc1 {slow}')
        for i in insts: a(i)
        a.label(back)
        self.tail.append((slow, [i + ' sc1' if i.startswith('buffer_') else i for i in insts], back))

    def emit_tail(self):
        a = self.a
        for slow, insts, back in self.tail:
            a.label(slow)
            for i in insts: a(i)
            a(f's_branch {back}')
        self.tail = []

    def decode(self):
        a = self.a
        lf, ln, ld = a.newlabel('Ldf'), a.newlabel('Ldn'), a.newlabel('Ldd')
        a(f'''s_cmp_ge_u32 s{sTile}, 112
              s_cbranch_scc1 {ln}
              s_cmp_ge_u32 s{sTile}, 96
              s_cbranch_scc1 {lf}
              s_mul_i32 s{sT0}, s{sTile}, 43691
              s_lshr_b32 s{sT0}, s{sT0}, 19
              s_mul_i32 s{sT1}, s{sT0}, 12
              s_sub_u32 s{sT1}, s{sTile}, s{sT1}
              s_lshr_b32 s{sNK}, s{sT1}, 2
              s_and_b32 s{sT1}, s{sT1}, 3
              s_lshl_b32 s{sT2}, s{sJ}, 2
              s_add_u32 s{sT1}, s{sT1}, s{sT2}
              s_mul_i32 s{sXo}, s{sT0}, {256*1280}
              s_mul_i32 s{sWo}, s{sT1}, 384
              s_mov_b32 s{sWrs}, 12288
              s_cmp_eq_u32 s{sNK}, 1
              s_cselect_b32 s{sWD}, s{ptr(3)}, s{ptr(2)}
              s_cselect_b32 s{sWD+1}, s{ptr(3)+1}, s{ptr(2)+1}
              s_cmp_eq_u32 s{sNK}, 2
              s_cselect_b32 s{sWD}, s{ptr(4)}, s{sWD}
              s_cselect_b32 s{sWD+1}, s{ptr(4)+1}, s{sWD+1}
              s_mov_b32 s{sWD+2}, {DM*NH*DH*2}
              s_mul_i32 s{sNOut}, s{sNK}, {WS_K}
              s_mul_i32 s{sT2}, s{sT1}, {2048*384}
              s_add_u32 s{sNOut}, s{sNOut}, s{sT2}
              s_mul_i32 s{sT2}, s{sT0}, {256*384}
              s_add_u32 s{sNOut}, s{sNOut}, s{sT2}
              s_mul_i32 s{sT2}, s{sW}, 3
              s_lshr_b32 s{sT3}, s{sT2}, 2
              s_branch {ld}''')
        a.label(lf)
        a(f'''s_sub_u32 s{sT1}, s{sTile}, 96
              s_lshr_b32 s{sT0}, s{sT1}, 1
              s_and_b32 s{sT1}, s{sT1}, 1
              s_mov_b32 s{sNK}, 3
              s_mul_i32 s{sXo}, s{sT0}, {256*1280}
              s_mul_i32 s{sWo}, s{sJ}, 384
              s_mul_i32 s{sT2}, s{sT1}, 192
              s_add_u32 s{sWo}, s{sWo}, s{sT2}
              s_mov_b32 s{sWrs}, 3072
              s_cmp_ge_u32 s{sW}, 4
              s_cselect_b32 s{sWD}, s{ptr(9)}, s{ptr(8)}
              s_cselect_b32 s{sWD+1}, s{ptr(9)+1}, s{ptr(8)+1}
              s_mov_b32 s{sWD+2}, {DM*DF*2}
              s_mul_i32 s{sNOut}, s{sT0}, {256*3072}
              s_add_u32 s{sNOut}, s{sNOut}, s{sWo}
              s_add_u32 s{sNOut}, s{sNOut}, {WS_H}
              s_and_b32 s{sT2}, s{sW}, 3
              s_mul_i32 s{sT2}, s{sT2}, 3
              s_lshr_b32 s{sT3}, s{sT2}, 2
              s_branch {ld}''')
        a.label(ln)
        a(f'''s_mov_b32 s{sNK}, 4
              s_mov_b32 s{sWD+2}, 0
              s_mov_b32 s{sT2}, 0
              s_mov_b32 s{sT3}, 0''')
        a.label(ld)
        for ii in range(3):
            a(f'''s_add_u32 s{sT0}, s{sT2}, {ii}
                  s_lshr_b32 s{sT1}, s{sT0}, 2
                  s_and_b32 s{sT0}, s{sT0}, 3
                  s_lshl_b32 s{sT0}, s{sT0}, 4
                  s_mul_i32 s{sT0}, s{sT0}, s{sWrs}
                  s_lshl_b32 s{sT1}, s{sT1}, 6
                  s_add_u32 s{sT0}, s{sT0}, s{sT1}
                  s_add_u32 s{self.sP+ii}, s{sT0}, s{sWo}''')
        a(f'''s_mul_i32 s{sT0}, s{sW}, {32*1280}
              s_add_u32 s{sXo}, s{sXo}, s{sT0}
              s_lshl_b32 s{sWstep}, s{sWrs}, 6
              v_mul_lo_u32 v{self.vWg}, v{self.vL2}, s{sWrs}
              v_add_u32 v{self.vWg}, v{self.vWg}, v{self.vL3}''')

    def dma(self, buf):
        a = self.a
        for ii in range(4):
            a(f's_add_u32 m0, s{sM0x}, {buf*STAGE + ii*1024}')
            if ii: a(f's_add_u32 s{sT0}, s{sXo}, {ii*10240}')
            else: a('s_nop 0')
            a(f'buffer_load_dwordx4 v{self.vXg + (ii & 1)}, s[{sX}:{sX+3}], s{sT0 if ii else sXo} offen lds')
        for ii in range(3):
            a(f's_add_u32 m0, s{sM0w}, {buf*STAGE + ii*1024}')
            a('s_nop 0')
            a(f'buffer_load_dwordx4 v{self.vWg}, s[{sWD}:{sWD+3}], s{self.sP+ii} offen lds')
            a(f's_add_u32 s{self.sP+ii}, s{self.sP+ii}, s{sWstep}')
        a(f's_add_u32 s{sXo}, s{sXo}, 128')

    def reads(self, var, buf, kk, fs):
        a = self.a
        MT, NT = var
        F = self.F + fs * 28
        xa = (self.vXr if MT == 2 else self.vXr1) + buf * 4 + kk
        out = []
        for mt in range(MT):
            out.append(f'ds_read_b128 v[{F+4*mt}:{F+4*mt+3}], v{xa} offset:{4096*mt}')
        wa = (self.vWr if MT == 2 else self.vWr1) + buf
        for nt in range(NT):
            for j in range(2):
                r = F + 4*MT + 4*nt + 2*j
                out.append(f'ds_read_b64_tr_b16 v[{r}:{r+1}], v{wa} offset:{4096*nt + 1024*kk + 256*j}')
        return out

    def mfmas(self, var, swap, fs, first):
        MT, NT = var
        F = self.F + fs * 28
        out = []
        for mt in range(MT):
            for nt in range(NT):
                acc = self.ACC + 16 * (mt * NT + nt)
                x = f'v[{F+4*mt}:{F+4*mt+3}]'; w = f'v[{F+4*MT+4*nt}:{F+4*MT+4*nt+3}]'
                A, B = (x, w) if swap else (w, x)
                c = '0' if first else f'v[{acc}:{acc+15}]'
                out.append(f'v_mfma_f32_32x32x16_bf16 v[{acc}:{acc+15}], {A}, {B}, {c}')
        return out

    def interleave(self, mf, other):
        a = self.a
        n = len(mf); per = (len(other) + n - 1) // n if other else 0
        k = 0
        for m in mf:
            a(m)
            for o in other[k:k + per]: a(o)
            k += per
        for o in other[k:]: a(o)

    def stage_top(self, flag=False):
        a = self.a
        a('s_waitcnt vmcnt(0) lgkmcnt(0)')
        a('s_barrier')

    def tile_loop(self, var, swap, name):
        a = self.a
        nr = var[0] + 2 * var[1]
        loop = a.newlabel('L' + name)
        def stage(buf, first_stage, capture):
            self.stage_top()
            for r in self.reads(var, buf, 0, 0): a(r)
            if first_stage:
                self.after_top()
            return
        self.stage_top()
        self.after_top()
        for r in self.reads(var, 0, 0, 0): a(r)
        self.dma(1)
        def body(buf, kstart_first):
            for kk in range(3):
                rd = self.reads(var, buf, kk + 1, (kk + 1) & 1)
                a(f's_waitcnt lgkmcnt(0)')
                self.interleave(self.mfmas(var, swap, kk & 1, kstart_first and kk == 0), rd)
        body(0, True)
        a(f's_mov_b32 s{sIt}, 0')
        a.label(loop)
        for buf in (1, 0):
            last = a.newlabel('Lgl')
            self.stage_top()
            rd = self.reads(var, buf, 0, 0)
            self.interleave(self.mfmas(var, swap, 1, False), rd)
            if buf == 1:
                skip = a.newlabel('Lgn')
                a(f's_cmp_lg_u32 s{sIt}, 4')
                a(f's_cbranch_scc1 {skip}')
                a(f's_add_u32 s{sTile}, s{sTile}, {self.NW}')
                self.decode()
                a.label(skip)
            self.dma(buf ^ 1)
            body(buf, False)
            if buf == 1:
                a(f's_cmp_eq_u32 s{sIt}, 4')
                a(f's_cbranch_scc1 {name}_done')
        a(f's_add_u32 s{sIt}, s{sIt}, 1')
        a(f's_branch {loop}')
        a.label(f'{name}_done')
        a('s_waitcnt lgkmcnt(0)')
        for m in self.mfmas(var, swap, 1, False): a(m)
        a('s_nop 7'); a('s_nop 3')

    def after_top(self):
        if not self.opt.get('fused'): return
        a = self.a
        l = a.newlabel('Lgf')
        a(f'''s_cmp_eq_u32 s{sFlagP}, 0
              s_cbranch_scc1 {l}
              s_cmp_lg_u32 s{sW}, 0
              s_cbranch_scc1 {l}
              s_mov_b64 exec, 1''')
        self.lstore([f'buffer_store_dword v{self.vOne}, v{self.vZero}, s[{sWS}:{sWS+3}], s{sFlagP} offen'])
        a('s_mov_b64 exec, -1')
        a.label(l)

    def emit(self, done_label):
        a = self.a
        al = Alloc(1, 256)
        self.ACC = al(96, 2); self.F = al(56, 2)
        self.vXg = al(2); self.vWg = al()
        self.vXr = al(8); self.vXr1 = al(8); self.vWr = al(2); self.vWr1 = al(2)
        self.vL2, self.vL3 = al(), al()
        vL, vT0, vT1, vT2 = al(), al(), al(), al()
        vQK, vV, vH = al(), al(), al()
        self.vOne, self.vZero = al(), al()
        self.sP = 84
        a(f'''v_and_b32 v{vL}, 63, v0
              v_mov_b32 v{self.vOne}, 1
              v_mov_b32 v{self.vZero}, 0
              s_mov_b32 s{sX}, s{ptr(0)}
              s_mov_b32 s{sX+1}, s{ptr(0)+1}
              s_mov_b32 s{sX+2}, {S*DM*2}
              s_mov_b32 s{sX+3}, 0x20000
              s_mov_b32 s{sWD}, s{ptr(2)}
              s_mov_b32 s{sWD+1}, s{ptr(2)+1}
              s_mov_b32 s{sWD+3}, 0x20000
              s_mov_b32 s{sWrs}, 0
              s_mov_b32 s{sWo}, 0
              s_mov_b32 s{sXo}, 0
              s_mov_b32 s{sNOut}, 0
              s_mov_b32 s{sFlagP}, 0
              s_mov_b32 s{sC1}, {hex(f32bits(-2 * math.sqrt(2 / math.pi) * math.log2(math.e)))}
              s_mov_b32 s{sC2}, {hex(f32bits(-2 * math.sqrt(2 / math.pi) * math.log2(math.e) * 0.044715))}
              s_lshl_b32 s{sM0x}, s{sW}, 12
              s_mul_i32 s{sM0w}, s{sW}, 3072
              s_add_u32 s{sM0w}, s{sM0w}, {WB_OFF}
              s_sub_u32 s{sTile}, s{sC}, {self.rank0}
              v_lshrrev_b32 v{self.vL2}, 2, v{vL}
              v_and_b32 v{self.vL3}, 3, v{vL}
              v_lshlrev_b32 v{self.vL3}, 4, v{self.vL3}''')
        for par in range(2):
            a(f'''v_lshrrev_b32 v{vT0}, 4, v{vL}
                  v_add_u32 v{vT0}, {4*par}, v{vT0}
                  v_and_b32 v{vT1}, 7, v{vL}
                  v_xor_b32 v{vT0}, v{vT0}, v{vT1}
                  v_lshlrev_b32 v{vT0}, 4, v{vT0}
                  v_lshrrev_b32 v{vT1}, 3, v{vL}
                  v_mul_u32_u24 v{vT1}, 1280, v{vT1}
                  v_add_u32 v{self.vXg+par}, v{vT0}, v{vT1}''')
        a(f'''v_and_b32 v{vT0}, 31, v{vL}
              v_bfe_u32 v{vT1}, v{vL}, 1, 3
              v_lshrrev_b32 v{vT2}, 5, v{vL}
              v_xor_b32 v{vT1}, v{vT1}, v{vT2}
              s_lshr_b32 s{sT0}, s{sW}, 1
              s_lshl_b32 s{sT0}, s{sT0}, 13
              s_lshl_b32 s{sT1}, s{sW}, 12''')
        for kk in range(4):
            a(f'''v_xor_b32 v{vT2}, {2*kk}, v{vT1}
                  v_lshlrev_b32 v{vT2}, 4, v{vT2}
                  v_lshl_add_u32 v{vT2}, v{vT0}, 7, v{vT2}
                  v_add_u32 v{self.vXr+kk}, s{sT0}, v{vT2}
                  v_add_u32 v{self.vXr1+kk}, s{sT1}, v{vT2}
                  v_add_u32 v{self.vXr+4+kk}, {STAGE}, v{self.vXr+kk}
                  v_add_u32 v{self.vXr1+4+kk}, {STAGE}, v{self.vXr1+kk}''')
        a(f'''v_lshrrev_b32 v{vT0}, 5, v{vL}
              v_lshlrev_b32 v{vT0}, 9, v{vT0}
              v_bfe_u32 v{vT1}, v{vL}, 2, 2
              v_lshl_add_u32 v{vT0}, v{vT1}, 6, v{vT0}
              v_bfe_u32 v{vT1}, v{vL}, 4, 1
              v_lshl_add_u32 v{vT0}, v{vT1}, 5, v{vT0}
              v_and_b32 v{vT1}, 3, v{vL}
              v_lshl_add_u32 v{vT0}, v{vT1}, 3, v{vT0}
              v_add_u32 v{self.vWr1}, {WB_OFF}, v{vT0}
              v_add_u32 v{self.vWr1+1}, {STAGE}, v{self.vWr1}
              s_and_b32 s{sT0}, s{sW}, 1
              s_mul_i32 s{sT0}, s{sT0}, {3*4096}
              v_add_u32 v{self.vWr}, s{sT0}, v{self.vWr1}
              v_add_u32 v{self.vWr+1}, {STAGE}, v{self.vWr}''')
        a(f'''v_and_b32 v{vT0}, 31, v{vL}
              v_lshrrev_b32 v{vT1}, 5, v{vL}
              s_lshr_b32 s{sT0}, s{sW}, 1
              s_and_b32 s{sT1}, s{sW}, 1
              v_mul_u32_u24 v{vQK}, 384, v{vT0}
              v_lshl_add_u32 v{vQK}, v{vT1}, 4, v{vQK}
              s_mul_i32 s{sT2}, s{sT0}, {64*384}
              s_mul_i32 s{sT3}, s{sT1}, 192
              s_add_u32 s{sT2}, s{sT2}, s{sT3}
              v_add_u32 v{vQK}, s{sT2}, v{vQK}
              v_lshlrev_b32 v{vV}, 6, v{vT0}
              v_lshl_add_u32 v{vV}, v{vT1}, 4, v{vV}
              s_mul_i32 s{sT2}, s{sT0}, {2*12288}
              s_mul_i32 s{sT3}, s{sT1}, {96*64}
              s_add_u32 s{sT2}, s{sT2}, s{sT3}
              v_add_u32 v{vV}, s{sT2}, v{vV}
              v_mul_u32_u24 v{vH}, 3072, v{vT0}
              v_lshl_add_u32 v{vH}, v{vT1}, 4, v{vH}
              s_mul_i32 s{sT2}, s{sW}, {32*3072}
              v_add_u32 v{vH}, s{sT2}, v{vH}''')
        self.decode()
        self.dma(0)
        nxt = a.newlabel('Lgnext')
        lqk, lv, lf = 'Lg_qk', 'Lg_v', 'Lg_f'
        a.label(nxt)
        a(f'''s_mov_b32 s{sKind}, s{sNK}
              s_mov_b32 s{sOut}, s{sNOut}
              s_lshl_b32 s{sNFlag}, s{sTile}, 2
              s_cmp_eq_u32 s{sKind}, 4
              s_cbranch_scc1 Lg_end
              s_cmp_eq_u32 s{sKind}, 2
              s_cbranch_scc1 {lv}
              s_cmp_eq_u32 s{sKind}, 3
              s_cbranch_scc1 {lf}''')
        def set_flag():
            a(f'''s_mul_i32 s{sFlagP}, s{sJ}, 512
                  s_add_u32 s{sFlagP}, s{sFlagP}, s{sNFlag}
                  s_add_u32 s{sFlagP}, s{sFlagP}, {WS_FLAG}''')
        ACC = self.ACC
        self.tile_loop((2, 3), False, lqk)
        st = []
        for mt in range(2):
            a(f's_add_u32 s{sT0+0 if mt == 0 else sT1}, s{sOut}, {mt*32*384}')
        for mt in range(2):
            for nt in range(3):
                c = ACC + 16 * (mt * 3 + nt)
                for r in range(8):
                    a(f'v_cvt_pk_bf16_f32 v{c+r}, v{c+2*r}, v{c+2*r+1}')
                for u in range(2):
                    st.append(f'buffer_store_dwordx4 v[{c+4*u}:{c+4*u+3}], v{vQK}, s[{sWS}:{sWS+3}], s{sT1 if mt else sT0} offen offset:{64*nt + 32*u}')
        self.lstore(st)
        set_flag()
        a(f's_branch {nxt}')
        a.label(lv)
        self.tile_loop((2, 3), True, lv + 'x')
        st = []
        for mt in range(2):
            a(f's_add_u32 s{sT1 if mt else sT0}, s{sOut}, {mt*12288}')
        for mt in range(2):
            for nt in range(3):
                c = ACC + 16 * (mt * 3 + nt)
                a(f'''v_cvt_pk_bf16_f32 v{c}, v{c}, v{c+1}
                      v_cvt_pk_bf16_f32 v{c+1}, v{c+2}, v{c+3}
                      v_cvt_pk_bf16_f32 v{c+2}, v{c+8}, v{c+9}
                      v_cvt_pk_bf16_f32 v{c+3}, v{c+10}, v{c+11}
                      v_cvt_pk_bf16_f32 v{c+4}, v{c+4}, v{c+5}
                      v_cvt_pk_bf16_f32 v{c+5}, v{c+6}, v{c+7}
                      v_cvt_pk_bf16_f32 v{c+6}, v{c+12}, v{c+13}
                      v_cvt_pk_bf16_f32 v{c+7}, v{c+14}, v{c+15}''')
                for u in range(2):
                    off = 2048*nt + 32*u
                    so = sT1 if mt else sT0
                    if off >= 4096:
                        st.append(f's_add_u32 s{sT2}, s{so}, 4096'); so = sT2; off -= 4096
                    st.append(f'buffer_store_dwordx4 v[{c+4*u}:{c+4*u+3}], v{vV}, s[{sWS}:{sWS+3}], s{so} offen offset:{off}')
        self.lstore(st)
        set_flag()
        a(f's_branch {nxt}')
        a.label(lf)
        self.tile_loop((1, 6), False, lf + 'x')
        st = []
        T = self.F
        for nt in range(3):
            g, u = ACC + 16 * nt, ACC + 16 * (3 + nt)
            for r0 in range(0, 16, 8):
                R = range(r0, r0 + 8)
                for r in R: a(f'v_mul_f32 v{T+r-r0}, v{g+r}, v{g+r}')
                for r in R: a(f'v_mov_b32 v{T+8+r-r0}, s{sC1}')
                for r in R: a(f'v_fma_f32 v{T+r-r0}, v{T+r-r0}, s{sC2}, v{T+8+r-r0}')
                for r in R: a(f'v_mul_f32 v{T+r-r0}, v{T+r-r0}, v{g+r}')
                for r in R: a(f'v_exp_f32 v{T+r-r0}, v{T+r-r0}')
                for r in R: a(f'v_mul_f32 v{g+r}, v{g+r}, v{u+r}')
                for r in R: a(f'v_add_f32 v{T+r-r0}, 1.0, v{T+r-r0}')
                for r in R: a(f'v_rcp_f32 v{T+r-r0}, v{T+r-r0}')
                a('s_nop 0')
                for r in R: a(f'v_mul_f32 v{g+r}, v{g+r}, v{T+r-r0}')
            for r in range(8):
                a(f'v_cvt_pk_bf16_f32 v{g+r}, v{g+2*r}, v{g+2*r+1}')
            for uu in range(2):
                st.append(f'buffer_store_dwordx4 v[{g+4*uu}:{g+4*uu+3}], v{vH}, s[{sWS}:{sWS+3}], s{sOut} offen offset:{64*nt + 32*uu}')
        self.lstore(st)
        set_flag()
        a(f's_branch {nxt}')
        a.label('Lg_end')
        self.stage_top()
        self.after_top()
        a(f's_branch {done_label}')
        self.emit_tail()
```

```python
S, DM, NH, DH, NSEG, SEG, DF = 2048, 640, 32, 192, 64, 32, 1536
WS_Q  = 0x0000000
WS_K  = 0x1800000
WS_VT = 0x3000000
WS_O  = 0x4800000
WS_H  = 0x6000000
WS_RA = 0x6600000
RA_SLOT = 8 * 10240
WS_RB = WS_RA + 4 * RA_SLOT
RB_SLOT = 32 * 9216
WS_RC = WS_RB + 4 * RB_SLOT
RC_SLOT = 32 * 10240
import os
RC_LOG = int(os.environ.get('RC_LOG', 4))
RC_N = 1 << RC_LOG
WS_RING_END = WS_RC + RC_N * RC_SLOT
RING_BYTES = WS_RING_END - WS_RA
assert RING_BYTES % (256 * 16) == 0
RING_PER_WG = RING_BYTES // 256
assert WS_RING_END <= 0x7C00000
WS_P  = 0x7C00000
WS_FLAG = 0x9100000
WS_PFLAG = WS_FLAG + 0x1000
WS_OFLAG = WS_FLAG + 0x20000
WS_G = WS_FLAG + 0x40000
WS_DBG = 0x9200000
WS_SIZE = 268435456
KNAME = 'gated_mix__memory_aug_recurrent_mem_tr__glu_gated_geglu__prompt'

def pi16(p):
    return (p & ~0xC) | ((p & 4) << 1) | ((p & 8) >> 1)
```

```python
from asmlib import *
from layout import *
from chain import (sWS, sDBG, sT, ptr, sW, sJ, sC, sMIX, sBUD, sT0, sT1, sT2, sT3, sSELLO, sSELHI, srd)

PBUF = 6 * 5120
P3_LDS = 2 * PBUF
sNN, sTH, sKG, sTT, sSeg, sAct, sActStep, sNKS, sLds, sPo, sOUT = 56, 57, 58, 59, 64, 65, 66, 67, 68, 70, 60
sOF, sPFo = 71, 72

class Phase3:
    def __init__(self, a, opt, nworkers, rank0):
        self.a, self.opt, self.NW, self.rank0 = a, opt, nworkers, rank0
        self.NTH = nworkers // 8

    def retry(self, label):
        self.a(f'''s_sub_u32 s{sBUD}, s{sBUD}, 1
                   s_cbranch_scc0 {label}
                   s_mov_b32 s{sBUD}, 0''')

    def wait_flags(self, nlanes, soff, vOff4, vT):
        a = self.a
        lp, ok = a.newlabel('Lpf'), a.newlabel('Lpfok')
        a(f's_mov_b64 exec, {hex((1 << nlanes) - 1)}' if nlanes <= 32 else f's_mov_b64 exec, s[{self.sM48}:{self.sM48+1}]')
        a.label(lp)
        a(f'''buffer_load_dword v{vT}, v{vOff4}, s[{sWS}:{sWS+3}], s{soff} offen sc1
              s_waitcnt vmcnt(0)
              v_cmp_eq_u32 vcc, 0, v{vT}
              s_cbranch_vccz {ok}
              s_sleep 4''')
        self.retry(lp)
        a.label(ok)
        a('s_mov_b64 exec, -1')

    def load_w(self, W, nks, rel, vP, vS, vSel, vtmp, tmps):
        a = self.a
        def issue(ks):
            for p in range(4):
                base = W + ks * 20
                a(f's_mov_b32 s{sT0}, {rel(ks, p) * 1280}')
                a(f's_mov_b32 s{sT1}, {(rel(ks, p) + 1) * 1280}')
                for pr in range(2):
                    a(f'buffer_load_dword v{base+8*pr+p}, v{vP}, s[{sT}:{sT+3}], s{sT0} offen offset:{64*pr}')
                    a(f'buffer_load_dword v{base+8*pr+4+p}, v{vP}, s[{sT}:{sT+3}], s{sT1} offen offset:{64*pr}')
                a(f'buffer_load_dword v{base+16+p}, v{vS}, s[{sT}:{sT+3}], s{sT0} offen')
                a(f'buffer_load_dword v{tmps+(ks&1)*4+p}, v{vS}, s[{sT}:{sT+3}], s{sT1} offen')
        def fix(ks):
            base = W + ks * 20
            for p in range(4):
                for pr in range(2):
                    ra, rb = base + 8*pr + p, base + 8*pr + 4 + p
                    a(f'v_perm_b32 v{vtmp}, v{rb}, v{ra}, s{sSELLO}')
                    a(f'v_perm_b32 v{rb}, v{rb}, v{ra}, s{sSELHI}')
                    a(f'v_mov_b32 v{ra}, v{vtmp}')
                a(f'v_perm_b32 v{base+16+p}, v{tmps+(ks&1)*4+p}, v{base+16+p}, v{vSel}')
        issue(0)
        for ks in range(nks):
            if ks + 1 < nks:
                issue(ks + 1); a('s_waitcnt vmcnt(24)')
            else:
                a('s_waitcnt vmcnt(0)')
            fix(ks)

    def emit(self, done_label):
        a = self.a
        fused = self.opt.get('fused')
        al = Alloc(1, 256)
        vL, vN, vQ, vT0, vT1, vT2 = [al() for _ in range(6)]
        W = al(160, 2); ACT = al(32, 2); ACC = al(20, 2)
        vAct, vG, vGo, vLw, vPo, vL4, vFi, vFo, vOne = [al() for _ in range(9)]
        self.sM48 = 74
        a(f'''v_and_b32 v{vL}, 63, v0
              v_and_b32 v{vN}, 15, v0
              v_bfe_u32 v{vQ}, v0, 4, 2
              v_mov_b32 v{vOne}, 1
              s_mov_b32 s{self.sM48}, -1
              s_mov_b32 s{self.sM48+1}, 0xffff
              s_sub_u32 s{sT0}, s{sC}, {self.rank0}
              s_and_b32 s{sNN}, s{sT0}, 7
              s_lshr_b32 s{sTH}, s{sT0}, 3
              s_lshr_b32 s{sKG}, s{sW}, 1
              s_and_b32 s{sTT}, s{sW}, 1
              s_mov_b32 s{sOUT}, s{ptr(12)}
              s_mov_b32 s{sOUT+1}, s{ptr(12)+1}
              s_mov_b32 s{sOUT+2}, {S*DM*2}
              s_mov_b32 s{sOUT+3}, 0x20000
              v_lshlrev_b32 v{vL4}, 2, v{vL}
              v_and_b32 v{vT0}, 1, v{vN}
              v_cmp_eq_u32 vcc, 1, v{vT0}
              v_mov_b32 v{vG}, s{sSELLO}
              v_mov_b32 v{vT0}, s{sSELHI}
              s_nop 1
              v_cndmask_b32 v{vG}, v{vG}, v{vT0}, vcc''')
        lh, lw = a.newlabel('Lp3h'), a.newlabel('Lp3w')
        vP, vS = vAct, vGo
        a(f'''s_cmp_eq_u32 s{sKG}, 0
              s_cbranch_scc1 {lh}''')
        srd(a, ptr(5), NH * DH * DM * 2)
        a(f'''s_mul_i32 s{sT0}, s{sJ}, 768
              s_lshl_b32 s{sT1}, s{sKG}, 8
              s_add_u32 s{sT0}, s{sT0}, s{sT1}
              s_sub_u32 s{sT0}, s{sT0}, 256
              s_lshl_b32 s{sAct}, s{sT0}, 1
              s_add_u32 s{sAct}, s{sAct}, {WS_O}
              s_mul_i32 s{sT0}, s{sT0}, 1280
              s_mul_i32 s{sT1}, s{sNN}, 160
              s_add_u32 s{sT0}, s{sT0}, s{sT1}
              v_mul_u32_u24 v{vP}, {8*1280}, v{vQ}
              v_add_u32 v{vP}, s{sT0}, v{vP}
              v_and_b32 v{vT0}, 14, v{vN}
              v_lshl_add_u32 v{vS}, v{vT0}, 1, v{vP}
              v_add_u32 v{vS}, 128, v{vS}
              v_lshl_add_u32 v{vP}, v{vN}, 2, v{vP}''')
        self.load_w(W, 8, lambda ks, p: 32*ks + 2*p, vP, vS, vG, vT0, ACT)
        a(f'''s_mov_b32 s{sActStep}, 12288
              s_branch {lw}''')
        a.label(lh)
        srd(a, ptr(10), DF * DM * 2)
        a(f'''s_mul_i32 s{sT0}, s{sJ}, 192
              s_lshl_b32 s{sAct}, s{sT0}, 1
              s_add_u32 s{sAct}, s{sAct}, {WS_H}
              s_mul_i32 s{sT0}, s{sT0}, 1280
              s_mul_i32 s{sT1}, s{sNN}, 160
              s_add_u32 s{sT0}, s{sT0}, s{sT1}
              v_lshrrev_b32 v{vT0}, 1, v{vQ}
              v_lshlrev_b32 v{vT0}, 4, v{vT0}
              v_and_b32 v{vT1}, 1, v{vQ}
              v_lshl_add_u32 v{vT0}, v{vT1}, 2, v{vT0}
              v_mul_u32_u24 v{vP}, 1280, v{vT0}
              v_add_u32 v{vP}, s{sT0}, v{vP}
              v_and_b32 v{vT0}, 14, v{vN}
              v_lshl_add_u32 v{vS}, v{vT0}, 1, v{vP}
              v_add_u32 v{vS}, 128, v{vS}
              v_lshl_add_u32 v{vP}, v{vN}, 2, v{vP}''')
        self.load_w(W, 6, lambda ks, p: 32*ks + 8*(p >> 1) + 2*(p & 1), vP, vS, vG, vT0, ACT)
        a(f's_mov_b32 s{sActStep}, 3072')
        a.label(lw)
        a(f'''s_lshl_b32 s{sT0}, s{sTT}, 4
              v_add_u32 v{vT0}, s{sT0}, v{vN}
              v_mul_lo_u32 v{vAct}, v{vT0}, s{sActStep}
              v_lshl_add_u32 v{vAct}, v{vQ}, 4, v{vAct}
              v_lshlrev_b32 v{vGo}, 2, v{vT0}
              v_mul_u32_u24 v{vPo}, 160, v{vT0}
              s_lshl_b32 s{sActStep}, s{sActStep}, 5
              s_sub_u32 s{sT0}, s{sW}, 2
              s_cmp_eq_u32 s{sKG}, 0
              s_cselect_b32 s{sT0}, s{sW}, s{sT0}
              s_mul_i32 s{sT0}, s{sT0}, 5120
              v_lshlrev_b32 v{vLw}, 4, v{vL}
              v_add_u32 v{vLw}, s{sT0}, v{vLw}
              s_max_u32 s{sT0}, s{sW}, 3
              s_sub_u32 s{sT0}, s{sT0}, 3
              s_lshl_b32 s{sT0}, s{sT0}, 6
              v_add_u32 v{vT0}, s{sT0}, v{vL}
              v_lshlrev_b32 v{vFi}, 4, v{vT0}
              v_mul_u32_u24 v{vT1}, 6554, v{vT0}
              v_lshrrev_b32 v{vT1}, 16, v{vT1}
              v_mul_u32_u24 v{vT2}, 1120, v{vT1}
              v_add_u32 v{vFo}, v{vFi}, v{vT2}
              s_mov_b32 s{sSeg}, s{sTH}
              s_mov_b32 s{sLds}, 0''')
        if not fused:
            lp, ok = a.newlabel('Lp3r'), a.newlabel('Lp3rok')
            a.label(lp)
            a(f'''buffer_load_dword v{vT0}, v{vL4}, s[{sDBG}:{sDBG+3}], 0 offen sc0 sc1
                  s_waitcnt vmcnt(0)
                  v_readlane_b32 s{sT0}, v{vT0}, 8
                  s_cmp_ge_u32 s{sT0}, 256
                  s_cbranch_scc1 {ok}
                  s_sleep 8''')
            self.retry(lp)
            a.label(ok)
        loop, red, join, nofin = a.newlabel('Lp3'), a.newlabel('Lp3red'), a.newlabel('Lp3j'), a.newlabel('Lp3nf')
        a.label(loop)
        a(f'''s_mul_i32 s{sT2}, s{sSeg}, s{sActStep}
              s_add_u32 s{sT2}, s{sT2}, s{sAct}
              s_lshl_b32 s{sT3}, s{sSeg}, 7
              s_add_u32 s{sT3}, s{sT3}, {WS_G}
              buffer_load_dword v{vG}, v{vGo}, s[{sWS}:{sWS+3}], s{sT3} offen sc1
              s_cmp_eq_u32 s{sKG}, 0
              s_cbranch_scc1 {red}''')
        def mm(nks):
            for ks in range(nks):
                a(f'buffer_load_dwordx4 v[{ACT+4*ks}:{ACT+4*ks+3}], v{vAct}, s[{sWS}:{sWS+3}], s{sT2} offen offset:{64*ks} sc1')
            for ks in range(nks):
                a(f's_waitcnt vmcnt({nks-1-ks})')
                for t in range(5):
                    w = W + ks*20 + (4*t if t < 4 else 16)
                    c = '0' if ks == 0 else f'v[{ACC+4*t}:{ACC+4*t+3}]'
                    a(f'v_mfma_f32_16x16x32_bf16 v[{ACC+4*t}:{ACC+4*t+3}], v[{w}:{w+3}], v[{ACT+4*ks}:{ACT+4*ks+3}], {c}')
        if fused:
            a(f'''s_lshl_b32 s{sOF}, s{sJ}, 6
                  s_add_u32 s{sOF}, s{sOF}, s{sSeg}
                  s_lshl_b32 s{sOF}, s{sOF}, 8
                  s_add_u32 s{sOF}, s{sOF}, {WS_OFLAG}''')
            self.wait_flags(48, sOF, vL4, vT0)
        mm(8)
        a(f'v_add_u32 v{vT1}, s{sLds}, v{vLw}')
        a('s_nop 2')
        for t in range(5):
            for r in range(4): a(f'v_mul_f32 v{ACC+4*t+r}, v{ACC+4*t+r}, v{vG}')
            a(f'ds_write_b128 v{vT1}, v[{ACC+4*t}:{ACC+4*t+3}] offset:{1024*t}')
        a('s_waitcnt lgkmcnt(0)')
        a('s_barrier')
        a(f's_branch {join}')
        a.label(red)
        if fused:
            a(f'''s_lshl_b32 s{sOF}, s{sJ}, 9
                  s_lshr_b32 s{sT0}, s{sSeg}, 3
                  s_lshl_b32 s{sT0}, s{sT0}, 3
                  s_add_u32 s{sOF}, s{sOF}, s{sT0}
                  s_add_u32 s{sOF}, s{sOF}, {WS_FLAG + 96*4}''')
            self.wait_flags(2, sOF, vL4, vT0)
        mm(6)
        a(f'''v_sub_f32 v{vG}, 1.0, v{vG}
              v_add_u32 v{vT1}, s{sLds}, v{vLw}
              s_lshl_b32 s{sPo}, s{sJ}, 6
              s_add_u32 s{sPo}, s{sPo}, s{sSeg}
              s_lshl_b32 s{sPo}, s{sPo}, 3
              s_add_u32 s{sPo}, s{sPo}, s{sNN}
              s_mul_i32 s{sPo}, s{sPo}, 5120
              s_add_u32 s{sPo}, s{sPo}, {WS_P}''')
        for k in range(20): a(f'v_mul_f32 v{ACC+k}, v{ACC+k}, v{vG}')
        a('s_barrier')
        PR = W + 120
        def rd(kg, dst):
            for t in range(5):
                a(f'ds_read_b128 v[{dst+4*t}:{dst+4*t+3}], v{vT1} offset:{10240*kg + 1024*t}')
        def add(src):
            for k in range(20): a(f'v_add_f32 v{ACC+k}, v{ACC+k}, v{src+k}')
        rd(0, PR); rd(1, PR + 20)
        a('s_waitcnt lgkmcnt(5)'); add(PR)
        rd(2, PR)
        a('s_waitcnt lgkmcnt(5)'); add(PR + 20)
        a('s_waitcnt lgkmcnt(0)'); add(PR)
        for pr in range(2):
            for r in range(4):
                a(f'v_cvt_pk_bf16_f32 v{ACT+4*pr+r}, v{ACC+8*pr+r}, v{ACC+8*pr+4+r}')
        a(f'''v_cvt_pk_bf16_f32 v{ACT+8}, v{ACC+16}, v{ACC+17}
              v_cvt_pk_bf16_f32 v{ACT+9}, v{ACC+18}, v{ACC+19}
              v_lshl_add_u32 v{vT0}, v{vQ}, 4, v{vPo}
              v_lshl_add_u32 v{vT1}, v{vQ}, 3, v{vPo}
              buffer_store_dwordx4 v[{ACT}:{ACT+3}], v{vT0}, s[{sWS}:{sWS+3}], s{sPo} offen sc1
              buffer_store_dwordx4 v[{ACT+4}:{ACT+7}], v{vT0}, s[{sWS}:{sWS+3}], s{sPo} offen offset:64 sc1
              buffer_store_dwordx2 v[{ACT+8}:{ACT+9}], v{vT1}, s[{sWS}:{sWS+3}], s{sPo} offen offset:128 sc1
              s_lshl_b32 s{sPFo}, s{sSeg}, 3
              s_add_u32 s{sPFo}, s{sPFo}, s{sNN}
              s_lshl_b32 s{sPFo}, s{sPFo}, 7
              s_lshl_b32 s{sT0}, s{sJ}, 3
              s_add_u32 s{sPFo}, s{sPFo}, s{sT0}
              s_lshl_b32 s{sT0}, s{sTT}, 2
              s_add_u32 s{sPFo}, s{sPFo}, s{sT0}
              s_add_u32 s{sPFo}, s{sPFo}, {WS_PFLAG}
              v_mov_b32 v{vT0}, 0
              s_waitcnt vmcnt(0)
              s_mov_b64 exec, 1
              buffer_store_dword v{vOne}, v{vT0}, s[{sWS}:{sWS+3}], s{sPFo} offen sc1
              s_mov_b64 exec, -1''')
        a.label(join)
        a(f'''s_lshr_b32 s{sT0}, s{sSeg}, {self.NTH.bit_length() - 1}
              s_and_b32 s{sT0}, s{sT0}, 7
              s_cmp_lg_u32 s{sT0}, s{sJ}
              s_cbranch_scc1 {nofin}
              s_cmp_lt_u32 s{sW}, 3
              s_cbranch_scc1 {nofin}
              s_lshl_b32 s{sPFo}, s{sSeg}, 3
              s_add_u32 s{sPFo}, s{sPFo}, s{sNN}
              s_mul_i32 s{sPo}, s{sPFo}, 5120
              s_add_u32 s{sPo}, s{sPo}, {WS_P}
              s_lshl_b32 s{sPFo}, s{sPFo}, 7
              s_add_u32 s{sPFo}, s{sPFo}, {WS_PFLAG}''')
        self.wait_flags(16, sPFo, vL4, vT0)
        for j in range(8):
            a(f'buffer_load_dwordx4 v[{ACT+4*j}:{ACT+4*j+3}], v{vFi}, s[{sWS}:{sWS+3}], s{sPo} offen sc1')
            if j < 7: a(f's_add_u32 s{sPo}, s{sPo}, {64*8*5120}')
        for j in range(8):
            a(f's_waitcnt vmcnt({7-j})')
            for k in range(4):
                x = ACT + 4*j + k
                if j == 0:
                    a(f'v_lshlrev_b32 v{ACC+2*k}, 16, v{x}')
                    a(f'v_and_b32 v{ACC+2*k+1}, 0xffff0000, v{x}')
                else:
                    a(f'v_lshlrev_b32 v{vT0}, 16, v{x}')
                    a(f'v_and_b32 v{vT1}, 0xffff0000, v{x}')
                    a(f'v_add_f32 v{ACC+2*k}, v{ACC+2*k}, v{vT0}')
                    a(f'v_add_f32 v{ACC+2*k+1}, v{ACC+2*k+1}, v{vT1}')
        for k in range(4):
            a(f'v_cvt_pk_bf16_f32 v{ACC+k}, v{ACC+2*k}, v{ACC+2*k+1}')
        a(f'''s_mul_i32 s{sT0}, s{sSeg}, {32*1280}
              s_mul_i32 s{sT1}, s{sNN}, 160
              s_add_u32 s{sT0}, s{sT0}, s{sT1}
              buffer_store_dwordx4 v[{ACC}:{ACC+3}], v{vFo}, s[{sOUT}:{sOUT+3}], s{sT0} offen
              s_nop 1''')
        a.label(nofin)
        a(f'''s_xor_b32 s{sLds}, s{sLds}, {PBUF}
              s_add_u32 s{sSeg}, s{sSeg}, {self.NTH}
              s_cmp_lt_u32 s{sSeg}, 64
              s_cbranch_scc1 {loop}
              s_branch {done_label}''')
```

```python
import sys, json
from asmlib import *
from layout import *
import chain, gemm1, phase3

HEADER = open('cdna_kernels/%s.s.ref' % KNAME).read().split('; Override launch')[0]

def kd(name, vgpr=256, sgpr=102):
    return f'''.section .rodata,"a"
.p2align 6
.amdhsa_kernel {name}
  .amdhsa_next_free_vgpr {vgpr}
  .amdhsa_next_free_sgpr {sgpr}
  .amdhsa_accum_offset {min(256, (vgpr + 3) // 4 * 4)}
  .amdhsa_group_segment_fixed_size 0
  .amdhsa_kernarg_size 120
  .amdhsa_user_sgpr_count 2
  .amdhsa_user_sgpr_kernarg_segment_ptr 1
  .amdhsa_system_sgpr_workgroup_id_x 1
  .amdhsa_float_denorm_mode_32 3
.end_amdhsa_kernel
.text
'''

def kernel_begin(a, name):
    a(f'''.text
          .globl {name}
          .p2align 8
          .type {name},@function''')
    a.label(name)

def build(opt):
    a = Asm()
    launches = []
    body = Asm()
    if 'gemm1' in opt['kernels']:
        name = 'gemm1_kernel'
        kernel_begin(body, name)
        chain.emit_entry(body, opt, 'Lg1_exit')
        nw = opt.get('g1_workers', 32)
        if nw == 16:
            body(f'''s_cmp_lt_u32 s{chain.sC}, 16
                     s_cbranch_scc1 Lg1_exit''')
        gemm1.Gemm1(body, opt, nw, 32 - nw).emit('Lg1_exit')
        body.label('Lg1_exit')
        body('s_endpgm')
        body.lines.append(kd(name))
        launches.append((name, 256, 512, gemm1.GEMM1_LDS))
    if 'chain' in opt['kernels']:
        name = 'chain_kernel'
        kernel_begin(body, name)
        chain.emit_entry(body, opt, 'Lchain_exit')
        body(f'''s_cmp_ge_u32 s{chain.sC}, 16
                 s_cbranch_scc1 Lchain_exit''')
        chain.emit_chain_body(body, opt)
        body.label('Lchain_exit')
        body('s_endpgm')
        body.lines.append(kd(name))
        launches.append((name, 256, 512, 102400))
    if 'phase3' in opt['kernels']:
        name = 'phase3_kernel'
        kernel_begin(body, name)
        chain.emit_entry(body, opt, 'Lp3_exit')
        nw = opt.get('p3_workers', 32)
        if nw == 16:
            body(f'''s_cmp_lt_u32 s{chain.sC}, 16
                     s_cbranch_scc1 Lp3_exit''')
        phase3.Phase3(body, opt, nw, 32 - nw).emit('Lp3_exit')
        body.label('Lp3_exit')
        body('s_endpgm')
        body.lines.append(kd(name))
        launches.append((name, 256, 512, 102400))
    out = HEADER
    for (n, g, b, l) in launches:
        out += f'; @launch kernel={n} grid=({g},1,1) block=({b},1,1) lds={l}\n'
    out += '.amdgcn_target "amdgcn-amd-amdhsa--gfx950"\n'
    out += body.text()
    return out

if __name__ == '__main__':
    opt = json.loads(sys.argv[2]) if len(sys.argv) > 2 else {}
    opt.setdefault('kernels', ['chain'])
    open(sys.argv[1], 'w').write(build(opt))
```

```python
from asmlib import *
from layout import *
import math

LM, LO, LDUMMY, LQK, LW5, LR, LOX, LBUF = 0, 10240, 13312, 16384, 22528, 34816, 35840, 38912
LBUF_SZ = 27648
LK_OFF, LV_OFF, LQ_OFF = 0, 12288, 24576
CHAIN_LDS = LBUF + 2 * LBUF_SZ

sWS, sDBG, sT = 4, 8, 12
sPTR = 16
def ptr(i): return sPTR + 2 * i
sW, sJ, sC, sH, sG, sMIX, sBUD, sSTEP = 48, 49, 50, 51, 52, 53, 54, 55
sA_N, sA_R, sB_C, sB_R, sC_W, sC_RS, sC_RD, sO_C = 56, 57, 58, 59, 60, 61, 62, 63
sKQ, sVX, sLB, sRED, sSCL, sT0, sT1, sT2, sT3 = 64, 65, 66, 67, 68, 69, 76, 77, 78
sMN8, sML32, sMH8 = 70, 72, 74
sSELLO, sSELHI = 80, 81
sST = 82
sPADD, sPOR, sA_P, sPF, sPFD = 94, 95, 96, 97, 79
NSTAMP = 6

def srd(a, base_ptr, nbytes):
    a(f'''s_mov_b32 s{sT}, s{base_ptr}
          s_mov_b32 s{sT+1}, s{base_ptr+1}
          s_mov_b32 s{sT+2}, {nbytes}
          s_mov_b32 s{sT+3}, 0x20000''')

class Chain:
    def __init__(self, a, opt):
        self.a = a
        self.opt = opt
        self.tail = []
        self.nstamp = 0

    def lstore(self, insts):
        a = self.a
        slow, back = a.newlabel('Lslow'), a.newlabel('Lback')
        a(f's_cmp_lg_u32 s{sMIX}, 0')
        a(f's_cbranch_scc1 {slow}')
        for i in insts: a(i)
        a.label(back)
        self.tail.append((slow, [i + ' sc1' if i.startswith('buffer_') else i for i in insts], back))

    def emit_tail(self):
        a = self.a
        for slow, insts, back in self.tail:
            a.label(slow)
            for i in insts: a(i)
            a(f's_branch {back}')
        self.tail = []

    def stamp(self, k, ahead=0):
        if not self.opt.get('stamps'): return
        a = self.a
        l = a.newlabel('Lst')
        a(f'''s_cmp_lg_u32 s{sSTEP}, {self.opt['stamps'] + ahead}
              s_cbranch_scc1 {l}
              {self.opt.get('clock', 's_memtime')} s[{sST+2*k}:{sST+2*k+1}]
              s_waitcnt lgkmcnt(0)''')
        a.label(l)

    def mark(self, k):
        if not self.opt.get('prof'): return
        self.a(f's_memrealtime s[{sST+2*k}:{sST+2*k+1}]')
        self.a('s_waitcnt lgkmcnt(0)')

    def dump_stamps(self):
        self.mark(3)
        if not (self.opt.get('stamps') or self.opt.get('prof')): return
        a = self.a
        a(f'''s_lshl_b32 s{sT0}, s{sJ}, 4
              s_add_u32 s{sT0}, s{sT0}, s{sC}
              s_lshl_b32 s{sT0}, s{sT0}, 3
              s_add_u32 s{sT0}, s{sT0}, s{sW}
              s_lshl_b32 s{sT0}, s{sT0}, 6
              s_add_u32 s{sT0}, s{sT0}, {WS_DBG + 0x100000}
              s_mov_b64 exec, -1
              v_mov_b32 v2, 0''')
        for k in range(NSTAMP):
            a(f'v_mov_b32 v3, s{sST+2*k}')
            a(f'buffer_store_dword v3, v2, s[{sWS}:{sWS+3}], s{sT0} offen offset:{4*k}')
        for k in range(4):
            a(f'v_mov_b32 v3, s{98+k}')
            a(f'buffer_store_dword v3, v2, s[{sWS}:{sWS+3}], s{sT0} offen offset:{4*(8+k)}')
        a('s_waitcnt vmcnt(0)')

    def retry(self, label, kind=None):
        a = self.a
        if kind is not None and self.opt.get('stamps'):
            a(f's_add_u32 s{98+kind}, s{98+kind}, 1')
        a(f'''s_sub_u32 s{sBUD}, s{sBUD}, 1
              s_cbranch_scc0 {label}
              s_mov_b32 s{sBUD}, 0''')

    def slots(self):
        a = self.a
        a(f'''s_and_b32 s{sT0}, s{sSTEP}, 3
              s_add_u32 s{sT1}, s{sSTEP}, 1
              s_and_b32 s{sT1}, s{sT1}, 3
              s_xor_b32 s{sT2}, s{sT0}, 2
              s_mul_i32 s{sT3}, s{sJ}, 10240
              s_add_u32 s{sT3}, s{sT3}, {WS_RA}
              s_mul_i32 s{sA_N}, s{sT1}, {RA_SLOT}
              s_add_u32 s{sA_N}, s{sA_N}, s{sT3}
              s_mul_i32 s{sA_R}, s{sT2}, {RA_SLOT}
              s_add_u32 s{sA_R}, s{sA_R}, s{sT3}
              s_mul_i32 s{sT3}, s{sH}, 9216
              s_add_u32 s{sT3}, s{sT3}, {WS_RB}
              s_mul_i32 s{sB_C}, s{sT0}, {RB_SLOT}
              s_add_u32 s{sB_C}, s{sB_C}, s{sT3}
              s_mul_i32 s{sB_R}, s{sT2}, {RB_SLOT}
              s_add_u32 s{sB_R}, s{sB_R}, s{sT3}
              s_and_b32 s{sC_RD}, s{sSTEP}, {RC_N - 1}
              s_mul_i32 s{sC_RD}, s{sC_RD}, {RC_SLOT}
              s_add_u32 s{sC_RD}, s{sC_RD}, {WS_RC}
              s_lshl_b32 s{sT3}, s{sH}, 8
              s_add_u32 s{sC_W}, s{sC_RD}, s{sT3}
              s_lshl_b32 s{sPOR}, s{sSTEP}, {16 - RC_LOG}
              s_and_b32 s{sPOR}, s{sPOR}, 0x10000
              s_xor_b32 s{sPADD}, s{sPOR}, 0x10000
              s_mul_i32 s{sO_C}, s{sSTEP}, {32*12288}
              s_add_u32 s{sO_C}, s{sO_C}, {WS_O}''')

    def load_pair(self, WA, WB, nks, voff, rowstride, tmp):
        a = self.a
        items = []
        for ks in range(nks):
            for R in range(8):
                hi, p = R >> 2, R & 3
                b, tt = p & 1, p >> 1
                d = 64 * ks + 32 * hi + 8 * b + 2 * tt
                items.append((WA + ks * 8 + R, WB + ks * 8 + R, d))
        def issue(it):
            ra, rb, d = it
            a(f's_mov_b32 s{sT0}, {d * rowstride}')
            a(f'buffer_load_dword v{ra}, v{voff}, s[{sT}:{sT+3}], s{sT0} offen')
            a(f's_mov_b32 s{sT1}, {(d + 1) * rowstride}')
            a(f'buffer_load_dword v{rb}, v{voff}, s[{sT}:{sT+3}], s{sT1} offen')
        def fix(it):
            ra, rb, d = it
            a(f'v_perm_b32 v{tmp}, v{rb}, v{ra}, s{sSELLO}')
            a(f'v_perm_b32 v{rb}, v{rb}, v{ra}, s{sSELHI}')
            a(f'v_mov_b32 v{ra}, v{tmp}')
        groups = [items[i:i + 8] for i in range(0, len(items), 8)]
        depth = 3
        for gi in range(min(depth, len(groups))):
            for it in groups[gi]: issue(it)
        for gi in range(len(groups)):
            inflight = min(len(groups), gi + depth) - gi - 1
            a(f's_waitcnt vmcnt({16 * inflight})')
            for it in groups[gi]: fix(it)
            if gi + depth < len(groups):
                for it in groups[gi + depth]: issue(it)

    def load_single(self, W, nks, voff, vsel, rowstride, tmps):
        a = self.a
        items = []
        for ks in range(nks):
            for R in range(8):
                hi, p = R >> 2, R & 3
                b, tt = p & 1, p >> 1
                items.append((W + ks * 8 + R, 64 * ks + 32 * hi + 8 * b + 2 * tt))
        groups = [items[i:i + 8] for i in range(0, len(items), 8)]
        depth = 3
        def issue(gi):
            for k, (r, d) in enumerate(groups[gi]):
                t = tmps + (gi % depth) * 8 + k
                a(f's_mov_b32 s{sT0}, {d * rowstride}')
                a(f'buffer_load_dword v{r}, v{voff}, s[{sT}:{sT+3}], s{sT0} offen')
                a(f's_mov_b32 s{sT1}, {(d + 1) * rowstride}')
                a(f'buffer_load_dword v{t}, v{voff}, s[{sT}:{sT+3}], s{sT1} offen')
        for gi in range(min(depth, len(groups))): issue(gi)
        for gi in range(len(groups)):
            inflight = min(len(groups), gi + depth) - gi - 1
            a(f's_waitcnt vmcnt({16 * inflight})')
            for k, (r, d) in enumerate(groups[gi]):
                t = tmps + (gi % depth) * 8 + k
                a(f'v_perm_b32 v{r}, v{t}, v{r}, v{vsel}')
            if gi + depth < len(groups): issue(gi + depth)

    def lanes(self, al):
        a = self.a
        self.vL, self.vN, self.vQ = al(), al(), al()
        self.vT0, self.vT1, self.vT2 = al(), al(), al()
        self.vMask = 0
        a(f'''v_and_b32 v{self.vL}, 63, v0
              v_and_b32 v{self.vN}, 15, v0
              v_bfe_u32 v{self.vQ}, v0, 4, 2
              v_mov_b32 v0, 0xfffe0000''')

    def frag_addr(self, dst):
        a = self.a
        a(f'''v_lshlrev_b32 v{dst}, 8, v{self.vQ}
              v_and_b32 v{self.vT0}, 1, v{self.vN}
              v_lshl_add_u32 v{dst}, v{self.vT0}, 7, v{dst}
              v_lshrrev_b32 v{self.vT0}, 1, v{self.vN}
              v_lshl_add_u32 v{dst}, v{self.vT0}, 4, v{dst}''')

    def idx_reg(self, dst):
        a = self.a
        a(f'''v_and_b32 v{self.vT0}, 1, v{self.vN}
              v_cmp_eq_u32 vcc, 1, v{self.vT0}
              v_mov_b32 v{dst}, 0x44444444
              v_mov_b32 v{self.vT0}, 0xeeeeeeee
              s_nop 1
              v_cndmask_b32 v{dst}, v{dst}, v{self.vT0}, vcc''')

    def wrow_lane(self, dst, rowstride):
        a = self.a
        a(f'''v_lshrrev_b32 v{self.vT0}, 1, v{self.vQ}
              v_lshlrev_b32 v{self.vT0}, 4, v{self.vT0}
              v_and_b32 v{self.vT1}, 1, v{self.vQ}
              v_lshl_add_u32 v{self.vT0}, v{self.vT1}, 2, v{self.vT0}
              s_mov_b32 s{sT0}, {rowstride}
              v_mul_lo_u32 v{dst}, v{self.vT0}, s{sT0}''')

    def wait_all_registered(self):
        wait_registered(self.a, self.opt, self.vT0, self.vT1, self.vN)

    def wait_tiles(self, seg, first, nflags):
        if not self.opt.get('fused'): return
        a = self.a
        lp, ok, skip = a.newlabel('Lwt'), a.newlabel('Lwtok'), a.newlabel('Lwts')
        T0, T1 = self.vT0, self.vT1
        a(f'''s_and_b32 s{sT0}, s{seg}, 7
              s_cbranch_scc1 {skip}
              s_lshr_b32 s{sT0}, s{seg}, 3
              s_mul_i32 s{sT0}, s{sT0}, 48
              s_lshl_b32 s{sT1}, s{sJ}, 9
              s_add_u32 s{sT0}, s{sT0}, s{sT1}
              s_and_b32 s{sT1}, s{sH}, 3
              s_lshl_b32 s{sT1}, s{sT1}, 2
              s_add_u32 s{sT0}, s{sT0}, s{sT1}
              s_add_u32 s{sT0}, s{sT0}, {WS_FLAG + 16*first}
              v_lshlrev_b32 v{T1}, 4, v{self.vL}
              s_mov_b64 exec, {(1 << nflags) - 1}''')
        a.label(lp)
        a(f'''buffer_load_dword v{T0}, v{T1}, s[{sWS}:{sWS+3}], s{sT0} offen sc1
              s_waitcnt vmcnt(0)
              v_cmp_eq_u32 vcc, 0, v{T0}
              s_cbranch_vccz {ok}
              s_sleep 2''')
        self.retry(lp)
        a.label(ok)
        a('s_mov_b64 exec, -1')
        a.label(skip)

    def o_flag(self, back):
        if not self.opt.get('fused'): return
        a = self.a
        a(f'''s_lshl_b32 s{sT0}, s{sJ}, 6
              s_add_u32 s{sT0}, s{sT0}, s{sSTEP}
              s_lshl_b32 s{sT0}, s{sT0}, 8
              s_mul_i32 s{sT1}, s{sC}, 12
              s_add_u32 s{sT0}, s{sT0}, s{sT1}
              s_lshl_b32 s{sT1}, s{sRED}, 2
              s_add_u32 s{sT0}, s{sT0}, s{sT1}
              s_add_u32 s{sT0}, s{sT0}, {WS_OFLAG - 256*back}
              v_mov_b32 v{self.vT0}, 1
              v_mov_b32 v{self.vT1}, 0
              s_mov_b64 exec, 1''')
        self.lstore([f'buffer_store_dword v{self.vT0}, v{self.vT1}, s[{sWS}:{sWS+3}], s{sT0} offen'])
        a('s_mov_b64 exec, -1')

    def a_poll(self, vAoff, R, first=False):
        a = self.a
        lp, ok = a.newlabel('LpA'), a.newlabel('LpAok')
        t = self.vT0
        a(f's_mov_b32 s{sA_P}, s{sA_N}')
        a(f's_add_u32 s{sSTEP}, s{sSTEP}, 1')
        self.slots()
        a('s_barrier')
        if self.opt.get('a_first'): a(f"s_sleep {self.opt['a_first']}")
        a.label(lp)
        a(f'''buffer_load_dwordx4 v[{R}:{R+3}], v{vAoff}, s[{sWS}:{sWS+3}], s{sA_P} offen sc1
              buffer_load_dwordx4 v[{R+4}:{R+7}], v{vAoff}, s[{sWS}:{sWS+3}], s{sA_P} offen offset:1024 sc1
              s_waitcnt vmcnt(0)
              ds_write_b128 v{vAoff}, v[{R}:{R+3}] offset:{LM}
              ds_write_b128 v{vAoff}, v[{R+4}:{R+7}] offset:{LM+1024}
              v_max3_u32 v{t}, v{R}, v{R+1}, v{R+2}
              v_max3_u32 v{t}, v{t}, v{R+3}, v{R+4}
              v_max3_u32 v{t}, v{t}, v{R+5}, v{R+6}
              v_max_u32 v{t}, v{t}, v{R+7}
              v_cmp_eq_u32 vcc, -1, v{t}
              s_cbranch_vccz {ok}''')
        if self.opt.get('a_sleep'): a(f"s_sleep {self.opt['a_sleep']}")
        self.retry(lp, 2)
        a.label(ok)
        a('s_waitcnt lgkmcnt(0)')

    def mem0_load(self, vAoff, R):
        a = self.a
        srd(a, ptr(1), 10240)
        T0, T1 = self.vT0, self.vT1
        a(f'''v_bfe_u32 v{T0}, v{vAoff}, 4, 3
              v_mul_u32_u24 v{T0}, 1280, v{T0}
              v_lshrrev_b32 v{T1}, 7, v{vAoff}
              v_lshl_add_u32 v{T0}, v{T1}, 4, v{T0}
              buffer_load_dwordx4 v[{R}:{R+3}], v{T0}, s[{sT}:{sT+3}], 0 offen
              buffer_load_dwordx4 v[{R+4}:{R+7}], v{T0}, s[{sT}:{sT+3}], 0 offen offset:128
              s_waitcnt vmcnt(0)
              ds_write_b128 v{vAoff}, v[{R}:{R+3}] offset:{LM}
              ds_write_b128 v{vAoff}, v[{R+4}:{R+7}] offset:{LM+1024}
              s_waitcnt lgkmcnt(0)''')

    def a_off(self, dst):
        a = self.a
        a(f'''s_sub_u32 s{sT0}, s{sW}, 3
              s_lshl_b32 s{sT0}, s{sT0}, 11
              v_lshlrev_b32 v{dst}, 4, v{self.vL}
              v_add_u32 v{dst}, s{sT0}, v{dst}''')

    def dma_seg_regs(self, seg_expr_sgpr):
        a = self.a
        sg = seg_expr_sgpr
        a(f'''s_lshl_b32 s{sT0}, s{sH}, 6
              s_add_u32 s{sT0}, s{sT0}, s{sg}
              s_mul_i32 s{sKQ}, s{sT0}, 12288
              s_add_u32 s{sVX}, s{sKQ}, {WS_VT}
              s_and_b32 s{sT0}, s{sg}, 1
              s_mul_i32 s{sLB}, s{sT0}, {LBUF_SZ}
              s_add_u32 s{sLB}, s{sLB}, {LBUF}''')

    def dma_kq(self, vK, vQx):
        a = self.a
        for grp in range(3):
            a(f's_add_u32 m0, s{sLB}, {LK_OFF + grp*4096}')
            a(f's_add_u32 s{sT1}, s{sKQ}, {WS_K + grp*4096}')
            for t in range(4):
                a(f'buffer_load_dwordx4 v{vK}, s[{sWS}:{sWS+3}], s{sT1} offen offset:{1024*t} lds')
        for p in range(3):
            a(f's_add_u32 m0, s{sLB}, {LQ_OFF + p*1024}')
            a(f's_add_u32 s{sT1}, s{sKQ}, {WS_Q + p*2048}')
            a(f'buffer_load_dwordx4 v{vQx}, s[{sWS}:{sWS+3}], s{sT1} offen lds')

    def dma_v(self, vV):
        a = self.a
        for grp in range(3):
            a(f's_add_u32 m0, s{sLB}, {LV_OFF + grp*4096}')
            a(f's_add_u32 s{sT1}, s{sVX}, {grp*4096}')
            for t in range(4):
                a(f'buffer_load_dwordx4 v{vV}, s[{sWS}:{sWS+3}], s{sT1} offen offset:{1024*t} lds')

    def wo_stage(self, pairs, vFrag, vIdx, F, vCoff, RR):
        a = self.a
        for ks in range(3):
            a(f'ds_read_b128 v[{F+4*ks}:{F+4*ks+3}], v{vFrag} offset:{LO + 1024*ks}')
        a(f'v_lshlrev_b32 v{self.vT0}, 3, v{self.vQ}')
        a(f'ds_read_b64 v[{RR}:{RR+1}], v{self.vT0} offset:{LR}')
        for ks in range(3):
            a(f's_waitcnt lgkmcnt({3-ks})')
            for (WA, WB, TA, TB, coff) in pairs:
                a(f'v_smfmac_f32_16x16x64_bf16 v[{TA}:{TA+3}], v[{F+4*ks}:{F+4*ks+3}], v[{WA+8*ks}:{WA+8*ks+7}], v{vIdx}')
                a(f'v_smfmac_f32_16x16x64_bf16 v[{TB}:{TB+3}], v[{F+4*ks}:{F+4*ks+3}], v[{WB+8*ks}:{WB+8*ks+7}], v{vIdx}')
        a('s_waitcnt lgkmcnt(0)')
        a('s_nop 5')
        for (WA, WB, TA, TB, coff) in pairs:
            self.pair_epilogue(TA, TB, RR)
            a(f'buffer_store_dword v{TA}, v{vCoff}, s[{sWS}:{sWS+3}], s{sC_W} offen offset:{coff} sc1')
            a(f'buffer_store_dword v{TB}, v{vCoff}, s[{sWS}:{sWS+3}], s{sC_W} offen offset:{coff+128} sc1')

    def pair_epilogue(self, TA, TB, RR=None):
        a = self.a
        a(f"""v_add_f32 v{TA}, v{TA}, v{TA+1}
              v_add_f32 v{TA+2}, v{TA+2}, v{TA+3}
              v_add_f32 v{TB}, v{TB}, v{TB+1}
              v_add_f32 v{TB+2}, v{TB+2}, v{TB+3}""")
        if RR is not None:
            a(f"""v_mul_f32 v{TA}, v{TA}, v{RR}
                  v_mul_f32 v{TA+2}, v{TA+2}, v{RR+1}
                  v_mul_f32 v{TB}, v{TB}, v{RR}
                  v_mul_f32 v{TB+2}, v{TB+2}, v{RR+1}""")
            a(f"""v_add_u32 v{TA}, s{sPADD}, v{TA}
                  v_add_u32 v{TA+2}, s{sPADD}, v{TA+2}
                  v_and_or_b32 v{TA}, v{TA}, v{self.vMask}, s{sPOR}
                  v_and_or_b32 v{TA+2}, v{TA+2}, v{self.vMask}, s{sPOR}
                  v_cvt_pk_bf16_f32 v{TA}, v{TA}, v{TB}
                  v_cvt_pk_bf16_f32 v{TB}, v{TA+2}, v{TB+2}""")
            return
        a(f"""v_cvt_pk_bf16_f32 v{TA}, v{TA}, v{TB}
              v_cvt_pk_bf16_f32 v{TB}, v{TA+2}, v{TB+2}
              v_min_u32 v{TA}, -2, v{TA}
              v_min_u32 v{TB}, -2, v{TB}""")

    def zero(self, r, n):
        for k in range(n): self.a(f'v_mov_b32 v{r+k}, 0')

    def c_off(self, dst, pw_sgpr_or_int):
        a = self.a
        T0 = self.vT0
        a(f'''v_lshrrev_b32 v{dst}, 3, v{self.vN}
              v_lshlrev_b32 v{dst}, 13, v{dst}
              v_bfe_u32 v{T0}, v{self.vN}, 2, 1
              v_lshl_add_u32 v{dst}, v{T0}, 6, v{dst}
              v_lshl_add_u32 v{dst}, v{self.vQ}, 4, v{dst}
              v_and_b32 v{T0}, 3, v{self.vN}
              v_lshl_add_u32 v{dst}, v{T0}, 2, v{dst}
              s_mul_i32 s{sT0}, s{sG}, 81920''')
        if isinstance(pw_sgpr_or_int, int):
            a(f's_add_u32 s{sT0}, s{sT0}, {16384*pw_sgpr_or_int}')
        else:
            a(f's_lshl_b32 s{sT1}, {pw_sgpr_or_int}, 14')
            a(f's_add_u32 s{sT0}, s{sT0}, s{sT1}')
        a(f'v_add_u32 v{dst}, s{sT0}, v{dst}')

    def wo_weights(self, WA, WB, pw, vtmp, tmp):
        a = self.a
        srd(a, ptr(5), NH * DH * DM * 2)
        self.wrow_lane(vtmp, 1280)
        a(f'''s_mul_i32 s{sT0}, s{sH}, {DH*DM*2}
              s_mul_i32 s{sT1}, s{sG}, 320
              s_add_u32 s{sT0}, s{sT0}, s{sT1}''')
        if isinstance(pw, int):
            a(f's_add_u32 s{sT0}, s{sT0}, {64*pw}')
        else:
            a(f's_lshl_b32 s{sT1}, {pw}, 6')
            a(f's_add_u32 s{sT0}, s{sT0}, s{sT1}')
        a(f'''v_lshl_add_u32 v{vtmp}, v{self.vN}, 2, v{vtmp}
              v_add_u32 v{vtmp}, s{sT0}, v{vtmp}''')
        self.load_pair(WA, WB, 3, vtmp, 1280, tmp)

    def finish(self):
        self.dump_stamps()
        self.a('s_endpgm')

    def role_qk(self):
        a = self.a
        al = Alloc(1, 256)
        self.lanes(al)
        WA, WB = al(80, 4), al(80, 4)
        M = al(40, 4)
        TA, TB = al(4, 4), al(4, 4)
        SEL = al(4, 4)
        RC = al(2)
        vFrag, vIdx, vB, vAst, vSent = al(), al(), al(), al(), al(2)
        T0, T1, T2 = self.vT0, self.vT1, self.vT2
        self.frag_addr(vFrag); self.idx_reg(vIdx)
        a(f'''s_mul_i32 s{sT2}, s{sG}, 3
              s_add_u32 s{sT2}, s{sT2}, s{sW}
              s_cmp_ge_u32 s{sT2}, 6
              s_cselect_b32 s{sT}, s{ptr(3)}, s{ptr(2)}
              s_cselect_b32 s{sT+1}, s{ptr(3)+1}, s{ptr(2)+1}
              s_cselect_b32 s{sT1}, 6, 0
              s_lshl_b32 s{sT3}, s{sT2}, 9
              s_sub_u32 s{sT2}, s{sT2}, s{sT1}
              s_mov_b32 s{sT+2}, {DM*NH*DH*2}
              s_mov_b32 s{sT+3}, 0x20000
              s_lshl_b32 s{sT2}, s{sT2}, 6
              v_lshlrev_b32 v{vB}, 7, v{self.vQ}
              v_lshl_add_u32 v{vB}, v{self.vN}, 2, v{vB}
              v_add_u32 v{vB}, s{sT3}, v{vB}''')
        vW = M
        self.wrow_lane(vW, 12288)
        a(f'''v_lshlrev_b32 v{T0}, 1, v{self.vN}
              v_and_b32 v{T1}, 0x13, v{T0}
              v_and_b32 v{T2}, 4, v{T0}
              v_lshl_add_u32 v{T1}, v{T2}, 1, v{T1}
              v_and_b32 v{T2}, 8, v{T0}
              v_lshrrev_b32 v{T2}, 1, v{T2}
              v_add_u32 v{T1}, v{T1}, v{T2}
              v_lshl_add_u32 v{vW}, v{T1}, 1, v{vW}
              s_mul_i32 s{sT0}, s{sH}, 384
              s_add_u32 s{sT0}, s{sT0}, s{sT2}
              v_add_u32 v{vW}, s{sT0}, v{vW}''')
        self.load_pair(WA, WB, 10, vW, 12288, T2)
        a(f'''s_lshl_b32 s{sRED}, s{sW}, 4
              s_add_u32 s{sRED}, s{sRED}, s{sC}
              s_lshl_b32 s{sT0}, s{sRED}, 8
              s_lshl_b32 s{sT1}, s{sRED}, 13
              v_lshlrev_b32 v{RC}, 8, v{self.vQ}
              v_and_b32 v{T0}, 1, v{self.vN}
              v_lshl_add_u32 v{RC}, v{T0}, 7, v{RC}
              v_lshrrev_b32 v{T0}, 3, v{self.vN}
              v_lshl_add_u32 v{RC}, v{T0}, 6, v{RC}
              v_bfe_u32 v{T0}, v{self.vN}, 1, 2
              v_lshl_add_u32 v{RC}, v{T0}, 4, v{RC}
              v_add_u32 v{RC}, s{sT1}, v{RC}
              v_add_u32 v{RC+1}, 4096, v{RC}''')
        a(f'''v_lshlrev_b32 v{vAst}, 4, v{self.vN}
              v_lshl_add_u32 v{vAst}, v{self.vQ}, 3, v{vAst}
              v_add_u32 v{vAst}, s{sT0}, v{vAst}
              v_mov_b32 v{vSent}, -1
              v_mov_b32 v{vSent+1}, -1''')
        for p in range(4):
            a(f'''v_mov_b32 v{SEL+p}, 0
                  v_mov_b32 v{T0}, 0x3f80
                  v_cmp_eq_u32 vcc, {2*p}, v{self.vN}
                  s_nop 1
                  v_cndmask_b32 v{SEL+p}, v{SEL+p}, v{T0}, vcc
                  v_mov_b32 v{T0}, 0x3f800000
                  v_cmp_eq_u32 vcc, {2*p+1}, v{self.vN}
                  s_nop 1
                  v_cndmask_b32 v{SEL+p}, v{SEL+p}, v{T0}, vcc''')
        self.zero(TA, 8)
        self.slots()
        PFD = self.opt.get('pf_dist', 4)
        a(f'''s_cmp_eq_u32 s{sW}, 0
              s_cselect_b32 s{sPF}, {WS_K}, {WS_Q}
              s_cmp_eq_u32 s{sW}, 1
              s_cselect_b32 s{sPF}, {WS_VT}, s{sPF}
              s_mul_i32 s{sT0}, s{sH}, {64*12288}
              s_add_u32 s{sPF}, s{sPF}, s{sT0}
              s_mul_i32 s{sT0}, s{sG}, 3072
              s_add_u32 s{sPF}, s{sPF}, s{sT0}
              s_add_u32 s{sPF}, s{sPF}, {2*12288}''')
        def prefetch(lo, hi):
            if self.opt.get('no_pf'): return
            for k in range(lo, hi):
                a(f's_buffer_load_dword s{sPFD}, s[{sWS}:{sWS+3}], s{sPF} offset:{128*k}')
        for sg in range(2, PFD):
            prefetch(0, 12); a('s_waitcnt lgkmcnt(0)'); prefetch(12, 24); a('s_waitcnt lgkmcnt(0)')
            a(f's_add_u32 s{sPF}, s{sPF}, 12288')
        self.mark(1)
        self.wait_all_registered()
        a('s_barrier')
        self.mark(2)
        loop, nored, end = a.newlabel('Lqk'), a.newlabel('Lqknr'), a.newlabel('Lqkend')
        a.label(loop)
        a('s_barrier')
        self.stamp(0)
        for ks in range(10):
            a(f'ds_read_b128 v[{M+4*ks}:{M+4*ks+3}], v{vFrag} offset:{LM + 1024*ks}')
        for ks in range(10):
            a(f's_waitcnt lgkmcnt({9-ks})')
            a(f'v_smfmac_f32_16x16x64_bf16 v[{TA}:{TA+3}], v[{M+4*ks}:{M+4*ks+3}], v[{WA+8*ks}:{WA+8*ks+7}], v{vIdx}')
            a(f'v_smfmac_f32_16x16x64_bf16 v[{TB}:{TB+3}], v[{M+4*ks}:{M+4*ks+3}], v[{WB+8*ks}:{WB+8*ks+7}], v{vIdx}')
        a('s_nop 7')
        self.pair_epilogue(TA, TB)
        self.lstore([f'buffer_store_dword v{TA}, v{vB}, s[{sWS}:{sWS+3}], s{sB_C} offen',
                     f'buffer_store_dword v{TB}, v{vB}, s[{sWS}:{sWS+3}], s{sB_C} offen offset:64'])
        a('s_barrier')
        self.stamp(1)
        def resets():
            self.lstore([f'buffer_store_dword v{vSent}, v{vB}, s[{sWS}:{sWS+3}], s{sB_R} offen',
                         f'buffer_store_dword v{vSent}, v{vB}, s[{sWS}:{sWS+3}], s{sB_R} offen offset:64'])
            skipar = a.newlabel('Lqkar')
            a(f'''s_cmp_ge_u32 s{sRED}, 40
                  s_cbranch_scc1 {skipar}
                  s_mov_b64 exec, s[{sML32}:{sML32+1}]''')
            self.lstore([f'buffer_store_dwordx2 v[{vSent}:{vSent+1}], v{vAst}, s[{sWS}:{sWS+3}], s{sA_R} offen'])
            a('s_mov_b64 exec, -1')
            a.label(skipar)
        self.zero(TA, 8)
        a('s_barrier')
        resets()
        prefetch(0, 12)
        a('s_barrier')
        a(f'''s_cmp_eq_u32 s{sSTEP}, 63
              s_cbranch_scc1 {end}''')
        prefetch(12, 24)
        a(f's_add_u32 s{sPF}, s{sPF}, 12288')
        a(f'''s_cmp_ge_u32 s{sRED}, 40
              s_cbranch_scc1 {nored}''')
        if self.opt.get('c_sleep'): a(f"s_sleep {self.opt['c_sleep']}")
        ok, ph1 = a.newlabel('LpCok'), a.newlabel('LpC1')
        ACC = M + 32
        if self.opt.get('fine'): self.stamp(5)
        a(f's_bitcmp1_b32 s{sSTEP}, {RC_LOG}')
        a(f's_cbranch_scc1 {ph1}')
        for ph in range(2):
            lp = a.newlabel('LpC')
            if ph: a.label(ph1)
            a.label(lp)
            for t in range(8):
                a(f'buffer_load_dwordx4 v[{M+4*t}:{M+4*t+3}], v{RC+(t>>2)}, s[{sWS}:{sWS+3}], s{sC_RD} offen offset:{1024*(t&3)} sc1')
            a('s_mov_b64 exec, -1')
            op3 = (lambda d, x, y, z: f'v_bitop3_b32 v{d}, v{x}, v{y}, v{z} bitop3:0x80') if ph else (lambda d, x, y, z: f'v_or3_b32 v{d}, v{x}, v{y}, v{z}')
            for t in range(8):
                a(f's_waitcnt vmcnt({7-t})')
                if t == 0 and self.opt.get('fine'): self.stamp(2)
                a(f'v_mfma_f32_16x16x32_bf16 v[{ACC}:{ACC+3}], v[{SEL}:{SEL+3}], v[{M+4*t}:{M+4*t+3}], ' + ('0' if t == 0 else f'v[{ACC}:{ACC+3}]'))
                if t == 0:
                    a(op3(T0, M, M+1, M+2)); a(op3(T0, T0, M+3, M+3))
                else:
                    a(op3(T0, T0, M+4*t, M+4*t+1)); a(op3(T0, T0, M+4*t+2, M+4*t+3))
            a(f'''v_and_b32 v{T0}, 1, v{T0}
                  v_cmp_ne_u32 vcc, {ph}, v{T0}
                  s_cbranch_vccz {ok}
                  s_mov_b64 exec, vcc''')
            self.retry(lp, 3)
            a('s_mov_b64 exec, -1')
            if ph == 0: a(f's_branch {ok}')
        a.label(ok)
        self.stamp(3)
        a(f'''s_nop 2
              v_cvt_pk_bf16_f32 v{ACC}, v{ACC}, v{ACC+1}
              v_cvt_pk_bf16_f32 v{ACC+1}, v{ACC+2}, v{ACC+3}
              s_mov_b64 exec, s[{sML32}:{sML32+1}]
              v_min_u32 v{ACC}, -2, v{ACC}
              v_min_u32 v{ACC+1}, -2, v{ACC+1}''')
        self.lstore([f'buffer_store_dwordx2 v[{ACC}:{ACC+1}], v{vAst}, s[{sWS}:{sWS+3}], s{sA_N} offen'])
        if self.opt.get('dump_mem'):
            l = a.newlabel('Ldm')
            a(f'''s_cmp_lg_u32 s{sJ}, 0
                  s_cbranch_scc1 {l}
                  s_mul_i32 s{sT0}, s{sSTEP}, 10240
                  s_add_u32 s{sT0}, s{sT0}, {WS_DBG}
                  buffer_store_dwordx2 v[{ACC}:{ACC+1}], v{vAst}, s[{sWS}:{sWS+3}], s{sT0} offen''')
            a.label(l)
        a('s_mov_b64 exec, -1')
        a('s_barrier')
        a('s_waitcnt lgkmcnt(0)')
        self.stamp(4)
        a(f's_add_u32 s{sSTEP}, s{sSTEP}, 1')
        self.slots()
        a(f's_branch {loop}')
        a.label(nored)
        a('s_barrier')
        a(f's_add_u32 s{sSTEP}, s{sSTEP}, 1')
        self.slots()
        a('s_waitcnt vmcnt(0) lgkmcnt(0)')
        a(f's_branch {loop}')
        a.label(end)
        self.finish()
        self.emit_tail()

    def role_v(self):
        a = self.a
        al = Alloc(1, 256)
        self.lanes(al)
        WA, WB = al(80, 4), al(80, 4)
        M = al(48, 4)
        TA, TB = al(4, 4), al(4, 4)
        F = al(12, 4); RR = al(2, 2)
        vFrag, vIdx, vB, vAoff, vV, vSent, vCoff, vLin = [al() for _ in range(8)]
        self.frag_addr(vFrag); self.idx_reg(vIdx)
        a(f"""v_lshlrev_b32 v{vV}, 4, v{self.vL}
              v_lshlrev_b32 v{vLin}, 4, v{self.vL}
              v_mov_b32 v{vSent}, -1""")
        self.c_off(vCoff, 4)
        self.wo_weights(M, M + 24, 4, vAoff, self.vT2)
        for k in range(12):
            a(f'ds_write_b128 v{vLin}, v[{M+4*k}:{M+4*k+3}] offset:{LW5 + 1024*k}')
        a('s_waitcnt lgkmcnt(0)')
        a(f"""s_mul_i32 s{sT0}, s{sG}, 768
              s_add_u32 s{sT0}, s{sT0}, 6144
              v_lshlrev_b32 v{vB}, 5, v{self.vN}
              v_lshl_add_u32 v{vB}, v{self.vQ}, 2, v{vB}
              v_add_u32 v{vB}, s{sT0}, v{vB}""")
        srd(a, ptr(4), DM * NH * DH * 2)
        vW = M
        self.wrow_lane(vW, 12288)
        a(f"""s_mul_i32 s{sT0}, s{sH}, 384
              s_mul_i32 s{sT1}, s{sG}, 96
              s_add_u32 s{sT0}, s{sT0}, s{sT1}
              v_lshl_add_u32 v{vW}, v{self.vN}, 2, v{vW}
              v_add_u32 v{vW}, s{sT0}, v{vW}""")
        self.load_pair(WA, WB, 10, vW, 12288, self.vT2)
        self.a_off(vAoff)
        self.mem0_load(vAoff, F)
        self.zero(TA, 8)
        self.slots()
        self.mark(1)
        self.wait_all_registered()
        self.wait_tiles(sSTEP, 2, 1)
        for sg in range(2):
            a(f's_mov_b32 s{sT3}, {sg}')
            self.dma_seg_regs(sT3); self.dma_v(vV)
        a('s_waitcnt vmcnt(0)')
        a('s_barrier')
        self.mark(2)
        loop, end = a.newlabel('Lv'), a.newlabel('Lvend')
        a.label(loop)
        a('s_barrier')
        self.stamp(0)
        for ks in range(10):
            a(f'ds_read_b128 v[{M+4*ks}:{M+4*ks+3}], v{vFrag} offset:{LM + 1024*ks}')
        for ks in range(10):
            a(f's_waitcnt lgkmcnt({9-ks})')
            a(f'v_smfmac_f32_16x16x64_bf16 v[{TA}:{TA+3}], v[{M+4*ks}:{M+4*ks+3}], v[{WA+8*ks}:{WA+8*ks+7}], v{vIdx}')
            a(f'v_smfmac_f32_16x16x64_bf16 v[{TB}:{TB+3}], v[{M+4*ks}:{M+4*ks+3}], v[{WB+8*ks}:{WB+8*ks+7}], v{vIdx}')
            if ks == self.opt.get('v_bar', 8): a('s_barrier')
        a(f"""s_nop 7
              v_add_f32 v{TA}, v{TA}, v{TA+1}
              v_add_f32 v{TA+2}, v{TA+2}, v{TA+3}
              v_add_f32 v{TB}, v{TB}, v{TB+1}
              v_add_f32 v{TB+2}, v{TB+2}, v{TB+3}
              v_cvt_pk_bf16_f32 v{TA}, v{TA}, v{TA+2}
              v_cvt_pk_bf16_f32 v{TB}, v{TB}, v{TB+2}
              v_min_u32 v{TA}, -2, v{TA}
              v_min_u32 v{TB}, -2, v{TB}""")
        self.lstore([f'buffer_store_dword v{TA}, v{vB}, s[{sWS}:{sWS+3}], s{sB_C} offen',
                     f'buffer_store_dword v{TB}, v{vB}, s[{sWS}:{sWS+3}], s{sB_C} offen offset:16'])
        self.stamp(1)
        for k in range(12):
            a(f'ds_read_b128 v[{M+4*k}:{M+4*k+3}], v{vLin} offset:{LW5 + 1024*k}')
        self.zero(TA, 8)
        a(f's_add_u32 s{sT3}, s{sSTEP}, 2')
        self.dma_seg_regs(sT3)
        a('s_barrier')
        self.lstore([f'buffer_store_dword v{vSent}, v{vB}, s[{sWS}:{sWS+3}], s{sB_R} offen',
                     f'buffer_store_dword v{vSent}, v{vB}, s[{sWS}:{sWS+3}], s{sB_R} offen offset:16'])
        a(f"s_sleep {self.opt.get('d_sleep', 7)}")
        nod = a.newlabel('Lvnd')
        a(f"""s_add_u32 s{sT3}, s{sSTEP}, 2
              s_cmp_ge_u32 s{sT3}, 64
              s_cbranch_scc1 {nod}""")
        self.wait_tiles(sT3, 2, 1)
        if not self.opt.get('no_dma'): self.dma_v(vV)
        a.label(nod)
        a('s_waitcnt lgkmcnt(0)')
        self.stamp(5)
        a('s_barrier')
        self.stamp(2)
        a(f"""s_cmp_eq_u32 s{sSTEP}, 63
              s_cbranch_scc1 {end}""")
        self.wo_stage([(M, M + 24, TA, TB, 0)], vFrag, vIdx, F, vCoff, RR)
        self.stamp(3)
        self.zero(TA, 8)
        self.a_poll(vAoff, F)
        self.stamp(4, 1)
        a(f's_branch {loop}')
        a.label(end)
        self.finish()
        self.emit_tail()

    def role_w7(self):
        a = self.a
        al = Alloc(1, 256)
        self.lanes(al)
        WV = al(80, 4)
        P = [(al(24, 4), al(24, 4), al(4, 4), al(4, 4), 0)]
        M = al(40, 4)
        TV = al(4, 4)
        SENT = al(4, 4); RR = al(2, 2)
        vFrag, vIdx, vB, vAoff, vK, vQx, vCoff, vCr = [al() for _ in range(8)]
        vSel = TV
        T0, T1 = self.vT0, self.vT1
        self.frag_addr(vFrag); self.idx_reg(vIdx)
        a(f"""v_lshlrev_b32 v{vK}, 4, v{self.vL}
              v_and_b32 v{T0}, 7, v{self.vL}
              v_lshlrev_b32 v{vQx}, 4, v{T0}
              v_lshrrev_b32 v{T0}, 5, v{self.vL}
              v_lshl_add_u32 v{vQx}, v{T0}, 10, v{vQx}
              v_bfe_u32 v{T0}, v{self.vL}, 3, 2
              v_lshl_add_u32 v{vQx}, v{T0}, 8, v{vQx}
              s_lshr_b32 s{sT0}, s{sG}, 1
              s_mul_i32 s{sT0}, s{sT0}, 6144
              s_and_b32 s{sT1}, s{sG}, 1
              s_lshl_b32 s{sT1}, s{sT1}, 7
              s_add_u32 s{sT0}, s{sT0}, s{sT1}
              v_add_u32 v{vQx}, s{sT0}, v{vQx}""")
        for k in range(4): a(f'v_mov_b32 v{SENT+k}, -1')
        a(f"""s_mul_i32 s{sT0}, s{sG}, 768
              s_add_u32 s{sT0}, s{sT0}, {6144 + 512}
              v_lshlrev_b32 v{vB}, 4, v{self.vN}
              v_lshl_add_u32 v{vB}, v{self.vQ}, 2, v{vB}
              v_add_u32 v{vB}, s{sT0}, v{vB}
              s_mul_i32 s{sT0}, s{sG}, 2560
              v_lshlrev_b32 v{vCr}, 4, v{self.vL}
              v_add_u32 v{vCr}, s{sT0}, v{vCr}""")
        self.c_off(vCoff, 3)
        srd(a, ptr(4), DM * NH * DH * 2)
        self.wrow_lane(vAoff, 12288)
        a(f"""s_mul_i32 s{sT0}, s{sH}, 384
              s_mul_i32 s{sT1}, s{sG}, 96
              s_add_u32 s{sT0}, s{sT0}, s{sT1}
              s_add_u32 s{sT0}, s{sT0}, 64
              v_and_b32 v{T0}, 14, v{self.vN}
              v_lshl_add_u32 v{vAoff}, v{T0}, 1, v{vAoff}
              v_add_u32 v{vAoff}, s{sT0}, v{vAoff}
              v_and_b32 v{T0}, 1, v{self.vN}
              v_cmp_eq_u32 vcc, 1, v{T0}
              v_mov_b32 v{vSel}, s{sSELLO}
              v_mov_b32 v{T0}, s{sSELHI}
              s_nop 1
              v_cndmask_b32 v{vSel}, v{vSel}, v{T0}, vcc""")
        self.load_single(WV, 10, vAoff, vSel, 12288, M)
        self.wo_weights(P[0][0], P[0][1], 3, vAoff, self.vT2)
        self.a_off(vAoff)
        self.mem0_load(vAoff, M)
        self.zero(TV, 4)
        for p in P: self.zero(p[2], 8)
        self.slots()
        self.mark(1)
        self.wait_all_registered()
        self.wait_tiles(sSTEP, 0, 2)
        for sg in range(2):
            a(f's_mov_b32 s{sT3}, {sg}')
            self.dma_seg_regs(sT3); self.dma_kq(vK, vQx)
        a('s_waitcnt vmcnt(0)')
        a('s_barrier')
        self.mark(2)
        loop, end = a.newlabel('Lw7'), a.newlabel('Lw7end')
        a.label(loop)
        a('s_barrier')
        self.stamp(0)
        for ks in range(10):
            a(f'ds_read_b128 v[{M+4*ks}:{M+4*ks+3}], v{vFrag} offset:{LM + 1024*ks}')
        for ks in range(10):
            a(f's_waitcnt lgkmcnt({9-ks})')
            a(f'v_smfmac_f32_16x16x64_bf16 v[{TV}:{TV+3}], v[{M+4*ks}:{M+4*ks+3}], v[{WV+8*ks}:{WV+8*ks+7}], v{vIdx}')
        a(f"""s_nop 7
              v_add_f32 v{TV}, v{TV}, v{TV+1}
              v_add_f32 v{TV+2}, v{TV+2}, v{TV+3}
              v_cvt_pk_bf16_f32 v{TV}, v{TV}, v{TV+2}
              v_min_u32 v{TV}, -2, v{TV}""")
        self.lstore([f'buffer_store_dword v{TV}, v{vB}, s[{sWS}:{sWS+3}], s{sB_C} offen'])
        a('s_barrier')
        self.stamp(1)
        self.zero(TV, 4)
        a(f's_add_u32 s{sT3}, s{sSTEP}, 2')
        self.dma_seg_regs(sT3)
        a('s_barrier')
        self.lstore([f'buffer_store_dword v{SENT}, v{vB}, s[{sWS}:{sWS+3}], s{sB_R} offen'])
        a(f"s_sleep {self.opt.get('d_sleep', 7)}")
        if self.opt.get('dma_time'): self.stamp(1)
        nod = a.newlabel('Lknd')
        a(f"""s_add_u32 s{sT3}, s{sSTEP}, 2
              s_cmp_ge_u32 s{sT3}, 64
              s_cbranch_scc1 {nod}""")
        self.wait_tiles(sT3, 0, 2)
        if not self.opt.get('no_dma'): self.dma_kq(vK, vQx)
        a.label(nod)
        if self.opt.get('dma_time'): a('s_waitcnt vmcnt(0)')
        self.stamp(5)
        a('s_barrier')
        self.stamp(2)
        a(f"""s_cmp_eq_u32 s{sSTEP}, 63
              s_cbranch_scc1 {end}""")
        self.wo_stage(P, vFrag, vIdx, M, vCoff, RR)
        self.stamp(3)
        for p in P: self.zero(p[2], 8)
        self.a_poll(vAoff, M)
        self.stamp(4, 1)
        a(f's_branch {loop}')
        a.label(end)
        self.finish()
        self.emit_tail()

    def role_att(self):
        a = self.a
        al = Alloc(1, 256)
        self.lanes(al)
        TM = al(2, 2)
        WA, WB = al(24, 4), al(24, 4)
        TA, TB = al(4, 4), al(4, 4)
        KX = al(48, 4); X = al(24, 4); Y = al(24, 4)
        VX = al(16, 4); VM = al(8, 2)
        BI = al(12, 4); SS = al(12, 4)
        PP = al(6, 2); RR = PP
        OO = al(16, 4); LL = al(4, 4)
        ONES = al(4, 4)
        F = SS
        vFrag, vIdx, vAoff, vXY, vVM, vOw, vOst, vCoff, vLin, vQr, vBp, vRw, vOx, vBp2 = [al() for _ in range(14)]
        T0, T1, T2 = self.vT0, self.vT1, self.vT2
        sWP = sRED
        a(f's_sub_u32 s{sWP}, s{sW}, 4')
        self.frag_addr(vFrag); self.idx_reg(vIdx)
        self.c_off(vCoff, f's{sWP}')
        self.wo_weights(WA, WB, f's{sWP}', vAoff, T2)
        self.a_off(vAoff)
        a(f"""v_lshlrev_b32 v{vXY}, 6, v{self.vN}
              v_lshl_add_u32 v{vXY}, v{self.vQ}, 4, v{vXY}
              s_lshl_b32 s{sT0}, s{sWP}, 10
              s_add_u32 s{sT0}, s{sT0}, 6144
              v_lshlrev_b32 v{vVM}, 4, v{self.vN}
              v_lshl_add_u32 v{vVM}, v{self.vQ}, 3, v{vVM}
              v_add_u32 v{vVM}, s{sT0}, v{vVM}
              v_lshlrev_b32 v{vLin}, 4, v{self.vL}
              s_lshl_b32 s{sT0}, s{sWP}, 11
              v_add_u32 v{vBp}, s{sT0}, v{vLin}
              v_and_b32 v{T0}, 7, v{self.vN}
              v_lshlrev_b32 v{vQr}, 4, v{T0}
              v_lshl_add_u32 v{vQr}, v{self.vQ}, 7, v{vQr}""")
        a(f"""v_lshlrev_b32 v{vRw}, 2, v{self.vL}
              v_add_u32 v{T1}, {LDUMMY}, v{vRw}
              v_add_u32 v{vRw}, {LR}, v{vRw}
              v_cmp_gt_u32 vcc, 8, v{self.vL}
              s_nop 1
              v_cndmask_b32 v{vRw}, v{T1}, v{vRw}, vcc""")
        a(f"""v_lshrrev_b32 v{T1}, 1, v{self.vQ}
              v_lshlrev_b32 v{vOw}, 7, v{T1}
              v_lshl_add_u32 v{vOw}, v{T0}, 4, v{vOw}
              v_and_b32 v{T1}, 1, v{self.vQ}
              v_lshl_add_u32 v{vOw}, v{T1}, 3, v{vOw}
              v_lshrrev_b32 v{T1}, 3, v{self.vN}
              v_mul_u32_u24 v{T1}, 3072, v{T1}
              v_add_u32 v{vOw}, v{vOw}, v{T1}
              s_lshl_b32 s{sT0}, s{sWP}, 10
              s_add_u32 s{sT0}, s{sT0}, {LO}
              v_add_u32 v{vOw}, s{sT0}, v{vOw}""")
        a(f"""v_lshrrev_b32 v{T1}, 3, v{self.vL}
              v_lshlrev_b32 v{vOst}, 4, v{T1}
              v_and_b32 v{T1}, 7, v{self.vL}
              v_lshl_add_u32 v{vOst}, v{T1}, 8, v{vOst}
              s_lshr_b32 s{sT0}, s{sG}, 1
              s_mul_i32 s{sT0}, s{sT0}, 192
              s_mul_i32 s{sT1}, s{sH}, 6
              s_add_u32 s{sT0}, s{sT0}, s{sT1}
              s_lshl_b32 s{sT1}, s{sWP}, 1
              s_add_u32 s{sT0}, s{sT0}, s{sT1}
              s_lshl_b32 s{sT0}, s{sT0}, 10
              s_and_b32 s{sT1}, s{sG}, 1
              s_lshl_b32 s{sT1}, s{sT1}, 7
              s_add_u32 s{sT0}, s{sT0}, s{sT1}
              v_add_u32 v{vOst}, s{sT0}, v{vOst}
              s_lshl_b32 s{sT0}, s{sWP}, 10
              s_add_u32 s{sT0}, s{sT0}, {LOX}
              v_add_u32 v{vBp2}, s{sT0}, v{vLin}
              v_lshlrev_b32 v{vOx}, 7, v{T0}
              v_lshl_add_u32 v{vOx}, v{self.vQ}, 3, v{vOx}
              v_add_u32 v{vOx}, s{sT0}, v{vOx}""")
        a(f"""s_lshl_b32 s{sT0}, s{sG}, 3
              v_add_u32 v{T1}, s{sT0}, v{T0}
              v_cmp_gt_u32 vcc, 8, v{self.vN}
              v_mov_b32 v{T2}, 31
              s_nop 1
              v_cndmask_b32 v{T1}, v{T1}, v{T2}, vcc
              v_lshlrev_b32 v{T2}, 2, v{self.vQ}
              v_sub_u32 v{T1}, v{T1}, v{T2}
              v_mov_b32 v{T2}, 0xf149f2ca""")
        for tile in range(2):
            for r in range(4):
                a(f"""v_cmp_gt_i32 vcc, {16*tile + r}, v{T1}
                      v_mov_b32 v{BI+4*tile+r}, 0
                      s_nop 1
                      v_cndmask_b32 v{BI+4*tile+r}, v{BI+4*tile+r}, v{T2}, vcc""")
        a(f"""v_cmp_lt_u32 vcc, 1, v{self.vQ}
              v_mov_b32 v{BI+8}, 0
              s_nop 1
              v_cndmask_b32 v{BI+8}, v{BI+8}, v{T2}, vcc""")
        for r in range(1, 4): a(f'v_mov_b32 v{BI+8+r}, v{BI+8}')
        for k in range(4): a(f'v_mov_b32 v{ONES+k}, 0x3f803f80')
        self.zero(Y, 24); self.zero(VM, 8); self.zero(TA, 8)
        self.mem0_load(vAoff, F)
        self.slots()
        self.mark(1)
        self.wait_all_registered()
        def read_seg():
            a(f'v_add_u32 v{T0}, s{sLB}, v{vLin}')
            a(f'v_add_u32 v{T1}, s{sLB}, v{vQr}')
            a(f's_lshl_b32 s{sT0}, s{sWP}, 12')
            a(f'v_add_u32 v{T2}, s{sT0}, v{T0}')
            for k in range(12):
                a(f'ds_read_b128 v[{KX+4*k}:{KX+4*k+3}], v{T0} offset:{LK_OFF + 1024*k}')
            for ks in range(6):
                a(f'ds_read_b128 v[{X+4*ks}:{X+4*ks+3}], v{T1} offset:{LQ_OFF + 512*ks}')
            for t in range(4):
                a(f'ds_read_b128 v[{VX+4*t}:{VX+4*t+3}], v{T2} offset:{LV_OFF + 1024*t}')
        def vm_loads():
            a(f's_mov_b64 exec, s[{sML32}:{sML32+1}]')
            for t in range(4):
                a(f'buffer_load_dwordx2 v[{VM+2*t}:{VM+2*t+1}], v{vVM}, s[{sWS}:{sWS+3}], s{sB_C} offen offset:{256*t} sc1')
            a('s_mov_b64 exec, -1')
        a('s_barrier')
        self.mark(2)
        a(f's_mov_b32 s{sLB}, {LBUF}')
        read_seg()
        a('s_waitcnt lgkmcnt(0)')
        loop, end = a.newlabel('Lat'), a.newlabel('Latend')
        lp, ok, vlp, vok, vrt = a.newlabel('LpB'), a.newlabel('LpBok'), a.newlabel('LpV'), a.newlabel('LpVok'), a.newlabel('LpVr')
        a.label(loop)
        a('s_barrier')
        if self.opt.get('fused'):
            nf = a.newlabel('Latnf')
            a(f's_cmp_eq_u32 s{sSTEP}, 0')
            a(f's_cbranch_scc1 {nf}')
            self.o_flag(1)
            a.label(nf)
        a('s_barrier')
        if self.opt.get('b_sleep'): a(f"s_sleep {self.opt['b_sleep']}")
        R = OO
        if self.opt.get('fine'): self.stamp(0)
        a.label(lp)
        a(f"""buffer_load_dwordx4 v[{R}:{R+3}], v{vBp}, s[{sWS}:{sWS+3}], s{sB_C} offen sc1
              buffer_load_dwordx4 v[{R+4}:{R+7}], v{vBp}, s[{sWS}:{sWS+3}], s{sB_C} offen offset:1024 sc1
              s_waitcnt vmcnt(0)""")
        if self.opt.get('fine'): self.stamp(3)
        a(f"""ds_write_b128 v{vBp}, v[{R}:{R+3}] offset:{LQK}
              ds_write_b128 v{vBp}, v[{R+4}:{R+7}] offset:{LQK+1024}
              v_max3_u32 v{T0}, v{R}, v{R+1}, v{R+2}
              v_max3_u32 v{T1}, v{R+3}, v{R+4}, v{R+5}
              v_max3_u32 v{T0}, v{T0}, v{R+6}, v{R+7}
              v_max_u32 v{T0}, v{T0}, v{T1}
              v_cmp_eq_u32 vcc, -1, v{T0}
              s_cbranch_vccz {ok}""")
        self.retry(lp, 0)
        a.label(ok)
        a(f's_mov_b64 exec, s[{sMN8}:{sMN8+1}]')
        a('s_waitcnt lgkmcnt(0)')
        a('s_barrier')
        for ks in range(6):
            a(f'ds_read_b128 v[{X+4*ks}:{X+4*ks+3}], v{vXY} offset:{LQK + 512*ks}')
            a(f'ds_read_b128 v[{Y+4*ks}:{Y+4*ks+3}], v{vXY} offset:{LQK + 3072 + 512*ks}')
        a('s_mov_b64 exec, -1')
        self.stamp(5)
        for ks in range(6):
            a(f's_waitcnt lgkmcnt({11 - 2*ks})')
            for tile, A in ((0, KX + 4*ks), (1, KX + 24 + 4*ks), (2, Y + 4*ks)):
                if tile == 2: a(f's_waitcnt lgkmcnt({10 - 2*ks})')
                c = BI + 4*tile if ks == 0 else SS + 4*tile
                a(f'v_mfma_f32_16x16x32_bf16 v[{SS+4*tile}:{SS+4*tile+3}], v[{A}:{A+3}], v[{X+4*ks}:{X+4*ks+3}], v[{c}:{c+3}]')
        vm_loads()
        self.stamp(1)
        a(f"""v_max3_f32 v{T0}, v{SS}, v{SS+1}, v{SS+2}
              v_max3_f32 v{T1}, v{SS+3}, v{SS+4}, v{SS+5}
              v_max3_f32 v{T0}, v{T0}, v{SS+6}, v{SS+7}
              v_max3_f32 v{T1}, v{T1}, v{SS+8}, v{SS+9}
              v_max3_f32 v{T0}, v{T0}, v{SS+10}, v{SS+11}
              v_max_f32 v{T0}, v{T0}, v{T1}
              v_mov_b32 v{T1}, v{T0}
              s_nop 1
              v_permlane32_swap_b32 v{T0}, v{T1}
              v_max_f32 v{T0}, v{T0}, v{T1}
              v_mov_b32 v{T1}, v{T0}
              s_nop 1
              v_permlane16_swap_b32 v{T0}, v{T1}
              v_max_f32 v{T0}, v{T0}, v{T1}
              v_mul_f32 v{TM}, s{sSCL}, v{T0}""")
        def pkfma(r):
            a(f'v_pk_fma_f32 v[{SS+r}:{SS+r+1}], v[{SS+r}:{SS+r+1}], s[{sSCL}:{sSCL+1}], v[{TM}:{TM+1}] op_sel_hi:[1,0,0] neg_lo:[0,0,1] neg_hi:[0,0,1]')
        for r in range(0, 8, 2): pkfma(r)
        for r in range(8): a(f'v_exp_f32 v{SS+r}, v{SS+r}')
        for r in range(8, 12, 2): pkfma(r)
        for r in range(4): a(f'v_cvt_pk_bf16_f32 v{PP+r}, v{SS+2*r}, v{SS+2*r+1}')
        a(f'v_exp_f32 v{SS+8}, v{SS+8}')
        a(f'v_exp_f32 v{SS+9}, v{SS+9}')
        a(f'v_mfma_f32_16x16x32_bf16 v[{LL}:{LL+3}], v[{ONES}:{ONES+3}], v[{PP}:{PP+3}], 0')
        a(f'v_exp_f32 v{SS+10}, v{SS+10}')
        a(f'v_mfma_f32_16x16x32_bf16 v[{OO}:{OO+3}], v[{VX}:{VX+3}], v[{PP}:{PP+3}], 0')
        a(f'v_exp_f32 v{SS+11}, v{SS+11}')
        a(f'v_mfma_f32_16x16x32_bf16 v[{OO+4}:{OO+7}], v[{VX+4}:{VX+7}], v[{PP}:{PP+3}], 0')
        a(f'v_cvt_pk_bf16_f32 v{PP+4}, v{SS+8}, v{SS+9}')
        a(f'v_cvt_pk_bf16_f32 v{PP+5}, v{SS+10}, v{SS+11}')
        a(f'v_mfma_f32_16x16x32_bf16 v[{OO+8}:{OO+11}], v[{VX+8}:{VX+11}], v[{PP}:{PP+3}], 0')
        a.label(vlp)
        a(f"""s_waitcnt vmcnt(0)
              v_max3_u32 v{T1}, v{VM}, v{VM+1}, v{VM+2}
              v_max3_u32 v{T2}, v{VM+3}, v{VM+4}, v{VM+5}
              v_mfma_f32_16x16x32_bf16 v[{OO+12}:{OO+15}], v[{VX+12}:{VX+15}], v[{PP}:{PP+3}], 0
              v_max3_u32 v{T1}, v{T1}, v{VM+6}, v{VM+7}
              v_max_u32 v{T1}, v{T1}, v{T2}
              v_cmp_eq_u32 vcc, -1, v{T1}
              s_cbranch_vccnz {vrt}""")
        a.label(vok)
        if not self.opt.get('fine'): self.stamp(0)
        a(f'v_mfma_f32_16x16x16_bf16 v[{LL}:{LL+3}], v[{ONES}:{ONES+1}], v[{PP+4}:{PP+5}], v[{LL}:{LL+3}]')
        for t in range(4):
            a(f'v_mfma_f32_16x16x16_bf16 v[{OO+4*t}:{OO+4*t+3}], v[{VM+2*t}:{VM+2*t+1}], v[{PP+4}:{PP+5}], v[{OO+4*t}:{OO+4*t+3}]')
        a(f"""s_nop 3
              v_rcp_f32 v{LL}, v{LL}""")
        for t in range(4):
            a(f'v_cvt_pk_bf16_f32 v{X+2*t}, v{OO+4*t}, v{OO+4*t+1}')
            a(f'v_cvt_pk_bf16_f32 v{X+2*t+1}, v{OO+4*t+2}, v{OO+4*t+3}')
            a(f'ds_write_b64 v{vOw}, v[{X+2*t}:{X+2*t+1}] offset:{256*t}')
            if t == 0: a(f'ds_write_b32 v{vRw}, v{LL}')
        a('s_waitcnt lgkmcnt(0)')
        a('s_barrier')
        self.stamp(2)
        skipwo = a.newlabel('Latsk')
        a(f"""s_cmp_eq_u32 s{sSTEP}, 63
              s_cbranch_scc1 {skipwo}""")
        self.wo_stage([(WA, WB, TA, TB, 0)], vFrag, vIdx, F, vCoff, RR)
        a.label(skipwo)
        if not self.opt.get('fine'): self.stamp(3)
        for t in range(4):
            for r in range(4):
                a(f'v_mul_f32 v{OO+4*t+r}, v{OO+4*t+r}, v{LL}')
            a(f'v_cvt_pk_bf16_f32 v{OO+4*t}, v{OO+4*t}, v{OO+4*t+1}')
            a(f'v_cvt_pk_bf16_f32 v{OO+4*t+1}, v{OO+4*t+2}, v{OO+4*t+3}')
        a(f's_mov_b64 exec, s[{sMH8}:{sMH8+1}]')
        for t in range(4):
            a(f'ds_write_b64 v{vOx}, v[{OO+4*t}:{OO+4*t+1}] offset:{32*t}')
        a('s_mov_b64 exec, -1')
        a(f'ds_read_b128 v[{OO}:{OO+3}], v{vBp2}')
        a('s_waitcnt lgkmcnt(0)')
        if not self.opt.get('no_ost'):
            self.lstore([f'buffer_store_dwordx4 v[{OO}:{OO+3}], v{vOst}, s[{sWS}:{sWS+3}], s{sO_C} offen'])
        a(f"""s_cmp_eq_u32 s{sSTEP}, 63
              s_cbranch_scc1 {end}
              s_add_u32 s{sT3}, s{sSTEP}, 1
              s_and_b32 s{sT3}, s{sT3}, 1
              s_mul_i32 s{sLB}, s{sT3}, {LBUF_SZ}
              s_add_u32 s{sLB}, s{sLB}, {LBUF}""")
        read_seg()
        self.zero(TA, 8)
        self.a_poll(vAoff, F)
        self.stamp(4, 1)
        a(f's_branch {loop}')
        a.label(end)
        a('s_waitcnt vmcnt(0)')
        self.o_flag(0)
        self.finish()
        a.label(vrt)
        vm_loads()
        self.retry(vlp, 1)
        a(f's_branch {vok}')
        self.emit_tail()

def wait_registered(a, opt, T0, T1, vN):
    lp, done = a.newlabel('Lreg'), a.newlabel('Lregd')
    a(f'v_lshlrev_b32 v{T1}, 2, v{vN}')
    a.label(lp)
    a(f'''buffer_load_dword v{T0}, v{T1}, s[{sDBG}:{sDBG+3}], 0 offen sc0 sc1
          s_waitcnt vmcnt(0)
          v_readlane_b32 s{sT0}, v{T0}, 8
          s_cmp_ge_u32 s{sT0}, 256
          s_cbranch_scc1 {done}
          s_sleep 8
          s_sub_u32 s{sBUD}, s{sBUD}, 1
          s_cbranch_scc0 {lp}
          s_mov_b32 s{sBUD}, 0''')
    a.label(done)
    a(f'''v_cmp_ne_u32 vcc, 32, v{T0}
          s_and_b32 s{sT0}, vcc_lo, 0xff
          s_cselect_b32 s{sMIX}, 1, {1 if opt.get('force_mixed') else 0}''')

def emit_entry(a, opt, exit_label):
    a(f'''s_cmp_ge_u32 s2, 256
          s_cbranch_scc1 {exit_label}
          s_load_dwordx16 s[16:31], s[0:1], 0
          s_load_dwordx8 s[32:39], s[0:1], 64
          s_load_dwordx4 s[40:43], s[0:1], 96
          s_load_dwordx2 s[44:45], s[0:1], 112
          v_lshrrev_b32 v1, 6, v0
          s_getreg_b32 s{sJ}, hwreg(HW_REG_XCC_ID)
          v_readfirstlane_b32 s{sW}, v1
          s_and_b32 s{sJ}, s{sJ}, 15
          s_min_u32 s{sJ}, s{sJ}, 10
          s_cmp_lt_u32 s{sJ}, 8
          s_cselect_b32 s{sJ}, s{sJ}, 10
          s_mov_b32 s{sBUD}, {opt.get('budget', 1 << 20)}
          s_mov_b32 s{sSTEP}, 0
          s_mov_b64 s[98:99], 0
          s_mov_b64 s[100:101], 0
          s_mov_b32 s{sMIX}, {1 if opt.get('force_mixed') else 0}
          s_mov_b32 s{sMN8}, 0x00ff00ff
          s_mov_b32 s{sMN8+1}, 0x00ff00ff
          s_mov_b32 s{sMH8}, 0xff00ff00
          s_mov_b32 s{sMH8+1}, 0xff00ff00
          s_mov_b32 s{sML32}, -1
          s_mov_b32 s{sML32+1}, 0
          s_mov_b32 s{sSELLO}, 0x05040100
          s_mov_b32 s{sSELHI}, 0x07060302
          s_mov_b32 s{sSCL}, {hex(f32bits(DH ** -0.5 * math.log2(math.e)))}
          s_waitcnt lgkmcnt(0)
          s_mov_b32 s{sWS}, s{ptr(14)}
          s_mov_b32 s{sWS+1}, s{ptr(14)+1}
          s_mov_b32 s{sWS+2}, {WS_SIZE}
          s_mov_b32 s{sWS+3}, 0x20000
          s_mov_b32 s{sDBG}, s{ptr(13)}
          s_mov_b32 s{sDBG+1}, s{ptr(13)+1}
          s_mov_b32 s{sDBG+2}, 256
          s_mov_b32 s{sDBG+3}, 0x20000''')
    if opt.get('prof'):
        a(f's_memrealtime s[{sST}:{sST+1}]')
        a('s_waitcnt lgkmcnt(0)')
    if opt.get('fake_xcc') == 1:
        a(f'''s_lshr_b32 s{sJ}, s2, 5''')
    if opt.get('fake_xcc') == 2:
        a(f'''s_cmp_lt_u32 s2, 200
              s_cselect_b32 s{sJ}, s{sJ}, 3
              s_cmp_lt_u32 s2, 250
              s_cselect_b32 s{sJ}, s{sJ}, 10''')
    l1, l2 = a.newlabel('Le'), a.newlabel('Le')
    a(f'''s_cmp_lg_u32 s{sW}, 0
          s_cbranch_scc1 {l1}
          s_mov_b64 exec, 1
          v_mov_b32 v2, 1
          s_lshl_b32 s{sT0}, s{sJ}, 2
          v_mov_b32 v3, s{sT0}
          buffer_atomic_add v2, v3, s[{sDBG}:{sDBG+3}], 0 offen sc0 sc1
          s_mov_b64 exec, -1''')
    a.label(l1)
    a(f'''v_mov_b32 v4, -1
          v_mov_b32 v5, -1
          v_mov_b32 v6, -1
          v_mov_b32 v7, -1
          v_lshlrev_b32 v8, 4, v0
          s_mul_i32 s{sT0}, s2, {RING_PER_WG}
          s_add_u32 s{sT0}, s{sT0}, {WS_RA}''')
    for k in range(RING_PER_WG // 8192):
        a(f'''buffer_store_dwordx4 v[4:7], v8, s[{sWS}:{sWS+3}], s{sT0} offen sc1
              s_add_u32 s{sT0}, s{sT0}, 8192''')
    a(f'''v_cmp_gt_u32 vcc, {RING_PER_WG % 8192 // 16}, v0
          s_and_saveexec_b64 s[{sT1}:{sT1+1}], vcc
          s_cbranch_execz {l2}
          buffer_store_dwordx4 v[4:7], v8, s[{sWS}:{sWS+3}], s{sT0} offen sc1''')
    a.label(l2)
    l3, l4, l5, l6, l7 = [a.newlabel('Le') for _ in range(5)]
    a(f'''s_mov_b64 exec, -1
          s_cmp_lg_u32 s{sW}, 1
          s_cbranch_scc1 {l5}
          v_mov_b32 v10, 0
          v_mov_b32 v11, 0
          v_mov_b32 v12, 0
          v_mov_b32 v13, 0
          s_lshl_b32 s{sT0}, s2, 10
          s_add_u32 s{sT0}, s{sT0}, {WS_FLAG - 1024}
          buffer_store_dwordx4 v[10:13], v8, s[{sWS}:{sWS+3}], s{sT0} offen sc1''')
    a.label(l5)
    srd(a, ptr(0), S * DM * 2)
    a(f'''v_and_b32 v9, 63, v0
          v_lshlrev_b32 v9, 2, v9
          s_lshl_b32 s{sT0}, s2, 3
          s_add_u32 s{sT0}, s{sT0}, s{sW}
          s_mul_i32 s{sT1}, s{sT0}, 1280''')
    for i in range(5):
        a(f'buffer_load_dword v{14+i}, v9, s[{sT}:{sT+3}], s{sT1} offen offset:{256*i}')
    srd(a, ptr(11), DM * 2)
    for i in range(5):
        a(f'buffer_load_dword v{20+i}, v9, s[{sT}:{sT+3}], 0 offen offset:{256*i}')
    a('s_waitcnt vmcnt(0)')
    a('v_mov_b32 v26, 0')
    for i in range(5):
        a(f'''v_lshlrev_b32 v27, 16, v{14+i}
              v_lshlrev_b32 v28, 16, v{20+i}
              v_fmac_f32 v26, v27, v28
              v_and_b32 v27, 0xffff0000, v{14+i}
              v_and_b32 v28, 0xffff0000, v{20+i}
              v_fmac_f32 v26, v27, v28''')
    for sh in (8, 4, 2, 1):
        a(f'''s_nop 1
              v_add_f32_dpp v26, v26, v26 row_ror:{sh} row_mask:0xf bank_mask:0xf''')
    for sw in ('v_permlane16_swap_b32', 'v_permlane32_swap_b32'):
        a(f'''v_mov_b32 v27, v26
              s_nop 1
              {sw} v26, v27
              v_add_f32 v26, v26, v27''')
    a(f'''v_mul_f32 v26, {hex(f32bits(-math.log2(math.e)))}, v26
          v_exp_f32 v26, v26
          s_nop 0
          v_add_f32 v26, 1.0, v26
          v_rcp_f32 v26, v26
          v_mov_b32 v27, 0
          s_lshl_b32 s{sT0}, s{sT0}, 2
          s_add_u32 s{sT0}, s{sT0}, {WS_G}
          s_mov_b64 exec, 1
          buffer_store_dword v26, v27, s[{sWS}:{sWS+3}], s{sT0} offen sc1
          s_mov_b64 exec, -1
          s_waitcnt vmcnt(0)
          s_cmp_lg_u32 s{sW}, 0
          s_cbranch_scc1 {l3}
          s_mov_b64 exec, 1
          v_readfirstlane_b32 s{sT0}, v2
          s_cmp_ge_u32 s{sJ}, 8
          s_cselect_b32 s{sT0}, 32, s{sT0}
          s_cmp_lt_u32 s{sT0}, 32
          s_cbranch_scc1 {l6}
          v_mov_b32 v2, 1
          v_mov_b32 v3, 36
          buffer_atomic_add v2, v3, s[{sDBG}:{sDBG+3}], 0 offen sc0 sc1
          s_waitcnt vmcnt(0)
          v_add_u32 v2, 32, v2''')
    a.label(l6)
    a(f'''v_mov_b32 v3, 0
          ds_write_b32 v3, v2
          s_mov_b64 exec, -1
          s_waitcnt lgkmcnt(0)''')
    a.label(l3)
    a(f'''s_barrier
          v_mov_b32 v3, 0
          ds_read_b32 v2, v3
          s_cmp_lg_u32 s{sW}, 0
          s_cbranch_scc1 {l4}
          s_mov_b64 exec, 1
          v_mov_b32 v4, 1
          v_mov_b32 v5, 32
          buffer_atomic_add v4, v5, s[{sDBG}:{sDBG+3}], 0 offen sc1
          s_mov_b64 exec, -1''')
    a.label(l4)
    a(f'''s_waitcnt lgkmcnt(0)
          v_readfirstlane_b32 s{sC}, v2
          s_barrier
          s_cmp_lt_u32 s{sC}, 32
          s_cbranch_scc1 {l7}''')
    a('v_and_b32 v4, 15, v0')
    wait_registered(a, opt, 2, 3, 4)
    a(f's_sub_u32 s{sT1}, s{sC}, 32')
    a(f's_mov_b32 s{sJ}, 0')
    a(f's_mov_b32 s{sC}, 0')
    for x in range(8):
        a(f'''v_readlane_b32 s{sT0}, v2, {x}
              s_min_u32 s{sT0}, s{sT0}, 32
              s_sub_u32 s{sT2}, 32, s{sT0}
              s_add_u32 s{sT0}, s{sT0}, s{sT1}
              s_cmp_lt_u32 s{sT1}, s{sT2}
              s_cselect_b32 s{sJ}, {x}, s{sJ}
              s_cselect_b32 s{sC}, s{sT0}, s{sC}
              s_sub_u32 s{sT1}, s{sT1}, s{sT2}''')
    a.label(l7)
    if opt.get('prof'):
        a(f's_memrealtime s[{sST+8}:{sST+9}]')
        a('s_waitcnt lgkmcnt(0)')

import struct
def f32bits(x): return struct.unpack('<I', struct.pack('<f', x))[0]

def emit_chain_body(a, opt):
    ch = Chain(a, opt)
    lv, l7, lat = a.newlabel('Lrole_v'), a.newlabel('Lrole_w7'), a.newlabel('Lrole_att')
    a(f'''s_lshr_b32 s{sH}, s{sC}, 2
          s_lshl_b32 s{sT0}, s{sJ}, 2
          s_add_u32 s{sH}, s{sH}, s{sT0}
          s_and_b32 s{sG}, s{sC}, 3
          s_setprio 2
          s_cmp_eq_u32 s{sW}, 3
          s_cbranch_scc1 {lv}
          s_cmp_eq_u32 s{sW}, 7
          s_cbranch_scc1 {l7}
          s_cmp_ge_u32 s{sW}, 4
          s_cbranch_scc1 {lat}''')
    ch.role_qk()
    a.label(lv); ch.role_v()
    a.label(l7); ch.role_w7()
    a.label(lat); ch.role_att()
```

```python
from asmlib import *
from layout import *
from chain import (sWS, sDBG, sT, ptr, sW, sJ, sC, sMIX, sBUD, sT0, sT1, sT2, sT3, f32bits, wait_registered)
import math

XB, WB_OFF, STAGE = 32768, 32768, 57344
GEMM1_LDS = 2 * STAGE

sX = 56
sWD = 60
sTile, sXo, sWo, sWrs, sKind, sOut, sNK, sNOut, sIt, sM0x, sM0w, sWstep = 64, 65, 66, 67, 68, 70, 71, 72, 73, 74, 75, 79
sFlagP = 80
sNFlag = 81
sC1, sC2 = 82, 83

class Gemm1:
    def __init__(self, a, opt, nworkers, rank0):
        self.a, self.opt, self.NW, self.rank0 = a, opt, nworkers, rank0
        self.tail = []

    def lstore(self, insts):
        a = self.a
        slow, back = a.newlabel('Lgslow'), a.newlabel('Lgback')
        a(f's_cmp_lg_u32 s{sMIX}, 0')
        a(f's_cbranch_scc1 {slow}')
        for i in insts: a(i)
        a.label(back)
        self.tail.append((slow, [i + ' sc1' if i.startswith('buffer_') else i for i in insts], back))

    def emit_tail(self):
        a = self.a
        for slow, insts, back in self.tail:
            a.label(slow)
            for i in insts: a(i)
            a(f's_branch {back}')
        self.tail = []

    def decode(self):
        a = self.a
        lf, ln, ld = a.newlabel('Ldf'), a.newlabel('Ldn'), a.newlabel('Ldd')
        a(f'''s_cmp_ge_u32 s{sTile}, 112
              s_cbranch_scc1 {ln}
              s_cmp_ge_u32 s{sTile}, 96
              s_cbranch_scc1 {lf}
              s_mul_i32 s{sT0}, s{sTile}, 43691
              s_lshr_b32 s{sT0}, s{sT0}, 19
              s_mul_i32 s{sT1}, s{sT0}, 12
              s_sub_u32 s{sT1}, s{sTile}, s{sT1}
              s_lshr_b32 s{sNK}, s{sT1}, 2
              s_and_b32 s{sT1}, s{sT1}, 3
              s_lshl_b32 s{sT2}, s{sJ}, 2
              s_add_u32 s{sT1}, s{sT1}, s{sT2}
              s_mul_i32 s{sXo}, s{sT0}, {256*1280}
              s_mul_i32 s{sWo}, s{sT1}, 384
              s_mov_b32 s{sWrs}, 12288
              s_cmp_eq_u32 s{sNK}, 1
              s_cselect_b32 s{sWD}, s{ptr(3)}, s{ptr(2)}
              s_cselect_b32 s{sWD+1}, s{ptr(3)+1}, s{ptr(2)+1}
              s_cmp_eq_u32 s{sNK}, 2
              s_cselect_b32 s{sWD}, s{ptr(4)}, s{sWD}
              s_cselect_b32 s{sWD+1}, s{ptr(4)+1}, s{sWD+1}
              s_mov_b32 s{sWD+2}, {DM*NH*DH*2}
              s_mul_i32 s{sNOut}, s{sNK}, {WS_K}
              s_mul_i32 s{sT2}, s{sT1}, {2048*384}
              s_add_u32 s{sNOut}, s{sNOut}, s{sT2}
              s_mul_i32 s{sT2}, s{sT0}, {256*384}
              s_add_u32 s{sNOut}, s{sNOut}, s{sT2}
              s_mul_i32 s{sT2}, s{sW}, 3
              s_lshr_b32 s{sT3}, s{sT2}, 2
              s_branch {ld}''')
        a.label(lf)
        a(f'''s_sub_u32 s{sT1}, s{sTile}, 96
              s_lshr_b32 s{sT0}, s{sT1}, 1
              s_and_b32 s{sT1}, s{sT1}, 1
              s_mov_b32 s{sNK}, 3
              s_mul_i32 s{sXo}, s{sT0}, {256*1280}
              s_mul_i32 s{sWo}, s{sJ}, 384
              s_mul_i32 s{sT2}, s{sT1}, 192
              s_add_u32 s{sWo}, s{sWo}, s{sT2}
              s_mov_b32 s{sWrs}, 3072
              s_cmp_ge_u32 s{sW}, 4
              s_cselect_b32 s{sWD}, s{ptr(9)}, s{ptr(8)}
              s_cselect_b32 s{sWD+1}, s{ptr(9)+1}, s{ptr(8)+1}
              s_mov_b32 s{sWD+2}, {DM*DF*2}
              s_mul_i32 s{sNOut}, s{sT0}, {8*98304}
              s_lshl_b32 s{sT2}, s{sWo}, 4
              s_add_u32 s{sNOut}, s{sNOut}, s{sT2}
              s_add_u32 s{sNOut}, s{sNOut}, {WS_H}
              s_and_b32 s{sT2}, s{sW}, 3
              s_mul_i32 s{sT2}, s{sT2}, 3
              s_lshr_b32 s{sT3}, s{sT2}, 2
              s_branch {ld}''')
        a.label(ln)
        a(f'''s_mov_b32 s{sNK}, 4
              s_mov_b32 s{sWD+2}, 0
              s_mov_b32 s{sT2}, 0
              s_mov_b32 s{sT3}, 0''')
        a.label(ld)
        for ii in range(3):
            a(f'''s_add_u32 s{sT0}, s{sT2}, {ii}
                  s_lshr_b32 s{sT1}, s{sT0}, 2
                  s_and_b32 s{sT0}, s{sT0}, 3
                  s_lshl_b32 s{sT0}, s{sT0}, 4
                  s_mul_i32 s{sT0}, s{sT0}, s{sWrs}
                  s_lshl_b32 s{sT1}, s{sT1}, 6
                  s_add_u32 s{sT0}, s{sT0}, s{sT1}
                  s_add_u32 s{self.sP+ii}, s{sT0}, s{sWo}''')
        a(f'''s_mul_i32 s{sT0}, s{sW}, {32*1280}
              s_add_u32 s{sXo}, s{sXo}, s{sT0}
              s_lshl_b32 s{sWstep}, s{sWrs}, 6
              v_mul_lo_u32 v{self.vWg}, v{self.vL2}, s{sWrs}
              v_add_u32 v{self.vWg}, v{self.vWg}, v{self.vL3}''')

    def dma(self, buf):
        a = self.a
        for ii in range(4):
            a(f's_add_u32 m0, s{sM0x}, {buf*STAGE + ii*1024}')
            if ii: a(f's_add_u32 s{sT0}, s{sXo}, {ii*10240}')
            else: a('s_nop 0')
            a(f'buffer_load_dwordx4 v{self.vXg + (ii & 1)}, s[{sX}:{sX+3}], s{sT0 if ii else sXo} offen lds')
        for ii in range(3):
            a(f's_add_u32 m0, s{sM0w}, {buf*STAGE + ii*1024}')
            a('s_nop 0')
            a(f'buffer_load_dwordx4 v{self.vWg}, s[{sWD}:{sWD+3}], s{self.sP+ii} offen lds')
            a(f's_add_u32 s{self.sP+ii}, s{self.sP+ii}, s{sWstep}')
        a(f's_add_u32 s{sXo}, s{sXo}, 128')

    def reads(self, var, buf, kk, fs):
        a = self.a
        MT, NT = var
        F = self.F + fs * 28
        xa = (self.vXr if MT == 2 else self.vXr1) + buf * 4 + kk
        out = []
        for mt in range(MT):
            out.append(f'ds_read_b128 v[{F+4*mt}:{F+4*mt+3}], v{xa} offset:{4096*mt}')
        wa = (self.vWr if MT == 2 else self.vWr1) + buf
        for nt in range(NT):
            for j in range(2):
                r = F + 4*MT + 4*nt + 2*j
                out.append(f'ds_read_b64_tr_b16 v[{r}:{r+1}], v{wa} offset:{4096*nt + 1024*kk + 256*j}')
        return out

    def mfmas(self, var, swap, fs, first):
        MT, NT = var
        F = self.F + fs * 28
        out = []
        for mt in range(MT):
            for nt in range(NT):
                acc = self.ACC + 16 * (mt * NT + nt)
                x = f'v[{F+4*mt}:{F+4*mt+3}]'; w = f'v[{F+4*MT+4*nt}:{F+4*MT+4*nt+3}]'
                A, B = (x, w) if swap else (w, x)
                c = '0' if first else f'v[{acc}:{acc+15}]'
                out.append(f'v_mfma_f32_32x32x16_bf16 v[{acc}:{acc+15}], {A}, {B}, {c}')
        return out

    def interleave(self, mf, other):
        a = self.a
        n = len(mf); per = (len(other) + n - 1) // n if other else 0
        k = 0
        for m in mf:
            a(m)
            for o in other[k:k + per]: a(o)
            k += per
        for o in other[k:]: a(o)

    def stage_top(self, flag=False):
        a = self.a
        a('s_waitcnt vmcnt(0) lgkmcnt(0)')
        a('s_barrier')

    def tile_loop(self, var, swap, name):
        a = self.a
        nr = var[0] + 2 * var[1]
        loop = a.newlabel('L' + name)
        def stage(buf, first_stage, capture):
            self.stage_top()
            for r in self.reads(var, buf, 0, 0): a(r)
            if first_stage:
                self.after_top()
            return
        self.stage_top()
        self.after_top()
        for r in self.reads(var, 0, 0, 0): a(r)
        self.dma(1)
        def body(buf, kstart_first):
            for kk in range(3):
                rd = self.reads(var, buf, kk + 1, (kk + 1) & 1)
                a(f's_waitcnt lgkmcnt(0)')
                self.interleave(self.mfmas(var, swap, kk & 1, kstart_first and kk == 0), rd)
        body(0, True)
        a(f's_mov_b32 s{sIt}, 0')
        a.label(loop)
        for buf in (1, 0):
            last = a.newlabel('Lgl')
            self.stage_top()
            rd = self.reads(var, buf, 0, 0)
            self.interleave(self.mfmas(var, swap, 1, False), rd)
            if buf == 1:
                skip = a.newlabel('Lgn')
                a(f's_cmp_lg_u32 s{sIt}, 4')
                a(f's_cbranch_scc1 {skip}')
                a(f's_add_u32 s{sTile}, s{sTile}, {self.NW}')
                self.decode()
                a.label(skip)
            self.dma(buf ^ 1)
            body(buf, False)
            if buf == 1:
                a(f's_cmp_eq_u32 s{sIt}, 4')
                a(f's_cbranch_scc1 {name}_done')
        a(f's_add_u32 s{sIt}, s{sIt}, 1')
        a(f's_branch {loop}')
        a.label(f'{name}_done')
        a('s_waitcnt lgkmcnt(0)')
        for m in self.mfmas(var, swap, 1, False): a(m)
        a('s_nop 7'); a('s_nop 3')

    def after_top(self):
        if not self.opt.get('fused'): return
        a = self.a
        l = a.newlabel('Lgf')
        a(f'''s_cmp_eq_u32 s{sFlagP}, 0
              s_cbranch_scc1 {l}
              s_cmp_lg_u32 s{sW}, 0
              s_cbranch_scc1 {l}
              s_mov_b64 exec, 1''')
        self.lstore([f'buffer_store_dword v{self.vOne}, v{self.vZero}, s[{sWS}:{sWS+3}], s{sFlagP} offen'])
        a('s_mov_b64 exec, -1')
        a.label(l)

    def emit(self, done_label):
        a = self.a
        al = Alloc(1, 256)
        self.ACC = al(96, 2); self.F = al(56, 2)
        self.vXg = al(2); self.vWg = al()
        self.vXr = al(8); self.vXr1 = al(8); self.vWr = al(2); self.vWr1 = al(2)
        self.vL2, self.vL3 = al(), al()
        vL, vT0, vT1, vT2 = al(), al(), al(), al()
        vQK, vV, vH = al(), al(), al()
        self.vOne, self.vZero = al(), al()
        self.sP = 84
        a(f'''v_and_b32 v{vL}, 63, v0
              v_mov_b32 v{self.vOne}, 1
              v_mov_b32 v{self.vZero}, 0
              s_mov_b32 s{sX}, s{ptr(0)}
              s_mov_b32 s{sX+1}, s{ptr(0)+1}
              s_mov_b32 s{sX+2}, {S*DM*2}
              s_mov_b32 s{sX+3}, 0x20000
              s_mov_b32 s{sWD}, s{ptr(2)}
              s_mov_b32 s{sWD+1}, s{ptr(2)+1}
              s_mov_b32 s{sWD+3}, 0x20000
              s_mov_b32 s{sWrs}, 0
              s_mov_b32 s{sWo}, 0
              s_mov_b32 s{sXo}, 0
              s_mov_b32 s{sNOut}, 0
              s_mov_b32 s{sFlagP}, 0
              s_mov_b32 s{sC1}, {hex(f32bits(-2 * math.sqrt(2 / math.pi) * math.log2(math.e)))}
              s_mov_b32 s{sC2}, {hex(f32bits(-2 * math.sqrt(2 / math.pi) * math.log2(math.e) * 0.044715))}
              s_lshl_b32 s{sM0x}, s{sW}, 12
              s_mul_i32 s{sM0w}, s{sW}, 3072
              s_add_u32 s{sM0w}, s{sM0w}, {WB_OFF}
              s_sub_u32 s{sTile}, s{sC}, {self.rank0}
              v_lshrrev_b32 v{self.vL2}, 2, v{vL}
              v_and_b32 v{self.vL3}, 3, v{vL}
              v_lshlrev_b32 v{self.vL3}, 4, v{self.vL3}''')
        for par in range(2):
            a(f'''v_lshrrev_b32 v{vT0}, 4, v{vL}
                  v_add_u32 v{vT0}, {4*par}, v{vT0}
                  v_and_b32 v{vT1}, 7, v{vL}
                  v_xor_b32 v{vT0}, v{vT0}, v{vT1}
                  v_lshlrev_b32 v{vT0}, 4, v{vT0}
                  v_lshrrev_b32 v{vT1}, 3, v{vL}
                  v_mul_u32_u24 v{vT1}, 1280, v{vT1}
                  v_add_u32 v{self.vXg+par}, v{vT0}, v{vT1}''')
        a(f'''v_and_b32 v{vT0}, 31, v{vL}
              v_bfe_u32 v{vT1}, v{vL}, 1, 3
              v_lshrrev_b32 v{vT2}, 5, v{vL}
              v_xor_b32 v{vT1}, v{vT1}, v{vT2}
              s_lshr_b32 s{sT0}, s{sW}, 1
              s_lshl_b32 s{sT0}, s{sT0}, 13
              s_lshl_b32 s{sT1}, s{sW}, 12''')
        for kk in range(4):
            a(f'''v_xor_b32 v{vT2}, {2*kk}, v{vT1}
                  v_lshlrev_b32 v{vT2}, 4, v{vT2}
                  v_lshl_add_u32 v{vT2}, v{vT0}, 7, v{vT2}
                  v_add_u32 v{self.vXr+kk}, s{sT0}, v{vT2}
                  v_add_u32 v{self.vXr1+kk}, s{sT1}, v{vT2}
                  v_add_u32 v{self.vXr+4+kk}, {STAGE}, v{self.vXr+kk}
                  v_add_u32 v{self.vXr1+4+kk}, {STAGE}, v{self.vXr1+kk}''')
        a(f'''v_lshrrev_b32 v{vT0}, 5, v{vL}
              v_lshlrev_b32 v{vT0}, 9, v{vT0}
              v_bfe_u32 v{vT1}, v{vL}, 2, 2
              v_lshl_add_u32 v{vT0}, v{vT1}, 6, v{vT0}
              v_bfe_u32 v{vT1}, v{vL}, 4, 1
              v_lshl_add_u32 v{vT0}, v{vT1}, 5, v{vT0}
              v_and_b32 v{vT1}, 3, v{vL}
              v_lshl_add_u32 v{vT0}, v{vT1}, 3, v{vT0}
              v_add_u32 v{self.vWr1}, {WB_OFF}, v{vT0}
              v_add_u32 v{self.vWr1+1}, {STAGE}, v{self.vWr1}
              s_and_b32 s{sT0}, s{sW}, 1
              s_mul_i32 s{sT0}, s{sT0}, {3*4096}
              v_add_u32 v{self.vWr}, s{sT0}, v{self.vWr1}
              v_add_u32 v{self.vWr+1}, {STAGE}, v{self.vWr}''')
        a(f'''v_and_b32 v{vT0}, 15, v{vL}
              v_lshlrev_b32 v{vT0}, 4, v{vT0}
              v_lshrrev_b32 v{vT1}, 5, v{vL}
              v_lshl_add_u32 v{vT0}, v{vT1}, 8, v{vT0}
              v_bfe_u32 v{vT1}, v{vL}, 4, 1
              s_lshr_b32 s{sT0}, s{sW}, 1
              s_and_b32 s{sT1}, s{sW}, 1
              s_mul_i32 s{sT0}, s{sT0}, 24576
              v_mul_u32_u24 v{vQK}, 6144, v{vT1}
              v_add_u32 v{vQK}, v{vQK}, v{vT0}
              s_mul_i32 s{sT3}, s{sT1}, 3072
              s_add_u32 s{sT2}, s{sT0}, s{sT3}
              v_add_u32 v{vQK}, s{sT2}, v{vQK}
              v_lshl_add_u32 v{vV}, v{vT1}, 10, v{vT0}
              s_mul_i32 s{sT3}, s{sT1}, 6144
              s_add_u32 s{sT2}, s{sT0}, s{sT3}
              v_add_u32 v{vV}, s{sT2}, v{vV}
              v_mul_u32_u24 v{vH}, 49152, v{vT1}
              v_add_u32 v{vH}, v{vH}, v{vT0}
              s_mul_i32 s{sT2}, s{sW}, 98304
              v_add_u32 v{vH}, s{sT2}, v{vH}''')
        self.decode()
        self.dma(0)
        a(f'v_and_b32 v{vT2}, 15, v{vL}')
        wait_registered(a, self.opt, vT0, vT1, vT2)
        nxt = a.newlabel('Lgnext')
        lqk, lv, lf = 'Lg_qk', 'Lg_v', 'Lg_f'
        a.label(nxt)
        a(f'''s_mov_b32 s{sKind}, s{sNK}
              s_mov_b32 s{sOut}, s{sNOut}
              s_lshl_b32 s{sNFlag}, s{sTile}, 2
              s_cmp_eq_u32 s{sKind}, 4
              s_cbranch_scc1 Lg_end
              s_cmp_eq_u32 s{sKind}, 2
              s_cbranch_scc1 {lv}
              s_cmp_eq_u32 s{sKind}, 3
              s_cbranch_scc1 {lf}''')
        def set_flag():
            a(f'''s_mul_i32 s{sFlagP}, s{sJ}, 512
                  s_add_u32 s{sFlagP}, s{sFlagP}, s{sNFlag}
                  s_add_u32 s{sFlagP}, s{sFlagP}, {WS_FLAG}''')
        ACC = self.ACC
        self.tile_loop((2, 3), False, lqk)
        st = []
        for mt in range(2):
            a(f's_add_u32 s{sT0+0 if mt == 0 else sT1}, s{sOut}, {mt*12288}')
        for mt in range(2):
            for nt in range(3):
                c = ACC + 16 * (mt * 3 + nt)
                for r in range(8):
                    a(f'v_cvt_pk_bf16_f32 v{c+r}, v{c+2*r}, v{c+2*r+1}')
                for u in range(2):
                    st.append(f'buffer_store_dwordx4 v[{c+4*u}:{c+4*u+3}], v{vQK}, s[{sWS}:{sWS+3}], s{sT1 if mt else sT0} offen offset:{1024*nt + 512*u}')
        self.lstore(st)
        set_flag()
        a(f's_branch {nxt}')
        a.label(lv)
        self.tile_loop((2, 3), True, lv + 'x')
        st = []
        for mt in range(2):
            a(f's_add_u32 s{sT1 if mt else sT0}, s{sOut}, {mt*12288}')
        for mt in range(2):
            for nt in range(3):
                c = ACC + 16 * (mt * 3 + nt)
                a(f'''v_cvt_pk_bf16_f32 v{c}, v{c}, v{c+1}
                      v_cvt_pk_bf16_f32 v{c+1}, v{c+2}, v{c+3}
                      v_cvt_pk_bf16_f32 v{c+2}, v{c+8}, v{c+9}
                      v_cvt_pk_bf16_f32 v{c+3}, v{c+10}, v{c+11}
                      v_cvt_pk_bf16_f32 v{c+4}, v{c+4}, v{c+5}
                      v_cvt_pk_bf16_f32 v{c+5}, v{c+6}, v{c+7}
                      v_cvt_pk_bf16_f32 v{c+6}, v{c+12}, v{c+13}
                      v_cvt_pk_bf16_f32 v{c+7}, v{c+14}, v{c+15}''')
                for u in range(2):
                    off = 2048*nt + 512*u
                    so = sT1 if mt else sT0
                    if off >= 4096:
                        st.append(f's_add_u32 s{sT2}, s{so}, 4096'); so = sT2; off -= 4096
                    st.append(f'buffer_store_dwordx4 v[{c+4*u}:{c+4*u+3}], v{vV}, s[{sWS}:{sWS+3}], s{so} offen offset:{off}')
        self.lstore(st)
        set_flag()
        a(f's_branch {nxt}')
        a.label(lf)
        self.tile_loop((1, 6), False, lf + 'x')
        st = []
        T = self.F
        for nt in range(3):
            g, u = ACC + 16 * nt, ACC + 16 * (3 + nt)
            for r0 in range(0, 16, 8):
                R = range(r0, r0 + 8)
                for r in R: a(f'v_mul_f32 v{T+r-r0}, v{g+r}, v{g+r}')
                for r in R: a(f'v_mov_b32 v{T+8+r-r0}, s{sC1}')
                for r in R: a(f'v_fma_f32 v{T+r-r0}, v{T+r-r0}, s{sC2}, v{T+8+r-r0}')
                for r in R: a(f'v_mul_f32 v{T+r-r0}, v{T+r-r0}, v{g+r}')
                for r in R: a(f'v_exp_f32 v{T+r-r0}, v{T+r-r0}')
                for r in R: a(f'v_mul_f32 v{g+r}, v{g+r}, v{u+r}')
                for r in R: a(f'v_add_f32 v{T+r-r0}, 1.0, v{T+r-r0}')
                for r in R: a(f'v_rcp_f32 v{T+r-r0}, v{T+r-r0}')
                a('s_nop 0')
                for r in R: a(f'v_mul_f32 v{g+r}, v{g+r}, v{T+r-r0}')
            for r in range(8):
                a(f'v_cvt_pk_bf16_f32 v{g+r}, v{g+2*r}, v{g+2*r+1}')
            for uu in range(2):
                st.append(f'buffer_store_dwordx4 v[{g+4*uu}:{g+4*uu+3}], v{vH}, s[{sWS}:{sWS+3}], s{sOut} offen offset:{1024*nt + 512*uu}')
        self.lstore(st)
        set_flag()
        a(f's_branch {nxt}')
        a.label('Lg_end')
        self.stage_top()
        self.after_top()
        a(f's_branch {done_label}')
        self.emit_tail()
```

```python
from asmlib import *
from layout import *
from chain import (sWS, sDBG, sT, ptr, sW, sJ, sC, sMIX, sBUD, sT0, sT1, sT2, sT3, sSELLO, sSELHI, srd)

PBUF = 6 * 5120
P3_LDS = 2 * PBUF
sNN, sTH, sKG, sTT, sSeg, sAct, sActStep, sNKS, sLds, sPo, sOUT = 56, 57, 58, 59, 64, 65, 66, 67, 68, 70, 60
sOF, sPFo = 71, 72

class Phase3:
    def __init__(self, a, opt, nworkers, rank0):
        self.a, self.opt, self.NW, self.rank0 = a, opt, nworkers, rank0
        self.NTH = nworkers // 8

    def retry(self, label):
        self.a(f'''s_sub_u32 s{sBUD}, s{sBUD}, 1
                   s_cbranch_scc0 {label}
                   s_mov_b32 s{sBUD}, 0''')

    def wait_flags(self, nlanes, soff, vOff4, vT):
        a = self.a
        lp, ok = a.newlabel('Lpf'), a.newlabel('Lpfok')
        a(f's_mov_b64 exec, {hex((1 << nlanes) - 1)}' if nlanes <= 32 else f's_mov_b64 exec, s[{self.sM48}:{self.sM48+1}]')
        a.label(lp)
        a(f'''buffer_load_dword v{vT}, v{vOff4}, s[{sWS}:{sWS+3}], s{soff} offen sc1
              s_waitcnt vmcnt(0)
              v_cmp_eq_u32 vcc, 0, v{vT}
              s_cbranch_vccz {ok}
              s_sleep 4''')
        self.retry(lp)
        a.label(ok)
        a('s_mov_b64 exec, -1')

    def load_w(self, W, nks, rel, vP, vS, vSel, vtmp, tmps):
        a = self.a
        def issue(ks):
            for p in range(4):
                base = W + ks * 20
                a(f's_mov_b32 s{sT0}, {rel(ks, p) * 1280}')
                a(f's_mov_b32 s{sT1}, {(rel(ks, p) + 1) * 1280}')
                for pr in range(2):
                    a(f'buffer_load_dword v{base+8*pr+p}, v{vP}, s[{sT}:{sT+3}], s{sT0} offen offset:{64*pr}')
                    a(f'buffer_load_dword v{base+8*pr+4+p}, v{vP}, s[{sT}:{sT+3}], s{sT1} offen offset:{64*pr}')
                a(f'buffer_load_dword v{base+16+p}, v{vS}, s[{sT}:{sT+3}], s{sT0} offen')
                a(f'buffer_load_dword v{tmps+(ks&1)*4+p}, v{vS}, s[{sT}:{sT+3}], s{sT1} offen')
        def fix(ks):
            base = W + ks * 20
            for p in range(4):
                for pr in range(2):
                    ra, rb = base + 8*pr + p, base + 8*pr + 4 + p
                    a(f'v_perm_b32 v{vtmp}, v{rb}, v{ra}, s{sSELLO}')
                    a(f'v_perm_b32 v{rb}, v{rb}, v{ra}, s{sSELHI}')
                    a(f'v_mov_b32 v{ra}, v{vtmp}')
                a(f'v_perm_b32 v{base+16+p}, v{tmps+(ks&1)*4+p}, v{base+16+p}, v{vSel}')
        issue(0)
        for ks in range(nks):
            if ks + 1 < nks:
                issue(ks + 1); a('s_waitcnt vmcnt(24)')
            else:
                a('s_waitcnt vmcnt(0)')
            fix(ks)

    def emit(self, done_label):
        a = self.a
        fused = self.opt.get('fused')
        NTH = self.NTH
        al = Alloc(0, 256)
        vL4 = al()
        vQ, vT0, vT1 = al(), al(), al()
        W = al(160, 2); ACT = al(64, 2); ACC = al(20, 2)
        vAct, vG0, vG1, vGo, vLw, vPo, vFi, vFo = [al() for _ in range(8)]
        vL, vN, vT2, vSel = ACC, ACC + 1, ACC + 2, ACC + 3
        self.sM48 = 74
        sPre, sPend, sFin = 73, 80, 81
        a(f"""v_and_b32 v{vL}, 63, v0
              v_and_b32 v{vN}, 15, v0
              v_bfe_u32 v{vQ}, v0, 4, 2
              s_mov_b32 s{sSELLO}, 0x05040100
              s_mov_b32 s{sSELHI}, 0x07060302
              s_mov_b32 s{self.sM48}, -1
              s_mov_b32 s{self.sM48+1}, 0xffff
              s_sub_u32 s{sT0}, s{sC}, {self.rank0}
              s_and_b32 s{sNN}, s{sT0}, 7
              s_lshr_b32 s{sTH}, s{sT0}, 3
              s_lshr_b32 s{sKG}, s{sW}, 1
              s_and_b32 s{sTT}, s{sW}, 1
              s_mov_b32 s{sOUT}, s{ptr(12)}
              s_mov_b32 s{sOUT+1}, s{ptr(12)+1}
              s_mov_b32 s{sOUT+2}, {S*DM*2}
              s_mov_b32 s{sOUT+3}, 0x20000
              v_lshlrev_b32 v{vL4}, 2, v{vL}
              v_and_b32 v{vT0}, 1, v{vN}
              v_cmp_eq_u32 vcc, 1, v{vT0}
              v_mov_b32 v{vSel}, s{sSELLO}
              v_mov_b32 v{vT0}, s{sSELHI}
              s_nop 1
              v_cndmask_b32 v{vSel}, v{vSel}, v{vT0}, vcc""")
        lh, lw = a.newlabel('Lp3h'), a.newlabel('Lp3w')
        vP, vS = vAct, vGo
        a(f"""s_cmp_eq_u32 s{sKG}, 0
              s_cbranch_scc1 {lh}""")
        srd(a, ptr(5), NH * DH * DM * 2)
        a(f"""s_mul_i32 s{sT0}, s{sJ}, 768
              s_lshl_b32 s{sT1}, s{sKG}, 8
              s_add_u32 s{sT0}, s{sT0}, s{sT1}
              s_sub_u32 s{sT0}, s{sT0}, 256
              s_lshl_b32 s{sAct}, s{sT0}, 5
              s_add_u32 s{sAct}, s{sAct}, {WS_O}
              s_mul_i32 s{sT0}, s{sT0}, 1280
              s_mul_i32 s{sT1}, s{sNN}, 160
              s_add_u32 s{sT0}, s{sT0}, s{sT1}
              v_mul_u32_u24 v{vP}, {8*1280}, v{vQ}
              v_add_u32 v{vP}, s{sT0}, v{vP}
              v_and_b32 v{vT0}, 14, v{vN}
              v_lshl_add_u32 v{vS}, v{vT0}, 1, v{vP}
              v_add_u32 v{vS}, 128, v{vS}
              v_lshl_add_u32 v{vP}, v{vN}, 2, v{vP}""")
        self.load_w(W, 8, lambda ks, p: 32*ks + 2*p, vP, vS, vSel, vT0, ACT)
        a(f"""s_mov_b32 s{sActStep}, 12288
              s_branch {lw}""")
        a.label(lh)
        srd(a, ptr(10), DF * DM * 2)
        a(f"""s_mul_i32 s{sT0}, s{sJ}, 192
              s_lshl_b32 s{sAct}, s{sT0}, 5
              s_add_u32 s{sAct}, s{sAct}, {WS_H}
              s_mul_i32 s{sT0}, s{sT0}, 1280
              s_mul_i32 s{sT1}, s{sNN}, 160
              s_add_u32 s{sT0}, s{sT0}, s{sT1}
              v_lshrrev_b32 v{vT0}, 1, v{vQ}
              v_lshlrev_b32 v{vT0}, 4, v{vT0}
              v_and_b32 v{vT1}, 1, v{vQ}
              v_lshl_add_u32 v{vT0}, v{vT1}, 2, v{vT0}
              v_mul_u32_u24 v{vP}, 1280, v{vT0}
              v_add_u32 v{vP}, s{sT0}, v{vP}
              v_and_b32 v{vT0}, 14, v{vN}
              v_lshl_add_u32 v{vS}, v{vT0}, 1, v{vP}
              v_add_u32 v{vS}, 128, v{vS}
              v_lshl_add_u32 v{vP}, v{vN}, 2, v{vP}""")
        self.load_w(W, 6, lambda ks, p: 32*ks + 8*(p >> 1) + 2*(p & 1), vP, vS, vSel, vT0, ACT)
        a(f's_mov_b32 s{sActStep}, 3072')
        a.label(lw)
        a(f"""s_lshl_b32 s{sT0}, s{sTT}, 4
              v_add_u32 v{vT0}, s{sT0}, v{vN}
              s_mul_i32 s{sT1}, s{sT0}, s{sActStep}
              v_lshlrev_b32 v{vAct}, 4, v{vL}
              v_add_u32 v{vAct}, s{sT1}, v{vAct}
              v_lshlrev_b32 v{vGo}, 2, v{vT0}
              v_mul_u32_u24 v{vPo}, 160, v{vT0}
              s_lshl_b32 s{sActStep}, s{sActStep}, 5
              s_sub_u32 s{sT0}, s{sW}, 2
              s_cmp_eq_u32 s{sKG}, 0
              s_cselect_b32 s{sT0}, s{sW}, s{sT0}
              s_mul_i32 s{sT0}, s{sT0}, 5120
              v_lshlrev_b32 v{vLw}, 4, v{vL}
              v_add_u32 v{vLw}, s{sT0}, v{vLw}
              s_max_u32 s{sT0}, s{sW}, 3
              s_sub_u32 s{sT0}, s{sT0}, 3
              s_lshl_b32 s{sT0}, s{sT0}, 6
              v_add_u32 v{vT0}, s{sT0}, v{vL}
              v_lshlrev_b32 v{vFi}, 4, v{vT0}
              v_mul_u32_u24 v{vT1}, 6554, v{vT0}
              v_lshrrev_b32 v{vT1}, 16, v{vT1}
              v_mul_u32_u24 v{vT2}, 1120, v{vT1}
              v_add_u32 v{vFo}, v{vFi}, v{vT2}
              s_mov_b32 s{sSeg}, s{sTH}
              s_mov_b32 s{sPre}, 0
              s_mov_b32 s{sPend}, 0""")
        if not fused:
            lp, ok = a.newlabel('Lp3r'), a.newlabel('Lp3rok')
            a.label(lp)
            a(f"""buffer_load_dword v{vT0}, v{vL4}, s[{sDBG}:{sDBG+3}], 0 offen sc0 sc1
                  s_waitcnt vmcnt(0)
                  v_readlane_b32 s{sT0}, v{vT0}, 8
                  s_cmp_ge_u32 s{sT0}, 256
                  s_cbranch_scc1 {ok}
                  s_sleep 8""")
            self.retry(lp)
            a.label(ok)

        if self.opt.get('prof'):
            a('s_memrealtime s[92:93]'); a('s_waitcnt lgkmcnt(0)')
        def flag_off(isH, seg):
            if isH:
                a(f"""s_lshl_b32 s{sOF}, s{sJ}, 9
                      s_lshr_b32 s{sT0}, s{seg}, 3
                      s_lshl_b32 s{sT0}, s{sT0}, 3
                      s_add_u32 s{sOF}, s{sOF}, s{sT0}
                      s_add_u32 s{sOF}, s{sOF}, {WS_FLAG + 96*4}""")
            else:
                a(f"""s_lshl_b32 s{sOF}, s{sJ}, 6
                      s_add_u32 s{sOF}, s{sOF}, s{seg}
                      s_lshl_b32 s{sOF}, s{sOF}, 8
                      s_add_u32 s{sOF}, s{sOF}, {WS_OFLAG}""")
        def loads(nks, seg, b):
            a(f"""s_mul_i32 s{sT2}, s{seg}, s{sActStep}
                  s_add_u32 s{sT2}, s{sT2}, s{sAct}
                  s_lshl_b32 s{sT3}, s{seg}, 7
                  s_add_u32 s{sT3}, s{sT3}, {WS_G}
                  buffer_load_dword v{vG1 if b else vG0}, v{vGo}, s[{sWS}:{sWS+3}], s{sT3} offen sc1""")
            for ks in range(nks):
                r = ACT + 32*b + 4*ks
                if ks == 4: a(f's_add_u32 s{sT2}, s{sT2}, 4096')
                a(f'buffer_load_dwordx4 v[{r}:{r+3}], v{vAct}, s[{sWS}:{sWS+3}], s{sT2} offen offset:{1024*(ks&3)} sc1')
        def set_pending_flag():
            l = a.newlabel('Lp3pf')
            a(f"""s_cmp_eq_u32 s{sPend}, 0
                  s_cbranch_scc1 {l}
                  v_mov_b32 v{vT0}, 0
                  v_mov_b32 v{vT1}, 1
                  s_mov_b64 exec, 1
                  buffer_store_dword v{vT1}, v{vT0}, s[{sWS}:{sWS+3}], s{sPend} offen sc1
                  s_mov_b64 exec, -1
                  s_mov_b32 s{sPend}, 0""")
            a.label(l)
        def front(isH, b):
            nks = 6 if isH else 8
            nl = 2 if isH else 48
            have, nonext, go = a.newlabel('Lp3hv'), a.newlabel('Lp3nn'), a.newlabel('Lp3go')
            a(f"""s_cmp_lg_u32 s{sPre}, 0
                  s_cbranch_scc1 {have}""")
            if fused and not isH:
                flag_off(isH, sSeg)
                self.wait_flags(nl, sOF, vL4, vT0)
            loads(nks, sSeg, b)
            a.label(have)
            a(f"""s_add_u32 s{sNKS}, s{sSeg}, {NTH}
                  s_mov_b32 s{sPre}, 0
                  s_cmp_ge_u32 s{sNKS}, 64
                  s_cbranch_scc1 {nonext}""")
            if fused and not isH:
                flag_off(isH, sNKS)
                a(f's_mov_b64 exec, {hex((1 << nl) - 1)}' if nl <= 32 else f's_mov_b64 exec, s[{self.sM48}:{self.sM48+1}]')
                a(f"""buffer_load_dword v{vT0}, v{vL4}, s[{sWS}:{sWS+3}], s{sOF} offen sc1
                      s_waitcnt vmcnt(0)
                      v_cmp_eq_u32 vcc, 0, v{vT0}
                      s_mov_b64 exec, -1
                      s_cbranch_vccnz {nonext}""")
            loads(nks, sNKS, b ^ 1)
            a(f's_mov_b32 s{sPre}, 1')
            if isH:
                a(f"""s_waitcnt vmcnt({nks + 4})
                      s_cmp_lg_u32 s{sPend}, 0
                      s_cbranch_scc1 {go}""")
            a(f"""s_waitcnt vmcnt({nks + 1})
                  s_branch {go}""")
            a.label(nonext)
            a('s_waitcnt vmcnt(0)')
            a.label(go)
            for ks in range(nks):
                for t in range(5):
                    w = W + ks*20 + (4*t if t < 4 else 16)
                    r = ACT + 32*b + 4*ks
                    c = '0' if ks == 0 else f'v[{ACC+4*t}:{ACC+4*t+3}]'
                    a(f'v_mfma_f32_16x16x32_bf16 v[{ACC+4*t}:{ACC+4*t+3}], v[{w}:{w+3}], v[{r}:{r+3}], {c}')
        def final(seg, b):
            nofin = a.newlabel('Lp3nf')
            R = ACT + 32*b
            a(f"""s_lshr_b32 s{sT0}, s{seg}, {NTH.bit_length() - 1}
                  s_and_b32 s{sT0}, s{sT0}, 7
                  s_cmp_lg_u32 s{sT0}, s{sJ}
                  s_cbranch_scc1 {nofin}
                  s_cmp_lt_u32 s{sW}, 3
                  s_cbranch_scc1 {nofin}
                  s_cmp_ge_u32 s{seg}, 64
                  s_cbranch_scc1 {nofin}
                  s_lshl_b32 s{sPFo}, s{seg}, 3
                  s_add_u32 s{sPFo}, s{sPFo}, s{sNN}
                  s_mul_i32 s{sPo}, s{sPFo}, 5120
                  s_add_u32 s{sPo}, s{sPo}, {WS_P}
                  s_lshl_b32 s{sPFo}, s{sPFo}, 7
                  s_add_u32 s{sPFo}, s{sPFo}, {WS_PFLAG}""")
            self.wait_flags(16, sPFo, vL4, vT0)
            for j in range(8):
                a(f'buffer_load_dwordx4 v[{R+4*j}:{R+4*j+3}], v{vFi}, s[{sWS}:{sWS+3}], s{sPo} offen sc1')
                if j < 7: a(f's_add_u32 s{sPo}, s{sPo}, {64*8*5120}')
            for j in range(8):
                a(f's_waitcnt vmcnt({7-j})')
                for k in range(4):
                    x = R + 4*j + k
                    if j == 0:
                        a(f'v_lshlrev_b32 v{ACC+2*k}, 16, v{x}')
                        a(f'v_and_b32 v{ACC+2*k+1}, 0xffff0000, v{x}')
                    else:
                        a(f'v_lshlrev_b32 v{vT0}, 16, v{x}')
                        a(f'v_and_b32 v{vT1}, 0xffff0000, v{x}')
                        a(f'v_add_f32 v{ACC+2*k}, v{ACC+2*k}, v{vT0}')
                        a(f'v_add_f32 v{ACC+2*k+1}, v{ACC+2*k+1}, v{vT1}')
            for k in range(4):
                a(f'v_cvt_pk_bf16_f32 v{ACC+8+k}, v{ACC+2*k}, v{ACC+2*k+1}')
            a(f"""s_mul_i32 s{sT0}, s{seg}, {32*1280}
                  s_mul_i32 s{sT1}, s{sNN}, 160
                  s_add_u32 s{sT0}, s{sT0}, s{sT1}
                  buffer_store_dwordx4 v[{ACC+8}:{ACC+11}], v{vFo}, s[{sOUT}:{sOUT+3}], s{sT0} offen
                  s_waitcnt vmcnt(0)""")
            a.label(nofin)

        lH = a.newlabel('Lp3H')
        a(f"""s_cmp_eq_u32 s{sKG}, 0
              s_cbranch_scc1 {lH}""")
        loop, end = a.newlabel('Lp3o'), a.newlabel('Lp3oe')
        a.label(loop)
        for b in range(2):
            vG = vG1 if b else vG0
            front(False, b)
            a('s_nop 3')
            for t in range(5):
                for r in range(4): a(f'v_mul_f32 v{ACC+4*t+r}, v{ACC+4*t+r}, v{vG}')
                a(f'ds_write_b128 v{vLw}, v[{ACC+4*t}:{ACC+4*t+3}] offset:{PBUF*b + 1024*t}')
            a('s_waitcnt lgkmcnt(0)')
            a('s_barrier')
            a(f's_sub_u32 s{sFin}, s{sSeg}, {NTH}')
            final(sFin, b)
            a(f"""s_add_u32 s{sSeg}, s{sSeg}, {NTH}
                  s_cmp_ge_u32 s{sSeg}, 64
                  s_cbranch_scc1 {end}""")
        a(f's_branch {loop}')
        a.label(end)
        a(f's_sub_u32 s{sFin}, s{sSeg}, {NTH}')
        final(sFin, 0)
        a(f's_branch {done_label}')
        a.label(lH)
        loop, end = a.newlabel('Lp3hl'), a.newlabel('Lp3he')
        PR = W + 120
        if fused:
            a(f"""s_lshl_b32 s{sOF}, s{sJ}, 9
                  s_add_u32 s{sOF}, s{sOF}, {WS_FLAG + 96*4}""")
            self.wait_flags(16, sOF, vL4, vT0)
        a.label(loop)
        for b in range(2):
            vG = vG1 if b else vG0
            front(True, b)
            a(f"""v_sub_f32 v{vG}, 1.0, v{vG}
                  s_lshl_b32 s{sPo}, s{sJ}, 6
                  s_add_u32 s{sPo}, s{sPo}, s{sSeg}
                  s_lshl_b32 s{sPo}, s{sPo}, 3
                  s_add_u32 s{sPo}, s{sPo}, s{sNN}
                  s_mul_i32 s{sPo}, s{sPo}, 5120
                  s_add_u32 s{sPo}, s{sPo}, {WS_P}""")
            for k in range(20): a(f'v_mul_f32 v{ACC+k}, v{ACC+k}, v{vG}')
            a('s_waitcnt vmcnt(7)')
            set_pending_flag()
            a('s_barrier')
            def rd(kg, dst):
                for t in range(5):
                    a(f'ds_read_b128 v[{dst+4*t}:{dst+4*t+3}], v{vLw} offset:{PBUF*b + 10240*kg + 1024*t}')
            def add(src):
                for k in range(20): a(f'v_add_f32 v{ACC+k}, v{ACC+k}, v{src+k}')
            rd(0, PR); rd(1, PR + 20)
            a('s_waitcnt lgkmcnt(5)'); add(PR)
            rd(2, PR)
            a('s_waitcnt lgkmcnt(5)'); add(PR + 20)
            a('s_waitcnt lgkmcnt(0)'); add(PR)
            O = PR + 20
            for pr in range(2):
                for r in range(4):
                    a(f'v_cvt_pk_bf16_f32 v{O+4*pr+r}, v{ACC+8*pr+r}, v{ACC+8*pr+4+r}')
            nowait = a.newlabel('Lp3nw')
            a(f"""v_cvt_pk_bf16_f32 v{O+8}, v{ACC+16}, v{ACC+17}
                  v_cvt_pk_bf16_f32 v{O+9}, v{ACC+18}, v{ACC+19}
                  v_lshl_add_u32 v{vT0}, v{vQ}, 4, v{vPo}
                  v_lshl_add_u32 v{vT1}, v{vQ}, 3, v{vPo}
                  buffer_store_dwordx4 v[{O}:{O+3}], v{vT0}, s[{sWS}:{sWS+3}], s{sPo} offen sc1
                  buffer_store_dwordx4 v[{O+4}:{O+7}], v{vT0}, s[{sWS}:{sWS+3}], s{sPo} offen offset:64 sc1
                  buffer_store_dwordx2 v[{O+8}:{O+9}], v{vT1}, s[{sWS}:{sWS+3}], s{sPo} offen offset:128 sc1
                  s_lshl_b32 s{sPend}, s{sSeg}, 3
                  s_add_u32 s{sPend}, s{sPend}, s{sNN}
                  s_lshl_b32 s{sPend}, s{sPend}, 7
                  s_lshl_b32 s{sT0}, s{sJ}, 3
                  s_add_u32 s{sPend}, s{sPend}, s{sT0}
                  s_lshl_b32 s{sT0}, s{sTT}, 2
                  s_add_u32 s{sPend}, s{sPend}, s{sT0}
                  s_add_u32 s{sPend}, s{sPend}, {WS_PFLAG}
                  s_cmp_lg_u32 s{sPre}, 0
                  s_cbranch_scc1 {nowait}
                  s_waitcnt vmcnt(0)""")
            set_pending_flag()
            a.label(nowait)
            a(f"""s_add_u32 s{sSeg}, s{sSeg}, {NTH}
                  s_cmp_ge_u32 s{sSeg}, 64
                  s_cbranch_scc1 {end}""")
        a(f's_branch {loop}')
        a.label(end)
        a(f's_branch {done_label}')
```

```python
import sys, json
from asmlib import *
from layout import *
import chain, gemm1, phase3

HEADER = open('cdna_kernels/%s.s.ref' % KNAME).read().split('; Override launch')[0]

def kd(name, vgpr=256, sgpr=102):
    return f'''.section .rodata,"a"
.p2align 6
.amdhsa_kernel {name}
  .amdhsa_next_free_vgpr {vgpr}
  .amdhsa_next_free_sgpr {sgpr}
  .amdhsa_accum_offset {min(256, (vgpr + 3) // 4 * 4)}
  .amdhsa_group_segment_fixed_size 0
  .amdhsa_kernarg_size 120
  .amdhsa_user_sgpr_count 2
  .amdhsa_user_sgpr_kernarg_segment_ptr 1
  .amdhsa_system_sgpr_workgroup_id_x 1
  .amdhsa_float_denorm_mode_32 3
.end_amdhsa_kernel
.text
'''

def kernel_begin(a, name):
    a(f'''.text
          .globl {name}
          .p2align 8
          .type {name},@function''')
    a.label(name)

def build(opt):
    a = Asm()
    launches = []
    body = Asm()
    if 'gemm1' in opt['kernels']:
        name = 'gemm1_kernel'
        kernel_begin(body, name)
        chain.emit_entry(body, opt, 'Lg1_exit')
        nw = opt.get('g1_workers', 32)
        if nw == 16:
            body(f'''s_cmp_lt_u32 s{chain.sC}, 16
                     s_cbranch_scc1 Lg1_exit''')
        gemm1.Gemm1(body, opt, nw, 32 - nw).emit('Lg1_exit')
        body.label('Lg1_exit')
        body('s_endpgm')
        body.lines.append(kd(name))
        launches.append((name, 256, 512, gemm1.GEMM1_LDS))
    if 'chain' in opt['kernels']:
        name = 'chain_kernel'
        kernel_begin(body, name)
        chain.emit_entry(body, opt, 'Lchain_exit')
        body(f'''s_cmp_ge_u32 s{chain.sC}, 16
                 s_cbranch_scc1 Lchain_exit''')
        chain.emit_chain_body(body, opt)
        body.label('Lchain_exit')
        body('s_endpgm')
        body.lines.append(kd(name))
        launches.append((name, 256, 512, 102400))
    if 'phase3' in opt['kernels']:
        name = 'phase3_kernel'
        kernel_begin(body, name)
        chain.emit_entry(body, opt, 'Lp3_exit')
        nw = opt.get('p3_workers', 32)
        if nw == 16:
            body(f'''s_cmp_lt_u32 s{chain.sC}, 16
                     s_cbranch_scc1 Lp3_exit''')
        phase3.Phase3(body, opt, nw, 32 - nw).emit('Lp3_exit')
        body.label('Lp3_exit')
        body('s_endpgm')
        body.lines.append(kd(name))
        launches.append((name, 256, 512, 102400))
    if 'fused' in opt['kernels']:
        opt['fused'] = 1
        name = KNAME + '_kernel'
        kernel_begin(body, name)
        chain.emit_entry(body, opt, 'Lexit')
        body(f'''s_cmp_ge_u32 s{chain.sC}, 16
                 s_cbranch_scc1 Lworker''')
        chain.emit_chain_body(body, opt)
        body.label('Lworker')
        gemm1.Gemm1(body, opt, 16, 16).emit('Lphase3')
        body.label('Lphase3')
        phase3.Phase3(body, opt, 16, 16).emit('Lexit')
        body.label('Lexit')
        body('s_endpgm')
        body.lines.append(kd(name))
        launches.append((name, 256, 512, gemm1.GEMM1_LDS))
    out = HEADER
    for (n, g, b, l) in launches:
        out += (f'; @launch grid=({g},1,1) block=({b},1,1) lds={l}\n' if opt.get('single') else f'; @launch kernel={n} grid=({g},1,1) block=({b},1,1) lds={l}\n')
    out += '.amdgcn_target "amdgcn-amd-amdhsa--gfx950"\n'
    out += body.text()
    return out

if __name__ == '__main__':
    opt = json.loads(sys.argv[2]) if len(sys.argv) > 2 else {}
    opt.setdefault('kernels', ['chain'])
    open(sys.argv[1], 'w').write(build(opt))
```

```python
from asmlib import *
from layout import *
import math

LM, LO, LDUMMY, LQK, LW5, LR, LOX, LBUF = 0, 10240, 13312, 16384, 22528, 34816, 35840, 38912
LBUF_SZ = 27648
LK_OFF, LV_OFF, LQ_OFF = 0, 12288, 24576
CHAIN_LDS = LBUF + 2 * LBUF_SZ

sWS, sDBG, sT = 4, 8, 12
sPTR = 16
def ptr(i): return sPTR + 2 * i
sW, sJ, sC, sH, sG, sMIX, sBUD, sSTEP = 48, 49, 50, 51, 52, 53, 54, 55
sA_N, sA_R, sB_C, sB_R, sC_W, sC_RS, sC_RD, sO_C = 56, 57, 58, 59, 60, 61, 62, 63
sKQ, sVX, sLB, sRED, sSCL, sT0, sT1, sT2, sT3 = 64, 65, 66, 67, 68, 69, 76, 77, 78
sMN8, sML32, sMH8 = 70, 72, 74
sSELLO, sSELHI = 80, 81
sMA = 46
sST = 82
sPADD, sPOR, sA_P, sCS, sPOL, sC_W2 = 94, 95, 96, 97, 79, 61
NSTAMP = 6

def srd(a, base_ptr, nbytes):
    a(f'''s_mov_b32 s{sT}, s{base_ptr}
          s_mov_b32 s{sT+1}, s{base_ptr+1}
          s_mov_b32 s{sT+2}, {nbytes}
          s_mov_b32 s{sT+3}, 0x20000''')

class Chain:
    def __init__(self, a, opt):
        self.a = a
        self.opt = opt
        self.tail = []
        self.nstamp = 0

    def lstore(self, insts):
        a = self.a
        slow, back = a.newlabel('Lslow'), a.newlabel('Lback')
        a(f's_cmp_lg_u32 s{sMIX}, 0')
        a(f's_cbranch_scc1 {slow}')
        for i in insts: a(i)
        a.label(back)
        self.tail.append((slow, [i + ' sc1' if i.startswith('buffer_') else i for i in insts], back))

    def emit_tail(self):
        a = self.a
        for slow, insts, back in self.tail:
            a.label(slow)
            for i in insts: a(i)
            a(f's_branch {back}')
        self.tail = []

    def stamp(self, k, ahead=0):
        if not self.opt.get('stamps'): return
        a = self.a
        l = a.newlabel('Lst')
        a(f'''s_cmp_lg_u32 s{sSTEP}, {self.opt['stamps'] + ahead}
              s_cbranch_scc1 {l}
              {self.opt.get('clock', 's_memtime')} s[{sST+2*k}:{sST+2*k+1}]
              s_waitcnt lgkmcnt(0)''')
        a.label(l)

    def mark(self, k):
        if not self.opt.get('prof'): return
        self.a(f's_memrealtime s[{sST+2*k}:{sST+2*k+1}]')
        self.a('s_waitcnt lgkmcnt(0)')

    def dump_stamps(self):
        self.mark(3)
        if not (self.opt.get('stamps') or self.opt.get('prof')): return
        a = self.a
        a(f'''s_lshl_b32 s{sT0}, s{sJ}, 5
              s_add_u32 s{sT0}, s{sT0}, s{sC}
              s_lshl_b32 s{sT0}, s{sT0}, 3
              s_add_u32 s{sT0}, s{sT0}, s{sW}
              s_lshl_b32 s{sT0}, s{sT0}, 6
              s_add_u32 s{sT0}, s{sT0}, {WS_DBG + 0x100000}
              s_mov_b64 exec, -1
              v_mov_b32 v2, 0''')
        for k in range(NSTAMP):
            a(f'v_mov_b32 v3, s{sST+2*k}')
            a(f'buffer_store_dword v3, v2, s[{sWS}:{sWS+3}], s{sT0} offen offset:{4*k}')
        for k in range(4):
            a(f'v_mov_b32 v3, s{98+k}')
            a(f'buffer_store_dword v3, v2, s[{sWS}:{sWS+3}], s{sT0} offen offset:{4*(8+k)}')
        a('s_waitcnt vmcnt(0)')

    def retry(self, label, kind=None):
        a = self.a
        if kind is not None and self.opt.get('stamps'):
            a(f's_add_u32 s{98+kind}, s{98+kind}, 1')
        a(f'''s_sub_u32 s{sBUD}, s{sBUD}, 1
              s_cbranch_scc0 {label}
              s_mov_b32 s{sBUD}, 0''')

    def slots(self):
        a = self.a
        a(f'''s_and_b32 s{sT0}, s{sSTEP}, 3
              s_add_u32 s{sT1}, s{sSTEP}, 1
              s_and_b32 s{sT1}, s{sT1}, 3
              s_xor_b32 s{sT2}, s{sT0}, 2
              s_mul_i32 s{sT3}, s{sJ}, 10240
              s_add_u32 s{sT3}, s{sT3}, {WS_RA}
              s_mul_i32 s{sA_N}, s{sT1}, {RA_SLOT}
              s_add_u32 s{sA_N}, s{sA_N}, s{sT3}
              s_mul_i32 s{sA_R}, s{sT2}, {RA_SLOT}
              s_add_u32 s{sA_R}, s{sA_R}, s{sT3}
              s_mul_i32 s{sT3}, s{sH}, 9216
              s_add_u32 s{sT3}, s{sT3}, {WS_RB}
              s_mul_i32 s{sB_C}, s{sT0}, {RB_SLOT}
              s_add_u32 s{sB_C}, s{sB_C}, s{sT3}
              s_mul_i32 s{sB_R}, s{sT2}, {RB_SLOT}
              s_add_u32 s{sB_R}, s{sB_R}, s{sT3}
              s_and_b32 s{sT0}, s{sCS}, 255
              s_mul_i32 s{sT1}, s{sT0}, 86
              s_lshr_b32 s{sT1}, s{sT1}, 8
              s_mul_i32 s{sC_RD}, s{sT0}, {RC_SLOT}
              s_mul_i32 s{sT2}, s{sT1}, {0x200000 - 3*RC_SLOT}
              s_add_u32 s{sC_RD}, s{sC_RD}, s{sT2}
              s_add_u32 s{sC_RD}, s{sC_RD}, {WS_RC}
              s_lshl_b32 s{sT3}, s{sH}, 8
              s_add_u32 s{sC_W}, s{sC_RD}, s{sT3}
              s_add_u32 s{sC_W2}, s{sC_W}, 8192
              s_lshr_b32 s{sT1}, s{sPOL}, s{sT1}
              s_and_b32 s{sT1}, s{sT1}, 1
              s_lshl_b32 s{sT1}, s{sT1}, 13
              s_add_u32 s{sC_RD}, s{sC_RD}, s{sT1}
              s_lshl_b32 s{sPOR}, s{sCS}, 8
              s_and_b32 s{sPOR}, s{sPOR}, 0x10000
              s_xor_b32 s{sPADD}, s{sPOR}, 0x10000
              s_mul_i32 s{sO_C}, s{sSTEP}, {32*12288}
              s_add_u32 s{sO_C}, s{sO_C}, {WS_O}''')

    def next_step(self):
        a = self.a
        a(f'''s_add_u32 s{sSTEP}, s{sSTEP}, 1
              s_add_u32 s{sCS}, s{sCS}, 1
              s_and_b32 s{sT0}, s{sCS}, 255
              s_xor_b32 s{sT1}, s{sCS}, {256 + RC_N}
              s_cmp_eq_u32 s{sT0}, {RC_N}
              s_cselect_b32 s{sCS}, s{sT1}, s{sCS}''')
        self.slots()

    def load_pair(self, WA, WB, nks, voff, rowstride, tmp):
        a = self.a
        items = []
        for ks in range(nks):
            for R in range(8):
                hi, p = R >> 2, R & 3
                b, tt = p & 1, p >> 1
                d = 64 * ks + 32 * hi + 8 * b + 2 * tt
                items.append((WA + ks * 8 + R, WB + ks * 8 + R, d))
        def issue(it):
            ra, rb, d = it
            a(f's_mov_b32 s{sT0}, {d * rowstride}')
            a(f'buffer_load_dword v{ra}, v{voff}, s[{sT}:{sT+3}], s{sT0} offen')
            a(f's_mov_b32 s{sT1}, {(d + 1) * rowstride}')
            a(f'buffer_load_dword v{rb}, v{voff}, s[{sT}:{sT+3}], s{sT1} offen')
        def fix(it):
            ra, rb, d = it
            a(f'v_perm_b32 v{tmp}, v{rb}, v{ra}, s{sSELLO}')
            a(f'v_perm_b32 v{rb}, v{rb}, v{ra}, s{sSELHI}')
            a(f'v_mov_b32 v{ra}, v{tmp}')
        groups = [items[i:i + 8] for i in range(0, len(items), 8)]
        groups = [items[i:i + 4] for i in range(0, len(items), 4)]
        depth = 7
        for gi in range(min(depth, len(groups))):
            for it in groups[gi]: issue(it)
        for gi in range(len(groups)):
            inflight = min(len(groups), gi + depth) - gi - 1
            a(f's_waitcnt vmcnt({8 * inflight})')
            for it in groups[gi]: fix(it)
            if gi + depth < len(groups):
                for it in groups[gi + depth]: issue(it)

    def load_single(self, W, nks, voff, vsel, rowstride, tmps):
        a = self.a
        items = []
        for ks in range(nks):
            for R in range(8):
                hi, p = R >> 2, R & 3
                b, tt = p & 1, p >> 1
                items.append((W + ks * 8 + R, 64 * ks + 32 * hi + 8 * b + 2 * tt))
        groups = [items[i:i + 8] for i in range(0, len(items), 8)]
        depth = 3
        def issue(gi):
            for k, (r, d) in enumerate(groups[gi]):
                t = tmps + (gi % depth) * 8 + k
                a(f's_mov_b32 s{sT0}, {d * rowstride}')
                a(f'buffer_load_dword v{r}, v{voff}, s[{sT}:{sT+3}], s{sT0} offen')
                a(f's_mov_b32 s{sT1}, {(d + 1) * rowstride}')
                a(f'buffer_load_dword v{t}, v{voff}, s[{sT}:{sT+3}], s{sT1} offen')
        for gi in range(min(depth, len(groups))): issue(gi)
        for gi in range(len(groups)):
            inflight = min(len(groups), gi + depth) - gi - 1
            a(f's_waitcnt vmcnt({16 * inflight})')
            for k, (r, d) in enumerate(groups[gi]):
                t = tmps + (gi % depth) * 8 + k
                a(f'v_perm_b32 v{r}, v{t}, v{r}, v{vsel}')
            if gi + depth < len(groups): issue(gi + depth)

    def lanes(self, al):
        a = self.a
        self.vL, self.vN, self.vQ = al(), al(), al()
        self.vT0, self.vT1, self.vT2 = al(), al(), al()
        self.vMask = 0
        a(f'''v_and_b32 v{self.vL}, 63, v0
              v_and_b32 v{self.vN}, 15, v0
              v_bfe_u32 v{self.vQ}, v0, 4, 2
              v_mov_b32 v0, 0xfffe0000''')

    def frag_addr(self, dst):
        a = self.a
        a(f'''v_lshlrev_b32 v{dst}, 8, v{self.vQ}
              v_and_b32 v{self.vT0}, 1, v{self.vN}
              v_lshl_add_u32 v{dst}, v{self.vT0}, 7, v{dst}
              v_lshrrev_b32 v{self.vT0}, 1, v{self.vN}
              v_lshl_add_u32 v{dst}, v{self.vT0}, 4, v{dst}''')

    def idx_reg(self, dst):
        a = self.a
        a(f'''v_and_b32 v{self.vT0}, 1, v{self.vN}
              v_cmp_eq_u32 vcc, 1, v{self.vT0}
              v_mov_b32 v{dst}, 0x44444444
              v_mov_b32 v{self.vT0}, 0xeeeeeeee
              s_nop 1
              v_cndmask_b32 v{dst}, v{dst}, v{self.vT0}, vcc''')

    def wrow_lane(self, dst, rowstride):
        a = self.a
        a(f'''v_lshrrev_b32 v{self.vT0}, 1, v{self.vQ}
              v_lshlrev_b32 v{self.vT0}, 4, v{self.vT0}
              v_and_b32 v{self.vT1}, 1, v{self.vQ}
              v_lshl_add_u32 v{self.vT0}, v{self.vT1}, 2, v{self.vT0}
              s_mov_b32 s{sT0}, {rowstride}
              v_mul_lo_u32 v{dst}, v{self.vT0}, s{sT0}''')

    def wait_all_registered(self):
        a = self.a
        a('s_barrier')
        wait_registered(a, self.opt, self.vT0, self.vT1, self.vN, True)
        if self.opt.get('pol') is not None: a(f"s_xor_b32 s{sPOL}, s{sPOL}, {self.opt['pol']}")
        self.slots()

    def wait_tiles(self, seg, first, nflags):
        if not self.opt.get('fused'): return
        a = self.a
        lp, ok, skip = a.newlabel('Lwt'), a.newlabel('Lwtok'), a.newlabel('Lwts')
        T0, T1 = self.vT0, self.vT1
        a(f'''s_and_b32 s{sT0}, s{seg}, 7
              s_cbranch_scc1 {skip}
              s_lshr_b32 s{sT0}, s{seg}, 3
              s_mul_i32 s{sT0}, s{sT0}, 48
              s_lshl_b32 s{sT1}, s{sJ}, 9
              s_add_u32 s{sT0}, s{sT0}, s{sT1}
              s_and_b32 s{sT1}, s{sH}, 3
              s_lshl_b32 s{sT1}, s{sT1}, 2
              s_add_u32 s{sT0}, s{sT0}, s{sT1}
              s_add_u32 s{sT0}, s{sT0}, {WS_FLAG + 16*first}
              v_lshlrev_b32 v{T1}, 4, v{self.vL}
              s_mov_b64 exec, {(1 << nflags) - 1}''')
        a.label(lp)
        a(f'''buffer_load_dword v{T0}, v{T1}, s[{sWS}:{sWS+3}], s{sT0} offen sc1
              s_waitcnt vmcnt(0)
              v_cmp_eq_u32 vcc, 0, v{T0}
              s_cbranch_vccz {ok}
              s_sleep 2''')
        self.retry(lp)
        a.label(ok)
        a('s_mov_b64 exec, -1')
        a.label(skip)

    def o_flag(self, back):
        if not self.opt.get('fused'): return
        a = self.a
        a(f'''s_lshl_b32 s{sT0}, s{sJ}, 6
              s_add_u32 s{sT0}, s{sT0}, s{sSTEP}
              s_lshl_b32 s{sT0}, s{sT0}, 8
              s_mul_i32 s{sT1}, s{sC}, 12
              s_add_u32 s{sT0}, s{sT0}, s{sT1}
              s_lshl_b32 s{sT1}, s{sRED}, 2
              s_add_u32 s{sT0}, s{sT0}, s{sT1}
              s_add_u32 s{sT0}, s{sT0}, {WS_OFLAG - 256*back}
              v_mov_b32 v{self.vT0}, 1
              v_mov_b32 v{self.vT1}, 0
              s_mov_b64 exec, 1''')
        self.lstore([f'buffer_store_dword v{self.vT0}, v{self.vT1}, s[{sWS}:{sWS+3}], s{sT0} offen'])
        a('s_mov_b64 exec, -1')

    def poll2(self, vOff, soff, lds, sets, kind, gap):
        a = self.a
        t, t2 = self.vT0, self.vT1
        n = len(sets)
        def issue(R):
            a(f'''buffer_load_dwordx4 v[{R}:{R+3}], v{vOff}, s[{sWS}:{sWS+3}], s{soff} offen sc1
                  buffer_load_dwordx4 v[{R+4}:{R+7}], v{vOff}, s[{sWS}:{sWS+3}], s{soff} offen offset:1024 sc1''')
        lp, ok = a.newlabel('Lp'), a.newlabel('Lpok')
        for k in range(n - 1):
            issue(sets[k])
            if gap: a(f's_sleep {gap}')
        a.label(lp)
        for k in range(n):
            R = sets[k]
            issue(sets[(k + n - 1) % n])
            a(f's_waitcnt vmcnt({2 * (n - 1)})')
            if kind == 0 and k == 0 and self.opt.get('fine'): self.stamp(3)
            a(f'''ds_write_b128 v{vOff}, v[{R}:{R+3}] offset:{lds}
                  ds_write_b128 v{vOff}, v[{R+4}:{R+7}] offset:{lds+1024}
                  v_max3_u32 v{t}, v{R}, v{R+1}, v{R+2}
                  v_max3_u32 v{t2}, v{R+3}, v{R+4}, v{R+5}
                  v_max3_u32 v{t}, v{t}, v{R+6}, v{R+7}
                  v_max_u32 v{t}, v{t}, v{t2}
                  v_cmp_eq_u32 vcc, -1, v{t}
                  s_cbranch_vccz {ok}''')
            if self.opt.get('stamps') and k < n - 1: a(f's_add_u32 s{98+kind}, s{98+kind}, 1')
        self.retry(lp, kind)
        a.label(ok)

    def a_poll(self, vAoff, sets, first=False):
        a = self.a
        if first:
            a(f's_mul_i32 s{sA_P}, s{sJ}, 10240')
            a(f's_add_u32 s{sA_P}, s{sA_P}, {WS_RA}')
        else:
            a(f's_mov_b32 s{sA_P}, s{sA_N}')
            self.next_step()
        a('s_barrier')
        if self.opt.get('a_first'): a(f"s_sleep {self.opt['a_first']}")
        self.poll2(vAoff, sA_P, LM, sets[:self.opt.get('a_depth', 1)], 2, self.opt.get('a_gap', 0))
        a('s_waitcnt lgkmcnt(0)')

    def mem0_load(self, vAoff, R):
        a = self.a
        srd(a, ptr(1), 10240)
        T0, T1 = self.vT0, self.vT1
        a(f'''v_bfe_u32 v{T0}, v{vAoff}, 4, 3
              v_mul_u32_u24 v{T0}, 1280, v{T0}
              v_lshrrev_b32 v{T1}, 7, v{vAoff}
              v_lshl_add_u32 v{T0}, v{T1}, 4, v{T0}
              buffer_load_dwordx4 v[{R}:{R+3}], v{T0}, s[{sT}:{sT+3}], 0 offen
              buffer_load_dwordx4 v[{R+4}:{R+7}], v{T0}, s[{sT}:{sT+3}], 0 offen offset:128
              s_waitcnt vmcnt(0)
              ds_write_b128 v{vAoff}, v[{R}:{R+3}] offset:{LM}
              ds_write_b128 v{vAoff}, v[{R+4}:{R+7}] offset:{LM+1024}
              s_waitcnt lgkmcnt(0)''')

    def a_off(self, dst):
        a = self.a
        a(f'''s_sub_u32 s{sT0}, s{sW}, 3
              s_lshl_b32 s{sT0}, s{sT0}, 11
              v_lshlrev_b32 v{dst}, 4, v{self.vL}
              v_add_u32 v{dst}, s{sT0}, v{dst}''')

    def dma_seg_regs(self, seg_expr_sgpr):
        a = self.a
        sg = seg_expr_sgpr
        a(f'''s_lshl_b32 s{sT0}, s{sH}, 6
              s_add_u32 s{sT0}, s{sT0}, s{sg}
              s_mul_i32 s{sKQ}, s{sT0}, 12288
              s_add_u32 s{sVX}, s{sKQ}, {WS_VT}
              s_and_b32 s{sT0}, s{sg}, 1
              s_mul_i32 s{sLB}, s{sT0}, {LBUF_SZ}
              s_add_u32 s{sLB}, s{sLB}, {LBUF}''')

    def dma_kq(self, vK, vQx):
        a = self.a
        for grp in range(3):
            a(f's_add_u32 m0, s{sLB}, {LK_OFF + grp*4096}')
            a(f's_add_u32 s{sT1}, s{sKQ}, {WS_K + grp*4096}')
            for t in range(4):
                a(f'buffer_load_dwordx4 v{vK}, s[{sWS}:{sWS+3}], s{sT1} offen offset:{1024*t} lds')
        for p in range(3):
            a(f's_add_u32 m0, s{sLB}, {LQ_OFF + p*1024}')
            a(f's_add_u32 s{sT1}, s{sKQ}, {WS_Q + p*2048}')
            a(f'buffer_load_dwordx4 v{vQx}, s[{sWS}:{sWS+3}], s{sT1} offen lds')

    def dma_v(self, vV):
        a = self.a
        for grp in range(3):
            a(f's_add_u32 m0, s{sLB}, {LV_OFF + grp*4096}')
            a(f's_add_u32 s{sT1}, s{sVX}, {grp*4096}')
            for t in range(4):
                a(f'buffer_load_dwordx4 v{vV}, s[{sWS}:{sWS+3}], s{sT1} offen offset:{1024*t} lds')

    def wo_stage(self, pairs, vFrag, vIdx, F, vCoff, RR):
        a = self.a
        for ks in range(3):
            a(f'ds_read_b128 v[{F+4*ks}:{F+4*ks+3}], v{vFrag} offset:{LO + 1024*ks}')
        a(f'v_lshlrev_b32 v{self.vT0}, 3, v{self.vQ}')
        a(f'ds_read_b64 v[{RR}:{RR+1}], v{self.vT0} offset:{LR}')
        for ks in range(3):
            a(f's_waitcnt lgkmcnt({3-ks})')
            for (WA, WB, TA, TB, coff) in pairs:
                a(f'v_smfmac_f32_16x16x64_bf16 v[{TA}:{TA+3}], v[{F+4*ks}:{F+4*ks+3}], v[{WA+8*ks}:{WA+8*ks+7}], v{vIdx}')
                a(f'v_smfmac_f32_16x16x64_bf16 v[{TB}:{TB+3}], v[{F+4*ks}:{F+4*ks+3}], v[{WB+8*ks}:{WB+8*ks+7}], v{vIdx}')
        a('s_waitcnt lgkmcnt(0)')
        a('s_nop 5')
        for (WA, WB, TA, TB, coff) in pairs:
            self.pair_epilogue(TA, TB, RR)
            a(f'buffer_store_dword v{TA}, v{vCoff}, s[{sWS}:{sWS+3}], s{sC_W} offen offset:{coff} sc1')
            a(f'buffer_store_dword v{TB}, v{vCoff}, s[{sWS}:{sWS+3}], s{sC_W} offen offset:{coff+128} sc1')
            a(f'buffer_store_dword v{TA}, v{vCoff}, s[{sWS}:{sWS+3}], s{sC_W2} offen offset:{coff} sc1')
            a(f'buffer_store_dword v{TB}, v{vCoff}, s[{sWS}:{sWS+3}], s{sC_W2} offen offset:{coff+128} sc1')

    def pair_epilogue(self, TA, TB, RR=None):
        a = self.a
        a(f"""v_add_f32 v{TA}, v{TA}, v{TA+1}
              v_add_f32 v{TA+2}, v{TA+2}, v{TA+3}
              v_add_f32 v{TB}, v{TB}, v{TB+1}
              v_add_f32 v{TB+2}, v{TB+2}, v{TB+3}""")
        if RR is not None:
            a(f"""v_mul_f32 v{TA}, v{TA}, v{RR}
                  v_mul_f32 v{TA+2}, v{TA+2}, v{RR+1}
                  v_mul_f32 v{TB}, v{TB}, v{RR}
                  v_mul_f32 v{TB+2}, v{TB+2}, v{RR+1}""")
            a(f"""v_add_u32 v{TA}, s{sPADD}, v{TA}
                  v_add_u32 v{TA+2}, s{sPADD}, v{TA+2}
                  v_and_or_b32 v{TA}, v{TA}, v{self.vMask}, s{sPOR}
                  v_and_or_b32 v{TA+2}, v{TA+2}, v{self.vMask}, s{sPOR}
                  v_cvt_pk_bf16_f32 v{TA}, v{TA}, v{TB}
                  v_cvt_pk_bf16_f32 v{TB}, v{TA+2}, v{TB+2}""")
            return
        a(f"""v_cvt_pk_bf16_f32 v{TA}, v{TA}, v{TB}
              v_cvt_pk_bf16_f32 v{TB}, v{TA+2}, v{TB+2}
              v_min_u32 v{TA}, -2, v{TA}
              v_min_u32 v{TB}, -2, v{TB}""")

    def zero(self, r, n):
        for k in range(n): self.a(f'v_mov_b32 v{r+k}, 0')

    def c_off(self, dst, pw_sgpr_or_int):
        a = self.a
        T0 = self.vT0
        a(f'''v_lshrrev_b32 v{dst}, 3, v{self.vN}
              v_lshlrev_b32 v{dst}, 14, v{dst}
              v_bfe_u32 v{T0}, v{self.vN}, 2, 1
              v_lshl_add_u32 v{dst}, v{T0}, 6, v{dst}
              v_lshl_add_u32 v{dst}, v{self.vQ}, 4, v{dst}
              v_and_b32 v{T0}, 3, v{self.vN}
              v_lshl_add_u32 v{dst}, v{T0}, 2, v{dst}
              s_mul_i32 s{sT0}, s{sG}, 163840''')
        if isinstance(pw_sgpr_or_int, int):
            a(f's_add_u32 s{sT0}, s{sT0}, {32768*pw_sgpr_or_int}')
        else:
            a(f's_lshl_b32 s{sT1}, {pw_sgpr_or_int}, 15')
            a(f's_add_u32 s{sT0}, s{sT0}, s{sT1}')
        a(f'v_add_u32 v{dst}, s{sT0}, v{dst}')

    def wo_weights(self, WA, WB, pw, vtmp, tmp):
        a = self.a
        srd(a, ptr(5), NH * DH * DM * 2)
        self.wrow_lane(vtmp, 1280)
        a(f'''s_mul_i32 s{sT0}, s{sH}, {DH*DM*2}
              s_mul_i32 s{sT1}, s{sG}, 320
              s_add_u32 s{sT0}, s{sT0}, s{sT1}''')
        if isinstance(pw, int):
            a(f's_add_u32 s{sT0}, s{sT0}, {64*pw}')
        else:
            a(f's_lshl_b32 s{sT1}, {pw}, 6')
            a(f's_add_u32 s{sT0}, s{sT0}, s{sT1}')
        a(f'''v_lshl_add_u32 v{vtmp}, v{self.vN}, 2, v{vtmp}
              v_add_u32 v{vtmp}, s{sT0}, v{vtmp}''')
        self.load_pair(WA, WB, 3, vtmp, 1280, tmp)

    def finish(self):
        self.dump_stamps()
        self.a('s_endpgm')

    def init_job(self, R):
        a = self.a
        vLin = R + 20
        sU = sA_P
        a(f"""s_lshl_b32 s{sU}, s{sJ}, 4
              s_add_u32 s{sU}, s{sU}, s{sC}
              s_mul_i32 s{sU}, s{sU}, 3
              s_add_u32 s{sU}, s{sU}, s{sRED}
              v_lshlrev_b32 v{vLin}, 4, v{self.vL}""")
        for k in range(4): a(f'v_mov_b32 v{R+k}, -1')
        for k in range(4): a(f'v_mov_b32 v{R+4+k}, 0')
        a(f's_mul_i32 s{sT0}, s{sU}, 5120')
        for pg in range(RC_PAGES):
            a(f's_add_u32 s{sT1}, s{sT0}, {WS_RC + pg*0x200000}')
            a(f's_add_u32 s{sT2}, s{sT1}, 4096')
            for k in range(5):
                a(f'buffer_store_dwordx4 v[{R}:{R+3}], v{vLin}, s[{sWS}:{sWS+3}], s{sT2 if k == 4 else sT1} offen offset:{1024*(k&3)} sc1')
        l1, l2 = a.newlabel('Lin'), a.newlabel('Lin')
        a(f"""s_cmp_ge_u32 s{sU}, 368
              s_cbranch_scc1 {l1}
              s_lshl_b32 s{sT0}, s{sU}, 12
              s_add_u32 s{sT0}, s{sT0}, {WS_RA}""")
        l0 = a.newlabel('Lin')
        a(f"""s_cmp_lt_u32 s{sU}, 20
              s_cbranch_scc1 {l0}""")
        for k in range(4):
            a(f'buffer_store_dwordx4 v[{R}:{R+3}], v{vLin}, s[{sWS}:{sWS+3}], s{sT0} offen offset:{1024*k} sc1')
        a(f's_branch {l1}')
        a.label(l0)
        srd(a, ptr(1), 10240)
        a(f's_lshl_b32 s{sT1}, s{sU}, 12')
        for k in range(4):
            D = R + 24 + 4*k
            a(f"""s_add_u32 s{sT2}, s{sT1}, {1024*k}
                  s_lshr_b32 s{sT3}, s{sT2}, 10
                  s_mul_i32 s{sT3}, s{sT3}, 205
                  s_lshr_b32 s{sT3}, s{sT3}, 11
                  s_mul_i32 s{sT3}, s{sT3}, 10240
                  s_sub_u32 s{sT2}, s{sT2}, s{sT3}
                  s_lshr_b32 s{sT2}, s{sT2}, 3
                  v_lshrrev_b32 v{R+8}, 1, v{self.vN}
                  v_mul_u32_u24 v{R+8}, 1280, v{R+8}
                  v_lshl_add_u32 v{R+8}, v{self.vQ}, 5, v{R+8}
                  v_and_b32 v{R+9}, 1, v{self.vN}
                  v_lshl_add_u32 v{R+8}, v{R+9}, 4, v{R+8}
                  buffer_load_dwordx4 v[{D}:{D+3}], v{R+8}, s[{sT}:{sT+3}], s{sT2} offen""")
        a('s_waitcnt vmcnt(0)')
        for k in range(4):
            D = R + 24 + 4*k
            for e in range(4): a(f'v_min_u32 v{D+e}, -2, v{D+e}')
            a(f'buffer_store_dwordx4 v[{D}:{D+3}], v{vLin}, s[{sWS}:{sWS+3}], s{sT0} offen offset:{1024*k} sc1')
        a('s_waitcnt vmcnt(0)')
        a.label(l1)
        a(f"""s_cmp_ge_u32 s{sU}, 256
              s_cbranch_scc1 {l2}
              s_lshl_b32 s{sT0}, s{sU}, 10
              s_add_u32 s{sT0}, s{sT0}, {WS_FLAG}
              buffer_store_dwordx4 v[{R+4}:{R+7}], v{vLin}, s[{sWS}:{sWS+3}], s{sT0} offen sc1""")
        a.label(l2)
        G, Xr, acc, t1, t2, v4 = R + 8, R + 24, R + 13, R + 14, R + 15, R + 16
        a(f'v_lshlrev_b32 v{v4}, 2, v{self.vL}')
        srd(a, ptr(11), DM * 2)
        for i in range(5):
            a(f'buffer_load_dword v{G+i}, v{v4}, s[{sT}:{sT+3}], 0 offen offset:{256*i}')
        srd(a, ptr(0), S * DM * 2)
        a(f's_mul_i32 s{sT1}, s{sU}, 1280')
        for tk in range(6):
            for i in range(5):
                a(f'buffer_load_dword v{Xr+5*tk+i}, v{v4}, s[{sT}:{sT+3}], s{sT1} offen offset:{256*i}')
            a(f's_add_u32 s{sT1}, s{sT1}, {384*1280}')
        a('s_waitcnt vmcnt(0)')
        done = a.newlabel('Lgd')
        for tk in range(6):
            a(f'v_mov_b32 v{acc}, 0')
            for i in range(5):
                x = Xr + 5*tk + i
                a(f"""v_lshlrev_b32 v{t1}, 16, v{x}
                      v_lshlrev_b32 v{t2}, 16, v{G+i}
                      v_fmac_f32 v{acc}, v{t1}, v{t2}
                      v_and_b32 v{t1}, 0xffff0000, v{x}
                      v_and_b32 v{t2}, 0xffff0000, v{G+i}
                      v_fmac_f32 v{acc}, v{t1}, v{t2}""")
            for sh in (8, 4, 2, 1):
                a(f"""s_nop 1
                      v_add_f32_dpp v{acc}, v{acc}, v{acc} row_ror:{sh} row_mask:0xf bank_mask:0xf""")
            for sw in ('v_permlane16_swap_b32', 'v_permlane32_swap_b32'):
                a(f"""v_mov_b32 v{t1}, v{acc}
                      s_nop 1
                      {sw} v{acc}, v{t1}
                      v_add_f32 v{acc}, v{acc}, v{t1}""")
            a(f"""v_mul_f32 v{acc}, {hex(f32bits(-math.log2(math.e)))}, v{acc}
                  v_exp_f32 v{acc}, v{acc}
                  s_nop 0
                  v_add_f32 v{acc}, 1.0, v{acc}
                  v_rcp_f32 v{acc}, v{acc}
                  v_mov_b32 v{t1}, 0
                  s_lshl_b32 s{sT0}, s{sU}, 2
                  s_add_u32 s{sT0}, s{sT0}, {WS_G}
                  s_mov_b64 exec, 1
                  buffer_store_dword v{acc}, v{t1}, s[{sWS}:{sWS+3}], s{sT0} offen sc1
                  s_mov_b64 exec, -1
                  s_add_u32 s{sU}, s{sU}, 384""")
            if tk == 4:
                a(f"""s_cmp_ge_u32 s{sU}, 2048
                      s_cbranch_scc1 {done}""")
        a.label(done)
        a(f"""s_waitcnt vmcnt(0)
              v_mov_b32 v{t1}, 1
              v_mov_b32 v{t2}, 44
              s_mov_b64 exec, 1
              buffer_atomic_add v{t1}, v{t2}, s[{sDBG}:{sDBG+3}], 0 offen sc1
              s_mov_b64 exec, -1""")

    def role_qk(self):
        a = self.a
        al = Alloc(1, 256)
        self.lanes(al)
        WA, WB = al(80, 4), al(80, 4)
        M = al(40, 4)
        TA, TB = al(4, 4), al(4, 4)
        SEL = al(4, 4)
        RC = al(2)
        AC2 = al(4, 2)
        vFrag, vIdx, vB, vAst, vSent = al(3, 1), al(), al(), al(), al(2)
        T0, T1, T2 = self.vT0, self.vT1, self.vT2
        a(f'v_lshlrev_b32 v{vFrag}, 4, v{self.vL}'); self.idx_reg(vIdx)
        a(f'v_add_u32 v{vFrag+1}, 4096, v{vFrag}')
        a(f'v_add_u32 v{vFrag+2}, 8192, v{vFrag}')
        a(f'''s_mul_i32 s{sT2}, s{sG}, 3
              s_add_u32 s{sT2}, s{sT2}, s{sW}
              s_cmp_ge_u32 s{sT2}, 6
              s_cselect_b32 s{sT}, s{ptr(3)}, s{ptr(2)}
              s_cselect_b32 s{sT+1}, s{ptr(3)+1}, s{ptr(2)+1}
              s_cselect_b32 s{sT1}, 6, 0
              s_lshl_b32 s{sT3}, s{sT2}, 9
              s_sub_u32 s{sT2}, s{sT2}, s{sT1}
              s_mov_b32 s{sT+2}, {DM*NH*DH*2}
              s_mov_b32 s{sT+3}, 0x20000
              s_lshl_b32 s{sT2}, s{sT2}, 6
              v_lshlrev_b32 v{vB}, 7, v{self.vQ}
              v_lshl_add_u32 v{vB}, v{self.vN}, 2, v{vB}
              v_add_u32 v{vB}, s{sT3}, v{vB}''')
        vW = M
        self.wrow_lane(vW, 12288)
        a(f'''v_lshlrev_b32 v{T0}, 1, v{self.vN}
              v_and_b32 v{T1}, 0x13, v{T0}
              v_and_b32 v{T2}, 4, v{T0}
              v_lshl_add_u32 v{T1}, v{T2}, 1, v{T1}
              v_and_b32 v{T2}, 8, v{T0}
              v_lshrrev_b32 v{T2}, 1, v{T2}
              v_add_u32 v{T1}, v{T1}, v{T2}
              v_lshl_add_u32 v{vW}, v{T1}, 1, v{vW}
              s_mul_i32 s{sT0}, s{sH}, 384
              s_add_u32 s{sT0}, s{sT0}, s{sT2}
              v_add_u32 v{vW}, s{sT0}, v{vW}''')
        self.load_pair(WA, WB, 10, vW, 12288, T2)
        lw2, lset = a.newlabel('Lqw2'), a.newlabel('Lqset')
        a(f'''s_cmp_eq_u32 s{sW}, 2
              s_cbranch_scc1 {lw2}
              s_lshl_b32 s{sRED}, s{sW}, 4
              s_add_u32 s{sRED}, s{sRED}, s{sC}
              s_lshl_b32 s{sT0}, s{sRED}, 8
              s_lshl_b32 s{sT1}, s{sRED}, 14
              v_lshlrev_b32 v{RC}, 4, v{self.vL}
              v_add_u32 v{RC}, s{sT1}, v{RC}
              v_add_u32 v{RC+1}, 4096, v{RC}
              v_and_b32 v{T0}, 3, v{self.vN}
              v_lshlrev_b32 v{vAst}, 6, v{T0}
              v_lshrrev_b32 v{T0}, 3, v{self.vN}
              v_lshl_add_u32 v{vAst}, v{T0}, 5, v{vAst}
              v_bfe_u32 v{T0}, v{self.vN}, 2, 1
              v_lshl_add_u32 v{vAst}, v{T0}, 4, v{vAst}
              v_lshl_add_u32 v{vAst}, v{self.vQ}, 3, v{vAst}
              v_add_u32 v{vAst}, s{sT0}, v{vAst}
              s_mov_b64 s[{sMA}:{sMA+1}], s[{sML32}:{sML32+1}]
              s_branch {lset}''')
        a.label(lw2)
        a(f'''s_lshr_b32 s{sRED}, s{sC}, 1
              s_add_u32 s{sRED}, s{sRED}, 32
              s_and_b32 s{sT2}, s{sC}, 1
              s_lshl_b32 s{sT0}, s{sRED}, 8
              s_lshl_b32 s{sT3}, s{sT2}, 5
              s_add_u32 s{sT0}, s{sT0}, s{sT3}
              s_lshl_b32 s{sT1}, s{sRED}, 14
              s_lshl_b32 s{sT3}, s{sT2}, 7
              s_add_u32 s{sT1}, s{sT1}, s{sT3}
              v_lshlrev_b32 v{RC}, 8, v{self.vQ}
              v_lshrrev_b32 v{T0}, 3, v{self.vN}
              v_lshl_add_u32 v{RC}, v{T0}, 10, v{RC}
              v_and_b32 v{T0}, 7, v{self.vN}
              v_lshl_add_u32 v{RC}, v{T0}, 4, v{RC}
              v_add_u32 v{RC}, s{sT1}, v{RC}
              v_add_u32 v{RC+1}, 4096, v{RC}
              v_bfe_u32 v{T0}, v{self.vN}, 2, 1
              v_lshlrev_b32 v{vAst}, 4, v{T0}
              v_and_b32 v{T0}, 3, v{self.vN}
              v_lshl_add_u32 v{vAst}, v{T0}, 6, v{vAst}
              v_lshl_add_u32 v{vAst}, v{self.vQ}, 3, v{vAst}
              v_add_u32 v{vAst}, s{sT0}, v{vAst}
              s_mov_b32 s{sMA}, 0x00ff00ff
              s_mov_b32 s{sMA+1}, 0''')
        a.label(lset)
        a(f'''s_nop 0
              v_mov_b32 v{vSent}, -1
              v_mov_b32 v{vSent+1}, -1''')
        for p in range(4):
            a(f'''v_mov_b32 v{SEL+p}, 0
                  v_mov_b32 v{T0}, 0x3f80
                  v_cmp_eq_u32 vcc, {2*p}, v{self.vN}
                  s_nop 1
                  v_cndmask_b32 v{SEL+p}, v{SEL+p}, v{T0}, vcc
                  v_mov_b32 v{T0}, 0x3f800000
                  v_cmp_eq_u32 vcc, {2*p+1}, v{self.vN}
                  s_nop 1
                  v_cndmask_b32 v{SEL+p}, v{SEL+p}, v{T0}, vcc''')
        self.zero(TA, 8)
        self.mark(1)
        self.wait_all_registered()
        a('s_barrier')
        self.mark(2)
        loop, end = a.newlabel('Lqk'), a.newlabel('Lqkend')
        a('s_barrier')
        a.label(loop)
        a('s_barrier')
        self.stamp(0)
        for ks in range(10):
            a(f'ds_read_b128 v[{M+4*ks}:{M+4*ks+3}], v{vFrag} offset:{LM + 1024*ks}')
        for ks in range(10):
            a(f's_waitcnt lgkmcnt({9-ks})')
            a(f'v_smfmac_f32_16x16x64_bf16 v[{TA}:{TA+3}], v[{M+4*ks}:{M+4*ks+3}], v[{WA+8*ks}:{WA+8*ks+7}], v{vIdx}')
            a(f'v_smfmac_f32_16x16x64_bf16 v[{TB}:{TB+3}], v[{M+4*ks}:{M+4*ks+3}], v[{WB+8*ks}:{WB+8*ks+7}], v{vIdx}')
        a('s_nop 7')
        self.pair_epilogue(TA, TB)
        self.lstore([f'buffer_store_dword v{TA}, v{vB}, s[{sWS}:{sWS+3}], s{sB_C} offen',
                     f'buffer_store_dword v{TB}, v{vB}, s[{sWS}:{sWS+3}], s{sB_C} offen offset:64'])
        a('s_barrier')
        self.stamp(1)
        def resets():
            self.lstore([f'buffer_store_dword v{vSent}, v{vB}, s[{sWS}:{sWS+3}], s{sB_R} offen',
                         f'buffer_store_dword v{vSent}, v{vB}, s[{sWS}:{sWS+3}], s{sB_R} offen offset:64'])
            a(f's_mov_b64 exec, s[{sMA}:{sMA+1}]')
            self.lstore([f'buffer_store_dwordx2 v[{vSent}:{vSent+1}], v{vAst}, s[{sWS}:{sWS+3}], s{sA_R} offen'])
            a('s_mov_b64 exec, -1')
        self.zero(TA, 8)
        a('s_barrier')
        resets()
        if self.opt.get('prof'):
            a(f'''s_memrealtime s[{sST+10}:{sST+11}]
                  s_lshl_b32 s{sT0}, s{sJ}, 4
                  s_add_u32 s{sT0}, s{sT0}, s{sC}
                  s_lshl_b32 s{sT0}, s{sT0}, 2
                  s_add_u32 s{sT0}, s{sT0}, s{sW}
                  s_lshl_b32 s{sT0}, s{sT0}, 6
                  s_add_u32 s{sT0}, s{sT0}, s{sSTEP}
                  s_lshl_b32 s{sT0}, s{sT0}, 2
                  s_add_u32 s{sT0}, s{sT0}, {WS_DBG + 0x200000}
                  v_mov_b32 v{T1}, 0
                  s_waitcnt lgkmcnt(0)
                  v_mov_b32 v{T0}, s{sST+10}
                  buffer_store_dword v{T0}, v{T1}, s[{sWS}:{sWS+3}], s{sT0} offen
                  s_memtime s[{sST+10}:{sST+11}]
                  s_add_u32 s{sT0}, s{sT0}, 0x40000
                  s_waitcnt lgkmcnt(0)
                  v_mov_b32 v{T0}, s{sST+10}
                  buffer_store_dword v{T0}, v{T1}, s[{sWS}:{sWS+3}], s{sT0} offen''')
        a('s_barrier')
        a(f'''s_cmp_eq_u32 s{sSTEP}, 63
              s_cbranch_scc1 {end}''')
        ok, fin = a.newlabel('LpCok'), a.newlabel('LpCfin')
        ACC = AC2
        entry = {(h, ph): a.newlabel('LpC') for h in range(2) for ph in range(2)}
        if self.opt.get('c_sleep'): a(f"s_sleep {self.opt['c_sleep']}")
        if self.opt.get('fine'): self.stamp(5)
        a(f'''s_cmp_eq_u32 s{sW}, 2
              s_cbranch_scc1 {entry[(1,0)]}_sel
              s_bitcmp1_b32 s{sCS}, 8
              s_cbranch_scc1 {entry[(0,1)]}''')
        for half in range(2):
            nl = 4 if half else 8
            if half:
                a.label(entry[(1,0)] + '_sel')
                a(f's_bitcmp1_b32 s{sCS}, 8')
                a(f's_cbranch_scc1 {entry[(1,1)]}')
            for ph in range(2):
                lp = entry[(half, ph)]
                a.label(lp)
                for t in range(nl):
                    reg, off = (RC + (t >> 1), 2048 * (t & 1)) if half else (RC + (t >> 2), 1024 * (t & 3))
                    a(f'buffer_load_dwordx4 v[{M+4*t}:{M+4*t+3}], v{reg}, s[{sWS}:{sWS+3}], s{sC_RD} offen offset:{off} sc1')
                a('s_mov_b64 exec, -1')
                op3 = (lambda d, x, y, z: f'v_bitop3_b32 v{d}, v{x}, v{y}, v{z} bitop3:0x80') if ph else (lambda d, x, y, z: f'v_or3_b32 v{d}, v{x}, v{y}, v{z}')
                for t in range(nl):
                    a(f's_waitcnt vmcnt({nl-1-t})')
                    if t == 0 and self.opt.get('fine'): self.stamp(2)
                    a(f'v_mfma_f32_16x16x32_bf16 v[{ACC}:{ACC+3}], v[{SEL}:{SEL+3}], v[{M+4*t}:{M+4*t+3}], ' + ('0' if t == 0 else f'v[{ACC}:{ACC+3}]'))
                    if t == 0:
                        a(op3(T0, M, M+1, M+2)); a(op3(T0, T0, M+3, M+3))
                    else:
                        a(op3(T0, T0, M+4*t, M+4*t+1)); a(op3(T0, T0, M+4*t+2, M+4*t+3))
                tgt = ok + '_h' if half else ok
                a(f'''v_and_b32 v{T0}, 1, v{T0}
                      v_cmp_ne_u32 vcc, {ph}, v{T0}
                      s_cbranch_vccz {tgt}
                      s_mov_b64 exec, vcc''')
                self.retry(lp, 3)
                a('s_mov_b64 exec, -1')
                if not (half and ph): a(f's_branch {tgt}')
        a.label(ok + '_h')
        a('s_nop 2')
        for k in range(4):
            a(f'v_add_f32_dpp v{ACC+k}, v{ACC+k}, v{ACC+k} row_ror:8 row_mask:0xf bank_mask:0xf')
        a(f's_branch {fin}')
        a.label(ok)
        a('s_nop 2')
        a.label(fin)
        self.stamp(3)
        a(f'''v_cvt_pk_bf16_f32 v{ACC}, v{ACC}, v{ACC+1}
              v_cvt_pk_bf16_f32 v{ACC+1}, v{ACC+2}, v{ACC+3}
              s_mov_b64 exec, s[{sMA}:{sMA+1}]
              v_min_u32 v{ACC}, -2, v{ACC}
              v_min_u32 v{ACC+1}, -2, v{ACC+1}''')
        self.lstore([f'buffer_store_dwordx2 v[{ACC}:{ACC+1}], v{vAst}, s[{sWS}:{sWS+3}], s{sA_N} offen'])
        if self.opt.get('dump_mem'):
            l = a.newlabel('Ldm')
            a(f'''s_cmp_lg_u32 s{sJ}, 0
                  s_cbranch_scc1 {l}
                  s_mul_i32 s{sT0}, s{sSTEP}, 10240
                  s_add_u32 s{sT0}, s{sT0}, {WS_DBG}
                  buffer_store_dwordx2 v[{ACC}:{ACC+1}], v{vAst}, s[{sWS}:{sWS+3}], s{sT0} offen''')
            a.label(l)
        a('s_mov_b64 exec, -1')
        a('s_barrier')
        self.stamp(4)
        self.next_step()
        a(f's_branch {loop}')
        a.label(end)
        self.finish()
        self.emit_tail()

    def role_v(self):
        a = self.a
        al = Alloc(1, 256)
        self.lanes(al)
        WA, WB = al(80, 4), al(80, 4)
        M = al(48, 4)
        TA, TB = al(4, 4), al(4, 4)
        F = al(12, 4); RR = al(2, 2)
        vFrag, vIdx, vB, vAoff, vV, vSent, vCoff, vLin = [al() for _ in range(8)]
        PX = al(8, 2)
        self.frag_addr(vFrag); self.idx_reg(vIdx)
        a(f"""v_lshlrev_b32 v{vV}, 4, v{self.vL}
              v_lshlrev_b32 v{vLin}, 4, v{self.vL}
              v_mov_b32 v{vSent}, -1""")
        self.c_off(vCoff, 4)
        self.wo_weights(M, M + 24, 4, vAoff, self.vT2)
        for k in range(12):
            a(f'ds_write_b128 v{vLin}, v[{M+4*k}:{M+4*k+3}] offset:{LW5 + 1024*k}')
        a('s_waitcnt lgkmcnt(0)')
        a(f"""s_mul_i32 s{sT0}, s{sG}, 768
              s_add_u32 s{sT0}, s{sT0}, 6144
              v_lshlrev_b32 v{vB}, 5, v{self.vN}
              v_lshl_add_u32 v{vB}, v{self.vQ}, 2, v{vB}
              v_add_u32 v{vB}, s{sT0}, v{vB}""")
        srd(a, ptr(4), DM * NH * DH * 2)
        vW = M
        self.wrow_lane(vW, 12288)
        a(f"""s_mul_i32 s{sT0}, s{sH}, 384
              s_mul_i32 s{sT1}, s{sG}, 96
              s_add_u32 s{sT0}, s{sT0}, s{sT1}
              v_lshl_add_u32 v{vW}, v{self.vN}, 2, v{vW}
              v_add_u32 v{vW}, s{sT0}, v{vW}""")
        self.load_pair(WA, WB, 10, vW, 12288, self.vT2)
        self.a_off(vAoff)
        self.zero(TA, 8)
        self.mark(1)
        self.wait_all_registered()
        self.wait_tiles(sSTEP, 2, 1)
        for sg in range(2):
            a(f's_mov_b32 s{sT3}, {sg}')
            self.dma_seg_regs(sT3); self.dma_v(vV)
        a('s_waitcnt vmcnt(0)')
        a('s_barrier')
        self.mark(2)
        loop, end = a.newlabel('Lv'), a.newlabel('Lvend')
        self.a_poll(vAoff, [F], True)
        a.label(loop)
        a('s_barrier')
        self.stamp(0)
        for ks in range(10):
            a(f'ds_read_b128 v[{M+4*ks}:{M+4*ks+3}], v{vLin} offset:{LM + 1024*ks}')
        for ks in range(10):
            a(f's_waitcnt lgkmcnt({9-ks})')
            a(f'v_smfmac_f32_16x16x64_bf16 v[{TA}:{TA+3}], v[{M+4*ks}:{M+4*ks+3}], v[{WA+8*ks}:{WA+8*ks+7}], v{vIdx}')
            a(f'v_smfmac_f32_16x16x64_bf16 v[{TB}:{TB+3}], v[{M+4*ks}:{M+4*ks+3}], v[{WB+8*ks}:{WB+8*ks+7}], v{vIdx}')
            if ks == self.opt.get('v_bar', 8): a('s_barrier')
        a(f"""s_nop 7
              v_add_f32 v{TA}, v{TA}, v{TA+1}
              v_add_f32 v{TA+2}, v{TA+2}, v{TA+3}
              v_add_f32 v{TB}, v{TB}, v{TB+1}
              v_add_f32 v{TB+2}, v{TB+2}, v{TB+3}
              v_cvt_pk_bf16_f32 v{TA}, v{TA}, v{TA+2}
              v_cvt_pk_bf16_f32 v{TB}, v{TB}, v{TB+2}
              v_min_u32 v{TA}, -2, v{TA}
              v_min_u32 v{TB}, -2, v{TB}""")
        self.lstore([f'buffer_store_dword v{TA}, v{vB}, s[{sWS}:{sWS+3}], s{sB_C} offen',
                     f'buffer_store_dword v{TB}, v{vB}, s[{sWS}:{sWS+3}], s{sB_C} offen offset:16'])
        self.stamp(1)
        a('s_waitcnt vmcnt(2)')
        for k in range(12):
            a(f'ds_read_b128 v[{M+4*k}:{M+4*k+3}], v{vLin} offset:{LW5 + 1024*k}')
        self.zero(TA, 8)
        a(f's_add_u32 s{sT3}, s{sSTEP}, 2')
        self.dma_seg_regs(sT3)
        a('s_barrier')
        self.lstore([f'buffer_store_dword v{vSent}, v{vB}, s[{sWS}:{sWS+3}], s{sB_R} offen',
                     f'buffer_store_dword v{vSent}, v{vB}, s[{sWS}:{sWS+3}], s{sB_R} offen offset:16'])
        a(f"s_sleep {self.opt.get('d_sleep', 7)}")
        nod = a.newlabel('Lvnd')
        a(f"""s_add_u32 s{sT3}, s{sSTEP}, 2
              s_cmp_ge_u32 s{sT3}, 64
              s_cbranch_scc1 {nod}""")
        self.wait_tiles(sT3, 2, 1)
        if not self.opt.get('no_dma'): self.dma_v(vV)
        a.label(nod)
        a('s_waitcnt lgkmcnt(0)')
        self.stamp(5)
        a('s_barrier')
        self.stamp(2)
        a(f"""s_cmp_eq_u32 s{sSTEP}, 63
              s_cbranch_scc1 {end}""")
        self.wo_stage([(M, M + 24, TA, TB, 0)], vFrag, vIdx, F, vCoff, RR)
        self.stamp(3)
        self.zero(TA, 8)
        self.a_poll(vAoff, [F, PX, M + 40])
        self.stamp(4, 1)
        a(f's_branch {loop}')
        a.label(end)
        self.finish()
        self.emit_tail()

    def role_w7(self):
        a = self.a
        al = Alloc(1, 256)
        self.lanes(al)
        WV = al(80, 4)
        P = [(al(24, 4), al(24, 4), al(4, 4), al(4, 4), 0)]
        M = al(40, 4)
        TV = al(4, 4)
        SENT = al(4, 4); RR = al(2, 2)
        vFrag, vIdx, vB, vAoff, vK, vQx, vCoff, vCr = [al() for _ in range(8)]
        vSel = TV
        PX = al(24, 2)
        T0, T1 = self.vT0, self.vT1
        self.frag_addr(vFrag); self.idx_reg(vIdx)
        a(f"""v_lshlrev_b32 v{vK}, 4, v{self.vL}
              v_and_b32 v{T0}, 7, v{self.vL}
              v_lshlrev_b32 v{vQx}, 4, v{T0}
              v_lshrrev_b32 v{T0}, 5, v{self.vL}
              v_lshl_add_u32 v{vQx}, v{T0}, 10, v{vQx}
              v_bfe_u32 v{T0}, v{self.vL}, 3, 2
              v_lshl_add_u32 v{vQx}, v{T0}, 8, v{vQx}
              s_lshr_b32 s{sT0}, s{sG}, 1
              s_mul_i32 s{sT0}, s{sT0}, 6144
              s_and_b32 s{sT1}, s{sG}, 1
              s_lshl_b32 s{sT1}, s{sT1}, 7
              s_add_u32 s{sT0}, s{sT0}, s{sT1}
              v_add_u32 v{vQx}, s{sT0}, v{vQx}""")
        for k in range(4): a(f'v_mov_b32 v{SENT+k}, -1')
        a(f"""s_mul_i32 s{sT0}, s{sG}, 768
              s_add_u32 s{sT0}, s{sT0}, {6144 + 512}
              v_lshlrev_b32 v{vB}, 4, v{self.vN}
              v_lshl_add_u32 v{vB}, v{self.vQ}, 2, v{vB}
              v_add_u32 v{vB}, s{sT0}, v{vB}
              s_mul_i32 s{sT0}, s{sG}, 2560
              v_lshlrev_b32 v{vCr}, 4, v{self.vL}
              v_add_u32 v{vCr}, s{sT0}, v{vCr}""")
        self.c_off(vCoff, 3)
        srd(a, ptr(4), DM * NH * DH * 2)
        self.wrow_lane(vAoff, 12288)
        a(f"""s_mul_i32 s{sT0}, s{sH}, 384
              s_mul_i32 s{sT1}, s{sG}, 96
              s_add_u32 s{sT0}, s{sT0}, s{sT1}
              s_add_u32 s{sT0}, s{sT0}, 64
              v_and_b32 v{T0}, 14, v{self.vN}
              v_lshl_add_u32 v{vAoff}, v{T0}, 1, v{vAoff}
              v_add_u32 v{vAoff}, s{sT0}, v{vAoff}
              v_and_b32 v{T0}, 1, v{self.vN}
              v_cmp_eq_u32 vcc, 1, v{T0}
              v_mov_b32 v{vSel}, s{sSELLO}
              v_mov_b32 v{T0}, s{sSELHI}
              s_nop 1
              v_cndmask_b32 v{vSel}, v{vSel}, v{T0}, vcc""")
        self.load_single(WV, 10, vAoff, vSel, 12288, M)
        self.wo_weights(P[0][0], P[0][1], 3, vAoff, self.vT2)
        self.a_off(vAoff)
        self.zero(TV, 4)
        for p in P: self.zero(p[2], 8)
        self.mark(1)
        self.wait_all_registered()
        self.wait_tiles(sSTEP, 0, 2)
        for sg in range(2):
            a(f's_mov_b32 s{sT3}, {sg}')
            self.dma_seg_regs(sT3); self.dma_kq(vK, vQx)
        a('s_waitcnt vmcnt(0)')
        a('s_barrier')
        self.mark(2)
        loop, end = a.newlabel('Lw7'), a.newlabel('Lw7end')
        self.a_poll(vAoff, [PX], True)
        a.label(loop)
        a('s_barrier')
        self.stamp(0)
        for ks in range(10):
            a(f'ds_read_b128 v[{M+4*ks}:{M+4*ks+3}], v{vK} offset:{LM + 1024*ks}')
        for ks in range(10):
            a(f's_waitcnt lgkmcnt({9-ks})')
            a(f'v_smfmac_f32_16x16x64_bf16 v[{TV}:{TV+3}], v[{M+4*ks}:{M+4*ks+3}], v[{WV+8*ks}:{WV+8*ks+7}], v{vIdx}')
            if ks == self.opt.get('w7_bar', 99): a('s_barrier')
        a(f"""s_nop 7
              v_add_f32 v{TV}, v{TV}, v{TV+1}
              v_add_f32 v{TV+2}, v{TV+2}, v{TV+3}
              v_cvt_pk_bf16_f32 v{TV}, v{TV}, v{TV+2}
              v_min_u32 v{TV}, -2, v{TV}""")
        self.lstore([f'buffer_store_dword v{TV}, v{vB}, s[{sWS}:{sWS+3}], s{sB_C} offen'])
        if self.opt.get('w7_bar', 99) > 9: a('s_barrier')
        self.stamp(1)
        self.zero(TV, 4)
        a(f's_add_u32 s{sT3}, s{sSTEP}, 2')
        self.dma_seg_regs(sT3)
        a('s_barrier')
        self.lstore([f'buffer_store_dword v{SENT}, v{vB}, s[{sWS}:{sWS+3}], s{sB_R} offen'])
        a(f"s_sleep {self.opt.get('d_sleep', 7)}")
        if self.opt.get('dma_time'): self.stamp(1)
        nod = a.newlabel('Lknd')
        a(f"""s_add_u32 s{sT3}, s{sSTEP}, 2
              s_cmp_ge_u32 s{sT3}, 64
              s_cbranch_scc1 {nod}""")
        self.wait_tiles(sT3, 0, 2)
        if not self.opt.get('no_dma'): self.dma_kq(vK, vQx)
        a.label(nod)
        if self.opt.get('dma_time'): a('s_waitcnt vmcnt(0)')
        self.stamp(5)
        a('s_barrier')
        self.stamp(2)
        a(f"""s_cmp_eq_u32 s{sSTEP}, 63
              s_cbranch_scc1 {end}""")
        self.wo_stage(P, vFrag, vIdx, M, vCoff, RR)
        self.stamp(3)
        for p in P: self.zero(p[2], 8)
        self.a_poll(vAoff, [PX, PX + 8, PX + 16])
        self.stamp(4, 1)
        a(f's_branch {loop}')
        a.label(end)
        self.finish()
        self.emit_tail()

    def role_att(self):
        a = self.a
        al = Alloc(1, 256)
        self.lanes(al)
        TM = al(2, 2)
        WA, WB = al(24, 4), al(24, 4)
        TA, TB = al(4, 4), al(4, 4)
        KX = al(48, 4); X = al(24, 4); Y = al(24, 4)
        VX = al(16, 4); VM = al(8, 2)
        BI = al(12, 4); SS = al(12, 4)
        PP = al(6, 2); RR = PP
        OO = al(16, 4); LL = al(4, 4)
        ONES = al(4, 4)
        F = SS
        vFrag, vIdx, vAoff, vXY, vVM, vOw, vOst, vCoff, vLin, vQr, vBp, vRw, vOx, vBp2 = [al() for _ in range(14)]
        T0, T1, T2 = self.vT0, self.vT1, self.vT2
        sWP = sRED
        a(f's_sub_u32 s{sWP}, s{sW}, 4')
        self.init_job(KX)
        self.mark(5)
        self.frag_addr(vFrag); self.idx_reg(vIdx)
        self.c_off(vCoff, f's{sWP}')
        self.wo_weights(WA, WB, f's{sWP}', vAoff, T2)
        self.a_off(vAoff)
        a(f"""v_lshlrev_b32 v{vXY}, 6, v{self.vN}
              v_lshl_add_u32 v{vXY}, v{self.vQ}, 4, v{vXY}
              s_lshl_b32 s{sT0}, s{sWP}, 10
              s_add_u32 s{sT0}, s{sT0}, 6144
              v_lshlrev_b32 v{vVM}, 4, v{self.vN}
              v_lshl_add_u32 v{vVM}, v{self.vQ}, 3, v{vVM}
              v_add_u32 v{vVM}, s{sT0}, v{vVM}
              v_lshlrev_b32 v{vLin}, 4, v{self.vL}
              s_lshl_b32 s{sT0}, s{sWP}, 11
              v_add_u32 v{vBp}, s{sT0}, v{vLin}
              v_and_b32 v{T0}, 7, v{self.vN}
              v_lshlrev_b32 v{vQr}, 4, v{T0}
              v_lshl_add_u32 v{vQr}, v{self.vQ}, 7, v{vQr}""")
        a(f"""v_lshlrev_b32 v{vRw}, 2, v{self.vL}
              v_add_u32 v{T1}, {LDUMMY}, v{vRw}
              v_add_u32 v{vRw}, {LR}, v{vRw}
              v_cmp_gt_u32 vcc, 8, v{self.vL}
              s_nop 1
              v_cndmask_b32 v{vRw}, v{T1}, v{vRw}, vcc""")
        a(f"""v_lshrrev_b32 v{T1}, 1, v{self.vQ}
              v_lshlrev_b32 v{vOw}, 7, v{T1}
              v_lshl_add_u32 v{vOw}, v{T0}, 4, v{vOw}
              v_and_b32 v{T1}, 1, v{self.vQ}
              v_lshl_add_u32 v{vOw}, v{T1}, 3, v{vOw}
              v_lshrrev_b32 v{T1}, 3, v{self.vN}
              v_mul_u32_u24 v{T1}, 3072, v{T1}
              v_add_u32 v{vOw}, v{vOw}, v{T1}
              s_lshl_b32 s{sT0}, s{sWP}, 10
              s_add_u32 s{sT0}, s{sT0}, {LO}
              v_add_u32 v{vOw}, s{sT0}, v{vOw}""")
        a(f"""v_lshrrev_b32 v{T1}, 3, v{self.vL}
              v_lshlrev_b32 v{vOst}, 4, v{T1}
              v_and_b32 v{T1}, 7, v{self.vL}
              v_lshl_add_u32 v{vOst}, v{T1}, 8, v{vOst}
              s_lshr_b32 s{sT0}, s{sG}, 1
              s_mul_i32 s{sT0}, s{sT0}, 192
              s_mul_i32 s{sT1}, s{sH}, 6
              s_add_u32 s{sT0}, s{sT0}, s{sT1}
              s_lshl_b32 s{sT1}, s{sWP}, 1
              s_add_u32 s{sT0}, s{sT0}, s{sT1}
              s_lshl_b32 s{sT0}, s{sT0}, 10
              s_and_b32 s{sT1}, s{sG}, 1
              s_lshl_b32 s{sT1}, s{sT1}, 7
              s_add_u32 s{sT0}, s{sT0}, s{sT1}
              v_add_u32 v{vOst}, s{sT0}, v{vOst}
              s_lshl_b32 s{sT0}, s{sWP}, 10
              s_add_u32 s{sT0}, s{sT0}, {LOX}
              v_add_u32 v{vBp2}, s{sT0}, v{vLin}
              v_lshlrev_b32 v{vOx}, 7, v{T0}
              v_lshl_add_u32 v{vOx}, v{self.vQ}, 3, v{vOx}
              v_add_u32 v{vOx}, s{sT0}, v{vOx}""")
        a(f"""s_lshl_b32 s{sT0}, s{sG}, 3
              v_add_u32 v{T1}, s{sT0}, v{T0}
              v_cmp_gt_u32 vcc, 8, v{self.vN}
              v_mov_b32 v{T2}, 31
              s_nop 1
              v_cndmask_b32 v{T1}, v{T1}, v{T2}, vcc
              v_lshlrev_b32 v{T2}, 2, v{self.vQ}
              v_sub_u32 v{T1}, v{T1}, v{T2}
              v_mov_b32 v{T2}, 0xf149f2ca""")
        for tile in range(2):
            for r in range(4):
                a(f"""v_cmp_gt_i32 vcc, {16*tile + r}, v{T1}
                      v_mov_b32 v{BI+4*tile+r}, 0
                      s_nop 1
                      v_cndmask_b32 v{BI+4*tile+r}, v{BI+4*tile+r}, v{T2}, vcc""")
        a(f"""v_cmp_lt_u32 vcc, 1, v{self.vQ}
              v_mov_b32 v{BI+8}, 0
              s_nop 1
              v_cndmask_b32 v{BI+8}, v{BI+8}, v{T2}, vcc""")
        for r in range(1, 4): a(f'v_mov_b32 v{BI+8+r}, v{BI+8}')
        for k in range(4): a(f'v_mov_b32 v{ONES+k}, 0x3f803f80')
        self.zero(Y, 24); self.zero(VM, 8); self.zero(TA, 8)
        self.mark(1)
        self.wait_all_registered()
        def read_seg():
            a(f'v_add_u32 v{T0}, s{sLB}, v{vLin}')
            a(f'v_add_u32 v{T1}, s{sLB}, v{vQr}')
            a(f's_lshl_b32 s{sT0}, s{sWP}, 12')
            a(f'v_add_u32 v{T2}, s{sT0}, v{T0}')
            for k in range(12):
                a(f'ds_read_b128 v[{KX+4*k}:{KX+4*k+3}], v{T0} offset:{LK_OFF + 1024*k}')
            for ks in range(6):
                a(f'ds_read_b128 v[{X+4*ks}:{X+4*ks+3}], v{T1} offset:{LQ_OFF + 512*ks}')
            for t in range(4):
                a(f'ds_read_b128 v[{VX+4*t}:{VX+4*t+3}], v{T2} offset:{LV_OFF + 1024*t}')
        def vm_loads():
            a(f's_mov_b64 exec, s[{sML32}:{sML32+1}]')
            for t in range(4):
                a(f'buffer_load_dwordx2 v[{VM+2*t}:{VM+2*t+1}], v{vVM}, s[{sWS}:{sWS+3}], s{sB_C} offen offset:{256*t} sc1')
            a('s_mov_b64 exec, -1')
        a('s_barrier')
        self.mark(2)
        a(f's_mov_b32 s{sLB}, {LBUF}')
        read_seg()
        self.a_poll(vAoff, [F], True)
        loop, end = a.newlabel('Lat'), a.newlabel('Latend')
        lp, ok, vlp, vok, vrt = a.newlabel('LpB'), a.newlabel('LpBok'), a.newlabel('LpV'), a.newlabel('LpVok'), a.newlabel('LpVr')
        a.label(loop)
        a('s_barrier')
        if self.opt.get('fused'):
            nf = a.newlabel('Latnf')
            a(f's_cmp_eq_u32 s{sSTEP}, 0')
            a(f's_cbranch_scc1 {nf}')
            self.o_flag(1)
            a.label(nf)
        a('s_barrier')
        if self.opt.get('b_sleep'): a(f"s_sleep {self.opt['b_sleep']}")
        if self.opt.get('fine'): self.stamp(0)
        self.poll2(vBp, sB_C, LQK, [OO, OO + 8][:self.opt.get('b_depth', 1)], 0, self.opt.get('b_gap', 0))
        a(f's_mov_b64 exec, s[{sMN8}:{sMN8+1}]')
        a('s_waitcnt lgkmcnt(0)')
        a('s_barrier')
        for ks in range(6):
            a(f'ds_read_b128 v[{X+4*ks}:{X+4*ks+3}], v{vXY} offset:{LQK + 512*ks}')
            a(f'ds_read_b128 v[{Y+4*ks}:{Y+4*ks+3}], v{vXY} offset:{LQK + 3072 + 512*ks}')
        a('s_mov_b64 exec, -1')
        self.stamp(5)
        for ks in range(6):
            if ks == self.opt.get('vm_at', 0): vm_loads()
            a(f's_waitcnt lgkmcnt({11 - 2*ks})')
            for tile, A in ((0, KX + 4*ks), (1, KX + 24 + 4*ks), (2, Y + 4*ks)):
                if tile == 2: a(f's_waitcnt lgkmcnt({10 - 2*ks})')
                c = BI + 4*tile if ks == 0 else SS + 4*tile
                a(f'v_mfma_f32_16x16x32_bf16 v[{SS+4*tile}:{SS+4*tile+3}], v[{A}:{A+3}], v[{X+4*ks}:{X+4*ks+3}], v[{c}:{c+3}]')
        a('s_waitcnt vmcnt(4)')
        a('s_nop 3')
        self.stamp(1)
        a(f"""v_max3_f32 v{T0}, v{SS}, v{SS+1}, v{SS+2}
              v_max3_f32 v{T1}, v{SS+3}, v{SS+4}, v{SS+5}
              v_max3_f32 v{T0}, v{T0}, v{SS+6}, v{SS+7}
              v_max3_f32 v{T1}, v{T1}, v{SS+8}, v{SS+9}
              v_max3_f32 v{T0}, v{T0}, v{SS+10}, v{SS+11}
              v_max_f32 v{T0}, v{T0}, v{T1}
              v_mov_b32 v{T1}, v{T0}
              s_nop 1
              v_permlane32_swap_b32 v{T0}, v{T1}
              v_max_f32 v{T0}, v{T0}, v{T1}
              v_mov_b32 v{T1}, v{T0}
              s_nop 1
              v_permlane16_swap_b32 v{T0}, v{T1}
              v_max_f32 v{T0}, v{T0}, v{T1}
              v_mul_f32 v{TM}, s{sSCL}, v{T0}""")
        def pkfma(r):
            a(f'v_pk_fma_f32 v[{SS+r}:{SS+r+1}], v[{SS+r}:{SS+r+1}], s[{sSCL}:{sSCL+1}], v[{TM}:{TM+1}] op_sel_hi:[1,0,0] neg_lo:[0,0,1] neg_hi:[0,0,1]')
        for r in range(0, 8, 2): pkfma(r)
        for r in range(8): a(f'v_exp_f32 v{SS+r}, v{SS+r}')
        for r in range(8, 12, 2): pkfma(r)
        for r in range(4): a(f'v_cvt_pk_bf16_f32 v{PP+r}, v{SS+2*r}, v{SS+2*r+1}')
        a(f'v_exp_f32 v{SS+8}, v{SS+8}')
        a(f'v_exp_f32 v{SS+9}, v{SS+9}')
        a(f'v_mfma_f32_16x16x32_bf16 v[{LL}:{LL+3}], v[{ONES}:{ONES+3}], v[{PP}:{PP+3}], 0')
        a(f'v_exp_f32 v{SS+10}, v{SS+10}')
        a(f'v_mfma_f32_16x16x32_bf16 v[{OO}:{OO+3}], v[{VX}:{VX+3}], v[{PP}:{PP+3}], 0')
        a(f'v_exp_f32 v{SS+11}, v{SS+11}')
        a(f'v_mfma_f32_16x16x32_bf16 v[{OO+4}:{OO+7}], v[{VX+4}:{VX+7}], v[{PP}:{PP+3}], 0')
        a(f'v_cvt_pk_bf16_f32 v{PP+4}, v{SS+8}, v{SS+9}')
        a(f'v_cvt_pk_bf16_f32 v{PP+5}, v{SS+10}, v{SS+11}')
        a(f'v_mfma_f32_16x16x32_bf16 v[{OO+8}:{OO+11}], v[{VX+8}:{VX+11}], v[{PP}:{PP+3}], 0')
        a.label(vlp)
        a(f"""s_waitcnt vmcnt(0)
              v_max3_u32 v{T1}, v{VM}, v{VM+1}, v{VM+2}
              v_max3_u32 v{T2}, v{VM+3}, v{VM+4}, v{VM+5}
              v_mfma_f32_16x16x32_bf16 v[{OO+12}:{OO+15}], v[{VX+12}:{VX+15}], v[{PP}:{PP+3}], 0
              v_max3_u32 v{T1}, v{T1}, v{VM+6}, v{VM+7}
              v_max_u32 v{T1}, v{T1}, v{T2}
              v_cmp_eq_u32 vcc, -1, v{T1}
              s_cbranch_vccnz {vrt}""")
        a.label(vok)
        if not self.opt.get('fine'): self.stamp(0)
        a(f'v_mfma_f32_16x16x16_bf16 v[{LL}:{LL+3}], v[{ONES}:{ONES+1}], v[{PP+4}:{PP+5}], v[{LL}:{LL+3}]')
        for t in range(4):
            a(f'v_mfma_f32_16x16x16_bf16 v[{OO+4*t}:{OO+4*t+3}], v[{VM+2*t}:{VM+2*t+1}], v[{PP+4}:{PP+5}], v[{OO+4*t}:{OO+4*t+3}]')
        a(f"""s_nop 3
              v_rcp_f32 v{LL}, v{LL}""")
        for t in range(4):
            a(f'v_cvt_pk_bf16_f32 v{X+2*t}, v{OO+4*t}, v{OO+4*t+1}')
            a(f'v_cvt_pk_bf16_f32 v{X+2*t+1}, v{OO+4*t+2}, v{OO+4*t+3}')
            a(f'ds_write_b64 v{vOw}, v[{X+2*t}:{X+2*t+1}] offset:{256*t}')
            if t == 0: a(f'ds_write_b32 v{vRw}, v{LL}')
        a('s_waitcnt lgkmcnt(0)')
        a('s_barrier')
        self.stamp(2)
        skipwo = a.newlabel('Latsk')
        a(f"""s_cmp_eq_u32 s{sSTEP}, 63
              s_cbranch_scc1 {skipwo}""")
        self.wo_stage([(WA, WB, TA, TB, 0)], vFrag, vIdx, F, vCoff, RR)
        a.label(skipwo)
        if not self.opt.get('fine'): self.stamp(3)
        for t in range(4):
            for r in range(4):
                a(f'v_mul_f32 v{OO+4*t+r}, v{OO+4*t+r}, v{LL}')
            a(f'v_cvt_pk_bf16_f32 v{OO+4*t}, v{OO+4*t}, v{OO+4*t+1}')
            a(f'v_cvt_pk_bf16_f32 v{OO+4*t+1}, v{OO+4*t+2}, v{OO+4*t+3}')
        a(f's_mov_b64 exec, s[{sMH8}:{sMH8+1}]')
        for t in range(4):
            a(f'ds_write_b64 v{vOx}, v[{OO+4*t}:{OO+4*t+1}] offset:{32*t}')
        a('s_mov_b64 exec, -1')
        a(f'ds_read_b128 v[{OO}:{OO+3}], v{vBp2}')
        a('s_waitcnt lgkmcnt(0)')
        if not self.opt.get('no_ost'):
            self.lstore([f'buffer_store_dwordx4 v[{OO}:{OO+3}], v{vOst}, s[{sWS}:{sWS+3}], s{sO_C} offen'])
        a(f"""s_cmp_eq_u32 s{sSTEP}, 63
              s_cbranch_scc1 {end}
              s_add_u32 s{sT3}, s{sSTEP}, 1
              s_and_b32 s{sT3}, s{sT3}, 1
              s_mul_i32 s{sLB}, s{sT3}, {LBUF_SZ}
              s_add_u32 s{sLB}, s{sLB}, {LBUF}""")
        read_seg()
        self.zero(TA, 8)
        self.a_poll(vAoff, [F, OO, OO + 8])
        self.stamp(4, 1)
        a(f's_branch {loop}')
        a.label(end)
        a('s_waitcnt vmcnt(0)')
        self.o_flag(0)
        self.finish()
        a.label(vrt)
        vm_loads()
        self.retry(vlp, 1)
        a(f's_branch {vok}')
        self.emit_tail()

def wait_registered(a, opt, T0, T1, vN, init=False):
    lp, done = a.newlabel('Lreg'), a.newlabel('Lregd')
    a(f'v_lshlrev_b32 v{T1}, 2, v{vN}')
    a.label(lp)
    a(f'''buffer_load_dword v{T0}, v{T1}, s[{sDBG}:{sDBG+3}], 0 offen sc0 sc1
          s_waitcnt vmcnt(0)
          v_readlane_b32 s{sT0}, v{T0}, 8
          v_readlane_b32 s{sT1}, v{T0}, {11 if init else 8}
          s_add_u32 s{sT0}, s{sT0}, s{sT1}
          s_cmp_ge_u32 s{sT0}, {256 + 384 if init else 512}
          s_cbranch_scc1 {done}
          s_sleep 16
          s_sub_u32 s{sBUD}, s{sBUD}, 1
          s_cbranch_scc0 {lp}
          s_mov_b32 s{sBUD}, 0''')
    a.label(done)
    a(f'''v_cmp_ne_u32 vcc, 32, v{T0}
          s_and_b32 s{sT0}, vcc_lo, 0xff
          s_cselect_b32 s{sMIX}, 1, {1 if opt.get('force_mixed') else 0}''')

def emit_entry(a, opt, exit_label):
    a(f'''s_cmp_ge_u32 s2, 256
          s_cbranch_scc1 {exit_label}
          s_load_dwordx16 s[16:31], s[0:1], 0
          s_load_dwordx8 s[32:39], s[0:1], 64
          s_load_dwordx4 s[40:43], s[0:1], 96
          s_load_dwordx2 s[44:45], s[0:1], 112
          v_lshrrev_b32 v1, 6, v0
          s_getreg_b32 s{sJ}, hwreg(HW_REG_XCC_ID)
          v_readfirstlane_b32 s{sW}, v1
          s_and_b32 s{sJ}, s{sJ}, 15
          s_min_u32 s{sJ}, s{sJ}, 10
          s_cmp_lt_u32 s{sJ}, 8
          s_cselect_b32 s{sJ}, s{sJ}, 10
          s_mov_b32 s{sBUD}, {opt.get('budget', 1 << 20)}
          s_mov_b32 s{sSTEP}, 0
          s_mov_b32 s{sCS}, 0
          s_mov_b32 s{sPOL}, 0
          s_mov_b64 s[98:99], 0
          s_mov_b64 s[100:101], 0
          s_mov_b32 s{sMIX}, {1 if opt.get('force_mixed') else 0}
          s_mov_b32 s{sMN8}, 0x00ff00ff
          s_mov_b32 s{sMN8+1}, 0x00ff00ff
          s_mov_b32 s{sMH8}, 0xff00ff00
          s_mov_b32 s{sMH8+1}, 0xff00ff00
          s_mov_b32 s{sML32}, -1
          s_mov_b32 s{sML32+1}, 0
          s_mov_b32 s{sSELLO}, 0x05040100
          s_mov_b32 s{sSELHI}, 0x07060302
          s_mov_b32 s{sSCL}, {hex(f32bits(DH ** -0.5 * math.log2(math.e)))}
          s_waitcnt lgkmcnt(0)
          s_mov_b32 s{sWS}, s{ptr(14)}
          s_mov_b32 s{sWS+1}, s{ptr(14)+1}
          s_mov_b32 s{sWS+2}, {WS_SIZE}
          s_mov_b32 s{sWS+3}, 0x20000
          s_mov_b32 s{sDBG}, s{ptr(13)}
          s_mov_b32 s{sDBG+1}, s{ptr(13)+1}
          s_mov_b32 s{sDBG+2}, 256
          s_mov_b32 s{sDBG+3}, 0x20000''')
    if opt.get('prof'):
        a(f's_memrealtime s[{sST}:{sST+1}]')
        a('s_waitcnt lgkmcnt(0)')
    if opt.get('fake_xcc') == 1:
        a(f'''s_lshr_b32 s{sJ}, s2, 5''')
    if opt.get('fake_xcc') == 2:
        a(f'''s_cmp_lt_u32 s2, 200
              s_cselect_b32 s{sJ}, s{sJ}, 3
              s_cmp_lt_u32 s2, 250
              s_cselect_b32 s{sJ}, s{sJ}, 10''')
    l1, l2 = a.newlabel('Le'), a.newlabel('Le')
    a(f'''s_cmp_lg_u32 s{sW}, 0
          s_cbranch_scc1 {l1}
          s_mov_b64 exec, 1
          v_mov_b32 v2, 1
          s_lshl_b32 s{sT0}, s{sJ}, 2
          v_mov_b32 v3, s{sT0}
          buffer_atomic_add v2, v3, s[{sDBG}:{sDBG+3}], 0 offen sc0 sc1
          s_mov_b64 exec, -1''')
    a.label(l1)
    l3, l4, l5, l6, l7 = [a.newlabel('Le') for _ in range(5)]
    a(f'''s_waitcnt vmcnt(0)
          s_cmp_lg_u32 s{sW}, 0
          s_cbranch_scc1 {l3}
          s_mov_b64 exec, 1
          v_readfirstlane_b32 s{sT0}, v2
          s_cmp_ge_u32 s{sJ}, 8
          s_cselect_b32 s{sT0}, 32, s{sT0}
          s_cmp_lt_u32 s{sT0}, 32
          s_cbranch_scc1 {l6}
          v_mov_b32 v2, 1
          v_mov_b32 v3, 36
          buffer_atomic_add v2, v3, s[{sDBG}:{sDBG+3}], 0 offen sc0 sc1
          s_waitcnt vmcnt(0)
          v_add_u32 v2, 32, v2''')
    a.label(l6)
    l8 = a.newlabel('Le')
    a(f'''v_mov_b32 v4, 0
          s_cmp_ge_u32 s{sT0}, 16
          s_cbranch_scc1 {l8}
          s_lshr_b32 s{sT0}, s2, 6
          s_lshl_b32 s{sT0}, s{sT0}, 14
          s_and_b32 s{sT1}, s2, 63
          s_lshl_b32 s{sT1}, s{sT1}, 7
          s_add_u32 s{sT0}, s{sT0}, s{sT1}
          s_add_u32 s{sT0}, s{sT0}, {WS_RC + RC_PROBE}
          s_add_u32 s{sT1}, s{sT0}, 8192
          s_mov_b32 s{sT2}, -1
          s_mov_b32 s{sT3}, -1''')
    for rnd in range(2):
        for cp in range(2):
            a(f'''v_mov_b32 v5, 0
                  s_memtime s[98:99]
                  s_waitcnt lgkmcnt(0)
                  buffer_atomic_add v5, v4, s[{sWS}:{sWS+3}], s{sT1 if cp else sT0} offen sc0 sc1
                  s_waitcnt vmcnt(0)
                  s_memtime s[100:101]
                  s_waitcnt lgkmcnt(0)
                  s_sub_u32 s98, s100, s98
                  s_min_u32 s{sT3 if cp else sT2}, s{sT3 if cp else sT2}, s98''')
    a(f'''s_mov_b64 s[98:99], 0
          s_mov_b64 s[100:101], 0
          s_cmp_lt_u32 s{sT3}, s{sT2}
          s_cselect_b32 s{sT2}, 0x15, 0x0a
          v_mov_b32 v4, s{sT2}''')
    if opt.get('prof'):
        a(f'''s_lshl_b32 s{sT0}, s2, 2
              s_add_u32 s{sT0}, s{sT0}, {WS_POL}
              v_mov_b32 v5, 0
              buffer_store_dword v4, v5, s[{sWS}:{sWS+3}], s{sT0} offen''')
    a.label(l8)
    a(f'''v_mov_b32 v3, 0
          ds_write_b32 v3, v4 offset:4
          ds_write_b32 v3, v2
          s_mov_b64 exec, -1
          s_waitcnt lgkmcnt(0)''')
    a.label(l3)
    a(f'''s_barrier
          v_mov_b32 v3, 0
          ds_read_b32 v2, v3
          ds_read_b32 v6, v3 offset:4
          s_cmp_lg_u32 s{sW}, 0
          s_cbranch_scc1 {l4}
          s_mov_b64 exec, 1
          v_mov_b32 v4, 1
          v_mov_b32 v5, 32
          buffer_atomic_add v4, v5, s[{sDBG}:{sDBG+3}], 0 offen sc1
          s_mov_b64 exec, -1''')
    a.label(l4)
    a(f'''s_waitcnt lgkmcnt(0)
          v_readfirstlane_b32 s{sC}, v2
          v_readfirstlane_b32 s{sPOL}, v6
          s_barrier
          s_cmp_lt_u32 s{sC}, 32
          s_cbranch_scc1 {l7}''')
    a('v_and_b32 v4, 15, v0')
    wait_registered(a, opt, 2, 3, 4)
    a(f's_sub_u32 s{sT1}, s{sC}, 32')
    a(f's_mov_b32 s{sJ}, 0')
    a(f's_mov_b32 s{sC}, 0')
    for x in range(8):
        a(f'''v_readlane_b32 s{sT0}, v2, {x}
              s_min_u32 s{sT0}, s{sT0}, 32
              s_sub_u32 s{sT2}, 32, s{sT0}
              s_add_u32 s{sT0}, s{sT0}, s{sT1}
              s_cmp_lt_u32 s{sT1}, s{sT2}
              s_cselect_b32 s{sJ}, {x}, s{sJ}
              s_cselect_b32 s{sC}, s{sT0}, s{sC}
              s_sub_u32 s{sT1}, s{sT1}, s{sT2}''')
    a.label(l7)
    if opt.get('prof'):
        a(f's_memrealtime s[{sST+8}:{sST+9}]')
        a('s_waitcnt lgkmcnt(0)')

import struct
def f32bits(x): return struct.unpack('<I', struct.pack('<f', x))[0]

def emit_chain_body(a, opt):
    ch = Chain(a, opt)
    lv, l7, lat = a.newlabel('Lrole_v'), a.newlabel('Lrole_w7'), a.newlabel('Lrole_att')
    a(f'''s_lshr_b32 s{sH}, s{sC}, 2
          s_lshl_b32 s{sT0}, s{sJ}, 2
          s_add_u32 s{sH}, s{sH}, s{sT0}
          s_and_b32 s{sG}, s{sC}, 3
          s_setprio 2
          s_cmp_eq_u32 s{sW}, 3
          s_cbranch_scc1 {lv}
          s_cmp_eq_u32 s{sW}, 7
          s_cbranch_scc1 {l7}
          s_cmp_ge_u32 s{sW}, 4
          s_cbranch_scc1 {lat}''')
    ch.role_qk()
    a.label(lv); ch.role_v()
    a.label(l7); ch.role_w7()
    a.label(lat); ch.role_att()
```

```python
from asmlib import *
from layout import *
from chain import (sWS, sDBG, sT, ptr, sW, sJ, sC, sMIX, sBUD, sT0, sT1, sT2, sT3, f32bits, wait_registered)
import math

XB, WB_OFF, STAGE = 32768, 32768, 57344
GEMM1_LDS = 2 * STAGE

sX = 56
sWD = 60
sTile, sXo, sWo, sWrs, sKind, sOut, sNK, sNOut, sIt, sM0x, sM0w, sWstep = 64, 65, 66, 67, 68, 70, 71, 72, 73, 74, 75, 79
sFlagP = 80
sNFlag = 81
sC1, sC2 = 98, 99

class Gemm1:
    def __init__(self, a, opt, nworkers, rank0):
        self.a, self.opt, self.NW, self.rank0 = a, opt, nworkers, rank0
        self.tail = []
        self.inloop = False
        self.pending = []

    def lstore(self, insts, nt=False):
        a = self.a
        slow, back = a.newlabel('Lgslow'), a.newlabel('Lgback')
        a(f's_cmp_lg_u32 s{sMIX}, 0')
        a(f's_cbranch_scc1 {slow}')
        for i in insts: a(i + (' nt' if nt and i.startswith('buffer_') else ''))
        a.label(back)
        self.tail.append((slow, [i + ' sc1' if i.startswith('buffer_') else i for i in insts], back))

    def emit_tail(self):
        a = self.a
        for slow, insts, back in self.tail:
            a.label(slow)
            for i in insts: a(i)
            a(f's_branch {back}')
        self.tail = []

    def decode(self):
        a = self.a
        lf, ln, ld = a.newlabel('Ldf'), a.newlabel('Ldn'), a.newlabel('Ldd')
        a(f'''s_cmp_ge_u32 s{sTile}, 112
              s_cbranch_scc1 {ln}
              s_cmp_ge_u32 s{sTile}, 96
              s_cbranch_scc1 {lf}
              s_mul_i32 s{sT0}, s{sTile}, 43691
              s_lshr_b32 s{sT0}, s{sT0}, 19
              s_mul_i32 s{sT1}, s{sT0}, 12
              s_sub_u32 s{sT1}, s{sTile}, s{sT1}
              s_lshr_b32 s{sNK}, s{sT1}, 2
              s_and_b32 s{sT1}, s{sT1}, 3
              s_lshl_b32 s{sT2}, s{sJ}, 2
              s_add_u32 s{sT1}, s{sT1}, s{sT2}
              s_mul_i32 s{sXo}, s{sT0}, {256*1280}
              s_mul_i32 s{sWo}, s{sT1}, 384
              s_mov_b32 s{sWrs}, 12288
              s_cmp_eq_u32 s{sNK}, 1
              s_cselect_b32 s{sWD}, s{ptr(3)}, s{ptr(2)}
              s_cselect_b32 s{sWD+1}, s{ptr(3)+1}, s{ptr(2)+1}
              s_cmp_eq_u32 s{sNK}, 2
              s_cselect_b32 s{sWD}, s{ptr(4)}, s{sWD}
              s_cselect_b32 s{sWD+1}, s{ptr(4)+1}, s{sWD+1}
              s_mov_b32 s{sWD+2}, {DM*NH*DH*2}
              s_mul_i32 s{sNOut}, s{sNK}, {WS_K}
              s_mul_i32 s{sT2}, s{sT1}, {2048*384}
              s_add_u32 s{sNOut}, s{sNOut}, s{sT2}
              s_mul_i32 s{sT2}, s{sT0}, {256*384}
              s_add_u32 s{sNOut}, s{sNOut}, s{sT2}
              s_mul_i32 s{sT2}, s{sW}, 3
              s_lshr_b32 s{sT3}, s{sT2}, 2
              s_branch {ld}''')
        a.label(lf)
        a(f'''s_sub_u32 s{sT1}, s{sTile}, 96
              s_lshr_b32 s{sT0}, s{sT1}, 1
              s_and_b32 s{sT1}, s{sT1}, 1
              s_mov_b32 s{sNK}, 3
              s_mul_i32 s{sXo}, s{sT0}, {256*1280}
              s_mul_i32 s{sWo}, s{sJ}, 384
              s_mul_i32 s{sT2}, s{sT1}, 192
              s_add_u32 s{sWo}, s{sWo}, s{sT2}
              s_mov_b32 s{sWrs}, 3072
              s_cmp_ge_u32 s{sW}, 4
              s_cselect_b32 s{sWD}, s{ptr(9)}, s{ptr(8)}
              s_cselect_b32 s{sWD+1}, s{ptr(9)+1}, s{ptr(8)+1}
              s_mov_b32 s{sWD+2}, {DM*DF*2}
              s_mul_i32 s{sNOut}, s{sT0}, {8*98304}
              s_lshl_b32 s{sT2}, s{sWo}, 4
              s_add_u32 s{sNOut}, s{sNOut}, s{sT2}
              s_add_u32 s{sNOut}, s{sNOut}, {WS_H}
              s_and_b32 s{sT2}, s{sW}, 3
              s_mul_i32 s{sT2}, s{sT2}, 3
              s_lshr_b32 s{sT3}, s{sT2}, 2
              s_branch {ld}''')
        a.label(ln)
        a(f'''s_mov_b32 s{sNK}, 4
              s_mov_b32 s{sWD+2}, 0
              s_mov_b32 s{sT2}, 0
              s_mov_b32 s{sT3}, 0''')
        a.label(ld)
        if self.opt.get('g_hit'):
            a(f's_mov_b32 s{sXo}, 0')
            a(f's_mov_b32 s{sWo}, 0')
            a(f's_mov_b32 s{sWD}, s{ptr(2)}')
            a(f's_mov_b32 s{sWD+1}, s{ptr(2)+1}')
        for ii in range(3):
            a(f'''s_add_u32 s{sT0}, s{sT2}, {ii}
                  s_lshr_b32 s{sT1}, s{sT0}, 2
                  s_and_b32 s{sT0}, s{sT0}, 3
                  s_lshl_b32 s{sT0}, s{sT0}, 4
                  s_mul_i32 s{sT0}, s{sT0}, s{sWrs}
                  s_lshl_b32 s{sT1}, s{sT1}, 6
                  s_add_u32 s{sT0}, s{sT0}, s{sT1}
                  s_add_u32 s{self.sP+ii}, s{sT0}, s{sWo}''')
        a(f'''s_mul_i32 s{sT0}, s{sW}, {32*1280}
              s_add_u32 s{sXo}, s{sXo}, s{sT0}
              s_lshl_b32 s{sWstep}, s{sWrs}, 6
              v_mul_lo_u32 v{self.vWg}, v{self.vL2}, s{sWrs}
              v_add_u32 v{self.vWg}, v{self.vWg}, v{self.vL3}''')

    def dma_list(self, buf):
        g = []
        for ii in range(4):
            g.append([f's_add_u32 m0, s{sM0x}, {buf*STAGE + ii*1024}',
                      f's_add_u32 s{sT0}, s{sXo}, {ii*10240}' if ii else 's_nop 0',
                      f'buffer_load_dwordx4 v{self.vXg + (ii & 1)}, s[{sX}:{sX+3}], s{sT0 if ii else sXo} offen lds'])
        for ii in range(3):
            g.append([f's_add_u32 m0, s{sM0w}, {buf*STAGE + ii*1024}', 's_nop 0',
                      f'buffer_load_dwordx4 v{self.vWg}, s[{sWD}:{sWD+3}], s{self.sP+ii} offen lds',
                      f's_add_u32 s{self.sP+ii}, s{self.sP+ii}, s{sWstep}'])
        g[-1].append(f's_add_u32 s{sXo}, s{sXo}, 128')
        return g

    def dma(self, buf):
        if self.opt.get('g_nodma') and self.inloop: return
        if self.opt.get('g_spread') and self.inloop:
            self.pending = self.dma_list(buf)
            return
        for grp in self.dma_list(buf):
            for i in grp: self.a(i)

    def reads(self, var, buf, kk, fs):
        a = self.a
        MT, NT = var
        F = self.F + fs * 28
        xa = (self.vXr if MT == 2 else self.vXr1) + buf * 4 + kk
        out = []
        for mt in range(MT):
            out.append(f'ds_read_b128 v[{F+4*mt}:{F+4*mt+3}], v{xa} offset:{4096*mt}')
        wa = (self.vWr if MT == 2 else self.vWr1) + buf
        for nt in range(NT):
            for j in range(2):
                r = F + 4*MT + 4*nt + 2*j
                out.append(f'ds_read_b64_tr_b16 v[{r}:{r+1}], v{wa} offset:{4096*nt + 1024*kk + 256*j}')
        return out

    def mfmas(self, var, swap, fs, first):
        MT, NT = var
        F = self.F + fs * 28
        out = []
        for mt in range(MT):
            for nt in range(NT):
                acc = self.ACC + 16 * (mt * NT + nt)
                x = f'v[{F+4*mt}:{F+4*mt+3}]'; w = f'v[{F+4*MT+4*nt}:{F+4*MT+4*nt+3}]'
                A, B = (x, w) if swap else (w, x)
                c = '0' if first else f'v[{acc}:{acc+15}]'
                out.append(f'v_mfma_f32_32x32x16_bf16 v[{acc}:{acc+15}], {A}, {B}, {c}')
        return out

    def interleave(self, mf, other):
        a = self.a
        n = len(mf); per = (len(other) + n - 1) // n if other else 0
        k = 0
        for m in mf:
            a(m)
            for o in other[k:k + per]: a(o)
            k += per
        for o in other[k:]: a(o)

    def stage_top(self, flag=False):
        a = self.a
        a('s_waitcnt vmcnt(0) lgkmcnt(0)')
        a('s_barrier')

    def tile_loop(self, var, swap, name):
        a = self.a
        nr = var[0] + 2 * var[1]
        loop = a.newlabel('L' + name)
        def stage(buf, first_stage, capture):
            self.stage_top()
            for r in self.reads(var, buf, 0, 0): a(r)
            if first_stage:
                self.after_top()
            return
        self.stage_top()
        self.after_top()
        for r in self.reads(var, 0, 0, 0): a(r)
        self.dma(1)
        def body(buf, kstart_first):
            for kk in range(3):
                rd = self.reads(var, buf, kk + 1, (kk + 1) & 1)
                a(f's_waitcnt lgkmcnt(0)')
                take = [3, 2, 2][kk] if self.opt.get('g_spread') == 1 else [4, 3, 0][kk]
                extra = ['\n'.join(g) for g in self.pending[:take]]
                self.pending = self.pending[take:]
                mixed = []
                for k in range(max(len(rd), len(extra) * 3)):
                    if k < len(rd): mixed.append(rd[k])
                    if k % 3 == 2 and k // 3 < len(extra): mixed.append(extra[k // 3])
                self.interleave(self.mfmas(var, swap, kk & 1, kstart_first and kk == 0), mixed)
        body(0, True)
        a(f's_mov_b32 s{sIt}, 0')
        a.label(loop)
        for buf in (1, 0):
            last = a.newlabel('Lgl')
            self.stage_top()
            rd = self.reads(var, buf, 0, 0)
            self.interleave(self.mfmas(var, swap, 1, False), rd)
            if buf == 1:
                skip = a.newlabel('Lgn')
                a(f's_cmp_lg_u32 s{sIt}, 4')
                a(f's_cbranch_scc1 {skip}')
                a(f's_add_u32 s{sTile}, s{sTile}, {self.NW}')
                self.decode()
                a.label(skip)
            self.dma(buf ^ 1)
            body(buf, False)
            if buf == 1:
                a(f's_cmp_eq_u32 s{sIt}, 4')
                a(f's_cbranch_scc1 {name}_done')
        a(f's_add_u32 s{sIt}, s{sIt}, 1')
        a(f's_branch {loop}')
        a.label(f'{name}_done')
        a('s_waitcnt lgkmcnt(0)')
        for m in self.mfmas(var, swap, 1, False): a(m)
        a('s_nop 7'); a('s_nop 3')
        if self.opt.get('fused'):
            l = a.newlabel('Lgreg')
            a(f's_cmp_lg_u32 s{sFlagP}, 0')
            a(f's_cbranch_scc1 {l}')
            a(f'v_and_b32 v{self.vT2}, 15, v0')
            wait_registered(a, self.opt, self.vT0, self.vT1, self.vT2, True)
            a.label(l)

    def after_top(self):
        if not self.opt.get('fused'): return
        a = self.a
        l = a.newlabel('Lgf')
        a(f'''s_cmp_eq_u32 s{sFlagP}, 0
              s_cbranch_scc1 {l}
              s_cmp_lg_u32 s{sW}, 0
              s_cbranch_scc1 {l}
              s_mov_b64 exec, 1''')
        self.lstore([f'buffer_store_dword v{self.vOne}, v{self.vZero}, s[{sWS}:{sWS+3}], s{sFlagP} offen'])
        a('s_mov_b64 exec, -1')
        a.label(l)

    def emit(self, done_label):
        a = self.a
        al = Alloc(1, 256)
        self.ACC = al(96, 2); self.F = al(56, 2)
        self.vXg = al(2); self.vWg = al()
        self.vXr = al(8); self.vXr1 = al(8); self.vWr = al(2); self.vWr1 = al(2)
        self.vL2, self.vL3 = al(), al()
        vL, vT0, vT1, vT2 = al(), al(), al(), al()
        vQK, vV, vH = al(), al(), al()
        self.vT0, self.vT1, self.vT2 = vT0, vT1, vT2
        self.vOne, self.vZero = al(), al()
        self.sP = 94
        a(f'''v_and_b32 v{vL}, 63, v0
              v_mov_b32 v{self.vOne}, 1
              v_mov_b32 v{self.vZero}, 0
              s_mov_b32 s{sX}, s{ptr(0)}
              s_mov_b32 s{sX+1}, s{ptr(0)+1}
              s_mov_b32 s{sX+2}, {S*DM*2}
              s_mov_b32 s{sX+3}, 0x20000
              s_mov_b32 s{sWD}, s{ptr(2)}
              s_mov_b32 s{sWD+1}, s{ptr(2)+1}
              s_mov_b32 s{sWD+3}, 0x20000
              s_mov_b32 s{sWrs}, 0
              s_mov_b32 s{sWo}, 0
              s_mov_b32 s{sXo}, 0
              s_mov_b32 s{sNOut}, 0
              s_mov_b32 s{sFlagP}, 0
              s_mov_b32 s{sC1}, {hex(f32bits(-2 * math.sqrt(2 / math.pi) * math.log2(math.e)))}
              s_mov_b32 s{sC2}, {hex(f32bits(-2 * math.sqrt(2 / math.pi) * math.log2(math.e) * 0.044715))}
              s_lshl_b32 s{sM0x}, s{sW}, 12
              s_mul_i32 s{sM0w}, s{sW}, 3072
              s_add_u32 s{sM0w}, s{sM0w}, {WB_OFF}
              s_sub_u32 s{sTile}, s{sC}, {self.rank0}
              v_lshrrev_b32 v{self.vL2}, 2, v{vL}
              v_and_b32 v{self.vL3}, 3, v{vL}
              v_lshlrev_b32 v{self.vL3}, 4, v{self.vL3}''')
        for par in range(2):
            a(f'''v_lshrrev_b32 v{vT0}, 4, v{vL}
                  v_add_u32 v{vT0}, {4*par}, v{vT0}
                  v_and_b32 v{vT1}, 7, v{vL}
                  v_xor_b32 v{vT0}, v{vT0}, v{vT1}
                  v_lshlrev_b32 v{vT0}, 4, v{vT0}
                  v_lshrrev_b32 v{vT1}, 3, v{vL}
                  v_mul_u32_u24 v{vT1}, 1280, v{vT1}
                  v_add_u32 v{self.vXg+par}, v{vT0}, v{vT1}''')
        a(f'''v_and_b32 v{vT0}, 31, v{vL}
              v_bfe_u32 v{vT1}, v{vL}, 1, 3
              v_lshrrev_b32 v{vT2}, 5, v{vL}
              v_xor_b32 v{vT1}, v{vT1}, v{vT2}
              s_lshr_b32 s{sT0}, s{sW}, 1
              s_lshl_b32 s{sT0}, s{sT0}, 13
              s_lshl_b32 s{sT1}, s{sW}, 12''')
        for kk in range(4):
            a(f'''v_xor_b32 v{vT2}, {2*kk}, v{vT1}
                  v_lshlrev_b32 v{vT2}, 4, v{vT2}
                  v_lshl_add_u32 v{vT2}, v{vT0}, 7, v{vT2}
                  v_add_u32 v{self.vXr+kk}, s{sT0}, v{vT2}
                  v_add_u32 v{self.vXr1+kk}, s{sT1}, v{vT2}
                  v_add_u32 v{self.vXr+4+kk}, {STAGE}, v{self.vXr+kk}
                  v_add_u32 v{self.vXr1+4+kk}, {STAGE}, v{self.vXr1+kk}''')
        a(f'''v_lshrrev_b32 v{vT0}, 5, v{vL}
              v_lshlrev_b32 v{vT0}, 9, v{vT0}
              v_bfe_u32 v{vT1}, v{vL}, 2, 2
              v_lshl_add_u32 v{vT0}, v{vT1}, 6, v{vT0}
              v_bfe_u32 v{vT1}, v{vL}, 4, 1
              v_lshl_add_u32 v{vT0}, v{vT1}, 5, v{vT0}
              v_and_b32 v{vT1}, 3, v{vL}
              v_lshl_add_u32 v{vT0}, v{vT1}, 3, v{vT0}
              v_add_u32 v{self.vWr1}, {WB_OFF}, v{vT0}
              v_add_u32 v{self.vWr1+1}, {STAGE}, v{self.vWr1}
              s_and_b32 s{sT0}, s{sW}, 1
              s_mul_i32 s{sT0}, s{sT0}, {3*4096}
              v_add_u32 v{self.vWr}, s{sT0}, v{self.vWr1}
              v_add_u32 v{self.vWr+1}, {STAGE}, v{self.vWr}''')
        a(f'''v_and_b32 v{vT0}, 15, v{vL}
              v_lshlrev_b32 v{vT0}, 4, v{vT0}
              v_lshrrev_b32 v{vT1}, 5, v{vL}
              v_lshl_add_u32 v{vT0}, v{vT1}, 8, v{vT0}
              v_bfe_u32 v{vT1}, v{vL}, 4, 1
              s_lshr_b32 s{sT0}, s{sW}, 1
              s_and_b32 s{sT1}, s{sW}, 1
              s_mul_i32 s{sT0}, s{sT0}, 24576
              v_mul_u32_u24 v{vQK}, 6144, v{vT1}
              v_add_u32 v{vQK}, v{vQK}, v{vT0}
              s_mul_i32 s{sT3}, s{sT1}, 3072
              s_add_u32 s{sT2}, s{sT0}, s{sT3}
              v_add_u32 v{vQK}, s{sT2}, v{vQK}
              v_lshl_add_u32 v{vV}, v{vT1}, 10, v{vT0}
              s_mul_i32 s{sT3}, s{sT1}, 6144
              s_add_u32 s{sT2}, s{sT0}, s{sT3}
              v_add_u32 v{vV}, s{sT2}, v{vV}
              v_mul_u32_u24 v{vH}, 49152, v{vT1}
              v_add_u32 v{vH}, v{vH}, v{vT0}
              s_mul_i32 s{sT2}, s{sW}, 98304
              v_add_u32 v{vH}, s{sT2}, v{vH}''')
        self.decode()
        self.dma(0)
        self.inloop = True
        nxt = a.newlabel('Lgnext')
        lqk, lv, lf = 'Lg_qk', 'Lg_v', 'Lg_f'
        a.label(nxt)
        a(f'''s_mov_b32 s{sKind}, s{sNK}
              s_mov_b32 s{sOut}, s{sNOut}
              s_lshl_b32 s{sNFlag}, s{sTile}, 2
              s_cmp_eq_u32 s{sKind}, 4
              s_cbranch_scc1 Lg_end
              s_cmp_eq_u32 s{sKind}, 2
              s_cbranch_scc1 {lv}
              s_cmp_eq_u32 s{sKind}, 3
              s_cbranch_scc1 {lf}''')
        def set_flag():
            a(f'''s_mul_i32 s{sFlagP}, s{sJ}, 512
                  s_add_u32 s{sFlagP}, s{sFlagP}, s{sNFlag}
                  s_add_u32 s{sFlagP}, s{sFlagP}, {WS_FLAG}''')
        ACC = self.ACC
        self.tile_loop((2, 3), False, lqk)
        st = []
        for mt in range(2):
            a(f's_add_u32 s{sT0+0 if mt == 0 else sT1}, s{sOut}, {mt*12288}')
        for mt in range(2):
            for nt in range(3):
                c = ACC + 16 * (mt * 3 + nt)
                for r in range(8):
                    a(f'v_cvt_pk_bf16_f32 v{c+r}, v{c+2*r}, v{c+2*r+1}')
                for u in range(2):
                    st.append(f'buffer_store_dwordx4 v[{c+4*u}:{c+4*u+3}], v{vQK}, s[{sWS}:{sWS+3}], s{sT1 if mt else sT0} offen offset:{1024*nt + 512*u}')
        if not self.opt.get('g_nostore'): self.lstore(st, self.opt.get('g_nt'))
        set_flag()
        a(f's_branch {nxt}')
        a.label(lv)
        self.tile_loop((2, 3), True, lv + 'x')
        st = []
        for mt in range(2):
            a(f's_add_u32 s{sT1 if mt else sT0}, s{sOut}, {mt*12288}')
        for mt in range(2):
            for nt in range(3):
                c = ACC + 16 * (mt * 3 + nt)
                a(f'''v_cvt_pk_bf16_f32 v{c}, v{c}, v{c+1}
                      v_cvt_pk_bf16_f32 v{c+1}, v{c+2}, v{c+3}
                      v_cvt_pk_bf16_f32 v{c+2}, v{c+8}, v{c+9}
                      v_cvt_pk_bf16_f32 v{c+3}, v{c+10}, v{c+11}
                      v_cvt_pk_bf16_f32 v{c+4}, v{c+4}, v{c+5}
                      v_cvt_pk_bf16_f32 v{c+5}, v{c+6}, v{c+7}
                      v_cvt_pk_bf16_f32 v{c+6}, v{c+12}, v{c+13}
                      v_cvt_pk_bf16_f32 v{c+7}, v{c+14}, v{c+15}''')
                for u in range(2):
                    off = 2048*nt + 512*u
                    so = sT1 if mt else sT0
                    if off >= 4096:
                        st.append(f's_add_u32 s{sT2}, s{so}, 4096'); so = sT2; off -= 4096
                    st.append(f'buffer_store_dwordx4 v[{c+4*u}:{c+4*u+3}], v{vV}, s[{sWS}:{sWS+3}], s{so} offen offset:{off}')
        if not self.opt.get('g_nostore'): self.lstore(st, self.opt.get('g_nt'))
        set_flag()
        a(f's_branch {nxt}')
        a.label(lf)
        self.tile_loop((1, 6), False, lf + 'x')
        st = []
        T = self.F
        for nt in range(3):
            g, u = ACC + 16 * nt, ACC + 16 * (3 + nt)
            for r0 in range(0, 16, 8):
                R = range(r0, r0 + 8)
                for r in R: a(f'v_mul_f32 v{T+r-r0}, v{g+r}, v{g+r}')
                for r in R: a(f'v_mov_b32 v{T+8+r-r0}, s{sC1}')
                for r in R: a(f'v_fma_f32 v{T+r-r0}, v{T+r-r0}, s{sC2}, v{T+8+r-r0}')
                for r in R: a(f'v_mul_f32 v{T+r-r0}, v{T+r-r0}, v{g+r}')
                for r in R: a(f'v_exp_f32 v{T+r-r0}, v{T+r-r0}')
                for r in R: a(f'v_mul_f32 v{g+r}, v{g+r}, v{u+r}')
                for r in R: a(f'v_add_f32 v{T+r-r0}, 1.0, v{T+r-r0}')
                for r in R: a(f'v_rcp_f32 v{T+r-r0}, v{T+r-r0}')
                a('s_nop 0')
                for r in R: a(f'v_mul_f32 v{g+r}, v{g+r}, v{T+r-r0}')
            for r in range(8):
                a(f'v_cvt_pk_bf16_f32 v{g+r}, v{g+2*r}, v{g+2*r+1}')
            for uu in range(2):
                st.append(f'buffer_store_dwordx4 v[{g+4*uu}:{g+4*uu+3}], v{vH}, s[{sWS}:{sWS+3}], s{sOut} offen offset:{1024*nt + 512*uu}')
        if not self.opt.get('g_nostore'): self.lstore(st, self.opt.get('g_nt'))
        set_flag()
        a(f's_branch {nxt}')
        a.label('Lg_end')
        self.stage_top()
        self.after_top()
        a(f's_branch {done_label}')
        self.emit_tail()
```

```python
S, DM, NH, DH, NSEG, SEG, DF = 2048, 640, 32, 192, 64, 32, 1536
WS_Q  = 0x0000000
WS_K  = 0x1800000
WS_VT = 0x3000000
WS_O  = 0x4800000
WS_H  = 0x6000000
WS_RA = 0x6600000
RA_SLOT = 8 * 10240
WS_RB = WS_RA + 4 * RA_SLOT
RB_SLOT = 32 * 9216
WS_AB_END = WS_RB + 4 * RB_SLOT
WS_RC = 0xA000000
RC_SLOT = 40 * 16384
import os
RC_PAGES = int(os.environ.get('RC_PAGES', 5))
RC_N = 3 * RC_PAGES
RC_PROBE = 0x1F0000
WS_P  = 0x7C00000
WS_FLAG = 0x9100000
WS_PFLAG = WS_FLAG + 0x1000
WS_OFLAG = WS_FLAG + 0x20000
WS_G = WS_FLAG + 0x40000
WS_POL = WS_FLAG + 0x50000
WS_DBG = 0x9200000
WS_SIZE = 268435456
KNAME = 'gated_mix__memory_aug_recurrent_mem_tr__glu_gated_geglu__prompt'

def pi16(p):
    return (p & ~0xC) | ((p & 4) << 1) | ((p & 8) >> 1)
```

```python
import sys, json
from asmlib import *
from layout import *
import chain, gemm1, phase3

HEADER = open('cdna_kernels/%s.s.ref' % KNAME).read().split('; Override launch')[0]

def kd(name, vgpr=256, sgpr=102):
    return f'''.section .rodata,"a"
.p2align 6
.amdhsa_kernel {name}
  .amdhsa_next_free_vgpr {vgpr}
  .amdhsa_next_free_sgpr {sgpr}
  .amdhsa_accum_offset {min(256, (vgpr + 3) // 4 * 4)}
  .amdhsa_group_segment_fixed_size 0
  .amdhsa_kernarg_size 120
  .amdhsa_user_sgpr_count 2
  .amdhsa_user_sgpr_kernarg_segment_ptr 1
  .amdhsa_system_sgpr_workgroup_id_x 1
  .amdhsa_float_denorm_mode_32 3
.end_amdhsa_kernel
.text
'''

def kernel_begin(a, name):
    a(f'''.text
          .globl {name}
          .p2align 8
          .type {name},@function''')
    a.label(name)

def build(opt):
    a = Asm()
    launches = []
    body = Asm()
    if 'gemm1' in opt['kernels']:
        name = 'gemm1_kernel'
        kernel_begin(body, name)
        chain.emit_entry(body, opt, 'Lg1_exit')
        nw = opt.get('g1_workers', 32)
        if nw == 16:
            body(f'''s_cmp_lt_u32 s{chain.sC}, 16
                     s_cbranch_scc1 Lg1_exit''')
        gemm1.Gemm1(body, opt, nw, 32 - nw).emit('Lg1_exit')
        body.label('Lg1_exit')
        body('s_endpgm')
        body.lines.append(kd(name))
        launches.append((name, 256, 512, gemm1.GEMM1_LDS))
    if 'chain' in opt['kernels']:
        name = 'chain_kernel'
        kernel_begin(body, name)
        chain.emit_entry(body, opt, 'Lchain_exit')
        body(f'''s_cmp_ge_u32 s{chain.sC}, 16
                 s_cbranch_scc1 Lchain_exit''')
        chain.emit_chain_body(body, opt)
        body.label('Lchain_exit')
        body('s_endpgm')
        body.lines.append(kd(name))
        launches.append((name, 256, 512, 102400))
    if 'phase3' in opt['kernels']:
        name = 'phase3_kernel'
        kernel_begin(body, name)
        chain.emit_entry(body, opt, 'Lp3_exit')
        nw = opt.get('p3_workers', 32)
        if nw == 16:
            body(f'''s_cmp_lt_u32 s{chain.sC}, 16
                     s_cbranch_scc1 Lp3_exit''')
        phase3.Phase3(body, opt, nw, 32 - nw).emit('Lp3_exit')
        body.label('Lp3_exit')
        body('s_endpgm')
        body.lines.append(kd(name))
        launches.append((name, 256, 512, 102400))
    if 'fused' in opt['kernels']:
        opt['fused'] = 1
        name = KNAME + '_kernel'
        kernel_begin(body, name)
        chain.emit_entry(body, opt, 'Lexit')
        body(f'''s_cmp_ge_u32 s{chain.sC}, 16
                 s_cbranch_scc1 Lworker''')
        chain.emit_chain_body(body, opt)
        body.label('Lworker')
        gemm1.Gemm1(body, opt, 16, 16).emit('Lphase3')
        body.label('Lphase3')
        if opt.get('prof'):
            body('s_memrealtime s[90:91]'); body('s_waitcnt lgkmcnt(0)')
            phase3.Phase3(body, opt, 16, 16).emit('Lwdone')
            body.label('Lwdone')
            body('s_mov_b64 s[84:85], s[90:91]'); body('s_mov_b64 s[86:87], s[92:93]'); body('s_mov_b64 s[90:91], s[88:89]')
            if opt.get('prof2'):
                body('s_waitcnt lgkmcnt(0)'); body('s_mov_b64 s[84:85], s[94:95]'); body('s_mov_b64 s[86:87], s[96:97]'); body('s_mov_b64 s[90:91], s[98:99]')
            chain.Chain(body, opt).finish()
        else:
            phase3.Phase3(body, opt, 16, 16).emit('Lexit')
        body.label('Lexit')
        body('s_endpgm')
        body.lines.append(kd(name))
        launches.append((name, 256, 512, gemm1.GEMM1_LDS + 4096))
    out = HEADER
    for (n, g, b, l) in launches:
        out += (f'; @launch grid=({g},1,1) block=({b},1,1) lds={l}\n' if opt.get('single') else f'; @launch kernel={n} grid=({g},1,1) block=({b},1,1) lds={l}\n')
    out += '.amdgcn_target "amdgcn-amd-amdhsa--gfx950"\n'
    out += body.text()
    return out

if __name__ == '__main__':
    opt = json.loads(sys.argv[2]) if len(sys.argv) > 2 else {}
    opt.setdefault('kernels', ['chain'])
    open(sys.argv[1], 'w').write(build(opt))
```

```python
from asmlib import *
from layout import *
import math

LM, LO, LDUMMY, LQK, LW5, LR, LOX, LBUF = 0, 10240, 13312, 16384, 22528, 34816, 35840, 38912
LBUF_SZ = 27648
LK_OFF, LV_OFF, LQ_OFF = 0, 12288, 24576
CHAIN_LDS = LBUF + 2 * LBUF_SZ
SWEEP_LDS = 139264

sWS, sDBG, sT = 4, 8, 12
sPTR = 16
def ptr(i): return sPTR + 2 * i
sW, sJ, sC, sH, sG, sMIX, sBUD, sSTEP = 48, 49, 50, 51, 52, 53, 54, 55
sA_N, sA_R, sB_C, sB_R, sC_W, sC_RS, sC_RD, sO_C = 56, 57, 58, 59, 60, 61, 62, 63
sKQ, sVX, sLB, sRED, sSCL, sT0, sT1, sT2, sT3 = 64, 65, 66, 67, 68, 69, 76, 77, 78
sMN8, sML32, sMH8 = 70, 72, 74
sSELLO, sSELHI = 80, 81
sCI = 46
sMA = 46
sST = 82
sPADD, sPOR, sA_P, sCS, sPOL, sC_W2 = 94, 95, 96, 97, 79, 61
NSTAMP = 6

def srd(a, base_ptr, nbytes):
    a(f'''s_mov_b32 s{sT}, s{base_ptr}
          s_mov_b32 s{sT+1}, s{base_ptr+1}
          s_mov_b32 s{sT+2}, {nbytes}
          s_mov_b32 s{sT+3}, 0x20000''')

class Chain:
    def __init__(self, a, opt):
        self.a = a
        self.opt = opt
        self.tail = []
        self.tails = []
        self.nstamp = 0
        self.wnt = ' nt' if opt.get('w_nt') else ''

    def lstore(self, insts):
        a = self.a
        slow, back = a.newlabel('Lslow'), a.newlabel('Lback')
        a(f's_cmp_lg_u32 s{sMIX}, 0')
        a(f's_cbranch_scc1 {slow}')
        for i in insts: a(i)
        a.label(back)
        self.tail.append((slow, [i + ' sc1' if i.startswith('buffer_') else i for i in insts], back))

    def emit_tail(self):
        a = self.a
        for slow, insts, back in self.tail:
            a.label(slow)
            for i in insts: a(i)
            a(f's_branch {back}')
        self.tail = []
        for t in self.tails: t()
        self.tails = []

    def stamp(self, k, ahead=0):
        if not self.opt.get('stamps'): return
        a = self.a
        l = a.newlabel('Lst')
        a(f'''s_cmp_lg_u32 s{sSTEP}, {self.opt['stamps'] + ahead}
              s_cbranch_scc1 {l}
              {self.opt.get('clock', 's_memtime')} s[{sST+2*k}:{sST+2*k+1}]
              s_waitcnt lgkmcnt(0)''')
        a.label(l)

    def mark(self, k):
        if not self.opt.get('prof'): return
        self.a(f's_memrealtime s[{sST+2*k}:{sST+2*k+1}]')
        self.a('s_waitcnt lgkmcnt(0)')

    def dump_stamps(self):
        self.mark(3)
        if not (self.opt.get('stamps') or self.opt.get('prof')): return
        a = self.a
        a(f'''s_lshl_b32 s{sT0}, s{sJ}, 5
              s_add_u32 s{sT0}, s{sT0}, s{sC}
              s_lshl_b32 s{sT0}, s{sT0}, 3
              s_add_u32 s{sT0}, s{sT0}, s{sW}
              s_lshl_b32 s{sT0}, s{sT0}, 6
              s_add_u32 s{sT0}, s{sT0}, {WS_DBG + 0x100000}
              s_mov_b64 exec, -1
              v_mov_b32 v2, 0''')
        for k in range(NSTAMP):
            a(f'v_mov_b32 v3, s{sST+2*k}')
            a(f'buffer_store_dword v3, v2, s[{sWS}:{sWS+3}], s{sT0} offen offset:{4*k}')
        for k in range(4):
            a(f'v_mov_b32 v3, s{98+k}')
            a(f'buffer_store_dword v3, v2, s[{sWS}:{sWS+3}], s{sT0} offen offset:{4*(8+k)}')
        a('s_waitcnt vmcnt(0)')

    def retry(self, label, kind=None):
        a = self.a
        if kind is not None and self.opt.get('stamps'):
            a(f's_add_u32 s{98+kind}, s{98+kind}, 1')
        a(f'''s_sub_u32 s{sBUD}, s{sBUD}, 1
              s_cbranch_scc0 {label}
              s_mov_b32 s{sBUD}, 0''')

    def slots(self):
        a = self.a
        a(f'''s_and_b32 s{sT0}, s{sSTEP}, 3
              s_add_u32 s{sT1}, s{sSTEP}, 1
              s_and_b32 s{sT1}, s{sT1}, 3
              s_xor_b32 s{sT2}, s{sT0}, 2
              s_lshr_b32 s{sT3}, s{sJ}, 1
              s_mul_i32 s{sT3}, s{sT3}, 10240
              s_add_u32 s{sT3}, s{sT3}, {WS_RA}
              s_mul_i32 s{sA_N}, s{sT1}, {RA_SLOT}
              s_add_u32 s{sA_N}, s{sA_N}, s{sT3}
              s_mul_i32 s{sA_R}, s{sT2}, {RA_SLOT}
              s_add_u32 s{sA_R}, s{sA_R}, s{sT3}
              s_mul_i32 s{sT3}, s{sH}, 9216
              s_add_u32 s{sT3}, s{sT3}, {WS_RB}
              s_mul_i32 s{sB_C}, s{sT0}, {RB_SLOT}
              s_add_u32 s{sB_C}, s{sB_C}, s{sT3}
              s_mul_i32 s{sB_R}, s{sT2}, {RB_SLOT}
              s_add_u32 s{sB_R}, s{sB_R}, s{sT3}
              s_and_b32 s{sT0}, s{sCS}, 255
              s_mul_i32 s{sT1}, s{sT0}, 86
              s_lshr_b32 s{sT1}, s{sT1}, 8
              s_mul_i32 s{sC_RD}, s{sT0}, {RC_SLOT}
              s_mul_i32 s{sT2}, s{sT1}, {0x200000 - 3*RC_SLOT}
              s_add_u32 s{sC_RD}, s{sC_RD}, s{sT2}
              s_add_u32 s{sC_RD}, s{sC_RD}, {WS_RC}
              s_lshr_b32 s{sT1}, s{sPOL}, s{sT1}
              s_and_b32 s{sT1}, s{sT1}, 1
              s_lshl_b32 s{sT1}, s{sT1}, 13
              s_add_u32 s{sC_RD}, s{sC_RD}, s{sT1}
              s_lshl_b32 s{sT3}, s{sH}, 8
              s_add_u32 s{sC_W}, s{sC_RD}, s{sT3}
              s_lshl_b32 s{sPOR}, s{sCS}, 8
              s_and_b32 s{sPOR}, s{sPOR}, 0x10000
              s_xor_b32 s{sPADD}, s{sPOR}, 0x10000
              s_mul_i32 s{sO_C}, s{sSTEP}, {32*12288}
              s_add_u32 s{sO_C}, s{sO_C}, {WS_O}''')

    def next_step(self):
        a = self.a
        a(f'''s_add_u32 s{sSTEP}, s{sSTEP}, 1
              s_add_u32 s{sCS}, s{sCS}, 1
              s_and_b32 s{sT0}, s{sCS}, 255
              s_xor_b32 s{sT1}, s{sCS}, {256 + RC_N}
              s_cmp_eq_u32 s{sT0}, {RC_N}
              s_cselect_b32 s{sCS}, s{sT1}, s{sCS}''')
        self.slots()

    def load_pair(self, WA, WB, nks, voff, rowstride, tmp):
        a = self.a
        items = []
        for ks in range(nks):
            for R in range(8):
                hi, p = R >> 2, R & 3
                b, tt = p & 1, p >> 1
                d = 64 * ks + 32 * hi + 8 * b + 2 * tt
                items.append((WA + ks * 8 + R, WB + ks * 8 + R, d))
        def issue(it):
            ra, rb, d = it
            a(f's_mov_b32 s{sT0}, {d * rowstride}')
            a(f'buffer_load_dword v{ra}, v{voff}, s[{sT}:{sT+3}], s{sT0} offen' + self.wnt)
            a(f's_mov_b32 s{sT1}, {(d + 1) * rowstride}')
            a(f'buffer_load_dword v{rb}, v{voff}, s[{sT}:{sT+3}], s{sT1} offen' + self.wnt)
        def fix(it):
            ra, rb, d = it
            a(f'v_perm_b32 v{tmp}, v{rb}, v{ra}, s{sSELLO}')
            a(f'v_perm_b32 v{rb}, v{rb}, v{ra}, s{sSELHI}')
            a(f'v_mov_b32 v{ra}, v{tmp}')
        groups = [items[i:i + 8] for i in range(0, len(items), 8)]
        groups = [items[i:i + 4] for i in range(0, len(items), 4)]
        depth = 7
        for gi in range(min(depth, len(groups))):
            for it in groups[gi]: issue(it)
        for gi in range(len(groups)):
            inflight = min(len(groups), gi + depth) - gi - 1
            a(f's_waitcnt vmcnt({8 * inflight})')
            for it in groups[gi]: fix(it)
            if gi + depth < len(groups):
                for it in groups[gi + depth]: issue(it)

    def load_single(self, W, nks, voff, vsel, rowstride, tmps):
        a = self.a
        items = []
        for ks in range(nks):
            for R in range(8):
                hi, p = R >> 2, R & 3
                b, tt = p & 1, p >> 1
                items.append((W + ks * 8 + R, 64 * ks + 32 * hi + 8 * b + 2 * tt))
        groups = [items[i:i + 4] for i in range(0, len(items), 4)]
        depth = 7
        def issue(gi):
            for k, (r, d) in enumerate(groups[gi]):
                t = tmps + (gi % depth) * 4 + k
                a(f's_mov_b32 s{sT0}, {d * rowstride}')
                a(f'buffer_load_dword v{r}, v{voff}, s[{sT}:{sT+3}], s{sT0} offen' + self.wnt)
                a(f's_mov_b32 s{sT1}, {(d + 1) * rowstride}')
                a(f'buffer_load_dword v{t}, v{voff}, s[{sT}:{sT+3}], s{sT1} offen' + self.wnt)
        for gi in range(min(depth, len(groups))): issue(gi)
        for gi in range(len(groups)):
            inflight = min(len(groups), gi + depth) - gi - 1
            a(f's_waitcnt vmcnt({8 * inflight})')
            for k, (r, d) in enumerate(groups[gi]):
                t = tmps + (gi % depth) * 4 + k
                a(f'v_perm_b32 v{r}, v{t}, v{r}, v{vsel}')
            if gi + depth < len(groups): issue(gi + depth)

    def lanes(self, al):
        a = self.a
        self.vL, self.vN, self.vQ = al(), al(), al()
        self.vT0, self.vT1, self.vT2 = al(), al(), al()
        self.vMask = 0
        a(f'''v_and_b32 v{self.vL}, 63, v0
              v_and_b32 v{self.vN}, 15, v0
              v_bfe_u32 v{self.vQ}, v0, 4, 2
              v_mov_b32 v0, 0xfffe0000''')

    def frag_addr(self, dst):
        a = self.a
        a(f'''v_lshlrev_b32 v{dst}, 8, v{self.vQ}
              v_and_b32 v{self.vT0}, 1, v{self.vN}
              v_lshl_add_u32 v{dst}, v{self.vT0}, 7, v{dst}
              v_lshrrev_b32 v{self.vT0}, 1, v{self.vN}
              v_lshl_add_u32 v{dst}, v{self.vT0}, 4, v{dst}''')

    def idx_reg(self, dst):
        a = self.a
        a(f'''v_and_b32 v{self.vT0}, 1, v{self.vN}
              v_cmp_eq_u32 vcc, 1, v{self.vT0}
              v_mov_b32 v{dst}, 0x44444444
              v_mov_b32 v{self.vT0}, 0xeeeeeeee
              s_nop 1
              v_cndmask_b32 v{dst}, v{dst}, v{self.vT0}, vcc''')

    def wrow_lane(self, dst, rowstride):
        a = self.a
        a(f'''v_lshrrev_b32 v{self.vT0}, 1, v{self.vQ}
              v_lshlrev_b32 v{self.vT0}, 4, v{self.vT0}
              v_and_b32 v{self.vT1}, 1, v{self.vQ}
              v_lshl_add_u32 v{self.vT0}, v{self.vT1}, 2, v{self.vT0}
              s_mov_b32 s{sT0}, {rowstride}
              v_mul_lo_u32 v{dst}, v{self.vT0}, s{sT0}''')

    def wait_all_registered(self):
        a = self.a
        a('s_barrier')
        w = a.newlabel('Lp0')
        a(f's_cmp_lg_u32 s{sW}, 0')
        a(f's_cbranch_scc1 {w}')
        wait_registered(a, self.opt, self.vT0, self.vT1, self.vL, True)
        a(f'''v_readlane_b32 s{sPOL}, v{self.vT0}, 34
              s_lshl_b32 s{sPOL}, s{sPOL}, 1
              s_or_b32 s{sPOL}, s{sPOL}, s{sMIX}
              v_mov_b32 v{self.vT0}, s{sPOL}
              v_mov_b32 v{self.vT1}, {LR + 64}
              ds_write_b32 v{self.vT1}, v{self.vT0}
              s_waitcnt lgkmcnt(0)''')
        a.label(w)
        a(f'''s_barrier
              v_mov_b32 v{self.vT1}, {LR + 64}
              ds_read_b32 v{self.vT0}, v{self.vT1}
              s_waitcnt lgkmcnt(0)
              v_readfirstlane_b32 s{sPOL}, v{self.vT0}
              s_and_b32 s{sMIX}, s{sPOL}, 1
              s_lshr_b32 s{sPOL}, s{sPOL}, 1''')
        if self.opt.get('pol') is not None: a(f"s_xor_b32 s{sPOL}, s{sPOL}, {self.opt['pol']}")
        self.slots()

    def wait_tiles(self, seg, first, nflags):
        if not self.opt.get('fused'): return
        a = self.a
        lp, ok, skip = a.newlabel('Lwt'), a.newlabel('Lwtok'), a.newlabel('Lwts')
        T0, T1 = self.vT0, self.vT1
        a(f'''s_and_b32 s{sT0}, s{seg}, 7
              s_cbranch_scc1 {skip}
              s_lshr_b32 s{sT0}, s{seg}, 3
              s_mul_i32 s{sT0}, s{sT0}, 48
              s_lshl_b32 s{sT1}, s{sJ}, 9
              s_add_u32 s{sT0}, s{sT0}, s{sT1}
              s_and_b32 s{sT1}, s{sH}, 3
              s_lshl_b32 s{sT1}, s{sT1}, 2
              s_add_u32 s{sT0}, s{sT0}, s{sT1}
              s_add_u32 s{sT0}, s{sT0}, {WS_FLAG + 16*first}
              v_lshlrev_b32 v{T1}, 4, v{self.vL}
              s_mov_b64 exec, {(1 << nflags) - 1}''')
        a.label(lp)
        a(f'''buffer_load_dword v{T0}, v{T1}, s[{sWS}:{sWS+3}], s{sT0} offen sc1
              s_waitcnt vmcnt(0)
              v_cmp_eq_u32 vcc, 0, v{T0}
              s_cbranch_vccz {ok}
              s_sleep 2''')
        self.retry(lp)
        a.label(ok)
        a('s_mov_b64 exec, -1')
        a.label(skip)

    def o_flag(self, back):
        if not self.opt.get('fused'): return
        a = self.a
        if self.opt.get('no_oflag'): return
        a(f'''s_lshl_b32 s{sT0}, s{sJ}, 4
              s_add_u32 s{sT0}, s{sT0}, s{sC}
              s_lshl_b32 s{sT0}, s{sT0}, 7
              s_add_u32 s{sT0}, s{sT0}, {WS_OFLAG}
              s_add_u32 s{sT1}, s{sSTEP}, {1 - back}
              v_mov_b32 v{self.vT0}, s{sT1}
              v_mov_b32 v{self.vT1}, 0
              s_mov_b64 exec, 1''')
        a(f'buffer_store_dword v{self.vT0}, v{self.vT1}, s[{sWS}:{sWS+3}], s{sT0} offen sc1')
        a('s_mov_b64 exec, -1')

    def poll2(self, vOff, soff, lds, sets, kind, gap):
        a = self.a
        t, t2 = self.vT0, self.vT1
        n = len(sets)
        def issue(R):
            a(f'''buffer_load_dwordx4 v[{R}:{R+3}], v{vOff}, s[{sWS}:{sWS+3}], s{soff} offen sc1
                  buffer_load_dwordx4 v[{R+4}:{R+7}], v{vOff}, s[{sWS}:{sWS+3}], s{soff} offen offset:1024 sc1''')
        def check(R, br):
            a(f'''ds_write_b128 v{vOff}, v[{R}:{R+3}] offset:{lds}
                  ds_write_b128 v{vOff}, v[{R+4}:{R+7}] offset:{lds+1024}
                  v_max3_u32 v{t}, v{R}, v{R+1}, v{R+2}
                  v_max3_u32 v{t2}, v{R+3}, v{R+4}, v{R+5}
                  v_max3_u32 v{t}, v{t}, v{R+6}, v{R+7}
                  v_max_u32 v{t}, v{t}, v{t2}
                  v_cmp_eq_u32 vcc, -1, v{t}
                  {br}''')
        lp, ok = a.newlabel('Lp'), a.newlabel('Lpok')
        for k in range(n):
            issue(sets[k])
            if gap and k < n - 1: a(f's_sleep {gap}')
        a(f's_waitcnt vmcnt({2 * (n - 1)})')
        if kind == 0 and self.opt.get('fine'): self.stamp(3)
        check(sets[0], f's_cbranch_vccnz {lp}')
        a.label(ok)
        def tail():
            a.label(lp)
            for k in range(n):
                if self.opt.get('stamps'): a(f's_add_u32 s{98+kind}, s{98+kind}, 1')
                issue(sets[k])
                a(f's_waitcnt vmcnt({2 * (n - 1)})')
                check(sets[(k + 1) % n], f's_cbranch_vccz {ok}')
            self.retry(lp)
            a(f's_branch {ok}')
        self.tails.append(tail)

    def a_poll(self, vAoff, sets, first=False):
        a = self.a
        if first:
            a(f's_lshr_b32 s{sA_P}, s{sJ}, 1')
            a(f's_mul_i32 s{sA_P}, s{sA_P}, 10240')
            a(f's_add_u32 s{sA_P}, s{sA_P}, {WS_RA}')
        else:
            a(f's_mov_b32 s{sA_P}, s{sA_N}')
            self.next_step()
        a('s_barrier')
        if self.opt.get('a_first'): a(f"s_sleep {self.opt['a_first']}")
        self.poll2(vAoff, sA_P, LM, sets[:self.opt.get('a_depth', 1)], 2, self.opt.get('a_gap', 0))
        a('s_waitcnt lgkmcnt(0)')
        if not first: self.stamp(4, 1)
        a('s_barrier')

    def mem0_load(self, vAoff, R):
        a = self.a
        srd(a, ptr(1), 10240)
        T0, T1 = self.vT0, self.vT1
        a(f'''v_bfe_u32 v{T0}, v{vAoff}, 4, 3
              v_mul_u32_u24 v{T0}, 1280, v{T0}
              v_lshrrev_b32 v{T1}, 7, v{vAoff}
              v_lshl_add_u32 v{T0}, v{T1}, 4, v{T0}
              buffer_load_dwordx4 v[{R}:{R+3}], v{T0}, s[{sT}:{sT+3}], 0 offen
              buffer_load_dwordx4 v[{R+4}:{R+7}], v{T0}, s[{sT}:{sT+3}], 0 offen offset:128
              s_waitcnt vmcnt(0)
              ds_write_b128 v{vAoff}, v[{R}:{R+3}] offset:{LM}
              ds_write_b128 v{vAoff}, v[{R+4}:{R+7}] offset:{LM+1024}
              s_waitcnt lgkmcnt(0)''')

    def a_off(self, dst):
        a = self.a
        a(f'''s_sub_u32 s{sT0}, s{sW}, 3
              s_lshl_b32 s{sT0}, s{sT0}, 11
              v_lshlrev_b32 v{dst}, 4, v{self.vL}
              v_add_u32 v{dst}, s{sT0}, v{dst}''')

    def dma_seg_regs(self, seg_expr_sgpr):
        a = self.a
        sg = seg_expr_sgpr
        a(f'''s_lshl_b32 s{sT0}, s{sH}, 6
              s_add_u32 s{sT0}, s{sT0}, s{sg}
              s_mul_i32 s{sKQ}, s{sT0}, 12288
              s_add_u32 s{sVX}, s{sKQ}, {WS_VT}
              s_and_b32 s{sT0}, s{sg}, 1
              s_mul_i32 s{sLB}, s{sT0}, {LBUF_SZ}
              s_add_u32 s{sLB}, s{sLB}, {LBUF}''')

    def dma12(self, v, base, lds):
        a = self.a
        if not self.opt.get('rot'):
            for grp in range(3):
                a(f's_add_u32 m0, s{sLB}, {lds + grp*4096}')
                a(f's_add_u32 s{sT1}, s{sKQ}, {base + grp*4096}')
                for t in range(4):
                    a(f'buffer_load_dwordx4 v{v}, s[{sWS}:{sWS+3}], s{sT1} offen offset:{1024*t} sc1 lds')
            return
        for k in range(4):
            a(f'''s_add_u32 s{sT2}, s{sG}, {k}
                  s_and_b32 s{sT2}, s{sT2}, 3
                  s_mul_i32 s{sT2}, s{sT2}, 3072
                  s_add_u32 s{sT1}, s{sLB}, s{sT2}
                  s_add_u32 m0, s{sT1}, {lds}
                  s_add_u32 s{sT1}, s{sKQ}, s{sT2}
                  s_add_u32 s{sT1}, s{sT1}, {base}''')
            for t in range(3):
                a(f'buffer_load_dwordx4 v{v}, s[{sWS}:{sWS+3}], s{sT1} offen offset:{1024*t} sc1 lds')

    def dma_kq(self, vK, vQx):
        a = self.a
        for p in range(3):
            a(f's_add_u32 m0, s{sLB}, {LQ_OFF + p*1024}')
            a(f's_add_u32 s{sT1}, s{sKQ}, {WS_Q + p*2048}')
            a(f'buffer_load_dwordx4 v{vQx}, s[{sWS}:{sWS+3}], s{sT1} offen sc1 lds')
        self.dma12(vK, WS_K, LK_OFF)

    def dma_v(self, vV):
        self.dma12(vV, WS_VT, LV_OFF)

    def wo_stage(self, pairs, vFrag, vIdx, F, vCoff, RR, skip):
        a = self.a
        for ks in range(3):
            a(f'ds_read_b128 v[{F+4*ks}:{F+4*ks+3}], v{vFrag} offset:{LO + 1024*ks}')
        a(f'v_lshlrev_b32 v{self.vT0}, 3, v{self.vQ}')
        a(f'ds_read_b64 v[{RR}:{RR+1}], v{self.vT0} offset:{LR}')
        a(f's_cmp_eq_u32 s{sSTEP}, 63')
        a(f's_cbranch_scc1 {skip}')
        for ks in range(3):
            a(f's_waitcnt lgkmcnt({3-ks})')
            for (WA, WB, TA, TB, coff) in pairs:
                a(f'v_smfmac_f32_16x16x64_bf16 v[{TA}:{TA+3}], v[{F+4*ks}:{F+4*ks+3}], v[{WA+8*ks}:{WA+8*ks+7}], v{vIdx}')
                a(f'v_smfmac_f32_16x16x64_bf16 v[{TB}:{TB+3}], v[{F+4*ks}:{F+4*ks+3}], v[{WB+8*ks}:{WB+8*ks+7}], v{vIdx}')
        a('s_waitcnt lgkmcnt(0)')
        a('s_nop 5')
        for (WA, WB, TA, TB, coff) in pairs:
            self.pair_epilogue(TA, TB, RR)
            a(f'buffer_store_dword v{TA}, v{vCoff}, s[{sWS}:{sWS+3}], s{sC_W} offen offset:{coff} sc1')
            a(f'buffer_store_dword v{TB}, v{vCoff}, s[{sWS}:{sWS+3}], s{sC_W} offen offset:{coff+128} sc1')

    def pair_epilogue(self, TA, TB, RR=None):
        a = self.a
        a(f"""v_add_f32 v{TA}, v{TA}, v{TA+1}
              v_add_f32 v{TA+2}, v{TA+2}, v{TA+3}
              v_add_f32 v{TB}, v{TB}, v{TB+1}
              v_add_f32 v{TB+2}, v{TB+2}, v{TB+3}""")
        if RR is not None:
            a(f"""v_mul_f32 v{TA}, v{TA}, v{RR}
                  v_mul_f32 v{TA+2}, v{TA+2}, v{RR+1}
                  v_mul_f32 v{TB}, v{TB}, v{RR}
                  v_mul_f32 v{TB+2}, v{TB+2}, v{RR+1}""")
            a(f"""v_add_u32 v{TA}, s{sPADD}, v{TA}
                  v_add_u32 v{TA+2}, s{sPADD}, v{TA+2}
                  v_and_or_b32 v{TA}, v{TA}, v{self.vMask}, s{sPOR}
                  v_and_or_b32 v{TA+2}, v{TA+2}, v{self.vMask}, s{sPOR}
                  v_cvt_pk_bf16_f32 v{TA}, v{TA}, v{TB}
                  v_cvt_pk_bf16_f32 v{TB}, v{TA+2}, v{TB+2}""")
            return
        a(f"""v_cvt_pk_bf16_f32 v{TA}, v{TA}, v{TB}
              v_cvt_pk_bf16_f32 v{TB}, v{TA+2}, v{TB+2}
              v_min_u32 v{TA}, -2, v{TA}
              v_min_u32 v{TB}, -2, v{TB}""")

    def zero(self, r, n):
        for k in range(n): self.a(f'v_mov_b32 v{r+k}, 0')

    def c_off(self, dst, pw_sgpr_or_int):
        a = self.a
        T0 = self.vT0
        a(f'''v_lshrrev_b32 v{dst}, 3, v{self.vN}
              v_lshlrev_b32 v{dst}, 14, v{dst}
              v_bfe_u32 v{T0}, v{self.vN}, 2, 1
              v_lshl_add_u32 v{dst}, v{T0}, 6, v{dst}
              v_lshl_add_u32 v{dst}, v{self.vQ}, 4, v{dst}
              v_and_b32 v{T0}, 3, v{self.vN}
              v_lshl_add_u32 v{dst}, v{T0}, 2, v{dst}
              s_mul_i32 s{sT0}, s{sG}, 163840''')
        if isinstance(pw_sgpr_or_int, int):
            a(f's_add_u32 s{sT0}, s{sT0}, {32768*pw_sgpr_or_int}')
        else:
            a(f's_lshl_b32 s{sT1}, {pw_sgpr_or_int}, 15')
            a(f's_add_u32 s{sT0}, s{sT0}, s{sT1}')
        a(f'v_add_u32 v{dst}, s{sT0}, v{dst}')

    def wo_weights(self, WA, WB, pw, vtmp, tmp):
        a = self.a
        srd(a, ptr(5), NH * DH * DM * 2)
        self.wrow_lane(vtmp, 1280)
        a(f'''s_mul_i32 s{sT0}, s{sH}, {DH*DM*2}
              s_mul_i32 s{sT1}, s{sG}, 320
              s_add_u32 s{sT0}, s{sT0}, s{sT1}''')
        if isinstance(pw, int):
            a(f's_add_u32 s{sT0}, s{sT0}, {64*pw}')
        else:
            a(f's_lshl_b32 s{sT1}, {pw}, 6')
            a(f's_add_u32 s{sT0}, s{sT0}, s{sT1}')
        a(f'''v_lshl_add_u32 v{vtmp}, v{self.vN}, 2, v{vtmp}
              v_add_u32 v{vtmp}, s{sT0}, v{vtmp}''')
        self.load_pair(WA, WB, 3, vtmp, 1280, tmp)

    def finish(self):
        self.dump_stamps()
        self.a('s_endpgm')

    def touch_weights(self):
        a = self.a
        T0, T1 = self.vT0, self.vT1
        a(f's_mov_b32 m0, {SWEEP_LDS}')
        srd(a, ptr(4), DM * NH * DH * 2)
        a(f"""s_mov_b32 s{sT0}, 12288
              v_mul_lo_u32 v{T0}, v{self.vL}, s{sT0}
              s_mul_i32 s{sT0}, s{sH}, 384
              s_mul_i32 s{sT1}, s{sG}, 96
              s_add_u32 s{sT0}, s{sT0}, s{sT1}
              s_mul_i32 s{sT1}, s{sRED}, {64*12288}
              s_add_u32 s{sT0}, s{sT0}, s{sT1}""")
        for i in range(4):
            a(f'buffer_load_dword v{T0}, s[{sT}:{sT+3}], s{sT0} offen lds')
            a(f'buffer_load_dword v{T0}, s[{sT}:{sT+3}], s{sT0} offen offset:92 lds')
            if i < 3: a(f's_add_u32 s{sT0}, s{sT0}, {192*12288}')
        srd(a, ptr(5), NH * DH * DM * 2)
        a(f"""v_mul_u32_u24 v{T1}, 1280, v{self.vL}
              s_mul_i32 s{sT0}, s{sH}, {DH*DM*2}
              s_mul_i32 s{sT1}, s{sG}, 320
              s_add_u32 s{sT0}, s{sT0}, s{sT1}
              s_mul_i32 s{sT1}, s{sRED}, {64*1280}
              s_add_u32 s{sT0}, s{sT0}, s{sT1}""")
        for off in (0, 128, 256, 316):
            a(f'buffer_load_dword v{T1}, s[{sT}:{sT+3}], s{sT0} offen offset:{off} lds')

    def c_page_init(self, R, vLin):
        a = self.a
        a(f's_add_u32 s{sT2}, s{sCI}, 4096')
        for k in range(5):
            a(f'buffer_store_dwordx4 v[{R}:{R+3}], v{vLin}, s[{sWS}:{sWS+3}], s{sT2 if k == 4 else sCI} offen offset:{1024*(k&3)} sc1')
        a(f's_add_u32 s{sCI}, s{sCI}, 0x200000')

    def init_job(self, R):
        a = self.a
        vLin = R + 20
        sU = sA_P
        a(f"""s_lshl_b32 s{sU}, s{sJ}, 4
              s_add_u32 s{sU}, s{sU}, s{sC}
              s_mul_i32 s{sU}, s{sU}, 3
              s_add_u32 s{sU}, s{sU}, s{sRED}
              v_lshlrev_b32 v{vLin}, 4, v{self.vL}""")
        for k in range(4): a(f'v_mov_b32 v{R+k}, -1')
        for k in range(4): a(f'v_mov_b32 v{R+4+k}, 0')
        a(f's_mul_i32 s{sCI}, s{sU}, 5120')
        a(f's_add_u32 s{sCI}, s{sCI}, {WS_RC}')
        self.c_page_init(R, vLin)
        l1, l2 = a.newlabel('Lin'), a.newlabel('Lin')
        a(f"""s_cmp_ge_u32 s{sU}, 368
              s_cbranch_scc1 {l1}
              s_lshl_b32 s{sT0}, s{sU}, 12
              s_add_u32 s{sT0}, s{sT0}, {WS_RA}""")
        l0 = a.newlabel('Lin')
        a(f"""s_cmp_lt_u32 s{sU}, 20
              s_cbranch_scc1 {l0}""")
        for k in range(4):
            a(f'buffer_store_dwordx4 v[{R}:{R+3}], v{vLin}, s[{sWS}:{sWS+3}], s{sT0} offen offset:{1024*k} sc1')
        a(f's_branch {l1}')
        a.label(l0)
        srd(a, ptr(1), 10240)
        a(f's_lshl_b32 s{sT1}, s{sU}, 12')
        for k in range(4):
            D = R + 24 + 4*k
            a(f"""s_add_u32 s{sT2}, s{sT1}, {1024*k}
                  s_lshr_b32 s{sT3}, s{sT2}, 10
                  s_mul_i32 s{sT3}, s{sT3}, 205
                  s_lshr_b32 s{sT3}, s{sT3}, 11
                  s_mul_i32 s{sT3}, s{sT3}, 10240
                  s_sub_u32 s{sT2}, s{sT2}, s{sT3}
                  s_lshr_b32 s{sT2}, s{sT2}, 3
                  v_lshrrev_b32 v{R+8}, 1, v{self.vN}
                  v_mul_u32_u24 v{R+8}, 1280, v{R+8}
                  v_lshl_add_u32 v{R+8}, v{self.vQ}, 5, v{R+8}
                  v_and_b32 v{R+9}, 1, v{self.vN}
                  v_lshl_add_u32 v{R+8}, v{R+9}, 4, v{R+8}
                  buffer_load_dwordx4 v[{D}:{D+3}], v{R+8}, s[{sT}:{sT+3}], s{sT2} offen""")
        a('s_waitcnt vmcnt(0)')
        for k in range(4):
            D = R + 24 + 4*k
            for e in range(4): a(f'v_min_u32 v{D+e}, -2, v{D+e}')
            a(f'buffer_store_dwordx4 v[{D}:{D+3}], v{vLin}, s[{sWS}:{sWS+3}], s{sT0} offen offset:{1024*k} sc1')
        a('s_waitcnt vmcnt(0)')
        a.label(l1)
        a(f"""s_sub_u32 s{sT0}, s{sU}, 4
              s_cmp_ge_u32 s{sT0}, 252
              s_cbranch_scc1 {l2}
              s_lshl_b32 s{sT0}, s{sU}, 10
              s_add_u32 s{sT0}, s{sT0}, {WS_FLAG}
              buffer_store_dwordx4 v[{R+4}:{R+7}], v{vLin}, s[{sWS}:{sWS+3}], s{sT0} offen sc1""")
        a.label(l2)

    def arrive_init(self, R):
        t1, t2 = R + 14, R + 15
        self.a(f"""s_waitcnt vmcnt(0)
              v_mov_b32 v{t1}, 1
              v_mov_b32 v{t2}, 128
              s_mov_b64 exec, 1
              buffer_atomic_add v{t1}, v{t2}, s[{sDBG}:{sDBG+3}], 0 offen sc1
              s_mov_b64 exec, -1""")

    def role_qk(self):
        a = self.a
        al = Alloc(1, 256)
        self.lanes(al)
        WA, WB = al(80, 4), al(80, 4)
        M = al(40, 4)
        TA, TB = al(4, 4), al(4, 4)
        SEL = al(4, 4)
        RC = al(2)
        AC2 = al(4, 2)
        vFrag, vIdx, vB, vAst, vSent = al(3, 1), al(), al(), al(), al(2)
        T0, T1, T2 = self.vT0, self.vT1, self.vT2
        a(f'v_lshlrev_b32 v{vFrag}, 4, v{self.vL}'); self.idx_reg(vIdx)
        a(f'v_add_u32 v{vFrag+1}, 4096, v{vFrag}')
        a(f'v_add_u32 v{vFrag+2}, 8192, v{vFrag}')
        a(f'''s_mul_i32 s{sT2}, s{sG}, 3
              s_add_u32 s{sT2}, s{sT2}, s{sW}
              s_cmp_ge_u32 s{sT2}, 6
              s_cselect_b32 s{sT}, s{ptr(3)}, s{ptr(2)}
              s_cselect_b32 s{sT+1}, s{ptr(3)+1}, s{ptr(2)+1}
              s_cselect_b32 s{sT1}, 6, 0
              s_lshl_b32 s{sT3}, s{sT2}, 9
              s_sub_u32 s{sT2}, s{sT2}, s{sT1}
              s_mov_b32 s{sT+2}, {DM*NH*DH*2}
              s_mov_b32 s{sT+3}, 0x20000
              s_lshl_b32 s{sT2}, s{sT2}, 6
              v_lshlrev_b32 v{vB}, 7, v{self.vQ}
              v_lshl_add_u32 v{vB}, v{self.vN}, 2, v{vB}
              v_add_u32 v{vB}, s{sT3}, v{vB}''')
        vW = M
        self.wrow_lane(vW, 12288)
        a(f'''v_lshlrev_b32 v{T0}, 1, v{self.vN}
              v_and_b32 v{T1}, 0x13, v{T0}
              v_and_b32 v{T2}, 4, v{T0}
              v_lshl_add_u32 v{T1}, v{T2}, 1, v{T1}
              v_and_b32 v{T2}, 8, v{T0}
              v_lshrrev_b32 v{T2}, 1, v{T2}
              v_add_u32 v{T1}, v{T1}, v{T2}
              v_lshl_add_u32 v{vW}, v{T1}, 1, v{vW}
              s_mul_i32 s{sT0}, s{sH}, 384
              s_add_u32 s{sT0}, s{sT0}, s{sT2}
              v_add_u32 v{vW}, s{sT0}, v{vW}''')
        self.load_pair(WA, WB, 10, vW, 12288, T2)
        a(f'''s_and_b32 s{sT0}, s{sJ}, 1
              s_lshl_b32 s{sT0}, s{sT0}, 4
              s_add_u32 s{sT0}, s{sT0}, s{sC}
              s_lshl_b32 s{sT1}, s{sW}, 5
              s_add_u32 s{sT0}, s{sT0}, s{sT1}
              s_lshr_b32 s{sRED}, s{sT0}, 1
              s_and_b32 s{sT2}, s{sT0}, 1
              s_lshl_b32 s{sT0}, s{sRED}, 8
              s_lshl_b32 s{sT3}, s{sT2}, 5
              s_add_u32 s{sT0}, s{sT0}, s{sT3}
              s_lshl_b32 s{sT1}, s{sRED}, 14
              s_lshl_b32 s{sT3}, s{sT2}, 7
              s_add_u32 s{sT1}, s{sT1}, s{sT3}
              v_lshlrev_b32 v{RC}, 8, v{self.vQ}
              v_lshrrev_b32 v{T0}, 3, v{self.vN}
              v_lshl_add_u32 v{RC}, v{T0}, 10, v{RC}
              v_and_b32 v{T0}, 7, v{self.vN}
              v_lshl_add_u32 v{RC}, v{T0}, 4, v{RC}
              v_add_u32 v{RC}, s{sT1}, v{RC}
              v_add_u32 v{RC+1}, 4096, v{RC}
              v_bfe_u32 v{T0}, v{self.vN}, 2, 1
              v_lshlrev_b32 v{vAst}, 4, v{T0}
              v_and_b32 v{T0}, 3, v{self.vN}
              v_lshl_add_u32 v{vAst}, v{T0}, 6, v{vAst}
              v_lshl_add_u32 v{vAst}, v{self.vQ}, 3, v{vAst}
              v_add_u32 v{vAst}, s{sT0}, v{vAst}
              s_mov_b32 s{sMA}, 0x00ff00ff
              s_mov_b32 s{sMA+1}, 0''')
        a(f'''s_nop 0
              v_mov_b32 v{vSent}, -1
              v_mov_b32 v{vSent+1}, -1''')
        for p in range(4):
            a(f'''v_mov_b32 v{SEL+p}, 0
                  v_mov_b32 v{T0}, 0x3f80
                  v_cmp_eq_u32 vcc, {2*p}, v{self.vN}
                  s_nop 1
                  v_cndmask_b32 v{SEL+p}, v{SEL+p}, v{T0}, vcc
                  v_mov_b32 v{T0}, 0x3f800000
                  v_cmp_eq_u32 vcc, {2*p+1}, v{self.vN}
                  s_nop 1
                  v_cndmask_b32 v{SEL+p}, v{SEL+p}, v{T0}, vcc''')
        self.zero(TA, 8)
        self.mark(1)
        self.wait_all_registered()
        a('s_barrier')
        self.mark(2)
        loop, end = a.newlabel('Lqk'), a.newlabel('Lqkend')
        a('s_barrier')
        a.label(loop)
        a('s_barrier')
        self.stamp(0)
        for ks in range(10):
            a(f'ds_read_b128 v[{M+4*ks}:{M+4*ks+3}], v{vFrag} offset:{LM + 1024*ks}')
        for ks in range(10):
            a(f's_waitcnt lgkmcnt({9-ks})')
            a(f'v_smfmac_f32_16x16x64_bf16 v[{TA}:{TA+3}], v[{M+4*ks}:{M+4*ks+3}], v[{WA+8*ks}:{WA+8*ks+7}], v{vIdx}')
            a(f'v_smfmac_f32_16x16x64_bf16 v[{TB}:{TB+3}], v[{M+4*ks}:{M+4*ks+3}], v[{WB+8*ks}:{WB+8*ks+7}], v{vIdx}')
        a('s_nop 7')
        self.pair_epilogue(TA, TB)
        self.lstore([f'buffer_store_dword v{TA}, v{vB}, s[{sWS}:{sWS+3}], s{sB_C} offen',
                     f'buffer_store_dword v{TB}, v{vB}, s[{sWS}:{sWS+3}], s{sB_C} offen offset:64'])
        a('s_barrier')
        self.stamp(1)
        def resets():
            self.lstore([f'buffer_store_dword v{vSent}, v{vB}, s[{sWS}:{sWS+3}], s{sB_R} offen',
                         f'buffer_store_dword v{vSent}, v{vB}, s[{sWS}:{sWS+3}], s{sB_R} offen offset:64'])
            sk = a.newlabel('Lqar')
            a(f's_cmp_ge_u32 s{sRED}, 40')
            a(f's_cbranch_scc1 {sk}')
            a(f's_mov_b64 exec, s[{sMA}:{sMA+1}]')
            self.lstore([f'buffer_store_dwordx2 v[{vSent}:{vSent+1}], v{vAst}, s[{sWS}:{sWS+3}], s{sA_R} offen'])
            a('s_mov_b64 exec, -1')
            a.label(sk)
        self.zero(TA, 8)
        a('s_barrier')
        resets()
        if self.opt.get('prof'):
            a(f'''s_memrealtime s[{sST+10}:{sST+11}]
                  s_lshl_b32 s{sT0}, s{sJ}, 4
                  s_add_u32 s{sT0}, s{sT0}, s{sC}
                  s_lshl_b32 s{sT0}, s{sT0}, 2
                  s_add_u32 s{sT0}, s{sT0}, s{sW}
                  s_lshl_b32 s{sT0}, s{sT0}, 6
                  s_add_u32 s{sT0}, s{sT0}, s{sSTEP}
                  s_lshl_b32 s{sT0}, s{sT0}, 2
                  s_add_u32 s{sT0}, s{sT0}, {WS_DBG + 0x200000}
                  v_mov_b32 v{T1}, 0
                  s_waitcnt lgkmcnt(0)
                  v_mov_b32 v{T0}, s{sST+10}
                  buffer_store_dword v{T0}, v{T1}, s[{sWS}:{sWS+3}], s{sT0} offen
                  s_memtime s[{sST+10}:{sST+11}]
                  s_add_u32 s{sT0}, s{sT0}, 0x40000
                  s_waitcnt lgkmcnt(0)
                  v_mov_b32 v{T0}, s{sST+10}
                  buffer_store_dword v{T0}, v{T1}, s[{sWS}:{sWS+3}], s{sT0} offen''')
        a('s_barrier')
        a(f'''s_cmp_eq_u32 s{sSTEP}, 63
              s_cbranch_scc1 {end}''')
        ok, fin = a.newlabel('LpCok'), a.newlabel('LpCfin')
        ACC = AC2
        entry = {(h, ph): a.newlabel('LpC') for h in range(2) for ph in range(2)}
        nored = a.newlabel('Lqnr')
        a(f'''s_cmp_ge_u32 s{sRED}, 40
              s_cbranch_scc1 {nored}
              s_bitcmp1_b32 s{sCS}, 8
              s_cbranch_scc1 {entry[(1,1)]}_in''')
        for half in (1,):
            nl = 4
            for ph in range(2):
                lp = entry[(half, ph)]
                a.label(lp + '_in')
                if self.opt.get('c_sleep'): a(f"s_sleep {self.opt['c_sleep']}")
                if self.opt.get('fine'): self.stamp(5)
                a.label(lp)
                for t in range(nl):
                    reg, off = (RC + (t >> 1), 2048 * (t & 1)) if half else (RC + (t >> 2), 1024 * (t & 3))
                    a(f'buffer_load_dwordx4 v[{M+4*t}:{M+4*t+3}], v{reg}, s[{sWS}:{sWS+3}], s{sC_RD} offen offset:{off} sc1')
                a('s_mov_b64 exec, -1')
                op3 = (lambda d, x, y, z: f'v_bitop3_b32 v{d}, v{x}, v{y}, v{z} bitop3:0x80') if ph else (lambda d, x, y, z: f'v_or3_b32 v{d}, v{x}, v{y}, v{z}')
                for t in range(nl):
                    a(f's_waitcnt vmcnt({nl-1-t})')
                    if t == 0 and self.opt.get('fine'): self.stamp(2)
                    a(f'v_mfma_f32_16x16x32_bf16 v[{ACC}:{ACC+3}], v[{SEL}:{SEL+3}], v[{M+4*t}:{M+4*t+3}], ' + ('0' if t == 0 else f'v[{ACC}:{ACC+3}]'))
                    if t == 0:
                        a(op3(T0, M, M+1, M+2)); a(op3(T0, T0, M+3, M+3))
                    else:
                        a(op3(T0, T0, M+4*t, M+4*t+1)); a(op3(T0, T0, M+4*t+2, M+4*t+3))
                rt, bk = a.newlabel('LpCr'), a.newlabel('LpCb')
                a(f'''v_and_b32 v{T0}, 1, v{T0}
                      v_cmp_ne_u32 vcc, {ph}, v{T0}
                      s_cbranch_vccnz {rt}''')
                a.label(bk)
                def tail(rt=rt, bk=bk, lp=lp):
                    a.label(rt)
                    a('s_mov_b64 exec, vcc')
                    self.retry(lp, 3)
                    a('s_mov_b64 exec, -1')
                    a(f's_branch {bk}')
                self.tails.append(tail)
                a('s_nop 2')
                if half:
                    for k in range(4):
                        a(f'v_add_f32_dpp v{ACC+k}, v{ACC+k}, v{ACC+k} row_ror:8 row_mask:0xf bank_mask:0xf')
                self.stamp(3)
                a(f'''v_cvt_pk_bf16_f32 v{ACC}, v{ACC}, v{ACC+1}
                      v_cvt_pk_bf16_f32 v{ACC+1}, v{ACC+2}, v{ACC+3}
                      s_mov_b64 exec, s[{sMA}:{sMA+1}]
                      v_min_u32 v{ACC}, -2, v{ACC}
                      v_min_u32 v{ACC+1}, -2, v{ACC+1}''')
                self.lstore([f'buffer_store_dwordx2 v[{ACC}:{ACC+1}], v{vAst}, s[{sWS}:{sWS+3}], s{sA_N} offen'])
                if not (half and ph): a(f's_branch {fin}')
        a(f's_branch {fin}')
        a.label(nored)
        a('s_waitcnt vmcnt(0)')
        a.label(fin)
        if self.opt.get('dump_mem'):
            l = a.newlabel('Ldm')
            a(f'''s_cmp_lg_u32 s{sJ}, 0
                  s_cbranch_scc1 {l}
                  s_mul_i32 s{sT0}, s{sSTEP}, 10240
                  s_add_u32 s{sT0}, s{sT0}, {WS_DBG}
                  buffer_store_dwordx2 v[{ACC}:{ACC+1}], v{vAst}, s[{sWS}:{sWS+3}], s{sT0} offen''')
            a.label(l)
        a('s_mov_b64 exec, -1')
        a('s_barrier')
        self.stamp(4)
        self.next_step()
        a('s_waitcnt lgkmcnt(0)')
        a(f's_branch {loop}')
        a.label(end)
        a('s_barrier')
        a('s_barrier')
        self.finish()
        self.emit_tail()

    def role_v(self):
        a = self.a
        al = Alloc(1, 256)
        self.lanes(al)
        WA, WB = al(80, 4), al(80, 4)
        M = al(48, 4)
        TA, TB = al(4, 4), al(4, 4)
        F = al(12, 4); RR = al(2, 2)
        vFrag, vIdx, vB, vAoff, vV, vSent, vCoff, vOst = [al() for _ in range(8)]
        vLin = vV
        a(f"""v_lshrrev_b32 v{self.vT1}, 3, v{self.vL}
              v_lshlrev_b32 v{vOst}, 4, v{self.vT1}
              v_and_b32 v{self.vT1}, 7, v{self.vL}
              v_lshl_add_u32 v{vOst}, v{self.vT1}, 8, v{vOst}
              s_lshr_b32 s{sT0}, s{sG}, 1
              s_mul_i32 s{sT0}, s{sT0}, 192
              s_mul_i32 s{sT1}, s{sH}, 6
              s_add_u32 s{sT0}, s{sT0}, s{sT1}
              s_lshl_b32 s{sT0}, s{sT0}, 10
              s_and_b32 s{sT1}, s{sG}, 1
              s_lshl_b32 s{sT1}, s{sT1}, 7
              s_add_u32 s{sT0}, s{sT0}, s{sT1}
              v_add_u32 v{vOst}, s{sT0}, v{vOst}""")
        def o_store(back):
            if self.opt.get('no_ost'): return
            a(f's_sub_u32 s{sT0}, s{sO_C}, {back*32*12288}')
            a(f's_add_u32 s{sT1}, s{sT0}, 4096')
            for k in range(3):
                a(f'ds_read_b128 v[{F+4*k}:{F+4*k+3}], v{vLin} offset:{LOX + 1024*k}')
            for k in range(3):
                a(f's_waitcnt lgkmcnt({2-k})')
                a(f'buffer_store_dwordx4 v[{F+4*k}:{F+4*k+3}], v{vOst}, s[{sWS}:{sWS+3}], s{sT1 if k == 2 else sT0} offen offset:{2048*(k&1)} sc1')
        PX = al(8, 2)
        self.frag_addr(vFrag); self.idx_reg(vIdx)
        a(f"""v_lshlrev_b32 v{vV}, 4, v{self.vL}
              v_mov_b32 v{vSent}, -1""")
        a(f"""s_mul_i32 s{sT0}, s{sG}, 768
              s_add_u32 s{sT0}, s{sT0}, 6144
              v_lshlrev_b32 v{vB}, 5, v{self.vN}
              v_lshl_add_u32 v{vB}, v{self.vQ}, 2, v{vB}
              v_add_u32 v{vB}, s{sT0}, v{vB}""")
        srd(a, ptr(4), DM * NH * DH * 2)
        vW = M
        self.wrow_lane(vW, 12288)
        a(f"""s_mul_i32 s{sT0}, s{sH}, 384
              s_mul_i32 s{sT1}, s{sG}, 96
              s_add_u32 s{sT0}, s{sT0}, s{sT1}
              v_lshl_add_u32 v{vW}, v{self.vN}, 2, v{vW}
              v_add_u32 v{vW}, s{sT0}, v{vW}""")
        self.load_pair(WA, WB, 10, vW, 12288, self.vT2)
        self.c_off(vCoff, 4)
        self.wo_weights(M, M + 24, 4, vAoff, self.vT2)
        for k in range(12):
            a(f'ds_write_b128 v{vLin}, v[{M+4*k}:{M+4*k+3}] offset:{LW5 + 1024*k}')
        a('s_waitcnt lgkmcnt(0)')
        self.a_off(vAoff)
        self.zero(TA, 8)
        self.mark(1)
        self.wait_all_registered()
        self.wait_tiles(sSTEP, 2, 1)
        for sg in range(2):
            a(f's_mov_b32 s{sT3}, {sg}')
            self.dma_seg_regs(sT3); self.dma_v(vV)
        a('s_waitcnt vmcnt(0)')
        a('s_barrier')
        self.mark(2)
        loop, end = a.newlabel('Lv'), a.newlabel('Lvend')
        self.a_poll(vAoff, [F], True)
        a.label(loop)
        self.stamp(0)
        for ks in range(10):
            a(f'ds_read_b128 v[{M+4*ks}:{M+4*ks+3}], v{vLin} offset:{LM + 1024*ks}')
        for ks in range(10):
            a(f's_waitcnt lgkmcnt({9-ks})')
            a(f'v_smfmac_f32_16x16x64_bf16 v[{TA}:{TA+3}], v[{M+4*ks}:{M+4*ks+3}], v[{WA+8*ks}:{WA+8*ks+7}], v{vIdx}')
            a(f'v_smfmac_f32_16x16x64_bf16 v[{TB}:{TB+3}], v[{M+4*ks}:{M+4*ks+3}], v[{WB+8*ks}:{WB+8*ks+7}], v{vIdx}')
            if ks == self.opt.get('v_bar', 8): a('s_barrier')
        a(f"""s_nop 7
              v_add_f32 v{TA}, v{TA}, v{TA+1}
              v_add_f32 v{TA+2}, v{TA+2}, v{TA+3}
              v_add_f32 v{TB}, v{TB}, v{TB+1}
              v_add_f32 v{TB+2}, v{TB+2}, v{TB+3}
              v_cvt_pk_bf16_f32 v{TA}, v{TA}, v{TA+2}
              v_cvt_pk_bf16_f32 v{TB}, v{TB}, v{TB+2}
              v_min_u32 v{TA}, -2, v{TA}
              v_min_u32 v{TB}, -2, v{TB}""")
        self.lstore([f'buffer_store_dword v{TA}, v{vB}, s[{sWS}:{sWS+3}], s{sB_C} offen',
                     f'buffer_store_dword v{TB}, v{vB}, s[{sWS}:{sWS+3}], s{sB_C} offen offset:16'])
        self.stamp(1)
        a('s_waitcnt vmcnt(2)')
        for k in range(12):
            a(f'ds_read_b128 v[{M+4*k}:{M+4*k+3}], v{vLin} offset:{LW5 + 1024*k}')
        self.zero(TA, 8)
        a(f's_add_u32 s{sT3}, s{sSTEP}, 2')
        self.dma_seg_regs(sT3)
        a('s_barrier')
        self.lstore([f'buffer_store_dword v{vSent}, v{vB}, s[{sWS}:{sWS+3}], s{sB_R} offen',
                     f'buffer_store_dword v{vSent}, v{vB}, s[{sWS}:{sWS+3}], s{sB_R} offen offset:16'])
        a(f"s_sleep {self.opt.get('d_sleep', 7)}")
        def o_prev():
            no0 = a.newlabel('Lvn0')
            a('s_waitcnt lgkmcnt(0)')
            a(f's_cmp_eq_u32 s{sSTEP}, 0')
            a(f's_cbranch_scc1 {no0}')
            o_store(1)
            a.label(no0)
        if not self.opt.get('o_late'): o_prev()
        nod = a.newlabel('Lvnd')
        a(f"""s_add_u32 s{sT3}, s{sSTEP}, 2
              s_cmp_ge_u32 s{sT3}, 64
              s_cbranch_scc1 {nod}""")
        self.wait_tiles(sT3, 2, 1)
        if not self.opt.get('no_dma'): self.dma_v(vV)
        a.label(nod)
        if self.opt.get('o_late'): o_prev()
        a('s_waitcnt lgkmcnt(0)')
        self.stamp(5)
        a('s_barrier')
        self.stamp(2)
        self.wo_stage([(M, M + 24, TA, TB, 0)], vFrag, vIdx, F, vCoff, RR, end)
        self.stamp(3)
        self.zero(TA, 8)
        self.a_poll(vAoff, [F, PX, M + 40])
        a(f's_branch {loop}')
        a.label(end)
        a('s_waitcnt lgkmcnt(0)')
        a('s_barrier')
        o_store(0)
        a('s_waitcnt vmcnt(0)')
        a('s_barrier')
        self.finish()
        self.emit_tail()

    def role_w7(self):
        a = self.a
        al = Alloc(1, 256)
        self.lanes(al)
        WV = al(80, 4)
        P = [(al(24, 4), al(24, 4), al(4, 4), al(4, 4), 0)]
        M = al(40, 4)
        TV = al(4, 4)
        SENT = al(4, 4); RR = al(2, 2)
        vFrag, vIdx, vB, vAoff, vK, vQx, vCoff, vCr = [al() for _ in range(8)]
        vSel = TV
        PX = al(24, 2)
        T0, T1 = self.vT0, self.vT1
        self.frag_addr(vFrag); self.idx_reg(vIdx)
        a(f"""v_lshlrev_b32 v{vK}, 4, v{self.vL}
              v_and_b32 v{T0}, 7, v{self.vL}
              v_lshlrev_b32 v{vQx}, 4, v{T0}
              v_lshrrev_b32 v{T0}, 5, v{self.vL}
              v_lshl_add_u32 v{vQx}, v{T0}, 10, v{vQx}
              v_bfe_u32 v{T0}, v{self.vL}, 3, 2
              v_lshl_add_u32 v{vQx}, v{T0}, 8, v{vQx}
              s_lshr_b32 s{sT0}, s{sG}, 1
              s_mul_i32 s{sT0}, s{sT0}, 6144
              s_and_b32 s{sT1}, s{sG}, 1
              s_lshl_b32 s{sT1}, s{sT1}, 7
              s_add_u32 s{sT0}, s{sT0}, s{sT1}
              v_add_u32 v{vQx}, s{sT0}, v{vQx}""")
        for k in range(4): a(f'v_mov_b32 v{SENT+k}, -1')
        a(f"""s_mul_i32 s{sT0}, s{sG}, 768
              s_add_u32 s{sT0}, s{sT0}, {6144 + 512}
              v_lshlrev_b32 v{vB}, 4, v{self.vN}
              v_lshl_add_u32 v{vB}, v{self.vQ}, 2, v{vB}
              v_add_u32 v{vB}, s{sT0}, v{vB}
              s_mul_i32 s{sT0}, s{sG}, 2560
              v_lshlrev_b32 v{vCr}, 4, v{self.vL}
              v_add_u32 v{vCr}, s{sT0}, v{vCr}""")
        self.c_off(vCoff, 3)
        srd(a, ptr(4), DM * NH * DH * 2)
        self.wrow_lane(vAoff, 12288)
        a(f"""s_mul_i32 s{sT0}, s{sH}, 384
              s_mul_i32 s{sT1}, s{sG}, 96
              s_add_u32 s{sT0}, s{sT0}, s{sT1}
              s_add_u32 s{sT0}, s{sT0}, 64
              v_and_b32 v{T0}, 14, v{self.vN}
              v_lshl_add_u32 v{vAoff}, v{T0}, 1, v{vAoff}
              v_add_u32 v{vAoff}, s{sT0}, v{vAoff}
              v_and_b32 v{T0}, 1, v{self.vN}
              v_cmp_eq_u32 vcc, 1, v{T0}
              v_mov_b32 v{vSel}, s{sSELLO}
              v_mov_b32 v{T0}, s{sSELHI}
              s_nop 1
              v_cndmask_b32 v{vSel}, v{vSel}, v{T0}, vcc""")
        self.load_single(WV, 10, vAoff, vSel, 12288, M)
        self.wo_weights(P[0][0], P[0][1], 3, vAoff, self.vT2)
        self.a_off(vAoff)
        self.zero(TV, 4)
        for p in P: self.zero(p[2], 8)
        self.mark(1)
        self.wait_all_registered()
        self.wait_tiles(sSTEP, 0, 2)
        for sg in range(2):
            a(f's_mov_b32 s{sT3}, {sg}')
            self.dma_seg_regs(sT3); self.dma_kq(vK, vQx)
        a('s_waitcnt vmcnt(0)')
        a('s_barrier')
        self.mark(2)
        loop, end = a.newlabel('Lw7'), a.newlabel('Lw7end')
        self.a_poll(vAoff, [PX], True)
        a.label(loop)
        self.stamp(0)
        for ks in range(10):
            a(f'ds_read_b128 v[{M+4*ks}:{M+4*ks+3}], v{vK} offset:{LM + 1024*ks}')
        for ks in range(10):
            a(f's_waitcnt lgkmcnt({9-ks})')
            a(f'v_smfmac_f32_16x16x64_bf16 v[{TV}:{TV+3}], v[{M+4*ks}:{M+4*ks+3}], v[{WV+8*ks}:{WV+8*ks+7}], v{vIdx}')
            if ks == self.opt.get('w7_bar', 99): a('s_barrier')
        a(f"""s_nop 7
              v_add_f32 v{TV}, v{TV}, v{TV+1}
              v_add_f32 v{TV+2}, v{TV+2}, v{TV+3}
              v_cvt_pk_bf16_f32 v{TV}, v{TV}, v{TV+2}
              v_min_u32 v{TV}, -2, v{TV}""")
        self.lstore([f'buffer_store_dword v{TV}, v{vB}, s[{sWS}:{sWS+3}], s{sB_C} offen'])
        if self.opt.get('w7_bar', 99) > 9: a('s_barrier')
        self.stamp(1)
        self.zero(TV, 4)
        a(f's_add_u32 s{sT3}, s{sSTEP}, 2')
        self.dma_seg_regs(sT3)
        a('s_barrier')
        self.lstore([f'buffer_store_dword v{SENT}, v{vB}, s[{sWS}:{sWS+3}], s{sB_R} offen'])
        a(f"s_sleep {self.opt.get('d_sleep', 7)}")
        if self.opt.get('dma_time'): self.stamp(1)
        nf, yf = a.newlabel('Lw7nf'), a.newlabel('Lw7yf')
        a(f"""s_cmp_ge_u32 s{sSTEP}, {self.opt.get('of_all', 58)}
              s_cbranch_scc1 {yf}
              s_and_b32 s{sT0}, s{sSTEP}, {self.opt.get('of_every', 1) - 1}
              s_cmp_lg_u32 s{sT0}, {min(2, self.opt.get('of_every', 1) - 1)}
              s_cbranch_scc1 {nf}
              s_cmp_lt_u32 s{sSTEP}, 2
              s_cbranch_scc1 {nf}""")
        a.label(yf)
        self.o_flag(2)
        a.label(nf)
        nod = a.newlabel('Lknd')
        a(f"""s_add_u32 s{sT3}, s{sSTEP}, 2
              s_cmp_ge_u32 s{sT3}, 64
              s_cbranch_scc1 {nod}""")
        self.wait_tiles(sT3, 0, 2)
        if not self.opt.get('no_dma'): self.dma_kq(vK, vQx)
        a.label(nod)
        if self.opt.get('dma_time'): a('s_waitcnt vmcnt(0)')
        self.stamp(5)
        a('s_barrier')
        self.stamp(2)
        self.wo_stage(P, vFrag, vIdx, M, vCoff, RR, end)
        self.stamp(3)
        for p in P: self.zero(p[2], 8)
        self.a_poll(vAoff, [PX, PX + 8, PX + 16])
        a(f's_branch {loop}')
        a.label(end)
        a('s_barrier')
        a('s_barrier')
        self.o_flag(0)
        self.finish()
        self.emit_tail()

    def role_att(self):
        a = self.a
        al = Alloc(1, 256)
        self.lanes(al)
        TM = al(2, 2)
        WA, WB = al(24, 4), al(24, 4)
        TA, TB = al(4, 4), al(4, 4)
        KX = al(48, 4); X = al(24, 4); Y = al(24, 4)
        VX = al(16, 4); VM = al(8, 2)
        BI = al(12, 4); SS = al(12, 4)
        PP = al(6, 2); RR = PP
        OO = al(16, 4); LL = al(4, 4)
        ONES = al(4, 4)
        F = SS
        vFrag, vIdx, vAoff, vXY, vVM, vOw, vCoff, vLin, vQr, vBp, vRw, vOx = [al() for _ in range(12)]
        T0, T1, T2 = self.vT0, self.vT1, self.vT2
        sWP = sRED
        a(f's_sub_u32 s{sWP}, s{sW}, 4')
        self.frag_addr(vFrag); self.idx_reg(vIdx)
        self.c_off(vCoff, f's{sWP}')
        if self.opt.get('touch'): self.touch_weights()
        self.init_job(KX)
        self.mark(5)
        self.wo_weights(WA, WB, f's{sWP}', vAoff, T2)
        self.arrive_init(KX)
        self.a_off(vAoff)
        a(f"""v_lshlrev_b32 v{vXY}, 6, v{self.vN}
              v_lshl_add_u32 v{vXY}, v{self.vQ}, 4, v{vXY}
              s_lshl_b32 s{sT0}, s{sWP}, 10
              s_add_u32 s{sT0}, s{sT0}, 6144
              v_lshlrev_b32 v{vVM}, 4, v{self.vN}
              v_lshl_add_u32 v{vVM}, v{self.vQ}, 3, v{vVM}
              v_add_u32 v{vVM}, s{sT0}, v{vVM}
              v_lshlrev_b32 v{vLin}, 4, v{self.vL}
              s_lshl_b32 s{sT0}, s{sWP}, 11
              v_add_u32 v{vBp}, s{sT0}, v{vLin}
              v_and_b32 v{T0}, 7, v{self.vN}
              v_lshlrev_b32 v{vQr}, 4, v{T0}
              v_lshl_add_u32 v{vQr}, v{self.vQ}, 7, v{vQr}""")
        a(f"""v_lshlrev_b32 v{vRw}, 2, v{self.vL}
              v_add_u32 v{T1}, {LDUMMY}, v{vRw}
              v_add_u32 v{vRw}, {LR}, v{vRw}
              v_cmp_gt_u32 vcc, 8, v{self.vL}
              s_nop 1
              v_cndmask_b32 v{vRw}, v{T1}, v{vRw}, vcc""")
        a(f"""v_lshrrev_b32 v{T1}, 1, v{self.vQ}
              v_lshlrev_b32 v{vOw}, 7, v{T1}
              v_lshl_add_u32 v{vOw}, v{T0}, 4, v{vOw}
              v_and_b32 v{T1}, 1, v{self.vQ}
              v_lshl_add_u32 v{vOw}, v{T1}, 3, v{vOw}
              v_lshrrev_b32 v{T1}, 3, v{self.vN}
              v_mul_u32_u24 v{T1}, 3072, v{T1}
              v_add_u32 v{vOw}, v{vOw}, v{T1}
              s_lshl_b32 s{sT0}, s{sWP}, 10
              s_add_u32 s{sT0}, s{sT0}, {LO}
              v_add_u32 v{vOw}, s{sT0}, v{vOw}""")
        a(f"""s_lshl_b32 s{sT0}, s{sWP}, 10
              s_add_u32 s{sT0}, s{sT0}, {LOX}
              v_lshlrev_b32 v{vOx}, 7, v{T0}
              v_lshl_add_u32 v{vOx}, v{self.vQ}, 3, v{vOx}
              v_add_u32 v{vOx}, s{sT0}, v{vOx}""")
        a(f"""s_lshl_b32 s{sT0}, s{sG}, 3
              v_add_u32 v{T1}, s{sT0}, v{T0}
              v_cmp_gt_u32 vcc, 8, v{self.vN}
              v_mov_b32 v{T2}, 31
              s_nop 1
              v_cndmask_b32 v{T1}, v{T1}, v{T2}, vcc
              v_lshlrev_b32 v{T2}, 2, v{self.vQ}
              v_sub_u32 v{T1}, v{T1}, v{T2}
              v_mov_b32 v{T2}, 0xf149f2ca""")
        for tile in range(2):
            for r in range(4):
                a(f"""v_cmp_gt_i32 vcc, {16*tile + r}, v{T1}
                      v_mov_b32 v{BI+4*tile+r}, 0
                      s_nop 1
                      v_cndmask_b32 v{BI+4*tile+r}, v{BI+4*tile+r}, v{T2}, vcc""")
        a(f"""v_cmp_lt_u32 vcc, 1, v{self.vQ}
              v_mov_b32 v{BI+8}, 0
              s_nop 1
              v_cndmask_b32 v{BI+8}, v{BI+8}, v{T2}, vcc""")
        for r in range(1, 4): a(f'v_mov_b32 v{BI+8+r}, v{BI+8}')
        for k in range(4): a(f'v_mov_b32 v{ONES+k}, 0x3f803f80')
        self.zero(Y, 24); self.zero(VM, 8); self.zero(TA, 8)
        self.mark(1)
        self.wait_all_registered()
        def read_seg():
            a(f'v_add_u32 v{T0}, s{sLB}, v{vLin}')
            a(f'v_add_u32 v{T1}, s{sLB}, v{vQr}')
            a(f's_lshl_b32 s{sT0}, s{sWP}, 12')
            a(f'v_add_u32 v{T2}, s{sT0}, v{T0}')
            for k in range(12):
                a(f'ds_read_b128 v[{KX+4*k}:{KX+4*k+3}], v{T0} offset:{LK_OFF + 1024*k}')
            for ks in range(6):
                a(f'ds_read_b128 v[{X+4*ks}:{X+4*ks+3}], v{T1} offset:{LQ_OFF + 512*ks}')
            for t in range(4):
                a(f'ds_read_b128 v[{VX+4*t}:{VX+4*t+3}], v{T2} offset:{LV_OFF + 1024*t}')
        def vm_loads():
            a(f's_mov_b64 exec, s[{sML32}:{sML32+1}]')
            for t in range(4):
                a(f'buffer_load_dwordx2 v[{VM+2*t}:{VM+2*t+1}], v{vVM}, s[{sWS}:{sWS+3}], s{sB_C} offen offset:{256*t} sc1')
            a('s_mov_b64 exec, -1')
        a('s_barrier')
        self.mark(2)
        a(f's_mov_b32 s{sLB}, {LBUF}')
        read_seg()
        self.a_poll(vAoff, [F], True)
        loop, end = a.newlabel('Lat'), a.newlabel('Latend')
        lp, ok, vlp, vok, vrt = a.newlabel('LpB'), a.newlabel('LpBok'), a.newlabel('LpV'), a.newlabel('LpVok'), a.newlabel('LpVr')
        a.label(loop)
        a('s_barrier')
        if self.opt.get('b_sleep'): a(f"s_sleep {self.opt['b_sleep']}")
        if self.opt.get('fine'): self.stamp(0)
        self.poll2(vBp, sB_C, LQK, [OO, OO + 8][:self.opt.get('b_depth', 1)], 0, self.opt.get('b_gap', 0))
        a(f's_mov_b64 exec, s[{sMN8}:{sMN8+1}]')
        a('s_waitcnt lgkmcnt(0)')
        a('s_barrier')
        for ks in range(6):
            a(f'ds_read_b128 v[{X+4*ks}:{X+4*ks+3}], v{vXY} offset:{LQK + 512*ks}')
            a(f'ds_read_b128 v[{Y+4*ks}:{Y+4*ks+3}], v{vXY} offset:{LQK + 3072 + 512*ks}')
        a('s_mov_b64 exec, -1')
        self.stamp(5)
        for ks in range(6):
            if ks == self.opt.get('vm_at', 0): vm_loads()
            a(f's_waitcnt lgkmcnt({11 - 2*ks})')
            for tile, A in ((0, KX + 4*ks), (1, KX + 24 + 4*ks), (2, Y + 4*ks)):
                if tile == 2: a(f's_waitcnt lgkmcnt({10 - 2*ks})')
                c = BI + 4*tile if ks == 0 else SS + 4*tile
                a(f'v_mfma_f32_16x16x32_bf16 v[{SS+4*tile}:{SS+4*tile+3}], v[{A}:{A+3}], v[{X+4*ks}:{X+4*ks+3}], v[{c}:{c+3}]')
        a('s_waitcnt vmcnt(4)')
        a('s_nop 3')
        self.stamp(1)
        a(f"""v_max3_f32 v{T0}, v{SS}, v{SS+1}, v{SS+2}
              v_max3_f32 v{T1}, v{SS+3}, v{SS+4}, v{SS+5}
              v_max3_f32 v{T0}, v{T0}, v{SS+6}, v{SS+7}
              v_max3_f32 v{T1}, v{T1}, v{SS+8}, v{SS+9}
              v_max3_f32 v{T0}, v{T0}, v{SS+10}, v{SS+11}
              v_max_f32 v{T0}, v{T0}, v{T1}
              v_mov_b32 v{T1}, v{T0}
              s_nop 1
              v_permlane32_swap_b32 v{T0}, v{T1}
              v_max_f32 v{T0}, v{T0}, v{T1}
              v_mov_b32 v{T1}, v{T0}
              s_nop 1
              v_permlane16_swap_b32 v{T0}, v{T1}
              v_max_f32 v{T0}, v{T0}, v{T1}
              v_mul_f32 v{TM}, s{sSCL}, v{T0}""")
        def pkfma(r):
            a(f'v_pk_fma_f32 v[{SS+r}:{SS+r+1}], v[{SS+r}:{SS+r+1}], s[{sSCL}:{sSCL+1}], v[{TM}:{TM+1}] op_sel_hi:[1,0,0] neg_lo:[0,0,1] neg_hi:[0,0,1]')
        for r in range(0, 8, 2): pkfma(r)
        for r in range(8): a(f'v_exp_f32 v{SS+r}, v{SS+r}')
        for r in range(8, 12, 2): pkfma(r)
        for r in range(4): a(f'v_cvt_pk_bf16_f32 v{PP+r}, v{SS+2*r}, v{SS+2*r+1}')
        a(f'v_exp_f32 v{SS+8}, v{SS+8}')
        a(f'v_exp_f32 v{SS+9}, v{SS+9}')
        a(f'v_mfma_f32_16x16x32_bf16 v[{LL}:{LL+3}], v[{ONES}:{ONES+3}], v[{PP}:{PP+3}], 0')
        a(f'v_exp_f32 v{SS+10}, v{SS+10}')
        a(f'v_mfma_f32_16x16x32_bf16 v[{OO}:{OO+3}], v[{VX}:{VX+3}], v[{PP}:{PP+3}], 0')
        a(f'v_exp_f32 v{SS+11}, v{SS+11}')
        a(f'v_mfma_f32_16x16x32_bf16 v[{OO+4}:{OO+7}], v[{VX+4}:{VX+7}], v[{PP}:{PP+3}], 0')
        a(f'v_cvt_pk_bf16_f32 v{PP+4}, v{SS+8}, v{SS+9}')
        a(f'v_cvt_pk_bf16_f32 v{PP+5}, v{SS+10}, v{SS+11}')
        a(f'v_mfma_f32_16x16x32_bf16 v[{OO+8}:{OO+11}], v[{VX+8}:{VX+11}], v[{PP}:{PP+3}], 0')
        a.label(vlp)
        a(f"""s_waitcnt vmcnt(0)
              v_max3_u32 v{T1}, v{VM}, v{VM+1}, v{VM+2}
              v_max3_u32 v{T2}, v{VM+3}, v{VM+4}, v{VM+5}
              v_mfma_f32_16x16x32_bf16 v[{OO+12}:{OO+15}], v[{VX+12}:{VX+15}], v[{PP}:{PP+3}], 0
              v_max3_u32 v{T1}, v{T1}, v{VM+6}, v{VM+7}
              v_max_u32 v{T1}, v{T1}, v{T2}
              v_cmp_eq_u32 vcc, -1, v{T1}
              s_cbranch_vccnz {vrt}""")
        a.label(vok)
        if not self.opt.get('fine'): self.stamp(0)
        a(f'v_mfma_f32_16x16x16_bf16 v[{LL}:{LL+3}], v[{ONES}:{ONES+1}], v[{PP+4}:{PP+5}], v[{LL}:{LL+3}]')
        for t in range(4):
            a(f'v_mfma_f32_16x16x16_bf16 v[{OO+4*t}:{OO+4*t+3}], v[{VM+2*t}:{VM+2*t+1}], v[{PP+4}:{PP+5}], v[{OO+4*t}:{OO+4*t+3}]')
        a(f"""s_nop 3
              v_rcp_f32 v{LL}, v{LL}""")
        for t in range(4):
            a(f'v_cvt_pk_bf16_f32 v{X+2*t}, v{OO+4*t}, v{OO+4*t+1}')
            a(f'v_cvt_pk_bf16_f32 v{X+2*t+1}, v{OO+4*t+2}, v{OO+4*t+3}')
            a(f'ds_write_b64 v{vOw}, v[{X+2*t}:{X+2*t+1}] offset:{256*t}')
            if t == 0: a(f'ds_write_b32 v{vRw}, v{LL}')
        a('s_waitcnt lgkmcnt(0)')
        a('s_barrier')
        self.stamp(2)
        skipwo = a.newlabel('Latsk')
        self.wo_stage([(WA, WB, TA, TB, 0)], vFrag, vIdx, F, vCoff, RR, skipwo)
        a.label(skipwo)
        if not self.opt.get('fine'): self.stamp(3)
        for t in range(4):
            for r in range(4):
                a(f'v_mul_f32 v{OO+4*t+r}, v{OO+4*t+r}, v{LL}')
            a(f'v_cvt_pk_bf16_f32 v{OO+4*t}, v{OO+4*t}, v{OO+4*t+1}')
            a(f'v_cvt_pk_bf16_f32 v{OO+4*t+1}, v{OO+4*t+2}, v{OO+4*t+3}')
        a(f's_mov_b64 exec, s[{sMH8}:{sMH8+1}]')
        for t in range(4):
            a(f'ds_write_b64 v{vOx}, v[{OO+4*t}:{OO+4*t+1}] offset:{32*t}')
        a('s_mov_b64 exec, -1')
        a(f"""s_cmp_eq_u32 s{sSTEP}, 63
              s_cbranch_scc1 {end}
              s_add_u32 s{sT3}, s{sSTEP}, 1
              s_and_b32 s{sT3}, s{sT3}, 1
              s_mul_i32 s{sLB}, s{sT3}, {LBUF_SZ}
              s_add_u32 s{sLB}, s{sLB}, {LBUF}""")
        nci = a.newlabel('Latci')
        a(f"""s_cmp_ge_u32 s{sSTEP}, {3*(RC_PAGES-1)}
              s_cbranch_scc1 {nci}
              s_mul_i32 s{sT0}, s{sSTEP}, 86
              s_lshr_b32 s{sT0}, s{sT0}, 8
              s_mul_i32 s{sT0}, s{sT0}, 3
              s_cmp_lg_u32 s{sT0}, s{sSTEP}
              s_cbranch_scc1 {nci}""")
        for k in range(4): a(f'v_mov_b32 v{LL+k}, -1')
        self.c_page_init(LL, vLin)
        a.label(nci)
        read_seg()
        self.zero(TA, 8)
        self.a_poll(vAoff, [F, OO, OO + 8])
        a(f's_branch {loop}')
        a.label(end)
        a('s_waitcnt lgkmcnt(0)')
        a('s_barrier')
        a('s_barrier')
        self.finish()
        a.label(vrt)
        vm_loads()
        self.retry(vlp, 1)
        a(f's_branch {vok}')
        self.emit_tail()

def emit_gates(a, sU, ntok, vL, R):
    G, acc, t1, t2, v4, Xr = R, R + 5, R + 6, R + 7, R + 8, R + 10
    a(f'v_lshlrev_b32 v{v4}, 2, v{vL}')
    srd(a, ptr(11), DM * 2)
    for i in range(5):
        a(f'buffer_load_dword v{G+i}, v{v4}, s[{sT}:{sT+3}], 0 offen offset:{256*i}')
    srd(a, ptr(0), S * DM * 2)
    a(f's_mul_i32 s{sT1}, s{sU}, 1280')
    for tk in range(ntok):
        for i in range(5):
            a(f'buffer_load_dword v{Xr+5*tk+i}, v{v4}, s[{sT}:{sT+3}], s{sT1} offen offset:{1280*tk + 256*i}')
    a('s_waitcnt vmcnt(0)')
    for tk in range(ntok):
        a(f'v_mov_b32 v{acc}, 0')
        for i in range(5):
            x = Xr + 5*tk + i
            a(f"""v_lshlrev_b32 v{t1}, 16, v{x}
                  v_lshlrev_b32 v{t2}, 16, v{G+i}
                  v_fmac_f32 v{acc}, v{t1}, v{t2}
                  v_and_b32 v{t1}, 0xffff0000, v{x}
                  v_and_b32 v{t2}, 0xffff0000, v{G+i}
                  v_fmac_f32 v{acc}, v{t1}, v{t2}""")
        for sh in (8, 4, 2, 1):
            a(f"""s_nop 1
                  v_add_f32_dpp v{acc}, v{acc}, v{acc} row_ror:{sh} row_mask:0xf bank_mask:0xf""")
        for sw in ('v_permlane16_swap_b32', 'v_permlane32_swap_b32'):
            a(f"""v_mov_b32 v{t1}, v{acc}
                  s_nop 1
                  {sw} v{acc}, v{t1}
                  v_add_f32 v{acc}, v{acc}, v{t1}""")
        a(f"""v_mul_f32 v{acc}, {hex(f32bits(-math.log2(math.e)))}, v{acc}
              v_exp_f32 v{acc}, v{acc}
              s_nop 0
              v_add_f32 v{acc}, 1.0, v{acc}
              v_rcp_f32 v{acc}, v{acc}
              v_mov_b32 v{t1}, 0
              s_lshl_b32 s{sT0}, s{sU}, 2
              s_add_u32 s{sT0}, s{sT0}, {WS_G + 4*tk}
              s_mov_b64 exec, 1
              buffer_store_dword v{acc}, v{t1}, s[{sWS}:{sWS+3}], s{sT0} offen sc1
              s_mov_b64 exec, -1""")

def wait_registered(a, opt, T0, T1, vN, init=False):
    lp, done = a.newlabel('Lreg'), a.newlabel('Lregd')
    a(f'v_lshlrev_b32 v{T1}, 2, v{vN}')
    a.label(lp)
    a(f'''buffer_load_dword v{T0}, v{T1}, s[{sDBG}:{sDBG+3}], 0 offen sc0 sc1
          s_waitcnt vmcnt(0)
          v_readlane_b32 s{sT0}, v{T0}, 8
          v_readlane_b32 s{sT1}, v{T0}, {32 if init else 8}
          s_add_u32 s{sT0}, s{sT0}, s{sT1}
          s_cmp_ge_u32 s{sT0}, {256 + 384 if init else 512}
          s_cbranch_scc1 {done}
          s_sleep 24
          s_sub_u32 s{sBUD}, s{sBUD}, 1
          s_cbranch_scc0 {lp}
          s_mov_b32 s{sBUD}, 0''')
    a.label(done)
    a(f'''v_cmp_ne_u32 vcc, 32, v{T0}
          s_and_b32 s{sT0}, vcc_lo, 0xff
          s_cselect_b32 s{sMIX}, 1, {1 if opt.get('force_mixed') else 0}''')

def emit_entry(a, opt, exit_label):
    a(f'''s_cmp_ge_u32 s2, 256
          s_cbranch_scc1 {exit_label}
          s_load_dwordx16 s[16:31], s[0:1], 0
          s_load_dwordx8 s[32:39], s[0:1], 64
          s_load_dwordx4 s[40:43], s[0:1], 96
          s_load_dwordx2 s[44:45], s[0:1], 112
          v_lshrrev_b32 v1, 6, v0
          s_getreg_b32 s{sJ}, hwreg(HW_REG_XCC_ID)
          v_readfirstlane_b32 s{sW}, v1
          s_and_b32 s{sJ}, s{sJ}, 15
          s_min_u32 s{sJ}, s{sJ}, 10
          s_cmp_lt_u32 s{sJ}, 8
          s_cselect_b32 s{sJ}, s{sJ}, 10
          s_mov_b32 s{sBUD}, {opt.get('budget', 1 << 20)}
          s_mov_b32 s{sSTEP}, 0
          s_mov_b32 s{sCS}, 0
          s_mov_b32 s{sPOL}, 0
          s_mov_b64 s[98:99], 0
          s_mov_b64 s[100:101], 0
          s_mov_b32 s{sMIX}, {1 if opt.get('force_mixed') else 0}
          s_mov_b32 s{sMN8}, 0x00ff00ff
          s_mov_b32 s{sMN8+1}, 0x00ff00ff
          s_mov_b32 s{sMH8}, 0xff00ff00
          s_mov_b32 s{sMH8+1}, 0xff00ff00
          s_mov_b32 s{sML32}, -1
          s_mov_b32 s{sML32+1}, 0
          s_mov_b32 s{sSELLO}, 0x05040100
          s_mov_b32 s{sSELHI}, 0x07060302
          s_mov_b32 s{sSCL}, {hex(f32bits(DH ** -0.5 * math.log2(math.e)))}
          s_waitcnt lgkmcnt(0)
          s_mov_b32 s{sWS}, s{ptr(14)}
          s_mov_b32 s{sWS+1}, s{ptr(14)+1}
          s_mov_b32 s{sWS+2}, {WS_SIZE}
          s_mov_b32 s{sWS+3}, 0x20000
          s_mov_b32 s{sDBG}, s{ptr(13)}
          s_mov_b32 s{sDBG+1}, s{ptr(13)+1}
          s_mov_b32 s{sDBG+2}, 256
          s_mov_b32 s{sDBG+3}, 0x20000''')
    if opt.get('prof'):
        a(f's_memrealtime s[{sST}:{sST+1}]')
        a('s_waitcnt lgkmcnt(0)')
    if opt.get('fake_xcc') == 1:
        a(f'''s_lshr_b32 s{sJ}, s2, 5''')
    if opt.get('fake_xcc') == 2:
        a(f'''s_cmp_lt_u32 s2, 200
              s_cselect_b32 s{sJ}, s{sJ}, 3
              s_cmp_lt_u32 s2, 250
              s_cselect_b32 s{sJ}, s{sJ}, 10''')
    l1, l2 = a.newlabel('Le'), a.newlabel('Le')
    def sweep():
        ls = a.newlabel('Lsw')
        a(f'''s_lshl_b32 s{sT0}, s{sC}, 3
              s_add_u32 s{sT0}, s{sT0}, s{sW}
              s_cmp_ge_u32 s{sT0}, 240
              s_cbranch_scc1 {ls}
              s_mov_b32 m0, {SWEEP_LDS}
              v_and_b32 v9, 63, v0
              v_lshlrev_b32 v9, 4, v9
              v_add_u32 v10, 1024, v9
              v_add_u32 v11, {12288 + 512}, v9
              v_add_u32 v12, {12288 - 512}, v9
              v_cmp_gt_u32 vcc, 512, v9
              s_mul_i32 s{sT1}, s{sT0}, 52429
              s_lshr_b32 s{sT1}, s{sT1}, 22
              v_cndmask_b32 v10, v12, v10, vcc
              s_cmp_eq_u32 s{sT1}, 1
              s_cselect_b32 s{sT}, s{ptr(3)}, s{ptr(2)}
              s_cselect_b32 s{sT+1}, s{ptr(3)+1}, s{ptr(2)+1}
              s_cmp_eq_u32 s{sT1}, 2
              s_cselect_b32 s{sT}, s{ptr(4)}, s{sT}
              s_cselect_b32 s{sT+1}, s{ptr(4)+1}, s{sT+1}
              s_mov_b32 s{sT+2}, {DM*NH*DH*2}
              s_mov_b32 s{sT+3}, 0x20000
              s_mul_i32 s{sT1}, s{sT1}, 80
              s_sub_u32 s{sT1}, s{sT0}, s{sT1}
              s_mul_i32 s{sT1}, s{sT1}, {8*12288}
              s_mul_i32 s{sT2}, s{sJ}, 1536
              s_add_u32 s{sT1}, s{sT1}, s{sT2}''')
        for rp in range(4):
            for v in (9, 10, 11):
                a(f'buffer_load_dwordx4 v{v}, s[{sT}:{sT+3}], s{sT1} offen lds')
            if rp < 3: a(f's_add_u32 s{sT1}, s{sT1}, {2*12288}')
        srd(a, ptr(5), NH * DH * DM * 2)
        a(f'''s_mul_i32 s{sT1}, s{sJ}, {4*DH*DM*2}
              s_lshl_b32 s{sT0}, s{sT0}, 12
              s_add_u32 s{sT1}, s{sT1}, s{sT0}''')
        for k in range(4):
            a(f'buffer_load_dwordx4 v9, s[{sT}:{sT+3}], s{sT1} offen offset:{1024*k} lds')
        a.label(ls)
    a(f'''s_cmp_lg_u32 s{sW}, 0
          s_cbranch_scc1 {l1}
          s_mov_b64 exec, 1
          v_mov_b32 v2, 1
          s_lshl_b32 s{sT0}, s{sJ}, 2
          v_mov_b32 v3, s{sT0}
          buffer_atomic_add v2, v3, s[{sDBG}:{sDBG+3}], 0 offen sc0 sc1
          s_mov_b64 exec, -1''')
    a.label(l1)
    l3, l4, l5, l6, l7 = [a.newlabel('Le') for _ in range(5)]
    a(f'''s_cmp_lg_u32 s{sW}, 1
          s_cbranch_scc1 {l5}
          s_mov_b64 exec, 1
          v_mov_b32 v2, 0
          v_mov_b32 v3, 0
          v_mov_b32 v4, 0
          v_mov_b32 v5, 0
          s_lshl_b32 s{sT0}, s2, 4
          s_add_u32 s{sT0}, s{sT0}, {WS_FLAG}
          buffer_store_dwordx4 v[2:5], v2, s[{sWS}:{sWS+3}], s{sT0} offen sc1
          s_mov_b64 exec, -1''')
    a.label(l5)
    a(f'''s_waitcnt vmcnt(0)
          s_cmp_lg_u32 s{sW}, 0
          s_cbranch_scc1 {l3}
          s_mov_b64 exec, 1
          v_readfirstlane_b32 s{sT0}, v2
          s_cmp_ge_u32 s{sJ}, 8
          s_cselect_b32 s{sT0}, 32, s{sT0}
          s_cmp_lt_u32 s{sT0}, 32
          s_cbranch_scc1 {l6}
          v_mov_b32 v2, 1
          v_mov_b32 v3, 36
          buffer_atomic_add v2, v3, s[{sDBG}:{sDBG+3}], 0 offen sc0 sc1
          s_waitcnt vmcnt(0)
          v_add_u32 v2, 32, v2''')
    a.label(l6)
    l8 = a.newlabel('Le')
    a(f'''v_mov_b32 v4, 0
          s_or_b32 s{sT0}, s{sT0}, s{sJ}
          s_cmp_lg_u32 s{sT0}, 0
          s_cbranch_scc1 {l8}
          s_lshr_b32 s{sT0}, s2, 6
          s_lshl_b32 s{sT0}, s{sT0}, 14
          s_and_b32 s{sT1}, s2, 63
          s_lshl_b32 s{sT1}, s{sT1}, 7
          s_add_u32 s{sT0}, s{sT0}, s{sT1}
          s_add_u32 s{sT0}, s{sT0}, {WS_RC + RC_PROBE}
          s_add_u32 s{sT1}, s{sT0}, 8192
          s_mov_b32 s{sT2}, -1
          s_mov_b32 s{sT3}, -1''')
    for rnd in range(2):
        for cp in range(2):
            a(f'''v_mov_b32 v5, 0
                  s_memtime s[98:99]
                  s_waitcnt lgkmcnt(0)
                  buffer_atomic_add v5, v4, s[{sWS}:{sWS+3}], s{sT1 if cp else sT0} offen sc0 sc1
                  s_waitcnt vmcnt(0)
                  s_memtime s[100:101]
                  s_waitcnt lgkmcnt(0)
                  s_sub_u32 s98, s100, s98
                  s_min_u32 s{sT3 if cp else sT2}, s{sT3 if cp else sT2}, s98''')
    a(f'''s_mov_b64 s[98:99], 0
          s_mov_b64 s[100:101], 0
          s_cmp_lt_u32 s{sT3}, s{sT2}
          s_cselect_b32 s{sT2}, 0x15, 0x0a
          v_mov_b32 v4, s{sT2}''')
    a(f'''v_mov_b32 v5, 136
          buffer_store_dword v4, v5, s[{sDBG}:{sDBG+3}], 0 offen sc1
          s_waitcnt vmcnt(0)''')
    a.label(l8)
    a(f'''v_mov_b32 v3, 0
          ds_write_b32 v3, v2
          s_mov_b64 exec, -1
          s_waitcnt lgkmcnt(0)''')
    a.label(l3)
    a(f'''s_barrier
          v_mov_b32 v3, 0
          ds_read_b32 v2, v3
          s_cmp_lg_u32 s{sW}, 0
          s_cbranch_scc1 {l4}
          s_mov_b64 exec, 1
          v_mov_b32 v4, 1
          v_mov_b32 v5, 32
          buffer_atomic_add v4, v5, s[{sDBG}:{sDBG+3}], 0 offen sc1
          s_mov_b64 exec, -1''')
    a.label(l4)
    a(f'''s_waitcnt lgkmcnt(0)
          v_readfirstlane_b32 s{sC}, v2
          s_barrier
          s_cmp_lt_u32 s{sC}, 32
          s_cbranch_scc1 {l7}''')
    a('v_and_b32 v4, 15, v0')
    wait_registered(a, opt, 2, 3, 4)
    a(f's_sub_u32 s{sT1}, s{sC}, 32')
    a(f's_mov_b32 s{sJ}, 0')
    a(f's_mov_b32 s{sC}, 0')
    for x in range(8):
        a(f'''v_readlane_b32 s{sT0}, v2, {x}
              s_min_u32 s{sT0}, s{sT0}, 32
              s_sub_u32 s{sT2}, 32, s{sT0}
              s_add_u32 s{sT0}, s{sT0}, s{sT1}
              s_cmp_lt_u32 s{sT1}, s{sT2}
              s_cselect_b32 s{sJ}, {x}, s{sJ}
              s_cselect_b32 s{sC}, s{sT0}, s{sC}
              s_sub_u32 s{sT1}, s{sT1}, s{sT2}''')
    a.label(l7)
    a(f'''s_lshr_b32 s{sT0}, s{sC}, 4
          s_lshr_b32 s{sT1}, s{sJ}, 2
          s_and_b32 s{sJ}, s{sJ}, 3
          s_lshl_b32 s{sJ}, s{sJ}, 1
          s_add_u32 s{sJ}, s{sJ}, s{sT0}
          s_and_b32 s{sC}, s{sC}, 15
          s_lshl_b32 s{sT1}, s{sT1}, 4
          s_add_u32 s{sC}, s{sC}, s{sT1}''')
    if opt.get('prof'):
        a(f's_memrealtime s[{sST+8}:{sST+9}]')
        a('s_waitcnt lgkmcnt(0)')

import struct
def f32bits(x): return struct.unpack('<I', struct.pack('<f', x))[0]

def emit_chain_body(a, opt):
    ch = Chain(a, opt)
    lv, l7, lat = a.newlabel('Lrole_v'), a.newlabel('Lrole_w7'), a.newlabel('Lrole_att')
    a(f'''s_lshr_b32 s{sH}, s{sC}, 2
          s_lshl_b32 s{sT0}, s{sJ}, 2
          s_add_u32 s{sH}, s{sH}, s{sT0}
          s_and_b32 s{sG}, s{sC}, 3
          s_setprio 2
          s_cmp_eq_u32 s{sW}, 3
          s_cbranch_scc1 {lv}
          s_cmp_eq_u32 s{sW}, 7
          s_cbranch_scc1 {l7}
          s_cmp_ge_u32 s{sW}, 4
          s_cbranch_scc1 {lat}''')
    ch.role_qk()
    a.label(lv); ch.role_v()
    a.label(l7); ch.role_w7()
    a.label(lat); ch.role_att()
```

```python
from asmlib import *
from layout import *
from chain import (sWS, sDBG, sT, ptr, sW, sJ, sC, sMIX, sBUD, sT0, sT1, sT2, sT3, f32bits, wait_registered, emit_gates, SWEEP_LDS)
import math

XB, WB_OFF, WSZ = 32768, 65536, 24576
STAGE = XB
GEMM1_LDS = WB_OFF + 3 * WSZ

sX = 56
sWD = 60
sTile, sXo, sWo, sWrs, sKind, sOut, sNK, sNOut, sIt, sM0x, sM0w, sWstep = 64, 65, 66, 67, 68, 70, 71, 72, 73, 74, 75, 79
sFlagP = 80
sNFlag = 81
sC1, sC2 = 98, 99
sXoN, sWrd, sWwr = 100, 101, 97

class Gemm1:
    def __init__(self, a, opt, nworkers, rank0):
        self.a, self.opt, self.NW, self.rank0 = a, opt, nworkers, rank0
        self.tail = []
        self.inloop = False
        self.pending = []

    def lstore(self, insts, nt=False, cross=False):
        a = self.a
        if cross:
            for i in insts: a(i + (' sc1' if i.startswith('buffer_') else ''))
            return
        slow, back = a.newlabel('Lgslow'), a.newlabel('Lgback')
        a(f's_cmp_lg_u32 s{sMIX}, 0')
        a(f's_cbranch_scc1 {slow}')
        for i in insts: a(i + (' nt' if nt and i.startswith('buffer_') else ''))
        a.label(back)
        self.tail.append((slow, [i + ' sc1' if i.startswith('buffer_') else i for i in insts], back))

    def emit_tail(self):
        a = self.a
        for slow, insts, back in self.tail:
            a.label(slow)
            for i in insts: a(i)
            a(f's_branch {back}')
        self.tail = []

    def decode(self):
        a = self.a
        lf, ln, ld = a.newlabel('Ldf'), a.newlabel('Ldn'), a.newlabel('Ldd')
        a(f'''s_cmp_ge_u32 s{sTile}, 112
              s_cbranch_scc1 {ln}
              s_cmp_ge_u32 s{sTile}, 96
              s_cbranch_scc1 {lf}
              s_mul_i32 s{sT0}, s{sTile}, 43691
              s_lshr_b32 s{sT0}, s{sT0}, 19
              s_mul_i32 s{sT1}, s{sT0}, 12
              s_sub_u32 s{sT1}, s{sTile}, s{sT1}
              s_lshr_b32 s{sNK}, s{sT1}, 2
              s_and_b32 s{sT1}, s{sT1}, 3
              s_lshl_b32 s{sT2}, s{sJ}, 2
              s_add_u32 s{sT1}, s{sT1}, s{sT2}
              s_mul_i32 s{sXoN}, s{sT0}, {256*1280}
              s_mul_i32 s{sWo}, s{sT1}, 384
              s_mov_b32 s{sWrs}, 12288
              s_cmp_eq_u32 s{sNK}, 1
              s_cselect_b32 s{sWD}, s{ptr(3)}, s{ptr(2)}
              s_cselect_b32 s{sWD+1}, s{ptr(3)+1}, s{ptr(2)+1}
              s_cmp_eq_u32 s{sNK}, 2
              s_cselect_b32 s{sWD}, s{ptr(4)}, s{sWD}
              s_cselect_b32 s{sWD+1}, s{ptr(4)+1}, s{sWD+1}
              s_mov_b32 s{sWD+2}, {DM*NH*DH*2}
              s_mul_i32 s{sNOut}, s{sNK}, {WS_K}
              s_mul_i32 s{sT2}, s{sT1}, {2048*384}
              s_add_u32 s{sNOut}, s{sNOut}, s{sT2}
              s_mul_i32 s{sT2}, s{sT0}, {256*384}
              s_add_u32 s{sNOut}, s{sNOut}, s{sT2}
              s_mul_i32 s{sT2}, s{sW}, 3
              s_lshr_b32 s{sT3}, s{sT2}, 2
              s_branch {ld}''')
        a.label(lf)
        a(f'''s_sub_u32 s{sT1}, s{sTile}, 96
              s_lshr_b32 s{sT0}, s{sT1}, 1
              s_and_b32 s{sT1}, s{sT1}, 1
              s_mov_b32 s{sNK}, 3
              s_mul_i32 s{sXoN}, s{sT0}, {256*1280}
              s_mul_i32 s{sWo}, s{sJ}, 384
              s_mul_i32 s{sT2}, s{sT1}, 192
              s_add_u32 s{sWo}, s{sWo}, s{sT2}
              s_mov_b32 s{sWrs}, 3072
              s_cmp_ge_u32 s{sW}, 4
              s_cselect_b32 s{sWD}, s{ptr(9)}, s{ptr(8)}
              s_cselect_b32 s{sWD+1}, s{ptr(9)+1}, s{ptr(8)+1}
              s_mov_b32 s{sWD+2}, {DM*DF*2}
              s_mul_i32 s{sNOut}, s{sT0}, {8*98304}
              s_lshl_b32 s{sT2}, s{sWo}, 4
              s_add_u32 s{sNOut}, s{sNOut}, s{sT2}
              s_add_u32 s{sNOut}, s{sNOut}, {WS_H}
              s_and_b32 s{sT2}, s{sW}, 3
              s_mul_i32 s{sT2}, s{sT2}, 3
              s_lshr_b32 s{sT3}, s{sT2}, 2
              s_branch {ld}''')
        a.label(ln)
        a(f'''s_mov_b32 s{sNK}, 4
              s_mov_b32 s{sWD+2}, 0
              s_mov_b32 s{sT2}, 0
              s_mov_b32 s{sT3}, 0''')
        a.label(ld)
        if self.opt.get('g_hit'):
            a(f's_mov_b32 s{sXoN}, 0')
            a(f's_mov_b32 s{sWo}, 0')
            a(f's_mov_b32 s{sWD}, s{ptr(2)}')
            a(f's_mov_b32 s{sWD+1}, s{ptr(2)+1}')
        for ii in range(3):
            a(f'''s_add_u32 s{sT0}, s{sT2}, {ii}
                  s_lshr_b32 s{sT1}, s{sT0}, 2
                  s_and_b32 s{sT0}, s{sT0}, 3
                  s_lshl_b32 s{sT0}, s{sT0}, 4
                  s_mul_i32 s{sT0}, s{sT0}, s{sWrs}
                  s_lshl_b32 s{sT1}, s{sT1}, 6
                  s_add_u32 s{sT0}, s{sT0}, s{sT1}
                  s_add_u32 s{self.sP+ii}, s{sT0}, s{sWo}''')
        a(f'''s_mul_i32 s{sT0}, s{sW}, {32*1280}
              s_add_u32 s{sXoN}, s{sXoN}, s{sT0}
              s_lshl_b32 s{sWstep}, s{sWrs}, 6
              v_mul_lo_u32 v{self.vWg}, v{self.vL2}, s{sWrs}
              v_add_u32 v{self.vWg}, v{self.vWg}, v{self.vL3}''')

    def dma_x(self, buf):
        a = self.a
        for ii in range(4):
            a(f's_add_u32 m0, s{sM0x}, {buf*STAGE + ii*1024}')
            a(f's_add_u32 s{sT0}, s{sXo}, {ii*10240}' if ii else 's_nop 0')
            a(f'buffer_load_dwordx4 v{self.vXg + (ii & 1)}, s[{sX}:{sX+3}], s{sT0 if ii else sXo} offen lds')
        a(f's_add_u32 s{sXo}, s{sXo}, 128')

    def rot(self, r):
        self.a(f'''s_add_u32 s{r}, s{r}, {WSZ}
                   s_cmp_eq_u32 s{r}, {3*WSZ}
                   s_cselect_b32 s{r}, 0, s{r}''')

    def dma_w(self):
        a = self.a
        a(f's_add_u32 s{sT1}, s{sM0w}, s{sWwr}')
        for ii in range(3):
            a(f's_add_u32 m0, s{sT1}, {ii*1024}')
            a('s_nop 0')
            a(f'buffer_load_dwordx4 v{self.vWg}, s[{sWD}:{sWD+3}], s{self.sP+ii} offen lds')
            a(f's_add_u32 s{self.sP+ii}, s{self.sP+ii}, s{sWstep}')
        self.rot(sWwr)

    def dma(self, buf):
        if self.opt.get('g_nodma') and self.inloop: return
        self.dma_x(buf)
        self.dma_w()

    def reads(self, var, buf, kk, fs):
        a = self.a
        MT, NT = var
        F = self.F + fs * 28
        xa = (self.vXr if MT == 2 else self.vXr1) + buf * 4 + kk
        out = []
        for mt in range(MT):
            out.append(f'ds_read_b128 v[{F+4*mt}:{F+4*mt+3}], v{xa} offset:{4096*mt}')
        wa = self.vWc
        for nt in range(NT):
            for j in range(2):
                r = F + 4*MT + 4*nt + 2*j
                out.append(f'ds_read_b64_tr_b16 v[{r}:{r+1}], v{wa} offset:{4096*nt + 1024*kk + 256*j}')
        return out

    def mfmas(self, var, swap, fs, first):
        MT, NT = var
        F = self.F + fs * 28
        out = []
        for mt in range(MT):
            for nt in range(NT):
                acc = self.ACC + 16 * (mt * NT + nt)
                x = f'v[{F+4*mt}:{F+4*mt+3}]'; w = f'v[{F+4*MT+4*nt}:{F+4*MT+4*nt+3}]'
                A, B = (x, w) if swap else (w, x)
                c = '0' if first else f'v[{acc}:{acc+15}]'
                if self.opt.get('g_fake16') and not first:
                    q = acc + 8 * fs
                    out.append(f'v_mfma_f32_16x16x32_bf16 v[{q}:{q+3}], {A}, {B}, v[{q}:{q+3}]\nv_mfma_f32_16x16x32_bf16 v[{q+4}:{q+7}], {B}, {A}, v[{q+4}:{q+7}]')
                    continue
                out.append(f'v_mfma_f32_32x32x16_bf16 v[{acc}:{acc+15}], {A}, {B}, {c}')
        return out

    def interleave(self, mf, other):
        a = self.a
        n = len(mf); per = (len(other) + n - 1) // n if other else 0
        k = 0
        for m in mf:
            a(m)
            for o in other[k:k + per]: a(o)
            k += per
        for o in other[k:]: a(o)

    def stage_top(self, var=None, full=0):
        a = self.a
        if var is not None:
            a(f'v_add_u32 v{self.vWn}, s{sWrd}, v{self.vWr if var[0] == 2 else self.vWr1}')
            self.rot(sWrd)
        a(f's_waitcnt vmcnt({full}) lgkmcnt(0)')
        if var is not None: a(f'v_mov_b32 v{self.vWc}, v{self.vWn}')
        a('s_barrier')

    def tile_loop(self, var, swap, name):
        a = self.a
        nr = var[0] + 2 * var[1]
        loop = a.newlabel('L' + name)
        self.stage_top(var, 15)
        if var == (1, 6) and self.opt.get('fused'):
            l = a.newlabel('Lgg')
            a(f'''s_cmp_lg_u32 s{sW}, 1
                  s_cbranch_scc1 {l}
                  v_mov_b32 v{self.vT0}, 132
                  s_mov_b64 exec, 1
                  buffer_atomic_add v{self.vOne}, v{self.vT0}, s[{sDBG}:{sDBG+3}], 0 offen sc1
                  s_mov_b64 exec, -1''')
            a.label(l)
        for r in self.reads(var, 0, 0, 0): a(r)
        self.dma(1)
        def body(buf, kstart_first):
            for kk in range(3):
                rd = self.reads(var, buf, kk + 1, (kk + 1) & 1)
                a(f's_waitcnt lgkmcnt(0)')
                self.interleave(self.mfmas(var, swap, kk & 1, kstart_first and kk == 0), rd)
        body(0, True)
        a(f's_mov_b32 s{sIt}, 0')
        a.label(loop)
        for buf in (1, 0):
            self.stage_top(var, 3)
            if buf == 1:
                nf = a.newlabel('Lgnf')
                a(f's_cmp_lg_u32 s{sIt}, 0')
                a(f's_cbranch_scc1 {nf}')
                self.after_top()
                a.label(nf)
            rd = self.reads(var, buf, 0, 0)
            self.interleave(self.mfmas(var, swap, 1, False), rd)
            skip = a.newlabel('Lgn')
            if buf == 0:
                a(f's_cmp_lg_u32 s{sIt}, 3')
                a(f's_cbranch_scc1 {skip}')
                a(f's_add_u32 s{sTile}, s{sTile}, {self.NW}')
                self.decode()
            else:
                a(f's_cmp_eq_u32 s{sIt}, 4')
                a(f's_cselect_b32 s{sXo}, s{sXoN}, s{sXo}')
            a.label(skip)
            self.dma(buf ^ 1)
            body(buf, False)
            if buf == 1:
                a(f's_cmp_eq_u32 s{sIt}, 4')
                a(f's_cbranch_scc1 {name}_done')
        a(f's_add_u32 s{sIt}, s{sIt}, 1')
        a(f's_branch {loop}')
        a.label(f'{name}_done')
        a('s_waitcnt lgkmcnt(0)')
        for m in self.mfmas(var, swap, 1, False): a(m)
        a('s_nop 7'); a('s_nop 3')
        if self.opt.get('fused'):
            l = a.newlabel('Lgreg')
            a(f's_cmp_lg_u32 s{sFlagP}, 0')
            a(f's_cbranch_scc1 {l}')
            if self.opt.get('prof'):
                a('s_memrealtime s[88:89]'); a('s_waitcnt lgkmcnt(0)')
            a(f'v_and_b32 v{self.vT2}, 15, v0')
            wait_registered(a, self.opt, self.vT0, self.vT1, self.vT2)
            a.label(l)

    def after_top(self):
        if not self.opt.get('fused'): return
        a = self.a
        l = a.newlabel('Lgf')
        a(f'''s_cmp_eq_u32 s{sFlagP}, 0
              s_cbranch_scc1 {l}
              s_cmp_lg_u32 s{sW}, 0
              s_cbranch_scc1 {l}
              s_mov_b64 exec, 1''')
        self.lstore([f'buffer_store_dword v{self.vOne}, v{self.vZero}, s[{sWS}:{sWS+3}], s{sFlagP} offen'], cross=True)
        a('s_mov_b64 exec, -1')
        a.label(l)

    def emit(self, done_label):
        a = self.a
        al = Alloc(1, 256)
        self.ACC = al(96, 2); self.F = al(56, 2)
        self.vXg = al(2); self.vWg = al()
        self.vXr = al(8); self.vXr1 = al(8); self.vWr = al(); self.vWr1 = al(); self.vWc = al(); self.vWn = al()
        self.vL2, self.vL3 = al(), al()
        vL, vT0, vT1, vT2 = al(), al(), al(), al()
        vQK, vV, vH = al(), al(), al()
        self.vT0, self.vT1, self.vT2 = vT0, vT1, vT2
        self.vOne, self.vZero = al(), al()
        self.sP = 94
        a(f'''v_and_b32 v{vL}, 63, v0
              v_mov_b32 v{self.vOne}, 1
              v_mov_b32 v{self.vZero}, 0
              s_mov_b32 s{sX}, s{ptr(0)}
              s_mov_b32 s{sX+1}, s{ptr(0)+1}
              s_mov_b32 s{sX+2}, {S*DM*2}
              s_mov_b32 s{sX+3}, 0x20000
              s_mov_b32 s{sWD}, s{ptr(2)}
              s_mov_b32 s{sWD+1}, s{ptr(2)+1}
              s_mov_b32 s{sWD+3}, 0x20000
              s_mov_b32 s{sWrs}, 0
              s_mov_b32 s{sWo}, 0
              s_mov_b32 s{sXo}, 0
              s_mov_b32 s{sXoN}, 0
              s_mov_b32 s{sWrd}, 0
              s_mov_b32 s{sWwr}, 0
              s_mov_b32 s{sNOut}, 0
              s_mov_b32 s{sFlagP}, 0
              s_mov_b32 s{sC1}, {hex(f32bits(-2 * math.sqrt(2 / math.pi) * math.log2(math.e)))}
              s_mov_b32 s{sC2}, {hex(f32bits(-2 * math.sqrt(2 / math.pi) * math.log2(math.e) * 0.044715))}
              s_lshl_b32 s{sM0x}, s{sW}, 12
              s_mul_i32 s{sM0w}, s{sW}, 3072
              s_add_u32 s{sM0w}, s{sM0w}, {WB_OFF}
              s_sub_u32 s{sTile}, s{sC}, {self.rank0}
              v_lshrrev_b32 v{self.vL2}, 2, v{vL}
              v_and_b32 v{self.vL3}, 3, v{vL}
              v_lshlrev_b32 v{self.vL3}, 4, v{self.vL3}''')
        for par in range(2):
            a(f'''v_lshrrev_b32 v{vT0}, 4, v{vL}
                  v_add_u32 v{vT0}, {4*par}, v{vT0}
                  v_and_b32 v{vT1}, 7, v{vL}
                  v_xor_b32 v{vT0}, v{vT0}, v{vT1}
                  v_lshlrev_b32 v{vT0}, 4, v{vT0}
                  v_lshrrev_b32 v{vT1}, 3, v{vL}
                  v_mul_u32_u24 v{vT1}, 1280, v{vT1}
                  v_add_u32 v{self.vXg+par}, v{vT0}, v{vT1}''')
        a(f'''v_and_b32 v{vT0}, 31, v{vL}
              v_bfe_u32 v{vT1}, v{vL}, 1, 3
              v_lshrrev_b32 v{vT2}, 5, v{vL}
              v_xor_b32 v{vT1}, v{vT1}, v{vT2}
              s_lshr_b32 s{sT0}, s{sW}, 1
              s_lshl_b32 s{sT0}, s{sT0}, 13
              s_lshl_b32 s{sT1}, s{sW}, 12''')
        for kk in range(4):
            a(f'''v_xor_b32 v{vT2}, {2*kk}, v{vT1}
                  v_lshlrev_b32 v{vT2}, 4, v{vT2}
                  v_lshl_add_u32 v{vT2}, v{vT0}, 7, v{vT2}
                  v_add_u32 v{self.vXr+kk}, s{sT0}, v{vT2}
                  v_add_u32 v{self.vXr1+kk}, s{sT1}, v{vT2}
                  v_add_u32 v{self.vXr+4+kk}, {STAGE}, v{self.vXr+kk}
                  v_add_u32 v{self.vXr1+4+kk}, {STAGE}, v{self.vXr1+kk}''')
        a(f'''v_lshrrev_b32 v{vT0}, 5, v{vL}
              v_lshlrev_b32 v{vT0}, 9, v{vT0}
              v_bfe_u32 v{vT1}, v{vL}, 2, 2
              v_lshl_add_u32 v{vT0}, v{vT1}, 6, v{vT0}
              v_bfe_u32 v{vT1}, v{vL}, 4, 1
              v_lshl_add_u32 v{vT0}, v{vT1}, 5, v{vT0}
              v_and_b32 v{vT1}, 3, v{vL}
              v_lshl_add_u32 v{vT0}, v{vT1}, 3, v{vT0}
              v_add_u32 v{self.vWr1}, {WB_OFF}, v{vT0}
              s_and_b32 s{sT0}, s{sW}, 1
              s_mul_i32 s{sT0}, s{sT0}, {3*4096}
              v_add_u32 v{self.vWr}, s{sT0}, v{self.vWr1}''')
        a(f'''v_and_b32 v{vT0}, 15, v{vL}
              v_lshlrev_b32 v{vT0}, 4, v{vT0}
              v_lshrrev_b32 v{vT1}, 5, v{vL}
              v_lshl_add_u32 v{vT0}, v{vT1}, 8, v{vT0}
              v_bfe_u32 v{vT1}, v{vL}, 4, 1
              s_lshr_b32 s{sT0}, s{sW}, 1
              s_and_b32 s{sT1}, s{sW}, 1
              s_mul_i32 s{sT0}, s{sT0}, 24576
              v_mul_u32_u24 v{vQK}, 6144, v{vT1}
              v_add_u32 v{vQK}, v{vQK}, v{vT0}
              s_mul_i32 s{sT3}, s{sT1}, 3072
              s_add_u32 s{sT2}, s{sT0}, s{sT3}
              v_add_u32 v{vQK}, s{sT2}, v{vQK}
              v_lshl_add_u32 v{vV}, v{vT1}, 10, v{vT0}
              s_mul_i32 s{sT3}, s{sT1}, 6144
              s_add_u32 s{sT2}, s{sT0}, s{sT3}
              v_add_u32 v{vV}, s{sT2}, v{vV}
              v_mul_u32_u24 v{vH}, 49152, v{vT1}
              v_add_u32 v{vH}, v{vH}, v{vT0}
              s_mul_i32 s{sT2}, s{sW}, 98304
              v_add_u32 v{vH}, s{sT2}, v{vH}''')
        self.decode()
        a(f's_mov_b32 s{sXo}, s{sXoN}')
        self.dma(0)
        self.dma_w()
        if self.opt.get('x_sweep'):
            a(f'''s_sub_u32 s{sT0}, s{sC}, {self.rank0}
                  s_lshl_b32 s{sT0}, s{sT0}, 3
                  s_add_u32 s{sT0}, s{sT0}, s{sW}
                  s_mul_i32 s{sT0}, s{sT0}, 5120
                  s_add_u32 s{sT1}, s{sT0}, 4096
                  s_mov_b32 m0, {SWEEP_LDS}
                  v_lshlrev_b32 v{vT0}, 4, v{vL}''')
            for k in range(5):
                a(f'buffer_load_dwordx4 v{vT0}, s[{sX}:{sX+3}], s{sT1 if k == 4 else sT0} offen offset:{1024*(k & 3)} lds')
        a('s_waitcnt vmcnt(%d)' % (8 if self.opt.get('x_sweep') else 3))
        self.inloop = True
        nxt = a.newlabel('Lgnext')
        lqk, lv, lf = 'Lg_qk', 'Lg_v', 'Lg_f'
        a.label(nxt)
        a(f'''s_mov_b32 s{sKind}, s{sNK}
              s_mov_b32 s{sOut}, s{sNOut}
              s_lshl_b32 s{sNFlag}, s{sTile}, 2
              s_cmp_eq_u32 s{sKind}, 4
              s_cbranch_scc1 Lg_end
              s_cmp_eq_u32 s{sKind}, 2
              s_cbranch_scc1 {lv}
              s_cmp_eq_u32 s{sKind}, 3
              s_cbranch_scc1 {lf}''')
        def set_flag():
            a(f'''s_mul_i32 s{sFlagP}, s{sJ}, 512
                  s_add_u32 s{sFlagP}, s{sFlagP}, s{sNFlag}
                  s_add_u32 s{sFlagP}, s{sFlagP}, {WS_FLAG}''')
        ACC = self.ACC
        self.tile_loop((2, 3), False, lqk)
        st = []
        for mt in range(2):
            a(f's_add_u32 s{sT0+0 if mt == 0 else sT1}, s{sOut}, {mt*12288}')
        for mt in range(2):
            for nt in range(3):
                c = ACC + 16 * (mt * 3 + nt)
                for r in range(8):
                    a(f'v_cvt_pk_bf16_f32 v{c+r}, v{c+2*r}, v{c+2*r+1}')
                for u in range(2):
                    st.append(f'buffer_store_dwordx4 v[{c+4*u}:{c+4*u+3}], v{vQK}, s[{sWS}:{sWS+3}], s{sT1 if mt else sT0} offen offset:{1024*nt + 512*u}')
        self.lstore(st, cross=True)
        set_flag()
        a(f's_branch {nxt}')
        a.label(lv)
        self.tile_loop((2, 3), True, lv + 'x')
        st = []
        for mt in range(2):
            a(f's_add_u32 s{sT1 if mt else sT0}, s{sOut}, {mt*12288}')
        for mt in range(2):
            for nt in range(3):
                c = ACC + 16 * (mt * 3 + nt)
                a(f'''v_cvt_pk_bf16_f32 v{c}, v{c}, v{c+1}
                      v_cvt_pk_bf16_f32 v{c+1}, v{c+2}, v{c+3}
                      v_cvt_pk_bf16_f32 v{c+2}, v{c+8}, v{c+9}
                      v_cvt_pk_bf16_f32 v{c+3}, v{c+10}, v{c+11}
                      v_cvt_pk_bf16_f32 v{c+4}, v{c+4}, v{c+5}
                      v_cvt_pk_bf16_f32 v{c+5}, v{c+6}, v{c+7}
                      v_cvt_pk_bf16_f32 v{c+6}, v{c+12}, v{c+13}
                      v_cvt_pk_bf16_f32 v{c+7}, v{c+14}, v{c+15}''')
                for u in range(2):
                    off = 2048*nt + 512*u
                    so = sT1 if mt else sT0
                    if off >= 4096:
                        st.append(f's_add_u32 s{sT2}, s{so}, 4096'); so = sT2; off -= 4096
                    st.append(f'buffer_store_dwordx4 v[{c+4*u}:{c+4*u+3}], v{vV}, s[{sWS}:{sWS+3}], s{so} offen offset:{off}')
        self.lstore(st, cross=True)
        set_flag()
        a(f's_branch {nxt}')
        a.label(lf)
        if self.opt.get('fused'):
            a(f'''s_lshl_b32 s{sIt}, s{sJ}, 4
                  s_add_u32 s{sIt}, s{sIt}, s{sC}
                  s_sub_u32 s{sIt}, s{sIt}, {self.rank0}
                  s_lshl_b32 s{sIt}, s{sIt}, 3
                  s_add_u32 s{sIt}, s{sIt}, s{sW}
                  s_lshl_b32 s{sIt}, s{sIt}, 1''')
            emit_gates(a, sIt, 2, vL, self.ACC)
        self.tile_loop((1, 6), False, lf + 'x')
        st = []
        T = self.F
        for nt in range(3):
            g, u = ACC + 16 * nt, ACC + 16 * (3 + nt)
            for r0 in range(0, 16, 8):
                R = range(r0, r0 + 8)
                for r in R: a(f'v_mul_f32 v{T+r-r0}, v{g+r}, v{g+r}')
                for r in R: a(f'v_mov_b32 v{T+8+r-r0}, s{sC1}')
                for r in R: a(f'v_fma_f32 v{T+r-r0}, v{T+r-r0}, s{sC2}, v{T+8+r-r0}')
                for r in R: a(f'v_mul_f32 v{T+r-r0}, v{T+r-r0}, v{g+r}')
                for r in R: a(f'v_exp_f32 v{T+r-r0}, v{T+r-r0}')
                for r in R: a(f'v_mul_f32 v{g+r}, v{g+r}, v{u+r}')
                for r in R: a(f'v_add_f32 v{T+r-r0}, 1.0, v{T+r-r0}')
                for r in R: a(f'v_rcp_f32 v{T+r-r0}, v{T+r-r0}')
                a('s_nop 0')
                for r in R: a(f'v_mul_f32 v{g+r}, v{g+r}, v{T+r-r0}')
            for r in range(8):
                a(f'v_cvt_pk_bf16_f32 v{g+r}, v{g+2*r}, v{g+2*r+1}')
            for uu in range(2):
                st.append(f'buffer_store_dwordx4 v[{g+4*uu}:{g+4*uu+3}], v{vH}, s[{sWS}:{sWS+3}], s{sOut} offen offset:{1024*nt + 512*uu}')
        self.lstore(st)
        set_flag()
        a(f's_branch {nxt}')
        a.label('Lg_end')
        self.stage_top()
        self.after_top()
        a(f's_branch {done_label}')
        self.emit_tail()
```

```python
from asmlib import *
from layout import *
from chain import (sWS, sDBG, sT, ptr, sW, sJ, sC, sMIX, sBUD, sT0, sT1, sT2, sT3, sSELLO, sSELHI, srd)

PBUF = 6 * 5120
P3_LDS = 2 * PBUF
sNN, sTH, sKG, sTT, sSeg, sAct, sActStep, sNKS, sLds, sPo, sOUT = 56, 57, 58, 59, 64, 65, 66, 67, 68, 70, 60
sOF, sPFo = 71, 72

class Phase3:
    def __init__(self, a, opt, nworkers, rank0):
        self.a, self.opt, self.NW, self.rank0 = a, opt, nworkers, rank0
        self.NTH = nworkers // 8

    def retry(self, label):
        self.a(f'''s_sub_u32 s{sBUD}, s{sBUD}, 1
                   s_cbranch_scc0 {label}
                   s_mov_b32 s{sBUD}, 0''')

    def wait_flags(self, nlanes, soff, vOff4, vT, seg=None, vT2=None):
        a = self.a
        lp, ok = a.newlabel('Lpf'), a.newlabel('Lpfok')
        a(f's_mov_b64 exec, {hex((1 << nlanes) - 1)}' if nlanes <= 32 else f's_mov_b64 exec, s[{self.sM48}:{self.sM48+1}]')
        if seg is not None:
            a(f'v_lshlrev_b32 v{vT2}, 5, v{vOff4}')
            vOff4 = vT2
        cmp = f'v_cmp_eq_u32 vcc, 0, v{vT}' if seg is None else f'v_cmp_ge_u32 vcc, s{seg}, v{vT}'
        a.label(lp)
        a(f'''buffer_load_dword v{vT}, v{vOff4}, s[{sWS}:{sWS+3}], s{soff} offen sc1
              s_waitcnt vmcnt(0)
              {cmp}
              s_cbranch_vccz {ok}
              s_sleep {self.opt.get('p_sleep', 4)}''')
        self.retry(lp)
        a.label(ok)
        a('s_mov_b64 exec, -1')

    def load_w(self, W, nks, rel, vP, vS, vSel, vtmp, tmps):
        a = self.a
        def issue(ks):
            for p in range(4):
                base = W + ks * 20
                a(f's_mov_b32 s{sT0}, {rel(ks, p) * 1280}')
                a(f's_mov_b32 s{sT1}, {(rel(ks, p) + 1) * 1280}')
                for pr in range(2):
                    a(f'buffer_load_dword v{base+8*pr+p}, v{vP}, s[{sT}:{sT+3}], s{sT0} offen offset:{64*pr}')
                    a(f'buffer_load_dword v{base+8*pr+4+p}, v{vP}, s[{sT}:{sT+3}], s{sT1} offen offset:{64*pr}')
                a(f'buffer_load_dword v{base+16+p}, v{vS}, s[{sT}:{sT+3}], s{sT0} offen')
                a(f'buffer_load_dword v{tmps+(ks&1)*4+p}, v{vS}, s[{sT}:{sT+3}], s{sT1} offen')
        def fix(ks):
            base = W + ks * 20
            for p in range(4):
                for pr in range(2):
                    ra, rb = base + 8*pr + p, base + 8*pr + 4 + p
                    a(f'v_perm_b32 v{vtmp}, v{rb}, v{ra}, s{sSELLO}')
                    a(f'v_perm_b32 v{rb}, v{rb}, v{ra}, s{sSELHI}')
                    a(f'v_mov_b32 v{ra}, v{vtmp}')
                a(f'v_perm_b32 v{base+16+p}, v{tmps+(ks&1)*4+p}, v{base+16+p}, v{vSel}')
        issue(0)
        for ks in range(nks):
            if ks + 1 < nks:
                issue(ks + 1); a('s_waitcnt vmcnt(24)')
            else:
                a('s_waitcnt vmcnt(0)')
            fix(ks)

    def emit(self, done_label):
        a = self.a
        fused = self.opt.get('fused')
        NTH = self.NTH
        al = Alloc(0, 256)
        vL4 = al()
        vQ, vT0, vT1 = al(), al(), al()
        W = al(160, 2); ACT = al(64, 2); ACC = al(20, 2)
        vAct, vG0, vG1, vGo, vLw, vPo, vFi, vFo = [al() for _ in range(8)]
        vL, vN, vT2, vSel = ACC, ACC + 1, ACC + 2, ACC + 3
        self.sM48 = 74
        sPre, sPend, sFin = 73, 80, 81
        a(f"""v_and_b32 v{vL}, 63, v0
              v_and_b32 v{vN}, 15, v0
              v_bfe_u32 v{vQ}, v0, 4, 2
              s_mov_b32 s{sSELLO}, 0x05040100
              s_mov_b32 s{sSELHI}, 0x07060302
              s_mov_b32 s{self.sM48}, -1
              s_mov_b32 s{self.sM48+1}, 0xffff
              s_sub_u32 s{sT0}, s{sC}, {self.rank0}
              s_and_b32 s{sNN}, s{sT0}, 7
              s_lshr_b32 s{sTH}, s{sT0}, 3
              s_lshr_b32 s{sKG}, s{sW}, 1
              s_and_b32 s{sTT}, s{sW}, 1
              s_mov_b32 s{sOUT}, s{ptr(12)}
              s_mov_b32 s{sOUT+1}, s{ptr(12)+1}
              s_mov_b32 s{sOUT+2}, {S*DM*2}
              s_mov_b32 s{sOUT+3}, 0x20000
              v_lshlrev_b32 v{vL4}, 2, v{vL}
              v_and_b32 v{vT0}, 1, v{vN}
              v_cmp_eq_u32 vcc, 1, v{vT0}
              v_mov_b32 v{vSel}, s{sSELLO}
              v_mov_b32 v{vT0}, s{sSELHI}
              s_nop 1
              v_cndmask_b32 v{vSel}, v{vSel}, v{vT0}, vcc""")
        lh, lw = a.newlabel('Lp3h'), a.newlabel('Lp3w')
        vP, vS = vAct, vGo
        a(f"""s_cmp_eq_u32 s{sKG}, 0
              s_cbranch_scc1 {lh}""")
        srd(a, ptr(5), NH * DH * DM * 2)
        a(f"""s_mul_i32 s{sT0}, s{sJ}, 768
              s_lshl_b32 s{sT1}, s{sKG}, 8
              s_add_u32 s{sT0}, s{sT0}, s{sT1}
              s_sub_u32 s{sT0}, s{sT0}, 256
              s_lshl_b32 s{sAct}, s{sT0}, 5
              s_add_u32 s{sAct}, s{sAct}, {WS_O}
              s_mul_i32 s{sT0}, s{sT0}, 1280
              s_mul_i32 s{sT1}, s{sNN}, 160
              s_add_u32 s{sT0}, s{sT0}, s{sT1}
              v_mul_u32_u24 v{vP}, {8*1280}, v{vQ}
              v_add_u32 v{vP}, s{sT0}, v{vP}
              v_and_b32 v{vT0}, 14, v{vN}
              v_lshl_add_u32 v{vS}, v{vT0}, 1, v{vP}
              v_add_u32 v{vS}, 128, v{vS}
              v_lshl_add_u32 v{vP}, v{vN}, 2, v{vP}""")
        self.load_w(W, 8, lambda ks, p: 32*ks + 2*p, vP, vS, vSel, vT0, ACT)
        a(f"""s_mov_b32 s{sActStep}, 12288
              s_branch {lw}""")
        a.label(lh)
        srd(a, ptr(10), DF * DM * 2)
        a(f"""s_mul_i32 s{sT0}, s{sJ}, 192
              s_lshl_b32 s{sAct}, s{sT0}, 5
              s_add_u32 s{sAct}, s{sAct}, {WS_H}
              s_mul_i32 s{sT0}, s{sT0}, 1280
              s_mul_i32 s{sT1}, s{sNN}, 160
              s_add_u32 s{sT0}, s{sT0}, s{sT1}
              v_lshrrev_b32 v{vT0}, 1, v{vQ}
              v_lshlrev_b32 v{vT0}, 4, v{vT0}
              v_and_b32 v{vT1}, 1, v{vQ}
              v_lshl_add_u32 v{vT0}, v{vT1}, 2, v{vT0}
              v_mul_u32_u24 v{vP}, 1280, v{vT0}
              v_add_u32 v{vP}, s{sT0}, v{vP}
              v_and_b32 v{vT0}, 14, v{vN}
              v_lshl_add_u32 v{vS}, v{vT0}, 1, v{vP}
              v_add_u32 v{vS}, 128, v{vS}
              v_lshl_add_u32 v{vP}, v{vN}, 2, v{vP}""")
        self.load_w(W, 6, lambda ks, p: 32*ks + 8*(p >> 1) + 2*(p & 1), vP, vS, vSel, vT0, ACT)
        a(f's_mov_b32 s{sActStep}, 3072')
        a.label(lw)
        a(f"""s_lshl_b32 s{sT0}, s{sTT}, 4
              v_add_u32 v{vT0}, s{sT0}, v{vN}
              s_mul_i32 s{sT1}, s{sT0}, s{sActStep}
              v_lshlrev_b32 v{vAct}, 4, v{vL}
              v_add_u32 v{vAct}, s{sT1}, v{vAct}
              v_lshlrev_b32 v{vGo}, 2, v{vT0}
              v_mul_u32_u24 v{vPo}, 160, v{vT0}
              s_lshl_b32 s{sActStep}, s{sActStep}, 5
              s_sub_u32 s{sT0}, s{sW}, 2
              s_cmp_eq_u32 s{sKG}, 0
              s_cselect_b32 s{sT0}, s{sW}, s{sT0}
              s_mul_i32 s{sT0}, s{sT0}, 5120
              v_lshlrev_b32 v{vLw}, 4, v{vL}
              v_add_u32 v{vLw}, s{sT0}, v{vLw}
              s_max_u32 s{sT0}, s{sW}, 3
              s_sub_u32 s{sT0}, s{sT0}, 3
              s_lshl_b32 s{sT0}, s{sT0}, 6
              v_add_u32 v{vT0}, s{sT0}, v{vL}
              v_lshlrev_b32 v{vFi}, 4, v{vT0}
              v_mul_u32_u24 v{vT1}, 6554, v{vT0}
              v_lshrrev_b32 v{vT1}, 16, v{vT1}
              v_mul_u32_u24 v{vT2}, 1120, v{vT1}
              v_add_u32 v{vFo}, v{vFi}, v{vT2}
              s_mov_b32 s{sSeg}, s{sTH}
              s_mov_b32 s{sPre}, 0
              s_mov_b32 s{sPend}, 0""")
        if not fused:
            lp, ok = a.newlabel('Lp3r'), a.newlabel('Lp3rok')
            a.label(lp)
            a(f"""buffer_load_dword v{vT0}, v{vL4}, s[{sDBG}:{sDBG+3}], 0 offen sc0 sc1
                  s_waitcnt vmcnt(0)
                  v_readlane_b32 s{sT0}, v{vT0}, 8
                  s_cmp_ge_u32 s{sT0}, 256
                  s_cbranch_scc1 {ok}
                  s_sleep 8""")
            self.retry(lp)
            a.label(ok)

        if fused:
            lp, ok = a.newlabel('Lp3g'), a.newlabel('Lp3gok')
            a.label(lp)
            a(f"""buffer_load_dword v{vT0}, v{vL4}, s[{sDBG}:{sDBG+3}], 0 offen sc0 sc1
                  s_waitcnt vmcnt(0)
                  v_readlane_b32 s{sT0}, v{vT0}, 33
                  v_readlane_b32 s{sT1}, v{vT0}, 32
                  s_add_u32 s{sT0}, s{sT0}, s{sT1}
                  s_cmp_ge_u32 s{sT0}, {128 + 384}
                  s_cbranch_scc1 {ok}
                  s_sleep 16""")
            self.retry(lp)
            a.label(ok)
        if self.opt.get('prof'):
            a('s_memrealtime s[92:93]'); a('s_waitcnt lgkmcnt(0)')
        def flag_off(isH, seg):
            if isH:
                a(f"""s_lshl_b32 s{sOF}, s{sJ}, 9
                      s_lshr_b32 s{sT0}, s{seg}, 3
                      s_lshl_b32 s{sT0}, s{sT0}, 3
                      s_add_u32 s{sOF}, s{sOF}, s{sT0}
                      s_add_u32 s{sOF}, s{sOF}, {WS_FLAG + 96*4}""")
            else:
                a(f"""s_lshl_b32 s{sOF}, s{sJ}, 11
                      s_add_u32 s{sOF}, s{sOF}, {WS_OFLAG}""")
        def loads(nks, seg, b):
            a(f"""s_mul_i32 s{sT2}, s{seg}, s{sActStep}
                  s_add_u32 s{sT2}, s{sT2}, s{sAct}
                  s_lshl_b32 s{sT3}, s{seg}, 7
                  s_add_u32 s{sT3}, s{sT3}, {WS_G}
                  buffer_load_dword v{vG1 if b else vG0}, v{vGo}, s[{sWS}:{sWS+3}], s{sT3} offen sc1""")
            for ks in range(nks):
                r = ACT + 32*b + 4*ks
                if ks == 4: a(f's_add_u32 s{sT2}, s{sT2}, 4096')
                a(f'buffer_load_dwordx4 v[{r}:{r+3}], v{vAct}, s[{sWS}:{sWS+3}], s{sT2} offen offset:{1024*(ks&3)} sc1')
        def set_pending_flag():
            l = a.newlabel('Lp3pf')
            a(f"""s_cmp_eq_u32 s{sPend}, 0
                  s_cbranch_scc1 {l}
                  v_mov_b32 v{vT0}, 0
                  v_mov_b32 v{vT1}, 1
                  s_mov_b64 exec, 1
                  buffer_store_dword v{vT1}, v{vT0}, s[{sWS}:{sWS+3}], s{sPend} offen sc1
                  s_mov_b64 exec, -1
                  s_mov_b32 s{sPend}, 0""")
            a.label(l)
        def front(isH, b):
            nks = 6 if isH else 8
            nl = 2 if isH else 16
            have, nonext, go = a.newlabel('Lp3hv'), a.newlabel('Lp3nn'), a.newlabel('Lp3go')
            a(f"""s_cmp_lg_u32 s{sPre}, 0
                  s_cbranch_scc1 {have}""")
            if fused and not isH and not self.opt.get('no_oflag'):
                flag_off(isH, sSeg)
                self.wait_flags(nl, sOF, vL4, vT0, sSeg, vT1)
            if self.opt.get('prof2'): a('s_memrealtime s[94:95]')
            loads(nks, sSeg, b)
            a.label(have)
            a(f"""s_add_u32 s{sNKS}, s{sSeg}, {NTH}
                  s_mov_b32 s{sPre}, 0
                  s_cmp_ge_u32 s{sNKS}, 64
                  s_cbranch_scc1 {nonext}""")
            if fused and not isH and not self.opt.get('no_oflag'):
                flag_off(isH, sNKS)
                a(f's_mov_b64 exec, {hex((1 << nl) - 1)}' if nl <= 32 else f's_mov_b64 exec, s[{self.sM48}:{self.sM48+1}]')
                a(f"""v_lshlrev_b32 v{vT1}, 5, v{vL4}
                      buffer_load_dword v{vT0}, v{vT1}, s[{sWS}:{sWS+3}], s{sOF} offen sc1
                      s_waitcnt vmcnt(0)
                      v_cmp_ge_u32 vcc, s{sNKS}, v{vT0}
                      s_mov_b64 exec, -1
                      s_cbranch_vccnz {nonext}""")
            loads(nks, sNKS, b ^ 1)
            a(f's_mov_b32 s{sPre}, 1')
            if isH:
                a(f"""s_waitcnt vmcnt({nks + 4})
                      s_cmp_lg_u32 s{sPend}, 0
                      s_cbranch_scc1 {go}""")
            a(f"""s_waitcnt vmcnt({nks + 1})
                  s_branch {go}""")
            a.label(nonext)
            a('s_waitcnt vmcnt(0)')
            a.label(go)
            for ks in range(nks):
                for t in range(5):
                    w = W + ks*20 + (4*t if t < 4 else 16)
                    r = ACT + 32*b + 4*ks
                    c = '0' if ks == 0 else f'v[{ACC+4*t}:{ACC+4*t+3}]'
                    a(f'v_mfma_f32_16x16x32_bf16 v[{ACC+4*t}:{ACC+4*t+3}], v[{w}:{w+3}], v[{r}:{r+3}], {c}')
        def final(seg, b):
            nofin = a.newlabel('Lp3nf')
            R = ACT + 32*b
            a(f"""s_lshr_b32 s{sT0}, s{seg}, {NTH.bit_length() - 1}
                  s_and_b32 s{sT0}, s{sT0}, 7
                  s_cmp_lg_u32 s{sT0}, s{sJ}
                  s_cbranch_scc1 {nofin}
                  s_cmp_lt_u32 s{sW}, 3
                  s_cbranch_scc1 {nofin}
                  s_cmp_ge_u32 s{seg}, 64
                  s_cbranch_scc1 {nofin}
                  s_lshl_b32 s{sPFo}, s{seg}, 3
                  s_add_u32 s{sPFo}, s{sPFo}, s{sNN}
                  s_mul_i32 s{sPo}, s{sPFo}, 5120
                  s_add_u32 s{sPo}, s{sPo}, {WS_P}
                  s_lshl_b32 s{sPFo}, s{sPFo}, 7
                  s_add_u32 s{sPFo}, s{sPFo}, {WS_PFLAG}""")
            self.wait_flags(16, sPFo, vL4, vT0)
            if self.opt.get('prof2'): a('s_memrealtime s[98:99]'); a('s_waitcnt lgkmcnt(0)')
            for j in range(8):
                a(f'buffer_load_dwordx4 v[{R+4*j}:{R+4*j+3}], v{vFi}, s[{sWS}:{sWS+3}], s{sPo} offen sc1')
                if j < 7: a(f's_add_u32 s{sPo}, s{sPo}, {64*8*5120}')
            for j in range(8):
                a(f's_waitcnt vmcnt({7-j})')
                for k in range(4):
                    x = R + 4*j + k
                    if j == 0:
                        a(f'v_lshlrev_b32 v{ACC+2*k}, 16, v{x}')
                        a(f'v_and_b32 v{ACC+2*k+1}, 0xffff0000, v{x}')
                    else:
                        a(f'v_lshlrev_b32 v{vT0}, 16, v{x}')
                        a(f'v_and_b32 v{vT1}, 0xffff0000, v{x}')
                        a(f'v_add_f32 v{ACC+2*k}, v{ACC+2*k}, v{vT0}')
                        a(f'v_add_f32 v{ACC+2*k+1}, v{ACC+2*k+1}, v{vT1}')
            for k in range(4):
                a(f'v_cvt_pk_bf16_f32 v{ACC+8+k}, v{ACC+2*k}, v{ACC+2*k+1}')
            a(f"""s_mul_i32 s{sT0}, s{seg}, {32*1280}
                  s_mul_i32 s{sT1}, s{sNN}, 160
                  s_add_u32 s{sT0}, s{sT0}, s{sT1}
                  buffer_store_dwordx4 v[{ACC+8}:{ACC+11}], v{vFo}, s[{sOUT}:{sOUT+3}], s{sT0} offen{self.opt.get('out_flags', '')}
                  s_waitcnt vmcnt(0)""")
            a.label(nofin)

        lH = a.newlabel('Lp3H')
        a(f"""s_cmp_eq_u32 s{sKG}, 0
              s_cbranch_scc1 {lH}""")
        loop, end = a.newlabel('Lp3o'), a.newlabel('Lp3oe')
        a.label(loop)
        for b in range(2):
            vG = vG1 if b else vG0
            front(False, b)
            a('s_nop 3')
            for t in range(5):
                for r in range(4): a(f'v_mul_f32 v{ACC+4*t+r}, v{ACC+4*t+r}, v{vG}')
                a(f'ds_write_b128 v{vLw}, v[{ACC+4*t}:{ACC+4*t+3}] offset:{PBUF*b + 1024*t}')
            if self.opt.get('prof2'): a('s_memrealtime s[96:97]')
            a('s_waitcnt lgkmcnt(0)')
            a('s_barrier')
            a(f's_sub_u32 s{sFin}, s{sSeg}, {NTH}')
            final(sFin, b)
            a(f"""s_add_u32 s{sSeg}, s{sSeg}, {NTH}
                  s_cmp_ge_u32 s{sSeg}, 64
                  s_cbranch_scc1 {end}""")
        a(f's_branch {loop}')
        a.label(end)
        a(f's_sub_u32 s{sFin}, s{sSeg}, {NTH}')
        final(sFin, 0)
        a(f's_branch {done_label}')
        a.label(lH)
        loop, end = a.newlabel('Lp3hl'), a.newlabel('Lp3he')
        PR = W + 120
        if fused:
            a(f"""s_lshl_b32 s{sOF}, s{sJ}, 9
                  s_add_u32 s{sOF}, s{sOF}, {WS_FLAG + 96*4}""")
            self.wait_flags(16, sOF, vL4, vT0)
        a.label(loop)
        for b in range(2):
            vG = vG1 if b else vG0
            front(True, b)
            a(f"""v_sub_f32 v{vG}, 1.0, v{vG}
                  s_lshl_b32 s{sPo}, s{sJ}, 6
                  s_add_u32 s{sPo}, s{sPo}, s{sSeg}
                  s_lshl_b32 s{sPo}, s{sPo}, 3
                  s_add_u32 s{sPo}, s{sPo}, s{sNN}
                  s_mul_i32 s{sPo}, s{sPo}, 5120
                  s_add_u32 s{sPo}, s{sPo}, {WS_P}""")
            for k in range(20): a(f'v_mul_f32 v{ACC+k}, v{ACC+k}, v{vG}')
            a('s_waitcnt vmcnt(7)')
            set_pending_flag()
            a('s_barrier')
            def rd(kg, dst):
                for t in range(5):
                    a(f'ds_read_b128 v[{dst+4*t}:{dst+4*t+3}], v{vLw} offset:{PBUF*b + 10240*kg + 1024*t}')
            def add(src):
                for k in range(20): a(f'v_add_f32 v{ACC+k}, v{ACC+k}, v{src+k}')
            rd(0, PR); rd(1, PR + 20)
            a('s_waitcnt lgkmcnt(5)'); add(PR)
            rd(2, PR)
            a('s_waitcnt lgkmcnt(5)'); add(PR + 20)
            a('s_waitcnt lgkmcnt(0)'); add(PR)
            O = PR + 20
            for pr in range(2):
                for r in range(4):
                    a(f'v_cvt_pk_bf16_f32 v{O+4*pr+r}, v{ACC+8*pr+r}, v{ACC+8*pr+4+r}')
            nowait = a.newlabel('Lp3nw')
            a(f"""v_cvt_pk_bf16_f32 v{O+8}, v{ACC+16}, v{ACC+17}
                  v_cvt_pk_bf16_f32 v{O+9}, v{ACC+18}, v{ACC+19}
                  v_lshl_add_u32 v{vT0}, v{vQ}, 4, v{vPo}
                  v_lshl_add_u32 v{vT1}, v{vQ}, 3, v{vPo}
                  buffer_store_dwordx4 v[{O}:{O+3}], v{vT0}, s[{sWS}:{sWS+3}], s{sPo} offen sc1
                  buffer_store_dwordx4 v[{O+4}:{O+7}], v{vT0}, s[{sWS}:{sWS+3}], s{sPo} offen offset:64 sc1
                  buffer_store_dwordx2 v[{O+8}:{O+9}], v{vT1}, s[{sWS}:{sWS+3}], s{sPo} offen offset:128 sc1
                  s_lshl_b32 s{sPend}, s{sSeg}, 3
                  s_add_u32 s{sPend}, s{sPend}, s{sNN}
                  s_lshl_b32 s{sPend}, s{sPend}, 7
                  s_lshl_b32 s{sT0}, s{sJ}, 3
                  s_add_u32 s{sPend}, s{sPend}, s{sT0}
                  s_lshl_b32 s{sT0}, s{sTT}, 2
                  s_add_u32 s{sPend}, s{sPend}, s{sT0}
                  s_add_u32 s{sPend}, s{sPend}, {WS_PFLAG}
                  s_cmp_lg_u32 s{sPre}, 0
                  s_cbranch_scc1 {nowait}
                  s_waitcnt vmcnt(0)""")
            set_pending_flag()
            a.label(nowait)
            a(f"""s_add_u32 s{sSeg}, s{sSeg}, {NTH}
                  s_cmp_ge_u32 s{sSeg}, 64
                  s_cbranch_scc1 {end}""")
        a(f's_branch {loop}')
        a.label(end)
        a(f's_branch {done_label}')
```

```python
from asmlib import *
from layout import *
import math

LM, LO, LDUMMY, LQK, LW5, LR, LOX, LBUF = 0, 10240, 13312, 16384, 22528, 34816, 35840, 38912
LBUF_SZ = 27648
LK_OFF, LV_OFF, LQ_OFF = 0, 12288, 24576
CHAIN_LDS = LBUF + 3 * LBUF_SZ
SWEEP_LDS = 139264

sWS, sDBG, sT = 4, 8, 12
sPTR = 16
def ptr(i): return sPTR + 2 * i
sW, sJ, sC, sH, sG, sMIX, sBUD, sSTEP = 48, 49, 50, 51, 52, 53, 54, 55
sA_N, sA_R, sB_C, sB_R, sC_W, sC_RS, sC_RD, sO_C = 56, 57, 58, 59, 60, 61, 62, 63
sKQ, sVX, sLB, sRED, sSCL, sT0, sT1, sT2, sT3 = 64, 65, 66, 67, 68, 69, 76, 77, 78
sMN8, sML32, sMH8 = 70, 72, 74
sSELLO, sSELHI = 80, 81
sCI = 46
sMA = 46
sST = 82
sPADD, sPOR, sA_P, sCS, sPOL, sC_W2 = 94, 95, 96, 97, 79, 61
NSTAMP = 6

def srd(a, base_ptr, nbytes):
    a(f'''s_mov_b32 s{sT}, s{base_ptr}
          s_mov_b32 s{sT+1}, s{base_ptr+1}
          s_mov_b32 s{sT+2}, {nbytes}
          s_mov_b32 s{sT+3}, 0x20000''')

class Chain:
    def __init__(self, a, opt):
        self.a = a
        self.opt = opt
        self.tail = []
        self.tails = []
        self.nstamp = 0
        self.wnt = ' nt' if opt.get('w_nt') else ''

    def lstore(self, insts):
        a = self.a
        slow, back = a.newlabel('Lslow'), a.newlabel('Lback')
        a(f's_cmp_lg_u32 s{sMIX}, 0')
        a(f's_cbranch_scc1 {slow}')
        for i in insts: a(i)
        a.label(back)
        self.tail.append((slow, [i + ' sc1' if i.startswith('buffer_') else i for i in insts], back))

    def emit_tail(self):
        a = self.a
        for slow, insts, back in self.tail:
            a.label(slow)
            for i in insts: a(i)
            a(f's_branch {back}')
        self.tail = []
        for t in self.tails: t()
        self.tails = []

    def stamp(self, k, ahead=0):
        if not self.opt.get('stamps'): return
        a = self.a
        l = a.newlabel('Lst')
        a(f'''s_cmp_lg_u32 s{sSTEP}, {self.opt['stamps'] + ahead}
              s_cbranch_scc1 {l}
              {self.opt.get('clock', 's_memtime')} s[{sST+2*k}:{sST+2*k+1}]
              s_waitcnt lgkmcnt(0)''')
        a.label(l)

    def mark(self, k):
        if not self.opt.get('prof'): return
        self.a(f's_memrealtime s[{sST+2*k}:{sST+2*k+1}]')
        self.a('s_waitcnt lgkmcnt(0)')

    def dump_stamps(self):
        self.mark(3)
        if not (self.opt.get('stamps') or self.opt.get('prof')): return
        a = self.a
        a(f'''s_lshl_b32 s{sT0}, s{sJ}, 5
              s_add_u32 s{sT0}, s{sT0}, s{sC}
              s_lshl_b32 s{sT0}, s{sT0}, 3
              s_add_u32 s{sT0}, s{sT0}, s{sW}
              s_lshl_b32 s{sT0}, s{sT0}, 6
              s_add_u32 s{sT0}, s{sT0}, {WS_DBG + 0x100000}
              s_mov_b64 exec, -1
              v_mov_b32 v2, 0''')
        for k in range(NSTAMP):
            a(f'v_mov_b32 v3, s{sST+2*k}')
            a(f'buffer_store_dword v3, v2, s[{sWS}:{sWS+3}], s{sT0} offen offset:{4*k}')
        for k in range(4):
            a(f'v_mov_b32 v3, s{98+k}')
            a(f'buffer_store_dword v3, v2, s[{sWS}:{sWS+3}], s{sT0} offen offset:{4*(8+k)}')
        a('s_waitcnt vmcnt(0)')

    def retry(self, label, kind=None):
        a = self.a
        if kind is not None and self.opt.get('stamps'):
            a(f's_add_u32 s{98+kind}, s{98+kind}, 1')
        a(f'''s_sub_u32 s{sBUD}, s{sBUD}, 1
              s_cbranch_scc0 {label}
              s_mov_b32 s{sBUD}, 0''')

    def slots(self):
        a = self.a
        a(f'''s_and_b32 s{sT0}, s{sSTEP}, 3
              s_add_u32 s{sT1}, s{sSTEP}, 1
              s_and_b32 s{sT1}, s{sT1}, 3
              s_xor_b32 s{sT2}, s{sT0}, 2
              s_lshr_b32 s{sT3}, s{sJ}, 1
              s_mul_i32 s{sT3}, s{sT3}, 10240
              s_add_u32 s{sT3}, s{sT3}, {WS_RA}
              s_mul_i32 s{sA_N}, s{sT1}, {RA_SLOT}
              s_add_u32 s{sA_N}, s{sA_N}, s{sT3}
              s_mul_i32 s{sA_R}, s{sT2}, {RA_SLOT}
              s_add_u32 s{sA_R}, s{sA_R}, s{sT3}
              s_mul_i32 s{sT3}, s{sH}, 9216
              s_add_u32 s{sT3}, s{sT3}, {WS_RB}
              s_mul_i32 s{sB_C}, s{sT0}, {RB_SLOT}
              s_add_u32 s{sB_C}, s{sB_C}, s{sT3}
              s_mul_i32 s{sB_R}, s{sT2}, {RB_SLOT}
              s_add_u32 s{sB_R}, s{sB_R}, s{sT3}
              s_and_b32 s{sT0}, s{sCS}, 255
              s_mul_i32 s{sT1}, s{sT0}, 86
              s_lshr_b32 s{sT1}, s{sT1}, 8
              s_mul_i32 s{sC_RD}, s{sT0}, {RC_SLOT}
              s_mul_i32 s{sT2}, s{sT1}, {0x200000 - 3*RC_SLOT}
              s_add_u32 s{sC_RD}, s{sC_RD}, s{sT2}
              s_add_u32 s{sC_RD}, s{sC_RD}, {WS_RC}
              s_xor_b32 s{sT1}, s{sPOL}, s{sT1}
              s_and_b32 s{sT1}, s{sT1}, 1
              s_lshl_b32 s{sT1}, s{sT1}, 13
              s_add_u32 s{sC_RD}, s{sC_RD}, s{sT1}
              s_lshl_b32 s{sT3}, s{sH}, 8
              s_add_u32 s{sC_W}, s{sC_RD}, s{sT3}
              s_lshl_b32 s{sPOR}, s{sCS}, 8
              s_and_b32 s{sPOR}, s{sPOR}, 0x10000
              s_xor_b32 s{sPADD}, s{sPOR}, 0x10000
              s_mul_i32 s{sO_C}, s{sSTEP}, {32*12288}
              s_add_u32 s{sO_C}, s{sO_C}, {WS_O}''')

    def next_step(self):
        a = self.a
        a(f'''s_add_u32 s{sSTEP}, s{sSTEP}, 1
              s_add_u32 s{sCS}, s{sCS}, 1
              s_and_b32 s{sT0}, s{sCS}, 255
              s_xor_b32 s{sT1}, s{sCS}, {256 + RC_N}
              s_cmp_eq_u32 s{sT0}, {RC_N}
              s_cselect_b32 s{sCS}, s{sT1}, s{sCS}''')
        self.slots()

    def load_pair(self, WA, WB, nks, voff, rowstride, tmp):
        a = self.a
        items = []
        for ks in range(nks):
            for R in range(8):
                hi, p = R >> 2, R & 3
                b, tt = p & 1, p >> 1
                d = 64 * ks + 32 * hi + 8 * b + 2 * tt
                items.append((WA + ks * 8 + R, WB + ks * 8 + R, d))
        def issue(it):
            ra, rb, d = it
            a(f's_mov_b32 s{sT0}, {d * rowstride}')
            a(f'buffer_load_dword v{ra}, v{voff}, s[{sT}:{sT+3}], s{sT0} offen' + self.wnt)
            a(f's_mov_b32 s{sT1}, {(d + 1) * rowstride}')
            a(f'buffer_load_dword v{rb}, v{voff}, s[{sT}:{sT+3}], s{sT1} offen' + self.wnt)
        def fix(it):
            ra, rb, d = it
            a(f'v_perm_b32 v{tmp}, v{rb}, v{ra}, s{sSELLO}')
            a(f'v_perm_b32 v{rb}, v{rb}, v{ra}, s{sSELHI}')
            a(f'v_mov_b32 v{ra}, v{tmp}')
        groups = [items[i:i + 8] for i in range(0, len(items), 8)]
        groups = [items[i:i + 4] for i in range(0, len(items), 4)]
        depth = 7
        for gi in range(min(depth, len(groups))):
            for it in groups[gi]: issue(it)
        for gi in range(len(groups)):
            inflight = min(len(groups), gi + depth) - gi - 1
            a(f's_waitcnt vmcnt({8 * inflight})')
            for it in groups[gi]: fix(it)
            if gi + depth < len(groups):
                for it in groups[gi + depth]: issue(it)

    def load_single(self, W, nks, voff, vsel, rowstride, tmps):
        a = self.a
        items = []
        for ks in range(nks):
            for R in range(8):
                hi, p = R >> 2, R & 3
                b, tt = p & 1, p >> 1
                items.append((W + ks * 8 + R, 64 * ks + 32 * hi + 8 * b + 2 * tt))
        groups = [items[i:i + 4] for i in range(0, len(items), 4)]
        depth = 7
        def issue(gi):
            for k, (r, d) in enumerate(groups[gi]):
                t = tmps + (gi % depth) * 4 + k
                a(f's_mov_b32 s{sT0}, {d * rowstride}')
                a(f'buffer_load_dword v{r}, v{voff}, s[{sT}:{sT+3}], s{sT0} offen' + self.wnt)
                a(f's_mov_b32 s{sT1}, {(d + 1) * rowstride}')
                a(f'buffer_load_dword v{t}, v{voff}, s[{sT}:{sT+3}], s{sT1} offen' + self.wnt)
        for gi in range(min(depth, len(groups))): issue(gi)
        for gi in range(len(groups)):
            inflight = min(len(groups), gi + depth) - gi - 1
            a(f's_waitcnt vmcnt({8 * inflight})')
            for k, (r, d) in enumerate(groups[gi]):
                t = tmps + (gi % depth) * 4 + k
                a(f'v_perm_b32 v{r}, v{t}, v{r}, v{vsel}')
            if gi + depth < len(groups): issue(gi + depth)

    def lanes(self, al):
        a = self.a
        self.vL, self.vN, self.vQ = al(), al(), al()
        self.vT0, self.vT1, self.vT2 = al(), al(), al()
        self.vMask = 0
        a(f'''v_and_b32 v{self.vL}, 63, v0
              v_and_b32 v{self.vN}, 15, v0
              v_bfe_u32 v{self.vQ}, v0, 4, 2
              v_mov_b32 v0, 0xfffe0000''')

    def frag_addr(self, dst):
        a = self.a
        a(f'''v_lshlrev_b32 v{dst}, 8, v{self.vQ}
              v_and_b32 v{self.vT0}, 1, v{self.vN}
              v_lshl_add_u32 v{dst}, v{self.vT0}, 7, v{dst}
              v_lshrrev_b32 v{self.vT0}, 1, v{self.vN}
              v_lshl_add_u32 v{dst}, v{self.vT0}, 4, v{dst}''')

    def idx_reg(self, dst):
        a = self.a
        a(f'''v_and_b32 v{self.vT0}, 1, v{self.vN}
              v_cmp_eq_u32 vcc, 1, v{self.vT0}
              v_mov_b32 v{dst}, 0x44444444
              v_mov_b32 v{self.vT0}, 0xeeeeeeee
              s_nop 1
              v_cndmask_b32 v{dst}, v{dst}, v{self.vT0}, vcc''')

    def wrow_lane(self, dst, rowstride):
        a = self.a
        a(f'''v_lshrrev_b32 v{self.vT0}, 1, v{self.vQ}
              v_lshlrev_b32 v{self.vT0}, 4, v{self.vT0}
              v_and_b32 v{self.vT1}, 1, v{self.vQ}
              v_lshl_add_u32 v{self.vT0}, v{self.vT1}, 2, v{self.vT0}
              s_mov_b32 s{sT0}, {rowstride}
              v_mul_lo_u32 v{dst}, v{self.vT0}, s{sT0}''')

    def wait_all_registered(self):
        a = self.a
        a('s_barrier')
        w = a.newlabel('Lp0')
        a(f's_cmp_lg_u32 s{sW}, 0')
        a(f's_cbranch_scc1 {w}')
        wait_registered(a, self.opt, self.vT0, self.vT1, self.vL, True)
        a(f'''s_lshl_b32 s{sPOL}, s{sPOL}, 1
              s_or_b32 s{sPOL}, s{sPOL}, s{sMIX}
              v_mov_b32 v{self.vT0}, s{sPOL}
              v_mov_b32 v{self.vT1}, {LR + 64}
              ds_write_b32 v{self.vT1}, v{self.vT0}
              s_waitcnt lgkmcnt(0)''')
        a.label(w)
        a(f'''s_barrier
              v_mov_b32 v{self.vT1}, {LR + 64}
              ds_read_b32 v{self.vT0}, v{self.vT1}
              s_waitcnt lgkmcnt(0)
              v_readfirstlane_b32 s{sPOL}, v{self.vT0}
              s_and_b32 s{sMIX}, s{sPOL}, 1
              s_lshr_b32 s{sPOL}, s{sPOL}, 1''')
        if self.opt.get('pol') is not None: pass
        self.slots()

    def wait_tiles(self, seg, first, nflags):
        if not self.opt.get('fused'): return
        a = self.a
        lp, ok, skip = a.newlabel('Lwt'), a.newlabel('Lwtok'), a.newlabel('Lwts')
        T0, T1 = self.vT0, self.vT1
        a(f'''s_and_b32 s{sT0}, s{seg}, 7
              s_cbranch_scc1 {skip}
              s_lshr_b32 s{sT0}, s{seg}, 3
              s_mul_i32 s{sT0}, s{sT0}, 48
              s_lshl_b32 s{sT1}, s{sJ}, 9
              s_add_u32 s{sT0}, s{sT0}, s{sT1}
              s_and_b32 s{sT1}, s{sH}, 3
              s_lshl_b32 s{sT1}, s{sT1}, 2
              s_add_u32 s{sT0}, s{sT0}, s{sT1}
              s_add_u32 s{sT0}, s{sT0}, {WS_FLAG + 16*first}
              v_lshlrev_b32 v{T1}, 4, v{self.vL}
              s_mov_b64 exec, {(1 << nflags) - 1}''')
        a.label(lp)
        a(f'''buffer_load_dword v{T0}, v{T1}, s[{sWS}:{sWS+3}], s{sT0} offen sc1
              s_waitcnt vmcnt(0)
              v_cmp_eq_u32 vcc, 0, v{T0}
              s_cbranch_vccz {ok}
              s_sleep 2''')
        self.retry(lp)
        a.label(ok)
        a('s_mov_b64 exec, -1')
        a.label(skip)

    def o_flag(self, back):
        if not self.opt.get('fused'): return
        a = self.a
        if self.opt.get('no_oflag'): return
        a(f'''s_lshl_b32 s{sT0}, s{sJ}, 4
              s_add_u32 s{sT0}, s{sT0}, s{sC}
              s_lshl_b32 s{sT0}, s{sT0}, 7
              s_add_u32 s{sT0}, s{sT0}, {WS_OFLAG}
              s_add_u32 s{sT1}, s{sSTEP}, {1 - back}
              v_mov_b32 v{self.vT0}, s{sT1}
              v_mov_b32 v{self.vT1}, 0
              s_mov_b64 exec, 1''')
        a(f'buffer_store_dword v{self.vT0}, v{self.vT1}, s[{sWS}:{sWS+3}], s{sT0} offen sc1')
        a('s_mov_b64 exec, -1')

    def poll2(self, vOff, soff, lds, sets, kind, gap):
        a = self.a
        t, t2 = self.vT0, self.vT1
        n = len(sets)
        def issue(R):
            a(f'''buffer_load_dwordx4 v[{R}:{R+3}], v{vOff}, s[{sWS}:{sWS+3}], s{soff} offen sc1
                  buffer_load_dwordx4 v[{R+4}:{R+7}], v{vOff}, s[{sWS}:{sWS+3}], s{soff} offen offset:1024 sc1''')
        def check(R, br):
            a(f'''ds_write_b128 v{vOff}, v[{R}:{R+3}] offset:{lds}
                  ds_write_b128 v{vOff}, v[{R+4}:{R+7}] offset:{lds+1024}
                  v_max3_u32 v{t}, v{R}, v{R+1}, v{R+2}
                  v_max3_u32 v{t2}, v{R+3}, v{R+4}, v{R+5}
                  v_max3_u32 v{t}, v{t}, v{R+6}, v{R+7}
                  v_max_u32 v{t}, v{t}, v{t2}
                  v_cmp_eq_u32 vcc, -1, v{t}
                  {br}''')
        lp, ok = a.newlabel('Lp'), a.newlabel('Lpok')
        for k in range(n):
            issue(sets[k])
            if gap and k < n - 1: a(f's_sleep {gap}')
        a(f's_waitcnt vmcnt({2 * (n - 1)})')
        if kind == 0 and self.opt.get('fine'): self.stamp(3)
        check(sets[0], f's_cbranch_vccnz {lp}')
        a.label(ok)
        def tail():
            back = a.newlabel('Lpb')
            a.label(lp)
            for k in range(n):
                if self.opt.get('stamps'): a(f's_add_u32 s{98+kind}, s{98+kind}, 1')
                a('s_mov_b64 exec, vcc')
                issue(sets[k])
                a(f's_waitcnt vmcnt({2 * (n - 1)})')
                check(sets[(k + 1) % n], f's_cbranch_vccz {back}')
            self.retry(lp)
            a.label(back)
            a('s_mov_b64 exec, -1')
            a(f's_branch {ok}')
        self.tails.append(tail)

    def a_poll(self, vAoff, sets, first=False):
        a = self.a
        if first:
            a(f's_lshr_b32 s{sA_P}, s{sJ}, 1')
            a(f's_mul_i32 s{sA_P}, s{sA_P}, 10240')
            a(f's_add_u32 s{sA_P}, s{sA_P}, {WS_RA}')
        else:
            a(f's_mov_b32 s{sA_P}, s{sA_N}')
            self.next_step()
        a('s_barrier')
        if self.opt.get('a_first'): a(f"s_sleep {self.opt['a_first']}")
        self.poll2(vAoff, sA_P, LM, sets[:self.opt.get('a_depth', 1)], 2, self.opt.get('a_gap', 0))
        a('s_waitcnt lgkmcnt(0)')
        if not first: self.stamp(4, 1)
        a('s_barrier')

    def mem0_load(self, vAoff, R):
        a = self.a
        srd(a, ptr(1), 10240)
        T0, T1 = self.vT0, self.vT1
        a(f'''v_bfe_u32 v{T0}, v{vAoff}, 4, 3
              v_mul_u32_u24 v{T0}, 1280, v{T0}
              v_lshrrev_b32 v{T1}, 7, v{vAoff}
              v_lshl_add_u32 v{T0}, v{T1}, 4, v{T0}
              buffer_load_dwordx4 v[{R}:{R+3}], v{T0}, s[{sT}:{sT+3}], 0 offen
              buffer_load_dwordx4 v[{R+4}:{R+7}], v{T0}, s[{sT}:{sT+3}], 0 offen offset:128
              s_waitcnt vmcnt(0)
              ds_write_b128 v{vAoff}, v[{R}:{R+3}] offset:{LM}
              ds_write_b128 v{vAoff}, v[{R+4}:{R+7}] offset:{LM+1024}
              s_waitcnt lgkmcnt(0)''')

    def a_off(self, dst):
        a = self.a
        a(f'''s_sub_u32 s{sT0}, s{sW}, 3
              s_lshl_b32 s{sT0}, s{sT0}, 11
              v_lshlrev_b32 v{dst}, 4, v{self.vL}
              v_add_u32 v{dst}, s{sT0}, v{dst}''')

    def dma_seg_regs(self, seg_expr_sgpr):
        a = self.a
        sg = seg_expr_sgpr
        a(f'''s_lshl_b32 s{sT0}, s{sH}, 6
              s_add_u32 s{sT0}, s{sT0}, s{sg}
              s_mul_i32 s{sKQ}, s{sT0}, 12288
              s_add_u32 s{sVX}, s{sKQ}, {WS_VT}
              s_mul_i32 s{sT0}, s{sg}, 86
              s_lshr_b32 s{sT0}, s{sT0}, 8
              s_mul_i32 s{sT0}, s{sT0}, 3
              s_sub_u32 s{sT0}, s{sg}, s{sT0}
              s_mul_i32 s{sLB}, s{sT0}, {LBUF_SZ}
              s_add_u32 s{sLB}, s{sLB}, {LBUF}''')

    def dma12(self, v, base, lds, pieces):
        a = self.a
        for k in pieces:
            a(f'''s_add_u32 s{sT2}, s{sG}, {k}
                  s_and_b32 s{sT2}, s{sT2}, 3
                  s_mul_i32 s{sT2}, s{sT2}, 3072
                  s_add_u32 s{sT1}, s{sLB}, s{sT2}
                  s_add_u32 m0, s{sT1}, {lds}
                  s_add_u32 s{sT1}, s{sKQ}, s{sT2}
                  s_add_u32 s{sT1}, s{sT1}, {base}''')
            for t in range(3):
                a(f'buffer_load_dwordx4 v{v}, s[{sWS}:{sWS+3}], s{sT1} offen offset:{1024*t} sc1 lds')

    def dma_q(self, vQx):
        a = self.a
        for p in range(3):
            a(f's_add_u32 m0, s{sLB}, {LQ_OFF + p*1024}')
            a(f's_add_u32 s{sT1}, s{sKQ}, {WS_Q + p*2048}')
            a(f'buffer_load_dwordx4 v{vQx}, s[{sWS}:{sWS+3}], s{sT1} offen sc1 lds')

    def stage(self, own, rest, first, nflags):
        a = self.a
        l1, l2 = a.newlabel('Lsg'), a.newlabel('Lsg')
        def part(ahead, fn, lab, wait):
            a(f"""s_add_u32 s{sT3}, s{sSTEP}, {ahead}
                  s_cmp_ge_u32 s{sT3}, 64
                  s_cbranch_scc1 {lab}""")
            if wait: self.wait_tiles(sT3, first, nflags)
            self.dma_seg_regs(sT3)
            if not self.opt.get('no_dma'): fn()
            a.label(lab)
        if self.opt.get('own_last'):
            part(2, rest, l2, False); part(3, own, l1, True)
        else:
            part(3, own, l1, True); part(2, rest, l2, False)

    def stage_first(self, own, rest, first, nflags):
        a = self.a
        self.wait_tiles(sSTEP, first, nflags)
        for sg in range(3):
            a(f's_mov_b32 s{sT3}, {sg}')
            self.dma_seg_regs(sT3); own()
            if sg < 2: rest()
        a('s_waitcnt vmcnt(0)')

    def wo_stage(self, pairs, vFrag, vIdx, F, vCoff, RR, skip):
        a = self.a
        for ks in range(3):
            a(f'ds_read_b128 v[{F+4*ks}:{F+4*ks+3}], v{vFrag} offset:{LO + 1024*ks}')
        a(f'v_lshlrev_b32 v{self.vT0}, 3, v{self.vQ}')
        a(f'ds_read_b64 v[{RR}:{RR+1}], v{self.vT0} offset:{LR}')
        a(f's_cmp_eq_u32 s{sSTEP}, 63')
        a(f's_cbranch_scc1 {skip}')
        for ks in range(3):
            a(f's_waitcnt lgkmcnt({3-ks})')
            for (WA, WB, TA, TB, coff) in pairs:
                a(f'v_smfmac_f32_16x16x64_bf16 v[{TA}:{TA+3}], v[{F+4*ks}:{F+4*ks+3}], v[{WA+8*ks}:{WA+8*ks+7}], v{vIdx}')
                a(f'v_smfmac_f32_16x16x64_bf16 v[{TB}:{TB+3}], v[{F+4*ks}:{F+4*ks+3}], v[{WB+8*ks}:{WB+8*ks+7}], v{vIdx}')
        a('s_waitcnt lgkmcnt(0)')
        a('s_nop 5')
        for (WA, WB, TA, TB, coff) in pairs:
            self.pair_epilogue(TA, TB, RR)
            a(f'buffer_store_dword v{TA}, v{vCoff}, s[{sWS}:{sWS+3}], s{sC_W} offen offset:{coff} sc1')
            a(f'buffer_store_dword v{TB}, v{vCoff}, s[{sWS}:{sWS+3}], s{sC_W} offen offset:{coff+128} sc1')

    def pair_epilogue(self, TA, TB, RR=None):
        a = self.a
        a(f"""v_add_f32 v{TA}, v{TA}, v{TA+1}
              v_add_f32 v{TA+2}, v{TA+2}, v{TA+3}
              v_add_f32 v{TB}, v{TB}, v{TB+1}
              v_add_f32 v{TB+2}, v{TB+2}, v{TB+3}""")
        if RR is not None:
            a(f"""v_mul_f32 v{TA}, v{TA}, v{RR}
                  v_mul_f32 v{TA+2}, v{TA+2}, v{RR+1}
                  v_mul_f32 v{TB}, v{TB}, v{RR}
                  v_mul_f32 v{TB+2}, v{TB+2}, v{RR+1}""")
            a(f"""v_add_u32 v{TA}, s{sPADD}, v{TA}
                  v_add_u32 v{TA+2}, s{sPADD}, v{TA+2}
                  v_and_or_b32 v{TA}, v{TA}, v{self.vMask}, s{sPOR}
                  v_and_or_b32 v{TA+2}, v{TA+2}, v{self.vMask}, s{sPOR}
                  v_cvt_pk_bf16_f32 v{TA}, v{TA}, v{TB}
                  v_cvt_pk_bf16_f32 v{TB}, v{TA+2}, v{TB+2}""")
            return
        a(f"""v_cvt_pk_bf16_f32 v{TA}, v{TA}, v{TB}
              v_cvt_pk_bf16_f32 v{TB}, v{TA+2}, v{TB+2}
              v_min_u32 v{TA}, -2, v{TA}
              v_min_u32 v{TB}, -2, v{TB}""")

    def zero(self, r, n):
        for k in range(n): self.a(f'v_mov_b32 v{r+k}, 0')

    def c_off(self, dst, pw_sgpr_or_int):
        a = self.a
        T0 = self.vT0
        a(f'''v_lshrrev_b32 v{dst}, 3, v{self.vN}
              v_lshlrev_b32 v{dst}, 14, v{dst}
              v_bfe_u32 v{T0}, v{self.vN}, 2, 1
              v_lshl_add_u32 v{dst}, v{T0}, 6, v{dst}
              v_lshl_add_u32 v{dst}, v{self.vQ}, 4, v{dst}
              v_and_b32 v{T0}, 3, v{self.vN}
              v_lshl_add_u32 v{dst}, v{T0}, 2, v{dst}
              s_mul_i32 s{sT0}, s{sG}, 163840''')
        if isinstance(pw_sgpr_or_int, int):
            a(f's_add_u32 s{sT0}, s{sT0}, {32768*pw_sgpr_or_int}')
        else:
            a(f's_lshl_b32 s{sT1}, {pw_sgpr_or_int}, 15')
            a(f's_add_u32 s{sT0}, s{sT0}, s{sT1}')
        a(f'v_add_u32 v{dst}, s{sT0}, v{dst}')

    def wo_weights(self, WA, WB, pw, vtmp, tmp):
        a = self.a
        srd(a, ptr(5), NH * DH * DM * 2)
        self.wrow_lane(vtmp, 1280)
        a(f'''s_mul_i32 s{sT0}, s{sH}, {DH*DM*2}
              s_mul_i32 s{sT1}, s{sG}, 320
              s_add_u32 s{sT0}, s{sT0}, s{sT1}''')
        if isinstance(pw, int):
            a(f's_add_u32 s{sT0}, s{sT0}, {64*pw}')
        else:
            a(f's_lshl_b32 s{sT1}, {pw}, 6')
            a(f's_add_u32 s{sT0}, s{sT0}, s{sT1}')
        a(f'''v_lshl_add_u32 v{vtmp}, v{self.vN}, 2, v{vtmp}
              v_add_u32 v{vtmp}, s{sT0}, v{vtmp}''')
        self.load_pair(WA, WB, 3, vtmp, 1280, tmp)

    def finish(self):
        self.dump_stamps()
        self.a('s_endpgm')

    def touch_weights(self):
        a = self.a
        T0, T1 = self.vT0, self.vT1
        a(f's_mov_b32 m0, {SWEEP_LDS}')
        srd(a, ptr(4), DM * NH * DH * 2)
        a(f"""s_mov_b32 s{sT0}, 12288
              v_mul_lo_u32 v{T0}, v{self.vL}, s{sT0}
              s_mul_i32 s{sT0}, s{sH}, 384
              s_mul_i32 s{sT1}, s{sG}, 96
              s_add_u32 s{sT0}, s{sT0}, s{sT1}
              s_mul_i32 s{sT1}, s{sRED}, {64*12288}
              s_add_u32 s{sT0}, s{sT0}, s{sT1}""")
        for i in range(4):
            a(f'buffer_load_dword v{T0}, s[{sT}:{sT+3}], s{sT0} offen lds')
            a(f'buffer_load_dword v{T0}, s[{sT}:{sT+3}], s{sT0} offen offset:92 lds')
            if i < 3: a(f's_add_u32 s{sT0}, s{sT0}, {192*12288}')
        srd(a, ptr(5), NH * DH * DM * 2)
        a(f"""v_mul_u32_u24 v{T1}, 1280, v{self.vL}
              s_mul_i32 s{sT0}, s{sH}, {DH*DM*2}
              s_mul_i32 s{sT1}, s{sG}, 320
              s_add_u32 s{sT0}, s{sT0}, s{sT1}
              s_mul_i32 s{sT1}, s{sRED}, {64*1280}
              s_add_u32 s{sT0}, s{sT0}, s{sT1}""")
        for off in (0, 128, 256, 316):
            a(f'buffer_load_dword v{T1}, s[{sT}:{sT+3}], s{sT0} offen offset:{off} lds')

    def c_page_init(self, R, vLin):
        a = self.a
        a(f's_add_u32 s{sT2}, s{sCI}, 4096')
        for k in range(5):
            a(f'buffer_store_dwordx4 v[{R}:{R+3}], v{vLin}, s[{sWS}:{sWS+3}], s{sT2 if k == 4 else sCI} offen offset:{1024*(k&3)} sc1')
        a(f's_add_u32 s{sCI}, s{sCI}, 0x200000')

    def init_job(self, R):
        a = self.a
        vLin = R + 20
        sU = sA_P
        a(f"""s_lshl_b32 s{sU}, s{sJ}, 4
              s_add_u32 s{sU}, s{sU}, s{sC}
              s_mul_i32 s{sU}, s{sU}, 3
              s_add_u32 s{sU}, s{sU}, s{sRED}
              v_lshlrev_b32 v{vLin}, 4, v{self.vL}""")
        for k in range(4): a(f'v_mov_b32 v{R+k}, -1')
        for k in range(4): a(f'v_mov_b32 v{R+4+k}, 0')
        l1, l2 = a.newlabel('Lin'), a.newlabel('Lin')
        a(f"""s_cmp_ge_u32 s{sU}, 368
              s_cbranch_scc1 {l1}
              s_lshl_b32 s{sT0}, s{sU}, 12
              s_add_u32 s{sT0}, s{sT0}, {WS_RA}""")
        l0 = a.newlabel('Lin')
        a(f"""s_cmp_lt_u32 s{sU}, 20
              s_cbranch_scc1 {l0}""")
        for k in range(4):
            a(f'buffer_store_dwordx4 v[{R}:{R+3}], v{vLin}, s[{sWS}:{sWS+3}], s{sT0} offen offset:{1024*k} sc1')
        a(f's_branch {l1}')
        a.label(l0)
        srd(a, ptr(1), 10240)
        a(f's_lshl_b32 s{sT1}, s{sU}, 12')
        for k in range(4):
            D = R + 24 + 4*k
            a(f"""s_add_u32 s{sT2}, s{sT1}, {1024*k}
                  s_lshr_b32 s{sT3}, s{sT2}, 10
                  s_mul_i32 s{sT3}, s{sT3}, 205
                  s_lshr_b32 s{sT3}, s{sT3}, 11
                  s_mul_i32 s{sT3}, s{sT3}, 10240
                  s_sub_u32 s{sT2}, s{sT2}, s{sT3}
                  s_lshr_b32 s{sT2}, s{sT2}, 3
                  v_lshrrev_b32 v{R+8}, 1, v{self.vN}
                  v_mul_u32_u24 v{R+8}, 1280, v{R+8}
                  v_lshl_add_u32 v{R+8}, v{self.vQ}, 5, v{R+8}
                  v_and_b32 v{R+9}, 1, v{self.vN}
                  v_lshl_add_u32 v{R+8}, v{R+9}, 4, v{R+8}
                  buffer_load_dwordx4 v[{D}:{D+3}], v{R+8}, s[{sT}:{sT+3}], s{sT2} offen""")
        a('s_waitcnt vmcnt(0)')
        for k in range(4):
            D = R + 24 + 4*k
            for e in range(4): a(f'v_min_u32 v{D+e}, -2, v{D+e}')
            a(f'buffer_store_dwordx4 v[{D}:{D+3}], v{vLin}, s[{sWS}:{sWS+3}], s{sT0} offen offset:{1024*k} sc1')
        a('s_waitcnt vmcnt(0)')
        a.label(l1)
        a(f"""s_sub_u32 s{sT0}, s{sU}, 4
              s_cmp_ge_u32 s{sT0}, 252
              s_cbranch_scc1 {l2}
              s_lshl_b32 s{sT0}, s{sU}, 10
              s_add_u32 s{sT0}, s{sT0}, {WS_FLAG}
              buffer_store_dwordx4 v[{R+4}:{R+7}], v{vLin}, s[{sWS}:{sWS+3}], s{sT0} offen sc1""")
        a.label(l2)

    def arrive_init(self, R):
        t1, t2 = R + 14, R + 15
        self.a(f"""s_waitcnt vmcnt(0)
              v_mov_b32 v{t1}, 1
              v_mov_b32 v{t2}, 128
              s_mov_b64 exec, 1
              buffer_atomic_add v{t1}, v{t2}, s[{sDBG}:{sDBG+3}], 0 offen sc1
              s_mov_b64 exec, -1""")

    def role_qk(self):
        a = self.a
        al = Alloc(1, 256)
        self.lanes(al)
        WA, WB = al(80, 4), al(80, 4)
        M = al(40, 4)
        TA, TB = al(4, 4), al(4, 4)
        SEL = al(4, 4)
        RC = al(2)
        AC2 = al(4, 2)
        vFrag, vIdx, vB, vAst, vSent = al(3, 1), al(), al(), al(), al(2)
        T0, T1, T2 = self.vT0, self.vT1, self.vT2
        a(f'v_lshlrev_b32 v{vFrag}, 4, v{self.vL}'); self.idx_reg(vIdx)
        a(f'v_add_u32 v{vFrag+1}, 4096, v{vFrag}')
        a(f'v_add_u32 v{vFrag+2}, 8192, v{vFrag}')
        a(f'''s_mul_i32 s{sT2}, s{sG}, 3
              s_add_u32 s{sT2}, s{sT2}, s{sW}
              s_cmp_ge_u32 s{sT2}, 6
              s_cselect_b32 s{sT}, s{ptr(3)}, s{ptr(2)}
              s_cselect_b32 s{sT+1}, s{ptr(3)+1}, s{ptr(2)+1}
              s_cselect_b32 s{sT1}, 6, 0
              s_lshl_b32 s{sT3}, s{sT2}, 9
              s_sub_u32 s{sT2}, s{sT2}, s{sT1}
              s_mov_b32 s{sT+2}, {DM*NH*DH*2}
              s_mov_b32 s{sT+3}, 0x20000
              s_lshl_b32 s{sT2}, s{sT2}, 6
              v_lshlrev_b32 v{vB}, 7, v{self.vQ}
              v_lshl_add_u32 v{vB}, v{self.vN}, 2, v{vB}
              v_add_u32 v{vB}, s{sT3}, v{vB}''')
        vW = M
        self.wrow_lane(vW, 12288)
        a(f'''v_lshlrev_b32 v{T0}, 1, v{self.vN}
              v_and_b32 v{T1}, 0x13, v{T0}
              v_and_b32 v{T2}, 4, v{T0}
              v_lshl_add_u32 v{T1}, v{T2}, 1, v{T1}
              v_and_b32 v{T2}, 8, v{T0}
              v_lshrrev_b32 v{T2}, 1, v{T2}
              v_add_u32 v{T1}, v{T1}, v{T2}
              v_lshl_add_u32 v{vW}, v{T1}, 1, v{vW}
              s_mul_i32 s{sT0}, s{sH}, 384
              s_add_u32 s{sT0}, s{sT0}, s{sT2}
              v_add_u32 v{vW}, s{sT0}, v{vW}''')
        self.load_pair(WA, WB, 10, vW, 12288, T2)
        a(f'''s_and_b32 s{sT0}, s{sJ}, 1
              s_lshl_b32 s{sT0}, s{sT0}, 4
              s_add_u32 s{sT0}, s{sT0}, s{sC}
              s_lshl_b32 s{sT1}, s{sW}, 5
              s_add_u32 s{sT0}, s{sT0}, s{sT1}
              s_lshr_b32 s{sRED}, s{sT0}, 1
              s_and_b32 s{sT2}, s{sT0}, 1
              s_lshl_b32 s{sT0}, s{sRED}, 8
              s_lshl_b32 s{sT3}, s{sT2}, 5
              s_add_u32 s{sT0}, s{sT0}, s{sT3}
              s_lshl_b32 s{sT1}, s{sRED}, 14
              s_lshl_b32 s{sT3}, s{sT2}, 7
              s_add_u32 s{sT1}, s{sT1}, s{sT3}
              v_lshlrev_b32 v{RC}, 8, v{self.vQ}
              v_lshrrev_b32 v{T0}, 3, v{self.vN}
              v_lshl_add_u32 v{RC}, v{T0}, 10, v{RC}
              v_and_b32 v{T0}, 7, v{self.vN}
              v_lshl_add_u32 v{RC}, v{T0}, 4, v{RC}
              v_add_u32 v{RC}, s{sT1}, v{RC}
              v_add_u32 v{RC+1}, 4096, v{RC}
              v_bfe_u32 v{T0}, v{self.vN}, 2, 1
              v_lshlrev_b32 v{vAst}, 4, v{T0}
              v_and_b32 v{T0}, 3, v{self.vN}
              v_lshl_add_u32 v{vAst}, v{T0}, 6, v{vAst}
              v_lshl_add_u32 v{vAst}, v{self.vQ}, 3, v{vAst}
              v_add_u32 v{vAst}, s{sT0}, v{vAst}
              s_mov_b32 s{sMA}, 0x00ff00ff
              s_mov_b32 s{sMA+1}, 0''')
        a(f'''s_nop 0
              v_mov_b32 v{vSent}, -1
              v_mov_b32 v{vSent+1}, -1''')
        for p in range(4):
            a(f'''v_mov_b32 v{SEL+p}, 0
                  v_mov_b32 v{T0}, 0x3f80
                  v_cmp_eq_u32 vcc, {2*p}, v{self.vN}
                  s_nop 1
                  v_cndmask_b32 v{SEL+p}, v{SEL+p}, v{T0}, vcc
                  v_mov_b32 v{T0}, 0x3f800000
                  v_cmp_eq_u32 vcc, {2*p+1}, v{self.vN}
                  s_nop 1
                  v_cndmask_b32 v{SEL+p}, v{SEL+p}, v{T0}, vcc''')
        self.zero(TA, 8)
        self.mark(1)
        self.wait_all_registered()
        a('s_barrier')
        self.mark(2)
        loop, end = a.newlabel('Lqk'), a.newlabel('Lqkend')
        a('s_barrier')
        a.label(loop)
        a('s_barrier')
        self.stamp(0)
        for ks in range(10):
            a(f'ds_read_b128 v[{M+4*ks}:{M+4*ks+3}], v{vFrag} offset:{LM + 1024*ks}')
        for ks in range(10):
            a(f's_waitcnt lgkmcnt({9-ks})')
            a(f'v_smfmac_f32_16x16x64_bf16 v[{TA}:{TA+3}], v[{M+4*ks}:{M+4*ks+3}], v[{WA+8*ks}:{WA+8*ks+7}], v{vIdx}')
            a(f'v_smfmac_f32_16x16x64_bf16 v[{TB}:{TB+3}], v[{M+4*ks}:{M+4*ks+3}], v[{WB+8*ks}:{WB+8*ks+7}], v{vIdx}')
        a('s_nop 7')
        self.pair_epilogue(TA, TB)
        self.lstore([f'buffer_store_dword v{TA}, v{vB}, s[{sWS}:{sWS+3}], s{sB_C} offen',
                     f'buffer_store_dword v{TB}, v{vB}, s[{sWS}:{sWS+3}], s{sB_C} offen offset:64'])
        a('s_barrier')
        self.stamp(1)
        def resets():
            self.lstore([f'buffer_store_dword v{vSent}, v{vB}, s[{sWS}:{sWS+3}], s{sB_R} offen',
                         f'buffer_store_dword v{vSent}, v{vB}, s[{sWS}:{sWS+3}], s{sB_R} offen offset:64'])
            sk = a.newlabel('Lqar')
            a(f's_cmp_ge_u32 s{sRED}, 40')
            a(f's_cbranch_scc1 {sk}')
            a(f's_mov_b64 exec, s[{sMA}:{sMA+1}]')
            self.lstore([f'buffer_store_dwordx2 v[{vSent}:{vSent+1}], v{vAst}, s[{sWS}:{sWS+3}], s{sA_R} offen'])
            a('s_mov_b64 exec, -1')
            a.label(sk)
        self.zero(TA, 8)
        a('s_barrier')
        resets()
        if self.opt.get('prof'):
            a(f'''s_memrealtime s[{sST+10}:{sST+11}]
                  s_lshl_b32 s{sT0}, s{sJ}, 4
                  s_add_u32 s{sT0}, s{sT0}, s{sC}
                  s_lshl_b32 s{sT0}, s{sT0}, 2
                  s_add_u32 s{sT0}, s{sT0}, s{sW}
                  s_lshl_b32 s{sT0}, s{sT0}, 6
                  s_add_u32 s{sT0}, s{sT0}, s{sSTEP}
                  s_lshl_b32 s{sT0}, s{sT0}, 2
                  s_add_u32 s{sT0}, s{sT0}, {WS_DBG + 0x200000}
                  v_mov_b32 v{T1}, 0
                  s_waitcnt lgkmcnt(0)
                  v_mov_b32 v{T0}, s{sST+10}
                  buffer_store_dword v{T0}, v{T1}, s[{sWS}:{sWS+3}], s{sT0} offen
                  s_memtime s[{sST+10}:{sST+11}]
                  s_add_u32 s{sT0}, s{sT0}, 0x40000
                  s_waitcnt lgkmcnt(0)
                  v_mov_b32 v{T0}, s{sST+10}
                  buffer_store_dword v{T0}, v{T1}, s[{sWS}:{sWS+3}], s{sT0} offen
                  s_add_u32 s{sT0}, s{sT0}, 0x40000
                  v_mov_b32 v{T0}, s{sBUD}
                  buffer_store_dword v{T0}, v{T1}, s[{sWS}:{sWS+3}], s{sT0} offen''')
        a('s_barrier')
        if self.opt.get('trace2'): a(f's_memtime s[{sST+0}:{sST+1}]')
        a(f'''s_cmp_eq_u32 s{sSTEP}, 63
              s_cbranch_scc1 {end}''')
        ok, fin = a.newlabel('LpCok'), a.newlabel('LpCfin')
        ACC = AC2
        entry = {(h, ph): a.newlabel('LpC') for h in range(2) for ph in range(2)}
        nored = a.newlabel('Lqnr')
        a(f'''s_cmp_ge_u32 s{sRED}, 40
              s_cbranch_scc1 {nored}
              s_bitcmp1_b32 s{sCS}, 8
              s_cbranch_scc1 {entry[(1,1)]}_in''')
        for half in (1,):
            nl = 4
            for ph in range(2):
                lp = entry[(half, ph)]
                a.label(lp + '_in')
                if self.opt.get('c_sleep'): a(f"s_sleep {self.opt['c_sleep']}")
                if self.opt.get('fine'): self.stamp(5)
                a.label(lp)
                for t in range(nl):
                    reg, off = (RC + (t >> 1), 2048 * (t & 1)) if half else (RC + (t >> 2), 1024 * (t & 3))
                    a(f'buffer_load_dwordx4 v[{M+4*t}:{M+4*t+3}], v{reg}, s[{sWS}:{sWS+3}], s{sC_RD} offen offset:{off} sc1')
                a('s_mov_b64 exec, -1')
                op3 = (lambda d, x, y, z: f'v_bitop3_b32 v{d}, v{x}, v{y}, v{z} bitop3:0x80') if ph else (lambda d, x, y, z: f'v_or3_b32 v{d}, v{x}, v{y}, v{z}')
                for t in range(nl):
                    a(f's_waitcnt vmcnt({nl-1-t})')
                    if t == 0 and self.opt.get('fine'): self.stamp(2)
                    a(f'v_mfma_f32_16x16x32_bf16 v[{ACC}:{ACC+3}], v[{SEL}:{SEL+3}], v[{M+4*t}:{M+4*t+3}], ' + ('0' if t == 0 else f'v[{ACC}:{ACC+3}]'))
                    if t == 0:
                        a(op3(T0, M, M+1, M+2)); a(op3(T0, T0, M+3, M+3))
                    else:
                        a(op3(T0, T0, M+4*t, M+4*t+1)); a(op3(T0, T0, M+4*t+2, M+4*t+3))
                rt, bk = a.newlabel('LpCr'), a.newlabel('LpCb')
                a(f'''v_and_b32 v{T0}, 1, v{T0}
                      v_cmp_ne_u32 vcc, {ph}, v{T0}
                      s_cbranch_vccnz {rt}''')
                a.label(bk)
                if self.opt.get('trace2'): a(f's_memtime s[{sST+2}:{sST+3}]')
                def tail(rt=rt, bk=bk, lp=lp):
                    a.label(rt)
                    a('s_mov_b64 exec, vcc')
                    self.retry(lp, 3)
                    a('s_mov_b64 exec, -1')
                    a(f's_branch {bk}')
                self.tails.append(tail)
                a('s_nop 2')
                if half:
                    for k in range(4):
                        a(f'v_add_f32_dpp v{ACC+k}, v{ACC+k}, v{ACC+k} row_ror:8 row_mask:0xf bank_mask:0xf')
                self.stamp(3)
                a(f'''v_cvt_pk_bf16_f32 v{ACC}, v{ACC}, v{ACC+1}
                      v_cvt_pk_bf16_f32 v{ACC+1}, v{ACC+2}, v{ACC+3}
                      s_mov_b64 exec, s[{sMA}:{sMA+1}]
                      v_min_u32 v{ACC}, -2, v{ACC}
                      v_min_u32 v{ACC+1}, -2, v{ACC+1}''')
                self.lstore([f'buffer_store_dwordx2 v[{ACC}:{ACC+1}], v{vAst}, s[{sWS}:{sWS+3}], s{sA_N} offen'])
                if not (half and ph): a(f's_branch {fin}')
        a(f's_branch {fin}')
        a.label(nored)
        a('s_waitcnt vmcnt(0)')
        a.label(fin)
        if self.opt.get('dump_mem'):
            l = a.newlabel('Ldm')
            a(f'''s_cmp_lg_u32 s{sJ}, 0
                  s_cbranch_scc1 {l}
                  s_mul_i32 s{sT0}, s{sSTEP}, 10240
                  s_add_u32 s{sT0}, s{sT0}, {WS_DBG}
                  buffer_store_dwordx2 v[{ACC}:{ACC+1}], v{vAst}, s[{sWS}:{sWS+3}], s{sT0} offen''')
            a.label(l)
        a('s_mov_b64 exec, -1')
        a('s_barrier')
        if self.opt.get('trace2'): a(f's_memtime s[{sST+4}:{sST+5}]')
        if self.opt.get('trace2'):
            a(f"""s_waitcnt lgkmcnt(0)
                  s_lshl_b32 s{sT0}, s{sJ}, 4
                  s_add_u32 s{sT0}, s{sT0}, s{sC}
                  s_lshl_b32 s{sT0}, s{sT0}, 2
                  s_add_u32 s{sT0}, s{sT0}, s{sW}
                  s_lshl_b32 s{sT0}, s{sT0}, 6
                  s_add_u32 s{sT0}, s{sT0}, s{sSTEP}
                  s_lshl_b32 s{sT0}, s{sT0}, 4
                  s_add_u32 s{sT0}, s{sT0}, {WS_DBG + 0x400000}
                  s_sub_u32 s{sT1}, s{sST+2}, s{sST}
                  v_mov_b32 v{M}, s{sT1}
                  s_sub_u32 s{sT1}, s{sST+4}, s{sST}
                  v_mov_b32 v{M+1}, s{sT1}
                  v_mov_b32 v{M+2}, s{sBUD}
                  v_mov_b32 v{T0}, 0
                  s_mov_b64 exec, 1
                  buffer_store_dwordx4 v[{M}:{M+3}], v{T0}, s[{sWS}:{sWS+3}], s{sT0} offen
                  s_mov_b64 exec, -1
                  s_nop 1""")
        self.stamp(4)
        self.next_step()
        a('s_waitcnt lgkmcnt(0)')
        a(f's_branch {loop}')
        a.label(end)
        a('s_barrier')
        self.finish()
        self.emit_tail()

    def role_v(self):
        a = self.a
        al = Alloc(1, 256)
        self.lanes(al)
        WA, WB = al(80, 4), al(80, 4)
        M = al(48, 4)
        TA, TB = al(4, 4), al(4, 4)
        F = al(12, 4); RR = al(2, 2)
        vFrag, vIdx, vB, vAoff, vV, vSent, vCoff, vOst = [al() for _ in range(8)]
        vLin = vV
        a(f"""v_lshrrev_b32 v{self.vT1}, 3, v{self.vL}
              v_lshlrev_b32 v{vOst}, 4, v{self.vT1}
              v_and_b32 v{self.vT1}, 7, v{self.vL}
              v_lshl_add_u32 v{vOst}, v{self.vT1}, 8, v{vOst}
              s_lshr_b32 s{sT0}, s{sG}, 1
              s_mul_i32 s{sT0}, s{sT0}, 192
              s_mul_i32 s{sT1}, s{sH}, 6
              s_add_u32 s{sT0}, s{sT0}, s{sT1}
              s_lshl_b32 s{sT0}, s{sT0}, 10
              s_and_b32 s{sT1}, s{sG}, 1
              s_lshl_b32 s{sT1}, s{sT1}, 7
              s_add_u32 s{sT0}, s{sT0}, s{sT1}
              v_add_u32 v{vOst}, s{sT0}, v{vOst}""")
        def o_store(back):
            if self.opt.get('no_ost'): return
            a(f's_sub_u32 s{sT0}, s{sO_C}, {back*32*12288}')
            a(f's_add_u32 s{sT1}, s{sT0}, 4096')
            for k in range(3):
                a(f'ds_read_b128 v[{F+4*k}:{F+4*k+3}], v{vLin} offset:{LOX + 1024*k}')
            for k in range(3):
                a(f's_waitcnt lgkmcnt({2-k})')
                a(f'buffer_store_dwordx4 v[{F+4*k}:{F+4*k+3}], v{vOst}, s[{sWS}:{sWS+3}], s{sT1 if k == 2 else sT0} offen offset:{2048*(k&1)} sc1')
        PX = al(8, 2)
        self.frag_addr(vFrag); self.idx_reg(vIdx)
        a(f"""v_lshlrev_b32 v{vV}, 4, v{self.vL}
              v_mov_b32 v{vSent}, -1""")
        a(f"""s_mul_i32 s{sT0}, s{sG}, 768
              s_add_u32 s{sT0}, s{sT0}, 6144
              v_lshlrev_b32 v{vB}, 5, v{self.vN}
              v_lshl_add_u32 v{vB}, v{self.vQ}, 2, v{vB}
              v_add_u32 v{vB}, s{sT0}, v{vB}""")
        srd(a, ptr(4), DM * NH * DH * 2)
        vW = M
        self.wrow_lane(vW, 12288)
        a(f"""s_mul_i32 s{sT0}, s{sH}, 384
              s_mul_i32 s{sT1}, s{sG}, 96
              s_add_u32 s{sT0}, s{sT0}, s{sT1}
              v_lshl_add_u32 v{vW}, v{self.vN}, 2, v{vW}
              v_add_u32 v{vW}, s{sT0}, v{vW}""")
        self.load_pair(WA, WB, 10, vW, 12288, self.vT2)
        self.c_off(vCoff, 4)
        self.wo_weights(M, M + 24, 4, vAoff, self.vT2)
        for k in range(12):
            a(f'ds_write_b128 v{vLin}, v[{M+4*k}:{M+4*k+3}] offset:{LW5 + 1024*k}')
        a('s_waitcnt lgkmcnt(0)')
        self.a_off(vAoff)
        self.zero(TA, 8)
        self.mark(1)
        self.wait_all_registered()
        own = lambda: self.dma12(vV, WS_VT, LV_OFF, [0])
        rest = lambda: self.dma12(vV, WS_VT, LV_OFF, [1, 2, 3])
        self.stage_first(own, rest, 2, 1)
        a('s_barrier')
        self.mark(2)
        loop, end = a.newlabel('Lv'), a.newlabel('Lvend')
        self.a_poll(vAoff, [F], True)
        a.label(loop)
        self.stamp(0)
        for ks in range(10):
            a(f'ds_read_b128 v[{M+4*ks}:{M+4*ks+3}], v{vLin} offset:{LM + 1024*ks}')
        for ks in range(10):
            a(f's_waitcnt lgkmcnt({9-ks})')
            a(f'v_smfmac_f32_16x16x64_bf16 v[{TA}:{TA+3}], v[{M+4*ks}:{M+4*ks+3}], v[{WA+8*ks}:{WA+8*ks+7}], v{vIdx}')
            a(f'v_smfmac_f32_16x16x64_bf16 v[{TB}:{TB+3}], v[{M+4*ks}:{M+4*ks+3}], v[{WB+8*ks}:{WB+8*ks+7}], v{vIdx}')
            if ks == self.opt.get('v_bar', 8): a('s_barrier')
        a(f"""s_nop 7
              v_add_f32 v{TA}, v{TA}, v{TA+1}
              v_add_f32 v{TA+2}, v{TA+2}, v{TA+3}
              v_add_f32 v{TB}, v{TB}, v{TB+1}
              v_add_f32 v{TB+2}, v{TB+2}, v{TB+3}
              v_cvt_pk_bf16_f32 v{TA}, v{TA}, v{TA+2}
              v_cvt_pk_bf16_f32 v{TB}, v{TB}, v{TB+2}
              v_min_u32 v{TA}, -2, v{TA}
              v_min_u32 v{TB}, -2, v{TB}""")
        self.lstore([f'buffer_store_dword v{TA}, v{vB}, s[{sWS}:{sWS+3}], s{sB_C} offen',
                     f'buffer_store_dword v{TB}, v{vB}, s[{sWS}:{sWS+3}], s{sB_C} offen offset:16'])
        self.stamp(1)
        a('s_waitcnt vmcnt(2)')
        for k in range(12):
            a(f'ds_read_b128 v[{M+4*k}:{M+4*k+3}], v{vLin} offset:{LW5 + 1024*k}')
        self.zero(TA, 8)
        a('s_barrier')
        self.lstore([f'buffer_store_dword v{vSent}, v{vB}, s[{sWS}:{sWS+3}], s{sB_R} offen',
                     f'buffer_store_dword v{vSent}, v{vB}, s[{sWS}:{sWS+3}], s{sB_R} offen offset:16'])
        a(f"s_sleep {self.opt.get('d_sleep', 7)}" if self.opt.get('d_sleep', 7) else 's_nop 0')
        def o_prev():
            no0 = a.newlabel('Lvn0')
            a('s_waitcnt lgkmcnt(0)')
            a(f's_cmp_eq_u32 s{sSTEP}, 0')
            a(f's_cbranch_scc1 {no0}')
            o_store(1)
            a.label(no0)
        if not self.opt.get('o_late'): o_prev()
        self.stage(own, rest, 2, 1)
        if self.opt.get('o_late'): o_prev()
        if self.opt.get('fused'):
            nq = a.newlabel('Lvnq')
            a(f"""s_cmp_lt_u32 s{sSTEP}, {self.opt.get('of_all', 58)}
                  s_cbranch_scc1 {nq}
                  s_waitcnt vmcnt(0)""")
            self.o_flag(1)
            a.label(nq)
        a('s_waitcnt lgkmcnt(0)')
        self.stamp(5)
        a('s_barrier')
        self.stamp(2)
        self.wo_stage([(M, M + 24, TA, TB, 0)], vFrag, vIdx, F, vCoff, RR, end)
        self.stamp(3)
        self.zero(TA, 8)
        self.a_poll(vAoff, [F, PX, M + 40])
        a(f's_branch {loop}')
        a.label(end)
        a('s_waitcnt lgkmcnt(0)')
        a('s_barrier')
        o_store(0)
        a('s_waitcnt vmcnt(0)')
        self.o_flag(0)
        self.finish()
        self.emit_tail()

    def role_w7(self):
        a = self.a
        al = Alloc(1, 256)
        self.lanes(al)
        WV = al(80, 4)
        P = [(al(24, 4), al(24, 4), al(4, 4), al(4, 4), 0)]
        M = al(40, 4)
        TV = al(4, 4)
        SENT = al(4, 4); RR = al(2, 2)
        vFrag, vIdx, vB, vAoff, vK, vQx, vCoff, vCr = [al() for _ in range(8)]
        vSel = TV
        PX = al(24, 2)
        T0, T1 = self.vT0, self.vT1
        self.frag_addr(vFrag); self.idx_reg(vIdx)
        a(f"""v_lshlrev_b32 v{vK}, 4, v{self.vL}
              v_and_b32 v{T0}, 7, v{self.vL}
              v_lshlrev_b32 v{vQx}, 4, v{T0}
              v_lshrrev_b32 v{T0}, 5, v{self.vL}
              v_lshl_add_u32 v{vQx}, v{T0}, 10, v{vQx}
              v_bfe_u32 v{T0}, v{self.vL}, 3, 2
              v_lshl_add_u32 v{vQx}, v{T0}, 8, v{vQx}
              s_lshr_b32 s{sT0}, s{sG}, 1
              s_mul_i32 s{sT0}, s{sT0}, 6144
              s_and_b32 s{sT1}, s{sG}, 1
              s_lshl_b32 s{sT1}, s{sT1}, 7
              s_add_u32 s{sT0}, s{sT0}, s{sT1}
              v_add_u32 v{vQx}, s{sT0}, v{vQx}""")
        for k in range(4): a(f'v_mov_b32 v{SENT+k}, -1')
        a(f"""s_mul_i32 s{sT0}, s{sG}, 768
              s_add_u32 s{sT0}, s{sT0}, {6144 + 512}
              v_lshlrev_b32 v{vB}, 4, v{self.vN}
              v_lshl_add_u32 v{vB}, v{self.vQ}, 2, v{vB}
              v_add_u32 v{vB}, s{sT0}, v{vB}
              s_mul_i32 s{sT0}, s{sG}, 2560
              v_lshlrev_b32 v{vCr}, 4, v{self.vL}
              v_add_u32 v{vCr}, s{sT0}, v{vCr}""")
        self.c_off(vCoff, 3)
        srd(a, ptr(4), DM * NH * DH * 2)
        self.wrow_lane(vAoff, 12288)
        a(f"""s_mul_i32 s{sT0}, s{sH}, 384
              s_mul_i32 s{sT1}, s{sG}, 96
              s_add_u32 s{sT0}, s{sT0}, s{sT1}
              s_add_u32 s{sT0}, s{sT0}, 64
              v_and_b32 v{T0}, 14, v{self.vN}
              v_lshl_add_u32 v{vAoff}, v{T0}, 1, v{vAoff}
              v_add_u32 v{vAoff}, s{sT0}, v{vAoff}
              v_and_b32 v{T0}, 1, v{self.vN}
              v_cmp_eq_u32 vcc, 1, v{T0}
              v_mov_b32 v{vSel}, s{sSELLO}
              v_mov_b32 v{T0}, s{sSELHI}
              s_nop 1
              v_cndmask_b32 v{vSel}, v{vSel}, v{T0}, vcc""")
        self.load_single(WV, 10, vAoff, vSel, 12288, M)
        self.wo_weights(P[0][0], P[0][1], 3, vAoff, self.vT2)
        self.a_off(vAoff)
        self.zero(TV, 4)
        for p in P: self.zero(p[2], 8)
        self.mark(1)
        self.wait_all_registered()
        def own():
            self.dma_q(vQx); self.dma12(vK, WS_K, LK_OFF, [0])
        rest = lambda: self.dma12(vK, WS_K, LK_OFF, [1, 2, 3])
        self.stage_first(own, rest, 0, 2)
        a('s_barrier')
        self.mark(2)
        loop, end = a.newlabel('Lw7'), a.newlabel('Lw7end')
        self.a_poll(vAoff, [PX], True)
        a.label(loop)
        self.stamp(0)
        for ks in range(10):
            a(f'ds_read_b128 v[{M+4*ks}:{M+4*ks+3}], v{vK} offset:{LM + 1024*ks}')
        for ks in range(10):
            a(f's_waitcnt lgkmcnt({9-ks})')
            a(f'v_smfmac_f32_16x16x64_bf16 v[{TV}:{TV+3}], v[{M+4*ks}:{M+4*ks+3}], v[{WV+8*ks}:{WV+8*ks+7}], v{vIdx}')
            if ks == self.opt.get('w7_bar', 99): a('s_barrier')
        a(f"""s_nop 7
              v_add_f32 v{TV}, v{TV}, v{TV+1}
              v_add_f32 v{TV+2}, v{TV+2}, v{TV+3}
              v_cvt_pk_bf16_f32 v{TV}, v{TV}, v{TV+2}
              v_min_u32 v{TV}, -2, v{TV}""")
        self.lstore([f'buffer_store_dword v{TV}, v{vB}, s[{sWS}:{sWS+3}], s{sB_C} offen'])
        if self.opt.get('w7_bar', 99) > 9: a('s_barrier')
        self.stamp(1)
        self.zero(TV, 4)
        a('s_barrier')
        self.lstore([f'buffer_store_dword v{SENT}, v{vB}, s[{sWS}:{sWS+3}], s{sB_R} offen'])
        a(f"s_sleep {self.opt.get('d_sleep', 7)}" if self.opt.get('d_sleep', 7) else 's_nop 0')
        if self.opt.get('dma_time'): self.stamp(1)
        nf, yf = a.newlabel('Lw7nf'), a.newlabel('Lw7yf')
        a(f"""s_cmp_ge_u32 s{sSTEP}, {self.opt.get('of_all', 58)}
              s_cbranch_scc1 {nf}
              s_and_b32 s{sT0}, s{sSTEP}, {self.opt.get('of_every', 1) - 1}
              s_cmp_lg_u32 s{sT0}, {min(2, self.opt.get('of_every', 1) - 1)}
              s_cbranch_scc1 {nf}
              s_cmp_lt_u32 s{sSTEP}, 2
              s_cbranch_scc1 {nf}""")
        a.label(yf)
        self.o_flag(2)
        a.label(nf)
        self.stage(own, rest, 0, 2)
        if self.opt.get('dma_time'): a('s_waitcnt vmcnt(0)')
        self.stamp(5)
        a('s_barrier')
        self.stamp(2)
        self.wo_stage(P, vFrag, vIdx, M, vCoff, RR, end)
        self.stamp(3)
        for p in P: self.zero(p[2], 8)
        self.a_poll(vAoff, [PX, PX + 8, PX + 16])
        a(f's_branch {loop}')
        a.label(end)
        a('s_barrier')
        self.finish()
        self.emit_tail()

    def role_att(self):
        a = self.a
        al = Alloc(1, 256)
        self.lanes(al)
        TM = al(2, 2)
        WA, WB = al(24, 4), al(24, 4)
        TA, TB = al(4, 4), al(4, 4)
        KX = al(48, 4); X = al(24, 4); Y = al(24, 4)
        VX = al(16, 4); VM = al(8, 2)
        BI = al(12, 4); SS = al(12, 4)
        PP = al(6, 2); RR = PP
        OO = al(16, 4); LL = al(4, 4)
        ONES = al(4, 4)
        F = SS
        vFrag, vIdx, vAoff, vXY, vVM, vOw, vCoff, vLin, vQr, vBp, vRw, vOx = [al() for _ in range(12)]
        T0, T1, T2 = self.vT0, self.vT1, self.vT2
        sWP = sRED
        a(f's_sub_u32 s{sWP}, s{sW}, 4')
        self.frag_addr(vFrag); self.idx_reg(vIdx)
        self.c_off(vCoff, f's{sWP}')
        if self.opt.get('touch'): self.touch_weights()
        self.init_job(KX)
        self.mark(5)
        self.wo_weights(WA, WB, f's{sWP}', vAoff, T2)
        if self.opt.get('tlb'):
            a(f"""v_lshlrev_b32 v{T0}, 21, v{self.vL}
                  v_add_u32 v{T0}, {0x1F8000}, v{T0}
                  s_mov_b32 m0, {SWEEP_LDS}
                  s_mov_b32 s{sT0}, 0x8000000
                  buffer_load_dword v{T0}, s[{sWS}:{sWS+3}], 0 offen lds
                  buffer_load_dword v{T0}, s[{sWS}:{sWS+3}], s{sT0} offen lds""")
        self.arrive_init(KX)
        self.a_off(vAoff)
        a(f"""v_lshlrev_b32 v{vXY}, 6, v{self.vN}
              v_lshl_add_u32 v{vXY}, v{self.vQ}, 4, v{vXY}
              s_lshl_b32 s{sT0}, s{sWP}, 10
              s_add_u32 s{sT0}, s{sT0}, 6144
              v_lshlrev_b32 v{vVM}, 4, v{self.vN}
              v_lshl_add_u32 v{vVM}, v{self.vQ}, 3, v{vVM}
              v_add_u32 v{vVM}, s{sT0}, v{vVM}
              v_lshlrev_b32 v{vLin}, 4, v{self.vL}
              s_lshl_b32 s{sT0}, s{sWP}, 11
              v_add_u32 v{vBp}, s{sT0}, v{vLin}
              v_and_b32 v{T0}, 7, v{self.vN}
              v_lshlrev_b32 v{vQr}, 4, v{T0}
              v_lshl_add_u32 v{vQr}, v{self.vQ}, 7, v{vQr}""")
        a(f"""v_lshlrev_b32 v{vRw}, 2, v{self.vL}
              v_add_u32 v{T1}, {LDUMMY}, v{vRw}
              v_add_u32 v{vRw}, {LR}, v{vRw}
              v_cmp_gt_u32 vcc, 8, v{self.vL}
              s_nop 1
              v_cndmask_b32 v{vRw}, v{T1}, v{vRw}, vcc""")
        a(f"""v_lshrrev_b32 v{T1}, 1, v{self.vQ}
              v_lshlrev_b32 v{vOw}, 7, v{T1}
              v_lshl_add_u32 v{vOw}, v{T0}, 4, v{vOw}
              v_and_b32 v{T1}, 1, v{self.vQ}
              v_lshl_add_u32 v{vOw}, v{T1}, 3, v{vOw}
              v_lshrrev_b32 v{T1}, 3, v{self.vN}
              v_mul_u32_u24 v{T1}, 3072, v{T1}
              v_add_u32 v{vOw}, v{vOw}, v{T1}
              s_lshl_b32 s{sT0}, s{sWP}, 10
              s_add_u32 s{sT0}, s{sT0}, {LO}
              v_add_u32 v{vOw}, s{sT0}, v{vOw}""")
        a(f"""s_lshl_b32 s{sT0}, s{sWP}, 10
              s_add_u32 s{sT0}, s{sT0}, {LOX}
              v_lshlrev_b32 v{vOx}, 7, v{T0}
              v_lshl_add_u32 v{vOx}, v{self.vQ}, 3, v{vOx}
              v_add_u32 v{vOx}, s{sT0}, v{vOx}""")
        a(f"""s_lshl_b32 s{sT0}, s{sG}, 3
              v_add_u32 v{T1}, s{sT0}, v{T0}
              v_cmp_gt_u32 vcc, 8, v{self.vN}
              v_mov_b32 v{T2}, 31
              s_nop 1
              v_cndmask_b32 v{T1}, v{T1}, v{T2}, vcc
              v_lshlrev_b32 v{T2}, 2, v{self.vQ}
              v_sub_u32 v{T1}, v{T1}, v{T2}
              v_mov_b32 v{T2}, 0xf149f2ca""")
        for tile in range(2):
            for r in range(4):
                a(f"""v_cmp_gt_i32 vcc, {16*tile + r}, v{T1}
                      v_mov_b32 v{BI+4*tile+r}, 0
                      s_nop 1
                      v_cndmask_b32 v{BI+4*tile+r}, v{BI+4*tile+r}, v{T2}, vcc""")
        a(f"""v_cmp_lt_u32 vcc, 1, v{self.vQ}
              v_mov_b32 v{BI+8}, 0
              s_nop 1
              v_cndmask_b32 v{BI+8}, v{BI+8}, v{T2}, vcc""")
        for r in range(1, 4): a(f'v_mov_b32 v{BI+8+r}, v{BI+8}')
        for k in range(4): a(f'v_mov_b32 v{ONES+k}, 0x3f803f80')
        self.zero(Y, 24); self.zero(VM, 8); self.zero(TA, 8)
        self.mark(1)
        self.wait_all_registered()
        def read_seg():
            a(f'v_add_u32 v{T0}, s{sLB}, v{vLin}')
            a(f'v_add_u32 v{T1}, s{sLB}, v{vQr}')
            a(f's_lshl_b32 s{sT0}, s{sWP}, 12')
            a(f'v_add_u32 v{T2}, s{sT0}, v{T0}')
            for k in range(12):
                a(f'ds_read_b128 v[{KX+4*k}:{KX+4*k+3}], v{T0} offset:{LK_OFF + 1024*k}')
            for ks in range(6):
                a(f'ds_read_b128 v[{X+4*ks}:{X+4*ks+3}], v{T1} offset:{LQ_OFF + 512*ks}')
            for t in range(4):
                a(f'ds_read_b128 v[{VX+4*t}:{VX+4*t+3}], v{T2} offset:{LV_OFF + 1024*t}')
        def vm_loads():
            a(f's_mov_b64 exec, s[{sML32}:{sML32+1}]')
            for t in range(4):
                a(f'buffer_load_dwordx2 v[{VM+2*t}:{VM+2*t+1}], v{vVM}, s[{sWS}:{sWS+3}], s{sB_C} offen offset:{256*t} sc1')
            a('s_mov_b64 exec, -1')
        a('s_barrier')
        self.mark(2)
        a(f's_mov_b32 s{sLB}, {LBUF}')
        read_seg()
        self.a_poll(vAoff, [F], True)
        loop, end = a.newlabel('Lat'), a.newlabel('Latend')
        lp, ok, vlp, vok, vrt = a.newlabel('LpB'), a.newlabel('LpBok'), a.newlabel('LpV'), a.newlabel('LpVok'), a.newlabel('LpVr')
        a.label(loop)
        if self.opt.get('trace2'): a(f's_memtime s[{sST+0}:{sST+1}]')
        a('s_barrier')
        if self.opt.get('trace2'): a(f's_memtime s[{sST+2}:{sST+3}]')
        if self.opt.get('b_sleep'): a(f"s_sleep {self.opt['b_sleep']}")
        if self.opt.get('fine'): self.stamp(0)
        self.poll2(vBp, sB_C, LQK, [OO, OO + 8][:self.opt.get('b_depth', 1)], 0, self.opt.get('b_gap', 0))
        if self.opt.get('trace2'): a(f's_memtime s[{sST+4}:{sST+5}]')
        if self.opt.get('vm_at') == -1: vm_loads()
        a(f's_mov_b64 exec, s[{sMN8}:{sMN8+1}]')
        a('s_waitcnt lgkmcnt(0)')
        a('s_barrier')
        for ks in range(6):
            a(f'ds_read_b128 v[{X+4*ks}:{X+4*ks+3}], v{vXY} offset:{LQK + 512*ks}')
            a(f'ds_read_b128 v[{Y+4*ks}:{Y+4*ks+3}], v{vXY} offset:{LQK + 3072 + 512*ks}')
        a('s_mov_b64 exec, -1')
        self.stamp(5)
        for ks in range(6):
            if ks == self.opt.get('vm_at', 0): vm_loads()
            a(f's_waitcnt lgkmcnt({11 - 2*ks})')
            for tile, A in ((0, KX + 4*ks), (1, KX + 24 + 4*ks), (2, Y + 4*ks)):
                if tile == 2: a(f's_waitcnt lgkmcnt({10 - 2*ks})')
                c = BI + 4*tile if ks == 0 else SS + 4*tile
                a(f'v_mfma_f32_16x16x32_bf16 v[{SS+4*tile}:{SS+4*tile+3}], v[{A}:{A+3}], v[{X+4*ks}:{X+4*ks+3}], v[{c}:{c+3}]')
        a('s_waitcnt vmcnt(4)')
        a('s_nop 3')
        self.stamp(1)
        a(f"""v_max3_f32 v{T0}, v{SS}, v{SS+1}, v{SS+2}
              v_max3_f32 v{T1}, v{SS+3}, v{SS+4}, v{SS+5}
              v_max3_f32 v{T0}, v{T0}, v{SS+6}, v{SS+7}
              v_max3_f32 v{T1}, v{T1}, v{SS+8}, v{SS+9}
              v_max3_f32 v{T0}, v{T0}, v{SS+10}, v{SS+11}
              v_max_f32 v{T0}, v{T0}, v{T1}
              v_mov_b32 v{T1}, v{T0}
              s_nop 1
              v_permlane32_swap_b32 v{T0}, v{T1}
              v_max_f32 v{T0}, v{T0}, v{T1}
              v_mov_b32 v{T1}, v{T0}
              s_nop 1
              v_permlane16_swap_b32 v{T0}, v{T1}
              v_max_f32 v{T0}, v{T0}, v{T1}
              v_mul_f32 v{TM}, s{sSCL}, v{T0}""")
        def pkfma(r):
            a(f'v_pk_fma_f32 v[{SS+r}:{SS+r+1}], v[{SS+r}:{SS+r+1}], s[{sSCL}:{sSCL+1}], v[{TM}:{TM+1}] op_sel_hi:[1,0,0] neg_lo:[0,0,1] neg_hi:[0,0,1]')
        for r in range(0, 8, 2): pkfma(r)
        for r in range(8): a(f'v_exp_f32 v{SS+r}, v{SS+r}')
        for r in range(8, 12, 2): pkfma(r)
        for r in range(4): a(f'v_cvt_pk_bf16_f32 v{PP+r}, v{SS+2*r}, v{SS+2*r+1}')
        a(f'v_exp_f32 v{SS+8}, v{SS+8}')
        a(f'v_exp_f32 v{SS+9}, v{SS+9}')
        a(f'v_mfma_f32_16x16x32_bf16 v[{LL}:{LL+3}], v[{ONES}:{ONES+3}], v[{PP}:{PP+3}], 0')
        a(f'v_exp_f32 v{SS+10}, v{SS+10}')
        a(f'v_mfma_f32_16x16x32_bf16 v[{OO}:{OO+3}], v[{VX}:{VX+3}], v[{PP}:{PP+3}], 0')
        a(f'v_exp_f32 v{SS+11}, v{SS+11}')
        a(f'v_mfma_f32_16x16x32_bf16 v[{OO+4}:{OO+7}], v[{VX+4}:{VX+7}], v[{PP}:{PP+3}], 0')
        a(f'v_cvt_pk_bf16_f32 v{PP+4}, v{SS+8}, v{SS+9}')
        a(f'v_cvt_pk_bf16_f32 v{PP+5}, v{SS+10}, v{SS+11}')
        a(f'v_mfma_f32_16x16x32_bf16 v[{OO+8}:{OO+11}], v[{VX+8}:{VX+11}], v[{PP}:{PP+3}], 0')
        a.label(vlp)
        a(f"""s_waitcnt vmcnt(0)
              v_max3_u32 v{T1}, v{VM}, v{VM+1}, v{VM+2}
              v_max3_u32 v{T2}, v{VM+3}, v{VM+4}, v{VM+5}
              v_mfma_f32_16x16x32_bf16 v[{OO+12}:{OO+15}], v[{VX+12}:{VX+15}], v[{PP}:{PP+3}], 0
              v_max3_u32 v{T1}, v{T1}, v{VM+6}, v{VM+7}
              v_max_u32 v{T1}, v{T1}, v{T2}
              v_cmp_eq_u32 vcc, -1, v{T1}
              s_cbranch_vccnz {vrt}""")
        a.label(vok)
        if self.opt.get('trace2'): a(f's_memtime s[{sST+6}:{sST+7}]')
        if not self.opt.get('fine'): self.stamp(0)
        a(f'v_mfma_f32_16x16x16_bf16 v[{LL}:{LL+3}], v[{ONES}:{ONES+1}], v[{PP+4}:{PP+5}], v[{LL}:{LL+3}]')
        for t in range(4):
            a(f'v_mfma_f32_16x16x16_bf16 v[{OO+4*t}:{OO+4*t+3}], v[{VM+2*t}:{VM+2*t+1}], v[{PP+4}:{PP+5}], v[{OO+4*t}:{OO+4*t+3}]')
        a(f"""s_nop 3
              v_rcp_f32 v{LL}, v{LL}""")
        for t in range(4):
            a(f'v_cvt_pk_bf16_f32 v{X+2*t}, v{OO+4*t}, v{OO+4*t+1}')
            a(f'v_cvt_pk_bf16_f32 v{X+2*t+1}, v{OO+4*t+2}, v{OO+4*t+3}')
            a(f'ds_write_b64 v{vOw}, v[{X+2*t}:{X+2*t+1}] offset:{256*t}')
            if t == 0: a(f'ds_write_b32 v{vRw}, v{LL}')
        a('s_waitcnt lgkmcnt(0)')
        a('s_barrier')
        self.stamp(2)
        skipwo = a.newlabel('Latsk')
        self.wo_stage([(WA, WB, TA, TB, 0)], vFrag, vIdx, F, vCoff, RR, skipwo)
        a.label(skipwo)
        if self.opt.get('trace2'): a(f's_memtime s[{sST+8}:{sST+9}]')
        if not self.opt.get('fine'): self.stamp(3)
        for t in range(4):
            for r in range(4):
                a(f'v_mul_f32 v{OO+4*t+r}, v{OO+4*t+r}, v{LL}')
            a(f'v_cvt_pk_bf16_f32 v{OO+4*t}, v{OO+4*t}, v{OO+4*t+1}')
            a(f'v_cvt_pk_bf16_f32 v{OO+4*t+1}, v{OO+4*t+2}, v{OO+4*t+3}')
        a(f's_mov_b64 exec, s[{sMH8}:{sMH8+1}]')
        for t in range(4):
            a(f'ds_write_b64 v{vOx}, v[{OO+4*t}:{OO+4*t+1}] offset:{32*t}')
        a('s_mov_b64 exec, -1')
        a(f"""s_cmp_eq_u32 s{sSTEP}, 63
              s_cbranch_scc1 {end}
              s_add_u32 s{sLB}, s{sLB}, {LBUF_SZ}
              s_cmp_eq_u32 s{sLB}, {LBUF + 3*LBUF_SZ}
              s_cselect_b32 s{sLB}, {LBUF}, s{sLB}""")
        if self.opt.get('trace2'):
            a(f"""s_waitcnt lgkmcnt(0)
                  s_lshl_b32 s{sT0}, s{sJ}, 4
                  s_add_u32 s{sT0}, s{sT0}, s{sC}
                  s_lshl_b32 s{sT0}, s{sT0}, 2
                  s_add_u32 s{sT0}, s{sT0}, s{sWP}
                  s_lshl_b32 s{sT0}, s{sT0}, 6
                  s_add_u32 s{sT0}, s{sT0}, s{sSTEP}
                  s_lshl_b32 s{sT0}, s{sT0}, 4
                  s_add_u32 s{sT0}, s{sT0}, {WS_DBG + 0x300000}""")
            for k in range(4):
                a(f's_sub_u32 s{sT1}, s{sST+2*k+2}, s{sST}' if k else f's_sub_u32 s{sT1}, s{sST}, s{sST+10}')
                a(f'v_mov_b32 v{LL+k}, s{sT1}')
            a(f's_mov_b32 s{sST+10}, s{sST+8}')
            a(f"""v_mov_b32 v{T0}, 0
                  s_mov_b64 exec, 1
                  buffer_store_dwordx4 v[{LL}:{LL+3}], v{T0}, s[{sWS}:{sWS+3}], s{sT0} offen
                  s_mov_b64 exec, -1
                  s_nop 1""")
        read_seg()
        self.zero(TA, 8)
        self.a_poll(vAoff, [F, OO, OO + 8])
        a(f's_branch {loop}')
        a.label(end)
        a('s_waitcnt lgkmcnt(0)')
        a('s_barrier')
        self.finish()
        a.label(vrt)
        vm_loads()
        self.retry(vlp, 1)
        a(f's_branch {vok}')
        self.emit_tail()

def emit_gates(a, sU, ntok, vL, R):
    G, acc, t1, t2, v4, Xr = R, R + 5, R + 6, R + 7, R + 8, R + 10
    a(f'v_lshlrev_b32 v{v4}, 2, v{vL}')
    srd(a, ptr(11), DM * 2)
    for i in range(5):
        a(f'buffer_load_dword v{G+i}, v{v4}, s[{sT}:{sT+3}], 0 offen offset:{256*i}')
    srd(a, ptr(0), S * DM * 2)
    a(f's_mul_i32 s{sT1}, s{sU}, 1280')
    for tk in range(ntok):
        for i in range(5):
            a(f'buffer_load_dword v{Xr+5*tk+i}, v{v4}, s[{sT}:{sT+3}], s{sT1} offen offset:{1280*tk + 256*i}')
    a('s_waitcnt vmcnt(0)')
    for tk in range(ntok):
        a(f'v_mov_b32 v{acc}, 0')
        for i in range(5):
            x = Xr + 5*tk + i
            a(f"""v_lshlrev_b32 v{t1}, 16, v{x}
                  v_lshlrev_b32 v{t2}, 16, v{G+i}
                  v_fmac_f32 v{acc}, v{t1}, v{t2}
                  v_and_b32 v{t1}, 0xffff0000, v{x}
                  v_and_b32 v{t2}, 0xffff0000, v{G+i}
                  v_fmac_f32 v{acc}, v{t1}, v{t2}""")
        for sh in (8, 4, 2, 1):
            a(f"""s_nop 1
                  v_add_f32_dpp v{acc}, v{acc}, v{acc} row_ror:{sh} row_mask:0xf bank_mask:0xf""")
        for sw in ('v_permlane16_swap_b32', 'v_permlane32_swap_b32'):
            a(f"""v_mov_b32 v{t1}, v{acc}
                  s_nop 1
                  {sw} v{acc}, v{t1}
                  v_add_f32 v{acc}, v{acc}, v{t1}""")
        a(f"""v_mul_f32 v{acc}, {hex(f32bits(-math.log2(math.e)))}, v{acc}
              v_exp_f32 v{acc}, v{acc}
              s_nop 0
              v_add_f32 v{acc}, 1.0, v{acc}
              v_rcp_f32 v{acc}, v{acc}
              v_mov_b32 v{t1}, 0
              s_lshl_b32 s{sT0}, s{sU}, 2
              s_add_u32 s{sT0}, s{sT0}, {WS_G + 4*tk}
              s_mov_b64 exec, 1
              buffer_store_dword v{acc}, v{t1}, s[{sWS}:{sWS+3}], s{sT0} offen sc1
              s_mov_b64 exec, -1""")

def wait_registered(a, opt, T0, T1, vN, init=False):
    lp, done = a.newlabel('Lreg'), a.newlabel('Lregd')
    a(f'v_lshlrev_b32 v{T1}, 2, v{vN}')
    a.label(lp)
    a(f'''buffer_load_dword v{T0}, v{T1}, s[{sDBG}:{sDBG+3}], 0 offen sc0 sc1
          s_waitcnt vmcnt(0)
          v_readlane_b32 s{sT0}, v{T0}, 8
          v_readlane_b32 s{sT1}, v{T0}, {32 if init else 8}
          s_add_u32 s{sT0}, s{sT0}, s{sT1}
          s_cmp_ge_u32 s{sT0}, {256 + 384 if init else 512}
          s_cbranch_scc1 {done}
          s_sleep 24
          s_sub_u32 s{sBUD}, s{sBUD}, 1
          s_cbranch_scc0 {lp}
          s_mov_b32 s{sBUD}, 0''')
    a.label(done)
    a(f'''v_readlane_b32 s{sPOL}, v{T0}, 34
          v_cmp_ne_u32 vcc, 32, v{T0}
          s_and_b32 s{sPOL}, s{sPOL}, 1
          s_and_b32 s{sT0}, vcc_lo, 0xff
          s_cselect_b32 s{sMIX}, 1, {1 if opt.get('force_mixed') else 0}''')

def emit_entry(a, opt, exit_label):
    a(f'''s_cmp_ge_u32 s2, 256
          s_cbranch_scc1 {exit_label}
          s_load_dwordx16 s[16:31], s[0:1], 0
          s_load_dwordx8 s[32:39], s[0:1], 64
          s_load_dwordx4 s[40:43], s[0:1], 96
          s_load_dwordx2 s[44:45], s[0:1], 112
          v_lshrrev_b32 v1, 6, v0
          s_getreg_b32 s{sJ}, hwreg(HW_REG_XCC_ID)
          v_readfirstlane_b32 s{sW}, v1
          s_and_b32 s{sJ}, s{sJ}, 15
          s_min_u32 s{sJ}, s{sJ}, 10
          s_cmp_lt_u32 s{sJ}, 8
          s_cselect_b32 s{sJ}, s{sJ}, 10
          s_mov_b32 s{sBUD}, {opt.get('budget', 1 << 20)}
          s_mov_b32 s{sSTEP}, 0
          s_mov_b32 s{sCS}, 0
          s_mov_b32 s{sPOL}, 0
          s_mov_b64 s[98:99], 0
          s_mov_b64 s[100:101], 0
          s_mov_b32 s{sMIX}, {1 if opt.get('force_mixed') else 0}
          s_mov_b32 s{sMN8}, 0x00ff00ff
          s_mov_b32 s{sMN8+1}, 0x00ff00ff
          s_mov_b32 s{sMH8}, 0xff00ff00
          s_mov_b32 s{sMH8+1}, 0xff00ff00
          s_mov_b32 s{sML32}, -1
          s_mov_b32 s{sML32+1}, 0
          s_mov_b32 s{sSELLO}, 0x05040100
          s_mov_b32 s{sSELHI}, 0x07060302
          s_mov_b32 s{sSCL}, {hex(f32bits(DH ** -0.5 * math.log2(math.e)))}
          s_waitcnt lgkmcnt(0)
          s_mov_b32 s{sWS}, s{ptr(14)}
          s_mov_b32 s{sWS+1}, s{ptr(14)+1}
          s_mov_b32 s{sWS+2}, {WS_SIZE}
          s_mov_b32 s{sWS+3}, 0x20000
          s_mov_b32 s{sDBG}, s{ptr(13)}
          s_mov_b32 s{sDBG+1}, s{ptr(13)+1}
          s_mov_b32 s{sDBG+2}, 256
          s_mov_b32 s{sDBG+3}, 0x20000''')
    if opt.get('prof'):
        a(f's_memrealtime s[{sST}:{sST+1}]')
        a('s_waitcnt lgkmcnt(0)')
    if opt.get('fake_xcc') == 1:
        a(f'''s_lshr_b32 s{sJ}, s2, 5''')
    if opt.get('fake_xcc') == 2:
        a(f'''s_cmp_lt_u32 s2, 200
              s_cselect_b32 s{sJ}, s{sJ}, 3
              s_cmp_lt_u32 s2, 250
              s_cselect_b32 s{sJ}, s{sJ}, 10''')
    l1, l2 = a.newlabel('Le'), a.newlabel('Le')
    def sweep():
        ls = a.newlabel('Lsw')
        a(f'''s_lshl_b32 s{sT0}, s{sC}, 3
              s_add_u32 s{sT0}, s{sT0}, s{sW}
              s_cmp_ge_u32 s{sT0}, 240
              s_cbranch_scc1 {ls}
              s_mov_b32 m0, {SWEEP_LDS}
              v_and_b32 v9, 63, v0
              v_lshlrev_b32 v9, 4, v9
              v_add_u32 v10, 1024, v9
              v_add_u32 v11, {12288 + 512}, v9
              v_add_u32 v12, {12288 - 512}, v9
              v_cmp_gt_u32 vcc, 512, v9
              s_mul_i32 s{sT1}, s{sT0}, 52429
              s_lshr_b32 s{sT1}, s{sT1}, 22
              v_cndmask_b32 v10, v12, v10, vcc
              s_cmp_eq_u32 s{sT1}, 1
              s_cselect_b32 s{sT}, s{ptr(3)}, s{ptr(2)}
              s_cselect_b32 s{sT+1}, s{ptr(3)+1}, s{ptr(2)+1}
              s_cmp_eq_u32 s{sT1}, 2
              s_cselect_b32 s{sT}, s{ptr(4)}, s{sT}
              s_cselect_b32 s{sT+1}, s{ptr(4)+1}, s{sT+1}
              s_mov_b32 s{sT+2}, {DM*NH*DH*2}
              s_mov_b32 s{sT+3}, 0x20000
              s_mul_i32 s{sT1}, s{sT1}, 80
              s_sub_u32 s{sT1}, s{sT0}, s{sT1}
              s_mul_i32 s{sT1}, s{sT1}, {8*12288}
              s_mul_i32 s{sT2}, s{sJ}, 1536
              s_add_u32 s{sT1}, s{sT1}, s{sT2}''')
        for rp in range(4):
            for v in (9, 10, 11):
                a(f'buffer_load_dwordx4 v{v}, s[{sT}:{sT+3}], s{sT1} offen lds')
            if rp < 3: a(f's_add_u32 s{sT1}, s{sT1}, {2*12288}')
        srd(a, ptr(5), NH * DH * DM * 2)
        a(f'''s_mul_i32 s{sT1}, s{sJ}, {4*DH*DM*2}
              s_lshl_b32 s{sT0}, s{sT0}, 12
              s_add_u32 s{sT1}, s{sT1}, s{sT0}''')
        for k in range(4):
            a(f'buffer_load_dwordx4 v9, s[{sT}:{sT+3}], s{sT1} offen offset:{1024*k} lds')
        a.label(ls)
    a(f'''s_cmp_lg_u32 s{sW}, 0
          s_cbranch_scc1 {l1}
          s_mov_b64 exec, 1
          v_mov_b32 v2, 1
          s_lshl_b32 s{sT0}, s{sJ}, 2
          v_mov_b32 v3, s{sT0}
          buffer_atomic_add v2, v3, s[{sDBG}:{sDBG+3}], 0 offen sc0 sc1
          s_mov_b64 exec, -1''')
    a.label(l1)
    l3, l4, l5, l6, l7 = [a.newlabel('Le') for _ in range(5)]
    a(f'''s_cmp_lg_u32 s{sW}, 1
          s_cbranch_scc1 {l5}
          s_mov_b64 exec, 1
          v_mov_b32 v2, 0
          v_mov_b32 v3, 0
          v_mov_b32 v4, 0
          v_mov_b32 v5, 0
          s_lshl_b32 s{sT0}, s2, 4
          s_add_u32 s{sT0}, s{sT0}, {WS_FLAG}
          buffer_store_dwordx4 v[2:5], v2, s[{sWS}:{sWS+3}], s{sT0} offen sc1
          s_mov_b64 exec, -1''')
    a.label(l5)
    a(f'''s_waitcnt vmcnt(0)
          s_cmp_lg_u32 s{sW}, 0
          s_cbranch_scc1 {l3}
          s_mov_b64 exec, 1
          v_readfirstlane_b32 s{sT0}, v2
          s_cmp_ge_u32 s{sJ}, 8
          s_cselect_b32 s{sT0}, 32, s{sT0}
          s_cmp_lt_u32 s{sT0}, 32
          s_cbranch_scc1 {l6}
          v_mov_b32 v2, 1
          v_mov_b32 v3, 36
          buffer_atomic_add v2, v3, s[{sDBG}:{sDBG+3}], 0 offen sc0 sc1
          s_waitcnt vmcnt(0)
          v_add_u32 v2, 32, v2''')
    a.label(l6)
    l8 = a.newlabel('Le')
    a(f'''v_mov_b32 v4, 0
          s_or_b32 s{sT0}, s{sT0}, s{sJ}
          s_cmp_lg_u32 s{sT0}, 0
          s_cbranch_scc1 {l8}
          s_lshr_b32 s{sT0}, s2, 6
          s_lshl_b32 s{sT0}, s{sT0}, 14
          s_and_b32 s{sT1}, s2, 63
          s_lshl_b32 s{sT1}, s{sT1}, 7
          s_add_u32 s{sT0}, s{sT0}, s{sT1}
          s_add_u32 s{sT0}, s{sT0}, {WS_RC + RC_PROBE}
          s_add_u32 s{sT1}, s{sT0}, 8192
          s_mov_b32 s{sT2}, -1
          s_mov_b32 s{sT3}, -1''')
    for rnd in range(2):
        for cp in range(2):
            a(f'''v_mov_b32 v5, 0
                  s_memtime s[98:99]
                  s_waitcnt lgkmcnt(0)
                  buffer_atomic_add v5, v4, s[{sWS}:{sWS+3}], s{sT1 if cp else sT0} offen sc0 sc1
                  s_waitcnt vmcnt(0)
                  s_memtime s[100:101]
                  s_waitcnt lgkmcnt(0)
                  s_sub_u32 s98, s100, s98
                  s_min_u32 s{sT3 if cp else sT2}, s{sT3 if cp else sT2}, s98''')
    a(f'''s_mov_b64 s[98:99], 0
          s_mov_b64 s[100:101], 0
          s_cmp_lt_u32 s{sT3}, s{sT2}
          s_cselect_b32 s{sT2}, 0x15, 0x0a
          v_mov_b32 v4, s{sT2}''')
    a(f'''v_mov_b32 v5, 136
          buffer_store_dword v4, v5, s[{sDBG}:{sDBG+3}], 0 offen sc1
          s_waitcnt vmcnt(0)''')
    a.label(l8)
    a(f'''v_mov_b32 v3, 0
          ds_write_b32 v3, v2
          s_mov_b64 exec, -1
          s_waitcnt lgkmcnt(0)''')
    a.label(l3)
    a(f'''s_barrier
          v_mov_b32 v3, 0
          ds_read_b32 v2, v3
          s_cmp_lg_u32 s{sW}, 0
          s_cbranch_scc1 {l4}
          s_mov_b64 exec, 1
          v_mov_b32 v4, 1
          v_mov_b32 v5, 32
          buffer_atomic_add v4, v5, s[{sDBG}:{sDBG+3}], 0 offen sc1
          s_mov_b64 exec, -1''')
    a.label(l4)
    a(f'''s_waitcnt lgkmcnt(0)
          v_readfirstlane_b32 s{sC}, v2
          s_barrier
          s_cmp_lt_u32 s{sC}, 32
          s_cbranch_scc1 {l7}''')
    a('v_and_b32 v4, 63, v0')
    wait_registered(a, opt, 2, 3, 4)
    a(f's_sub_u32 s{sT1}, s{sC}, 32')
    a(f's_mov_b32 s{sJ}, 0')
    a(f's_mov_b32 s{sC}, 0')
    for x in range(8):
        a(f'''v_readlane_b32 s{sT0}, v2, {x}
              s_min_u32 s{sT0}, s{sT0}, 32
              s_sub_u32 s{sT2}, 32, s{sT0}
              s_add_u32 s{sT0}, s{sT0}, s{sT1}
              s_cmp_lt_u32 s{sT1}, s{sT2}
              s_cselect_b32 s{sJ}, {x}, s{sJ}
              s_cselect_b32 s{sC}, s{sT0}, s{sC}
              s_sub_u32 s{sT1}, s{sT1}, s{sT2}''')
    a.label(l7)
    a(f'''s_lshr_b32 s{sT0}, s{sC}, 4
          s_lshr_b32 s{sT1}, s{sJ}, 2
          s_and_b32 s{sJ}, s{sJ}, 3
          s_lshl_b32 s{sJ}, s{sJ}, 1
          s_add_u32 s{sJ}, s{sJ}, s{sT0}
          s_and_b32 s{sC}, s{sC}, 15
          s_lshl_b32 s{sT1}, s{sT1}, 4
          s_add_u32 s{sC}, s{sC}, s{sT1}''')
    if opt.get('prof'):
        a(f's_memrealtime s[{sST+8}:{sST+9}]')
        a('s_waitcnt lgkmcnt(0)')

import struct
def f32bits(x): return struct.unpack('<I', struct.pack('<f', x))[0]

def emit_chain_body(a, opt):
    ch = Chain(a, opt)
    lv, l7, lat = a.newlabel('Lrole_v'), a.newlabel('Lrole_w7'), a.newlabel('Lrole_att')
    a(f'''s_lshr_b32 s{sH}, s{sC}, 2
          s_lshl_b32 s{sT0}, s{sJ}, 2
          s_add_u32 s{sH}, s{sH}, s{sT0}
          s_and_b32 s{sG}, s{sC}, 3
          s_setprio 2
          s_cmp_eq_u32 s{sW}, 3
          s_cbranch_scc1 {lv}
          s_cmp_eq_u32 s{sW}, 7
          s_cbranch_scc1 {l7}
          s_cmp_ge_u32 s{sW}, 4
          s_cbranch_scc1 {lat}''')
    ch.role_qk()
    a.label(lv); ch.role_v()
    a.label(l7); ch.role_w7()
    a.label(lat); ch.role_att()
```

```python
from asmlib import *
from layout import *
from chain import (sWS, sDBG, sT, ptr, sW, sJ, sC, sMIX, sBUD, sT0, sT1, sT2, sT3, f32bits, wait_registered, emit_gates, SWEEP_LDS, sPOL, srd, arrive)
import math

XB, WB_OFF, WSZ = 32768, 65536, 24576
STAGE = XB
GEMM1_LDS = WB_OFF + 3 * WSZ

sX = 56
sWD = 60
sTile, sXo, sWo, sWrs, sKind, sOut, sNK, sNOut, sIt, sM0x, sM0w, sWstep = 64, 65, 66, 67, 68, 70, 71, 72, 73, 74, 75, 47
sFlagP = 80
sNFlag = 81
sC1, sC2 = 98, 99
sXoN, sWrd, sWwr = 100, 101, 97

class Gemm1:
    def __init__(self, a, opt, nworkers, rank0):
        self.a, self.opt, self.NW, self.rank0 = a, opt, nworkers, rank0
        self.tail = []
        self.inloop = False
        self.pending = []

    def lstore(self, insts, nt=False, cross=False):
        a = self.a
        if cross:
            for i in insts: a(i + (' sc1' if i.startswith('buffer_') else ''))
            return
        slow, back = a.newlabel('Lgslow'), a.newlabel('Lgback')
        a(f's_cmp_lg_u32 s{sMIX}, 0')
        a(f's_cbranch_scc1 {slow}')
        for i in insts: a(i + (' nt' if nt and i.startswith('buffer_') else ''))
        a.label(back)
        self.tail.append((slow, [i + ' sc1' if i.startswith('buffer_') else i for i in insts], back))

    def emit_tail(self):
        a = self.a
        for slow, insts, back in self.tail:
            a.label(slow)
            for i in insts: a(i)
            a(f's_branch {back}')
        self.tail = []

    def decode(self):
        a = self.a
        lf, ln, ld = a.newlabel('Ldf'), a.newlabel('Ldn'), a.newlabel('Ldd')
        a(f'''s_cmp_ge_u32 s{sTile}, 112
              s_cbranch_scc1 {ln}
              s_cmp_ge_u32 s{sTile}, 96
              s_cbranch_scc1 {lf}
              s_mul_i32 s{sT0}, s{sTile}, 43691
              s_lshr_b32 s{sT0}, s{sT0}, 19
              s_mul_i32 s{sT1}, s{sT0}, 12
              s_sub_u32 s{sT1}, s{sTile}, s{sT1}
              s_lshr_b32 s{sNK}, s{sT1}, 2
              s_and_b32 s{sT1}, s{sT1}, 3
              s_lshl_b32 s{sT2}, s{sJ}, 2
              s_add_u32 s{sT1}, s{sT1}, s{sT2}
              s_mul_i32 s{sXoN}, s{sT0}, {256*1280}
              s_mul_i32 s{sWo}, s{sT1}, 384
              s_mov_b32 s{sWrs}, 12288
              s_cmp_eq_u32 s{sNK}, 1
              s_cselect_b32 s{sWD}, s{ptr(3)}, s{ptr(2)}
              s_cselect_b32 s{sWD+1}, s{ptr(3)+1}, s{ptr(2)+1}
              s_cmp_eq_u32 s{sNK}, 2
              s_cselect_b32 s{sWD}, s{ptr(4)}, s{sWD}
              s_cselect_b32 s{sWD+1}, s{ptr(4)+1}, s{sWD+1}
              s_mov_b32 s{sWD+2}, {DM*NH*DH*2}
              s_mul_i32 s{sNOut}, s{sNK}, {WS_K}
              s_mul_i32 s{sT2}, s{sT1}, {2048*384}
              s_add_u32 s{sNOut}, s{sNOut}, s{sT2}
              s_mul_i32 s{sT2}, s{sT0}, {256*384}
              s_add_u32 s{sNOut}, s{sNOut}, s{sT2}
              s_mul_i32 s{sT2}, s{sW}, 3
              s_lshr_b32 s{sT3}, s{sT2}, 2
              s_branch {ld}''')
        a.label(lf)
        a(f'''s_sub_u32 s{sT1}, s{sTile}, 96
              s_lshr_b32 s{sT0}, s{sT1}, 1
              s_and_b32 s{sT1}, s{sT1}, 1
              s_mov_b32 s{sNK}, 3
              s_mul_i32 s{sXoN}, s{sT0}, {256*1280}
              s_mul_i32 s{sWo}, s{sJ}, 384
              s_mul_i32 s{sT2}, s{sT1}, 192
              s_add_u32 s{sWo}, s{sWo}, s{sT2}
              s_mov_b32 s{sWrs}, 3072
              s_cmp_ge_u32 s{sW}, 4
              s_cselect_b32 s{sWD}, s{ptr(9)}, s{ptr(8)}
              s_cselect_b32 s{sWD+1}, s{ptr(9)+1}, s{ptr(8)+1}
              s_mov_b32 s{sWD+2}, {DM*DF*2}
              s_mul_i32 s{sNOut}, s{sT0}, {8*98304}
              s_lshl_b32 s{sT2}, s{sWo}, 4
              s_add_u32 s{sNOut}, s{sNOut}, s{sT2}
              s_add_u32 s{sNOut}, s{sNOut}, {WS_H}
              s_and_b32 s{sT2}, s{sW}, 3
              s_mul_i32 s{sT2}, s{sT2}, 3
              s_lshr_b32 s{sT3}, s{sT2}, 2
              s_branch {ld}''')
        a.label(ln)
        a(f'''s_mov_b32 s{sNK}, 4
              s_mov_b32 s{sWD+2}, 0
              s_mov_b32 s{sT2}, 0
              s_mov_b32 s{sT3}, 0''')
        a.label(ld)
        if self.opt.get('g_hit'):
            a(f's_mov_b32 s{sXoN}, 0')
            a(f's_mov_b32 s{sWo}, 0')
            a(f's_mov_b32 s{sWD}, s{ptr(2)}')
            a(f's_mov_b32 s{sWD+1}, s{ptr(2)+1}')
        for ii in range(3):
            a(f'''s_add_u32 s{sT0}, s{sT2}, {ii}
                  s_lshr_b32 s{sT1}, s{sT0}, 2
                  s_and_b32 s{sT0}, s{sT0}, 3
                  s_lshl_b32 s{sT0}, s{sT0}, 4
                  s_mul_i32 s{sT0}, s{sT0}, s{sWrs}
                  s_lshl_b32 s{sT1}, s{sT1}, 6
                  s_add_u32 s{sT0}, s{sT0}, s{sT1}
                  s_add_u32 s{self.sP+ii}, s{sT0}, s{sWo}''')
        a(f'''s_mul_i32 s{sT0}, s{sW}, {32*1280}
              s_add_u32 s{sXoN}, s{sXoN}, s{sT0}
              s_lshl_b32 s{sWstep}, s{sWrs}, 6
              v_mul_lo_u32 v{self.vWg}, v{self.vL2}, s{sWrs}
              v_add_u32 v{self.vWg}, v{self.vWg}, v{self.vL3}''')

    def dma_x(self, buf):
        a = self.a
        for ii in range(4):
            a(f's_add_u32 m0, s{sM0x}, {buf*STAGE + ii*1024}')
            a(f's_add_u32 s{sT0}, s{sXo}, {ii*10240}' if ii else 's_nop 0')
            a(f'buffer_load_dwordx4 v{self.vXg + (ii & 1)}, s[{sX}:{sX+3}], s{sT0 if ii else sXo} offen lds')
        a(f's_add_u32 s{sXo}, s{sXo}, 128')

    def rot(self, r):
        self.a(f'''s_add_u32 s{r}, s{r}, {WSZ}
                   s_cmp_eq_u32 s{r}, {3*WSZ}
                   s_cselect_b32 s{r}, 0, s{r}''')

    def dma_w(self):
        a = self.a
        a(f's_add_u32 s{sT1}, s{sM0w}, s{sWwr}')
        for ii in range(3):
            a(f's_add_u32 m0, s{sT1}, {ii*1024}')
            a('s_nop 0')
            a(f'buffer_load_dwordx4 v{self.vWg}, s[{sWD}:{sWD+3}], s{self.sP+ii} offen lds')
            a(f's_add_u32 s{self.sP+ii}, s{self.sP+ii}, s{sWstep}')
        self.rot(sWwr)

    def dma(self, buf):
        if self.opt.get('g_nodma') and self.inloop: return
        self.dma_x(buf)
        self.dma_w()

    def reads(self, var, buf, kk, fs):
        a = self.a
        MT, NT = var
        F = self.F + fs * 28
        xa = (self.vXr if MT == 2 else self.vXr1) + buf * 4 + kk
        out = []
        for mt in range(MT):
            out.append(f'ds_read_b128 v[{F+4*mt}:{F+4*mt+3}], v{xa} offset:{4096*mt}')
        wa = self.vWc
        for nt in range(NT):
            for j in range(2):
                r = F + 4*MT + 4*nt + 2*j
                out.append(f'ds_read_b64_tr_b16 v[{r}:{r+1}], v{wa} offset:{4096*nt + 1024*kk + 256*j}')
        return out

    def mfmas(self, var, swap, fs, first):
        MT, NT = var
        F = self.F + fs * 28
        out = []
        for mt in range(MT):
            for nt in range(NT):
                acc = self.ACC + 16 * (mt * NT + nt)
                x = f'v[{F+4*mt}:{F+4*mt+3}]'; w = f'v[{F+4*MT+4*nt}:{F+4*MT+4*nt+3}]'
                A, B = (x, w) if swap else (w, x)
                c = '0' if first else f'v[{acc}:{acc+15}]'
                if self.opt.get('g_fake16') and not first:
                    q = acc + 8 * fs
                    out.append(f'v_mfma_f32_16x16x32_bf16 v[{q}:{q+3}], {A}, {B}, v[{q}:{q+3}]\nv_mfma_f32_16x16x32_bf16 v[{q+4}:{q+7}], {B}, {A}, v[{q+4}:{q+7}]')
                    continue
                out.append(f'v_mfma_f32_32x32x16_bf16 v[{acc}:{acc+15}], {A}, {B}, {c}')
        return out

    def interleave(self, mf, other):
        a = self.a
        n = len(mf); per = (len(other) + n - 1) // n if other else 0
        k = 0
        for m in mf:
            a(m)
            for o in other[k:k + per]: a(o)
            k += per
        for o in other[k:]: a(o)

    def stage_top(self, var=None, full=0):
        a = self.a
        if var is not None:
            a(f'v_add_u32 v{self.vWn}, s{sWrd}, v{self.vWr if var[0] == 2 else self.vWr1}')
            self.rot(sWrd)
        a(f's_waitcnt vmcnt({full}) lgkmcnt(0)')
        if var is not None: a(f'v_mov_b32 v{self.vWc}, v{self.vWn}')
        a('s_barrier')

    def tile_loop(self, var, swap, name):
        a = self.a
        nr = var[0] + 2 * var[1]
        loop = a.newlabel('L' + name)
        self.stage_top(var, 15)
        if var == (1, 6) and self.opt.get('fused'):
            l = a.newlabel('Lgg')
            a(f'''s_cmp_lg_u32 s{sW}, 1
                  s_cbranch_scc1 {l}
                  v_mov_b32 v{self.vT0}, 132
                  s_mov_b64 exec, 1
                  buffer_atomic_add v{self.vOne}, v{self.vT0}, s[{sDBG}:{sDBG+3}], 0 offen sc1
                  s_mov_b64 exec, -1''')
            a.label(l)
        for r in self.reads(var, 0, 0, 0): a(r)
        self.dma(1)
        def body(buf, kstart_first):
            for kk in range(3):
                rd = self.reads(var, buf, kk + 1, (kk + 1) & 1)
                a(f's_waitcnt lgkmcnt(0)')
                self.interleave(self.mfmas(var, swap, kk & 1, kstart_first and kk == 0), rd)
        body(0, True)
        a(f's_mov_b32 s{sIt}, 0')
        a.label(loop)
        for buf in (1, 0):
            self.stage_top(var, 3)
            if buf == 1:
                nf = a.newlabel('Lgnf')
                a(f's_cmp_lg_u32 s{sIt}, 0')
                a(f's_cbranch_scc1 {nf}')
                self.after_top()
                a.label(nf)
            rd = self.reads(var, buf, 0, 0)
            self.interleave(self.mfmas(var, swap, 1, False), rd)
            skip = a.newlabel('Lgn')
            if buf == 0:
                a(f's_cmp_lg_u32 s{sIt}, 3')
                a(f's_cbranch_scc1 {skip}')
                a(f's_add_u32 s{sTile}, s{sTile}, {self.NW}')
                self.decode()
            else:
                a(f's_cmp_eq_u32 s{sIt}, 4')
                a(f's_cselect_b32 s{sXo}, s{sXoN}, s{sXo}')
            a.label(skip)
            self.dma(buf ^ 1)
            body(buf, False)
            if buf == 1:
                a(f's_cmp_eq_u32 s{sIt}, 4')
                a(f's_cbranch_scc1 {name}_done')
        a(f's_add_u32 s{sIt}, s{sIt}, 1')
        a(f's_branch {loop}')
        a.label(f'{name}_done')
        a('s_waitcnt lgkmcnt(0)')
        for m in self.mfmas(var, swap, 1, False): a(m)
        a('s_nop 7'); a('s_nop 3')
        if self.opt.get('fused'):
            l = a.newlabel('Lgreg')
            a(f's_cmp_lg_u32 s{sFlagP}, 0')
            a(f's_cbranch_scc1 {l}')
            if self.opt.get('prof'):
                a('s_memrealtime s[88:89]'); a('s_waitcnt lgkmcnt(0)')
            a(f'v_and_b32 v{self.vT2}, 63, v0')
            wait_registered(a, self.opt, self.vT0, self.vT1, self.vT2)
            a.label(l)

    def after_top(self):
        if not self.opt.get('fused'): return
        a = self.a
        l = a.newlabel('Lgf')
        a(f'''s_cmp_eq_u32 s{sFlagP}, 0
              s_cbranch_scc1 {l}
              s_cmp_lg_u32 s{sW}, 0
              s_cbranch_scc1 {l}
              s_mov_b64 exec, 1''')
        self.lstore([f'buffer_store_dword v{self.vOne}, v{self.vZero}, s[{sWS}:{sWS+3}], s{sFlagP} offen'], cross=True)
        a('s_mov_b64 exec, -1')
        a.label(l)

    def emit(self, done_label):
        a = self.a
        al = Alloc(1, 256)
        self.ACC = al(96, 2); self.F = al(56, 2)
        self.vXg = al(2); self.vWg = al()
        self.vXr = al(8); self.vXr1 = al(8); self.vWr = al(); self.vWr1 = al(); self.vWc = al(); self.vWn = al()
        self.vL2, self.vL3 = al(), al()
        vL, vT0, vT1, vT2 = al(), al(), al(), al()
        vQK, vV, vH = al(), al(), al()
        self.vT0, self.vT1, self.vT2 = vT0, vT1, vT2
        self.vOne, self.vZero = al(), al()
        self.sP = 94
        a(f'''v_and_b32 v{vL}, 63, v0
              v_mov_b32 v{self.vOne}, 1
              v_mov_b32 v{self.vZero}, 0
              s_mov_b32 s{sX}, s{ptr(0)}
              s_mov_b32 s{sX+1}, s{ptr(0)+1}
              s_mov_b32 s{sX+2}, {S*DM*2}
              s_mov_b32 s{sX+3}, 0x20000
              s_mov_b32 s{sWD}, s{ptr(2)}
              s_mov_b32 s{sWD+1}, s{ptr(2)+1}
              s_mov_b32 s{sWD+3}, 0x20000
              s_mov_b32 s{sWrs}, 0
              s_mov_b32 s{sWo}, 0
              s_mov_b32 s{sXo}, 0
              s_mov_b32 s{sXoN}, 0
              s_mov_b32 s{sWrd}, 0
              s_mov_b32 s{sWwr}, 0
              s_mov_b32 s{sNOut}, 0
              s_mov_b32 s{sFlagP}, 0
              s_mov_b32 s{sC1}, {hex(f32bits(-2 * math.sqrt(2 / math.pi) * math.log2(math.e)))}
              s_mov_b32 s{sC2}, {hex(f32bits(-2 * math.sqrt(2 / math.pi) * math.log2(math.e) * 0.044715))}
              s_lshl_b32 s{sM0x}, s{sW}, 12
              s_mul_i32 s{sM0w}, s{sW}, 3072
              s_add_u32 s{sM0w}, s{sM0w}, {WB_OFF}
              s_sub_u32 s{sTile}, s{sC}, {self.rank0}
              v_lshrrev_b32 v{self.vL2}, 2, v{vL}
              v_and_b32 v{self.vL3}, 3, v{vL}
              v_lshlrev_b32 v{self.vL3}, 4, v{self.vL3}''')
        for par in range(2):
            a(f'''v_lshrrev_b32 v{vT0}, 4, v{vL}
                  v_add_u32 v{vT0}, {4*par}, v{vT0}
                  v_and_b32 v{vT1}, 7, v{vL}
                  v_xor_b32 v{vT0}, v{vT0}, v{vT1}
                  v_lshlrev_b32 v{vT0}, 4, v{vT0}
                  v_lshrrev_b32 v{vT1}, 3, v{vL}
                  v_mul_u32_u24 v{vT1}, 1280, v{vT1}
                  v_add_u32 v{self.vXg+par}, v{vT0}, v{vT1}''')
        a(f'''v_and_b32 v{vT0}, 31, v{vL}
              v_bfe_u32 v{vT1}, v{vL}, 1, 3
              v_lshrrev_b32 v{vT2}, 5, v{vL}
              v_xor_b32 v{vT1}, v{vT1}, v{vT2}
              s_lshr_b32 s{sT0}, s{sW}, 1
              s_lshl_b32 s{sT0}, s{sT0}, 13
              s_lshl_b32 s{sT1}, s{sW}, 12''')
        for kk in range(4):
            a(f'''v_xor_b32 v{vT2}, {2*kk}, v{vT1}
                  v_lshlrev_b32 v{vT2}, 4, v{vT2}
                  v_lshl_add_u32 v{vT2}, v{vT0}, 7, v{vT2}
                  v_add_u32 v{self.vXr+kk}, s{sT0}, v{vT2}
                  v_add_u32 v{self.vXr1+kk}, s{sT1}, v{vT2}
                  v_add_u32 v{self.vXr+4+kk}, {STAGE}, v{self.vXr+kk}
                  v_add_u32 v{self.vXr1+4+kk}, {STAGE}, v{self.vXr1+kk}''')
        a(f'''v_lshrrev_b32 v{vT0}, 5, v{vL}
              v_lshlrev_b32 v{vT0}, 9, v{vT0}
              v_bfe_u32 v{vT1}, v{vL}, 2, 2
              v_lshl_add_u32 v{vT0}, v{vT1}, 6, v{vT0}
              v_bfe_u32 v{vT1}, v{vL}, 4, 1
              v_lshl_add_u32 v{vT0}, v{vT1}, 5, v{vT0}
              v_and_b32 v{vT1}, 3, v{vL}
              v_lshl_add_u32 v{vT0}, v{vT1}, 3, v{vT0}
              v_add_u32 v{self.vWr1}, {WB_OFF}, v{vT0}
              s_and_b32 s{sT0}, s{sW}, 1
              s_mul_i32 s{sT0}, s{sT0}, {3*4096}
              v_add_u32 v{self.vWr}, s{sT0}, v{self.vWr1}''')
        a(f'''v_and_b32 v{vT0}, 15, v{vL}
              v_lshlrev_b32 v{vT0}, 4, v{vT0}
              v_lshrrev_b32 v{vT1}, 5, v{vL}
              v_lshl_add_u32 v{vT0}, v{vT1}, 8, v{vT0}
              v_bfe_u32 v{vT1}, v{vL}, 4, 1
              s_lshr_b32 s{sT0}, s{sW}, 1
              s_and_b32 s{sT1}, s{sW}, 1
              s_mul_i32 s{sT0}, s{sT0}, 24576
              v_mul_u32_u24 v{vQK}, 6144, v{vT1}
              v_add_u32 v{vQK}, v{vQK}, v{vT0}
              s_mul_i32 s{sT3}, s{sT1}, 3072
              s_add_u32 s{sT2}, s{sT0}, s{sT3}
              v_add_u32 v{vQK}, s{sT2}, v{vQK}
              v_lshl_add_u32 v{vV}, v{vT1}, 10, v{vT0}
              s_mul_i32 s{sT3}, s{sT1}, 6144
              s_add_u32 s{sT2}, s{sT0}, s{sT3}
              v_add_u32 v{vV}, s{sT2}, v{vV}
              v_mul_u32_u24 v{vH}, 49152, v{vT1}
              v_add_u32 v{vH}, v{vH}, v{vT0}
              s_mul_i32 s{sT2}, s{sW}, 98304
              v_add_u32 v{vH}, s{sT2}, v{vH}''')
        self.decode()
        a(f's_mov_b32 s{sXo}, s{sXoN}')
        self.dma(0)
        self.dma_w()
        if self.opt.get('x_sweep'):
            a(f'''s_sub_u32 s{sT0}, s{sC}, {self.rank0}
                  s_lshl_b32 s{sT0}, s{sT0}, 3
                  s_add_u32 s{sT0}, s{sT0}, s{sW}
                  s_mul_i32 s{sT0}, s{sT0}, 5120
                  s_add_u32 s{sT1}, s{sT0}, 4096
                  s_mov_b32 m0, {SWEEP_LDS}
                  v_lshlrev_b32 v{vT0}, 4, v{vL}''')
            for k in range(5):
                a(f'buffer_load_dwordx4 v{vT0}, s[{sX}:{sX+3}], s{sT1 if k == 4 else sT0} offen offset:{1024*(k & 3)} lds')
        nsw = 0
        arrv = True
        if self.opt.get('wo_sweep'):
            srd(a, ptr(5), NH * DH * DM * 2)
            a(f'''s_lshl_b32 s{sT0}, s{sJ}, 4
                  s_add_u32 s{sT0}, s{sT0}, s{sC}
                  s_sub_u32 s{sT0}, s{sT0}, {self.rank0}
                  s_lshl_b32 s{sT0}, s{sT0}, 3
                  s_add_u32 s{sT0}, s{sT0}, s{sW}
                  s_mul_i32 s{sT0}, s{sT0}, 7680
                  s_add_u32 s{sT1}, s{sT0}, 4096''')
            for k in range(8):
                a(f'buffer_load_dwordx4 v{vT0}, s[{sT}:{sT+3}], s{sT1 if k >= 4 else sT0} offen offset:{1024*(k & 3)} lds')
            nsw = 8
        a('s_waitcnt vmcnt(%d)' % (nsw + (8 if self.opt.get('x_sweep') else 3)))
        arrive(a, 7, vT1)
        self.inloop = True
        nxt = a.newlabel('Lgnext')
        lqk, lv, lf = 'Lg_qk', 'Lg_v', 'Lg_f'
        a.label(nxt)
        a(f'''s_mov_b32 s{sKind}, s{sNK}
              s_mov_b32 s{sOut}, s{sNOut}
              s_lshl_b32 s{sNFlag}, s{sTile}, 2
              s_cmp_eq_u32 s{sKind}, 4
              s_cbranch_scc1 Lg_end
              s_cmp_eq_u32 s{sKind}, 2
              s_cbranch_scc1 {lv}
              s_cmp_eq_u32 s{sKind}, 3
              s_cbranch_scc1 {lf}''')
        def c_init():
            l = a.newlabel('Lgci')
            F = self.F
            a(f'''s_lshr_b32 s{sT0}, s{sNFlag}, 2
                  s_mul_i32 s{sT1}, s{sT0}, 43691
                  s_lshr_b32 s{sT1}, s{sT1}, 19
                  s_mul_i32 s{sT2}, s{sT1}, 12
                  s_sub_u32 s{sT0}, s{sT0}, s{sT2}
                  s_mul_i32 s{sT2}, s{sJ}, 12
                  s_add_u32 s{sT0}, s{sT0}, s{sT2}
                  s_lshl_b32 s{sT0}, s{sT0}, 3
                  s_add_u32 s{sT0}, s{sT0}, s{sW}
                  s_cmp_ge_u32 s{sT0}, 640
                  s_cbranch_scc1 {l}
                  s_mul_i32 s{sT2}, s{sT0}, 52429
                  s_lshr_b32 s{sT2}, s{sT2}, 22
                  s_mul_i32 s{sT3}, s{sT2}, 80
                  s_sub_u32 s{sT0}, s{sT0}, s{sT3}
                  s_lshl_b32 s{sT1}, s{sT1}, 3
                  s_add_u32 s{sT1}, s{sT1}, s{sT2}
                  s_cmp_ge_u32 s{sT1}, {RC_N}
                  s_cbranch_scc1 {l}
                  s_mul_i32 s{sT2}, s{sT1}, 86
                  s_lshr_b32 s{sT2}, s{sT2}, 8
                  s_mul_i32 s{sT1}, s{sT1}, {RC_SLOT}
                  s_mul_i32 s{sT3}, s{sT2}, {0x200000 - 3*RC_SLOT}
                  s_add_u32 s{sT1}, s{sT1}, s{sT3}
                  s_xor_b32 s{sT2}, s{sT2}, s{sPOL}
                  s_and_b32 s{sT2}, s{sT2}, 1
                  s_lshl_b32 s{sT2}, s{sT2}, 13
                  s_add_u32 s{sT1}, s{sT1}, s{sT2}
                  s_lshr_b32 s{sT2}, s{sT0}, 1
                  s_lshl_b32 s{sT2}, s{sT2}, 14
                  s_add_u32 s{sT1}, s{sT1}, s{sT2}
                  s_and_b32 s{sT2}, s{sT0}, 1
                  s_lshl_b32 s{sT2}, s{sT2}, 12
                  s_add_u32 s{sT1}, s{sT1}, s{sT2}
                  s_add_u32 s{sT1}, s{sT1}, {WS_RC}
                  v_mov_b32 v{F}, -1
                  v_mov_b32 v{F+1}, -1
                  v_mov_b32 v{F+2}, -1
                  v_mov_b32 v{F+3}, -1
                  v_lshlrev_b32 v{F+4}, 4, v{vL}''')
            for k in range(4):
                a(f'buffer_store_dwordx4 v[{F}:{F+3}], v{F+4}, s[{sWS}:{sWS+3}], s{sT1} offen offset:{1024*k} sc1')
            a.label(l)
        def set_flag():
            a(f'''s_mul_i32 s{sFlagP}, s{sJ}, 512
                  s_add_u32 s{sFlagP}, s{sFlagP}, s{sNFlag}
                  s_add_u32 s{sFlagP}, s{sFlagP}, {WS_FLAG}''')
        ACC = self.ACC
        self.tile_loop((2, 3), False, lqk)
        c_init()
        st = []
        for mt in range(2):
            a(f's_add_u32 s{sT0+0 if mt == 0 else sT1}, s{sOut}, {mt*12288}')
        for mt in range(2):
            for nt in range(3):
                c = ACC + 16 * (mt * 3 + nt)
                for r in range(8):
                    a(f'v_cvt_pk_bf16_f32 v{c+r}, v{c+2*r}, v{c+2*r+1}')
                for u in range(2):
                    st.append(f'buffer_store_dwordx4 v[{c+4*u}:{c+4*u+3}], v{vQK}, s[{sWS}:{sWS+3}], s{sT1 if mt else sT0} offen offset:{1024*nt + 512*u}')
        self.lstore(st, cross=True)
        set_flag()
        a(f's_branch {nxt}')
        a.label(lv)
        self.tile_loop((2, 3), True, lv + 'x')
        c_init()
        st = []
        for mt in range(2):
            a(f's_add_u32 s{sT1 if mt else sT0}, s{sOut}, {mt*12288}')
        for mt in range(2):
            for nt in range(3):
                c = ACC + 16 * (mt * 3 + nt)
                a(f'''v_cvt_pk_bf16_f32 v{c}, v{c}, v{c+1}
                      v_cvt_pk_bf16_f32 v{c+1}, v{c+2}, v{c+3}
                      v_cvt_pk_bf16_f32 v{c+2}, v{c+8}, v{c+9}
                      v_cvt_pk_bf16_f32 v{c+3}, v{c+10}, v{c+11}
                      v_cvt_pk_bf16_f32 v{c+4}, v{c+4}, v{c+5}
                      v_cvt_pk_bf16_f32 v{c+5}, v{c+6}, v{c+7}
                      v_cvt_pk_bf16_f32 v{c+6}, v{c+12}, v{c+13}
                      v_cvt_pk_bf16_f32 v{c+7}, v{c+14}, v{c+15}''')
                for u in range(2):
                    off = 2048*nt + 512*u
                    so = sT1 if mt else sT0
                    if off >= 4096:
                        st.append(f's_add_u32 s{sT2}, s{so}, 4096'); so = sT2; off -= 4096
                    st.append(f'buffer_store_dwordx4 v[{c+4*u}:{c+4*u+3}], v{vV}, s[{sWS}:{sWS+3}], s{so} offen offset:{off}')
        self.lstore(st, cross=True)
        set_flag()
        a(f's_branch {nxt}')
        a.label(lf)
        if self.opt.get('fused'):
            a(f'''s_lshl_b32 s{sIt}, s{sJ}, 4
                  s_add_u32 s{sIt}, s{sIt}, s{sC}
                  s_sub_u32 s{sIt}, s{sIt}, {self.rank0}
                  s_lshl_b32 s{sIt}, s{sIt}, 3
                  s_add_u32 s{sIt}, s{sIt}, s{sW}
                  s_lshl_b32 s{sIt}, s{sIt}, 1''')
            emit_gates(a, sIt, 2, vL, self.ACC)
        self.tile_loop((1, 6), False, lf + 'x')
        st = []
        T = self.F
        for nt in range(3):
            g, u = ACC + 16 * nt, ACC + 16 * (3 + nt)
            for r0 in range(0, 16, 8):
                R = range(r0, r0 + 8)
                for r in R: a(f'v_mul_f32 v{T+r-r0}, v{g+r}, v{g+r}')
                for r in R: a(f'v_mov_b32 v{T+8+r-r0}, s{sC1}')
                for r in R: a(f'v_fma_f32 v{T+r-r0}, v{T+r-r0}, s{sC2}, v{T+8+r-r0}')
                for r in R: a(f'v_mul_f32 v{T+r-r0}, v{T+r-r0}, v{g+r}')
                for r in R: a(f'v_exp_f32 v{T+r-r0}, v{T+r-r0}')
                for r in R: a(f'v_mul_f32 v{g+r}, v{g+r}, v{u+r}')
                for r in R: a(f'v_add_f32 v{T+r-r0}, 1.0, v{T+r-r0}')
                for r in R: a(f'v_rcp_f32 v{T+r-r0}, v{T+r-r0}')
                a('s_nop 0')
                for r in R: a(f'v_mul_f32 v{g+r}, v{g+r}, v{T+r-r0}')
            for r in range(8):
                a(f'v_cvt_pk_bf16_f32 v{g+r}, v{g+2*r}, v{g+2*r+1}')
            for uu in range(2):
                st.append(f'buffer_store_dwordx4 v[{g+4*uu}:{g+4*uu+3}], v{vH}, s[{sWS}:{sWS+3}], s{sOut} offen offset:{1024*nt + 512*uu}')
        self.lstore(st)
        set_flag()
        a(f's_branch {nxt}')
        a.label('Lg_end')
        self.stage_top()
        self.after_top()
        a(f's_branch {done_label}')
        self.emit_tail()
```

```python
from asmlib import *
from layout import *
import math

LM, LO, LDUMMY, LQK, LW5, LR, LOX, LBUF = 0, 10240, 13312, 16384, 22528, 34816, 35840, 38912
LBUF_SZ = 27648
LK_OFF, LV_OFF, LQ_OFF = 0, 12288, 24576
CHAIN_LDS = LBUF + 3 * LBUF_SZ
SWEEP_LDS = 139264

sWS, sDBG, sT = 4, 8, 12
sPTR = 16
def ptr(i): return sPTR + 2 * i
sW, sJ, sC, sH, sG, sMIX, sBUD, sSTEP = 48, 49, 50, 51, 52, 53, 54, 55
sA_N, sA_R, sB_C, sB_R, sC_W, sC_RS, sC_RD, sO_C = 56, 57, 58, 59, 60, 61, 62, 63
sKQ, sVX, sLB, sRED, sSCL, sT0, sT1, sT2, sT3 = 64, 65, 66, 67, 68, 69, 76, 77, 78
sMN8, sML32, sMH8 = 70, 72, 74
sSELLO, sSELHI = 80, 81
sCI = 46
sMA = 46
sST = 82
sPADD, sPOR, sA_P, sCS, sPOL, sC_W2 = 94, 95, 96, 97, 79, 61
NSTAMP = 6

def srd(a, base_ptr, nbytes):
    a(f'''s_mov_b32 s{sT}, s{base_ptr}
          s_mov_b32 s{sT+1}, s{base_ptr+1}
          s_mov_b32 s{sT+2}, {nbytes}
          s_mov_b32 s{sT+3}, 0x20000''')

class Chain:
    def __init__(self, a, opt):
        self.a = a
        self.opt = opt
        self.tail = []
        self.tails = []
        self.nstamp = 0
        self.wnt = ' nt' if opt.get('w_nt') else ''

    def lstore(self, insts):
        a = self.a
        slow, back = a.newlabel('Lslow'), a.newlabel('Lback')
        a(f's_cmp_lg_u32 s{sMIX}, 0')
        a(f's_cbranch_scc1 {slow}')
        for i in insts: a(i)
        a.label(back)
        self.tail.append((slow, [i + ' sc1' if i.startswith('buffer_') else i for i in insts], back))

    def emit_tail(self):
        a = self.a
        for slow, insts, back in self.tail:
            a.label(slow)
            for i in insts: a(i)
            a(f's_branch {back}')
        self.tail = []
        for t in self.tails: t()
        self.tails = []

    def stamp(self, k, ahead=0):
        if not self.opt.get('stamps'): return
        a = self.a
        l = a.newlabel('Lst')
        a(f'''s_cmp_lg_u32 s{sSTEP}, {self.opt['stamps'] + ahead}
              s_cbranch_scc1 {l}
              {self.opt.get('clock', 's_memtime')} s[{sST+2*k}:{sST+2*k+1}]
              s_waitcnt lgkmcnt(0)''')
        a.label(l)

    def mark(self, k):
        if not self.opt.get('prof'): return
        self.a(f's_memrealtime s[{sST+2*k}:{sST+2*k+1}]')
        self.a('s_waitcnt lgkmcnt(0)')

    def dump_stamps(self):
        self.mark(3)
        if not (self.opt.get('stamps') or self.opt.get('prof')): return
        a = self.a
        if self.opt.get('dbgout'):
            l = a.newlabel('Ldo')
            a(f'''s_and_b32 s{sT0}, s{sC}, 15
                  s_or_b32 s{sT0}, s{sT0}, s{sJ}
                  s_or_b32 s{sT0}, s{sT0}, s{sW}
                  s_cmp_lg_u32 s{sT0}, 0
                  s_cbranch_scc1 {l}
                  s_cmp_ge_u32 s{sC}, 16
                  s_cselect_b32 s{sT0}, s{sST+2}, s{sST+4}
                  s_cselect_b32 s{sT2}, 56, 48
                  s_sub_u32 s{sT0}, s{sT0}, s{sST}
                  s_sub_u32 s{sT1}, s{sST+6}, s{sST}
                  s_mov_b64 exec, 1
                  v_mov_b32 v2, s{sT0}
                  v_mov_b32 v3, s{sT1}
                  v_mov_b32 v4, s{sT2}
                  buffer_store_dwordx2 v[2:3], v4, s[{sDBG}:{sDBG+3}], 0 offen
                  s_mov_b64 exec, -1''')
            a.label(l)
        a(f'''s_lshl_b32 s{sT0}, s{sJ}, 5
              s_add_u32 s{sT0}, s{sT0}, s{sC}
              s_lshl_b32 s{sT0}, s{sT0}, 3
              s_add_u32 s{sT0}, s{sT0}, s{sW}
              s_lshl_b32 s{sT0}, s{sT0}, 6
              s_add_u32 s{sT0}, s{sT0}, {WS_DBG + 0x100000}
              s_mov_b64 exec, -1
              v_mov_b32 v2, 0''')
        for k in range(NSTAMP):
            a(f'v_mov_b32 v3, s{sST+2*k}')
            a(f'buffer_store_dword v3, v2, s[{sWS}:{sWS+3}], s{sT0} offen offset:{4*k}')
        for k in range(4):
            a(f'v_mov_b32 v3, s{98+k}')
            a(f'buffer_store_dword v3, v2, s[{sWS}:{sWS+3}], s{sT0} offen offset:{4*(8+k)}')
        a('s_waitcnt vmcnt(0)')

    def retry(self, label, kind=None):
        a = self.a
        if kind is not None and self.opt.get('stamps'):
            a(f's_add_u32 s{98+kind}, s{98+kind}, 1')
        a(f'''s_sub_u32 s{sBUD}, s{sBUD}, 1
              s_cbranch_scc0 {label}
              s_mov_b32 s{sBUD}, 0''')

    def slots(self):
        a = self.a
        a(f'''s_and_b32 s{sT0}, s{sSTEP}, 3
              s_add_u32 s{sT1}, s{sSTEP}, 1
              s_and_b32 s{sT1}, s{sT1}, 3
              s_xor_b32 s{sT2}, s{sT0}, 2
              s_lshr_b32 s{sT3}, s{sJ}, 1
              s_mul_i32 s{sT3}, s{sT3}, 10240
              s_add_u32 s{sT3}, s{sT3}, {WS_RA}
              s_mul_i32 s{sA_N}, s{sT1}, {RA_SLOT}
              s_add_u32 s{sA_N}, s{sA_N}, s{sT3}
              s_mul_i32 s{sA_R}, s{sT2}, {RA_SLOT}
              s_add_u32 s{sA_R}, s{sA_R}, s{sT3}
              s_mul_i32 s{sT3}, s{sH}, 9216
              s_add_u32 s{sT3}, s{sT3}, {WS_RB}
              s_mul_i32 s{sB_C}, s{sT0}, {RB_SLOT}
              s_add_u32 s{sB_C}, s{sB_C}, s{sT3}
              s_mul_i32 s{sB_R}, s{sT2}, {RB_SLOT}
              s_add_u32 s{sB_R}, s{sB_R}, s{sT3}
              s_and_b32 s{sT0}, s{sCS}, 255
              s_mul_i32 s{sT1}, s{sT0}, 86
              s_lshr_b32 s{sT1}, s{sT1}, 8
              s_mul_i32 s{sC_RD}, s{sT0}, {RC_SLOT}
              s_mul_i32 s{sT2}, s{sT1}, {0x200000 - 3*RC_SLOT}
              s_add_u32 s{sC_RD}, s{sC_RD}, s{sT2}
              s_add_u32 s{sC_RD}, s{sC_RD}, {WS_RC}
              s_xor_b32 s{sT1}, s{sPOL}, s{sT1}
              s_and_b32 s{sT1}, s{sT1}, 1
              s_lshl_b32 s{sT1}, s{sT1}, 13
              s_add_u32 s{sC_RD}, s{sC_RD}, s{sT1}
              s_lshl_b32 s{sT3}, s{sH}, 8
              s_add_u32 s{sC_W}, s{sC_RD}, s{sT3}
              s_lshl_b32 s{sPOR}, s{sCS}, 8
              s_and_b32 s{sPOR}, s{sPOR}, 0x10000
              s_xor_b32 s{sPADD}, s{sPOR}, 0x10000
              s_mul_i32 s{sO_C}, s{sSTEP}, {32*12288}
              s_add_u32 s{sO_C}, s{sO_C}, {WS_O}''')

    def next_step(self):
        a = self.a
        a(f'''s_add_u32 s{sSTEP}, s{sSTEP}, 1
              s_add_u32 s{sCS}, s{sCS}, 1
              s_and_b32 s{sT0}, s{sCS}, 255
              s_xor_b32 s{sT1}, s{sCS}, {256 + RC_N}
              s_cmp_eq_u32 s{sT0}, {RC_N}
              s_cselect_b32 s{sCS}, s{sT1}, s{sCS}''')
        self.slots()

    def load_pair(self, WA, WB, nks, voff, rowstride, tmp):
        a = self.a
        items = []
        for ks in range(nks):
            for R in range(8):
                hi, p = R >> 2, R & 3
                b, tt = p & 1, p >> 1
                d = 64 * ks + 32 * hi + 8 * b + 2 * tt
                items.append((WA + ks * 8 + R, WB + ks * 8 + R, d))
        def issue(it):
            ra, rb, d = it
            a(f's_mov_b32 s{sT0}, {d * rowstride}')
            a(f'buffer_load_dword v{ra}, v{voff}, s[{sT}:{sT+3}], s{sT0} offen' + self.wnt)
            a(f's_mov_b32 s{sT1}, {(d + 1) * rowstride}')
            a(f'buffer_load_dword v{rb}, v{voff}, s[{sT}:{sT+3}], s{sT1} offen' + self.wnt)
        def fix(it):
            ra, rb, d = it
            a(f'v_perm_b32 v{tmp}, v{rb}, v{ra}, s{sSELLO}')
            a(f'v_perm_b32 v{rb}, v{rb}, v{ra}, s{sSELHI}')
            a(f'v_mov_b32 v{ra}, v{tmp}')
        groups = [items[i:i + 8] for i in range(0, len(items), 8)]
        groups = [items[i:i + 4] for i in range(0, len(items), 4)]
        depth = 7
        for gi in range(min(depth, len(groups))):
            for it in groups[gi]: issue(it)
        for gi in range(len(groups)):
            inflight = min(len(groups), gi + depth) - gi - 1
            a(f's_waitcnt vmcnt({8 * inflight})')
            for it in groups[gi]: fix(it)
            if gi + depth < len(groups):
                for it in groups[gi + depth]: issue(it)

    def load_single(self, W, nks, voff, vsel, rowstride, tmps):
        a = self.a
        items = []
        for ks in range(nks):
            for R in range(8):
                hi, p = R >> 2, R & 3
                b, tt = p & 1, p >> 1
                items.append((W + ks * 8 + R, 64 * ks + 32 * hi + 8 * b + 2 * tt))
        groups = [items[i:i + 4] for i in range(0, len(items), 4)]
        depth = 7
        def issue(gi):
            for k, (r, d) in enumerate(groups[gi]):
                t = tmps + (gi % depth) * 4 + k
                a(f's_mov_b32 s{sT0}, {d * rowstride}')
                a(f'buffer_load_dword v{r}, v{voff}, s[{sT}:{sT+3}], s{sT0} offen' + self.wnt)
                a(f's_mov_b32 s{sT1}, {(d + 1) * rowstride}')
                a(f'buffer_load_dword v{t}, v{voff}, s[{sT}:{sT+3}], s{sT1} offen' + self.wnt)
        for gi in range(min(depth, len(groups))): issue(gi)
        for gi in range(len(groups)):
            inflight = min(len(groups), gi + depth) - gi - 1
            a(f's_waitcnt vmcnt({8 * inflight})')
            for k, (r, d) in enumerate(groups[gi]):
                t = tmps + (gi % depth) * 4 + k
                a(f'v_perm_b32 v{r}, v{t}, v{r}, v{vsel}')
            if gi + depth < len(groups): issue(gi + depth)

    def lanes(self, al):
        a = self.a
        self.vL, self.vN, self.vQ = al(), al(), al()
        self.vT0, self.vT1, self.vT2 = al(), al(), al()
        self.vMask = 0
        a(f'''v_and_b32 v{self.vL}, 63, v0
              v_and_b32 v{self.vN}, 15, v0
              v_bfe_u32 v{self.vQ}, v0, 4, 2
              v_mov_b32 v0, 0xfffe0000''')

    def frag_addr(self, dst):
        a = self.a
        a(f'''v_lshlrev_b32 v{dst}, 8, v{self.vQ}
              v_and_b32 v{self.vT0}, 1, v{self.vN}
              v_lshl_add_u32 v{dst}, v{self.vT0}, 7, v{dst}
              v_lshrrev_b32 v{self.vT0}, 1, v{self.vN}
              v_lshl_add_u32 v{dst}, v{self.vT0}, 4, v{dst}''')

    def idx_reg(self, dst):
        a = self.a
        a(f'''v_and_b32 v{self.vT0}, 1, v{self.vN}
              v_cmp_eq_u32 vcc, 1, v{self.vT0}
              v_mov_b32 v{dst}, 0x44444444
              v_mov_b32 v{self.vT0}, 0xeeeeeeee
              s_nop 1
              v_cndmask_b32 v{dst}, v{dst}, v{self.vT0}, vcc''')

    def wrow_lane(self, dst, rowstride):
        a = self.a
        a(f'''v_lshrrev_b32 v{self.vT0}, 1, v{self.vQ}
              v_lshlrev_b32 v{self.vT0}, 4, v{self.vT0}
              v_and_b32 v{self.vT1}, 1, v{self.vQ}
              v_lshl_add_u32 v{self.vT0}, v{self.vT1}, 2, v{self.vT0}
              s_mov_b32 s{sT0}, {rowstride}
              v_mul_lo_u32 v{dst}, v{self.vT0}, s{sT0}''')

    def wait_all_registered(self):
        a = self.a
        a('s_barrier')
        w = a.newlabel('Lp0')
        a(f's_cmp_lg_u32 s{sW}, 0')
        a(f's_cbranch_scc1 {w}')
        wait_registered(a, self.opt, self.vT0, self.vT1, self.vL, True)
        a(f'''s_lshl_b32 s{sPOL}, s{sPOL}, 1
              s_or_b32 s{sPOL}, s{sPOL}, s{sMIX}
              v_mov_b32 v{self.vT0}, s{sPOL}
              v_mov_b32 v{self.vT1}, {LR + 64}
              ds_write_b32 v{self.vT1}, v{self.vT0}
              s_waitcnt lgkmcnt(0)''')
        a.label(w)
        a(f'''s_barrier
              v_mov_b32 v{self.vT1}, {LR + 64}
              ds_read_b32 v{self.vT0}, v{self.vT1}
              s_waitcnt lgkmcnt(0)
              v_readfirstlane_b32 s{sPOL}, v{self.vT0}
              s_and_b32 s{sMIX}, s{sPOL}, 1
              s_lshr_b32 s{sPOL}, s{sPOL}, 1''')
        if self.opt.get('pol') is not None: pass
        self.slots()

    def wait_tiles(self, seg, first, nflags):
        if not self.opt.get('fused'): return
        a = self.a
        lp, ok, skip = a.newlabel('Lwt'), a.newlabel('Lwtok'), a.newlabel('Lwts')
        T0, T1 = self.vT0, self.vT1
        a(f'''s_and_b32 s{sT0}, s{seg}, 7
              s_cbranch_scc1 {skip}
              s_lshr_b32 s{sT0}, s{seg}, 3
              s_mul_i32 s{sT0}, s{sT0}, 48
              s_lshl_b32 s{sT1}, s{sJ}, 9
              s_add_u32 s{sT0}, s{sT0}, s{sT1}
              s_and_b32 s{sT1}, s{sH}, 3
              s_lshl_b32 s{sT1}, s{sT1}, 2
              s_add_u32 s{sT0}, s{sT0}, s{sT1}
              s_add_u32 s{sT0}, s{sT0}, {WS_FLAG + 16*first}
              v_lshlrev_b32 v{T1}, 4, v{self.vL}
              s_mov_b64 exec, {(1 << nflags) - 1}''')
        a.label(lp)
        a(f'''buffer_load_dword v{T0}, v{T1}, s[{sWS}:{sWS+3}], s{sT0} offen sc1
              s_waitcnt vmcnt(0)
              v_cmp_eq_u32 vcc, 0, v{T0}
              s_cbranch_vccz {ok}
              s_sleep 2''')
        self.retry(lp)
        a.label(ok)
        a('s_mov_b64 exec, -1')
        a.label(skip)

    def o_flag(self, back):
        if not self.opt.get('fused'): return
        a = self.a
        if self.opt.get('no_oflag'): return
        a(f'''s_lshl_b32 s{sT0}, s{sJ}, 4
              s_add_u32 s{sT0}, s{sT0}, s{sC}
              s_lshl_b32 s{sT0}, s{sT0}, 7
              s_add_u32 s{sT0}, s{sT0}, {WS_OFLAG}
              s_add_u32 s{sT1}, s{sSTEP}, {1 - back}
              v_mov_b32 v{self.vT0}, s{sT1}
              v_mov_b32 v{self.vT1}, 0
              s_mov_b64 exec, 1''')
        a(f'buffer_store_dword v{self.vT0}, v{self.vT1}, s[{sWS}:{sWS+3}], s{sT0} offen sc1')
        a('s_mov_b64 exec, -1')

    def poll2(self, vOff, soff, lds, sets, kind, gap):
        a = self.a
        t, t2 = self.vT0, self.vT1
        n = len(sets)
        def issue(R):
            a(f'''buffer_load_dwordx4 v[{R}:{R+3}], v{vOff}, s[{sWS}:{sWS+3}], s{soff} offen sc1
                  buffer_load_dwordx4 v[{R+4}:{R+7}], v{vOff}, s[{sWS}:{sWS+3}], s{soff} offen offset:1024 sc1''')
        def check(R, br):
            a(f'''ds_write_b128 v{vOff}, v[{R}:{R+3}] offset:{lds}
                  ds_write_b128 v{vOff}, v[{R+4}:{R+7}] offset:{lds+1024}
                  v_max3_u32 v{t}, v{R}, v{R+1}, v{R+2}
                  v_max3_u32 v{t2}, v{R+3}, v{R+4}, v{R+5}
                  v_max3_u32 v{t}, v{t}, v{R+6}, v{R+7}
                  v_max_u32 v{t}, v{t}, v{t2}
                  v_cmp_eq_u32 vcc, -1, v{t}
                  {br}''')
        lp, ok = a.newlabel('Lp'), a.newlabel('Lpok')
        for k in range(n):
            issue(sets[k])
            if gap and k < n - 1: a(f's_sleep {gap}')
        a(f's_waitcnt vmcnt({2 * (n - 1)})')
        if kind == 0 and self.opt.get('fine'): self.stamp(3)
        check(sets[0], f's_cbranch_vccnz {lp}')
        a.label(ok)
        def tail():
            back = a.newlabel('Lpb')
            a.label(lp)
            for k in range(n):
                if self.opt.get('stamps'): a(f's_add_u32 s{98+kind}, s{98+kind}, 1')
                a('s_mov_b64 exec, vcc')
                issue(sets[k])
                a(f's_waitcnt vmcnt({2 * (n - 1)})')
                check(sets[(k + 1) % n], f's_cbranch_vccz {back}')
            self.retry(lp)
            a.label(back)
            a('s_mov_b64 exec, -1')
            a(f's_branch {ok}')
        self.tails.append(tail)

    def a_poll(self, vAoff, sets, first=False):
        a = self.a
        if first:
            a(f's_lshr_b32 s{sA_P}, s{sJ}, 1')
            a(f's_mul_i32 s{sA_P}, s{sA_P}, 10240')
            a(f's_add_u32 s{sA_P}, s{sA_P}, {WS_RA}')
        else:
            a(f's_mov_b32 s{sA_P}, s{sA_N}')
            self.next_step()
        a('s_barrier')
        if self.opt.get('a_first'): a(f"s_sleep {self.opt['a_first']}")
        self.poll2(vAoff, sA_P, LM, sets[:self.opt.get('a_depth', 1)], 2, self.opt.get('a_gap', 0))
        a('s_waitcnt lgkmcnt(0)')
        if not first: self.stamp(4, 1)
        a('s_barrier')

    def mem0_load(self, vAoff, R):
        a = self.a
        srd(a, ptr(1), 10240)
        T0, T1 = self.vT0, self.vT1
        a(f'''v_bfe_u32 v{T0}, v{vAoff}, 4, 3
              v_mul_u32_u24 v{T0}, 1280, v{T0}
              v_lshrrev_b32 v{T1}, 7, v{vAoff}
              v_lshl_add_u32 v{T0}, v{T1}, 4, v{T0}
              buffer_load_dwordx4 v[{R}:{R+3}], v{T0}, s[{sT}:{sT+3}], 0 offen
              buffer_load_dwordx4 v[{R+4}:{R+7}], v{T0}, s[{sT}:{sT+3}], 0 offen offset:128
              s_waitcnt vmcnt(0)
              ds_write_b128 v{vAoff}, v[{R}:{R+3}] offset:{LM}
              ds_write_b128 v{vAoff}, v[{R+4}:{R+7}] offset:{LM+1024}
              s_waitcnt lgkmcnt(0)''')

    def a_off(self, dst):
        a = self.a
        a(f'''s_sub_u32 s{sT0}, s{sW}, 3
              s_lshl_b32 s{sT0}, s{sT0}, 11
              v_lshlrev_b32 v{dst}, 4, v{self.vL}
              v_add_u32 v{dst}, s{sT0}, v{dst}''')

    def dma_seg_regs(self, seg_expr_sgpr):
        a = self.a
        sg = seg_expr_sgpr
        a(f'''s_lshl_b32 s{sT0}, s{sH}, 6
              s_add_u32 s{sT0}, s{sT0}, s{sg}
              s_mul_i32 s{sKQ}, s{sT0}, 12288
              s_add_u32 s{sVX}, s{sKQ}, {WS_VT}
              s_mul_i32 s{sT0}, s{sg}, 86
              s_lshr_b32 s{sT0}, s{sT0}, 8
              s_mul_i32 s{sT0}, s{sT0}, 3
              s_sub_u32 s{sT0}, s{sg}, s{sT0}
              s_mul_i32 s{sLB}, s{sT0}, {LBUF_SZ}
              s_add_u32 s{sLB}, s{sLB}, {LBUF}''')

    def dma12(self, v, base, lds, pieces):
        a = self.a
        for k in pieces:
            a(f'''s_add_u32 s{sT2}, s{sG}, {k}
                  s_and_b32 s{sT2}, s{sT2}, 3
                  s_mul_i32 s{sT2}, s{sT2}, 3072
                  s_add_u32 s{sT1}, s{sLB}, s{sT2}
                  s_add_u32 m0, s{sT1}, {lds}
                  s_add_u32 s{sT1}, s{sKQ}, s{sT2}
                  s_add_u32 s{sT1}, s{sT1}, {base}''')
            for t in range(3):
                a(f'buffer_load_dwordx4 v{v}, s[{sWS}:{sWS+3}], s{sT1} offen offset:{1024*t} sc1 lds')

    def dma_q(self, vQx):
        a = self.a
        for p in range(3):
            a(f's_add_u32 m0, s{sLB}, {LQ_OFF + p*1024}')
            a(f's_add_u32 s{sT1}, s{sKQ}, {WS_Q + p*2048}')
            a(f'buffer_load_dwordx4 v{vQx}, s[{sWS}:{sWS+3}], s{sT1} offen sc1 lds')

    def stage(self, own, rest, first, nflags):
        a = self.a
        l1, l2 = a.newlabel('Lsg'), a.newlabel('Lsg')
        def part(ahead, fn, lab, wait):
            a(f"""s_add_u32 s{sT3}, s{sSTEP}, {ahead}
                  s_cmp_ge_u32 s{sT3}, 64
                  s_cbranch_scc1 {lab}""")
            if wait: self.wait_tiles(sT3, first, nflags)
            self.dma_seg_regs(sT3)
            if not self.opt.get('no_dma'): fn()
            a.label(lab)
        if self.opt.get('own_last'):
            part(2, rest, l2, False); part(3, own, l1, True)
        else:
            part(3, own, l1, True); part(2, rest, l2, False)

    def stage_first(self, own, rest, first, nflags):
        a = self.a
        self.wait_tiles(sSTEP, first, nflags)
        for sg in range(3):
            a(f's_mov_b32 s{sT3}, {sg}')
            self.dma_seg_regs(sT3); own()
            if sg < 2: rest()
        a('s_waitcnt vmcnt(0)')

    def wo_stage(self, pairs, vFrag, vIdx, F, vCoff, RR, skip):
        a = self.a
        for ks in range(3):
            a(f'ds_read_b128 v[{F+4*ks}:{F+4*ks+3}], v{vFrag} offset:{LO + 1024*ks}')
        a(f'v_lshlrev_b32 v{self.vT0}, 3, v{self.vQ}')
        a(f'ds_read_b64 v[{RR}:{RR+1}], v{self.vT0} offset:{LR}')
        a(f's_cmp_eq_u32 s{sSTEP}, 63')
        a(f's_cbranch_scc1 {skip}')
        for ks in range(3):
            a(f's_waitcnt lgkmcnt({3-ks})')
            for (WA, WB, TA, TB, coff) in pairs:
                a(f'v_smfmac_f32_16x16x64_bf16 v[{TA}:{TA+3}], v[{F+4*ks}:{F+4*ks+3}], v[{WA+8*ks}:{WA+8*ks+7}], v{vIdx}')
                a(f'v_smfmac_f32_16x16x64_bf16 v[{TB}:{TB+3}], v[{F+4*ks}:{F+4*ks+3}], v[{WB+8*ks}:{WB+8*ks+7}], v{vIdx}')
        a('s_waitcnt lgkmcnt(0)')
        a('s_nop 5')
        for (WA, WB, TA, TB, coff) in pairs:
            self.pair_epilogue(TA, TB, RR)
            a(f'buffer_store_dword v{TA}, v{vCoff}, s[{sWS}:{sWS+3}], s{sC_W} offen offset:{coff} sc1')
            a(f'buffer_store_dword v{TB}, v{vCoff}, s[{sWS}:{sWS+3}], s{sC_W} offen offset:{coff+128} sc1')

    def pair_epilogue(self, TA, TB, RR=None):
        a = self.a
        a(f"""v_add_f32 v{TA}, v{TA}, v{TA+1}
              v_add_f32 v{TA+2}, v{TA+2}, v{TA+3}
              v_add_f32 v{TB}, v{TB}, v{TB+1}
              v_add_f32 v{TB+2}, v{TB+2}, v{TB+3}""")
        if RR is not None:
            a(f"""v_mul_f32 v{TA}, v{TA}, v{RR}
                  v_mul_f32 v{TA+2}, v{TA+2}, v{RR+1}
                  v_mul_f32 v{TB}, v{TB}, v{RR}
                  v_mul_f32 v{TB+2}, v{TB+2}, v{RR+1}""")
            a(f"""v_add_u32 v{TA}, s{sPADD}, v{TA}
                  v_add_u32 v{TA+2}, s{sPADD}, v{TA+2}
                  v_and_or_b32 v{TA}, v{TA}, v{self.vMask}, s{sPOR}
                  v_and_or_b32 v{TA+2}, v{TA+2}, v{self.vMask}, s{sPOR}
                  v_cvt_pk_bf16_f32 v{TA}, v{TA}, v{TB}
                  v_cvt_pk_bf16_f32 v{TB}, v{TA+2}, v{TB+2}""")
            return
        a(f"""v_cvt_pk_bf16_f32 v{TA}, v{TA}, v{TB}
              v_cvt_pk_bf16_f32 v{TB}, v{TA+2}, v{TB+2}
              v_min_u32 v{TA}, -2, v{TA}
              v_min_u32 v{TB}, -2, v{TB}""")

    def zero(self, r, n):
        for k in range(n): self.a(f'v_mov_b32 v{r+k}, 0')

    def c_off(self, dst, pw_sgpr_or_int):
        a = self.a
        T0 = self.vT0
        a(f'''v_lshrrev_b32 v{dst}, 3, v{self.vN}
              v_lshlrev_b32 v{dst}, 14, v{dst}
              v_bfe_u32 v{T0}, v{self.vN}, 2, 1
              v_lshl_add_u32 v{dst}, v{T0}, 6, v{dst}
              v_lshl_add_u32 v{dst}, v{self.vQ}, 4, v{dst}
              v_and_b32 v{T0}, 3, v{self.vN}
              v_lshl_add_u32 v{dst}, v{T0}, 2, v{dst}
              s_mul_i32 s{sT0}, s{sG}, 163840''')
        if isinstance(pw_sgpr_or_int, int):
            a(f's_add_u32 s{sT0}, s{sT0}, {32768*pw_sgpr_or_int}')
        else:
            a(f's_lshl_b32 s{sT1}, {pw_sgpr_or_int}, 15')
            a(f's_add_u32 s{sT0}, s{sT0}, s{sT1}')
        a(f'v_add_u32 v{dst}, s{sT0}, v{dst}')

    def wo_weights(self, WA, WB, pw, vtmp, tmp):
        a = self.a
        srd(a, ptr(5), NH * DH * DM * 2)
        self.wrow_lane(vtmp, 1280)
        a(f'''s_mul_i32 s{sT0}, s{sH}, {DH*DM*2}
              s_mul_i32 s{sT1}, s{sG}, 320
              s_add_u32 s{sT0}, s{sT0}, s{sT1}''')
        if isinstance(pw, int):
            a(f's_add_u32 s{sT0}, s{sT0}, {64*pw}')
        else:
            a(f's_lshl_b32 s{sT1}, {pw}, 6')
            a(f's_add_u32 s{sT0}, s{sT0}, s{sT1}')
        a(f'''v_lshl_add_u32 v{vtmp}, v{self.vN}, 2, v{vtmp}
              v_add_u32 v{vtmp}, s{sT0}, v{vtmp}''')
        self.load_pair(WA, WB, 3, vtmp, 1280, tmp)

    def finish(self):
        self.dump_stamps()
        self.a('s_endpgm')

    def touch_weights(self):
        a = self.a
        T0, T1 = self.vT0, self.vT1
        a(f's_mov_b32 m0, {SWEEP_LDS}')
        srd(a, ptr(4), DM * NH * DH * 2)
        a(f"""s_mov_b32 s{sT0}, 12288
              v_mul_lo_u32 v{T0}, v{self.vL}, s{sT0}
              s_mul_i32 s{sT0}, s{sH}, 384
              s_mul_i32 s{sT1}, s{sG}, 96
              s_add_u32 s{sT0}, s{sT0}, s{sT1}
              s_mul_i32 s{sT1}, s{sRED}, {64*12288}
              s_add_u32 s{sT0}, s{sT0}, s{sT1}""")
        for i in range(4):
            a(f'buffer_load_dword v{T0}, s[{sT}:{sT+3}], s{sT0} offen lds')
            a(f'buffer_load_dword v{T0}, s[{sT}:{sT+3}], s{sT0} offen offset:92 lds')
            if i < 3: a(f's_add_u32 s{sT0}, s{sT0}, {192*12288}')
        srd(a, ptr(5), NH * DH * DM * 2)
        a(f"""v_mul_u32_u24 v{T1}, 1280, v{self.vL}
              s_mul_i32 s{sT0}, s{sH}, {DH*DM*2}
              s_mul_i32 s{sT1}, s{sG}, 320
              s_add_u32 s{sT0}, s{sT0}, s{sT1}
              s_mul_i32 s{sT1}, s{sRED}, {64*1280}
              s_add_u32 s{sT0}, s{sT0}, s{sT1}""")
        for off in (0, 128, 256, 316):
            a(f'buffer_load_dword v{T1}, s[{sT}:{sT+3}], s{sT0} offen offset:{off} lds')

    def c_page_init(self, R, vLin):
        a = self.a
        a(f's_add_u32 s{sT2}, s{sCI}, 4096')
        for k in range(5):
            a(f'buffer_store_dwordx4 v[{R}:{R+3}], v{vLin}, s[{sWS}:{sWS+3}], s{sT2 if k == 4 else sCI} offen offset:{1024*(k&3)} sc1')
        a(f's_add_u32 s{sCI}, s{sCI}, 0x200000')

    def init_job(self, R):
        a = self.a
        vLin = R + 20
        sU = sA_P
        a(f"""s_lshl_b32 s{sU}, s{sJ}, 4
              s_add_u32 s{sU}, s{sU}, s{sC}
              s_mul_i32 s{sU}, s{sU}, 3
              s_add_u32 s{sU}, s{sU}, s{sRED}
              v_lshlrev_b32 v{vLin}, 4, v{self.vL}""")
        for k in range(4): a(f'v_mov_b32 v{R+k}, -1')
        for k in range(4): a(f'v_mov_b32 v{R+4+k}, 0')
        l1, l2 = a.newlabel('Lin'), a.newlabel('Lin')
        a(f"""s_cmp_ge_u32 s{sU}, 368
              s_cbranch_scc1 {l1}
              s_lshl_b32 s{sT0}, s{sU}, 12
              s_add_u32 s{sT0}, s{sT0}, {WS_RA}""")
        l0 = a.newlabel('Lin')
        a(f"""s_cmp_lt_u32 s{sU}, 20
              s_cbranch_scc1 {l0}""")
        for k in range(4):
            a(f'buffer_store_dwordx4 v[{R}:{R+3}], v{vLin}, s[{sWS}:{sWS+3}], s{sT0} offen offset:{1024*k} sc1')
        a(f's_branch {l1}')
        a.label(l0)
        srd(a, ptr(1), 10240)
        a(f's_lshl_b32 s{sT1}, s{sU}, 12')
        for k in range(4):
            D = R + 24 + 4*k
            a(f"""s_add_u32 s{sT2}, s{sT1}, {1024*k}
                  s_lshr_b32 s{sT3}, s{sT2}, 10
                  s_mul_i32 s{sT3}, s{sT3}, 205
                  s_lshr_b32 s{sT3}, s{sT3}, 11
                  s_mul_i32 s{sT3}, s{sT3}, 10240
                  s_sub_u32 s{sT2}, s{sT2}, s{sT3}
                  s_lshr_b32 s{sT2}, s{sT2}, 3
                  v_lshrrev_b32 v{R+8}, 1, v{self.vN}
                  v_mul_u32_u24 v{R+8}, 1280, v{R+8}
                  v_lshl_add_u32 v{R+8}, v{self.vQ}, 5, v{R+8}
                  v_and_b32 v{R+9}, 1, v{self.vN}
                  v_lshl_add_u32 v{R+8}, v{R+9}, 4, v{R+8}
                  buffer_load_dwordx4 v[{D}:{D+3}], v{R+8}, s[{sT}:{sT+3}], s{sT2} offen""")
        a('s_waitcnt vmcnt(0)')
        for k in range(4):
            D = R + 24 + 4*k
            for e in range(4): a(f'v_min_u32 v{D+e}, -2, v{D+e}')
            a(f'buffer_store_dwordx4 v[{D}:{D+3}], v{vLin}, s[{sWS}:{sWS+3}], s{sT0} offen offset:{1024*k} sc1')
        a('s_waitcnt vmcnt(0)')
        a.label(l1)
        a(f"""s_sub_u32 s{sT0}, s{sU}, 4
              s_cmp_ge_u32 s{sT0}, 252
              s_cbranch_scc1 {l2}
              s_lshl_b32 s{sT0}, s{sU}, 10
              s_add_u32 s{sT0}, s{sT0}, {WS_FLAG}
              buffer_store_dwordx4 v[{R+4}:{R+7}], v{vLin}, s[{sWS}:{sWS+3}], s{sT0} offen sc1""")
        a.label(l2)

    def arrive_init(self, R):
        t1, t2 = R + 14, R + 15
        self.a(f"""s_waitcnt vmcnt(0)
              v_mov_b32 v{t1}, 1
              v_mov_b32 v{t2}, 128
              s_mov_b64 exec, 1
              buffer_atomic_add v{t1}, v{t2}, s[{sDBG}:{sDBG+3}], 0 offen sc1
              s_mov_b64 exec, -1""")

    def role_qk(self):
        a = self.a
        al = Alloc(1, 256)
        self.lanes(al)
        WA, WB = al(80, 4), al(80, 4)
        M = al(40, 4)
        TA, TB = al(4, 4), al(4, 4)
        SEL = al(4, 4)
        RC = al(2)
        AC2 = al(4, 2)
        vFrag, vIdx, vB, vAst, vSent = al(3, 1), al(), al(), al(), al(2)
        T0, T1, T2 = self.vT0, self.vT1, self.vT2
        a(f'v_lshlrev_b32 v{vFrag}, 4, v{self.vL}'); self.idx_reg(vIdx)
        a(f'v_add_u32 v{vFrag+1}, 4096, v{vFrag}')
        a(f'v_add_u32 v{vFrag+2}, 8192, v{vFrag}')
        a(f'''s_mul_i32 s{sT2}, s{sG}, 3
              s_add_u32 s{sT2}, s{sT2}, s{sW}
              s_cmp_ge_u32 s{sT2}, 6
              s_cselect_b32 s{sT}, s{ptr(3)}, s{ptr(2)}
              s_cselect_b32 s{sT+1}, s{ptr(3)+1}, s{ptr(2)+1}
              s_cselect_b32 s{sT1}, 6, 0
              s_lshl_b32 s{sT3}, s{sT2}, 9
              s_sub_u32 s{sT2}, s{sT2}, s{sT1}
              s_mov_b32 s{sT+2}, {DM*NH*DH*2}
              s_mov_b32 s{sT+3}, 0x20000
              s_lshl_b32 s{sT2}, s{sT2}, 6
              v_lshlrev_b32 v{vB}, 7, v{self.vQ}
              v_lshl_add_u32 v{vB}, v{self.vN}, 2, v{vB}
              v_add_u32 v{vB}, s{sT3}, v{vB}''')
        vW = M
        self.wrow_lane(vW, 12288)
        a(f'''v_lshlrev_b32 v{T0}, 1, v{self.vN}
              v_and_b32 v{T1}, 0x13, v{T0}
              v_and_b32 v{T2}, 4, v{T0}
              v_lshl_add_u32 v{T1}, v{T2}, 1, v{T1}
              v_and_b32 v{T2}, 8, v{T0}
              v_lshrrev_b32 v{T2}, 1, v{T2}
              v_add_u32 v{T1}, v{T1}, v{T2}
              v_lshl_add_u32 v{vW}, v{T1}, 1, v{vW}
              s_mul_i32 s{sT0}, s{sH}, 384
              s_add_u32 s{sT0}, s{sT0}, s{sT2}
              v_add_u32 v{vW}, s{sT0}, v{vW}''')
        self.load_pair(WA, WB, 10, vW, 12288, T2)
        a(f'''s_and_b32 s{sT0}, s{sJ}, 1
              s_lshl_b32 s{sT0}, s{sT0}, 4
              s_add_u32 s{sT0}, s{sT0}, s{sC}
              s_lshl_b32 s{sT1}, s{sW}, 5
              s_add_u32 s{sT0}, s{sT0}, s{sT1}
              s_lshr_b32 s{sRED}, s{sT0}, 1
              s_and_b32 s{sT2}, s{sT0}, 1
              s_lshl_b32 s{sT0}, s{sRED}, 8
              s_lshl_b32 s{sT3}, s{sT2}, 5
              s_add_u32 s{sT0}, s{sT0}, s{sT3}
              s_lshl_b32 s{sT1}, s{sRED}, 14
              s_lshl_b32 s{sT3}, s{sT2}, 7
              s_add_u32 s{sT1}, s{sT1}, s{sT3}
              v_lshlrev_b32 v{RC}, 8, v{self.vQ}
              v_lshrrev_b32 v{T0}, 3, v{self.vN}
              v_lshl_add_u32 v{RC}, v{T0}, 10, v{RC}
              v_and_b32 v{T0}, 7, v{self.vN}
              v_lshl_add_u32 v{RC}, v{T0}, 4, v{RC}
              v_add_u32 v{RC}, s{sT1}, v{RC}
              v_add_u32 v{RC+1}, 4096, v{RC}
              v_bfe_u32 v{T0}, v{self.vN}, 2, 1
              v_lshlrev_b32 v{vAst}, 4, v{T0}
              v_and_b32 v{T0}, 3, v{self.vN}
              v_lshl_add_u32 v{vAst}, v{T0}, 6, v{vAst}
              v_lshl_add_u32 v{vAst}, v{self.vQ}, 3, v{vAst}
              v_add_u32 v{vAst}, s{sT0}, v{vAst}
              s_mov_b32 s{sMA}, 0x00ff00ff
              s_mov_b32 s{sMA+1}, 0''')
        a(f'''s_nop 0
              v_mov_b32 v{vSent}, -1
              v_mov_b32 v{vSent+1}, -1''')
        for p in range(4):
            a(f'''v_mov_b32 v{SEL+p}, 0
                  v_mov_b32 v{T0}, 0x3f80
                  v_cmp_eq_u32 vcc, {2*p}, v{self.vN}
                  s_nop 1
                  v_cndmask_b32 v{SEL+p}, v{SEL+p}, v{T0}, vcc
                  v_mov_b32 v{T0}, 0x3f800000
                  v_cmp_eq_u32 vcc, {2*p+1}, v{self.vN}
                  s_nop 1
                  v_cndmask_b32 v{SEL+p}, v{SEL+p}, v{T0}, vcc''')
        self.zero(TA, 8)
        self.mark(1)
        self.wait_all_registered()
        a('s_barrier')
        self.mark(2)
        loop, end = a.newlabel('Lqk'), a.newlabel('Lqkend')
        a('s_barrier')
        a.label(loop)
        a('s_barrier')
        self.stamp(0)
        for ks in range(10):
            a(f'ds_read_b128 v[{M+4*ks}:{M+4*ks+3}], v{vFrag} offset:{LM + 1024*ks}')
        for ks in range(10):
            a(f's_waitcnt lgkmcnt({9-ks})')
            a(f'v_smfmac_f32_16x16x64_bf16 v[{TA}:{TA+3}], v[{M+4*ks}:{M+4*ks+3}], v[{WA+8*ks}:{WA+8*ks+7}], v{vIdx}')
            a(f'v_smfmac_f32_16x16x64_bf16 v[{TB}:{TB+3}], v[{M+4*ks}:{M+4*ks+3}], v[{WB+8*ks}:{WB+8*ks+7}], v{vIdx}')
        a('s_nop 7')
        self.pair_epilogue(TA, TB)
        self.lstore([f'buffer_store_dword v{TA}, v{vB}, s[{sWS}:{sWS+3}], s{sB_C} offen',
                     f'buffer_store_dword v{TB}, v{vB}, s[{sWS}:{sWS+3}], s{sB_C} offen offset:64'])
        a('s_barrier')
        self.stamp(1)
        def resets():
            self.lstore([f'buffer_store_dword v{vSent}, v{vB}, s[{sWS}:{sWS+3}], s{sB_R} offen',
                         f'buffer_store_dword v{vSent}, v{vB}, s[{sWS}:{sWS+3}], s{sB_R} offen offset:64'])
            sk = a.newlabel('Lqar')
            a(f's_cmp_ge_u32 s{sRED}, 40')
            a(f's_cbranch_scc1 {sk}')
            a(f's_mov_b64 exec, s[{sMA}:{sMA+1}]')
            self.lstore([f'buffer_store_dwordx2 v[{vSent}:{vSent+1}], v{vAst}, s[{sWS}:{sWS+3}], s{sA_R} offen'])
            a('s_mov_b64 exec, -1')
            a.label(sk)
        self.zero(TA, 8)
        a('s_barrier')
        resets()
        if self.opt.get('prof'):
            a(f'''s_memrealtime s[{sST+10}:{sST+11}]
                  s_lshl_b32 s{sT0}, s{sJ}, 4
                  s_add_u32 s{sT0}, s{sT0}, s{sC}
                  s_lshl_b32 s{sT0}, s{sT0}, 2
                  s_add_u32 s{sT0}, s{sT0}, s{sW}
                  s_lshl_b32 s{sT0}, s{sT0}, 6
                  s_add_u32 s{sT0}, s{sT0}, s{sSTEP}
                  s_lshl_b32 s{sT0}, s{sT0}, 2
                  s_add_u32 s{sT0}, s{sT0}, {WS_DBG + 0x200000}
                  v_mov_b32 v{T1}, 0
                  s_waitcnt lgkmcnt(0)
                  v_mov_b32 v{T0}, s{sST+10}
                  buffer_store_dword v{T0}, v{T1}, s[{sWS}:{sWS+3}], s{sT0} offen
                  s_memtime s[{sST+10}:{sST+11}]
                  s_add_u32 s{sT0}, s{sT0}, 0x40000
                  s_waitcnt lgkmcnt(0)
                  v_mov_b32 v{T0}, s{sST+10}
                  buffer_store_dword v{T0}, v{T1}, s[{sWS}:{sWS+3}], s{sT0} offen
                  s_add_u32 s{sT0}, s{sT0}, 0x40000
                  v_mov_b32 v{T0}, s{sBUD}
                  buffer_store_dword v{T0}, v{T1}, s[{sWS}:{sWS+3}], s{sT0} offen''')
        a('s_barrier')
        if self.opt.get('trace2'): a(f's_memtime s[{sST+0}:{sST+1}]')
        a(f'''s_cmp_eq_u32 s{sSTEP}, 63
              s_cbranch_scc1 {end}''')
        ok, fin = a.newlabel('LpCok'), a.newlabel('LpCfin')
        ACC = AC2
        entry = {(h, ph): a.newlabel('LpC') for h in range(2) for ph in range(2)}
        nored = a.newlabel('Lqnr')
        a(f'''s_cmp_ge_u32 s{sRED}, 40
              s_cbranch_scc1 {nored}
              s_bitcmp1_b32 s{sCS}, 8
              s_cbranch_scc1 {entry[(1,1)]}_in''')
        for half in (1,):
            nl = 4
            for ph in range(2):
                lp = entry[(half, ph)]
                a.label(lp + '_in')
                if self.opt.get('c_sleep'): a(f"s_sleep {self.opt['c_sleep']}")
                if self.opt.get('fine'): self.stamp(5)
                a.label(lp)
                for t in range(nl):
                    reg, off = (RC + (t >> 1), 2048 * (t & 1)) if half else (RC + (t >> 2), 1024 * (t & 3))
                    a(f'buffer_load_dwordx4 v[{M+4*t}:{M+4*t+3}], v{reg}, s[{sWS}:{sWS+3}], s{sC_RD} offen offset:{off} sc1')
                a('s_mov_b64 exec, -1')
                op3 = (lambda d, x, y, z: f'v_bitop3_b32 v{d}, v{x}, v{y}, v{z} bitop3:0x80') if ph else (lambda d, x, y, z: f'v_or3_b32 v{d}, v{x}, v{y}, v{z}')
                for t in range(nl):
                    a(f's_waitcnt vmcnt({nl-1-t})')
                    if t == 0 and self.opt.get('fine'): self.stamp(2)
                    a(f'v_mfma_f32_16x16x32_bf16 v[{ACC}:{ACC+3}], v[{SEL}:{SEL+3}], v[{M+4*t}:{M+4*t+3}], ' + ('0' if t == 0 else f'v[{ACC}:{ACC+3}]'))
                    if t == 0:
                        a(op3(T0, M, M+1, M+2)); a(op3(T0, T0, M+3, M+3))
                    else:
                        a(op3(T0, T0, M+4*t, M+4*t+1)); a(op3(T0, T0, M+4*t+2, M+4*t+3))
                rt, bk = a.newlabel('LpCr'), a.newlabel('LpCb')
                a(f'''v_and_b32 v{T0}, 1, v{T0}
                      v_cmp_ne_u32 vcc, {ph}, v{T0}
                      s_cbranch_vccnz {rt}''')
                a.label(bk)
                if self.opt.get('trace2'): a(f's_memtime s[{sST+2}:{sST+3}]')
                def tail(rt=rt, bk=bk, lp=lp):
                    a.label(rt)
                    a('s_mov_b64 exec, vcc')
                    self.retry(lp, 3)
                    a('s_mov_b64 exec, -1')
                    a(f's_branch {bk}')
                self.tails.append(tail)
                a('s_nop 2')
                if half:
                    for k in range(4):
                        a(f'v_add_f32_dpp v{ACC+k}, v{ACC+k}, v{ACC+k} row_ror:8 row_mask:0xf bank_mask:0xf')
                self.stamp(3)
                a(f'''v_cvt_pk_bf16_f32 v{ACC}, v{ACC}, v{ACC+1}
                      v_cvt_pk_bf16_f32 v{ACC+1}, v{ACC+2}, v{ACC+3}
                      s_mov_b64 exec, s[{sMA}:{sMA+1}]
                      v_min_u32 v{ACC}, -2, v{ACC}
                      v_min_u32 v{ACC+1}, -2, v{ACC+1}''')
                self.lstore([f'buffer_store_dwordx2 v[{ACC}:{ACC+1}], v{vAst}, s[{sWS}:{sWS+3}], s{sA_N} offen'])
                if not (half and ph): a(f's_branch {fin}')
        a(f's_branch {fin}')
        a.label(nored)
        a('s_waitcnt vmcnt(0)')
        a.label(fin)
        if self.opt.get('dump_mem'):
            l = a.newlabel('Ldm')
            a(f'''s_cmp_lg_u32 s{sJ}, 0
                  s_cbranch_scc1 {l}
                  s_mul_i32 s{sT0}, s{sSTEP}, 10240
                  s_add_u32 s{sT0}, s{sT0}, {WS_DBG}
                  buffer_store_dwordx2 v[{ACC}:{ACC+1}], v{vAst}, s[{sWS}:{sWS+3}], s{sT0} offen''')
            a.label(l)
        a('s_mov_b64 exec, -1')
        a('s_barrier')
        if self.opt.get('trace2'): a(f's_memtime s[{sST+4}:{sST+5}]')
        if self.opt.get('trace2'):
            a(f"""s_waitcnt lgkmcnt(0)
                  s_lshl_b32 s{sT0}, s{sJ}, 4
                  s_add_u32 s{sT0}, s{sT0}, s{sC}
                  s_lshl_b32 s{sT0}, s{sT0}, 2
                  s_add_u32 s{sT0}, s{sT0}, s{sW}
                  s_lshl_b32 s{sT0}, s{sT0}, 6
                  s_add_u32 s{sT0}, s{sT0}, s{sSTEP}
                  s_lshl_b32 s{sT0}, s{sT0}, 4
                  s_add_u32 s{sT0}, s{sT0}, {WS_DBG + 0x400000}
                  s_sub_u32 s{sT1}, s{sST+2}, s{sST}
                  v_mov_b32 v{M}, s{sT1}
                  s_sub_u32 s{sT1}, s{sST+4}, s{sST}
                  v_mov_b32 v{M+1}, s{sT1}
                  v_mov_b32 v{M+2}, s{sBUD}
                  v_mov_b32 v{T0}, 0
                  s_mov_b64 exec, 1
                  buffer_store_dwordx4 v[{M}:{M+3}], v{T0}, s[{sWS}:{sWS+3}], s{sT0} offen
                  s_mov_b64 exec, -1
                  s_nop 1""")
        self.stamp(4)
        self.next_step()
        a('s_waitcnt lgkmcnt(0)')
        a(f's_branch {loop}')
        a.label(end)
        a('s_barrier')
        self.finish()
        self.emit_tail()

    def role_v(self):
        a = self.a
        al = Alloc(1, 256)
        self.lanes(al)
        WA, WB = al(80, 4), al(80, 4)
        M = al(48, 4)
        TA, TB = al(4, 4), al(4, 4)
        F = al(12, 4); RR = al(2, 2)
        vFrag, vIdx, vB, vAoff, vV, vSent, vCoff, vOst = [al() for _ in range(8)]
        vLin = vV
        a(f"""v_lshrrev_b32 v{self.vT1}, 3, v{self.vL}
              v_lshlrev_b32 v{vOst}, 4, v{self.vT1}
              v_and_b32 v{self.vT1}, 7, v{self.vL}
              v_lshl_add_u32 v{vOst}, v{self.vT1}, 8, v{vOst}
              s_lshr_b32 s{sT0}, s{sG}, 1
              s_mul_i32 s{sT0}, s{sT0}, 192
              s_mul_i32 s{sT1}, s{sH}, 6
              s_add_u32 s{sT0}, s{sT0}, s{sT1}
              s_lshl_b32 s{sT0}, s{sT0}, 10
              s_and_b32 s{sT1}, s{sG}, 1
              s_lshl_b32 s{sT1}, s{sT1}, 7
              s_add_u32 s{sT0}, s{sT0}, s{sT1}
              v_add_u32 v{vOst}, s{sT0}, v{vOst}""")
        def o_store(back):
            if self.opt.get('no_ost'): return
            a(f's_sub_u32 s{sT0}, s{sO_C}, {back*32*12288}')
            a(f's_add_u32 s{sT1}, s{sT0}, 4096')
            for k in range(3):
                a(f'ds_read_b128 v[{F+4*k}:{F+4*k+3}], v{vLin} offset:{LOX + 1024*k}')
            for k in range(3):
                a(f's_waitcnt lgkmcnt({2-k})')
                a(f'buffer_store_dwordx4 v[{F+4*k}:{F+4*k+3}], v{vOst}, s[{sWS}:{sWS+3}], s{sT1 if k == 2 else sT0} offen offset:{2048*(k&1)} sc1')
        PX = al(8, 2)
        self.frag_addr(vFrag); self.idx_reg(vIdx)
        a(f"""v_lshlrev_b32 v{vV}, 4, v{self.vL}
              v_mov_b32 v{vSent}, -1""")
        a(f"""s_mul_i32 s{sT0}, s{sG}, 768
              s_add_u32 s{sT0}, s{sT0}, 6144
              v_lshlrev_b32 v{vB}, 5, v{self.vN}
              v_lshl_add_u32 v{vB}, v{self.vQ}, 2, v{vB}
              v_add_u32 v{vB}, s{sT0}, v{vB}""")
        srd(a, ptr(4), DM * NH * DH * 2)
        vW = M
        self.wrow_lane(vW, 12288)
        a(f"""s_mul_i32 s{sT0}, s{sH}, 384
              s_mul_i32 s{sT1}, s{sG}, 96
              s_add_u32 s{sT0}, s{sT0}, s{sT1}
              v_lshl_add_u32 v{vW}, v{self.vN}, 2, v{vW}
              v_add_u32 v{vW}, s{sT0}, v{vW}""")
        self.load_pair(WA, WB, 10, vW, 12288, self.vT2)
        self.c_off(vCoff, 4)
        self.wo_weights(M, M + 24, 4, vAoff, self.vT2)
        for k in range(12):
            a(f'ds_write_b128 v{vLin}, v[{M+4*k}:{M+4*k+3}] offset:{LW5 + 1024*k}')
        a('s_waitcnt lgkmcnt(0)')
        self.a_off(vAoff)
        self.zero(TA, 8)
        self.mark(1)
        self.wait_all_registered()
        own = lambda: self.dma12(vV, WS_VT, LV_OFF, [0])
        rest = lambda: self.dma12(vV, WS_VT, LV_OFF, [1, 2, 3])
        self.stage_first(own, rest, 2, 1)
        a('s_barrier')
        self.mark(2)
        loop, end = a.newlabel('Lv'), a.newlabel('Lvend')
        self.a_poll(vAoff, [F], True)
        a.label(loop)
        self.stamp(0)
        for ks in range(10):
            a(f'ds_read_b128 v[{M+4*ks}:{M+4*ks+3}], v{vLin} offset:{LM + 1024*ks}')
        for ks in range(10):
            a(f's_waitcnt lgkmcnt({9-ks})')
            a(f'v_smfmac_f32_16x16x64_bf16 v[{TA}:{TA+3}], v[{M+4*ks}:{M+4*ks+3}], v[{WA+8*ks}:{WA+8*ks+7}], v{vIdx}')
            a(f'v_smfmac_f32_16x16x64_bf16 v[{TB}:{TB+3}], v[{M+4*ks}:{M+4*ks+3}], v[{WB+8*ks}:{WB+8*ks+7}], v{vIdx}')
            if ks == self.opt.get('v_bar', 8): a('s_barrier')
        a(f"""s_nop 7
              v_add_f32 v{TA}, v{TA}, v{TA+1}
              v_add_f32 v{TA+2}, v{TA+2}, v{TA+3}
              v_add_f32 v{TB}, v{TB}, v{TB+1}
              v_add_f32 v{TB+2}, v{TB+2}, v{TB+3}
              v_cvt_pk_bf16_f32 v{TA}, v{TA}, v{TA+2}
              v_cvt_pk_bf16_f32 v{TB}, v{TB}, v{TB+2}
              v_min_u32 v{TA}, -2, v{TA}
              v_min_u32 v{TB}, -2, v{TB}""")
        self.lstore([f'buffer_store_dword v{TA}, v{vB}, s[{sWS}:{sWS+3}], s{sB_C} offen',
                     f'buffer_store_dword v{TB}, v{vB}, s[{sWS}:{sWS+3}], s{sB_C} offen offset:16'])
        self.stamp(1)
        a('s_waitcnt vmcnt(2)')
        for k in range(12):
            a(f'ds_read_b128 v[{M+4*k}:{M+4*k+3}], v{vLin} offset:{LW5 + 1024*k}')
        self.zero(TA, 8)
        a('s_barrier')
        self.lstore([f'buffer_store_dword v{vSent}, v{vB}, s[{sWS}:{sWS+3}], s{sB_R} offen',
                     f'buffer_store_dword v{vSent}, v{vB}, s[{sWS}:{sWS+3}], s{sB_R} offen offset:16'])
        a(f"s_sleep {self.opt.get('d_sleep', 7)}" if self.opt.get('d_sleep', 7) else 's_nop 0')
        def o_prev():
            no0 = a.newlabel('Lvn0')
            a('s_waitcnt lgkmcnt(0)')
            a(f's_cmp_eq_u32 s{sSTEP}, 0')
            a(f's_cbranch_scc1 {no0}')
            o_store(1)
            a.label(no0)
        if not self.opt.get('o_late'): o_prev()
        self.stage(own, rest, 2, 1)
        if self.opt.get('o_late'): o_prev()
        if self.opt.get('fused'):
            nq = a.newlabel('Lvnq')
            a(f"""s_cmp_lt_u32 s{sSTEP}, {self.opt.get('of_all', 58)}
                  s_cbranch_scc1 {nq}
                  s_waitcnt vmcnt(0)""")
            self.o_flag(1)
            a.label(nq)
        a('s_waitcnt lgkmcnt(0)')
        self.stamp(5)
        a('s_barrier')
        self.stamp(2)
        self.wo_stage([(M, M + 24, TA, TB, 0)], vFrag, vIdx, F, vCoff, RR, end)
        self.stamp(3)
        self.zero(TA, 8)
        self.a_poll(vAoff, [F, PX, M + 40])
        a(f's_branch {loop}')
        a.label(end)
        a('s_waitcnt lgkmcnt(0)')
        a('s_barrier')
        o_store(0)
        a('s_waitcnt vmcnt(0)')
        self.o_flag(0)
        self.finish()
        self.emit_tail()

    def role_w7(self):
        a = self.a
        al = Alloc(1, 256)
        self.lanes(al)
        WV = al(80, 4)
        P = [(al(24, 4), al(24, 4), al(4, 4), al(4, 4), 0)]
        M = al(40, 4)
        TV = al(4, 4)
        SENT = al(4, 4); RR = al(2, 2)
        vFrag, vIdx, vB, vAoff, vK, vQx, vCoff, vCr = [al() for _ in range(8)]
        vSel = TV
        PX = al(24, 2)
        T0, T1 = self.vT0, self.vT1
        self.frag_addr(vFrag); self.idx_reg(vIdx)
        a(f"""v_lshlrev_b32 v{vK}, 4, v{self.vL}
              v_and_b32 v{T0}, 7, v{self.vL}
              v_lshlrev_b32 v{vQx}, 4, v{T0}
              v_lshrrev_b32 v{T0}, 5, v{self.vL}
              v_lshl_add_u32 v{vQx}, v{T0}, 10, v{vQx}
              v_bfe_u32 v{T0}, v{self.vL}, 3, 2
              v_lshl_add_u32 v{vQx}, v{T0}, 8, v{vQx}
              s_lshr_b32 s{sT0}, s{sG}, 1
              s_mul_i32 s{sT0}, s{sT0}, 6144
              s_and_b32 s{sT1}, s{sG}, 1
              s_lshl_b32 s{sT1}, s{sT1}, 7
              s_add_u32 s{sT0}, s{sT0}, s{sT1}
              v_add_u32 v{vQx}, s{sT0}, v{vQx}""")
        for k in range(4): a(f'v_mov_b32 v{SENT+k}, -1')
        a(f"""s_mul_i32 s{sT0}, s{sG}, 768
              s_add_u32 s{sT0}, s{sT0}, {6144 + 512}
              v_lshlrev_b32 v{vB}, 4, v{self.vN}
              v_lshl_add_u32 v{vB}, v{self.vQ}, 2, v{vB}
              v_add_u32 v{vB}, s{sT0}, v{vB}
              s_mul_i32 s{sT0}, s{sG}, 2560
              v_lshlrev_b32 v{vCr}, 4, v{self.vL}
              v_add_u32 v{vCr}, s{sT0}, v{vCr}""")
        self.c_off(vCoff, 3)
        srd(a, ptr(4), DM * NH * DH * 2)
        self.wrow_lane(vAoff, 12288)
        a(f"""s_mul_i32 s{sT0}, s{sH}, 384
              s_mul_i32 s{sT1}, s{sG}, 96
              s_add_u32 s{sT0}, s{sT0}, s{sT1}
              s_add_u32 s{sT0}, s{sT0}, 64
              v_and_b32 v{T0}, 14, v{self.vN}
              v_lshl_add_u32 v{vAoff}, v{T0}, 1, v{vAoff}
              v_add_u32 v{vAoff}, s{sT0}, v{vAoff}
              v_and_b32 v{T0}, 1, v{self.vN}
              v_cmp_eq_u32 vcc, 1, v{T0}
              v_mov_b32 v{vSel}, s{sSELLO}
              v_mov_b32 v{T0}, s{sSELHI}
              s_nop 1
              v_cndmask_b32 v{vSel}, v{vSel}, v{T0}, vcc""")
        self.load_single(WV, 10, vAoff, vSel, 12288, M)
        self.wo_weights(P[0][0], P[0][1], 3, vAoff, self.vT2)
        self.a_off(vAoff)
        self.zero(TV, 4)
        for p in P: self.zero(p[2], 8)
        self.mark(1)
        self.wait_all_registered()
        def own():
            self.dma_q(vQx); self.dma12(vK, WS_K, LK_OFF, [0])
        rest = lambda: self.dma12(vK, WS_K, LK_OFF, [1, 2, 3])
        self.stage_first(own, rest, 0, 2)
        a('s_barrier')
        self.mark(2)
        loop, end = a.newlabel('Lw7'), a.newlabel('Lw7end')
        self.a_poll(vAoff, [PX], True)
        a.label(loop)
        self.stamp(0)
        for ks in range(10):
            a(f'ds_read_b128 v[{M+4*ks}:{M+4*ks+3}], v{vK} offset:{LM + 1024*ks}')
        for ks in range(10):
            a(f's_waitcnt lgkmcnt({9-ks})')
            a(f'v_smfmac_f32_16x16x64_bf16 v[{TV}:{TV+3}], v[{M+4*ks}:{M+4*ks+3}], v[{WV+8*ks}:{WV+8*ks+7}], v{vIdx}')
            if ks == self.opt.get('w7_bar', 99): a('s_barrier')
        a(f"""s_nop 7
              v_add_f32 v{TV}, v{TV}, v{TV+1}
              v_add_f32 v{TV+2}, v{TV+2}, v{TV+3}
              v_cvt_pk_bf16_f32 v{TV}, v{TV}, v{TV+2}
              v_min_u32 v{TV}, -2, v{TV}""")
        self.lstore([f'buffer_store_dword v{TV}, v{vB}, s[{sWS}:{sWS+3}], s{sB_C} offen'])
        if self.opt.get('w7_bar', 99) > 9: a('s_barrier')
        self.stamp(1)
        self.zero(TV, 4)
        a('s_barrier')
        self.lstore([f'buffer_store_dword v{SENT}, v{vB}, s[{sWS}:{sWS+3}], s{sB_R} offen'])
        a(f"s_sleep {self.opt.get('d_sleep', 7)}" if self.opt.get('d_sleep', 7) else 's_nop 0')
        if self.opt.get('dma_time'): self.stamp(1)
        nf, yf = a.newlabel('Lw7nf'), a.newlabel('Lw7yf')
        a(f"""s_cmp_ge_u32 s{sSTEP}, {self.opt.get('of_all', 58)}
              s_cbranch_scc1 {nf}
              s_and_b32 s{sT0}, s{sSTEP}, {self.opt.get('of_every', 1) - 1}
              s_cmp_lg_u32 s{sT0}, {min(2, self.opt.get('of_every', 1) - 1)}
              s_cbranch_scc1 {nf}
              s_cmp_lt_u32 s{sSTEP}, 2
              s_cbranch_scc1 {nf}""")
        a.label(yf)
        self.o_flag(2)
        a.label(nf)
        self.stage(own, rest, 0, 2)
        if self.opt.get('dma_time'): a('s_waitcnt vmcnt(0)')
        self.stamp(5)
        a('s_barrier')
        self.stamp(2)
        self.wo_stage(P, vFrag, vIdx, M, vCoff, RR, end)
        self.stamp(3)
        for p in P: self.zero(p[2], 8)
        self.a_poll(vAoff, [PX, PX + 8, PX + 16])
        a(f's_branch {loop}')
        a.label(end)
        a('s_barrier')
        self.finish()
        self.emit_tail()

    def role_att(self):
        a = self.a
        al = Alloc(1, 256)
        self.lanes(al)
        TM = al(2, 2)
        WA, WB = al(24, 4), al(24, 4)
        TA, TB = al(4, 4), al(4, 4)
        KX = al(48, 4); X = al(24, 4); Y = al(24, 4)
        VX = al(16, 4); VM = al(8, 2)
        BI = al(12, 4); SS = al(12, 4)
        PP = al(6, 2); RR = PP
        OO = al(16, 4); LL = al(4, 4)
        ONES = al(4, 4)
        F = SS
        vFrag, vIdx, vAoff, vXY, vVM, vOw, vCoff, vLin, vQr, vBp, vRw, vOx = [al() for _ in range(12)]
        T0, T1, T2 = self.vT0, self.vT1, self.vT2
        sWP = sRED
        a(f's_sub_u32 s{sWP}, s{sW}, 4')
        self.frag_addr(vFrag); self.idx_reg(vIdx)
        self.c_off(vCoff, f's{sWP}')
        if self.opt.get('touch'): self.touch_weights()
        self.init_job(KX)
        self.mark(5)
        self.wo_weights(WA, WB, f's{sWP}', vAoff, T2)
        if self.opt.get('tlb'):
            a(f"""v_lshlrev_b32 v{T0}, 21, v{self.vL}
                  v_add_u32 v{T0}, {0x1F8000}, v{T0}
                  s_mov_b32 m0, {SWEEP_LDS}
                  s_mov_b32 s{sT0}, 0x8000000
                  buffer_load_dword v{T0}, s[{sWS}:{sWS+3}], 0 offen lds
                  buffer_load_dword v{T0}, s[{sWS}:{sWS+3}], s{sT0} offen lds""")
        self.arrive_init(KX)
        self.a_off(vAoff)
        a(f"""v_lshlrev_b32 v{vXY}, 6, v{self.vN}
              v_lshl_add_u32 v{vXY}, v{self.vQ}, 4, v{vXY}
              s_lshl_b32 s{sT0}, s{sWP}, 10
              s_add_u32 s{sT0}, s{sT0}, 6144
              v_lshlrev_b32 v{vVM}, 4, v{self.vN}
              v_lshl_add_u32 v{vVM}, v{self.vQ}, 3, v{vVM}
              v_add_u32 v{vVM}, s{sT0}, v{vVM}
              v_lshlrev_b32 v{vLin}, 4, v{self.vL}
              s_lshl_b32 s{sT0}, s{sWP}, 11
              v_add_u32 v{vBp}, s{sT0}, v{vLin}
              v_and_b32 v{T0}, 7, v{self.vN}
              v_lshlrev_b32 v{vQr}, 4, v{T0}
              v_lshl_add_u32 v{vQr}, v{self.vQ}, 7, v{vQr}""")
        a(f"""v_lshlrev_b32 v{vRw}, 2, v{self.vL}
              v_add_u32 v{T1}, {LDUMMY}, v{vRw}
              v_add_u32 v{vRw}, {LR}, v{vRw}
              v_cmp_gt_u32 vcc, 8, v{self.vL}
              s_nop 1
              v_cndmask_b32 v{vRw}, v{T1}, v{vRw}, vcc""")
        a(f"""v_lshrrev_b32 v{T1}, 1, v{self.vQ}
              v_lshlrev_b32 v{vOw}, 7, v{T1}
              v_lshl_add_u32 v{vOw}, v{T0}, 4, v{vOw}
              v_and_b32 v{T1}, 1, v{self.vQ}
              v_lshl_add_u32 v{vOw}, v{T1}, 3, v{vOw}
              v_lshrrev_b32 v{T1}, 3, v{self.vN}
              v_mul_u32_u24 v{T1}, 3072, v{T1}
              v_add_u32 v{vOw}, v{vOw}, v{T1}
              s_lshl_b32 s{sT0}, s{sWP}, 10
              s_add_u32 s{sT0}, s{sT0}, {LO}
              v_add_u32 v{vOw}, s{sT0}, v{vOw}""")
        a(f"""s_lshl_b32 s{sT0}, s{sWP}, 10
              s_add_u32 s{sT0}, s{sT0}, {LOX}
              v_lshlrev_b32 v{vOx}, 7, v{T0}
              v_lshl_add_u32 v{vOx}, v{self.vQ}, 3, v{vOx}
              v_add_u32 v{vOx}, s{sT0}, v{vOx}""")
        a(f"""s_lshl_b32 s{sT0}, s{sG}, 3
              v_add_u32 v{T1}, s{sT0}, v{T0}
              v_cmp_gt_u32 vcc, 8, v{self.vN}
              v_mov_b32 v{T2}, 31
              s_nop 1
              v_cndmask_b32 v{T1}, v{T1}, v{T2}, vcc
              v_lshlrev_b32 v{T2}, 2, v{self.vQ}
              v_sub_u32 v{T1}, v{T1}, v{T2}
              v_mov_b32 v{T2}, 0xf149f2ca""")
        for tile in range(2):
            for r in range(4):
                a(f"""v_cmp_gt_i32 vcc, {16*tile + r}, v{T1}
                      v_mov_b32 v{BI+4*tile+r}, 0
                      s_nop 1
                      v_cndmask_b32 v{BI+4*tile+r}, v{BI+4*tile+r}, v{T2}, vcc""")
        a(f"""v_cmp_lt_u32 vcc, 1, v{self.vQ}
              v_mov_b32 v{BI+8}, 0
              s_nop 1
              v_cndmask_b32 v{BI+8}, v{BI+8}, v{T2}, vcc""")
        for r in range(1, 4): a(f'v_mov_b32 v{BI+8+r}, v{BI+8}')
        for k in range(4): a(f'v_mov_b32 v{ONES+k}, 0x3f803f80')
        self.zero(Y, 24); self.zero(VM, 8); self.zero(TA, 8)
        self.mark(1)
        self.wait_all_registered()
        def read_seg():
            a(f'v_add_u32 v{T0}, s{sLB}, v{vLin}')
            a(f'v_add_u32 v{T1}, s{sLB}, v{vQr}')
            a(f's_lshl_b32 s{sT0}, s{sWP}, 12')
            a(f'v_add_u32 v{T2}, s{sT0}, v{T0}')
            for k in range(12):
                a(f'ds_read_b128 v[{KX+4*k}:{KX+4*k+3}], v{T0} offset:{LK_OFF + 1024*k}')
            for ks in range(6):
                a(f'ds_read_b128 v[{X+4*ks}:{X+4*ks+3}], v{T1} offset:{LQ_OFF + 512*ks}')
            for t in range(4):
                a(f'ds_read_b128 v[{VX+4*t}:{VX+4*t+3}], v{T2} offset:{LV_OFF + 1024*t}')
        def vm_loads():
            a(f's_mov_b64 exec, s[{sML32}:{sML32+1}]')
            for t in range(4):
                a(f'buffer_load_dwordx2 v[{VM+2*t}:{VM+2*t+1}], v{vVM}, s[{sWS}:{sWS+3}], s{sB_C} offen offset:{256*t} sc1')
            a('s_mov_b64 exec, -1')
        a('s_barrier')
        self.mark(2)
        a(f's_mov_b32 s{sLB}, {LBUF}')
        read_seg()
        self.a_poll(vAoff, [F], True)
        loop, end = a.newlabel('Lat'), a.newlabel('Latend')
        lp, ok, vlp, vok, vrt = a.newlabel('LpB'), a.newlabel('LpBok'), a.newlabel('LpV'), a.newlabel('LpVok'), a.newlabel('LpVr')
        a.label(loop)
        if self.opt.get('trace2'): a(f's_memtime s[{sST+0}:{sST+1}]')
        a('s_barrier')
        if self.opt.get('trace2'): a(f's_memtime s[{sST+2}:{sST+3}]')
        if self.opt.get('b_sleep'): a(f"s_sleep {self.opt['b_sleep']}")
        if self.opt.get('fine'): self.stamp(0)
        self.poll2(vBp, sB_C, LQK, [OO, OO + 8][:self.opt.get('b_depth', 1)], 0, self.opt.get('b_gap', 0))
        if self.opt.get('trace2'): a(f's_memtime s[{sST+4}:{sST+5}]')
        if self.opt.get('vm_at') == -1: vm_loads()
        a(f's_mov_b64 exec, s[{sMN8}:{sMN8+1}]')
        a('s_waitcnt lgkmcnt(0)')
        a('s_barrier')
        for ks in range(6):
            a(f'ds_read_b128 v[{X+4*ks}:{X+4*ks+3}], v{vXY} offset:{LQK + 512*ks}')
            a(f'ds_read_b128 v[{Y+4*ks}:{Y+4*ks+3}], v{vXY} offset:{LQK + 3072 + 512*ks}')
        a('s_mov_b64 exec, -1')
        self.stamp(5)
        for ks in range(6):
            if ks == self.opt.get('vm_at', 0): vm_loads()
            a(f's_waitcnt lgkmcnt({11 - 2*ks})')
            for tile, A in ((0, KX + 4*ks), (1, KX + 24 + 4*ks), (2, Y + 4*ks)):
                if tile == 2: a(f's_waitcnt lgkmcnt({10 - 2*ks})')
                c = BI + 4*tile if ks == 0 else SS + 4*tile
                a(f'v_mfma_f32_16x16x32_bf16 v[{SS+4*tile}:{SS+4*tile+3}], v[{A}:{A+3}], v[{X+4*ks}:{X+4*ks+3}], v[{c}:{c+3}]')
        a('s_waitcnt vmcnt(4)')
        a('s_nop 3')
        self.stamp(1)
        a(f"""v_max3_f32 v{T0}, v{SS}, v{SS+1}, v{SS+2}
              v_max3_f32 v{T1}, v{SS+3}, v{SS+4}, v{SS+5}
              v_max3_f32 v{T0}, v{T0}, v{SS+6}, v{SS+7}
              v_max3_f32 v{T1}, v{T1}, v{SS+8}, v{SS+9}
              v_max3_f32 v{T0}, v{T0}, v{SS+10}, v{SS+11}
              v_max_f32 v{T0}, v{T0}, v{T1}
              v_mov_b32 v{T1}, v{T0}
              s_nop 1
              v_permlane32_swap_b32 v{T0}, v{T1}
              v_max_f32 v{T0}, v{T0}, v{T1}
              v_mov_b32 v{T1}, v{T0}
              s_nop 1
              v_permlane16_swap_b32 v{T0}, v{T1}
              v_max_f32 v{T0}, v{T0}, v{T1}
              v_mul_f32 v{TM}, s{sSCL}, v{T0}""")
        def pkfma(r):
            a(f'v_pk_fma_f32 v[{SS+r}:{SS+r+1}], v[{SS+r}:{SS+r+1}], s[{sSCL}:{sSCL+1}], v[{TM}:{TM+1}] op_sel_hi:[1,0,0] neg_lo:[0,0,1] neg_hi:[0,0,1]')
        for r in range(0, 8, 2): pkfma(r)
        for r in range(8): a(f'v_exp_f32 v{SS+r}, v{SS+r}')
        for r in range(8, 12, 2): pkfma(r)
        for r in range(4): a(f'v_cvt_pk_bf16_f32 v{PP+r}, v{SS+2*r}, v{SS+2*r+1}')
        a(f'v_exp_f32 v{SS+8}, v{SS+8}')
        a(f'v_exp_f32 v{SS+9}, v{SS+9}')
        a(f'v_mfma_f32_16x16x32_bf16 v[{LL}:{LL+3}], v[{ONES}:{ONES+3}], v[{PP}:{PP+3}], 0')
        a(f'v_exp_f32 v{SS+10}, v{SS+10}')
        a(f'v_mfma_f32_16x16x32_bf16 v[{OO}:{OO+3}], v[{VX}:{VX+3}], v[{PP}:{PP+3}], 0')
        a(f'v_exp_f32 v{SS+11}, v{SS+11}')
        a(f'v_mfma_f32_16x16x32_bf16 v[{OO+4}:{OO+7}], v[{VX+4}:{VX+7}], v[{PP}:{PP+3}], 0')
        a(f'v_cvt_pk_bf16_f32 v{PP+4}, v{SS+8}, v{SS+9}')
        a(f'v_cvt_pk_bf16_f32 v{PP+5}, v{SS+10}, v{SS+11}')
        a(f'v_mfma_f32_16x16x32_bf16 v[{OO+8}:{OO+11}], v[{VX+8}:{VX+11}], v[{PP}:{PP+3}], 0')
        a.label(vlp)
        a(f"""s_waitcnt vmcnt(0)
              v_max3_u32 v{T1}, v{VM}, v{VM+1}, v{VM+2}
              v_max3_u32 v{T2}, v{VM+3}, v{VM+4}, v{VM+5}
              v_mfma_f32_16x16x32_bf16 v[{OO+12}:{OO+15}], v[{VX+12}:{VX+15}], v[{PP}:{PP+3}], 0
              v_max3_u32 v{T1}, v{T1}, v{VM+6}, v{VM+7}
              v_max_u32 v{T1}, v{T1}, v{T2}
              v_cmp_eq_u32 vcc, -1, v{T1}
              s_cbranch_vccnz {vrt}""")
        a.label(vok)
        if self.opt.get('trace2'): a(f's_memtime s[{sST+6}:{sST+7}]')
        if not self.opt.get('fine'): self.stamp(0)
        a(f'v_mfma_f32_16x16x16_bf16 v[{LL}:{LL+3}], v[{ONES}:{ONES+1}], v[{PP+4}:{PP+5}], v[{LL}:{LL+3}]')
        for t in range(4):
            a(f'v_mfma_f32_16x16x16_bf16 v[{OO+4*t}:{OO+4*t+3}], v[{VM+2*t}:{VM+2*t+1}], v[{PP+4}:{PP+5}], v[{OO+4*t}:{OO+4*t+3}]')
        a(f"""s_nop 3
              v_rcp_f32 v{LL}, v{LL}""")
        for t in range(4):
            a(f'v_cvt_pk_bf16_f32 v{X+2*t}, v{OO+4*t}, v{OO+4*t+1}')
            a(f'v_cvt_pk_bf16_f32 v{X+2*t+1}, v{OO+4*t+2}, v{OO+4*t+3}')
            a(f'ds_write_b64 v{vOw}, v[{X+2*t}:{X+2*t+1}] offset:{256*t}')
            if t == 0: a(f'ds_write_b32 v{vRw}, v{LL}')
        a('s_waitcnt lgkmcnt(0)')
        a('s_barrier')
        self.stamp(2)
        skipwo = a.newlabel('Latsk')
        self.wo_stage([(WA, WB, TA, TB, 0)], vFrag, vIdx, F, vCoff, RR, skipwo)
        a.label(skipwo)
        if self.opt.get('trace2'): a(f's_memtime s[{sST+8}:{sST+9}]')
        if not self.opt.get('fine'): self.stamp(3)
        for t in range(4):
            for r in range(4):
                a(f'v_mul_f32 v{OO+4*t+r}, v{OO+4*t+r}, v{LL}')
            a(f'v_cvt_pk_bf16_f32 v{OO+4*t}, v{OO+4*t}, v{OO+4*t+1}')
            a(f'v_cvt_pk_bf16_f32 v{OO+4*t+1}, v{OO+4*t+2}, v{OO+4*t+3}')
        a(f's_mov_b64 exec, s[{sMH8}:{sMH8+1}]')
        for t in range(4):
            a(f'ds_write_b64 v{vOx}, v[{OO+4*t}:{OO+4*t+1}] offset:{32*t}')
        a('s_mov_b64 exec, -1')
        a(f"""s_cmp_eq_u32 s{sSTEP}, 63
              s_cbranch_scc1 {end}
              s_add_u32 s{sLB}, s{sLB}, {LBUF_SZ}
              s_cmp_eq_u32 s{sLB}, {LBUF + 3*LBUF_SZ}
              s_cselect_b32 s{sLB}, {LBUF}, s{sLB}""")
        if self.opt.get('trace2'):
            a(f"""s_waitcnt lgkmcnt(0)
                  s_lshl_b32 s{sT0}, s{sJ}, 4
                  s_add_u32 s{sT0}, s{sT0}, s{sC}
                  s_lshl_b32 s{sT0}, s{sT0}, 2
                  s_add_u32 s{sT0}, s{sT0}, s{sWP}
                  s_lshl_b32 s{sT0}, s{sT0}, 6
                  s_add_u32 s{sT0}, s{sT0}, s{sSTEP}
                  s_lshl_b32 s{sT0}, s{sT0}, 4
                  s_add_u32 s{sT0}, s{sT0}, {WS_DBG + 0x300000}""")
            for k in range(4):
                a(f's_sub_u32 s{sT1}, s{sST+2*k+2}, s{sST}' if k else f's_sub_u32 s{sT1}, s{sST}, s{sST+10}')
                a(f'v_mov_b32 v{LL+k}, s{sT1}')
            a(f's_mov_b32 s{sST+10}, s{sST+8}')
            a(f"""v_mov_b32 v{T0}, 0
                  s_mov_b64 exec, 1
                  buffer_store_dwordx4 v[{LL}:{LL+3}], v{T0}, s[{sWS}:{sWS+3}], s{sT0} offen
                  s_mov_b64 exec, -1
                  s_nop 1""")
        read_seg()
        self.zero(TA, 8)
        self.a_poll(vAoff, [F, OO, OO + 8])
        a(f's_branch {loop}')
        a.label(end)
        a('s_waitcnt lgkmcnt(0)')
        a('s_barrier')
        self.finish()
        a.label(vrt)
        vm_loads()
        self.retry(vlp, 1)
        a(f's_branch {vok}')
        self.emit_tail()

def emit_gates(a, sU, ntok, vL, R):
    G, acc, t1, t2, v4, Xr = R, R + 5, R + 6, R + 7, R + 8, R + 10
    a(f'v_lshlrev_b32 v{v4}, 2, v{vL}')
    srd(a, ptr(11), DM * 2)
    for i in range(5):
        a(f'buffer_load_dword v{G+i}, v{v4}, s[{sT}:{sT+3}], 0 offen offset:{256*i}')
    srd(a, ptr(0), S * DM * 2)
    a(f's_mul_i32 s{sT1}, s{sU}, 1280')
    for tk in range(ntok):
        for i in range(5):
            a(f'buffer_load_dword v{Xr+5*tk+i}, v{v4}, s[{sT}:{sT+3}], s{sT1} offen offset:{1280*tk + 256*i}')
    a('s_waitcnt vmcnt(0)')
    for tk in range(ntok):
        a(f'v_mov_b32 v{acc}, 0')
        for i in range(5):
            x = Xr + 5*tk + i
            a(f"""v_lshlrev_b32 v{t1}, 16, v{x}
                  v_lshlrev_b32 v{t2}, 16, v{G+i}
                  v_fmac_f32 v{acc}, v{t1}, v{t2}
                  v_and_b32 v{t1}, 0xffff0000, v{x}
                  v_and_b32 v{t2}, 0xffff0000, v{G+i}
                  v_fmac_f32 v{acc}, v{t1}, v{t2}""")
        for sh in (8, 4, 2, 1):
            a(f"""s_nop 1
                  v_add_f32_dpp v{acc}, v{acc}, v{acc} row_ror:{sh} row_mask:0xf bank_mask:0xf""")
        for sw in ('v_permlane16_swap_b32', 'v_permlane32_swap_b32'):
            a(f"""v_mov_b32 v{t1}, v{acc}
                  s_nop 1
                  {sw} v{acc}, v{t1}
                  v_add_f32 v{acc}, v{acc}, v{t1}""")
        a(f"""v_mul_f32 v{acc}, {hex(f32bits(-math.log2(math.e)))}, v{acc}
              v_exp_f32 v{acc}, v{acc}
              s_nop 0
              v_add_f32 v{acc}, 1.0, v{acc}
              v_rcp_f32 v{acc}, v{acc}
              v_mov_b32 v{t1}, 0
              s_lshl_b32 s{sT0}, s{sU}, 2
              s_add_u32 s{sT0}, s{sT0}, {WS_G + 4*tk}
              s_mov_b64 exec, 1
              buffer_store_dword v{acc}, v{t1}, s[{sWS}:{sWS+3}], s{sT0} offen sc1
              s_mov_b64 exec, -1""")

def wait_registered(a, opt, T0, T1, vN, init=False):
    lp, done = a.newlabel('Lreg'), a.newlabel('Lregd')
    a(f'v_lshlrev_b32 v{T1}, 2, v{vN}')
    a.label(lp)
    a(f'''buffer_load_dword v{T0}, v{T1}, s[{sDBG}:{sDBG+3}], 0 offen sc0 sc1
          s_waitcnt vmcnt(0)
          v_readlane_b32 s{sT0}, v{T0}, 8
          v_readlane_b32 s{sT1}, v{T0}, {32 if init else 8}
          s_add_u32 s{sT0}, s{sT0}, s{sT1}
          s_cmp_ge_u32 s{sT0}, {256 + 384 if init else 512}
          s_cbranch_scc1 {done}
          s_sleep 24
          s_sub_u32 s{sBUD}, s{sBUD}, 1
          s_cbranch_scc0 {lp}
          s_mov_b32 s{sBUD}, 0''')
    a.label(done)
    a(f'''v_readlane_b32 s{sPOL}, v{T0}, 34
          v_cmp_ne_u32 vcc, 32, v{T0}
          s_and_b32 s{sPOL}, s{sPOL}, 1
          s_and_b32 s{sT0}, vcc_lo, 0xff
          s_cselect_b32 s{sMIX}, 1, {1 if opt.get('force_mixed') else 0}''')

def emit_entry(a, opt, exit_label):
    a(f'''s_cmp_ge_u32 s2, 256
          s_cbranch_scc1 {exit_label}
          s_load_dwordx16 s[16:31], s[0:1], 0
          s_load_dwordx8 s[32:39], s[0:1], 64
          s_load_dwordx4 s[40:43], s[0:1], 96
          s_load_dwordx2 s[44:45], s[0:1], 112
          v_lshrrev_b32 v1, 6, v0
          s_getreg_b32 s{sJ}, hwreg(HW_REG_XCC_ID)
          v_readfirstlane_b32 s{sW}, v1
          s_and_b32 s{sJ}, s{sJ}, 15
          s_min_u32 s{sJ}, s{sJ}, 10
          s_cmp_lt_u32 s{sJ}, 8
          s_cselect_b32 s{sJ}, s{sJ}, 10
          s_mov_b32 s{sBUD}, {opt.get('budget', 1 << 20)}
          s_mov_b32 s{sSTEP}, 0
          s_mov_b32 s{sCS}, 0
          s_mov_b32 s{sPOL}, 0
          s_mov_b64 s[98:99], 0
          s_mov_b64 s[100:101], 0
          s_mov_b32 s{sMIX}, {1 if opt.get('force_mixed') else 0}
          s_mov_b32 s{sMN8}, 0x00ff00ff
          s_mov_b32 s{sMN8+1}, 0x00ff00ff
          s_mov_b32 s{sMH8}, 0xff00ff00
          s_mov_b32 s{sMH8+1}, 0xff00ff00
          s_mov_b32 s{sML32}, -1
          s_mov_b32 s{sML32+1}, 0
          s_mov_b32 s{sSELLO}, 0x05040100
          s_mov_b32 s{sSELHI}, 0x07060302
          s_mov_b32 s{sSCL}, {hex(f32bits(DH ** -0.5 * math.log2(math.e)))}
          s_waitcnt lgkmcnt(0)
          s_mov_b32 s{sWS}, s{ptr(14)}
          s_mov_b32 s{sWS+1}, s{ptr(14)+1}
          s_mov_b32 s{sWS+2}, {WS_SIZE}
          s_mov_b32 s{sWS+3}, 0x20000
          s_mov_b32 s{sDBG}, s{ptr(13)}
          s_mov_b32 s{sDBG+1}, s{ptr(13)+1}
          s_mov_b32 s{sDBG+2}, 256
          s_mov_b32 s{sDBG+3}, 0x20000''')
    if opt.get('prof'):
        a(f's_memrealtime s[{sST}:{sST+1}]')
        a('s_waitcnt lgkmcnt(0)')
    if opt.get('fake_xcc') == 1:
        a(f'''s_lshr_b32 s{sJ}, s2, 5''')
    if opt.get('fake_xcc') == 2:
        a(f'''s_cmp_lt_u32 s2, 200
              s_cselect_b32 s{sJ}, s{sJ}, 3
              s_cmp_lt_u32 s2, 250
              s_cselect_b32 s{sJ}, s{sJ}, 10''')
    l1, l2 = a.newlabel('Le'), a.newlabel('Le')
    def sweep():
        ls = a.newlabel('Lsw')
        a(f'''s_lshl_b32 s{sT0}, s{sC}, 3
              s_add_u32 s{sT0}, s{sT0}, s{sW}
              s_cmp_ge_u32 s{sT0}, 240
              s_cbranch_scc1 {ls}
              s_mov_b32 m0, {SWEEP_LDS}
              v_and_b32 v9, 63, v0
              v_lshlrev_b32 v9, 4, v9
              v_add_u32 v10, 1024, v9
              v_add_u32 v11, {12288 + 512}, v9
              v_add_u32 v12, {12288 - 512}, v9
              v_cmp_gt_u32 vcc, 512, v9
              s_mul_i32 s{sT1}, s{sT0}, 52429
              s_lshr_b32 s{sT1}, s{sT1}, 22
              v_cndmask_b32 v10, v12, v10, vcc
              s_cmp_eq_u32 s{sT1}, 1
              s_cselect_b32 s{sT}, s{ptr(3)}, s{ptr(2)}
              s_cselect_b32 s{sT+1}, s{ptr(3)+1}, s{ptr(2)+1}
              s_cmp_eq_u32 s{sT1}, 2
              s_cselect_b32 s{sT}, s{ptr(4)}, s{sT}
              s_cselect_b32 s{sT+1}, s{ptr(4)+1}, s{sT+1}
              s_mov_b32 s{sT+2}, {DM*NH*DH*2}
              s_mov_b32 s{sT+3}, 0x20000
              s_mul_i32 s{sT1}, s{sT1}, 80
              s_sub_u32 s{sT1}, s{sT0}, s{sT1}
              s_mul_i32 s{sT1}, s{sT1}, {8*12288}
              s_mul_i32 s{sT2}, s{sJ}, 1536
              s_add_u32 s{sT1}, s{sT1}, s{sT2}''')
        for rp in range(4):
            for v in (9, 10, 11):
                a(f'buffer_load_dwordx4 v{v}, s[{sT}:{sT+3}], s{sT1} offen lds')
            if rp < 3: a(f's_add_u32 s{sT1}, s{sT1}, {2*12288}')
        srd(a, ptr(5), NH * DH * DM * 2)
        a(f'''s_mul_i32 s{sT1}, s{sJ}, {4*DH*DM*2}
              s_lshl_b32 s{sT0}, s{sT0}, 12
              s_add_u32 s{sT1}, s{sT1}, s{sT0}''')
        for k in range(4):
            a(f'buffer_load_dwordx4 v9, s[{sT}:{sT+3}], s{sT1} offen offset:{1024*k} lds')
        a.label(ls)
    a(f'''s_cmp_lg_u32 s{sW}, 0
          s_cbranch_scc1 {l1}
          s_mov_b64 exec, 1
          v_mov_b32 v2, 1
          s_lshl_b32 s{sT0}, s{sJ}, 2
          v_mov_b32 v3, s{sT0}
          buffer_atomic_add v2, v3, s[{sDBG}:{sDBG+3}], 0 offen sc0 sc1
          s_mov_b64 exec, -1''')
    a.label(l1)
    l3, l4, l5, l6, l7 = [a.newlabel('Le') for _ in range(5)]
    a(f'''s_cmp_lg_u32 s{sW}, 1
          s_cbranch_scc1 {l5}
          s_mov_b64 exec, 1
          v_mov_b32 v2, 0
          v_mov_b32 v3, 0
          v_mov_b32 v4, 0
          v_mov_b32 v5, 0
          s_lshl_b32 s{sT0}, s2, 4
          s_add_u32 s{sT0}, s{sT0}, {WS_FLAG}
          buffer_store_dwordx4 v[2:5], v2, s[{sWS}:{sWS+3}], s{sT0} offen sc1
          s_mov_b64 exec, -1''')
    a.label(l5)
    a(f'''s_waitcnt vmcnt(0)
          s_cmp_lg_u32 s{sW}, 0
          s_cbranch_scc1 {l3}
          s_mov_b64 exec, 1
          v_readfirstlane_b32 s{sT0}, v2
          s_cmp_ge_u32 s{sJ}, 8
          s_cselect_b32 s{sT0}, 32, s{sT0}
          s_cmp_lt_u32 s{sT0}, 32
          s_cbranch_scc1 {l6}
          v_mov_b32 v2, 1
          v_mov_b32 v3, 36
          buffer_atomic_add v2, v3, s[{sDBG}:{sDBG+3}], 0 offen sc0 sc1
          s_waitcnt vmcnt(0)
          v_add_u32 v2, 32, v2''')
    a.label(l6)
    l8 = a.newlabel('Le')
    a(f'''v_mov_b32 v4, 0
          s_or_b32 s{sT0}, s{sT0}, s{sJ}
          s_cmp_lg_u32 s{sT0}, 0
          s_cbranch_scc1 {l8}
          s_lshr_b32 s{sT0}, s2, 6
          s_lshl_b32 s{sT0}, s{sT0}, 14
          s_and_b32 s{sT1}, s2, 63
          s_lshl_b32 s{sT1}, s{sT1}, 7
          s_add_u32 s{sT0}, s{sT0}, s{sT1}
          s_add_u32 s{sT0}, s{sT0}, {WS_RC + RC_PROBE}
          s_add_u32 s{sT1}, s{sT0}, 8192
          s_mov_b32 s{sT2}, -1
          s_mov_b32 s{sT3}, -1''')
    for rnd in range(2):
        for cp in range(2):
            a(f'''v_mov_b32 v5, 0
                  s_memtime s[98:99]
                  s_waitcnt lgkmcnt(0)
                  buffer_atomic_add v5, v4, s[{sWS}:{sWS+3}], s{sT1 if cp else sT0} offen sc0 sc1
                  s_waitcnt vmcnt(0)
                  s_memtime s[100:101]
                  s_waitcnt lgkmcnt(0)
                  s_sub_u32 s98, s100, s98
                  s_min_u32 s{sT3 if cp else sT2}, s{sT3 if cp else sT2}, s98''')
    a(f'''s_mov_b64 s[98:99], 0
          s_mov_b64 s[100:101], 0
          s_cmp_lt_u32 s{sT3}, s{sT2}
          s_cselect_b32 s{sT2}, 0x15, 0x0a
          v_mov_b32 v4, s{sT2}''')
    a(f'''v_mov_b32 v5, 136
          buffer_store_dword v4, v5, s[{sDBG}:{sDBG+3}], 0 offen sc1
          s_waitcnt vmcnt(0)''')
    a.label(l8)
    a(f'''v_mov_b32 v3, 0
          ds_write_b32 v3, v2
          s_mov_b64 exec, -1
          s_waitcnt lgkmcnt(0)''')
    a.label(l3)
    a(f'''s_barrier
          v_mov_b32 v3, 0
          ds_read_b32 v2, v3
          s_cmp_lg_u32 s{sW}, 0
          s_cbranch_scc1 {l4}
          s_mov_b64 exec, 1
          v_mov_b32 v4, 1
          v_mov_b32 v5, 32
          buffer_atomic_add v4, v5, s[{sDBG}:{sDBG+3}], 0 offen sc1
          s_mov_b64 exec, -1''')
    a.label(l4)
    a(f'''s_waitcnt lgkmcnt(0)
          v_readfirstlane_b32 s{sC}, v2
          s_barrier
          s_cmp_lt_u32 s{sC}, 32
          s_cbranch_scc1 {l7}''')
    a('v_and_b32 v4, 63, v0')
    wait_registered(a, opt, 2, 3, 4)
    a(f's_sub_u32 s{sT1}, s{sC}, 32')
    a(f's_mov_b32 s{sJ}, 0')
    a(f's_mov_b32 s{sC}, 0')
    for x in range(8):
        a(f'''v_readlane_b32 s{sT0}, v2, {x}
              s_min_u32 s{sT0}, s{sT0}, 32
              s_sub_u32 s{sT2}, 32, s{sT0}
              s_add_u32 s{sT0}, s{sT0}, s{sT1}
              s_cmp_lt_u32 s{sT1}, s{sT2}
              s_cselect_b32 s{sJ}, {x}, s{sJ}
              s_cselect_b32 s{sC}, s{sT0}, s{sC}
              s_sub_u32 s{sT1}, s{sT1}, s{sT2}''')
    a.label(l7)
    a(f'''s_lshr_b32 s{sT0}, s{sC}, 4
          s_lshr_b32 s{sT1}, s{sJ}, 2
          s_and_b32 s{sJ}, s{sJ}, 3
          s_lshl_b32 s{sJ}, s{sJ}, 1
          s_add_u32 s{sJ}, s{sJ}, s{sT0}
          s_and_b32 s{sC}, s{sC}, 15
          s_lshl_b32 s{sT1}, s{sT1}, 4
          s_add_u32 s{sC}, s{sC}, s{sT1}''')
    if opt.get('prof'):
        a(f's_memrealtime s[{sST+8}:{sST+9}]')
        a('s_waitcnt lgkmcnt(0)')

import struct
def f32bits(x): return struct.unpack('<I', struct.pack('<f', x))[0]

def emit_chain_body(a, opt):
    ch = Chain(a, opt)
    lv, l7, lat = a.newlabel('Lrole_v'), a.newlabel('Lrole_w7'), a.newlabel('Lrole_att')
    a(f'''s_lshr_b32 s{sH}, s{sC}, 2
          s_lshl_b32 s{sT0}, s{sJ}, 2
          s_add_u32 s{sH}, s{sH}, s{sT0}
          s_and_b32 s{sG}, s{sC}, 3
          s_setprio 2
          s_cmp_eq_u32 s{sW}, 3
          s_cbranch_scc1 {lv}
          s_cmp_eq_u32 s{sW}, 7
          s_cbranch_scc1 {l7}
          s_cmp_ge_u32 s{sW}, 4
          s_cbranch_scc1 {lat}''')
    ch.role_qk()
    a.label(lv); ch.role_v()
    a.label(l7); ch.role_w7()
    a.label(lat); ch.role_att()
```

```python
from asmlib import *
from layout import *
import math

LM, LO, LDUMMY, LQK, LW5, LR, LOX, LBUF = 0, 10240, 13312, 16384, 22528, 34816, 35840, 38912
LBUF_SZ = 27648
LK_OFF, LV_OFF, LQ_OFF = 0, 12288, 24576
CHAIN_LDS = LBUF + 3 * LBUF_SZ
SWEEP_LDS = 139264

sWS, sDBG, sT = 4, 8, 12
sPTR = 16
def ptr(i): return sPTR + 2 * i
sW, sJ, sC, sH, sG, sMIX, sBUD, sSTEP = 48, 49, 50, 51, 52, 53, 54, 55
sA_N, sA_R, sB_C, sB_R, sC_W, sC_RS, sC_RD, sO_C = 56, 57, 58, 59, 60, 61, 62, 63
sKQ, sVX, sLB, sRED, sSCL, sT0, sT1, sT2, sT3 = 64, 65, 66, 67, 68, 69, 76, 77, 78
sMN8, sML32, sMH8 = 70, 72, 74
sSELLO, sSELHI = 80, 81
sCI = 46
sARR = 3
sMA = 46
sST = 82
sPADD, sPOR, sA_P, sCS, sPOL, sC_W2 = 94, 95, 96, 97, 79, 61
NSTAMP = 6

def srd(a, base_ptr, nbytes):
    a(f'''s_mov_b32 s{sT}, s{base_ptr}
          s_mov_b32 s{sT+1}, s{base_ptr+1}
          s_mov_b32 s{sT+2}, {nbytes}
          s_mov_b32 s{sT+3}, 0x20000''')

class Chain:
    def __init__(self, a, opt):
        self.a = a
        self.opt = opt
        self.tail = []
        self.tails = []
        self.nstamp = 0
        self.wnt = ' nt' if opt.get('w_nt') else ''

    def lstore(self, insts):
        a = self.a
        slow, back = a.newlabel('Lslow'), a.newlabel('Lback')
        a(f's_cmp_lg_u32 s{sMIX}, 0')
        a(f's_cbranch_scc1 {slow}')
        for i in insts: a(i)
        a.label(back)
        self.tail.append((slow, [i + ' sc1' if i.startswith('buffer_') else i for i in insts], back))

    def emit_tail(self):
        a = self.a
        for slow, insts, back in self.tail:
            a.label(slow)
            for i in insts: a(i)
            a(f's_branch {back}')
        self.tail = []
        for t in self.tails: t()
        self.tails = []

    def stamp(self, k, ahead=0):
        if not self.opt.get('stamps'): return
        a = self.a
        l = a.newlabel('Lst')
        a(f'''s_cmp_lg_u32 s{sSTEP}, {self.opt['stamps'] + ahead}
              s_cbranch_scc1 {l}
              {self.opt.get('clock', 's_memtime')} s[{sST+2*k}:{sST+2*k+1}]
              s_waitcnt lgkmcnt(0)''')
        a.label(l)

    def mark(self, k):
        if not self.opt.get('prof'): return
        self.a(f's_memrealtime s[{sST+2*k}:{sST+2*k+1}]')
        self.a('s_waitcnt lgkmcnt(0)')

    def dump_stamps(self):
        self.mark(3)
        if not (self.opt.get('stamps') or self.opt.get('prof')): return
        a = self.a
        if self.opt.get('dbgout'):
            l = a.newlabel('Ldo')
            a(f'''s_and_b32 s{sT0}, s{sC}, 15
                  s_or_b32 s{sT0}, s{sT0}, s{sJ}
                  s_or_b32 s{sT0}, s{sT0}, s{sW}
                  s_cmp_lg_u32 s{sT0}, 0
                  s_cbranch_scc1 {l}
                  s_cmp_ge_u32 s{sC}, 16
                  s_cselect_b32 s{sT0}, s{sST+2}, s{sST+4}
                  s_cselect_b32 s{sT2}, 56, 48
                  s_sub_u32 s{sT0}, s{sT0}, s{sST}
                  s_sub_u32 s{sT1}, s{sST+6}, s{sST}
                  s_mov_b64 exec, 1
                  v_mov_b32 v2, s{sT0}
                  v_mov_b32 v3, s{sT1}
                  v_mov_b32 v4, s{sT2}
                  buffer_store_dwordx2 v[2:3], v4, s[{sDBG}:{sDBG+3}], 0 offen
                  s_mov_b64 exec, -1''')
            a.label(l)
        a(f'''s_lshl_b32 s{sT0}, s{sJ}, 5
              s_add_u32 s{sT0}, s{sT0}, s{sC}
              s_lshl_b32 s{sT0}, s{sT0}, 3
              s_add_u32 s{sT0}, s{sT0}, s{sW}
              s_lshl_b32 s{sT0}, s{sT0}, 6
              s_add_u32 s{sT0}, s{sT0}, {WS_DBG + 0x100000}
              s_mov_b64 exec, -1
              v_mov_b32 v2, 0''')
        for k in range(NSTAMP):
            a(f'v_mov_b32 v3, s{sST+2*k}')
            a(f'buffer_store_dword v3, v2, s[{sWS}:{sWS+3}], s{sT0} offen offset:{4*k}')
        for k in range(4):
            a(f'v_mov_b32 v3, s{98+k}')
            a(f'buffer_store_dword v3, v2, s[{sWS}:{sWS+3}], s{sT0} offen offset:{4*(8+k)}')
        a('s_waitcnt vmcnt(0)')

    def retry(self, label, kind=None):
        a = self.a
        if kind is not None and self.opt.get('stamps'):
            a(f's_add_u32 s{98+kind}, s{98+kind}, 1')
        a(f'''s_sub_u32 s{sBUD}, s{sBUD}, 1
              s_cbranch_scc0 {label}
              s_mov_b32 s{sBUD}, 0''')

    def slots(self):
        a = self.a
        a(f'''s_and_b32 s{sT0}, s{sSTEP}, 3
              s_add_u32 s{sT1}, s{sSTEP}, 1
              s_and_b32 s{sT1}, s{sT1}, 3
              s_xor_b32 s{sT2}, s{sT0}, 2
              s_lshr_b32 s{sT3}, s{sJ}, 1
              s_mul_i32 s{sT3}, s{sT3}, 10240
              s_add_u32 s{sT3}, s{sT3}, {WS_RA}
              s_mul_i32 s{sA_N}, s{sT1}, {RA_SLOT}
              s_add_u32 s{sA_N}, s{sA_N}, s{sT3}
              s_mul_i32 s{sA_R}, s{sT2}, {RA_SLOT}
              s_add_u32 s{sA_R}, s{sA_R}, s{sT3}
              s_mul_i32 s{sT3}, s{sH}, 9216
              s_add_u32 s{sT3}, s{sT3}, {WS_RB}
              s_mul_i32 s{sB_C}, s{sT0}, {RB_SLOT}
              s_add_u32 s{sB_C}, s{sB_C}, s{sT3}
              s_mul_i32 s{sB_R}, s{sT2}, {RB_SLOT}
              s_add_u32 s{sB_R}, s{sB_R}, s{sT3}
              s_and_b32 s{sT0}, s{sCS}, 255
              s_mul_i32 s{sT1}, s{sT0}, 86
              s_lshr_b32 s{sT1}, s{sT1}, 8
              s_mul_i32 s{sC_RD}, s{sT0}, {RC_SLOT}
              s_mul_i32 s{sT2}, s{sT1}, {0x200000 - 3*RC_SLOT}
              s_add_u32 s{sC_RD}, s{sC_RD}, s{sT2}
              s_add_u32 s{sC_RD}, s{sC_RD}, {WS_RC}
              s_xor_b32 s{sT1}, s{sPOL}, s{sT1}
              s_and_b32 s{sT1}, s{sT1}, 1
              s_lshl_b32 s{sT1}, s{sT1}, 13
              s_add_u32 s{sC_RD}, s{sC_RD}, s{sT1}
              s_lshl_b32 s{sT3}, s{sH}, 8
              s_add_u32 s{sC_W}, s{sC_RD}, s{sT3}
              s_lshl_b32 s{sPOR}, s{sCS}, 8
              s_and_b32 s{sPOR}, s{sPOR}, 0x10000
              s_xor_b32 s{sPADD}, s{sPOR}, 0x10000
              s_mul_i32 s{sO_C}, s{sSTEP}, {32*12288}
              s_add_u32 s{sO_C}, s{sO_C}, {WS_O}''')

    def next_step(self):
        a = self.a
        a(f'''s_add_u32 s{sSTEP}, s{sSTEP}, 1
              s_add_u32 s{sCS}, s{sCS}, 1
              s_and_b32 s{sT0}, s{sCS}, 255
              s_xor_b32 s{sT1}, s{sCS}, {256 + RC_N}
              s_cmp_eq_u32 s{sT0}, {RC_N}
              s_cselect_b32 s{sCS}, s{sT1}, s{sCS}''')
        self.slots()

    def load_pair(self, WA, WB, nks, voff, rowstride, tmp):
        a = self.a
        items = []
        for ks in range(nks):
            for R in range(8):
                hi, p = R >> 2, R & 3
                b, tt = p & 1, p >> 1
                d = 64 * ks + 32 * hi + 8 * b + 2 * tt
                items.append((WA + ks * 8 + R, WB + ks * 8 + R, d))
        def issue(it):
            ra, rb, d = it
            a(f's_mov_b32 s{sT0}, {d * rowstride}')
            a(f'buffer_load_dword v{ra}, v{voff}, s[{sT}:{sT+3}], s{sT0} offen' + self.wnt)
            a(f's_mov_b32 s{sT1}, {(d + 1) * rowstride}')
            a(f'buffer_load_dword v{rb}, v{voff}, s[{sT}:{sT+3}], s{sT1} offen' + self.wnt)
        def fix(it):
            ra, rb, d = it
            a(f'v_perm_b32 v{tmp}, v{rb}, v{ra}, s{sSELLO}')
            a(f'v_perm_b32 v{rb}, v{rb}, v{ra}, s{sSELHI}')
            a(f'v_mov_b32 v{ra}, v{tmp}')
        groups = [items[i:i + 8] for i in range(0, len(items), 8)]
        groups = [items[i:i + 4] for i in range(0, len(items), 4)]
        depth = 7
        for gi in range(min(depth, len(groups))):
            for it in groups[gi]: issue(it)
        for gi in range(len(groups)):
            inflight = min(len(groups), gi + depth) - gi - 1
            a(f's_waitcnt vmcnt({8 * inflight})')
            for it in groups[gi]: fix(it)
            if gi + depth < len(groups):
                for it in groups[gi + depth]: issue(it)

    def load_single(self, W, nks, voff, vsel, rowstride, tmps):
        a = self.a
        items = []
        for ks in range(nks):
            for R in range(8):
                hi, p = R >> 2, R & 3
                b, tt = p & 1, p >> 1
                items.append((W + ks * 8 + R, 64 * ks + 32 * hi + 8 * b + 2 * tt))
        groups = [items[i:i + 4] for i in range(0, len(items), 4)]
        depth = 7
        def issue(gi):
            for k, (r, d) in enumerate(groups[gi]):
                t = tmps + (gi % depth) * 4 + k
                a(f's_mov_b32 s{sT0}, {d * rowstride}')
                a(f'buffer_load_dword v{r}, v{voff}, s[{sT}:{sT+3}], s{sT0} offen' + self.wnt)
                a(f's_mov_b32 s{sT1}, {(d + 1) * rowstride}')
                a(f'buffer_load_dword v{t}, v{voff}, s[{sT}:{sT+3}], s{sT1} offen' + self.wnt)
        for gi in range(min(depth, len(groups))): issue(gi)
        for gi in range(len(groups)):
            inflight = min(len(groups), gi + depth) - gi - 1
            a(f's_waitcnt vmcnt({8 * inflight})')
            for k, (r, d) in enumerate(groups[gi]):
                t = tmps + (gi % depth) * 4 + k
                a(f'v_perm_b32 v{r}, v{t}, v{r}, v{vsel}')
            if gi + depth < len(groups): issue(gi + depth)

    def lanes(self, al):
        a = self.a
        self.vL, self.vN, self.vQ = al(), al(), al()
        self.vT0, self.vT1, self.vT2 = al(), al(), al()
        self.vMask = 0
        a(f'''v_and_b32 v{self.vL}, 63, v0
              v_and_b32 v{self.vN}, 15, v0
              v_bfe_u32 v{self.vQ}, v0, 4, 2
              v_mov_b32 v0, 0xfffe0000''')

    def frag_addr(self, dst):
        a = self.a
        a(f'''v_lshlrev_b32 v{dst}, 8, v{self.vQ}
              v_bfe_u32 v{self.vT0}, v{self.vN}, 1, 1
              v_lshl_add_u32 v{dst}, v{self.vT0}, 7, v{dst}
              v_lshrrev_b32 v{self.vT0}, 2, v{self.vN}
              v_lshl_add_u32 v{dst}, v{self.vT0}, 5, v{dst}
              v_and_b32 v{self.vT0}, 1, v{self.vN}
              v_lshl_add_u32 v{dst}, v{self.vT0}, 4, v{dst}''')

    def idx_reg(self, dst):
        a = self.a
        a(f'''v_and_b32 v{self.vT0}, 2, v{self.vN}
              v_cmp_eq_u32 vcc, 2, v{self.vT0}
              v_mov_b32 v{dst}, 0x44444444
              v_mov_b32 v{self.vT0}, 0xeeeeeeee
              s_nop 1
              v_cndmask_b32 v{dst}, v{dst}, v{self.vT0}, vcc''')

    def wrow_lane(self, dst, rowstride):
        a = self.a
        a(f'''v_lshrrev_b32 v{self.vT0}, 1, v{self.vQ}
              v_lshlrev_b32 v{self.vT0}, 4, v{self.vT0}
              v_and_b32 v{self.vT1}, 1, v{self.vQ}
              v_lshl_add_u32 v{self.vT0}, v{self.vT1}, 2, v{self.vT0}
              s_mov_b32 s{sT0}, {rowstride}
              v_mul_lo_u32 v{dst}, v{self.vT0}, s{sT0}''')

    def wait_all_registered(self):
        a = self.a
        a('s_barrier')
        w = a.newlabel('Lp0')
        a(f's_cmp_lg_u32 s{sW}, 0')
        a(f's_cbranch_scc1 {w}')
        wait_registered(a, self.opt, self.vT0, self.vT1, self.vL, True)
        a(f'''s_lshl_b32 s{sPOL}, s{sPOL}, 1
              s_or_b32 s{sPOL}, s{sPOL}, s{sMIX}
              v_mov_b32 v{self.vT0}, s{sPOL}
              v_mov_b32 v{self.vT1}, {LR + 64}
              ds_write_b32 v{self.vT1}, v{self.vT0}
              s_waitcnt lgkmcnt(0)''')
        a.label(w)
        a(f'''s_barrier
              v_mov_b32 v{self.vT1}, {LR + 64}
              ds_read_b32 v{self.vT0}, v{self.vT1}
              s_waitcnt lgkmcnt(0)
              v_readfirstlane_b32 s{sPOL}, v{self.vT0}
              s_and_b32 s{sMIX}, s{sPOL}, 1
              s_lshr_b32 s{sPOL}, s{sPOL}, 1''')
        if self.opt.get('pol') is not None: pass
        self.slots()

    def wait_tiles(self, seg, first, nflags):
        if not self.opt.get('fused'): return
        a = self.a
        lp, ok, skip = a.newlabel('Lwt'), a.newlabel('Lwtok'), a.newlabel('Lwts')
        T0, T1 = self.vT0, self.vT1
        a(f'''s_and_b32 s{sT0}, s{seg}, 7
              s_cbranch_scc1 {skip}
              s_lshr_b32 s{sT0}, s{seg}, 3
              s_mul_i32 s{sT0}, s{sT0}, 48
              s_lshl_b32 s{sT1}, s{sJ}, 9
              s_add_u32 s{sT0}, s{sT0}, s{sT1}
              s_and_b32 s{sT1}, s{sH}, 3
              s_lshl_b32 s{sT1}, s{sT1}, 2
              s_add_u32 s{sT0}, s{sT0}, s{sT1}
              s_add_u32 s{sT0}, s{sT0}, {WS_FLAG + 16*first}
              v_lshlrev_b32 v{T1}, 4, v{self.vL}
              s_mov_b64 exec, {(1 << nflags) - 1}''')
        a.label(lp)
        a(f'''buffer_load_dword v{T0}, v{T1}, s[{sWS}:{sWS+3}], s{sT0} offen sc1
              s_waitcnt vmcnt(0)
              v_cmp_eq_u32 vcc, 0, v{T0}
              s_cbranch_vccz {ok}
              s_sleep {self.opt.get('t_sleep', 2)}''')
        self.retry(lp)
        a.label(ok)
        a('s_mov_b64 exec, -1')
        a.label(skip)

    def o_flag(self, back):
        if not self.opt.get('fused'): return
        a = self.a
        if self.opt.get('no_oflag'): return
        a(f'''s_lshl_b32 s{sT0}, s{sJ}, 4
              s_add_u32 s{sT0}, s{sT0}, s{sC}
              s_lshl_b32 s{sT0}, s{sT0}, 7
              s_add_u32 s{sT0}, s{sT0}, {WS_OFLAG}
              s_add_u32 s{sT1}, s{sSTEP}, {1 - back}
              v_mov_b32 v{self.vT0}, s{sT1}
              v_mov_b32 v{self.vT1}, 0
              s_mov_b64 exec, 1''')
        a(f'buffer_store_dword v{self.vT0}, v{self.vT1}, s[{sWS}:{sWS+3}], s{sT0} offen sc1')
        a('s_mov_b64 exec, -1')

    def poll2(self, vOff, soff, lds, sets, kind, gap):
        a = self.a
        t, t2 = self.vT0, self.vT1
        n = len(sets)
        def issue(R):
            a(f'''buffer_load_dwordx4 v[{R}:{R+3}], v{vOff}, s[{sWS}:{sWS+3}], s{soff} offen sc1
                  buffer_load_dwordx4 v[{R+4}:{R+7}], v{vOff}, s[{sWS}:{sWS+3}], s{soff} offen offset:1024 sc1''')
        def check(R, br):
            a(f'''ds_write_b128 v{vOff}, v[{R}:{R+3}] offset:{lds}
                  ds_write_b128 v{vOff}, v[{R+4}:{R+7}] offset:{lds+1024}
                  v_max3_u32 v{t}, v{R}, v{R+1}, v{R+2}
                  v_max3_u32 v{t2}, v{R+3}, v{R+4}, v{R+5}
                  v_max3_u32 v{t}, v{t}, v{R+6}, v{R+7}
                  v_max_u32 v{t}, v{t}, v{t2}
                  v_cmp_eq_u32 vcc, -1, v{t}
                  {br}''')
        lp, ok = a.newlabel('Lp'), a.newlabel('Lpok')
        for k in range(n):
            issue(sets[k])
            if gap and k < n - 1: a(f's_sleep {gap}')
        a(f's_waitcnt vmcnt({2 * (n - 1)})')
        if kind == 0 and self.opt.get('fine'): self.stamp(3)
        check(sets[0], f's_cbranch_vccnz {lp}')
        a.label(ok)
        def tail():
            back = a.newlabel('Lpb')
            a.label(lp)
            for k in range(n):
                if self.opt.get('stamps'): a(f's_add_u32 s{98+kind}, s{98+kind}, 1')
                a('s_mov_b64 exec, vcc')
                issue(sets[k])
                a(f's_waitcnt vmcnt({2 * (n - 1)})')
                check(sets[(k + 1) % n], f's_cbranch_vccz {back}')
            self.retry(lp)
            a.label(back)
            a('s_mov_b64 exec, -1')
            a(f's_branch {ok}')
        self.tails.append(tail)

    def a_poll(self, vAoff, sets, first=False):
        a = self.a
        if first:
            a(f's_lshr_b32 s{sA_P}, s{sJ}, 1')
            a(f's_mul_i32 s{sA_P}, s{sA_P}, 10240')
            a(f's_add_u32 s{sA_P}, s{sA_P}, {WS_RA}')
        else:
            a(f's_mov_b32 s{sA_P}, s{sA_N}')
            self.next_step()
        a('s_barrier')
        if self.opt.get('a_first'): a(f"s_sleep {self.opt['a_first']}")
        self.poll2(vAoff, sA_P, LM, sets[:self.opt.get('a_depth', 1)], 2, self.opt.get('a_gap', 0))
        a('s_waitcnt lgkmcnt(0)')
        if not first: self.stamp(4, 1)
        a('s_barrier')

    def mem0_load(self, vAoff, R):
        a = self.a
        srd(a, ptr(1), 10240)
        T0, T1 = self.vT0, self.vT1
        a(f'''v_bfe_u32 v{T0}, v{vAoff}, 4, 3
              v_mul_u32_u24 v{T0}, 1280, v{T0}
              v_lshrrev_b32 v{T1}, 7, v{vAoff}
              v_lshl_add_u32 v{T0}, v{T1}, 4, v{T0}
              buffer_load_dwordx4 v[{R}:{R+3}], v{T0}, s[{sT}:{sT+3}], 0 offen
              buffer_load_dwordx4 v[{R+4}:{R+7}], v{T0}, s[{sT}:{sT+3}], 0 offen offset:128
              s_waitcnt vmcnt(0)
              ds_write_b128 v{vAoff}, v[{R}:{R+3}] offset:{LM}
              ds_write_b128 v{vAoff}, v[{R+4}:{R+7}] offset:{LM+1024}
              s_waitcnt lgkmcnt(0)''')

    def a_off(self, dst):
        a = self.a
        a(f'''s_sub_u32 s{sT0}, s{sW}, 3
              s_lshl_b32 s{sT0}, s{sT0}, 11
              v_lshlrev_b32 v{dst}, 4, v{self.vL}
              v_add_u32 v{dst}, s{sT0}, v{dst}''')

    def dma_seg_regs(self, seg_expr_sgpr):
        a = self.a
        sg = seg_expr_sgpr
        a(f'''s_lshl_b32 s{sT0}, s{sH}, 6
              s_add_u32 s{sT0}, s{sT0}, s{sg}
              s_mul_i32 s{sKQ}, s{sT0}, 12288
              s_add_u32 s{sVX}, s{sKQ}, {WS_VT}
              s_mul_i32 s{sT0}, s{sg}, 86
              s_lshr_b32 s{sT0}, s{sT0}, 8
              s_mul_i32 s{sT0}, s{sT0}, 3
              s_sub_u32 s{sT0}, s{sg}, s{sT0}
              s_mul_i32 s{sLB}, s{sT0}, {LBUF_SZ}
              s_add_u32 s{sLB}, s{sLB}, {LBUF}''')

    def dma12(self, v, base, lds, pieces):
        a = self.a
        for k in pieces:
            a(f'''s_add_u32 s{sT2}, s{sG}, {k}
                  s_and_b32 s{sT2}, s{sT2}, 3
                  s_mul_i32 s{sT2}, s{sT2}, 3072
                  s_add_u32 s{sT1}, s{sLB}, s{sT2}
                  s_add_u32 m0, s{sT1}, {lds}
                  s_add_u32 s{sT1}, s{sKQ}, s{sT2}
                  s_add_u32 s{sT1}, s{sT1}, {base}''')
            for t in range(3):
                a(f'buffer_load_dwordx4 v{v}, s[{sWS}:{sWS+3}], s{sT1} offen offset:{1024*t} sc1 lds')

    def dma_q(self, vQx):
        a = self.a
        for p in range(3):
            a(f's_add_u32 m0, s{sLB}, {LQ_OFF + p*1024}')
            a(f's_add_u32 s{sT1}, s{sKQ}, {WS_Q + p*2048}')
            a(f'buffer_load_dwordx4 v{vQx}, s[{sWS}:{sWS+3}], s{sT1} offen sc1 lds')

    def stage(self, own, rest, first, nflags):
        a = self.a
        l1, l2 = a.newlabel('Lsg'), a.newlabel('Lsg')
        def part(ahead, fn, lab, wait):
            a(f"""s_add_u32 s{sT3}, s{sSTEP}, {ahead}
                  s_cmp_ge_u32 s{sT3}, 64
                  s_cbranch_scc1 {lab}""")
            if wait: self.wait_tiles(sT3, first, nflags)
            self.dma_seg_regs(sT3)
            if not self.opt.get('no_dma'): fn()
            a.label(lab)
        if self.opt.get('own_last'):
            part(2, rest, l2, False); part(3, own, l1, True)
        else:
            part(3, own, l1, True); part(2, rest, l2, False)

    def stage_first(self, own, rest, first, nflags):
        a = self.a
        self.wait_tiles(sSTEP, first, nflags)
        for sg in range(3):
            a(f's_mov_b32 s{sT3}, {sg}')
            self.dma_seg_regs(sT3); own()
            if sg < 2: rest()
        a('s_waitcnt vmcnt(0)')

    def wo_stage(self, pairs, vFrag, vIdx, F, vCoff, RR, skip):
        a = self.a
        for ks in range(3):
            a(f'ds_read_b128 v[{F+4*ks}:{F+4*ks+3}], v{vFrag} offset:{LO + 1024*ks}')
        a(f'v_lshlrev_b32 v{self.vT0}, 3, v{self.vQ}')
        a(f'ds_read_b64 v[{RR}:{RR+1}], v{self.vT0} offset:{LR}')
        a(f's_cmp_eq_u32 s{sSTEP}, 63')
        a(f's_cbranch_scc1 {skip}')
        for ks in range(3):
            a(f's_waitcnt lgkmcnt({3-ks})')
            for (WA, WB, TA, TB, coff) in pairs:
                a(f'v_smfmac_f32_16x16x64_bf16 v[{TA}:{TA+3}], v[{F+4*ks}:{F+4*ks+3}], v[{WA+8*ks}:{WA+8*ks+7}], v{vIdx}')
                a(f'v_smfmac_f32_16x16x64_bf16 v[{TB}:{TB+3}], v[{F+4*ks}:{F+4*ks+3}], v[{WB+8*ks}:{WB+8*ks+7}], v{vIdx}')
        a('s_waitcnt lgkmcnt(0)')
        a('s_nop 5')
        for (WA, WB, TA, TB, coff) in pairs:
            self.pair_epilogue(TA, TB, RR)
            a(f'buffer_store_dword v{TA}, v{vCoff}, s[{sWS}:{sWS+3}], s{sC_W} offen offset:{coff} sc1')
            a(f'buffer_store_dword v{TB}, v{vCoff}, s[{sWS}:{sWS+3}], s{sC_W} offen offset:{coff+128} sc1')

    def pair_epilogue(self, TA, TB, RR=None):
        a = self.a
        a(f"""v_pk_add_f32 v[{TA}:{TA+1}], v[{TA}:{TA+1}], v[{TA+2}:{TA+3}]
              v_pk_add_f32 v[{TB+2}:{TB+3}], v[{TB}:{TB+1}], v[{TB+2}:{TB+3}]""")
        if RR is not None:
            a(f"""v_pk_mul_f32 v[{TA}:{TA+1}], v[{TA}:{TA+1}], v[{RR}:{RR+1}]
                  v_pk_mul_f32 v[{TB+2}:{TB+3}], v[{TB+2}:{TB+3}], v[{RR}:{RR+1}]
                  v_add_u32 v{TA}, s{sPADD}, v{TA}
                  v_add_u32 v{TA+1}, s{sPADD}, v{TA+1}
                  v_and_or_b32 v{TA}, v{TA}, v{self.vMask}, s{sPOR}
                  v_and_or_b32 v{TA+1}, v{TA+1}, v{self.vMask}, s{sPOR}
                  v_cvt_pk_bf16_f32 v{TA}, v{TA}, v{TB+2}
                  v_cvt_pk_bf16_f32 v{TB}, v{TA+1}, v{TB+3}""")
            return
        a(f"""v_cvt_pk_bf16_f32 v{TA}, v{TA}, v{TB+2}
              v_cvt_pk_bf16_f32 v{TB}, v{TA+1}, v{TB+3}
              v_min_u32 v{TA}, -2, v{TA}
              v_min_u32 v{TB}, -2, v{TB}""")

    def zero(self, r, n):
        for k in range(n): self.a(f'v_mov_b32 v{r+k}, 0')

    def c_off(self, dst, pw_sgpr_or_int):
        a = self.a
        T0 = self.vT0
        a(f'''v_lshrrev_b32 v{dst}, 3, v{self.vN}
              v_lshlrev_b32 v{dst}, 14, v{dst}
              v_bfe_u32 v{T0}, v{self.vN}, 2, 1
              v_lshl_add_u32 v{dst}, v{T0}, 6, v{dst}
              v_lshl_add_u32 v{dst}, v{self.vQ}, 4, v{dst}
              v_and_b32 v{T0}, 3, v{self.vN}
              v_lshl_add_u32 v{dst}, v{T0}, 2, v{dst}
              s_mul_i32 s{sT0}, s{sG}, 163840''')
        if isinstance(pw_sgpr_or_int, int):
            a(f's_add_u32 s{sT0}, s{sT0}, {32768*pw_sgpr_or_int}')
        else:
            a(f's_lshl_b32 s{sT1}, {pw_sgpr_or_int}, 15')
            a(f's_add_u32 s{sT0}, s{sT0}, s{sT1}')
        a(f'v_add_u32 v{dst}, s{sT0}, v{dst}')

    def wo_weights(self, WA, WB, pw, vtmp, tmp):
        a = self.a
        srd(a, ptr(5), NH * DH * DM * 2)
        self.wrow_lane(vtmp, 1280)
        a(f'''s_mul_i32 s{sT0}, s{sH}, {DH*DM*2}
              s_mul_i32 s{sT1}, s{sG}, 320
              s_add_u32 s{sT0}, s{sT0}, s{sT1}''')
        if isinstance(pw, int):
            a(f's_add_u32 s{sT0}, s{sT0}, {64*pw}')
        else:
            a(f's_lshl_b32 s{sT1}, {pw}, 6')
            a(f's_add_u32 s{sT0}, s{sT0}, s{sT1}')
        a(f'''v_lshl_add_u32 v{vtmp}, v{self.vN}, 2, v{vtmp}
              v_add_u32 v{vtmp}, s{sT0}, v{vtmp}''')
        self.load_pair(WA, WB, 3, vtmp, 1280, tmp)

    def finish(self):
        self.dump_stamps()
        self.a('s_endpgm')

    def touch_weights(self):
        a = self.a
        T0, T1 = self.vT0, self.vT1
        a(f's_mov_b32 m0, {SWEEP_LDS}')
        srd(a, ptr(4), DM * NH * DH * 2)
        a(f"""s_mov_b32 s{sT0}, 12288
              v_mul_lo_u32 v{T0}, v{self.vL}, s{sT0}
              s_mul_i32 s{sT0}, s{sH}, 384
              s_mul_i32 s{sT1}, s{sG}, 96
              s_add_u32 s{sT0}, s{sT0}, s{sT1}
              s_mul_i32 s{sT1}, s{sRED}, {64*12288}
              s_add_u32 s{sT0}, s{sT0}, s{sT1}""")
        for i in range(4):
            a(f'buffer_load_dword v{T0}, s[{sT}:{sT+3}], s{sT0} offen lds')
            a(f'buffer_load_dword v{T0}, s[{sT}:{sT+3}], s{sT0} offen offset:92 lds')
            if i < 3: a(f's_add_u32 s{sT0}, s{sT0}, {192*12288}')
        srd(a, ptr(5), NH * DH * DM * 2)
        a(f"""v_mul_u32_u24 v{T1}, 1280, v{self.vL}
              s_mul_i32 s{sT0}, s{sH}, {DH*DM*2}
              s_mul_i32 s{sT1}, s{sG}, 320
              s_add_u32 s{sT0}, s{sT0}, s{sT1}
              s_mul_i32 s{sT1}, s{sRED}, {64*1280}
              s_add_u32 s{sT0}, s{sT0}, s{sT1}""")
        for off in (0, 128, 256, 316):
            a(f'buffer_load_dword v{T1}, s[{sT}:{sT+3}], s{sT0} offen offset:{off} lds')

    def c_page_init(self, R, vLin):
        a = self.a
        a(f's_add_u32 s{sT2}, s{sCI}, 4096')
        for k in range(5):
            a(f'buffer_store_dwordx4 v[{R}:{R+3}], v{vLin}, s[{sWS}:{sWS+3}], s{sT2 if k == 4 else sCI} offen offset:{1024*(k&3)} sc1')
        a(f's_add_u32 s{sCI}, s{sCI}, 0x200000')

    def init_job(self, R):
        a = self.a
        vLin = R + 20
        sU = sA_P
        a(f"""s_lshl_b32 s{sU}, s{sJ}, 4
              s_add_u32 s{sU}, s{sU}, s{sC}
              s_mul_i32 s{sU}, s{sU}, 3
              s_add_u32 s{sU}, s{sU}, s{sRED}
              v_lshlrev_b32 v{vLin}, 4, v{self.vL}""")
        for k in range(4): a(f'v_mov_b32 v{R+k}, -1')
        for k in range(4): a(f'v_mov_b32 v{R+4+k}, 0')
        l1, l2 = a.newlabel('Lin'), a.newlabel('Lin')
        a(f"""s_cmp_ge_u32 s{sU}, 368
              s_cbranch_scc1 {l1}
              s_lshl_b32 s{sT0}, s{sU}, 12
              s_add_u32 s{sT0}, s{sT0}, {WS_RA}""")
        l0 = a.newlabel('Lin')
        a(f"""s_cmp_lt_u32 s{sU}, 20
              s_cbranch_scc1 {l0}""")
        for k in range(4):
            a(f'buffer_store_dwordx4 v[{R}:{R+3}], v{vLin}, s[{sWS}:{sWS+3}], s{sT0} offen offset:{1024*k} sc1')
        a(f's_branch {l1}')
        a.label(l0)
        srd(a, ptr(1), 10240)
        a(f's_lshl_b32 s{sT1}, s{sU}, 12')
        for k in range(4):
            D = R + 24 + 4*k
            a(f"""s_add_u32 s{sT2}, s{sT1}, {1024*k}
                  s_lshr_b32 s{sT3}, s{sT2}, 10
                  s_mul_i32 s{sT3}, s{sT3}, 205
                  s_lshr_b32 s{sT3}, s{sT3}, 11
                  s_mul_i32 s{sT3}, s{sT3}, 10240
                  s_sub_u32 s{sT2}, s{sT2}, s{sT3}
                  s_lshr_b32 s{sT2}, s{sT2}, 3
                  v_lshrrev_b32 v{R+8}, 2, v{self.vN}
                  v_and_b32 v{R+9}, 1, v{self.vN}
                  v_lshl_add_u32 v{R+8}, v{R+8}, 1, v{R+9}
                  v_mul_u32_u24 v{R+8}, 1280, v{R+8}
                  v_lshl_add_u32 v{R+8}, v{self.vQ}, 5, v{R+8}
                  v_bfe_u32 v{R+9}, v{self.vN}, 1, 1
                  v_lshl_add_u32 v{R+8}, v{R+9}, 4, v{R+8}
                  buffer_load_dwordx4 v[{D}:{D+3}], v{R+8}, s[{sT}:{sT+3}], s{sT2} offen""")
        a('s_waitcnt vmcnt(0)')
        for k in range(4):
            D = R + 24 + 4*k
            for e in range(4): a(f'v_min_u32 v{D+e}, -2, v{D+e}')
            a(f'buffer_store_dwordx4 v[{D}:{D+3}], v{vLin}, s[{sWS}:{sWS+3}], s{sT0} offen offset:{1024*k} sc1')
        a('s_waitcnt vmcnt(0)')
        a.label(l1)
        a(f"""s_sub_u32 s{sT0}, s{sU}, 4
              s_cmp_ge_u32 s{sT0}, 252
              s_cbranch_scc1 {l2}
              s_lshl_b32 s{sT0}, s{sU}, 10
              s_add_u32 s{sT0}, s{sT0}, {WS_FLAG}
              buffer_store_dwordx4 v[{R+4}:{R+7}], v{vLin}, s[{sWS}:{sWS+3}], s{sT0} offen sc1""")
        a.label(l2)

    def arrive_init(self, R):
        t1, t2 = R + 14, R + 15
        self.a(f"""s_waitcnt vmcnt(0)
              v_mov_b32 v{t1}, 1
              v_mov_b32 v{t2}, 128
              s_mov_b64 exec, 1
              buffer_atomic_add v{t1}, v{t2}, s[{sDBG}:{sDBG+3}], 0 offen sc1
              s_mov_b64 exec, -1""")

    def role_qk(self):
        a = self.a
        al = Alloc(1, 256)
        self.lanes(al)
        WA, WB = al(80, 4), al(80, 4)
        M = al(40, 4)
        TA, TB = al(4, 4), al(4, 4)
        SEL = al(4, 4)
        RC = al(2)
        AC2 = al(4, 2)
        vFrag, vIdx, vB, vAst, vSent = al(3, 1), al(), al(), al(), al(2)
        T0, T1, T2 = self.vT0, self.vT1, self.vT2
        a(f'v_lshlrev_b32 v{vFrag}, 4, v{self.vL}'); self.idx_reg(vIdx)
        a(f'v_add_u32 v{vFrag+1}, 4096, v{vFrag}')
        a(f'v_add_u32 v{vFrag+2}, 8192, v{vFrag}')
        a(f'''s_mul_i32 s{sT2}, s{sG}, 3
              s_add_u32 s{sT2}, s{sT2}, s{sW}
              s_cmp_ge_u32 s{sT2}, 6
              s_cselect_b32 s{sT}, s{ptr(3)}, s{ptr(2)}
              s_cselect_b32 s{sT+1}, s{ptr(3)+1}, s{ptr(2)+1}
              s_cselect_b32 s{sT1}, 6, 0
              s_lshl_b32 s{sT3}, s{sT2}, 9
              s_sub_u32 s{sT2}, s{sT2}, s{sT1}
              s_mov_b32 s{sT+2}, {DM*NH*DH*2}
              s_mov_b32 s{sT+3}, 0x20000
              s_lshl_b32 s{sT2}, s{sT2}, 6
              v_lshlrev_b32 v{vB}, 7, v{self.vQ}
              v_lshl_add_u32 v{vB}, v{self.vN}, 2, v{vB}
              v_add_u32 v{vB}, s{sT3}, v{vB}''')
        vW = M
        self.wrow_lane(vW, 12288)
        a(f'''v_lshlrev_b32 v{T0}, 1, v{self.vN}
              v_and_b32 v{T1}, 0x13, v{T0}
              v_and_b32 v{T2}, 4, v{T0}
              v_lshl_add_u32 v{T1}, v{T2}, 1, v{T1}
              v_and_b32 v{T2}, 8, v{T0}
              v_lshrrev_b32 v{T2}, 1, v{T2}
              v_add_u32 v{T1}, v{T1}, v{T2}
              v_lshl_add_u32 v{vW}, v{T1}, 1, v{vW}
              s_mul_i32 s{sT0}, s{sH}, 384
              s_add_u32 s{sT0}, s{sT0}, s{sT2}
              v_add_u32 v{vW}, s{sT0}, v{vW}''')
        self.load_pair(WA, WB, 10, vW, 12288, T2)
        a(f'''s_and_b32 s{sT0}, s{sJ}, 1
              s_lshl_b32 s{sT0}, s{sT0}, 4
              s_add_u32 s{sT0}, s{sT0}, s{sC}
              s_lshl_b32 s{sT1}, s{sW}, 5
              s_add_u32 s{sT0}, s{sT0}, s{sT1}
              s_lshr_b32 s{sRED}, s{sT0}, 1
              s_and_b32 s{sT2}, s{sT0}, 1
              s_lshl_b32 s{sT0}, s{sRED}, 8
              s_lshl_b32 s{sT3}, s{sT2}, 4
              s_add_u32 s{sT0}, s{sT0}, s{sT3}
              s_lshl_b32 s{sT1}, s{sRED}, 14
              s_lshl_b32 s{sT3}, s{sT2}, 7
              s_add_u32 s{sT1}, s{sT1}, s{sT3}
              v_lshlrev_b32 v{RC}, 8, v{self.vQ}
              v_lshrrev_b32 v{T0}, 3, v{self.vN}
              v_lshl_add_u32 v{RC}, v{T0}, 10, v{RC}
              v_and_b32 v{T0}, 7, v{self.vN}
              v_lshl_add_u32 v{RC}, v{T0}, 4, v{RC}
              v_add_u32 v{RC}, s{sT1}, v{RC}
              v_add_u32 v{RC+1}, 4096, v{RC}
              v_bfe_u32 v{T0}, v{self.vN}, 2, 1
              v_lshlrev_b32 v{vAst}, 5, v{T0}
              v_and_b32 v{T0}, 3, v{self.vN}
              v_lshl_add_u32 v{vAst}, v{T0}, 6, v{vAst}
              v_lshl_add_u32 v{vAst}, v{self.vQ}, 3, v{vAst}
              v_add_u32 v{vAst}, s{sT0}, v{vAst}
              s_mov_b32 s{sMA}, 0x00ff00ff
              s_mov_b32 s{sMA+1}, 0''')
        a(f'''s_nop 0
              v_mov_b32 v{vSent}, -1
              v_mov_b32 v{vSent+1}, -1''')
        for p in range(4):
            a(f'''v_mov_b32 v{SEL+p}, 0
                  v_mov_b32 v{T0}, 0x3f80
                  v_cmp_eq_u32 vcc, {2*p}, v{self.vN}
                  s_nop 1
                  v_cndmask_b32 v{SEL+p}, v{SEL+p}, v{T0}, vcc
                  v_mov_b32 v{T0}, 0x3f800000
                  v_cmp_eq_u32 vcc, {2*p+1}, v{self.vN}
                  s_nop 1
                  v_cndmask_b32 v{SEL+p}, v{SEL+p}, v{T0}, vcc''')
        self.zero(TA, 8)
        self.mark(1)
        self.wait_all_registered()
        a('s_barrier')
        self.mark(2)
        loop, end = a.newlabel('Lqk'), a.newlabel('Lqkend')
        a('s_barrier')
        a.label(loop)
        a('s_barrier')
        self.stamp(0)
        for ks in range(10):
            a(f'ds_read_b128 v[{M+4*ks}:{M+4*ks+3}], v{vFrag} offset:{LM + 1024*ks}')
        for ks in range(10):
            a(f's_waitcnt lgkmcnt({9-ks})')
            a(f'v_smfmac_f32_16x16x64_bf16 v[{TA}:{TA+3}], v[{M+4*ks}:{M+4*ks+3}], v[{WA+8*ks}:{WA+8*ks+7}], v{vIdx}')
            a(f'v_smfmac_f32_16x16x64_bf16 v[{TB}:{TB+3}], v[{M+4*ks}:{M+4*ks+3}], v[{WB+8*ks}:{WB+8*ks+7}], v{vIdx}')
        a('s_nop 7')
        self.pair_epilogue(TA, TB)
        self.lstore([f'buffer_store_dword v{TA}, v{vB}, s[{sWS}:{sWS+3}], s{sB_C} offen',
                     f'buffer_store_dword v{TB}, v{vB}, s[{sWS}:{sWS+3}], s{sB_C} offen offset:64'])
        a('s_barrier')
        self.stamp(1)
        def resets():
            self.lstore([f'buffer_store_dword v{vSent}, v{vB}, s[{sWS}:{sWS+3}], s{sB_R} offen',
                         f'buffer_store_dword v{vSent}, v{vB}, s[{sWS}:{sWS+3}], s{sB_R} offen offset:64'])
            sk = a.newlabel('Lqar')
            a(f's_cmp_ge_u32 s{sRED}, 40')
            a(f's_cbranch_scc1 {sk}')
            a(f's_mov_b64 exec, s[{sMA}:{sMA+1}]')
            self.lstore([f'buffer_store_dwordx2 v[{vSent}:{vSent+1}], v{vAst}, s[{sWS}:{sWS+3}], s{sA_R} offen'])
            a('s_mov_b64 exec, -1')
            a.label(sk)
        self.zero(TA, 8)
        a('s_barrier')
        resets()
        if self.opt.get('prof'):
            a(f'''s_memrealtime s[{sST+10}:{sST+11}]
                  s_lshl_b32 s{sT0}, s{sJ}, 4
                  s_add_u32 s{sT0}, s{sT0}, s{sC}
                  s_lshl_b32 s{sT0}, s{sT0}, 2
                  s_add_u32 s{sT0}, s{sT0}, s{sW}
                  s_lshl_b32 s{sT0}, s{sT0}, 6
                  s_add_u32 s{sT0}, s{sT0}, s{sSTEP}
                  s_lshl_b32 s{sT0}, s{sT0}, 2
                  s_add_u32 s{sT0}, s{sT0}, {WS_DBG + 0x200000}
                  v_mov_b32 v{T1}, 0
                  s_waitcnt lgkmcnt(0)
                  v_mov_b32 v{T0}, s{sST+10}
                  buffer_store_dword v{T0}, v{T1}, s[{sWS}:{sWS+3}], s{sT0} offen
                  s_memtime s[{sST+10}:{sST+11}]
                  s_add_u32 s{sT0}, s{sT0}, 0x40000
                  s_waitcnt lgkmcnt(0)
                  v_mov_b32 v{T0}, s{sST+10}
                  buffer_store_dword v{T0}, v{T1}, s[{sWS}:{sWS+3}], s{sT0} offen
                  s_add_u32 s{sT0}, s{sT0}, 0x40000
                  v_mov_b32 v{T0}, s{sBUD}
                  buffer_store_dword v{T0}, v{T1}, s[{sWS}:{sWS+3}], s{sT0} offen''')
        a('s_barrier')
        if self.opt.get('trace2'): a(f's_memtime s[{sST+0}:{sST+1}]')
        a(f'''s_cmp_eq_u32 s{sSTEP}, 63
              s_cbranch_scc1 {end}''')
        ok, fin = a.newlabel('LpCok'), a.newlabel('LpCfin')
        ACC = AC2
        entry = {(h, ph): a.newlabel('LpC') for h in range(2) for ph in range(2)}
        nored = a.newlabel('Lqnr')
        a(f'''s_cmp_ge_u32 s{sRED}, 40
              s_cbranch_scc1 {nored}
              s_bitcmp1_b32 s{sCS}, 8
              s_cbranch_scc1 {entry[(1,1)]}_in''')
        for half in (1,):
            nl = 4
            for ph in range(2):
                lp = entry[(half, ph)]
                a.label(lp + '_in')
                if self.opt.get('c_sleep'): a(f"s_sleep {self.opt['c_sleep']}")
                if self.opt.get('fine'): self.stamp(5)
                a.label(lp)
                for t in range(nl):
                    reg, off = (RC + (t >> 1), 2048 * (t & 1)) if half else (RC + (t >> 2), 1024 * (t & 3))
                    a(f'buffer_load_dwordx4 v[{M+4*t}:{M+4*t+3}], v{reg}, s[{sWS}:{sWS+3}], s{sC_RD} offen offset:{off} sc1')
                a('s_mov_b64 exec, -1')
                op3 = (lambda d, x, y, z: f'v_bitop3_b32 v{d}, v{x}, v{y}, v{z} bitop3:0x80') if ph else (lambda d, x, y, z: f'v_or3_b32 v{d}, v{x}, v{y}, v{z}')
                for t in range(nl):
                    a(f's_waitcnt vmcnt({nl-1-t})')
                    if t == 0 and self.opt.get('fine'): self.stamp(2)
                    a(f'v_mfma_f32_16x16x32_bf16 v[{ACC}:{ACC+3}], v[{SEL}:{SEL+3}], v[{M+4*t}:{M+4*t+3}], ' + ('0' if t == 0 else f'v[{ACC}:{ACC+3}]'))
                    if t == 0:
                        a(op3(T0, M, M+1, M+2)); a(op3(T0, T0, M+3, M+3))
                    else:
                        a(op3(T0, T0, M+4*t, M+4*t+1)); a(op3(T0, T0, M+4*t+2, M+4*t+3))
                rt, bk = a.newlabel('LpCr'), a.newlabel('LpCb')
                a(f'''v_and_b32 v{T0}, 1, v{T0}
                      v_cmp_ne_u32 vcc, {ph}, v{T0}
                      s_cbranch_vccnz {rt}''')
                a.label(bk)
                if self.opt.get('trace2'): a(f's_memtime s[{sST+2}:{sST+3}]')
                def tail(rt=rt, bk=bk, lp=lp):
                    a.label(rt)
                    a('s_mov_b64 exec, vcc')
                    self.retry(lp, 3)
                    a('s_mov_b64 exec, -1')
                    a(f's_branch {bk}')
                self.tails.append(tail)
                a('s_nop 2')
                if half:
                    for k in range(4):
                        a(f'v_add_f32_dpp v{ACC+k}, v{ACC+k}, v{ACC+k} row_ror:8 row_mask:0xf bank_mask:0xf')
                self.stamp(3)
                a(f'''v_cvt_pk_bf16_f32 v{ACC}, v{ACC}, v{ACC+1}
                      v_cvt_pk_bf16_f32 v{ACC+1}, v{ACC+2}, v{ACC+3}
                      s_mov_b64 exec, s[{sMA}:{sMA+1}]
                      v_min_u32 v{ACC}, -2, v{ACC}
                      v_min_u32 v{ACC+1}, -2, v{ACC+1}''')
                self.lstore([f'buffer_store_dwordx2 v[{ACC}:{ACC+1}], v{vAst}, s[{sWS}:{sWS+3}], s{sA_N} offen'])
                if not (half and ph): a(f's_branch {fin}')
        a(f's_branch {fin}')
        a.label(nored)
        a('s_waitcnt vmcnt(0)')
        a.label(fin)
        if self.opt.get('dump_mem'):
            l = a.newlabel('Ldm')
            a(f'''s_cmp_lg_u32 s{sJ}, 0
                  s_cbranch_scc1 {l}
                  s_mul_i32 s{sT0}, s{sSTEP}, 10240
                  s_add_u32 s{sT0}, s{sT0}, {WS_DBG}
                  buffer_store_dwordx2 v[{ACC}:{ACC+1}], v{vAst}, s[{sWS}:{sWS+3}], s{sT0} offen''')
            a.label(l)
        a('s_mov_b64 exec, -1')
        a('s_barrier')
        if self.opt.get('trace2'): a(f's_memtime s[{sST+4}:{sST+5}]')
        if self.opt.get('trace2'):
            a(f"""s_waitcnt lgkmcnt(0)
                  s_lshl_b32 s{sT0}, s{sJ}, 4
                  s_add_u32 s{sT0}, s{sT0}, s{sC}
                  s_lshl_b32 s{sT0}, s{sT0}, 2
                  s_add_u32 s{sT0}, s{sT0}, s{sW}
                  s_lshl_b32 s{sT0}, s{sT0}, 6
                  s_add_u32 s{sT0}, s{sT0}, s{sSTEP}
                  s_lshl_b32 s{sT0}, s{sT0}, 4
                  s_add_u32 s{sT0}, s{sT0}, {WS_DBG + 0x400000}
                  s_sub_u32 s{sT1}, s{sST+2}, s{sST}
                  v_mov_b32 v{M}, s{sT1}
                  s_sub_u32 s{sT1}, s{sST+4}, s{sST}
                  v_mov_b32 v{M+1}, s{sT1}
                  v_mov_b32 v{M+2}, s{sBUD}
                  v_mov_b32 v{T0}, 0
                  s_mov_b64 exec, 1
                  buffer_store_dwordx4 v[{M}:{M+3}], v{T0}, s[{sWS}:{sWS+3}], s{sT0} offen
                  s_mov_b64 exec, -1
                  s_nop 1""")
        self.stamp(4)
        self.next_step()
        a('s_waitcnt lgkmcnt(0)')
        a(f's_branch {loop}')
        a.label(end)
        a('s_barrier')
        self.finish()
        self.emit_tail()

    def role_v(self):
        a = self.a
        al = Alloc(1, 256)
        self.lanes(al)
        WA, WB = al(80, 4), al(80, 4)
        M = al(48, 4)
        TA, TB = al(4, 4), al(4, 4)
        F = al(12, 4); RR = al(2, 2)
        vFrag, vIdx, vB, vAoff, vV, vSent, vCoff, vOst = [al() for _ in range(8)]
        vLin = vV
        a(f"""v_lshrrev_b32 v{self.vT1}, 3, v{self.vL}
              v_lshlrev_b32 v{vOst}, 4, v{self.vT1}
              v_and_b32 v{self.vT1}, 7, v{self.vL}
              v_lshl_add_u32 v{vOst}, v{self.vT1}, 8, v{vOst}
              s_lshr_b32 s{sT0}, s{sG}, 1
              s_mul_i32 s{sT0}, s{sT0}, 192
              s_mul_i32 s{sT1}, s{sH}, 6
              s_add_u32 s{sT0}, s{sT0}, s{sT1}
              s_lshl_b32 s{sT0}, s{sT0}, 10
              s_and_b32 s{sT1}, s{sG}, 1
              s_lshl_b32 s{sT1}, s{sT1}, 7
              s_add_u32 s{sT0}, s{sT0}, s{sT1}
              v_add_u32 v{vOst}, s{sT0}, v{vOst}""")
        def o_store(back):
            if self.opt.get('no_ost'): return
            a(f's_sub_u32 s{sT0}, s{sO_C}, {back*32*12288}')
            a(f's_add_u32 s{sT1}, s{sT0}, 4096')
            for k in range(3):
                a(f'ds_read_b128 v[{F+4*k}:{F+4*k+3}], v{vLin} offset:{LOX + 1024*k}')
            for k in range(3):
                a(f's_waitcnt lgkmcnt({2-k})')
                a(f'buffer_store_dwordx4 v[{F+4*k}:{F+4*k+3}], v{vOst}, s[{sWS}:{sWS+3}], s{sT1 if k == 2 else sT0} offen offset:{2048*(k&1)} sc1')
        PX = al(8, 2)
        self.frag_addr(vFrag); self.idx_reg(vIdx)
        a(f"""v_lshlrev_b32 v{vV}, 4, v{self.vL}
              v_mov_b32 v{vSent}, -1""")
        a(f"""s_mul_i32 s{sT0}, s{sG}, 768
              s_add_u32 s{sT0}, s{sT0}, 6144
              v_lshlrev_b32 v{vB}, 5, v{self.vN}
              v_lshl_add_u32 v{vB}, v{self.vQ}, 2, v{vB}
              v_add_u32 v{vB}, s{sT0}, v{vB}""")
        srd(a, ptr(4), DM * NH * DH * 2)
        vW = M
        self.wrow_lane(vW, 12288)
        a(f"""s_mul_i32 s{sT0}, s{sH}, 384
              s_mul_i32 s{sT1}, s{sG}, 96
              s_add_u32 s{sT0}, s{sT0}, s{sT1}
              v_lshl_add_u32 v{vW}, v{self.vN}, 2, v{vW}
              v_add_u32 v{vW}, s{sT0}, v{vW}""")
        self.load_pair(WA, WB, 10, vW, 12288, self.vT2)
        self.c_off(vCoff, 4)
        self.wo_weights(M, M + 24, 4, vAoff, self.vT2)
        for k in range(12):
            a(f'ds_write_b128 v{vLin}, v[{M+4*k}:{M+4*k+3}] offset:{LW5 + 1024*k}')
        a('s_waitcnt lgkmcnt(0)')
        self.a_off(vAoff)
        self.zero(TA, 8)
        self.mark(1)
        self.wait_all_registered()
        own = lambda: self.dma12(vV, WS_VT, LV_OFF, [0])
        rest = lambda: self.dma12(vV, WS_VT, LV_OFF, [1, 2, 3])
        if not self.opt.get('early_stage'): self.stage_first(own, rest, 2, 1)
        a('s_barrier')
        self.mark(2)
        loop, end = a.newlabel('Lv'), a.newlabel('Lvend')
        self.a_poll(vAoff, [F], True)
        a.label(loop)
        self.stamp(0)
        for ks in range(10):
            a(f'ds_read_b128 v[{M+4*ks}:{M+4*ks+3}], v{vLin} offset:{LM + 1024*ks}')
        for ks in range(10):
            a(f's_waitcnt lgkmcnt({9-ks})')
            a(f'v_smfmac_f32_16x16x64_bf16 v[{TA}:{TA+3}], v[{M+4*ks}:{M+4*ks+3}], v[{WA+8*ks}:{WA+8*ks+7}], v{vIdx}')
            a(f'v_smfmac_f32_16x16x64_bf16 v[{TB}:{TB+3}], v[{M+4*ks}:{M+4*ks+3}], v[{WB+8*ks}:{WB+8*ks+7}], v{vIdx}')
            if ks == self.opt.get('v_bar', 8): a('s_barrier')
        a(f"""s_nop 7
              v_pk_add_f32 v[{TA}:{TA+1}], v[{TA}:{TA+1}], v[{TA+2}:{TA+3}]
              v_pk_add_f32 v[{TB}:{TB+1}], v[{TB}:{TB+1}], v[{TB+2}:{TB+3}]
              v_cvt_pk_bf16_f32 v{TA}, v{TA}, v{TA+1}
              v_cvt_pk_bf16_f32 v{TB}, v{TB}, v{TB+1}
              v_min_u32 v{TA}, -2, v{TA}
              v_min_u32 v{TB}, -2, v{TB}""")
        self.lstore([f'buffer_store_dword v{TA}, v{vB}, s[{sWS}:{sWS+3}], s{sB_C} offen',
                     f'buffer_store_dword v{TB}, v{vB}, s[{sWS}:{sWS+3}], s{sB_C} offen offset:16'])
        self.stamp(1)
        a('s_waitcnt vmcnt(2)')
        for k in range(12):
            a(f'ds_read_b128 v[{M+4*k}:{M+4*k+3}], v{vLin} offset:{LW5 + 1024*k}')
        self.zero(TA, 8)
        a('s_barrier')
        self.lstore([f'buffer_store_dword v{vSent}, v{vB}, s[{sWS}:{sWS+3}], s{sB_R} offen',
                     f'buffer_store_dword v{vSent}, v{vB}, s[{sWS}:{sWS+3}], s{sB_R} offen offset:16'])
        a(f"s_sleep {self.opt.get('d_sleep', 7)}" if self.opt.get('d_sleep', 7) else 's_nop 0')
        def o_prev():
            no0 = a.newlabel('Lvn0')
            a('s_waitcnt lgkmcnt(0)')
            a(f's_cmp_eq_u32 s{sSTEP}, 0')
            a(f's_cbranch_scc1 {no0}')
            o_store(1)
            a.label(no0)
        if not self.opt.get('o_late'): o_prev()
        self.stage(own, rest, 2, 1)
        if self.opt.get('o_late'): o_prev()
        if self.opt.get('fused'):
            nq = a.newlabel('Lvnq')
            a(f"""s_cmp_lt_u32 s{sSTEP}, {self.opt.get('of_all', 58)}
                  s_cbranch_scc1 {nq}
                  s_waitcnt vmcnt(0)""")
            self.o_flag(1)
            a.label(nq)
        a('s_waitcnt lgkmcnt(0)')
        self.stamp(5)
        a('s_barrier')
        self.stamp(2)
        self.wo_stage([(M, M + 24, TA, TB, 0)], vFrag, vIdx, F, vCoff, RR, end)
        self.stamp(3)
        self.zero(TA, 8)
        self.a_poll(vAoff, [F, PX, M + 40])
        a(f's_branch {loop}')
        a.label(end)
        a('s_waitcnt lgkmcnt(0)')
        a('s_barrier')
        o_store(0)
        a('s_waitcnt vmcnt(0)')
        self.o_flag(0)
        self.finish()
        self.emit_tail()

    def role_w7(self):
        a = self.a
        al = Alloc(1, 256)
        self.lanes(al)
        WV = al(80, 4)
        P = [(al(24, 4), al(24, 4), al(4, 4), al(4, 4), 0)]
        M = al(40, 4)
        TV = al(4, 4)
        SENT = al(4, 4); RR = al(2, 2)
        vFrag, vIdx, vB, vAoff, vK, vQx, vCoff, vCr = [al() for _ in range(8)]
        vSel = TV
        PX = al(24, 2)
        T0, T1 = self.vT0, self.vT1
        self.frag_addr(vFrag); self.idx_reg(vIdx)
        a(f"""v_lshlrev_b32 v{vK}, 4, v{self.vL}
              v_and_b32 v{T0}, 7, v{self.vL}
              v_lshlrev_b32 v{vQx}, 4, v{T0}
              v_lshrrev_b32 v{T0}, 5, v{self.vL}
              v_lshl_add_u32 v{vQx}, v{T0}, 10, v{vQx}
              v_bfe_u32 v{T0}, v{self.vL}, 3, 2
              v_lshl_add_u32 v{vQx}, v{T0}, 8, v{vQx}
              s_lshr_b32 s{sT0}, s{sG}, 1
              s_mul_i32 s{sT0}, s{sT0}, 6144
              s_and_b32 s{sT1}, s{sG}, 1
              s_lshl_b32 s{sT1}, s{sT1}, 7
              s_add_u32 s{sT0}, s{sT0}, s{sT1}
              v_add_u32 v{vQx}, s{sT0}, v{vQx}""")
        for k in range(4): a(f'v_mov_b32 v{SENT+k}, -1')
        a(f"""s_mul_i32 s{sT0}, s{sG}, 768
              s_add_u32 s{sT0}, s{sT0}, {6144 + 512}
              v_lshlrev_b32 v{vB}, 4, v{self.vN}
              v_lshl_add_u32 v{vB}, v{self.vQ}, 2, v{vB}
              v_add_u32 v{vB}, s{sT0}, v{vB}
              s_mul_i32 s{sT0}, s{sG}, 2560
              v_lshlrev_b32 v{vCr}, 4, v{self.vL}
              v_add_u32 v{vCr}, s{sT0}, v{vCr}""")
        self.c_off(vCoff, 3)
        srd(a, ptr(4), DM * NH * DH * 2)
        self.wrow_lane(vAoff, 12288)
        a(f"""s_mul_i32 s{sT0}, s{sH}, 384
              s_mul_i32 s{sT1}, s{sG}, 96
              s_add_u32 s{sT0}, s{sT0}, s{sT1}
              s_add_u32 s{sT0}, s{sT0}, 64
              v_and_b32 v{T0}, 14, v{self.vN}
              v_lshl_add_u32 v{vAoff}, v{T0}, 1, v{vAoff}
              v_add_u32 v{vAoff}, s{sT0}, v{vAoff}
              v_and_b32 v{T0}, 1, v{self.vN}
              v_cmp_eq_u32 vcc, 1, v{T0}
              v_mov_b32 v{vSel}, s{sSELLO}
              v_mov_b32 v{T0}, s{sSELHI}
              s_nop 1
              v_cndmask_b32 v{vSel}, v{vSel}, v{T0}, vcc""")
        self.load_single(WV, 10, vAoff, vSel, 12288, M)
        self.wo_weights(P[0][0], P[0][1], 3, vAoff, self.vT2)
        self.a_off(vAoff)
        self.zero(TV, 4)
        for p in P: self.zero(p[2], 8)
        self.mark(1)
        self.wait_all_registered()
        def own():
            self.dma_q(vQx); self.dma12(vK, WS_K, LK_OFF, [0])
        rest = lambda: self.dma12(vK, WS_K, LK_OFF, [1, 2, 3])
        if not self.opt.get('early_stage'): self.stage_first(own, rest, 0, 2)
        a('s_barrier')
        self.mark(2)
        loop, end = a.newlabel('Lw7'), a.newlabel('Lw7end')
        self.a_poll(vAoff, [PX], True)
        a.label(loop)
        self.stamp(0)
        for ks in range(10):
            a(f'ds_read_b128 v[{M+4*ks}:{M+4*ks+3}], v{vK} offset:{LM + 1024*ks}')
        for ks in range(10):
            a(f's_waitcnt lgkmcnt({9-ks})')
            a(f'v_smfmac_f32_16x16x64_bf16 v[{TV}:{TV+3}], v[{M+4*ks}:{M+4*ks+3}], v[{WV+8*ks}:{WV+8*ks+7}], v{vIdx}')
            if ks == self.opt.get('w7_bar', 99): a('s_barrier')
        a(f"""s_nop 7
              v_pk_add_f32 v[{TV}:{TV+1}], v[{TV}:{TV+1}], v[{TV+2}:{TV+3}]
              v_cvt_pk_bf16_f32 v{TV}, v{TV}, v{TV+1}
              v_min_u32 v{TV}, -2, v{TV}""")
        self.lstore([f'buffer_store_dword v{TV}, v{vB}, s[{sWS}:{sWS+3}], s{sB_C} offen'])
        if self.opt.get('w7_bar', 99) > 9: a('s_barrier')
        self.stamp(1)
        self.zero(TV, 4)
        a('s_barrier')
        self.lstore([f'buffer_store_dword v{SENT}, v{vB}, s[{sWS}:{sWS+3}], s{sB_R} offen'])
        a(f"s_sleep {self.opt.get('d_sleep', 7)}" if self.opt.get('d_sleep', 7) else 's_nop 0')
        if self.opt.get('dma_time'): self.stamp(1)
        nf, yf = a.newlabel('Lw7nf'), a.newlabel('Lw7yf')
        a(f"""s_cmp_ge_u32 s{sSTEP}, {self.opt.get('of_all', 58)}
              s_cbranch_scc1 {nf}
              s_and_b32 s{sT0}, s{sSTEP}, {self.opt.get('of_every', 1) - 1}
              s_cmp_lg_u32 s{sT0}, {min(2, self.opt.get('of_every', 1) - 1)}
              s_cbranch_scc1 {nf}
              s_cmp_lt_u32 s{sSTEP}, 2
              s_cbranch_scc1 {nf}""")
        a.label(yf)
        self.o_flag(2)
        a.label(nf)
        self.stage(own, rest, 0, 2)
        if self.opt.get('dma_time'): a('s_waitcnt vmcnt(0)')
        self.stamp(5)
        a('s_barrier')
        self.stamp(2)
        self.wo_stage(P, vFrag, vIdx, M, vCoff, RR, end)
        self.stamp(3)
        for p in P: self.zero(p[2], 8)
        self.a_poll(vAoff, [PX, PX + 8, PX + 16])
        a(f's_branch {loop}')
        a.label(end)
        a('s_barrier')
        self.finish()
        self.emit_tail()

    def role_att(self):
        a = self.a
        al = Alloc(1, 256)
        self.lanes(al)
        TM = al(2, 2)
        WA, WB = al(24, 4), al(24, 4)
        TA, TB = al(4, 4), al(4, 4)
        KX = al(48, 4); X = al(24, 4); Y = al(24, 4)
        VX = al(16, 4); VM = al(8, 2)
        BI = al(12, 4); SS = al(12, 4)
        PP = al(6, 2); RR = PP
        OO = al(16, 4); LL = al(4, 4)
        ONES = al(4, 4)
        F = SS
        vFrag, vIdx, vAoff, vXY, vVM, vOw, vCoff, vLin, vQr, vBp, vRw, vOx = [al() for _ in range(12)]
        T0, T1, T2 = self.vT0, self.vT1, self.vT2
        sWP = sRED
        a(f's_sub_u32 s{sWP}, s{sW}, 4')
        self.frag_addr(vFrag); self.idx_reg(vIdx)
        self.c_off(vCoff, f's{sWP}')
        if self.opt.get('touch'): self.touch_weights()
        self.init_job(KX)
        arrive(a, 6, KX + 16)
        self.mark(5)
        self.wo_weights(WA, WB, f's{sWP}', vAoff, T2)
        if self.opt.get('tlb'):
            a(f"""v_lshlrev_b32 v{T0}, 21, v{self.vL}
                  v_add_u32 v{T0}, {0x1F8000}, v{T0}
                  s_mov_b32 m0, {SWEEP_LDS}
                  s_mov_b32 s{sT0}, 0x8000000
                  buffer_load_dword v{T0}, s[{sWS}:{sWS+3}], 0 offen lds
                  buffer_load_dword v{T0}, s[{sWS}:{sWS+3}], s{sT0} offen lds""")
        self.arrive_init(KX)
        if self.opt.get('early_stage'):
            vS, vQs = KX, KX + 1
            a(f"""v_lshlrev_b32 v{vS}, 4, v{self.vL}
                  v_and_b32 v{T0}, 7, v{self.vL}
                  v_lshlrev_b32 v{vQs}, 4, v{T0}
                  v_lshrrev_b32 v{T0}, 5, v{self.vL}
                  v_lshl_add_u32 v{vQs}, v{T0}, 10, v{vQs}
                  v_bfe_u32 v{T0}, v{self.vL}, 3, 2
                  v_lshl_add_u32 v{vQs}, v{T0}, 8, v{vQs}
                  s_lshr_b32 s{sT0}, s{sG}, 1
                  s_mul_i32 s{sT0}, s{sT0}, 6144
                  s_and_b32 s{sT1}, s{sG}, 1
                  s_lshl_b32 s{sT1}, s{sT1}, 7
                  s_add_u32 s{sT0}, s{sT0}, s{sT1}
                  v_add_u32 v{vQs}, s{sT0}, v{vQs}""")
            wait_registered(a, self.opt, T0, T1, self.vL)
            lq, lv2, ld = a.newlabel('Les'), a.newlabel('Les'), a.newlabel('Les')
            a(f"""s_cmp_eq_u32 s{sWP}, 2
                  s_cbranch_scc1 {lq}
                  s_cmp_eq_u32 s{sWP}, 1
                  s_cbranch_scc1 {lv2}""")
            self.stage_first(lambda: self.dma12(vS, WS_K, LK_OFF, [0]), lambda: self.dma12(vS, WS_K, LK_OFF, [1, 2, 3]), 1, 1)
            a(f's_branch {ld}')
            a.label(lv2)
            self.stage_first(lambda: self.dma12(vS, WS_VT, LV_OFF, [0]), lambda: self.dma12(vS, WS_VT, LV_OFF, [1, 2, 3]), 2, 1)
            a(f's_branch {ld}')
            a.label(lq)
            self.stage_first(lambda: self.dma_q(vQs), lambda: None, 0, 1)
            a.label(ld)
        self.a_off(vAoff)
        a(f"""v_lshlrev_b32 v{vXY}, 6, v{self.vN}
              v_lshl_add_u32 v{vXY}, v{self.vQ}, 4, v{vXY}
              s_lshl_b32 s{sT0}, s{sWP}, 10
              s_add_u32 s{sT0}, s{sT0}, 6144
              v_lshlrev_b32 v{vVM}, 4, v{self.vN}
              v_lshl_add_u32 v{vVM}, v{self.vQ}, 3, v{vVM}
              v_add_u32 v{vVM}, s{sT0}, v{vVM}
              v_lshlrev_b32 v{vLin}, 4, v{self.vL}
              s_lshl_b32 s{sT0}, s{sWP}, 11
              v_add_u32 v{vBp}, s{sT0}, v{vLin}
              v_and_b32 v{T0}, 7, v{self.vN}
              v_lshlrev_b32 v{vQr}, 4, v{T0}
              v_lshl_add_u32 v{vQr}, v{self.vQ}, 7, v{vQr}""")
        a(f"""v_lshlrev_b32 v{vRw}, 2, v{self.vL}
              v_add_u32 v{T1}, {LDUMMY}, v{vRw}
              v_add_u32 v{vRw}, {LR}, v{vRw}
              v_cmp_gt_u32 vcc, 8, v{self.vL}
              s_nop 1
              v_cndmask_b32 v{vRw}, v{T1}, v{vRw}, vcc""")
        a(f"""v_lshrrev_b32 v{T1}, 1, v{self.vQ}
              v_lshlrev_b32 v{vOw}, 7, v{T1}
              v_lshl_add_u32 v{vOw}, v{T0}, 4, v{vOw}
              v_and_b32 v{T1}, 1, v{self.vQ}
              v_lshl_add_u32 v{vOw}, v{T1}, 3, v{vOw}
              v_lshrrev_b32 v{T1}, 3, v{self.vN}
              v_mul_u32_u24 v{T1}, 3072, v{T1}
              v_add_u32 v{vOw}, v{vOw}, v{T1}
              s_lshl_b32 s{sT0}, s{sWP}, 10
              s_add_u32 s{sT0}, s{sT0}, {LO}
              v_add_u32 v{vOw}, s{sT0}, v{vOw}""")
        a(f"""s_lshl_b32 s{sT0}, s{sWP}, 10
              s_add_u32 s{sT0}, s{sT0}, {LOX}
              v_lshlrev_b32 v{vOx}, 7, v{T0}
              v_lshl_add_u32 v{vOx}, v{self.vQ}, 3, v{vOx}
              v_add_u32 v{vOx}, s{sT0}, v{vOx}""")
        a(f"""s_lshl_b32 s{sT0}, s{sG}, 3
              v_add_u32 v{T1}, s{sT0}, v{T0}
              v_cmp_gt_u32 vcc, 8, v{self.vN}
              v_mov_b32 v{T2}, 31
              s_nop 1
              v_cndmask_b32 v{T1}, v{T1}, v{T2}, vcc
              v_lshlrev_b32 v{T2}, 2, v{self.vQ}
              v_sub_u32 v{T1}, v{T1}, v{T2}
              v_mov_b32 v{T2}, 0xf149f2ca""")
        for tile in range(2):
            for r in range(4):
                a(f"""v_cmp_gt_i32 vcc, {16*tile + r}, v{T1}
                      v_mov_b32 v{BI+4*tile+r}, 0
                      s_nop 1
                      v_cndmask_b32 v{BI+4*tile+r}, v{BI+4*tile+r}, v{T2}, vcc""")
        a(f"""v_cmp_lt_u32 vcc, 1, v{self.vQ}
              v_mov_b32 v{BI+8}, 0
              s_nop 1
              v_cndmask_b32 v{BI+8}, v{BI+8}, v{T2}, vcc""")
        for r in range(1, 4): a(f'v_mov_b32 v{BI+8+r}, v{BI+8}')
        for k in range(4): a(f'v_mov_b32 v{ONES+k}, 0x3f803f80')
        self.zero(Y, 24); self.zero(VM, 8); self.zero(TA, 8)
        self.mark(1)
        self.wait_all_registered()
        def read_seg():
            a(f'v_add_u32 v{T0}, s{sLB}, v{vLin}')
            a(f'v_add_u32 v{T1}, s{sLB}, v{vQr}')
            a(f's_lshl_b32 s{sT0}, s{sWP}, 12')
            a(f'v_add_u32 v{T2}, s{sT0}, v{T0}')
            for k in range(12):
                a(f'ds_read_b128 v[{KX+4*k}:{KX+4*k+3}], v{T0} offset:{LK_OFF + 1024*k}')
            for ks in range(6):
                a(f'ds_read_b128 v[{X+4*ks}:{X+4*ks+3}], v{T1} offset:{LQ_OFF + 512*ks}')
            for t in range(4):
                a(f'ds_read_b128 v[{VX+4*t}:{VX+4*t+3}], v{T2} offset:{LV_OFF + 1024*t}')
        def vm_loads():
            a(f's_mov_b64 exec, s[{sML32}:{sML32+1}]')
            for t in range(4):
                a(f'buffer_load_dwordx2 v[{VM+2*t}:{VM+2*t+1}], v{vVM}, s[{sWS}:{sWS+3}], s{sB_C} offen offset:{256*t} sc1')
            a('s_mov_b64 exec, -1')
        a('s_barrier')
        self.mark(2)
        a(f's_mov_b32 s{sLB}, {LBUF}')
        read_seg()
        self.a_poll(vAoff, [F], True)
        loop, end = a.newlabel('Lat'), a.newlabel('Latend')
        lp, ok, vlp, vok, vrt = a.newlabel('LpB'), a.newlabel('LpBok'), a.newlabel('LpV'), a.newlabel('LpVok'), a.newlabel('LpVr')
        a.label(loop)
        if self.opt.get('trace2'): a(f's_memtime s[{sST+0}:{sST+1}]')
        a('s_barrier')
        if self.opt.get('trace2'): a(f's_memtime s[{sST+2}:{sST+3}]')
        if self.opt.get('b_sleep'): a(f"s_sleep {self.opt['b_sleep']}")
        if self.opt.get('fine'): self.stamp(0)
        self.poll2(vBp, sB_C, LQK, [OO, OO + 8][:self.opt.get('b_depth', 1)], 0, self.opt.get('b_gap', 0))
        if self.opt.get('trace2'): a(f's_memtime s[{sST+4}:{sST+5}]')
        if self.opt.get('vm_at') == -1: vm_loads()
        a(f's_mov_b64 exec, s[{sMN8}:{sMN8+1}]')
        a('s_waitcnt lgkmcnt(0)')
        a('s_barrier')
        for ks in range(6):
            a(f'ds_read_b128 v[{X+4*ks}:{X+4*ks+3}], v{vXY} offset:{LQK + 512*ks}')
        for ks in range(6):
            a(f'ds_read_b128 v[{Y+4*ks}:{Y+4*ks+3}], v{vXY} offset:{LQK + 3072 + 512*ks}')
        vm_loads()
        self.stamp(5)
        def smm(tile, ks):
            A = (KX, KX + 24, Y)[tile] + 4*ks
            c = BI + 4*tile if ks == 0 else SS + 4*tile
            a(f'v_mfma_f32_16x16x32_bf16 v[{SS+4*tile}:{SS+4*tile+3}], v[{A}:{A+3}], v[{X+4*ks}:{X+4*ks+3}], v[{c}:{c+3}]')
        for ks in range(6):
            a(f's_waitcnt lgkmcnt({11 - ks})')
            smm(0, ks); smm(1, ks)
        a('s_waitcnt lgkmcnt(0)')
        for ks in range(6):
            smm(2, ks)
            if ks == 3: a('s_waitcnt vmcnt(4)')
            if ks == 4: a(f'v_max3_f32 v{T0}, v{SS}, v{SS+1}, v{SS+2}'); a(f'v_max3_f32 v{T1}, v{SS+3}, v{SS+4}, v{SS+5}')
        self.stamp(1)
        a(f"""v_max3_f32 v{T0}, v{T0}, v{SS+6}, v{SS+7}
              v_max_f32 v{T0}, v{T0}, v{T1}
              s_nop 5
              v_max3_f32 v{T1}, v{SS+8}, v{SS+9}, v{SS+10}
              v_max3_f32 v{T0}, v{T0}, v{T1}, v{SS+11}
              v_mov_b32 v{T1}, v{T0}
              s_nop 1
              v_permlane32_swap_b32 v{T0}, v{T1}
              v_max_f32 v{T0}, v{T0}, v{T1}
              v_mov_b32 v{T1}, v{T0}
              s_nop 1
              v_permlane16_swap_b32 v{T0}, v{T1}
              v_max_f32 v{T0}, v{T0}, v{T1}
              v_mul_f32 v{TM}, s{sSCL}, v{T0}""")
        def pkfma(r):
            if self.opt.get('nopk'):
                for k in range(2): a(f'v_fma_f32 v{SS+r+k}, v{SS+r+k}, s{sSCL}, -v{TM}')
                return
            a(f'v_pk_fma_f32 v[{SS+r}:{SS+r+1}], v[{SS+r}:{SS+r+1}], s[{sSCL}:{sSCL+1}], v[{TM}:{TM+1}] op_sel_hi:[1,0,0] neg_lo:[0,0,1] neg_hi:[0,0,1]')
        for r in range(0, 8, 2): pkfma(r)
        for r in range(8): a(f'v_exp_f32 v{SS+r}, v{SS+r}')
        for r in range(8, 12, 2): pkfma(r)
        for r in range(4): a(f'v_cvt_pk_bf16_f32 v{PP+r}, v{SS+2*r}, v{SS+2*r+1}')
        a(f'v_exp_f32 v{SS+8}, v{SS+8}')
        a(f'v_exp_f32 v{SS+9}, v{SS+9}')
        a(f'v_mfma_f32_16x16x32_bf16 v[{LL}:{LL+3}], v[{ONES}:{ONES+3}], v[{PP}:{PP+3}], 0')
        a(f'v_exp_f32 v{SS+10}, v{SS+10}')
        a(f'v_mfma_f32_16x16x32_bf16 v[{OO}:{OO+3}], v[{VX}:{VX+3}], v[{PP}:{PP+3}], 0')
        a(f'v_exp_f32 v{SS+11}, v{SS+11}')
        a(f'v_mfma_f32_16x16x32_bf16 v[{OO+4}:{OO+7}], v[{VX+4}:{VX+7}], v[{PP}:{PP+3}], 0')
        a(f'v_cvt_pk_bf16_f32 v{PP+4}, v{SS+8}, v{SS+9}')
        a(f'v_cvt_pk_bf16_f32 v{PP+5}, v{SS+10}, v{SS+11}')
        a(f'v_mfma_f32_16x16x32_bf16 v[{OO+8}:{OO+11}], v[{VX+8}:{VX+11}], v[{PP}:{PP+3}], 0')
        a.label(vlp)
        a(f"""s_waitcnt vmcnt(0)
              v_max3_u32 v{T1}, v{VM}, v{VM+1}, v{VM+2}
              v_max3_u32 v{T2}, v{VM+3}, v{VM+4}, v{VM+5}
              v_mfma_f32_16x16x32_bf16 v[{OO+12}:{OO+15}], v[{VX+12}:{VX+15}], v[{PP}:{PP+3}], 0
              v_max3_u32 v{T1}, v{T1}, v{VM+6}, v{VM+7}
              v_max_u32 v{T1}, v{T1}, v{T2}
              v_cmp_eq_u32 vcc, -1, v{T1}
              s_cbranch_vccnz {vrt}""")
        a.label(vok)
        if self.opt.get('trace2'): a(f's_memtime s[{sST+6}:{sST+7}]')
        if not self.opt.get('fine'): self.stamp(0)
        a(f'v_mfma_f32_16x16x16_bf16 v[{LL}:{LL+3}], v[{ONES}:{ONES+1}], v[{PP+4}:{PP+5}], v[{LL}:{LL+3}]')
        for t in range(4):
            a(f'v_mfma_f32_16x16x16_bf16 v[{OO+4*t}:{OO+4*t+3}], v[{VM+2*t}:{VM+2*t+1}], v[{PP+4}:{PP+5}], v[{OO+4*t}:{OO+4*t+3}]')
        a(f"""s_nop 3
              v_rcp_f32 v{LL}, v{LL}""")
        for t in range(4):
            a(f'v_cvt_pk_bf16_f32 v{X+2*t}, v{OO+4*t}, v{OO+4*t+1}')
            a(f'v_cvt_pk_bf16_f32 v{X+2*t+1}, v{OO+4*t+2}, v{OO+4*t+3}')
            a(f'ds_write_b64 v{vOw}, v[{X+2*t}:{X+2*t+1}] offset:{256*t}')
            if t == 0: a(f'ds_write_b32 v{vRw}, v{LL}')
        a('s_waitcnt lgkmcnt(0)')
        a('s_barrier')
        self.stamp(2)
        skipwo = a.newlabel('Latsk')
        self.wo_stage([(WA, WB, TA, TB, 0)], vFrag, vIdx, F, vCoff, RR, skipwo)
        a.label(skipwo)
        if self.opt.get('trace2'): a(f's_memtime s[{sST+8}:{sST+9}]')
        if not self.opt.get('fine'): self.stamp(3)
        for t in range(4):
            for r in range(4):
                a(f'v_mul_f32 v{OO+4*t+r}, v{OO+4*t+r}, v{LL}')
            a(f'v_cvt_pk_bf16_f32 v{OO+4*t}, v{OO+4*t}, v{OO+4*t+1}')
            a(f'v_cvt_pk_bf16_f32 v{OO+4*t+1}, v{OO+4*t+2}, v{OO+4*t+3}')
        a(f's_mov_b64 exec, s[{sMH8}:{sMH8+1}]')
        for t in range(4):
            a(f'ds_write_b64 v{vOx}, v[{OO+4*t}:{OO+4*t+1}] offset:{32*t}')
        a('s_mov_b64 exec, -1')
        a(f"""s_cmp_eq_u32 s{sSTEP}, 63
              s_cbranch_scc1 {end}
              s_add_u32 s{sLB}, s{sLB}, {LBUF_SZ}
              s_cmp_eq_u32 s{sLB}, {LBUF + 3*LBUF_SZ}
              s_cselect_b32 s{sLB}, {LBUF}, s{sLB}""")
        if self.opt.get('trace2'):
            a(f"""s_waitcnt lgkmcnt(0)
                  s_lshl_b32 s{sT0}, s{sJ}, 4
                  s_add_u32 s{sT0}, s{sT0}, s{sC}
                  s_lshl_b32 s{sT0}, s{sT0}, 2
                  s_add_u32 s{sT0}, s{sT0}, s{sWP}
                  s_lshl_b32 s{sT0}, s{sT0}, 6
                  s_add_u32 s{sT0}, s{sT0}, s{sSTEP}
                  s_lshl_b32 s{sT0}, s{sT0}, 4
                  s_add_u32 s{sT0}, s{sT0}, {WS_DBG + 0x300000}""")
            for k in range(4):
                a(f's_sub_u32 s{sT1}, s{sST+2*k+2}, s{sST}' if k else f's_sub_u32 s{sT1}, s{sST}, s{sST+10}')
                a(f'v_mov_b32 v{LL+k}, s{sT1}')
            a(f's_mov_b32 s{sST+10}, s{sST+8}')
            a(f"""v_mov_b32 v{T0}, 0
                  s_mov_b64 exec, 1
                  buffer_store_dwordx4 v[{LL}:{LL+3}], v{T0}, s[{sWS}:{sWS+3}], s{sT0} offen
                  s_mov_b64 exec, -1
                  s_nop 1""")
        read_seg()
        self.zero(TA, 8)
        self.a_poll(vAoff, [F, OO, OO + 8])
        a(f's_branch {loop}')
        a.label(end)
        a('s_waitcnt lgkmcnt(0)')
        a('s_barrier')
        self.finish()
        a.label(vrt)
        vm_loads()
        self.retry(vlp, 1)
        a(f's_branch {vok}')
        self.emit_tail()

def emit_gates(a, sU, ntok, vL, R):
    G, acc, t1, t2, v4, Xr = R, R + 5, R + 6, R + 7, R + 8, R + 10
    a(f'v_lshlrev_b32 v{v4}, 2, v{vL}')
    srd(a, ptr(11), DM * 2)
    for i in range(5):
        a(f'buffer_load_dword v{G+i}, v{v4}, s[{sT}:{sT+3}], 0 offen offset:{256*i}')
    srd(a, ptr(0), S * DM * 2)
    a(f's_mul_i32 s{sT1}, s{sU}, 1280')
    for tk in range(ntok):
        for i in range(5):
            a(f'buffer_load_dword v{Xr+5*tk+i}, v{v4}, s[{sT}:{sT+3}], s{sT1} offen offset:{1280*tk + 256*i}')
    a('s_waitcnt vmcnt(0)')
    for tk in range(ntok):
        a(f'v_mov_b32 v{acc}, 0')
        for i in range(5):
            x = Xr + 5*tk + i
            a(f"""v_lshlrev_b32 v{t1}, 16, v{x}
                  v_lshlrev_b32 v{t2}, 16, v{G+i}
                  v_fmac_f32 v{acc}, v{t1}, v{t2}
                  v_and_b32 v{t1}, 0xffff0000, v{x}
                  v_and_b32 v{t2}, 0xffff0000, v{G+i}
                  v_fmac_f32 v{acc}, v{t1}, v{t2}""")
        for sh in (8, 4, 2, 1):
            a(f"""s_nop 1
                  v_add_f32_dpp v{acc}, v{acc}, v{acc} row_ror:{sh} row_mask:0xf bank_mask:0xf""")
        for sw in ('v_permlane16_swap_b32', 'v_permlane32_swap_b32'):
            a(f"""v_mov_b32 v{t1}, v{acc}
                  s_nop 1
                  {sw} v{acc}, v{t1}
                  v_add_f32 v{acc}, v{acc}, v{t1}""")
        a(f"""v_mul_f32 v{acc}, {hex(f32bits(-math.log2(math.e)))}, v{acc}
              v_exp_f32 v{acc}, v{acc}
              s_nop 0
              v_add_f32 v{acc}, 1.0, v{acc}
              v_rcp_f32 v{acc}, v{acc}
              v_mov_b32 v{t1}, 0
              s_lshl_b32 s{sT0}, s{sU}, 2
              s_add_u32 s{sT0}, s{sT0}, {WS_G + 4*tk}
              s_mov_b64 exec, 1
              buffer_store_dword v{acc}, v{t1}, s[{sWS}:{sWS+3}], s{sT0} offen sc1
              s_mov_b64 exec, -1""")

def arrive(a, wave, v):
    l = a.newlabel('Larr')
    a(f'''s_cmp_lg_u32 s{sW}, {wave}
          s_cbranch_scc1 {l}
          s_cmp_lg_u32 s{sARR}, 0
          s_cbranch_scc1 {l}
          s_mov_b64 exec, 1
          v_mov_b32 v{v}, 1
          v_mov_b32 v{v+1}, 32
          buffer_atomic_add v{v}, v{v+1}, s[{sDBG}:{sDBG+3}], 0 offen sc1
          s_mov_b64 exec, -1''')
    a.label(l)

def wait_registered(a, opt, T0, T1, vN, init=False):
    lp, done = a.newlabel('Lreg'), a.newlabel('Lregd')
    a(f'v_lshlrev_b32 v{T1}, 2, v{vN}')
    a.label(lp)
    a(f'''buffer_load_dword v{T0}, v{T1}, s[{sDBG}:{sDBG+3}], 0 offen sc0 sc1
          s_waitcnt vmcnt(0)
          v_readlane_b32 s{sT0}, v{T0}, 8
          v_readlane_b32 s{sT1}, v{T0}, {32 if init else 8}
          s_add_u32 s{sT0}, s{sT0}, s{sT1}
          s_cmp_ge_u32 s{sT0}, {256 + 384 if init else 512}
          s_cbranch_scc1 {done}
          s_sleep 24
          s_sub_u32 s{sBUD}, s{sBUD}, 1
          s_cbranch_scc0 {lp}
          s_mov_b32 s{sBUD}, 0''')
    a.label(done)
    a(f'''v_readlane_b32 s{sPOL}, v{T0}, 34
          v_cmp_ne_u32 vcc, 32, v{T0}
          s_and_b32 s{sPOL}, s{sPOL}, 1
          s_and_b32 s{sT0}, vcc_lo, 0xff
          s_cselect_b32 s{sMIX}, 1, {1 if opt.get('force_mixed') else 0}''')

def emit_entry(a, opt, exit_label):
    a(f'''s_cmp_ge_u32 s2, 256
          s_cbranch_scc1 {exit_label}
          s_load_dwordx16 s[16:31], s[0:1], 0
          s_load_dwordx8 s[32:39], s[0:1], 64
          s_load_dwordx4 s[40:43], s[0:1], 96
          s_load_dwordx2 s[44:45], s[0:1], 112
          v_lshrrev_b32 v1, 6, v0
          s_getreg_b32 s{sJ}, hwreg(HW_REG_XCC_ID)
          v_readfirstlane_b32 s{sW}, v1
          s_and_b32 s{sJ}, s{sJ}, 15
          s_min_u32 s{sJ}, s{sJ}, 10
          s_cmp_lt_u32 s{sJ}, 8
          s_cselect_b32 s{sJ}, s{sJ}, 10
          s_mov_b32 s{sBUD}, {opt.get('budget', 1 << 20)}
          s_mov_b32 s{sSTEP}, 0
          s_mov_b32 s{sCS}, 0
          s_mov_b32 s{sPOL}, 0
          s_mov_b64 s[98:99], 0
          s_mov_b64 s[100:101], 0
          s_mov_b32 s{sMIX}, {1 if opt.get('force_mixed') else 0}
          s_mov_b32 s{sMN8}, 0x00ff00ff
          s_mov_b32 s{sMN8+1}, 0x00ff00ff
          s_mov_b32 s{sMH8}, 0xff00ff00
          s_mov_b32 s{sMH8+1}, 0xff00ff00
          s_mov_b32 s{sML32}, -1
          s_mov_b32 s{sML32+1}, 0
          s_mov_b32 s{sSELLO}, 0x05040100
          s_mov_b32 s{sSELHI}, 0x07060302
          s_mov_b32 s{sSCL}, {hex(f32bits(DH ** -0.5 * math.log2(math.e)))}
          s_waitcnt lgkmcnt(0)
          s_mov_b32 s{sWS}, s{ptr(14)}
          s_mov_b32 s{sWS+1}, s{ptr(14)+1}
          s_mov_b32 s{sWS+2}, {WS_SIZE}
          s_mov_b32 s{sWS+3}, 0x20000
          s_mov_b32 s{sDBG}, s{ptr(13)}
          s_mov_b32 s{sDBG+1}, s{ptr(13)+1}
          s_mov_b32 s{sDBG+2}, 256
          s_mov_b32 s{sDBG+3}, 0x20000''')
    if opt.get('prof'):
        a(f's_memrealtime s[{sST}:{sST+1}]')
        a('s_waitcnt lgkmcnt(0)')
    if opt.get('fake_xcc') == 1:
        a(f'''s_lshr_b32 s{sJ}, s2, 5''')
    if opt.get('fake_xcc') == 2:
        a(f'''s_cmp_lt_u32 s2, 200
              s_cselect_b32 s{sJ}, s{sJ}, 3
              s_cmp_lt_u32 s2, 250
              s_cselect_b32 s{sJ}, s{sJ}, 10''')
    l1, l2 = a.newlabel('Le'), a.newlabel('Le')
    def sweep():
        ls = a.newlabel('Lsw')
        a(f'''s_lshl_b32 s{sT0}, s{sC}, 3
              s_add_u32 s{sT0}, s{sT0}, s{sW}
              s_cmp_ge_u32 s{sT0}, 240
              s_cbranch_scc1 {ls}
              s_mov_b32 m0, {SWEEP_LDS}
              v_and_b32 v9, 63, v0
              v_lshlrev_b32 v9, 4, v9
              v_add_u32 v10, 1024, v9
              v_add_u32 v11, {12288 + 512}, v9
              v_add_u32 v12, {12288 - 512}, v9
              v_cmp_gt_u32 vcc, 512, v9
              s_mul_i32 s{sT1}, s{sT0}, 52429
              s_lshr_b32 s{sT1}, s{sT1}, 22
              v_cndmask_b32 v10, v12, v10, vcc
              s_cmp_eq_u32 s{sT1}, 1
              s_cselect_b32 s{sT}, s{ptr(3)}, s{ptr(2)}
              s_cselect_b32 s{sT+1}, s{ptr(3)+1}, s{ptr(2)+1}
              s_cmp_eq_u32 s{sT1}, 2
              s_cselect_b32 s{sT}, s{ptr(4)}, s{sT}
              s_cselect_b32 s{sT+1}, s{ptr(4)+1}, s{sT+1}
              s_mov_b32 s{sT+2}, {DM*NH*DH*2}
              s_mov_b32 s{sT+3}, 0x20000
              s_mul_i32 s{sT1}, s{sT1}, 80
              s_sub_u32 s{sT1}, s{sT0}, s{sT1}
              s_mul_i32 s{sT1}, s{sT1}, {8*12288}
              s_mul_i32 s{sT2}, s{sJ}, 1536
              s_add_u32 s{sT1}, s{sT1}, s{sT2}''')
        for rp in range(4):
            for v in (9, 10, 11):
                a(f'buffer_load_dwordx4 v{v}, s[{sT}:{sT+3}], s{sT1} offen lds')
            if rp < 3: a(f's_add_u32 s{sT1}, s{sT1}, {2*12288}')
        srd(a, ptr(5), NH * DH * DM * 2)
        a(f'''s_mul_i32 s{sT1}, s{sJ}, {4*DH*DM*2}
              s_lshl_b32 s{sT0}, s{sT0}, 12
              s_add_u32 s{sT1}, s{sT1}, s{sT0}''')
        for k in range(4):
            a(f'buffer_load_dwordx4 v9, s[{sT}:{sT+3}], s{sT1} offen offset:{1024*k} lds')
        a.label(ls)
    a(f'''s_cmp_lg_u32 s{sW}, 0
          s_cbranch_scc1 {l1}
          s_mov_b64 exec, 1
          v_mov_b32 v2, 1
          s_lshl_b32 s{sT0}, s{sJ}, 2
          v_mov_b32 v3, s{sT0}
          buffer_atomic_add v2, v3, s[{sDBG}:{sDBG+3}], 0 offen sc0 sc1
          s_mov_b64 exec, -1''')
    a.label(l1)
    l3, l4, l5, l6, l7 = [a.newlabel('Le') for _ in range(5)]
    a(f'''s_cmp_lg_u32 s{sW}, 1
          s_cbranch_scc1 {l5}
          s_mov_b64 exec, 1
          v_mov_b32 v2, 0
          v_mov_b32 v3, 0
          v_mov_b32 v4, 0
          v_mov_b32 v5, 0
          s_lshl_b32 s{sT0}, s2, 4
          s_add_u32 s{sT0}, s{sT0}, {WS_FLAG}
          buffer_store_dwordx4 v[2:5], v2, s[{sWS}:{sWS+3}], s{sT0} offen sc1
          s_mov_b64 exec, -1''')
    a.label(l5)
    a(f'''s_waitcnt vmcnt(0)
          s_cmp_lg_u32 s{sW}, 0
          s_cbranch_scc1 {l3}
          s_mov_b64 exec, 1
          v_readfirstlane_b32 s{sT0}, v2
          s_cmp_ge_u32 s{sJ}, 8
          s_cselect_b32 s{sT0}, 32, s{sT0}
          s_cmp_lt_u32 s{sT0}, 32
          s_cbranch_scc1 {l6}
          v_mov_b32 v2, 1
          v_mov_b32 v3, 36
          buffer_atomic_add v2, v3, s[{sDBG}:{sDBG+3}], 0 offen sc0 sc1
          s_waitcnt vmcnt(0)
          v_add_u32 v2, 32, v2''')
    a.label(l6)
    l8 = a.newlabel('Le')
    a(f'''v_mov_b32 v4, 0
          s_or_b32 s{sT0}, s{sT0}, s{sJ}
          s_cmp_lg_u32 s{sT0}, 0
          s_cbranch_scc1 {l8}
          s_lshr_b32 s{sT0}, s2, 6
          s_lshl_b32 s{sT0}, s{sT0}, 14
          s_and_b32 s{sT1}, s2, 63
          s_lshl_b32 s{sT1}, s{sT1}, 7
          s_add_u32 s{sT0}, s{sT0}, s{sT1}
          s_add_u32 s{sT0}, s{sT0}, {WS_RC + RC_PROBE}
          s_add_u32 s{sT1}, s{sT0}, 8192
          s_mov_b32 s{sT2}, -1
          s_mov_b32 s{sT3}, -1''')
    for rnd in range(2):
        for cp in range(2):
            a(f'''v_mov_b32 v5, 0
                  s_memtime s[98:99]
                  s_waitcnt lgkmcnt(0)
                  buffer_atomic_add v5, v4, s[{sWS}:{sWS+3}], s{sT1 if cp else sT0} offen sc0 sc1
                  s_waitcnt vmcnt(0)
                  s_memtime s[100:101]
                  s_waitcnt lgkmcnt(0)
                  s_sub_u32 s98, s100, s98
                  s_min_u32 s{sT3 if cp else sT2}, s{sT3 if cp else sT2}, s98''')
    a(f'''s_mov_b64 s[98:99], 0
          s_mov_b64 s[100:101], 0
          s_cmp_lt_u32 s{sT3}, s{sT2}
          s_cselect_b32 s{sT2}, 0x15, 0x0a
          v_mov_b32 v4, s{sT2}''')
    a(f'''v_mov_b32 v5, 136
          buffer_store_dword v4, v5, s[{sDBG}:{sDBG+3}], 0 offen sc1
          s_waitcnt vmcnt(0)''')
    a.label(l8)
    a(f'''v_mov_b32 v3, 0
          ds_write_b32 v3, v2
          s_mov_b64 exec, -1
          s_waitcnt lgkmcnt(0)''')
    a.label(l3)
    a(f'''s_barrier
          v_mov_b32 v3, 0
          ds_read_b32 v2, v3
          s_mov_b32 s{sARR}, 0
          s_waitcnt lgkmcnt(0)
          v_readfirstlane_b32 s{sC}, v2
          s_barrier
          s_cmp_lt_u32 s{sC}, 32
          s_cbranch_scc1 {l7}''')
    arrive(a, 0, 4)
    a(f's_mov_b32 s{sARR}, 1')
    a('v_and_b32 v4, 63, v0')
    wait_registered(a, opt, 2, 3, 4)
    a(f's_sub_u32 s{sT1}, s{sC}, 32')
    a(f's_mov_b32 s{sJ}, 0')
    a(f's_mov_b32 s{sC}, 0')
    for x in range(8):
        a(f'''v_readlane_b32 s{sT0}, v2, {x}
              s_min_u32 s{sT0}, s{sT0}, 32
              s_sub_u32 s{sT2}, 32, s{sT0}
              s_add_u32 s{sT0}, s{sT0}, s{sT1}
              s_cmp_lt_u32 s{sT1}, s{sT2}
              s_cselect_b32 s{sJ}, {x}, s{sJ}
              s_cselect_b32 s{sC}, s{sT0}, s{sC}
              s_sub_u32 s{sT1}, s{sT1}, s{sT2}''')
    a.label(l7)
    a(f'''s_lshr_b32 s{sT0}, s{sC}, 4
          s_lshr_b32 s{sT1}, s{sJ}, 2
          s_and_b32 s{sJ}, s{sJ}, 3
          s_lshl_b32 s{sJ}, s{sJ}, 1
          s_add_u32 s{sJ}, s{sJ}, s{sT0}
          s_and_b32 s{sC}, s{sC}, 15
          s_lshl_b32 s{sT1}, s{sT1}, 4
          s_add_u32 s{sC}, s{sC}, s{sT1}''')
    if opt.get('prof'):
        a(f's_memrealtime s[{sST+8}:{sST+9}]')
        a('s_waitcnt lgkmcnt(0)')

import struct
def f32bits(x): return struct.unpack('<I', struct.pack('<f', x))[0]

def emit_chain_body(a, opt):
    ch = Chain(a, opt)
    lv, l7, lat = a.newlabel('Lrole_v'), a.newlabel('Lrole_w7'), a.newlabel('Lrole_att')
    a(f'''s_lshr_b32 s{sH}, s{sC}, 2
          s_lshl_b32 s{sT0}, s{sJ}, 2
          s_add_u32 s{sH}, s{sH}, s{sT0}
          s_and_b32 s{sG}, s{sC}, 3
          s_setprio 2
          s_cmp_eq_u32 s{sW}, 3
          s_cbranch_scc1 {lv}
          s_cmp_eq_u32 s{sW}, 7
          s_cbranch_scc1 {l7}
          s_cmp_ge_u32 s{sW}, 4
          s_cbranch_scc1 {lat}''')
    ch.role_qk()
    a.label(lv); ch.role_v()
    a.label(l7); ch.role_w7()
    a.label(lat); ch.role_att()
```

```python
from asmlib import *
from layout import *
import math

LM, LO, LDUMMY, LQK, LW5, LR, LOX, LBUF = 0, 10240, 13312, 16384, 22528, 34816, 35840, 38912
LBUF_SZ = 27648
LK_OFF, LV_OFF, LQ_OFF = 0, 12288, 24576
CHAIN_LDS = LBUF + 3 * LBUF_SZ
SWEEP_LDS = 139264

sWS, sDBG, sT = 4, 8, 12
sPTR = 16
def ptr(i): return sPTR + 2 * i
sW, sJ, sC, sH, sG, sMIX, sBUD, sSTEP = 48, 49, 50, 51, 52, 53, 54, 55
sA_N, sA_R, sB_C, sB_R, sC_W, sC_RS, sC_RD, sO_C = 56, 57, 58, 59, 60, 61, 62, 63
sKQ, sVX, sLB, sRED, sSCL, sT0, sT1, sT2, sT3 = 64, 65, 66, 67, 68, 69, 76, 77, 78
sMN8, sML32, sMH8 = 70, 72, 74
sSELLO, sSELHI = 80, 81
sCI = 46
sARR = 3
sMA = 46
sST = 82
sPADD, sPOR, sA_P, sCS, sPOL, sC_W2 = 94, 95, 96, 97, 79, 61
NSTAMP = 6

def srd(a, base_ptr, nbytes):
    a(f'''s_mov_b32 s{sT}, s{base_ptr}
          s_mov_b32 s{sT+1}, s{base_ptr+1}
          s_mov_b32 s{sT+2}, {nbytes}
          s_mov_b32 s{sT+3}, 0x20000''')

class Chain:
    def __init__(self, a, opt):
        self.a = a
        self.opt = opt
        self.tail = []
        self.tails = []
        self.nstamp = 0
        self.wnt = ' nt' if opt.get('w_nt') else ''

    def lstore(self, insts):
        a = self.a
        slow, back = a.newlabel('Lslow'), a.newlabel('Lback')
        a(f's_cmp_lg_u32 s{sMIX}, 0')
        a(f's_cbranch_scc1 {slow}')
        for i in insts: a(i)
        a.label(back)
        self.tail.append((slow, [i + ' sc1' if i.startswith('buffer_') else i for i in insts], back))

    def emit_tail(self):
        a = self.a
        for slow, insts, back in self.tail:
            a.label(slow)
            for i in insts: a(i)
            a(f's_branch {back}')
        self.tail = []
        for t in self.tails: t()
        self.tails = []

    def stamp(self, k, ahead=0):
        if not self.opt.get('stamps'): return
        a = self.a
        l = a.newlabel('Lst')
        a(f'''s_cmp_lg_u32 s{sSTEP}, {self.opt['stamps'] + ahead}
              s_cbranch_scc1 {l}
              {self.opt.get('clock', 's_memtime')} s[{sST+2*k}:{sST+2*k+1}]
              s_waitcnt lgkmcnt(0)''')
        a.label(l)

    def mark(self, k):
        if not self.opt.get('prof'): return
        self.a(f's_memrealtime s[{sST+2*k}:{sST+2*k+1}]')
        self.a('s_waitcnt lgkmcnt(0)')

    def dump_stamps(self):
        self.mark(3)
        if not (self.opt.get('stamps') or self.opt.get('prof')): return
        a = self.a
        if self.opt.get('dbgout'):
            l = a.newlabel('Ldo')
            a(f'''s_and_b32 s{sT0}, s{sC}, 15
                  s_or_b32 s{sT0}, s{sT0}, s{sJ}
                  s_or_b32 s{sT0}, s{sT0}, s{sW}
                  s_cmp_lg_u32 s{sT0}, 0
                  s_cbranch_scc1 {l}
                  s_cmp_ge_u32 s{sC}, 16
                  s_cselect_b32 s{sT0}, s{sST+2}, s{sST+4}
                  s_cselect_b32 s{sT2}, 56, 48
                  s_sub_u32 s{sT0}, s{sT0}, s{sST}
                  s_sub_u32 s{sT1}, s{sST+6}, s{sST}
                  s_mov_b64 exec, 1
                  v_mov_b32 v2, s{sT0}
                  v_mov_b32 v3, s{sT1}
                  v_mov_b32 v4, s{sT2}
                  buffer_store_dwordx2 v[2:3], v4, s[{sDBG}:{sDBG+3}], 0 offen
                  s_mov_b64 exec, -1''')
            a.label(l)
        a(f'''s_lshl_b32 s{sT0}, s{sJ}, 5
              s_add_u32 s{sT0}, s{sT0}, s{sC}
              s_lshl_b32 s{sT0}, s{sT0}, 3
              s_add_u32 s{sT0}, s{sT0}, s{sW}
              s_lshl_b32 s{sT0}, s{sT0}, 6
              s_add_u32 s{sT0}, s{sT0}, {WS_DBG + 0x100000}
              s_mov_b64 exec, -1
              v_mov_b32 v2, 0''')
        for k in range(NSTAMP):
            a(f'v_mov_b32 v3, s{sST+2*k}')
            a(f'buffer_store_dword v3, v2, s[{sWS}:{sWS+3}], s{sT0} offen offset:{4*k}')
        for k in range(4):
            a(f'v_mov_b32 v3, s{98+k}')
            a(f'buffer_store_dword v3, v2, s[{sWS}:{sWS+3}], s{sT0} offen offset:{4*(8+k)}')
        a('s_waitcnt vmcnt(0)')

    def retry(self, label, kind=None):
        a = self.a
        if kind is not None and self.opt.get('stamps'):
            a(f's_add_u32 s{98+kind}, s{98+kind}, 1')
        a(f'''s_sub_u32 s{sBUD}, s{sBUD}, 1
              s_cbranch_scc0 {label}
              s_mov_b32 s{sBUD}, 0''')

    def slots(self):
        a = self.a
        a(f'''s_and_b32 s{sT0}, s{sSTEP}, 3
              s_add_u32 s{sT1}, s{sSTEP}, 1
              s_and_b32 s{sT1}, s{sT1}, 3
              s_xor_b32 s{sT2}, s{sT0}, 2
              s_lshr_b32 s{sT3}, s{sJ}, 1
              s_mul_i32 s{sT3}, s{sT3}, 10240
              s_add_u32 s{sT3}, s{sT3}, {WS_RA}
              s_mul_i32 s{sA_N}, s{sT1}, {RA_SLOT}
              s_add_u32 s{sA_N}, s{sA_N}, s{sT3}
              s_mul_i32 s{sA_R}, s{sT2}, {RA_SLOT}
              s_add_u32 s{sA_R}, s{sA_R}, s{sT3}
              s_mul_i32 s{sT3}, s{sH}, 9216
              s_add_u32 s{sT3}, s{sT3}, {WS_RB}
              s_mul_i32 s{sB_C}, s{sT0}, {RB_SLOT}
              s_add_u32 s{sB_C}, s{sB_C}, s{sT3}
              s_mul_i32 s{sB_R}, s{sT2}, {RB_SLOT}
              s_add_u32 s{sB_R}, s{sB_R}, s{sT3}
              s_and_b32 s{sT0}, s{sCS}, 255
              s_mul_i32 s{sT1}, s{sT0}, 86
              s_lshr_b32 s{sT1}, s{sT1}, 8
              s_mul_i32 s{sC_RD}, s{sT0}, {RC_SLOT}
              s_mul_i32 s{sT2}, s{sT1}, {0x200000 - 3*RC_SLOT}
              s_add_u32 s{sC_RD}, s{sC_RD}, s{sT2}
              s_add_u32 s{sC_RD}, s{sC_RD}, {WS_RC}
              s_xor_b32 s{sT1}, s{sPOL}, s{sT1}
              s_and_b32 s{sT1}, s{sT1}, 1
              s_lshl_b32 s{sT1}, s{sT1}, 13
              s_add_u32 s{sC_RD}, s{sC_RD}, s{sT1}
              s_lshl_b32 s{sT3}, s{sH}, 8
              s_add_u32 s{sC_W}, s{sC_RD}, s{sT3}
              s_lshl_b32 s{sPOR}, s{sCS}, 8
              s_and_b32 s{sPOR}, s{sPOR}, 0x10000
              s_xor_b32 s{sPADD}, s{sPOR}, 0x10000
              s_mul_i32 s{sO_C}, s{sSTEP}, {32*12288}
              s_add_u32 s{sO_C}, s{sO_C}, {WS_O}''')

    def next_step(self):
        a = self.a
        a(f'''s_add_u32 s{sSTEP}, s{sSTEP}, 1
              s_add_u32 s{sCS}, s{sCS}, 1
              s_and_b32 s{sT0}, s{sCS}, 255
              s_xor_b32 s{sT1}, s{sCS}, {256 + RC_N}
              s_cmp_eq_u32 s{sT0}, {RC_N}
              s_cselect_b32 s{sCS}, s{sT1}, s{sCS}''')
        self.slots()

    def load_pair(self, WA, WB, nks, voff, rowstride, tmp):
        a = self.a
        items = []
        for ks in range(nks):
            for R in range(8):
                hi, p = R >> 2, R & 3
                b, tt = p & 1, p >> 1
                d = 64 * ks + 32 * hi + 8 * b + 2 * tt
                items.append((WA + ks * 8 + R, WB + ks * 8 + R, d))
        def issue(it):
            ra, rb, d = it
            a(f's_mov_b32 s{sT0}, {d * rowstride}')
            a(f'buffer_load_dword v{ra}, v{voff}, s[{sT}:{sT+3}], s{sT0} offen' + self.wnt)
            a(f's_mov_b32 s{sT1}, {(d + 1) * rowstride}')
            a(f'buffer_load_dword v{rb}, v{voff}, s[{sT}:{sT+3}], s{sT1} offen' + self.wnt)
        def fix(it):
            ra, rb, d = it
            a(f'v_perm_b32 v{tmp}, v{rb}, v{ra}, s{sSELLO}')
            a(f'v_perm_b32 v{rb}, v{rb}, v{ra}, s{sSELHI}')
            a(f'v_mov_b32 v{ra}, v{tmp}')
        groups = [items[i:i + 8] for i in range(0, len(items), 8)]
        groups = [items[i:i + 4] for i in range(0, len(items), 4)]
        depth = 7
        for gi in range(min(depth, len(groups))):
            for it in groups[gi]: issue(it)
        for gi in range(len(groups)):
            inflight = min(len(groups), gi + depth) - gi - 1
            a(f's_waitcnt vmcnt({8 * inflight})')
            for it in groups[gi]: fix(it)
            if gi + depth < len(groups):
                for it in groups[gi + depth]: issue(it)

    def load_single(self, W, nks, voff, vsel, rowstride, tmps):
        a = self.a
        items = []
        for ks in range(nks):
            for R in range(8):
                hi, p = R >> 2, R & 3
                b, tt = p & 1, p >> 1
                items.append((W + ks * 8 + R, 64 * ks + 32 * hi + 8 * b + 2 * tt))
        groups = [items[i:i + 4] for i in range(0, len(items), 4)]
        depth = 7
        def issue(gi):
            for k, (r, d) in enumerate(groups[gi]):
                t = tmps + (gi % depth) * 4 + k
                a(f's_mov_b32 s{sT0}, {d * rowstride}')
                a(f'buffer_load_dword v{r}, v{voff}, s[{sT}:{sT+3}], s{sT0} offen' + self.wnt)
                a(f's_mov_b32 s{sT1}, {(d + 1) * rowstride}')
                a(f'buffer_load_dword v{t}, v{voff}, s[{sT}:{sT+3}], s{sT1} offen' + self.wnt)
        for gi in range(min(depth, len(groups))): issue(gi)
        for gi in range(len(groups)):
            inflight = min(len(groups), gi + depth) - gi - 1
            a(f's_waitcnt vmcnt({8 * inflight})')
            for k, (r, d) in enumerate(groups[gi]):
                t = tmps + (gi % depth) * 4 + k
                a(f'v_perm_b32 v{r}, v{t}, v{r}, v{vsel}')
            if gi + depth < len(groups): issue(gi + depth)

    def lanes(self, al):
        a = self.a
        self.vL, self.vN, self.vQ = al(), al(), al()
        self.vT0, self.vT1, self.vT2 = al(), al(), al()
        self.vMask = 0
        a(f'''v_and_b32 v{self.vL}, 63, v0
              v_and_b32 v{self.vN}, 15, v0
              v_bfe_u32 v{self.vQ}, v0, 4, 2
              v_mov_b32 v0, 0xfffe0000''')

    def frag_addr(self, dst):
        a = self.a
        a(f'''v_lshlrev_b32 v{dst}, 8, v{self.vQ}
              v_bfe_u32 v{self.vT0}, v{self.vN}, 1, 1
              v_lshl_add_u32 v{dst}, v{self.vT0}, 7, v{dst}
              v_lshrrev_b32 v{self.vT0}, 2, v{self.vN}
              v_lshl_add_u32 v{dst}, v{self.vT0}, 5, v{dst}
              v_and_b32 v{self.vT0}, 1, v{self.vN}
              v_lshl_add_u32 v{dst}, v{self.vT0}, 4, v{dst}''')

    def idx_reg(self, dst):
        a = self.a
        a(f'''v_and_b32 v{self.vT0}, 2, v{self.vN}
              v_cmp_eq_u32 vcc, 2, v{self.vT0}
              v_mov_b32 v{dst}, 0x44444444
              v_mov_b32 v{self.vT0}, 0xeeeeeeee
              s_nop 1
              v_cndmask_b32 v{dst}, v{dst}, v{self.vT0}, vcc''')

    def wrow_lane(self, dst, rowstride):
        a = self.a
        a(f'''v_lshrrev_b32 v{self.vT0}, 1, v{self.vQ}
              v_lshlrev_b32 v{self.vT0}, 4, v{self.vT0}
              v_and_b32 v{self.vT1}, 1, v{self.vQ}
              v_lshl_add_u32 v{self.vT0}, v{self.vT1}, 2, v{self.vT0}
              s_mov_b32 s{sT0}, {rowstride}
              v_mul_lo_u32 v{dst}, v{self.vT0}, s{sT0}''')

    def wait_all_registered(self):
        a = self.a
        a('s_barrier')
        w = a.newlabel('Lp0')
        a(f's_cmp_lg_u32 s{sW}, 0')
        a(f's_cbranch_scc1 {w}')
        wait_registered(a, self.opt, self.vT0, self.vT1, self.vL, True)
        a(f'''s_lshl_b32 s{sPOL}, s{sPOL}, 1
              s_or_b32 s{sPOL}, s{sPOL}, s{sMIX}
              v_mov_b32 v{self.vT0}, s{sPOL}
              v_mov_b32 v{self.vT1}, {LR + 64}
              ds_write_b32 v{self.vT1}, v{self.vT0}
              s_waitcnt lgkmcnt(0)''')
        a.label(w)
        a(f'''s_barrier
              v_mov_b32 v{self.vT1}, {LR + 64}
              ds_read_b32 v{self.vT0}, v{self.vT1}
              s_waitcnt lgkmcnt(0)
              v_readfirstlane_b32 s{sPOL}, v{self.vT0}
              s_and_b32 s{sMIX}, s{sPOL}, 1
              s_lshr_b32 s{sPOL}, s{sPOL}, 1''')
        if self.opt.get('pol') is not None: pass
        self.slots()

    def wait_tiles(self, seg, first, nflags):
        if not self.opt.get('fused'): return
        a = self.a
        lp, ok, skip = a.newlabel('Lwt'), a.newlabel('Lwtok'), a.newlabel('Lwts')
        T0, T1 = self.vT0, self.vT1
        a(f'''s_and_b32 s{sT0}, s{seg}, 7
              s_cbranch_scc1 {skip}
              s_lshr_b32 s{sT0}, s{seg}, 3
              s_mul_i32 s{sT0}, s{sT0}, 48
              s_lshl_b32 s{sT1}, s{sJ}, 9
              s_add_u32 s{sT0}, s{sT0}, s{sT1}
              s_and_b32 s{sT1}, s{sH}, 3
              s_lshl_b32 s{sT1}, s{sT1}, 2
              s_add_u32 s{sT0}, s{sT0}, s{sT1}
              s_add_u32 s{sT0}, s{sT0}, {WS_FLAG + 16*first}
              v_lshlrev_b32 v{T1}, 4, v{self.vL}
              s_mov_b64 exec, {(1 << nflags) - 1}''')
        a.label(lp)
        a(f'''buffer_load_dword v{T0}, v{T1}, s[{sWS}:{sWS+3}], s{sT0} offen sc1
              s_waitcnt vmcnt(0)
              v_cmp_eq_u32 vcc, 0, v{T0}
              s_cbranch_vccz {ok}
              s_sleep {self.opt.get('t_sleep', 2)}''')
        self.retry(lp)
        a.label(ok)
        a('s_mov_b64 exec, -1')
        a.label(skip)

    def o_flag(self, back):
        if not self.opt.get('fused'): return
        a = self.a
        if self.opt.get('no_oflag'): return
        a(f'''s_lshl_b32 s{sT0}, s{sJ}, 4
              s_add_u32 s{sT0}, s{sT0}, s{sC}
              s_lshl_b32 s{sT0}, s{sT0}, 7
              s_add_u32 s{sT0}, s{sT0}, {WS_OFLAG}
              s_add_u32 s{sT1}, s{sSTEP}, {1 - back}
              v_mov_b32 v{self.vT0}, s{sT1}
              v_mov_b32 v{self.vT1}, 0
              s_mov_b64 exec, 1''')
        a(f'buffer_store_dword v{self.vT0}, v{self.vT1}, s[{sWS}:{sWS+3}], s{sT0} offen sc1')
        a('s_mov_b64 exec, -1')

    def poll2(self, vOff, soff, lds, sets, kind, gap):
        a = self.a
        t, t2 = self.vT0, self.vT1
        n = len(sets)
        def issue(R):
            a(f'''buffer_load_dwordx4 v[{R}:{R+3}], v{vOff}, s[{sWS}:{sWS+3}], s{soff} offen sc1
                  buffer_load_dwordx4 v[{R+4}:{R+7}], v{vOff}, s[{sWS}:{sWS+3}], s{soff} offen offset:1024 sc1''')
        def check(R, br):
            a(f'''ds_write_b128 v{vOff}, v[{R}:{R+3}] offset:{lds}
                  ds_write_b128 v{vOff}, v[{R+4}:{R+7}] offset:{lds+1024}
                  v_max3_u32 v{t}, v{R}, v{R+1}, v{R+2}
                  v_max3_u32 v{t2}, v{R+3}, v{R+4}, v{R+5}
                  v_max3_u32 v{t}, v{t}, v{R+6}, v{R+7}
                  v_max_u32 v{t}, v{t}, v{t2}
                  v_cmp_eq_u32 vcc, -1, v{t}
                  {br}''')
        lp, ok = a.newlabel('Lp'), a.newlabel('Lpok')
        for k in range(n):
            issue(sets[k])
            if gap and k < n - 1: a(f's_sleep {gap}')
        a(f's_waitcnt vmcnt({2 * (n - 1)})')
        if kind == 0 and self.opt.get('fine'): self.stamp(3)
        check(sets[0], f's_cbranch_vccnz {lp}')
        a.label(ok)
        def tail():
            back = a.newlabel('Lpb')
            a.label(lp)
            for k in range(n):
                if self.opt.get('stamps'): a(f's_add_u32 s{98+kind}, s{98+kind}, 1')
                a('s_mov_b64 exec, vcc')
                issue(sets[k])
                a(f's_waitcnt vmcnt({2 * (n - 1)})')
                check(sets[(k + 1) % n], f's_cbranch_vccz {back}')
            self.retry(lp)
            a.label(back)
            a('s_mov_b64 exec, -1')
            a(f's_branch {ok}')
        self.tails.append(tail)

    def a_poll(self, vAoff, sets, first=False):
        a = self.a
        if first:
            a(f's_lshr_b32 s{sA_P}, s{sJ}, 1')
            a(f's_mul_i32 s{sA_P}, s{sA_P}, 10240')
            a(f's_add_u32 s{sA_P}, s{sA_P}, {WS_RA}')
        else:
            a(f's_mov_b32 s{sA_P}, s{sA_N}')
            self.next_step()
        a('s_barrier')
        if self.opt.get('a_first'): a(f"s_sleep {self.opt['a_first']}")
        self.poll2(vAoff, sA_P, LM, sets[:self.opt.get('a_depth', 1)], 2, self.opt.get('a_gap', 0))
        a('s_waitcnt lgkmcnt(0)')
        if not first: self.stamp(4, 1)
        a('s_barrier')

    def mem0_load(self, vAoff, R):
        a = self.a
        srd(a, ptr(1), 10240)
        T0, T1 = self.vT0, self.vT1
        a(f'''v_bfe_u32 v{T0}, v{vAoff}, 4, 3
              v_mul_u32_u24 v{T0}, 1280, v{T0}
              v_lshrrev_b32 v{T1}, 7, v{vAoff}
              v_lshl_add_u32 v{T0}, v{T1}, 4, v{T0}
              buffer_load_dwordx4 v[{R}:{R+3}], v{T0}, s[{sT}:{sT+3}], 0 offen
              buffer_load_dwordx4 v[{R+4}:{R+7}], v{T0}, s[{sT}:{sT+3}], 0 offen offset:128
              s_waitcnt vmcnt(0)
              ds_write_b128 v{vAoff}, v[{R}:{R+3}] offset:{LM}
              ds_write_b128 v{vAoff}, v[{R+4}:{R+7}] offset:{LM+1024}
              s_waitcnt lgkmcnt(0)''')

    def a_off(self, dst):
        a = self.a
        a(f'''s_sub_u32 s{sT0}, s{sW}, 3
              s_lshl_b32 s{sT0}, s{sT0}, 11
              v_lshlrev_b32 v{dst}, 4, v{self.vL}
              v_add_u32 v{dst}, s{sT0}, v{dst}''')

    def dma_seg_regs(self, seg_expr_sgpr):
        a = self.a
        sg = seg_expr_sgpr
        a(f'''s_lshl_b32 s{sT0}, s{sH}, 6
              s_add_u32 s{sT0}, s{sT0}, s{sg}
              s_mul_i32 s{sKQ}, s{sT0}, 12288
              s_add_u32 s{sVX}, s{sKQ}, {WS_VT}
              s_mul_i32 s{sT0}, s{sg}, 86
              s_lshr_b32 s{sT0}, s{sT0}, 8
              s_mul_i32 s{sT0}, s{sT0}, 3
              s_sub_u32 s{sT0}, s{sg}, s{sT0}
              s_mul_i32 s{sLB}, s{sT0}, {LBUF_SZ}
              s_add_u32 s{sLB}, s{sLB}, {LBUF}''')

    def dma12(self, v, base, lds, pieces):
        a = self.a
        for k in pieces:
            a(f'''s_add_u32 s{sT2}, s{sG}, {k}
                  s_and_b32 s{sT2}, s{sT2}, 3
                  s_mul_i32 s{sT2}, s{sT2}, 3072
                  s_add_u32 s{sT1}, s{sLB}, s{sT2}
                  s_add_u32 m0, s{sT1}, {lds}
                  s_add_u32 s{sT1}, s{sKQ}, s{sT2}
                  s_add_u32 s{sT1}, s{sT1}, {base}''')
            for t in range(3):
                a(f'buffer_load_dwordx4 v{v}, s[{sWS}:{sWS+3}], s{sT1} offen offset:{1024*t} sc1 lds')

    def dma_q(self, vQx):
        a = self.a
        for p in range(3):
            a(f's_add_u32 m0, s{sLB}, {LQ_OFF + p*1024}')
            a(f's_add_u32 s{sT1}, s{sKQ}, {WS_Q + p*2048}')
            a(f'buffer_load_dwordx4 v{vQx}, s[{sWS}:{sWS+3}], s{sT1} offen sc1 lds')

    def stage(self, own, rest, first, nflags):
        a = self.a
        l1, l2 = a.newlabel('Lsg'), a.newlabel('Lsg')
        def part(ahead, fn, lab, wait):
            a(f"""s_add_u32 s{sT3}, s{sSTEP}, {ahead}
                  s_cmp_ge_u32 s{sT3}, 64
                  s_cbranch_scc1 {lab}""")
            if wait: self.wait_tiles(sT3, first, nflags)
            self.dma_seg_regs(sT3)
            if not self.opt.get('no_dma'): fn()
            a.label(lab)
        if self.opt.get('own_last'):
            part(2, rest, l2, False); part(3, own, l1, True)
        else:
            part(3, own, l1, True); part(2, rest, l2, False)

    def stage_first(self, own, rest, first, nflags):
        a = self.a
        self.wait_tiles(sSTEP, first, nflags)
        for sg in range(3):
            a(f's_mov_b32 s{sT3}, {sg}')
            self.dma_seg_regs(sT3); own()
            if sg < 2: rest()
        a('s_waitcnt vmcnt(0)')

    def wo_stage(self, pairs, vFrag, vIdx, F, vCoff, RR, skip):
        a = self.a
        for ks in range(3):
            a(f'ds_read_b128 v[{F+4*ks}:{F+4*ks+3}], v{vFrag} offset:{LO + 1024*ks}')
        a(f'v_lshlrev_b32 v{self.vT0}, 3, v{self.vQ}')
        a(f'ds_read_b64 v[{RR}:{RR+1}], v{self.vT0} offset:{LR}')
        a(f's_cmp_eq_u32 s{sSTEP}, 63')
        a(f's_cbranch_scc1 {skip}')
        for ks in range(3):
            a(f's_waitcnt lgkmcnt({3-ks})')
            for (WA, WB, TA, TB, coff) in pairs:
                a(f'v_smfmac_f32_16x16x64_bf16 v[{TA}:{TA+3}], v[{F+4*ks}:{F+4*ks+3}], v[{WA+8*ks}:{WA+8*ks+7}], v{vIdx}')
                a(f'v_smfmac_f32_16x16x64_bf16 v[{TB}:{TB+3}], v[{F+4*ks}:{F+4*ks+3}], v[{WB+8*ks}:{WB+8*ks+7}], v{vIdx}')
        a('s_waitcnt lgkmcnt(0)')
        a('s_nop 5')
        for (WA, WB, TA, TB, coff) in pairs:
            self.pair_epilogue(TA, TB, RR)
            a(f'buffer_store_dword v{TA}, v{vCoff}, s[{sWS}:{sWS+3}], s{sC_W} offen offset:{coff} sc1')
            a(f'buffer_store_dword v{TB}, v{vCoff}, s[{sWS}:{sWS+3}], s{sC_W} offen offset:{coff+128} sc1')

    def pair_epilogue(self, TA, TB, RR=None):
        a = self.a
        a(f"""v_pk_add_f32 v[{TA}:{TA+1}], v[{TA}:{TA+1}], v[{TA+2}:{TA+3}]
              v_pk_add_f32 v[{TB+2}:{TB+3}], v[{TB}:{TB+1}], v[{TB+2}:{TB+3}]""")
        if RR is not None:
            a(f"""v_pk_mul_f32 v[{TA}:{TA+1}], v[{TA}:{TA+1}], v[{RR}:{RR+1}]
                  v_pk_mul_f32 v[{TB+2}:{TB+3}], v[{TB+2}:{TB+3}], v[{RR}:{RR+1}]
                  v_add_u32 v{TA}, s{sPADD}, v{TA}
                  v_add_u32 v{TA+1}, s{sPADD}, v{TA+1}
                  v_and_or_b32 v{TA}, v{TA}, v{self.vMask}, s{sPOR}
                  v_and_or_b32 v{TA+1}, v{TA+1}, v{self.vMask}, s{sPOR}
                  v_cvt_pk_bf16_f32 v{TA}, v{TA}, v{TB+2}
                  v_cvt_pk_bf16_f32 v{TB}, v{TA+1}, v{TB+3}""")
            return
        a(f"""v_cvt_pk_bf16_f32 v{TA}, v{TA}, v{TB+2}
              v_cvt_pk_bf16_f32 v{TB}, v{TA+1}, v{TB+3}
              v_min_u32 v{TA}, -2, v{TA}
              v_min_u32 v{TB}, -2, v{TB}""")

    def zero(self, r, n):
        for k in range(n): self.a(f'v_mov_b32 v{r+k}, 0')

    def c_off(self, dst, pw_sgpr_or_int):
        a = self.a
        T0 = self.vT0
        a(f'''v_lshrrev_b32 v{dst}, 3, v{self.vN}
              v_lshlrev_b32 v{dst}, 14, v{dst}
              v_bfe_u32 v{T0}, v{self.vN}, 2, 1
              v_lshl_add_u32 v{dst}, v{T0}, 6, v{dst}
              v_lshl_add_u32 v{dst}, v{self.vQ}, 4, v{dst}
              v_and_b32 v{T0}, 3, v{self.vN}
              v_lshl_add_u32 v{dst}, v{T0}, 2, v{dst}
              s_mul_i32 s{sT0}, s{sG}, 163840''')
        if isinstance(pw_sgpr_or_int, int):
            a(f's_add_u32 s{sT0}, s{sT0}, {32768*pw_sgpr_or_int}')
        else:
            a(f's_lshl_b32 s{sT1}, {pw_sgpr_or_int}, 15')
            a(f's_add_u32 s{sT0}, s{sT0}, s{sT1}')
        a(f'v_add_u32 v{dst}, s{sT0}, v{dst}')

    def wo_weights(self, WA, WB, pw, vtmp, tmp):
        a = self.a
        srd(a, ptr(5), NH * DH * DM * 2)
        self.wrow_lane(vtmp, 1280)
        a(f'''s_mul_i32 s{sT0}, s{sH}, {DH*DM*2}
              s_mul_i32 s{sT1}, s{sG}, 320
              s_add_u32 s{sT0}, s{sT0}, s{sT1}''')
        if isinstance(pw, int):
            a(f's_add_u32 s{sT0}, s{sT0}, {64*pw}')
        else:
            a(f's_lshl_b32 s{sT1}, {pw}, 6')
            a(f's_add_u32 s{sT0}, s{sT0}, s{sT1}')
        a(f'''v_lshl_add_u32 v{vtmp}, v{self.vN}, 2, v{vtmp}
              v_add_u32 v{vtmp}, s{sT0}, v{vtmp}''')
        self.load_pair(WA, WB, 3, vtmp, 1280, tmp)

    def finish(self):
        self.dump_stamps()
        self.a('s_endpgm')

    def touch_weights(self):
        a = self.a
        T0, T1 = self.vT0, self.vT1
        a(f's_mov_b32 m0, {SWEEP_LDS}')
        srd(a, ptr(4), DM * NH * DH * 2)
        a(f"""s_mov_b32 s{sT0}, 12288
              v_mul_lo_u32 v{T0}, v{self.vL}, s{sT0}
              s_mul_i32 s{sT0}, s{sH}, 384
              s_mul_i32 s{sT1}, s{sG}, 96
              s_add_u32 s{sT0}, s{sT0}, s{sT1}
              s_mul_i32 s{sT1}, s{sRED}, {64*12288}
              s_add_u32 s{sT0}, s{sT0}, s{sT1}""")
        for i in range(4):
            a(f'buffer_load_dword v{T0}, s[{sT}:{sT+3}], s{sT0} offen lds')
            a(f'buffer_load_dword v{T0}, s[{sT}:{sT+3}], s{sT0} offen offset:92 lds')
            if i < 3: a(f's_add_u32 s{sT0}, s{sT0}, {192*12288}')
        srd(a, ptr(5), NH * DH * DM * 2)
        a(f"""v_mul_u32_u24 v{T1}, 1280, v{self.vL}
              s_mul_i32 s{sT0}, s{sH}, {DH*DM*2}
              s_mul_i32 s{sT1}, s{sG}, 320
              s_add_u32 s{sT0}, s{sT0}, s{sT1}
              s_mul_i32 s{sT1}, s{sRED}, {64*1280}
              s_add_u32 s{sT0}, s{sT0}, s{sT1}""")
        for off in (0, 128, 256, 316):
            a(f'buffer_load_dword v{T1}, s[{sT}:{sT+3}], s{sT0} offen offset:{off} lds')

    def c_page_init(self, R, vLin):
        a = self.a
        a(f's_add_u32 s{sT2}, s{sCI}, 4096')
        for k in range(5):
            a(f'buffer_store_dwordx4 v[{R}:{R+3}], v{vLin}, s[{sWS}:{sWS+3}], s{sT2 if k == 4 else sCI} offen offset:{1024*(k&3)} sc1')
        a(f's_add_u32 s{sCI}, s{sCI}, 0x200000')

    def init_job(self, R):
        a = self.a
        vLin = R + 20
        sU = sA_P
        a(f"""s_lshl_b32 s{sU}, s{sJ}, 4
              s_add_u32 s{sU}, s{sU}, s{sC}
              s_mul_i32 s{sU}, s{sU}, 3
              s_add_u32 s{sU}, s{sU}, s{sRED}
              v_lshlrev_b32 v{vLin}, 4, v{self.vL}""")
        for k in range(4): a(f'v_mov_b32 v{R+k}, -1')
        for k in range(4): a(f'v_mov_b32 v{R+4+k}, 0')
        l1, l2 = a.newlabel('Lin'), a.newlabel('Lin')
        a(f"""s_cmp_ge_u32 s{sU}, 368
              s_cbranch_scc1 {l1}
              s_lshl_b32 s{sT0}, s{sU}, 12
              s_add_u32 s{sT0}, s{sT0}, {WS_RA}""")
        l0 = a.newlabel('Lin')
        a(f"""s_cmp_lt_u32 s{sU}, 20
              s_cbranch_scc1 {l0}""")
        for k in range(4):
            a(f'buffer_store_dwordx4 v[{R}:{R+3}], v{vLin}, s[{sWS}:{sWS+3}], s{sT0} offen offset:{1024*k} sc1')
        a(f's_branch {l1}')
        a.label(l0)
        srd(a, ptr(1), 10240)
        a(f's_lshl_b32 s{sT1}, s{sU}, 12')
        for k in range(4):
            D = R + 24 + 4*k
            a(f"""s_add_u32 s{sT2}, s{sT1}, {1024*k}
                  s_lshr_b32 s{sT3}, s{sT2}, 10
                  s_mul_i32 s{sT3}, s{sT3}, 205
                  s_lshr_b32 s{sT3}, s{sT3}, 11
                  s_mul_i32 s{sT3}, s{sT3}, 10240
                  s_sub_u32 s{sT2}, s{sT2}, s{sT3}
                  s_lshr_b32 s{sT2}, s{sT2}, 3
                  v_lshrrev_b32 v{R+8}, 2, v{self.vN}
                  v_and_b32 v{R+9}, 1, v{self.vN}
                  v_lshl_add_u32 v{R+8}, v{R+8}, 1, v{R+9}
                  v_mul_u32_u24 v{R+8}, 1280, v{R+8}
                  v_lshl_add_u32 v{R+8}, v{self.vQ}, 5, v{R+8}
                  v_bfe_u32 v{R+9}, v{self.vN}, 1, 1
                  v_lshl_add_u32 v{R+8}, v{R+9}, 4, v{R+8}
                  buffer_load_dwordx4 v[{D}:{D+3}], v{R+8}, s[{sT}:{sT+3}], s{sT2} offen""")
        a('s_waitcnt vmcnt(0)')
        for k in range(4):
            D = R + 24 + 4*k
            for e in range(4): a(f'v_min_u32 v{D+e}, -2, v{D+e}')
            a(f'buffer_store_dwordx4 v[{D}:{D+3}], v{vLin}, s[{sWS}:{sWS+3}], s{sT0} offen offset:{1024*k} sc1')
        a('s_waitcnt vmcnt(0)')
        a.label(l1)
        a(f"""s_sub_u32 s{sT0}, s{sU}, 4
              s_cmp_ge_u32 s{sT0}, 252
              s_cbranch_scc1 {l2}
              s_lshl_b32 s{sT0}, s{sU}, 10
              s_add_u32 s{sT0}, s{sT0}, {WS_FLAG}
              buffer_store_dwordx4 v[{R+4}:{R+7}], v{vLin}, s[{sWS}:{sWS+3}], s{sT0} offen sc1""")
        a.label(l2)

    def arrive_init(self, R):
        t1, t2 = R + 14, R + 15
        self.a(f"""s_waitcnt vmcnt(0)
              v_mov_b32 v{t1}, 1
              v_mov_b32 v{t2}, 128
              s_mov_b64 exec, 1
              buffer_atomic_add v{t1}, v{t2}, s[{sDBG}:{sDBG+3}], 0 offen sc1
              s_mov_b64 exec, -1""")

    def role_qk(self):
        a = self.a
        al = Alloc(1, 256)
        self.lanes(al)
        WA, WB = al(80, 4), al(80, 4)
        M = al(40, 4)
        TA, TB = al(4, 4), al(4, 4)
        SEL = al(4, 4)
        RC = al(2)
        AC2 = al(4, 2)
        vFrag, vIdx, vB, vAst, vSent = al(3, 1), al(), al(), al(), al(2)
        T0, T1, T2 = self.vT0, self.vT1, self.vT2
        a(f'v_lshlrev_b32 v{vFrag}, 4, v{self.vL}'); self.idx_reg(vIdx)
        a(f'v_add_u32 v{vFrag+1}, 4096, v{vFrag}')
        a(f'v_add_u32 v{vFrag+2}, 8192, v{vFrag}')
        a(f'''s_mul_i32 s{sT2}, s{sG}, 3
              s_add_u32 s{sT2}, s{sT2}, s{sW}
              s_cmp_ge_u32 s{sT2}, 6
              s_cselect_b32 s{sT}, s{ptr(3)}, s{ptr(2)}
              s_cselect_b32 s{sT+1}, s{ptr(3)+1}, s{ptr(2)+1}
              s_cselect_b32 s{sT1}, 6, 0
              s_lshl_b32 s{sT3}, s{sT2}, 9
              s_sub_u32 s{sT2}, s{sT2}, s{sT1}
              s_mov_b32 s{sT+2}, {DM*NH*DH*2}
              s_mov_b32 s{sT+3}, 0x20000
              s_lshl_b32 s{sT2}, s{sT2}, 6
              v_lshlrev_b32 v{vB}, 7, v{self.vQ}
              v_lshl_add_u32 v{vB}, v{self.vN}, 2, v{vB}
              v_add_u32 v{vB}, s{sT3}, v{vB}''')
        vW = M
        self.wrow_lane(vW, 12288)
        a(f'''v_lshlrev_b32 v{T0}, 1, v{self.vN}
              v_and_b32 v{T1}, 0x13, v{T0}
              v_and_b32 v{T2}, 4, v{T0}
              v_lshl_add_u32 v{T1}, v{T2}, 1, v{T1}
              v_and_b32 v{T2}, 8, v{T0}
              v_lshrrev_b32 v{T2}, 1, v{T2}
              v_add_u32 v{T1}, v{T1}, v{T2}
              v_lshl_add_u32 v{vW}, v{T1}, 1, v{vW}
              s_mul_i32 s{sT0}, s{sH}, 384
              s_add_u32 s{sT0}, s{sT0}, s{sT2}
              v_add_u32 v{vW}, s{sT0}, v{vW}''')
        self.load_pair(WA, WB, 10, vW, 12288, T2)
        a(f'''s_and_b32 s{sT0}, s{sJ}, 1
              s_lshl_b32 s{sT0}, s{sT0}, 4
              s_add_u32 s{sT0}, s{sT0}, s{sC}
              s_lshl_b32 s{sT1}, s{sW}, 5
              s_add_u32 s{sT0}, s{sT0}, s{sT1}
              s_lshr_b32 s{sRED}, s{sT0}, 1
              s_and_b32 s{sT2}, s{sT0}, 1
              s_lshl_b32 s{sT0}, s{sRED}, 8
              s_lshl_b32 s{sT3}, s{sT2}, 4
              s_add_u32 s{sT0}, s{sT0}, s{sT3}
              s_lshl_b32 s{sT1}, s{sRED}, 14
              s_lshl_b32 s{sT3}, s{sT2}, 7
              s_add_u32 s{sT1}, s{sT1}, s{sT3}
              v_lshlrev_b32 v{RC}, 8, v{self.vQ}
              v_lshrrev_b32 v{T0}, 3, v{self.vN}
              v_lshl_add_u32 v{RC}, v{T0}, 10, v{RC}
              v_and_b32 v{T0}, 7, v{self.vN}
              v_lshl_add_u32 v{RC}, v{T0}, 4, v{RC}
              v_add_u32 v{RC}, s{sT1}, v{RC}
              v_add_u32 v{RC+1}, 4096, v{RC}
              v_bfe_u32 v{T0}, v{self.vN}, 2, 1
              v_lshlrev_b32 v{vAst}, 5, v{T0}
              v_and_b32 v{T0}, 3, v{self.vN}
              v_lshl_add_u32 v{vAst}, v{T0}, 6, v{vAst}
              v_lshl_add_u32 v{vAst}, v{self.vQ}, 3, v{vAst}
              v_add_u32 v{vAst}, s{sT0}, v{vAst}
              s_mov_b32 s{sMA}, 0x00ff00ff
              s_mov_b32 s{sMA+1}, 0''')
        a(f'''s_nop 0
              v_mov_b32 v{vSent}, -1
              v_mov_b32 v{vSent+1}, -1''')
        for p in range(4):
            a(f'''v_mov_b32 v{SEL+p}, 0
                  v_mov_b32 v{T0}, 0x3f80
                  v_cmp_eq_u32 vcc, {2*p}, v{self.vN}
                  s_nop 1
                  v_cndmask_b32 v{SEL+p}, v{SEL+p}, v{T0}, vcc
                  v_mov_b32 v{T0}, 0x3f800000
                  v_cmp_eq_u32 vcc, {2*p+1}, v{self.vN}
                  s_nop 1
                  v_cndmask_b32 v{SEL+p}, v{SEL+p}, v{T0}, vcc''')
        self.zero(TA, 8)
        self.mark(1)
        self.wait_all_registered()
        a('s_barrier')
        self.mark(2)
        loop, end = a.newlabel('Lqk'), a.newlabel('Lqkend')
        a('s_barrier')
        a.label(loop)
        a('s_barrier')
        self.stamp(0)
        for ks in range(10):
            a(f'ds_read_b128 v[{M+4*ks}:{M+4*ks+3}], v{vFrag} offset:{LM + 1024*ks}')
        for ks in range(10):
            a(f's_waitcnt lgkmcnt({9-ks})')
            a(f'v_smfmac_f32_16x16x64_bf16 v[{TA}:{TA+3}], v[{M+4*ks}:{M+4*ks+3}], v[{WA+8*ks}:{WA+8*ks+7}], v{vIdx}')
            a(f'v_smfmac_f32_16x16x64_bf16 v[{TB}:{TB+3}], v[{M+4*ks}:{M+4*ks+3}], v[{WB+8*ks}:{WB+8*ks+7}], v{vIdx}')
        a('s_nop 7')
        self.pair_epilogue(TA, TB)
        self.lstore([f'buffer_store_dword v{TA}, v{vB}, s[{sWS}:{sWS+3}], s{sB_C} offen',
                     f'buffer_store_dword v{TB}, v{vB}, s[{sWS}:{sWS+3}], s{sB_C} offen offset:64'])
        a('s_barrier')
        self.stamp(1)
        def resets():
            self.lstore([f'buffer_store_dword v{vSent}, v{vB}, s[{sWS}:{sWS+3}], s{sB_R} offen',
                         f'buffer_store_dword v{vSent}, v{vB}, s[{sWS}:{sWS+3}], s{sB_R} offen offset:64'])
            sk = a.newlabel('Lqar')
            a(f's_cmp_ge_u32 s{sRED}, 40')
            a(f's_cbranch_scc1 {sk}')
            a(f's_mov_b64 exec, s[{sMA}:{sMA+1}]')
            self.lstore([f'buffer_store_dwordx2 v[{vSent}:{vSent+1}], v{vAst}, s[{sWS}:{sWS+3}], s{sA_R} offen'])
            a('s_mov_b64 exec, -1')
            a.label(sk)
        self.zero(TA, 8)
        a('s_barrier')
        resets()
        if self.opt.get('prof'):
            a(f'''s_memrealtime s[{sST+10}:{sST+11}]
                  s_lshl_b32 s{sT0}, s{sJ}, 4
                  s_add_u32 s{sT0}, s{sT0}, s{sC}
                  s_lshl_b32 s{sT0}, s{sT0}, 2
                  s_add_u32 s{sT0}, s{sT0}, s{sW}
                  s_lshl_b32 s{sT0}, s{sT0}, 6
                  s_add_u32 s{sT0}, s{sT0}, s{sSTEP}
                  s_lshl_b32 s{sT0}, s{sT0}, 2
                  s_add_u32 s{sT0}, s{sT0}, {WS_DBG + 0x200000}
                  v_mov_b32 v{T1}, 0
                  s_waitcnt lgkmcnt(0)
                  v_mov_b32 v{T0}, s{sST+10}
                  buffer_store_dword v{T0}, v{T1}, s[{sWS}:{sWS+3}], s{sT0} offen
                  s_memtime s[{sST+10}:{sST+11}]
                  s_add_u32 s{sT0}, s{sT0}, 0x40000
                  s_waitcnt lgkmcnt(0)
                  v_mov_b32 v{T0}, s{sST+10}
                  buffer_store_dword v{T0}, v{T1}, s[{sWS}:{sWS+3}], s{sT0} offen
                  s_add_u32 s{sT0}, s{sT0}, 0x40000
                  v_mov_b32 v{T0}, s{sBUD}
                  buffer_store_dword v{T0}, v{T1}, s[{sWS}:{sWS+3}], s{sT0} offen''')
        a('s_barrier')
        if self.opt.get('trace2'): a(f's_memtime s[{sST+0}:{sST+1}]')
        a(f'''s_cmp_eq_u32 s{sSTEP}, 63
              s_cbranch_scc1 {end}''')
        ok, fin = a.newlabel('LpCok'), a.newlabel('LpCfin')
        ACC = AC2
        entry = {(h, ph): a.newlabel('LpC') for h in range(2) for ph in range(2)}
        nored = a.newlabel('Lqnr')
        a(f'''s_cmp_ge_u32 s{sRED}, 40
              s_cbranch_scc1 {nored}
              s_bitcmp1_b32 s{sCS}, 8
              s_cbranch_scc1 {entry[(1,1)]}_in''')
        for half in (1,):
            nl = 4
            for ph in range(2):
                lp = entry[(half, ph)]
                a.label(lp + '_in')
                if self.opt.get('c_sleep'): a(f"s_sleep {self.opt['c_sleep']}")
                if self.opt.get('fine'): self.stamp(5)
                a.label(lp)
                for t in range(nl):
                    reg, off = (RC + (t >> 1), 2048 * (t & 1)) if half else (RC + (t >> 2), 1024 * (t & 3))
                    a(f'buffer_load_dwordx4 v[{M+4*t}:{M+4*t+3}], v{reg}, s[{sWS}:{sWS+3}], s{sC_RD} offen offset:{off} sc1')
                a('s_mov_b64 exec, -1')
                op3 = (lambda d, x, y, z: f'v_bitop3_b32 v{d}, v{x}, v{y}, v{z} bitop3:0x80') if ph else (lambda d, x, y, z: f'v_or3_b32 v{d}, v{x}, v{y}, v{z}')
                for t in range(nl):
                    a(f's_waitcnt vmcnt({nl-1-t})')
                    if t == 0 and self.opt.get('fine'): self.stamp(2)
                    a(f'v_mfma_f32_16x16x32_bf16 v[{ACC}:{ACC+3}], v[{SEL}:{SEL+3}], v[{M+4*t}:{M+4*t+3}], ' + ('0' if t == 0 else f'v[{ACC}:{ACC+3}]'))
                    if t == 0:
                        a(op3(T0, M, M+1, M+2)); a(op3(T0, T0, M+3, M+3))
                    else:
                        a(op3(T0, T0, M+4*t, M+4*t+1)); a(op3(T0, T0, M+4*t+2, M+4*t+3))
                rt, bk = a.newlabel('LpCr'), a.newlabel('LpCb')
                a(f'''v_and_b32 v{T0}, 1, v{T0}
                      v_cmp_ne_u32 vcc, {ph}, v{T0}
                      s_cbranch_vccnz {rt}''')
                a.label(bk)
                if self.opt.get('trace2'): a(f's_memtime s[{sST+2}:{sST+3}]')
                def tail(rt=rt, bk=bk, lp=lp):
                    a.label(rt)
                    a('s_mov_b64 exec, vcc')
                    self.retry(lp, 3)
                    a('s_mov_b64 exec, -1')
                    a(f's_branch {bk}')
                self.tails.append(tail)
                a('s_nop 2')
                if half:
                    for k in range(4):
                        a(f'v_add_f32_dpp v{ACC+k}, v{ACC+k}, v{ACC+k} row_ror:8 row_mask:0xf bank_mask:0xf')
                self.stamp(3)
                a(f'''v_cvt_pk_bf16_f32 v{ACC}, v{ACC}, v{ACC+1}
                      v_cvt_pk_bf16_f32 v{ACC+1}, v{ACC+2}, v{ACC+3}
                      s_mov_b64 exec, s[{sMA}:{sMA+1}]
                      v_min_u32 v{ACC}, -2, v{ACC}
                      v_min_u32 v{ACC+1}, -2, v{ACC+1}''')
                self.lstore([f'buffer_store_dwordx2 v[{ACC}:{ACC+1}], v{vAst}, s[{sWS}:{sWS+3}], s{sA_N} offen'])
                if not (half and ph): a(f's_branch {fin}')
        a(f's_branch {fin}')
        a.label(nored)
        a('s_waitcnt vmcnt(0)')
        a.label(fin)
        if self.opt.get('dump_mem'):
            l = a.newlabel('Ldm')
            a(f'''s_cmp_lg_u32 s{sJ}, 0
                  s_cbranch_scc1 {l}
                  s_mul_i32 s{sT0}, s{sSTEP}, 10240
                  s_add_u32 s{sT0}, s{sT0}, {WS_DBG}
                  buffer_store_dwordx2 v[{ACC}:{ACC+1}], v{vAst}, s[{sWS}:{sWS+3}], s{sT0} offen''')
            a.label(l)
        a('s_mov_b64 exec, -1')
        a('s_barrier')
        if self.opt.get('trace2'): a(f's_memtime s[{sST+4}:{sST+5}]')
        if self.opt.get('trace2'):
            a(f"""s_waitcnt lgkmcnt(0)
                  s_lshl_b32 s{sT0}, s{sJ}, 4
                  s_add_u32 s{sT0}, s{sT0}, s{sC}
                  s_lshl_b32 s{sT0}, s{sT0}, 2
                  s_add_u32 s{sT0}, s{sT0}, s{sW}
                  s_lshl_b32 s{sT0}, s{sT0}, 6
                  s_add_u32 s{sT0}, s{sT0}, s{sSTEP}
                  s_lshl_b32 s{sT0}, s{sT0}, 4
                  s_add_u32 s{sT0}, s{sT0}, {WS_DBG + 0x400000}
                  s_sub_u32 s{sT1}, s{sST+2}, s{sST}
                  v_mov_b32 v{M}, s{sT1}
                  s_sub_u32 s{sT1}, s{sST+4}, s{sST}
                  v_mov_b32 v{M+1}, s{sT1}
                  v_mov_b32 v{M+2}, s{sBUD}
                  v_mov_b32 v{T0}, 0
                  s_mov_b64 exec, 1
                  buffer_store_dwordx4 v[{M}:{M+3}], v{T0}, s[{sWS}:{sWS+3}], s{sT0} offen
                  s_mov_b64 exec, -1
                  s_nop 1""")
        self.stamp(4)
        self.next_step()
        a('s_waitcnt lgkmcnt(0)')
        a(f's_branch {loop}')
        a.label(end)
        a('s_barrier')
        self.finish()
        self.emit_tail()

    def role_v(self):
        a = self.a
        al = Alloc(1, 256)
        self.lanes(al)
        WA, WB = al(80, 4), al(80, 4)
        M = al(48, 4)
        TA, TB = al(4, 4), al(4, 4)
        F = al(12, 4); RR = al(2, 2)
        vFrag, vIdx, vB, vAoff, vV, vSent, vCoff, vOst = [al() for _ in range(8)]
        vLin = vV
        a(f"""v_lshrrev_b32 v{self.vT1}, 3, v{self.vL}
              v_lshlrev_b32 v{vOst}, 4, v{self.vT1}
              v_and_b32 v{self.vT1}, 7, v{self.vL}
              v_lshl_add_u32 v{vOst}, v{self.vT1}, 8, v{vOst}
              s_lshr_b32 s{sT0}, s{sG}, 1
              s_mul_i32 s{sT0}, s{sT0}, 192
              s_mul_i32 s{sT1}, s{sH}, 6
              s_add_u32 s{sT0}, s{sT0}, s{sT1}
              s_lshl_b32 s{sT0}, s{sT0}, 10
              s_and_b32 s{sT1}, s{sG}, 1
              s_lshl_b32 s{sT1}, s{sT1}, 7
              s_add_u32 s{sT0}, s{sT0}, s{sT1}
              v_add_u32 v{vOst}, s{sT0}, v{vOst}""")
        def o_store(back):
            if self.opt.get('no_ost'): return
            a(f's_sub_u32 s{sT0}, s{sO_C}, {back*32*12288}')
            a(f's_add_u32 s{sT1}, s{sT0}, 4096')
            for k in range(3):
                a(f'ds_read_b128 v[{F+4*k}:{F+4*k+3}], v{vLin} offset:{LOX + 1024*k}')
            for k in range(3):
                a(f's_waitcnt lgkmcnt({2-k})')
                a(f'buffer_store_dwordx4 v[{F+4*k}:{F+4*k+3}], v{vOst}, s[{sWS}:{sWS+3}], s{sT1 if k == 2 else sT0} offen offset:{2048*(k&1)} sc1')
        PX = al(8, 2)
        self.frag_addr(vFrag); self.idx_reg(vIdx)
        a(f"""v_lshlrev_b32 v{vV}, 4, v{self.vL}
              v_mov_b32 v{vSent}, -1""")
        a(f"""s_mul_i32 s{sT0}, s{sG}, 768
              s_add_u32 s{sT0}, s{sT0}, 6144
              v_lshlrev_b32 v{vB}, 5, v{self.vN}
              v_lshl_add_u32 v{vB}, v{self.vQ}, 2, v{vB}
              v_add_u32 v{vB}, s{sT0}, v{vB}""")
        srd(a, ptr(4), DM * NH * DH * 2)
        vW = M
        self.wrow_lane(vW, 12288)
        a(f"""s_mul_i32 s{sT0}, s{sH}, 384
              s_mul_i32 s{sT1}, s{sG}, 96
              s_add_u32 s{sT0}, s{sT0}, s{sT1}
              v_lshl_add_u32 v{vW}, v{self.vN}, 2, v{vW}
              v_add_u32 v{vW}, s{sT0}, v{vW}""")
        self.load_pair(WA, WB, 10, vW, 12288, self.vT2)
        self.c_off(vCoff, 4)
        self.wo_weights(M, M + 24, 4, vAoff, self.vT2)
        for k in range(12):
            a(f'ds_write_b128 v{vLin}, v[{M+4*k}:{M+4*k+3}] offset:{LW5 + 1024*k}')
        a('s_waitcnt lgkmcnt(0)')
        self.a_off(vAoff)
        self.zero(TA, 8)
        self.mark(1)
        self.wait_all_registered()
        own = lambda: self.dma12(vV, WS_VT, LV_OFF, [0])
        rest = lambda: self.dma12(vV, WS_VT, LV_OFF, [1, 2, 3])
        if not self.opt.get('early_stage'): self.stage_first(own, rest, 2, 1)
        a('s_barrier')
        self.mark(2)
        loop, end = a.newlabel('Lv'), a.newlabel('Lvend')
        self.a_poll(vAoff, [F], True)
        a.label(loop)
        self.stamp(0)
        for ks in range(10):
            a(f'ds_read_b128 v[{M+4*ks}:{M+4*ks+3}], v{vLin} offset:{LM + 1024*ks}')
        for ks in range(10):
            a(f's_waitcnt lgkmcnt({9-ks})')
            a(f'v_smfmac_f32_16x16x64_bf16 v[{TA}:{TA+3}], v[{M+4*ks}:{M+4*ks+3}], v[{WA+8*ks}:{WA+8*ks+7}], v{vIdx}')
            a(f'v_smfmac_f32_16x16x64_bf16 v[{TB}:{TB+3}], v[{M+4*ks}:{M+4*ks+3}], v[{WB+8*ks}:{WB+8*ks+7}], v{vIdx}')
            if ks == self.opt.get('v_bar', 8): a('s_barrier')
        a(f"""s_nop 7
              v_pk_add_f32 v[{TA}:{TA+1}], v[{TA}:{TA+1}], v[{TA+2}:{TA+3}]
              v_pk_add_f32 v[{TB}:{TB+1}], v[{TB}:{TB+1}], v[{TB+2}:{TB+3}]
              v_cvt_pk_bf16_f32 v{TA}, v{TA}, v{TA+1}
              v_cvt_pk_bf16_f32 v{TB}, v{TB}, v{TB+1}
              v_min_u32 v{TA}, -2, v{TA}
              v_min_u32 v{TB}, -2, v{TB}""")
        self.lstore([f'buffer_store_dword v{TA}, v{vB}, s[{sWS}:{sWS+3}], s{sB_C} offen',
                     f'buffer_store_dword v{TB}, v{vB}, s[{sWS}:{sWS+3}], s{sB_C} offen offset:16'])
        self.stamp(1)
        a('s_waitcnt vmcnt(2)')
        for k in range(12):
            a(f'ds_read_b128 v[{M+4*k}:{M+4*k+3}], v{vLin} offset:{LW5 + 1024*k}')
        self.zero(TA, 8)
        a('s_barrier')
        self.lstore([f'buffer_store_dword v{vSent}, v{vB}, s[{sWS}:{sWS+3}], s{sB_R} offen',
                     f'buffer_store_dword v{vSent}, v{vB}, s[{sWS}:{sWS+3}], s{sB_R} offen offset:16'])
        a(f"s_sleep {self.opt.get('d_sleep', 7)}" if self.opt.get('d_sleep', 7) else 's_nop 0')
        def o_prev():
            no0 = a.newlabel('Lvn0')
            a('s_waitcnt lgkmcnt(0)')
            a(f's_cmp_eq_u32 s{sSTEP}, 0')
            a(f's_cbranch_scc1 {no0}')
            o_store(1)
            a.label(no0)
        if not self.opt.get('o_late'): o_prev()
        self.stage(own, rest, 2, 1)
        if self.opt.get('o_late'): o_prev()
        if self.opt.get('fused'):
            nq = a.newlabel('Lvnq')
            a(f"""s_cmp_lt_u32 s{sSTEP}, {self.opt.get('of_all', 58)}
                  s_cbranch_scc1 {nq}
                  s_waitcnt vmcnt(0)""")
            self.o_flag(1)
            a.label(nq)
        a('s_waitcnt lgkmcnt(0)')
        self.stamp(5)
        a('s_barrier')
        self.stamp(2)
        self.wo_stage([(M, M + 24, TA, TB, 0)], vFrag, vIdx, F, vCoff, RR, end)
        self.stamp(3)
        self.zero(TA, 8)
        self.a_poll(vAoff, [F, PX, M + 40])
        a(f's_branch {loop}')
        a.label(end)
        a('s_waitcnt lgkmcnt(0)')
        a('s_barrier')
        o_store(0)
        a('s_waitcnt vmcnt(0)')
        self.o_flag(0)
        self.finish()
        self.emit_tail()

    def role_w7(self):
        a = self.a
        al = Alloc(1, 256)
        self.lanes(al)
        WV = al(80, 4)
        P = [(al(24, 4), al(24, 4), al(4, 4), al(4, 4), 0)]
        M = al(40, 4)
        TV = al(4, 4)
        SENT = al(4, 4); RR = al(2, 2)
        vFrag, vIdx, vB, vAoff, vK, vQx, vCoff, vCr = [al() for _ in range(8)]
        vSel = TV
        PX = al(24, 2)
        T0, T1 = self.vT0, self.vT1
        self.frag_addr(vFrag); self.idx_reg(vIdx)
        a(f"""v_lshlrev_b32 v{vK}, 4, v{self.vL}
              v_and_b32 v{T0}, 7, v{self.vL}
              v_lshlrev_b32 v{vQx}, 4, v{T0}
              v_lshrrev_b32 v{T0}, 5, v{self.vL}
              v_lshl_add_u32 v{vQx}, v{T0}, 10, v{vQx}
              v_bfe_u32 v{T0}, v{self.vL}, 3, 2
              v_lshl_add_u32 v{vQx}, v{T0}, 8, v{vQx}
              s_lshr_b32 s{sT0}, s{sG}, 1
              s_mul_i32 s{sT0}, s{sT0}, 6144
              s_and_b32 s{sT1}, s{sG}, 1
              s_lshl_b32 s{sT1}, s{sT1}, 7
              s_add_u32 s{sT0}, s{sT0}, s{sT1}
              v_add_u32 v{vQx}, s{sT0}, v{vQx}""")
        for k in range(4): a(f'v_mov_b32 v{SENT+k}, -1')
        a(f"""s_mul_i32 s{sT0}, s{sG}, 768
              s_add_u32 s{sT0}, s{sT0}, {6144 + 512}
              v_lshlrev_b32 v{vB}, 4, v{self.vN}
              v_lshl_add_u32 v{vB}, v{self.vQ}, 2, v{vB}
              v_add_u32 v{vB}, s{sT0}, v{vB}
              s_mul_i32 s{sT0}, s{sG}, 2560
              v_lshlrev_b32 v{vCr}, 4, v{self.vL}
              v_add_u32 v{vCr}, s{sT0}, v{vCr}""")
        self.c_off(vCoff, 3)
        srd(a, ptr(4), DM * NH * DH * 2)
        self.wrow_lane(vAoff, 12288)
        a(f"""s_mul_i32 s{sT0}, s{sH}, 384
              s_mul_i32 s{sT1}, s{sG}, 96
              s_add_u32 s{sT0}, s{sT0}, s{sT1}
              s_add_u32 s{sT0}, s{sT0}, 64
              v_and_b32 v{T0}, 14, v{self.vN}
              v_lshl_add_u32 v{vAoff}, v{T0}, 1, v{vAoff}
              v_add_u32 v{vAoff}, s{sT0}, v{vAoff}
              v_and_b32 v{T0}, 1, v{self.vN}
              v_cmp_eq_u32 vcc, 1, v{T0}
              v_mov_b32 v{vSel}, s{sSELLO}
              v_mov_b32 v{T0}, s{sSELHI}
              s_nop 1
              v_cndmask_b32 v{vSel}, v{vSel}, v{T0}, vcc""")
        self.load_single(WV, 10, vAoff, vSel, 12288, M)
        self.wo_weights(P[0][0], P[0][1], 3, vAoff, self.vT2)
        self.a_off(vAoff)
        self.zero(TV, 4)
        for p in P: self.zero(p[2], 8)
        self.mark(1)
        self.wait_all_registered()
        def own():
            self.dma_q(vQx); self.dma12(vK, WS_K, LK_OFF, [0])
        rest = lambda: self.dma12(vK, WS_K, LK_OFF, [1, 2, 3])
        if not self.opt.get('early_stage'): self.stage_first(own, rest, 0, 2)
        a('s_barrier')
        self.mark(2)
        loop, end = a.newlabel('Lw7'), a.newlabel('Lw7end')
        self.a_poll(vAoff, [PX], True)
        a.label(loop)
        self.stamp(0)
        for ks in range(10):
            a(f'ds_read_b128 v[{M+4*ks}:{M+4*ks+3}], v{vK} offset:{LM + 1024*ks}')
        for ks in range(10):
            a(f's_waitcnt lgkmcnt({9-ks})')
            a(f'v_smfmac_f32_16x16x64_bf16 v[{TV}:{TV+3}], v[{M+4*ks}:{M+4*ks+3}], v[{WV+8*ks}:{WV+8*ks+7}], v{vIdx}')
            if ks == self.opt.get('w7_bar', 99): a('s_barrier')
        a(f"""s_nop 7
              v_pk_add_f32 v[{TV}:{TV+1}], v[{TV}:{TV+1}], v[{TV+2}:{TV+3}]
              v_cvt_pk_bf16_f32 v{TV}, v{TV}, v{TV+1}
              v_min_u32 v{TV}, -2, v{TV}""")
        self.lstore([f'buffer_store_dword v{TV}, v{vB}, s[{sWS}:{sWS+3}], s{sB_C} offen'])
        if self.opt.get('w7_bar', 99) > 9: a('s_barrier')
        self.stamp(1)
        self.zero(TV, 4)
        a('s_barrier')
        self.lstore([f'buffer_store_dword v{SENT}, v{vB}, s[{sWS}:{sWS+3}], s{sB_R} offen'])
        a(f"s_sleep {self.opt.get('d_sleep', 7)}" if self.opt.get('d_sleep', 7) else 's_nop 0')
        if self.opt.get('dma_time'): self.stamp(1)
        nf, yf = a.newlabel('Lw7nf'), a.newlabel('Lw7yf')
        a(f"""s_cmp_ge_u32 s{sSTEP}, {self.opt.get('of_all', 58)}
              s_cbranch_scc1 {nf}
              s_and_b32 s{sT0}, s{sSTEP}, {self.opt.get('of_every', 1) - 1}
              s_cmp_lg_u32 s{sT0}, {min(2, self.opt.get('of_every', 1) - 1)}
              s_cbranch_scc1 {nf}
              s_cmp_lt_u32 s{sSTEP}, 2
              s_cbranch_scc1 {nf}""")
        a.label(yf)
        self.o_flag(2)
        a.label(nf)
        self.stage(own, rest, 0, 2)
        if self.opt.get('dma_time'): a('s_waitcnt vmcnt(0)')
        self.stamp(5)
        a('s_barrier')
        self.stamp(2)
        self.wo_stage(P, vFrag, vIdx, M, vCoff, RR, end)
        self.stamp(3)
        for p in P: self.zero(p[2], 8)
        self.a_poll(vAoff, [PX, PX + 8, PX + 16])
        a(f's_branch {loop}')
        a.label(end)
        a('s_barrier')
        self.finish()
        self.emit_tail()

    def role_att(self):
        a = self.a
        al = Alloc(1, 256)
        self.lanes(al)
        TM = al(2, 2)
        WA, WB = al(24, 4), al(24, 4)
        TA, TB = al(4, 4), al(4, 4)
        KX = al(48, 4); X = al(24, 4); Y = al(24, 4)
        VX = al(16, 4); VM = al(8, 2)
        BI = al(12, 4); SS = al(12, 4)
        PP = al(6, 2); RR = PP
        OO = al(16, 4); LL = al(4, 4)
        ONES = al(4, 4)
        F = SS
        vFrag, vIdx, vAoff, vXY, vVM, vOw, vCoff, vLin, vQr, vBp, vRw, vOx = [al() for _ in range(12)]
        T0, T1, T2 = self.vT0, self.vT1, self.vT2
        sWP = sRED
        a(f's_sub_u32 s{sWP}, s{sW}, 4')
        self.frag_addr(vFrag); self.idx_reg(vIdx)
        self.c_off(vCoff, f's{sWP}')
        if self.opt.get('touch'): self.touch_weights()
        self.init_job(KX)
        arrive(a, 6, KX + 16)
        self.mark(5)
        self.wo_weights(WA, WB, f's{sWP}', vAoff, T2)
        if self.opt.get('tlb'):
            a(f"""v_lshlrev_b32 v{T0}, 21, v{self.vL}
                  v_add_u32 v{T0}, {0x1F8000}, v{T0}
                  s_mov_b32 m0, {SWEEP_LDS}
                  s_mov_b32 s{sT0}, 0x8000000
                  buffer_load_dword v{T0}, s[{sWS}:{sWS+3}], 0 offen lds
                  buffer_load_dword v{T0}, s[{sWS}:{sWS+3}], s{sT0} offen lds""")
        self.arrive_init(KX)
        if self.opt.get('early_stage'):
            vS, vQs = KX, KX + 1
            a(f"""v_lshlrev_b32 v{vS}, 4, v{self.vL}
                  v_and_b32 v{T0}, 7, v{self.vL}
                  v_lshlrev_b32 v{vQs}, 4, v{T0}
                  v_lshrrev_b32 v{T0}, 5, v{self.vL}
                  v_lshl_add_u32 v{vQs}, v{T0}, 10, v{vQs}
                  v_bfe_u32 v{T0}, v{self.vL}, 3, 2
                  v_lshl_add_u32 v{vQs}, v{T0}, 8, v{vQs}
                  s_lshr_b32 s{sT0}, s{sG}, 1
                  s_mul_i32 s{sT0}, s{sT0}, 6144
                  s_and_b32 s{sT1}, s{sG}, 1
                  s_lshl_b32 s{sT1}, s{sT1}, 7
                  s_add_u32 s{sT0}, s{sT0}, s{sT1}
                  v_add_u32 v{vQs}, s{sT0}, v{vQs}""")
            wait_registered(a, self.opt, T0, T1, self.vL)
            lq, lv2, ld = a.newlabel('Les'), a.newlabel('Les'), a.newlabel('Les')
            a(f"""s_cmp_eq_u32 s{sWP}, 2
                  s_cbranch_scc1 {lq}
                  s_cmp_eq_u32 s{sWP}, 1
                  s_cbranch_scc1 {lv2}""")
            self.stage_first(lambda: self.dma12(vS, WS_K, LK_OFF, [0]), lambda: self.dma12(vS, WS_K, LK_OFF, [1, 2, 3]), 1, 1)
            a(f's_branch {ld}')
            a.label(lv2)
            self.stage_first(lambda: self.dma12(vS, WS_VT, LV_OFF, [0]), lambda: self.dma12(vS, WS_VT, LV_OFF, [1, 2, 3]), 2, 1)
            a(f's_branch {ld}')
            a.label(lq)
            self.stage_first(lambda: self.dma_q(vQs), lambda: None, 0, 1)
            a.label(ld)
        self.a_off(vAoff)
        a(f"""v_lshlrev_b32 v{vXY}, 6, v{self.vN}
              v_lshl_add_u32 v{vXY}, v{self.vQ}, 4, v{vXY}
              s_lshl_b32 s{sT0}, s{sWP}, 10
              s_add_u32 s{sT0}, s{sT0}, 6144
              v_lshlrev_b32 v{vVM}, 4, v{self.vN}
              v_lshl_add_u32 v{vVM}, v{self.vQ}, 3, v{vVM}
              v_add_u32 v{vVM}, s{sT0}, v{vVM}
              v_lshlrev_b32 v{vLin}, 4, v{self.vL}
              s_lshl_b32 s{sT0}, s{sWP}, 11
              v_add_u32 v{vBp}, s{sT0}, v{vLin}
              v_and_b32 v{T0}, 7, v{self.vN}
              v_lshlrev_b32 v{vQr}, 4, v{T0}
              v_lshl_add_u32 v{vQr}, v{self.vQ}, 7, v{vQr}""")
        a(f"""v_lshlrev_b32 v{vRw}, 2, v{self.vL}
              v_add_u32 v{T1}, {LDUMMY}, v{vRw}
              v_add_u32 v{vRw}, {LR}, v{vRw}
              v_cmp_gt_u32 vcc, 8, v{self.vL}
              s_nop 1
              v_cndmask_b32 v{vRw}, v{T1}, v{vRw}, vcc""")
        a(f"""v_lshrrev_b32 v{T1}, 1, v{self.vQ}
              v_lshlrev_b32 v{vOw}, 7, v{T1}
              v_lshl_add_u32 v{vOw}, v{T0}, 4, v{vOw}
              v_and_b32 v{T1}, 1, v{self.vQ}
              v_lshl_add_u32 v{vOw}, v{T1}, 3, v{vOw}
              v_lshrrev_b32 v{T1}, 3, v{self.vN}
              v_mul_u32_u24 v{T1}, 3072, v{T1}
              v_add_u32 v{vOw}, v{vOw}, v{T1}
              s_lshl_b32 s{sT0}, s{sWP}, 10
              s_add_u32 s{sT0}, s{sT0}, {LO}
              v_add_u32 v{vOw}, s{sT0}, v{vOw}""")
        a(f"""s_lshl_b32 s{sT0}, s{sWP}, 10
              s_add_u32 s{sT0}, s{sT0}, {LOX}
              v_lshlrev_b32 v{vOx}, 7, v{T0}
              v_lshl_add_u32 v{vOx}, v{self.vQ}, 3, v{vOx}
              v_add_u32 v{vOx}, s{sT0}, v{vOx}""")
        a(f"""s_lshl_b32 s{sT0}, s{sG}, 3
              v_add_u32 v{T1}, s{sT0}, v{T0}
              v_cmp_gt_u32 vcc, 8, v{self.vN}
              v_mov_b32 v{T2}, 31
              s_nop 1
              v_cndmask_b32 v{T1}, v{T1}, v{T2}, vcc
              v_lshlrev_b32 v{T2}, 2, v{self.vQ}
              v_sub_u32 v{T1}, v{T1}, v{T2}
              v_mov_b32 v{T2}, 0xf149f2ca""")
        for tile in range(2):
            for r in range(4):
                a(f"""v_cmp_gt_i32 vcc, {16*tile + r}, v{T1}
                      v_mov_b32 v{BI+4*tile+r}, 0
                      s_nop 1
                      v_cndmask_b32 v{BI+4*tile+r}, v{BI+4*tile+r}, v{T2}, vcc""")
        a(f"""v_cmp_lt_u32 vcc, 1, v{self.vQ}
              v_mov_b32 v{BI+8}, 0
              s_nop 1
              v_cndmask_b32 v{BI+8}, v{BI+8}, v{T2}, vcc""")
        for r in range(1, 4): a(f'v_mov_b32 v{BI+8+r}, v{BI+8}')
        for k in range(4): a(f'v_mov_b32 v{ONES+k}, 0x3f803f80')
        self.zero(Y, 24); self.zero(VM, 8); self.zero(TA, 8)
        self.mark(1)
        self.wait_all_registered()
        def read_seg():
            a(f'v_add_u32 v{T0}, s{sLB}, v{vLin}')
            a(f'v_add_u32 v{T1}, s{sLB}, v{vQr}')
            a(f's_lshl_b32 s{sT0}, s{sWP}, 12')
            a(f'v_add_u32 v{T2}, s{sT0}, v{T0}')
            for k in range(12):
                a(f'ds_read_b128 v[{KX+4*k}:{KX+4*k+3}], v{T0} offset:{LK_OFF + 1024*k}')
            for ks in range(6):
                a(f'ds_read_b128 v[{X+4*ks}:{X+4*ks+3}], v{T1} offset:{LQ_OFF + 512*ks}')
            for t in range(4):
                a(f'ds_read_b128 v[{VX+4*t}:{VX+4*t+3}], v{T2} offset:{LV_OFF + 1024*t}')
        def vm_loads():
            a(f's_mov_b64 exec, s[{sML32}:{sML32+1}]')
            for t in range(4):
                a(f'buffer_load_dwordx2 v[{VM+2*t}:{VM+2*t+1}], v{vVM}, s[{sWS}:{sWS+3}], s{sB_C} offen offset:{256*t} sc1')
            a('s_mov_b64 exec, -1')
        a('s_barrier')
        self.mark(2)
        a(f's_mov_b32 s{sLB}, {LBUF}')
        read_seg()
        self.a_poll(vAoff, [F], True)
        loop, end = a.newlabel('Lat'), a.newlabel('Latend')
        lp, ok, vlp, vok, vrt = a.newlabel('LpB'), a.newlabel('LpBok'), a.newlabel('LpV'), a.newlabel('LpVok'), a.newlabel('LpVr')
        a.label(loop)
        if self.opt.get('trace2'): a(f's_memtime s[{sST+0}:{sST+1}]')
        a('s_barrier')
        if self.opt.get('trace2'): a(f's_memtime s[{sST+2}:{sST+3}]')
        if self.opt.get('b_sleep'): a(f"s_sleep {self.opt['b_sleep']}")
        if self.opt.get('fine'): self.stamp(0)
        self.poll2(vBp, sB_C, LQK, [OO, OO + 8][:self.opt.get('b_depth', 1)], 0, self.opt.get('b_gap', 0))
        if self.opt.get('trace2'): a(f's_memtime s[{sST+4}:{sST+5}]')
        if self.opt.get('vm_at') == -1: vm_loads()
        a(f's_mov_b64 exec, s[{sMN8}:{sMN8+1}]')
        a('s_waitcnt lgkmcnt(0)')
        a('s_barrier')
        for ks in range(6):
            a(f'ds_read_b128 v[{X+4*ks}:{X+4*ks+3}], v{vXY} offset:{LQK + 512*ks}')
        for ks in range(6):
            a(f'ds_read_b128 v[{Y+4*ks}:{Y+4*ks+3}], v{vXY} offset:{LQK + 3072 + 512*ks}')
        vm_loads()
        self.stamp(5)
        def smm(tile, ks):
            A = (KX, KX + 24, Y)[tile] + 4*ks
            c = BI + 4*tile if ks == 0 else SS + 4*tile
            a(f'v_mfma_f32_16x16x32_bf16 v[{SS+4*tile}:{SS+4*tile+3}], v[{A}:{A+3}], v[{X+4*ks}:{X+4*ks+3}], v[{c}:{c+3}]')
        for ks in range(6):
            a(f's_waitcnt lgkmcnt({11 - ks})')
            smm(0, ks); smm(1, ks)
        a('s_waitcnt lgkmcnt(0)')
        for ks in range(6):
            smm(2, ks)
            if ks == 3: a('s_waitcnt vmcnt(4)')
            if ks == 4: a(f'v_max3_f32 v{T0}, v{SS}, v{SS+1}, v{SS+2}'); a(f'v_max3_f32 v{T1}, v{SS+3}, v{SS+4}, v{SS+5}')
        self.stamp(1)
        a(f"""v_max3_f32 v{T0}, v{T0}, v{SS+6}, v{SS+7}
              v_max_f32 v{T0}, v{T0}, v{T1}
              s_nop 5
              v_max3_f32 v{T1}, v{SS+8}, v{SS+9}, v{SS+10}
              v_max3_f32 v{T0}, v{T0}, v{T1}, v{SS+11}
              v_mov_b32 v{T1}, v{T0}
              s_nop 1
              v_permlane32_swap_b32 v{T0}, v{T1}
              v_max_f32 v{T0}, v{T0}, v{T1}
              v_mov_b32 v{T1}, v{T0}
              s_nop 1
              v_permlane16_swap_b32 v{T0}, v{T1}
              v_max_f32 v{T0}, v{T0}, v{T1}
              v_mul_f32 v{TM}, s{sSCL}, v{T0}""")
        def pkfma(r):
            if self.opt.get('nopk'):
                for k in range(2): a(f'v_fma_f32 v{SS+r+k}, v{SS+r+k}, s{sSCL}, -v{TM}')
                return
            a(f'v_pk_fma_f32 v[{SS+r}:{SS+r+1}], v[{SS+r}:{SS+r+1}], s[{sSCL}:{sSCL+1}], v[{TM}:{TM+1}] op_sel_hi:[1,0,0] neg_lo:[0,0,1] neg_hi:[0,0,1]')
        for r in range(0, 8, 2): pkfma(r)
        for r in range(8): a(f'v_exp_f32 v{SS+r}, v{SS+r}')
        for r in range(8, 12, 2): pkfma(r)
        for r in range(4): a(f'v_cvt_pk_bf16_f32 v{PP+r}, v{SS+2*r}, v{SS+2*r+1}')
        a(f'v_exp_f32 v{SS+8}, v{SS+8}')
        a(f'v_exp_f32 v{SS+9}, v{SS+9}')
        a(f'v_mfma_f32_16x16x32_bf16 v[{LL}:{LL+3}], v[{ONES}:{ONES+3}], v[{PP}:{PP+3}], 0')
        a(f'v_exp_f32 v{SS+10}, v{SS+10}')
        a(f'v_mfma_f32_16x16x32_bf16 v[{OO}:{OO+3}], v[{VX}:{VX+3}], v[{PP}:{PP+3}], 0')
        a(f'v_exp_f32 v{SS+11}, v{SS+11}')
        a(f'v_mfma_f32_16x16x32_bf16 v[{OO+4}:{OO+7}], v[{VX+4}:{VX+7}], v[{PP}:{PP+3}], 0')
        a(f'v_cvt_pk_bf16_f32 v{PP+4}, v{SS+8}, v{SS+9}')
        a(f'v_cvt_pk_bf16_f32 v{PP+5}, v{SS+10}, v{SS+11}')
        a(f'v_mfma_f32_16x16x32_bf16 v[{OO+8}:{OO+11}], v[{VX+8}:{VX+11}], v[{PP}:{PP+3}], 0')
        a.label(vlp)
        a(f"""s_waitcnt vmcnt(0)
              v_max3_u32 v{T1}, v{VM}, v{VM+1}, v{VM+2}
              v_max3_u32 v{T2}, v{VM+3}, v{VM+4}, v{VM+5}
              v_mfma_f32_16x16x32_bf16 v[{OO+12}:{OO+15}], v[{VX+12}:{VX+15}], v[{PP}:{PP+3}], 0
              v_max3_u32 v{T1}, v{T1}, v{VM+6}, v{VM+7}
              v_max_u32 v{T1}, v{T1}, v{T2}
              v_cmp_eq_u32 vcc, -1, v{T1}
              s_cbranch_vccnz {vrt}""")
        a.label(vok)
        if self.opt.get('trace2'): a(f's_memtime s[{sST+6}:{sST+7}]')
        if not self.opt.get('fine'): self.stamp(0)
        a(f'v_mfma_f32_16x16x16_bf16 v[{LL}:{LL+3}], v[{ONES}:{ONES+1}], v[{PP+4}:{PP+5}], v[{LL}:{LL+3}]')
        for t in range(4):
            a(f'v_mfma_f32_16x16x16_bf16 v[{OO+4*t}:{OO+4*t+3}], v[{VM+2*t}:{VM+2*t+1}], v[{PP+4}:{PP+5}], v[{OO+4*t}:{OO+4*t+3}]')
        a(f"""s_nop 3
              v_rcp_f32 v{LL}, v{LL}""")
        for t in range(4):
            a(f'v_cvt_pk_bf16_f32 v{X+2*t}, v{OO+4*t}, v{OO+4*t+1}')
            a(f'v_cvt_pk_bf16_f32 v{X+2*t+1}, v{OO+4*t+2}, v{OO+4*t+3}')
            a(f'ds_write_b64 v{vOw}, v[{X+2*t}:{X+2*t+1}] offset:{256*t}')
            if t == 0: a(f'ds_write_b32 v{vRw}, v{LL}')
        a('s_waitcnt lgkmcnt(0)')
        a('s_barrier')
        self.stamp(2)
        skipwo = a.newlabel('Latsk')
        self.wo_stage([(WA, WB, TA, TB, 0)], vFrag, vIdx, F, vCoff, RR, skipwo)
        a.label(skipwo)
        if self.opt.get('trace2'): a(f's_memtime s[{sST+8}:{sST+9}]')
        if not self.opt.get('fine'): self.stamp(3)
        for t in range(4):
            for r in range(4):
                a(f'v_mul_f32 v{OO+4*t+r}, v{OO+4*t+r}, v{LL}')
            a(f'v_cvt_pk_bf16_f32 v{OO+4*t}, v{OO+4*t}, v{OO+4*t+1}')
            a(f'v_cvt_pk_bf16_f32 v{OO+4*t+1}, v{OO+4*t+2}, v{OO+4*t+3}')
        a(f's_mov_b64 exec, s[{sMH8}:{sMH8+1}]')
        for t in range(4):
            a(f'ds_write_b64 v{vOx}, v[{OO+4*t}:{OO+4*t+1}] offset:{32*t}')
        a('s_mov_b64 exec, -1')
        a(f"""s_cmp_eq_u32 s{sSTEP}, 63
              s_cbranch_scc1 {end}
              s_add_u32 s{sLB}, s{sLB}, {LBUF_SZ}
              s_cmp_eq_u32 s{sLB}, {LBUF + 3*LBUF_SZ}
              s_cselect_b32 s{sLB}, {LBUF}, s{sLB}""")
        if self.opt.get('trace2'):
            a(f"""s_waitcnt lgkmcnt(0)
                  s_lshl_b32 s{sT0}, s{sJ}, 4
                  s_add_u32 s{sT0}, s{sT0}, s{sC}
                  s_lshl_b32 s{sT0}, s{sT0}, 2
                  s_add_u32 s{sT0}, s{sT0}, s{sWP}
                  s_lshl_b32 s{sT0}, s{sT0}, 6
                  s_add_u32 s{sT0}, s{sT0}, s{sSTEP}
                  s_lshl_b32 s{sT0}, s{sT0}, 4
                  s_add_u32 s{sT0}, s{sT0}, {WS_DBG + 0x300000}""")
            for k in range(4):
                a(f's_sub_u32 s{sT1}, s{sST+2*k+2}, s{sST}' if k else f's_sub_u32 s{sT1}, s{sST}, s{sST+10}')
                a(f'v_mov_b32 v{LL+k}, s{sT1}')
            a(f's_mov_b32 s{sST+10}, s{sST+8}')
            a(f"""v_mov_b32 v{T0}, 0
                  s_mov_b64 exec, 1
                  buffer_store_dwordx4 v[{LL}:{LL+3}], v{T0}, s[{sWS}:{sWS+3}], s{sT0} offen
                  s_mov_b64 exec, -1
                  s_nop 1""")
        read_seg()
        self.zero(TA, 8)
        self.a_poll(vAoff, [F, OO, OO + 8])
        a(f's_branch {loop}')
        a.label(end)
        a('s_waitcnt lgkmcnt(0)')
        a('s_barrier')
        self.finish()
        a.label(vrt)
        vm_loads()
        self.retry(vlp, 1)
        a(f's_branch {vok}')
        self.emit_tail()

def emit_gates(a, sU, ntok, vL, R):
    G, acc, t1, t2, v4, Xr = R, R + 5, R + 6, R + 7, R + 8, R + 10
    a(f'v_lshlrev_b32 v{v4}, 2, v{vL}')
    srd(a, ptr(11), DM * 2)
    for i in range(5):
        a(f'buffer_load_dword v{G+i}, v{v4}, s[{sT}:{sT+3}], 0 offen offset:{256*i}')
    srd(a, ptr(0), S * DM * 2)
    a(f's_mul_i32 s{sT1}, s{sU}, 1280')
    for tk in range(ntok):
        for i in range(5):
            a(f'buffer_load_dword v{Xr+5*tk+i}, v{v4}, s[{sT}:{sT+3}], s{sT1} offen offset:{1280*tk + 256*i}')
    a('s_waitcnt vmcnt(0)')
    for tk in range(ntok):
        a(f'v_mov_b32 v{acc}, 0')
        for i in range(5):
            x = Xr + 5*tk + i
            a(f"""v_lshlrev_b32 v{t1}, 16, v{x}
                  v_lshlrev_b32 v{t2}, 16, v{G+i}
                  v_fmac_f32 v{acc}, v{t1}, v{t2}
                  v_and_b32 v{t1}, 0xffff0000, v{x}
                  v_and_b32 v{t2}, 0xffff0000, v{G+i}
                  v_fmac_f32 v{acc}, v{t1}, v{t2}""")
        for sh in (8, 4, 2, 1):
            a(f"""s_nop 1
                  v_add_f32_dpp v{acc}, v{acc}, v{acc} row_ror:{sh} row_mask:0xf bank_mask:0xf""")
        for sw in ('v_permlane16_swap_b32', 'v_permlane32_swap_b32'):
            a(f"""v_mov_b32 v{t1}, v{acc}
                  s_nop 1
                  {sw} v{acc}, v{t1}
                  v_add_f32 v{acc}, v{acc}, v{t1}""")
        a(f"""v_mul_f32 v{acc}, {hex(f32bits(-math.log2(math.e)))}, v{acc}
              v_exp_f32 v{acc}, v{acc}
              s_nop 0
              v_add_f32 v{acc}, 1.0, v{acc}
              v_rcp_f32 v{acc}, v{acc}
              v_mov_b32 v{t1}, 0
              s_lshl_b32 s{sT0}, s{sU}, 2
              s_add_u32 s{sT0}, s{sT0}, {WS_G + 4*tk}
              s_mov_b64 exec, 1
              buffer_store_dword v{acc}, v{t1}, s[{sWS}:{sWS+3}], s{sT0} offen sc1
              s_mov_b64 exec, -1""")

def arrive(a, wave, v):
    l = a.newlabel('Larr')
    a(f'''s_cmp_lg_u32 s{sW}, {wave}
          s_cbranch_scc1 {l}
          s_cmp_lg_u32 s{sARR}, 0
          s_cbranch_scc1 {l}
          s_mov_b64 exec, 1
          v_mov_b32 v{v}, 1
          v_mov_b32 v{v+1}, 32
          buffer_atomic_add v{v}, v{v+1}, s[{sDBG}:{sDBG+3}], 0 offen sc1
          s_mov_b64 exec, -1''')
    a.label(l)

def wait_registered(a, opt, T0, T1, vN, init=False):
    lp, done = a.newlabel('Lreg'), a.newlabel('Lregd')
    a(f'v_lshlrev_b32 v{T1}, 2, v{vN}')
    a.label(lp)
    a(f'''buffer_load_dword v{T0}, v{T1}, s[{sDBG}:{sDBG+3}], 0 offen sc0 sc1
          s_waitcnt vmcnt(0)
          v_readlane_b32 s{sT0}, v{T0}, 8
          v_readlane_b32 s{sT1}, v{T0}, {32 if init else 8}
          s_add_u32 s{sT0}, s{sT0}, s{sT1}
          s_cmp_ge_u32 s{sT0}, {256 + 384 if init else 512}
          s_cbranch_scc1 {done}
          s_sleep 24
          s_sub_u32 s{sBUD}, s{sBUD}, 1
          s_cbranch_scc0 {lp}
          s_mov_b32 s{sBUD}, 0''')
    a.label(done)
    a(f'''v_readlane_b32 s{sPOL}, v{T0}, 34
          v_cmp_ne_u32 vcc, 32, v{T0}
          s_and_b32 s{sPOL}, s{sPOL}, 1
          s_and_b32 s{sT0}, vcc_lo, 0xf
          s_and_b32 s{sT1}, vcc_hi, 0xf00
          s_or_b32 s{sT0}, s{sT0}, s{sT1}
          s_cselect_b32 s{sMIX}, 1, {1 if opt.get('force_mixed') else 0}''')

def emit_entry(a, opt, exit_label):
    a(f'''s_cmp_ge_u32 s2, 256
          s_cbranch_scc1 {exit_label}
          s_load_dwordx16 s[16:31], s[0:1], 0
          s_load_dwordx8 s[32:39], s[0:1], 64
          s_load_dwordx4 s[40:43], s[0:1], 96
          s_load_dwordx2 s[44:45], s[0:1], 112
          v_lshrrev_b32 v1, 6, v0
          s_getreg_b32 s{sJ}, hwreg(HW_REG_XCC_ID)
          v_readfirstlane_b32 s{sW}, v1
          s_and_b32 s{sJ}, s{sJ}, 15
          s_min_u32 s{sJ}, s{sJ}, 10
          s_cmp_lt_u32 s{sJ}, 8
          s_cselect_b32 s{sJ}, s{sJ}, 10
          s_mov_b32 s{sBUD}, {opt.get('budget', 1 << 20)}
          s_mov_b32 s{sSTEP}, 0
          s_mov_b32 s{sCS}, 0
          s_mov_b32 s{sPOL}, 0
          s_mov_b64 s[98:99], 0
          s_mov_b64 s[100:101], 0
          s_mov_b32 s{sMIX}, {1 if opt.get('force_mixed') else 0}
          s_mov_b32 s{sMN8}, 0x00ff00ff
          s_mov_b32 s{sMN8+1}, 0x00ff00ff
          s_mov_b32 s{sMH8}, 0xff00ff00
          s_mov_b32 s{sMH8+1}, 0xff00ff00
          s_mov_b32 s{sML32}, -1
          s_mov_b32 s{sML32+1}, 0
          s_mov_b32 s{sSELLO}, 0x05040100
          s_mov_b32 s{sSELHI}, 0x07060302
          s_mov_b32 s{sSCL}, {hex(f32bits(DH ** -0.5 * math.log2(math.e)))}
          s_waitcnt lgkmcnt(0)
          s_mov_b32 s{sWS}, s{ptr(14)}
          s_mov_b32 s{sWS+1}, s{ptr(14)+1}
          s_mov_b32 s{sWS+2}, {WS_SIZE}
          s_mov_b32 s{sWS+3}, 0x20000
          s_mov_b32 s{sDBG}, s{ptr(13)}
          s_mov_b32 s{sDBG+1}, s{ptr(13)+1}
          s_mov_b32 s{sDBG+2}, 256
          s_mov_b32 s{sDBG+3}, 0x20000''')
    if opt.get('prof'):
        a(f's_memrealtime s[{sST}:{sST+1}]')
        a('s_waitcnt lgkmcnt(0)')
    if opt.get('fake_xcc') == 1:
        a(f'''s_lshr_b32 s{sJ}, s2, 5''')
    if opt.get('fake_xcc') == 2:
        a(f'''s_cmp_lt_u32 s2, 200
              s_cselect_b32 s{sJ}, s{sJ}, 3
              s_cmp_lt_u32 s2, 250
              s_cselect_b32 s{sJ}, s{sJ}, 10''')
    l1, l2 = a.newlabel('Le'), a.newlabel('Le')
    def sweep():
        ls = a.newlabel('Lsw')
        a(f'''s_lshl_b32 s{sT0}, s{sC}, 3
              s_add_u32 s{sT0}, s{sT0}, s{sW}
              s_cmp_ge_u32 s{sT0}, 240
              s_cbranch_scc1 {ls}
              s_mov_b32 m0, {SWEEP_LDS}
              v_and_b32 v9, 63, v0
              v_lshlrev_b32 v9, 4, v9
              v_add_u32 v10, 1024, v9
              v_add_u32 v11, {12288 + 512}, v9
              v_add_u32 v12, {12288 - 512}, v9
              v_cmp_gt_u32 vcc, 512, v9
              s_mul_i32 s{sT1}, s{sT0}, 52429
              s_lshr_b32 s{sT1}, s{sT1}, 22
              v_cndmask_b32 v10, v12, v10, vcc
              s_cmp_eq_u32 s{sT1}, 1
              s_cselect_b32 s{sT}, s{ptr(3)}, s{ptr(2)}
              s_cselect_b32 s{sT+1}, s{ptr(3)+1}, s{ptr(2)+1}
              s_cmp_eq_u32 s{sT1}, 2
              s_cselect_b32 s{sT}, s{ptr(4)}, s{sT}
              s_cselect_b32 s{sT+1}, s{ptr(4)+1}, s{sT+1}
              s_mov_b32 s{sT+2}, {DM*NH*DH*2}
              s_mov_b32 s{sT+3}, 0x20000
              s_mul_i32 s{sT1}, s{sT1}, 80
              s_sub_u32 s{sT1}, s{sT0}, s{sT1}
              s_mul_i32 s{sT1}, s{sT1}, {8*12288}
              s_mul_i32 s{sT2}, s{sJ}, 1536
              s_add_u32 s{sT1}, s{sT1}, s{sT2}''')
        for rp in range(4):
            for v in (9, 10, 11):
                a(f'buffer_load_dwordx4 v{v}, s[{sT}:{sT+3}], s{sT1} offen lds')
            if rp < 3: a(f's_add_u32 s{sT1}, s{sT1}, {2*12288}')
        srd(a, ptr(5), NH * DH * DM * 2)
        a(f'''s_mul_i32 s{sT1}, s{sJ}, {4*DH*DM*2}
              s_lshl_b32 s{sT0}, s{sT0}, 12
              s_add_u32 s{sT1}, s{sT1}, s{sT0}''')
        for k in range(4):
            a(f'buffer_load_dwordx4 v9, s[{sT}:{sT+3}], s{sT1} offen offset:{1024*k} lds')
        a.label(ls)
    a(f'''s_cmp_lg_u32 s{sW}, 0
          s_cbranch_scc1 {l1}
          s_mov_b64 exec, 1
          v_mov_b32 v2, 1
          s_lshl_b32 s{sT0}, s{sJ}, 2
          s_and_b32 s{sT1}, s{sJ}, 12
          s_cmp_eq_u32 s{sT1}, 4
          s_cselect_b32 s{sT1}, 144, 0
          s_add_u32 s{sT0}, s{sT0}, s{sT1}
          v_mov_b32 v3, s{sT0}
          buffer_atomic_add v2, v3, s[{sDBG}:{sDBG+3}], 0 offen sc0 sc1
          s_mov_b64 exec, -1''')
    a.label(l1)
    l3, l4, l5, l6, l7 = [a.newlabel('Le') for _ in range(5)]
    a(f'''s_cmp_lg_u32 s{sW}, 1
          s_cbranch_scc1 {l5}
          s_mov_b64 exec, 1
          v_mov_b32 v2, 0
          v_mov_b32 v3, 0
          v_mov_b32 v4, 0
          v_mov_b32 v5, 0
          s_lshl_b32 s{sT0}, s2, 4
          s_add_u32 s{sT0}, s{sT0}, {WS_FLAG}
          buffer_store_dwordx4 v[2:5], v2, s[{sWS}:{sWS+3}], s{sT0} offen sc1
          s_mov_b64 exec, -1''')
    a.label(l5)
    a(f'''s_waitcnt vmcnt(0)
          s_cmp_lg_u32 s{sW}, 0
          s_cbranch_scc1 {l3}
          s_mov_b64 exec, 1
          v_readfirstlane_b32 s{sT0}, v2
          s_cmp_ge_u32 s{sJ}, 8
          s_cselect_b32 s{sT0}, 32, s{sT0}
          s_cmp_lt_u32 s{sT0}, 32
          s_cbranch_scc1 {l6}
          v_mov_b32 v2, 1
          v_mov_b32 v3, 36
          buffer_atomic_add v2, v3, s[{sDBG}:{sDBG+3}], 0 offen sc0 sc1
          s_waitcnt vmcnt(0)
          v_add_u32 v2, 32, v2''')
    a.label(l6)
    l8 = a.newlabel('Le')
    a(f'''v_mov_b32 v4, 0
          s_or_b32 s{sT0}, s{sT0}, s{sJ}
          s_cmp_lg_u32 s{sT0}, 0
          s_cbranch_scc1 {l8}
          s_lshr_b32 s{sT0}, s2, 6
          s_lshl_b32 s{sT0}, s{sT0}, 14
          s_and_b32 s{sT1}, s2, 63
          s_lshl_b32 s{sT1}, s{sT1}, 7
          s_add_u32 s{sT0}, s{sT0}, s{sT1}
          s_add_u32 s{sT0}, s{sT0}, {WS_RC + RC_PROBE}
          s_add_u32 s{sT1}, s{sT0}, 8192
          s_mov_b32 s{sT2}, -1
          s_mov_b32 s{sT3}, -1''')
    for rnd in range(2):
        for cp in range(2):
            a(f'''v_mov_b32 v5, 0
                  s_memtime s[98:99]
                  s_waitcnt lgkmcnt(0)
                  buffer_atomic_add v5, v4, s[{sWS}:{sWS+3}], s{sT1 if cp else sT0} offen sc0 sc1
                  s_waitcnt vmcnt(0)
                  s_memtime s[100:101]
                  s_waitcnt lgkmcnt(0)
                  s_sub_u32 s98, s100, s98
                  s_min_u32 s{sT3 if cp else sT2}, s{sT3 if cp else sT2}, s98''')
    a(f'''s_mov_b64 s[98:99], 0
          s_mov_b64 s[100:101], 0
          s_cmp_lt_u32 s{sT3}, s{sT2}
          s_cselect_b32 s{sT2}, 0x15, 0x0a
          v_mov_b32 v4, s{sT2}''')
    a(f'''v_mov_b32 v5, 136
          buffer_store_dword v4, v5, s[{sDBG}:{sDBG+3}], 0 offen sc1
          s_waitcnt vmcnt(0)''')
    a.label(l8)
    a(f'''v_mov_b32 v3, 0
          ds_write_b32 v3, v2
          s_mov_b64 exec, -1
          s_waitcnt lgkmcnt(0)''')
    a.label(l3)
    a(f'''s_barrier
          v_mov_b32 v3, 0
          ds_read_b32 v2, v3
          s_mov_b32 s{sARR}, 0
          s_waitcnt lgkmcnt(0)
          v_readfirstlane_b32 s{sC}, v2
          s_barrier
          s_cmp_lt_u32 s{sC}, 32
          s_cbranch_scc1 {l7}''')
    arrive(a, 0, 4)
    a(f's_mov_b32 s{sARR}, 1')
    a('v_and_b32 v4, 63, v0')
    wait_registered(a, opt, 2, 3, 4)
    a(f's_sub_u32 s{sT1}, s{sC}, 32')
    a(f's_mov_b32 s{sJ}, 0')
    a(f's_mov_b32 s{sC}, 0')
    for x in range(8):
        a(f'''v_readlane_b32 s{sT0}, v2, {x if x < 4 else 36 + x}
              s_min_u32 s{sT0}, s{sT0}, 32
              s_sub_u32 s{sT2}, 32, s{sT0}
              s_add_u32 s{sT0}, s{sT0}, s{sT1}
              s_cmp_lt_u32 s{sT1}, s{sT2}
              s_cselect_b32 s{sJ}, {x}, s{sJ}
              s_cselect_b32 s{sC}, s{sT0}, s{sC}
              s_sub_u32 s{sT1}, s{sT1}, s{sT2}''')
    a.label(l7)
    a(f'''s_lshr_b32 s{sT0}, s{sC}, 4
          s_lshr_b32 s{sT1}, s{sJ}, 2
          s_and_b32 s{sJ}, s{sJ}, 3
          s_lshl_b32 s{sJ}, s{sJ}, 1
          s_add_u32 s{sJ}, s{sJ}, s{sT0}
          s_and_b32 s{sC}, s{sC}, 15
          s_lshl_b32 s{sT1}, s{sT1}, 4
          s_add_u32 s{sC}, s{sC}, s{sT1}''')
    if opt.get('prof'):
        a(f's_memrealtime s[{sST+8}:{sST+9}]')
        a('s_waitcnt lgkmcnt(0)')

import struct
def f32bits(x): return struct.unpack('<I', struct.pack('<f', x))[0]

def emit_chain_body(a, opt):
    ch = Chain(a, opt)
    lv, l7, lat = a.newlabel('Lrole_v'), a.newlabel('Lrole_w7'), a.newlabel('Lrole_att')
    a(f'''s_lshr_b32 s{sH}, s{sC}, 2
          s_lshl_b32 s{sT0}, s{sJ}, 2
          s_add_u32 s{sH}, s{sH}, s{sT0}
          s_and_b32 s{sG}, s{sC}, 3
          s_setprio 2
          s_cmp_eq_u32 s{sW}, 3
          s_cbranch_scc1 {lv}
          s_cmp_eq_u32 s{sW}, 7
          s_cbranch_scc1 {l7}
          s_cmp_ge_u32 s{sW}, 4
          s_cbranch_scc1 {lat}''')
    ch.role_qk()
    a.label(lv); ch.role_v()
    a.label(l7); ch.role_w7()
    a.label(lat); ch.role_att()
```

```python
from asmlib import *
from layout import *
import math

LM, LO, LDUMMY, LQK, LW5, LR, LOX, LBUF = 0, 10240, 13312, 16384, 22528, 34816, 35840, 38912
LBUF_SZ = 27648
LK_OFF, LV_OFF, LQ_OFF = 0, 12288, 24576
CHAIN_LDS = LBUF + 3 * LBUF_SZ
SWEEP_LDS = 139264

sWS, sDBG, sT = 4, 8, 12
sPTR = 16
def ptr(i): return sPTR + 2 * i
sW, sJ, sC, sH, sG, sMIX, sBUD, sSTEP = 48, 49, 50, 51, 52, 53, 54, 55
sA_N, sA_R, sB_C, sB_R, sC_W, sC_RS, sC_RD, sO_C = 56, 57, 58, 59, 60, 61, 62, 63
sKQ, sVX, sLB, sRED, sSCL, sT0, sT1, sT2, sT3 = 64, 65, 66, 67, 68, 69, 76, 77, 78
sMN8, sML32, sMH8 = 70, 72, 74
sSELLO, sSELHI = 80, 81
sCI = 46
sARR = 3
sMA = 46
sST = 82
sPADD, sPOR, sA_P, sCS, sPOL, sC_W2 = 94, 95, 96, 97, 79, 61
NSTAMP = 6

def srd(a, base_ptr, nbytes):
    a(f'''s_mov_b32 s{sT}, s{base_ptr}
          s_mov_b32 s{sT+1}, s{base_ptr+1}
          s_mov_b32 s{sT+2}, {nbytes}
          s_mov_b32 s{sT+3}, 0x20000''')

class Chain:
    def __init__(self, a, opt):
        self.a = a
        self.opt = opt
        self.tail = []
        self.tails = []
        self.nstamp = 0
        self.wnt = ' nt' if opt.get('w_nt') else ''

    def lstore(self, insts):
        a = self.a
        slow, back = a.newlabel('Lslow'), a.newlabel('Lback')
        a(f's_cmp_lg_u32 s{sMIX}, 0')
        a(f's_cbranch_scc1 {slow}')
        for i in insts: a(i)
        a.label(back)
        self.tail.append((slow, [i + ' sc1' if i.startswith('buffer_') else i for i in insts], back))

    def emit_tail(self):
        a = self.a
        for slow, insts, back in self.tail:
            a.label(slow)
            for i in insts: a(i)
            a(f's_branch {back}')
        self.tail = []
        for t in self.tails: t()
        self.tails = []

    def stamp(self, k, ahead=0):
        if not self.opt.get('stamps'): return
        a = self.a
        l = a.newlabel('Lst')
        a(f'''s_cmp_lg_u32 s{sSTEP}, {self.opt['stamps'] + ahead}
              s_cbranch_scc1 {l}
              {self.opt.get('clock', 's_memtime')} s[{sST+2*k}:{sST+2*k+1}]
              s_waitcnt lgkmcnt(0)''')
        a.label(l)

    def mark(self, k):
        if not self.opt.get('prof'): return
        self.a(f's_memrealtime s[{sST+2*k}:{sST+2*k+1}]')
        self.a('s_waitcnt lgkmcnt(0)')

    def dump_stamps(self):
        self.mark(3)
        if not (self.opt.get('stamps') or self.opt.get('prof')): return
        a = self.a
        if self.opt.get('dbgout'):
            l = a.newlabel('Ldo')
            a(f'''s_and_b32 s{sT0}, s{sC}, 15
                  s_or_b32 s{sT0}, s{sT0}, s{sJ}
                  s_or_b32 s{sT0}, s{sT0}, s{sW}
                  s_cmp_lg_u32 s{sT0}, 0
                  s_cbranch_scc1 {l}
                  s_cmp_ge_u32 s{sC}, 16
                  s_cselect_b32 s{sT0}, s{sST+2}, s{sST+4}
                  s_cselect_b32 s{sT2}, 56, 48
                  s_sub_u32 s{sT0}, s{sT0}, s{sST}
                  s_sub_u32 s{sT1}, s{sST+6}, s{sST}
                  s_mov_b64 exec, 1
                  v_mov_b32 v2, s{sT0}
                  v_mov_b32 v3, s{sT1}
                  v_mov_b32 v4, s{sT2}
                  buffer_store_dwordx2 v[2:3], v4, s[{sDBG}:{sDBG+3}], 0 offen
                  s_mov_b64 exec, -1''')
            a.label(l)
        a(f'''s_lshl_b32 s{sT0}, s{sJ}, 5
              s_add_u32 s{sT0}, s{sT0}, s{sC}
              s_lshl_b32 s{sT0}, s{sT0}, 3
              s_add_u32 s{sT0}, s{sT0}, s{sW}
              s_lshl_b32 s{sT0}, s{sT0}, 6
              s_add_u32 s{sT0}, s{sT0}, {WS_DBG + 0x100000}
              s_mov_b64 exec, -1
              v_mov_b32 v2, 0''')
        for k in range(NSTAMP):
            a(f'v_mov_b32 v3, s{sST+2*k}')
            a(f'buffer_store_dword v3, v2, s[{sWS}:{sWS+3}], s{sT0} offen offset:{4*k}')
        for k in range(4):
            a(f'v_mov_b32 v3, s{98+k}')
            a(f'buffer_store_dword v3, v2, s[{sWS}:{sWS+3}], s{sT0} offen offset:{4*(8+k)}')
        a('s_waitcnt vmcnt(0)')

    def retry(self, label, kind=None):
        a = self.a
        if kind is not None and self.opt.get('stamps'):
            a(f's_add_u32 s{98+kind}, s{98+kind}, 1')
        a(f'''s_sub_u32 s{sBUD}, s{sBUD}, 1
              s_cbranch_scc0 {label}
              s_mov_b32 s{sBUD}, 0''')

    def slots(self):
        a = self.a
        a(f'''s_and_b32 s{sT0}, s{sSTEP}, 3
              s_add_u32 s{sT1}, s{sSTEP}, 1
              s_and_b32 s{sT1}, s{sT1}, 3
              s_xor_b32 s{sT2}, s{sT0}, 2
              s_lshr_b32 s{sT3}, s{sJ}, 1
              s_mul_i32 s{sT3}, s{sT3}, 10240
              s_add_u32 s{sT3}, s{sT3}, {WS_RA}
              s_mul_i32 s{sA_N}, s{sT1}, {RA_SLOT}
              s_add_u32 s{sA_N}, s{sA_N}, s{sT3}
              s_mul_i32 s{sA_R}, s{sT2}, {RA_SLOT}
              s_add_u32 s{sA_R}, s{sA_R}, s{sT3}
              s_mul_i32 s{sT3}, s{sH}, 9216
              s_add_u32 s{sT3}, s{sT3}, {WS_RB}
              s_mul_i32 s{sB_C}, s{sT0}, {RB_SLOT}
              s_add_u32 s{sB_C}, s{sB_C}, s{sT3}
              s_mul_i32 s{sB_R}, s{sT2}, {RB_SLOT}
              s_add_u32 s{sB_R}, s{sB_R}, s{sT3}
              s_and_b32 s{sT0}, s{sCS}, 255
              s_mul_i32 s{sT1}, s{sT0}, 86
              s_lshr_b32 s{sT1}, s{sT1}, 8
              s_mul_i32 s{sC_RD}, s{sT0}, {RC_SLOT}
              s_mul_i32 s{sT2}, s{sT1}, {0x200000 - 3*RC_SLOT}
              s_add_u32 s{sC_RD}, s{sC_RD}, s{sT2}
              s_add_u32 s{sC_RD}, s{sC_RD}, {WS_RC}
              s_xor_b32 s{sT1}, s{sPOL}, s{sT1}
              s_and_b32 s{sT1}, s{sT1}, 1
              s_lshl_b32 s{sT1}, s{sT1}, 13
              s_add_u32 s{sC_RD}, s{sC_RD}, s{sT1}
              s_lshl_b32 s{sT3}, s{sH}, 8
              s_add_u32 s{sC_W}, s{sC_RD}, s{sT3}
              s_lshl_b32 s{sPOR}, s{sCS}, 8
              s_and_b32 s{sPOR}, s{sPOR}, 0x10000
              s_xor_b32 s{sPADD}, s{sPOR}, 0x10000
              s_mul_i32 s{sO_C}, s{sSTEP}, {32*12288}
              s_add_u32 s{sO_C}, s{sO_C}, {WS_O}''')

    def next_step(self):
        a = self.a
        a(f'''s_add_u32 s{sSTEP}, s{sSTEP}, 1
              s_add_u32 s{sCS}, s{sCS}, 1
              s_and_b32 s{sT0}, s{sCS}, 255
              s_xor_b32 s{sT1}, s{sCS}, {256 + RC_N}
              s_cmp_eq_u32 s{sT0}, {RC_N}
              s_cselect_b32 s{sCS}, s{sT1}, s{sCS}''')
        self.slots()

    def load_pair(self, WA, WB, nks, voff, rowstride, tmp, between=None):
        a = self.a
        items = []
        for ks in range(nks):
            for R in range(8):
                hi, p = R >> 2, R & 3
                b, tt = p & 1, p >> 1
                d = 64 * ks + 32 * hi + 8 * b + 2 * tt
                items.append((WA + ks * 8 + R, WB + ks * 8 + R, d))
        def issue(it):
            ra, rb, d = it
            a(f's_mov_b32 s{sT0}, {d * rowstride}')
            a(f'buffer_load_dword v{ra}, v{voff}, s[{sT}:{sT+3}], s{sT0} offen' + self.wnt)
            a(f's_mov_b32 s{sT1}, {(d + 1) * rowstride}')
            a(f'buffer_load_dword v{rb}, v{voff}, s[{sT}:{sT+3}], s{sT1} offen' + self.wnt)
        def fix(it):
            ra, rb, d = it
            a(f'v_perm_b32 v{tmp}, v{rb}, v{ra}, s{sSELLO}')
            a(f'v_perm_b32 v{rb}, v{rb}, v{ra}, s{sSELHI}')
            a(f'v_mov_b32 v{ra}, v{tmp}')
        groups = [items[i:i + 8] for i in range(0, len(items), 8)]
        groups = [items[i:i + 4] for i in range(0, len(items), 4)]
        depth = 7
        for gi in range(min(depth, len(groups))):
            for it in groups[gi]: issue(it)
        if between:
            assert len(groups) <= depth
            between()
            a('s_waitcnt vmcnt(0)')
        for gi in range(len(groups)):
            inflight = min(len(groups), gi + depth) - gi - 1
            a(f's_waitcnt vmcnt({8 * inflight})')
            for it in groups[gi]: fix(it)
            if gi + depth < len(groups):
                for it in groups[gi + depth]: issue(it)

    def load_single(self, W, nks, voff, vsel, rowstride, tmps):
        a = self.a
        items = []
        for ks in range(nks):
            for R in range(8):
                hi, p = R >> 2, R & 3
                b, tt = p & 1, p >> 1
                items.append((W + ks * 8 + R, 64 * ks + 32 * hi + 8 * b + 2 * tt))
        groups = [items[i:i + 4] for i in range(0, len(items), 4)]
        depth = 7
        def issue(gi):
            for k, (r, d) in enumerate(groups[gi]):
                t = tmps + (gi % depth) * 4 + k
                a(f's_mov_b32 s{sT0}, {d * rowstride}')
                a(f'buffer_load_dword v{r}, v{voff}, s[{sT}:{sT+3}], s{sT0} offen' + self.wnt)
                a(f's_mov_b32 s{sT1}, {(d + 1) * rowstride}')
                a(f'buffer_load_dword v{t}, v{voff}, s[{sT}:{sT+3}], s{sT1} offen' + self.wnt)
        for gi in range(min(depth, len(groups))): issue(gi)
        for gi in range(len(groups)):
            inflight = min(len(groups), gi + depth) - gi - 1
            a(f's_waitcnt vmcnt({8 * inflight})')
            for k, (r, d) in enumerate(groups[gi]):
                t = tmps + (gi % depth) * 4 + k
                a(f'v_perm_b32 v{r}, v{t}, v{r}, v{vsel}')
            if gi + depth < len(groups): issue(gi + depth)

    def load_w(self, WA, WB, nks, rowstride, sbase, vcol, tmps, vsel=None):
        a = self.a
        NS = 5
        vG, vR, vA, X = tmps, tmps + 1, tmps + 2, tmps + 4
        sSl = sLB
        a(f"""s_min_u32 s{sSl}, s{sW}, 4
              s_mul_i32 s{sSl}, s{sSl}, {4096*NS}
              s_add_u32 s{sSl}, s{sSl}, {LBUF}
              v_lshrrev_b32 v{vG}, 2, v{self.vL}
              s_mov_b32 s{sT1}, {rowstride}
              v_mul_lo_u32 v{vG}, v{vG}, s{sT1}
              v_and_b32 v{vR}, 3, v{self.vL}
              v_lshl_add_u32 v{vG}, v{vR}, 4, v{vG}
              v_lshrrev_b32 v{vR}, 1, v{self.vQ}
              v_lshlrev_b32 v{vR}, 10, v{vR}
              v_and_b32 v{vA}, 1, v{self.vQ}
              v_lshl_add_u32 v{vR}, v{vA}, 8, v{vR}
              v_add_u32 v{vR}, v{vR}, v{vcol}
              v_add_u32 v{vR}, s{sSl}, v{vR}""")
        def issue(ks):
            for i in range(4):
                a(f's_add_u32 m0, s{sSl}, {(ks % NS)*4096 + i*1024}')
                a(f's_add_u32 s{sT1}, s{sbase}, {(64*ks + 16*i)*rowstride}')
                a(f'buffer_load_dwordx4 v{vG}, s[{sT}:{sT+3}], s{sT1} offen lds')
        for ks in range(min(NS, nks)): issue(ks)
        for ks in range(nks):
            a(f's_waitcnt vmcnt({4 * (min(nks, ks + NS) - ks - 1)})')
            for hi in range(2):
                a(f'v_add_u32 v{vA+hi}, {(ks % NS)*4096 + hi*2048}, v{vR}')
            for R in range(8):
                hi, p = R >> 2, R & 3
                row = 8 * (p & 1) + 2 * (p >> 1)
                a(f'ds_read2_b32 v[{X+2*R}:{X+2*R+1}], v{vA+hi} offset0:{16*row} offset1:{16*(row+1)}')
            a('s_waitcnt lgkmcnt(0)')
            if ks + NS < nks: issue(ks + NS)
            for R in range(8):
                if WB is None:
                    a(f'v_perm_b32 v{WA+8*ks+R}, v{X+2*R+1}, v{X+2*R}, v{vsel}')
                else:
                    a(f'v_perm_b32 v{WA+8*ks+R}, v{X+2*R+1}, v{X+2*R}, s{sSELLO}')
                    a(f'v_perm_b32 v{WB+8*ks+R}, v{X+2*R+1}, v{X+2*R}, s{sSELHI}')

    def lanes(self, al):
        a = self.a
        self.vL, self.vN, self.vQ = al(), al(), al()
        self.vT0, self.vT1, self.vT2 = al(), al(), al()
        self.vMask = 0
        a(f'''v_and_b32 v{self.vL}, 63, v0
              v_and_b32 v{self.vN}, 15, v0
              v_bfe_u32 v{self.vQ}, v0, 4, 2
              v_mov_b32 v0, 0xfffe0000''')

    def frag_addr(self, dst):
        a = self.a
        a(f'''v_lshlrev_b32 v{dst}, 8, v{self.vQ}
              v_bfe_u32 v{self.vT0}, v{self.vN}, 1, 1
              v_lshl_add_u32 v{dst}, v{self.vT0}, 7, v{dst}
              v_lshrrev_b32 v{self.vT0}, 2, v{self.vN}
              v_lshl_add_u32 v{dst}, v{self.vT0}, 5, v{dst}
              v_and_b32 v{self.vT0}, 1, v{self.vN}
              v_lshl_add_u32 v{dst}, v{self.vT0}, 4, v{dst}''')

    def idx_reg(self, dst):
        a = self.a
        a(f'''v_and_b32 v{self.vT0}, 2, v{self.vN}
              v_cmp_eq_u32 vcc, 2, v{self.vT0}
              v_mov_b32 v{dst}, 0x44444444
              v_mov_b32 v{self.vT0}, 0xeeeeeeee
              s_nop 1
              v_cndmask_b32 v{dst}, v{dst}, v{self.vT0}, vcc''')

    def wrow_lane(self, dst, rowstride):
        a = self.a
        a(f'''v_lshrrev_b32 v{self.vT0}, 1, v{self.vQ}
              v_lshlrev_b32 v{self.vT0}, 4, v{self.vT0}
              v_and_b32 v{self.vT1}, 1, v{self.vQ}
              v_lshl_add_u32 v{self.vT0}, v{self.vT1}, 2, v{self.vT0}
              s_mov_b32 s{sT0}, {rowstride}
              v_mul_lo_u32 v{dst}, v{self.vT0}, s{sT0}''')

    def wait_all_registered(self):
        a = self.a
        a('s_setprio 2')
        a('s_barrier')
        w = a.newlabel('Lp0')
        a(f's_cmp_lg_u32 s{sW}, 0')
        a(f's_cbranch_scc1 {w}')
        wait_registered(a, self.opt, self.vT0, self.vT1, self.vL, True)
        a(f'''s_lshl_b32 s{sPOL}, s{sPOL}, 1
              s_or_b32 s{sPOL}, s{sPOL}, s{sMIX}
              v_mov_b32 v{self.vT0}, s{sPOL}
              v_mov_b32 v{self.vT1}, {LR + 64}
              ds_write_b32 v{self.vT1}, v{self.vT0}
              s_waitcnt lgkmcnt(0)''')
        a.label(w)
        a(f'''s_barrier
              v_mov_b32 v{self.vT1}, {LR + 64}
              ds_read_b32 v{self.vT0}, v{self.vT1}
              s_waitcnt lgkmcnt(0)
              v_readfirstlane_b32 s{sPOL}, v{self.vT0}
              s_and_b32 s{sMIX}, s{sPOL}, 1
              s_lshr_b32 s{sPOL}, s{sPOL}, 1''')
        if self.opt.get('pol') is not None: pass
        self.slots()

    def wait_tiles(self, seg, first, nflags):
        if not self.opt.get('fused'): return
        a = self.a
        lp, ok, skip = a.newlabel('Lwt'), a.newlabel('Lwtok'), a.newlabel('Lwts')
        T0, T1 = self.vT0, self.vT1
        a(f'''s_and_b32 s{sT0}, s{seg}, 7
              s_cbranch_scc1 {skip}
              s_lshr_b32 s{sT0}, s{seg}, 3
              s_mul_i32 s{sT0}, s{sT0}, 48
              s_lshl_b32 s{sT1}, s{sJ}, 9
              s_add_u32 s{sT0}, s{sT0}, s{sT1}
              s_and_b32 s{sT1}, s{sH}, 3
              s_lshl_b32 s{sT1}, s{sT1}, 2
              s_add_u32 s{sT0}, s{sT0}, s{sT1}
              s_add_u32 s{sT0}, s{sT0}, {WS_FLAG + 16*first}
              v_lshlrev_b32 v{T1}, 4, v{self.vL}
              s_mov_b64 exec, {(1 << nflags) - 1}''')
        a.label(lp)
        a(f'''buffer_load_dword v{T0}, v{T1}, s[{sWS}:{sWS+3}], s{sT0} offen sc1
              s_waitcnt vmcnt(0)
              v_cmp_eq_u32 vcc, 0, v{T0}
              s_cbranch_vccz {ok}
              s_sleep {self.opt.get('t_sleep', 2)}''')
        self.retry(lp)
        a.label(ok)
        a('s_mov_b64 exec, -1')
        a.label(skip)

    def o_flag(self, back):
        if not self.opt.get('fused'): return
        a = self.a
        if self.opt.get('no_oflag'): return
        a(f'''s_lshl_b32 s{sT0}, s{sJ}, 4
              s_add_u32 s{sT0}, s{sT0}, s{sC}
              s_lshl_b32 s{sT0}, s{sT0}, 7
              s_add_u32 s{sT0}, s{sT0}, {WS_OFLAG}
              s_add_u32 s{sT1}, s{sSTEP}, {1 - back}
              v_mov_b32 v{self.vT0}, s{sT1}
              v_mov_b32 v{self.vT1}, 0
              s_mov_b64 exec, 1''')
        a(f'buffer_store_dword v{self.vT0}, v{self.vT1}, s[{sWS}:{sWS+3}], s{sT0} offen sc1')
        a('s_mov_b64 exec, -1')

    def poll2(self, vOff, soff, lds, sets, kind, gap):
        a = self.a
        t, t2 = self.vT0, self.vT1
        n = len(sets)
        def issue(R):
            a(f'''buffer_load_dwordx4 v[{R}:{R+3}], v{vOff}, s[{sWS}:{sWS+3}], s{soff} offen sc1
                  buffer_load_dwordx4 v[{R+4}:{R+7}], v{vOff}, s[{sWS}:{sWS+3}], s{soff} offen offset:1024 sc1''')
        def check(R, br):
            a(f'''ds_write_b128 v{vOff}, v[{R}:{R+3}] offset:{lds}
                  ds_write_b128 v{vOff}, v[{R+4}:{R+7}] offset:{lds+1024}
                  v_max3_u32 v{t}, v{R}, v{R+1}, v{R+2}
                  v_max3_u32 v{t2}, v{R+3}, v{R+4}, v{R+5}
                  v_max3_u32 v{t}, v{t}, v{R+6}, v{R+7}
                  v_max_u32 v{t}, v{t}, v{t2}
                  v_cmp_eq_u32 vcc, -1, v{t}
                  {br}''')
        lp, ok = a.newlabel('Lp'), a.newlabel('Lpok')
        for k in range(n):
            issue(sets[k])
            if gap and k < n - 1: a(f's_sleep {gap}')
        a(f's_waitcnt vmcnt({2 * (n - 1)})')
        if kind == 0 and self.opt.get('fine'): self.stamp(3)
        check(sets[0], f's_cbranch_vccnz {lp}')
        a.label(ok)
        def tail():
            back = a.newlabel('Lpb')
            a.label(lp)
            for k in range(n):
                if self.opt.get('stamps'): a(f's_add_u32 s{98+kind}, s{98+kind}, 1')
                a('s_mov_b64 exec, vcc')
                issue(sets[k])
                a(f's_waitcnt vmcnt({2 * (n - 1)})')
                check(sets[(k + 1) % n], f's_cbranch_vccz {back}')
            self.retry(lp)
            a.label(back)
            a('s_mov_b64 exec, -1')
            a(f's_branch {ok}')
        self.tails.append(tail)

    def a_poll(self, vAoff, sets, first=False):
        a = self.a
        if first:
            a(f's_lshr_b32 s{sA_P}, s{sJ}, 1')
            a(f's_mul_i32 s{sA_P}, s{sA_P}, 10240')
            a(f's_add_u32 s{sA_P}, s{sA_P}, {WS_RA}')
        else:
            a(f's_mov_b32 s{sA_P}, s{sA_N}')
            self.next_step()
        a('s_barrier')
        if self.opt.get('a_first'): a(f"s_sleep {self.opt['a_first']}")
        self.poll2(vAoff, sA_P, LM, sets[:self.opt.get('a_depth', 1)], 2, self.opt.get('a_gap', 0))
        a('s_waitcnt lgkmcnt(0)')
        if not first: self.stamp(4, 1)
        a('s_barrier')

    def mem0_load(self, vAoff, R):
        a = self.a
        srd(a, ptr(1), 10240)
        T0, T1 = self.vT0, self.vT1
        a(f'''v_bfe_u32 v{T0}, v{vAoff}, 4, 3
              v_mul_u32_u24 v{T0}, 1280, v{T0}
              v_lshrrev_b32 v{T1}, 7, v{vAoff}
              v_lshl_add_u32 v{T0}, v{T1}, 4, v{T0}
              buffer_load_dwordx4 v[{R}:{R+3}], v{T0}, s[{sT}:{sT+3}], 0 offen
              buffer_load_dwordx4 v[{R+4}:{R+7}], v{T0}, s[{sT}:{sT+3}], 0 offen offset:128
              s_waitcnt vmcnt(0)
              ds_write_b128 v{vAoff}, v[{R}:{R+3}] offset:{LM}
              ds_write_b128 v{vAoff}, v[{R+4}:{R+7}] offset:{LM+1024}
              s_waitcnt lgkmcnt(0)''')

    def a_off(self, dst):
        a = self.a
        a(f'''s_sub_u32 s{sT0}, s{sW}, 3
              s_lshl_b32 s{sT0}, s{sT0}, 11
              v_lshlrev_b32 v{dst}, 4, v{self.vL}
              v_add_u32 v{dst}, s{sT0}, v{dst}''')

    def dma_seg_regs(self, seg_expr_sgpr):
        a = self.a
        sg = seg_expr_sgpr
        a(f'''s_lshl_b32 s{sT0}, s{sH}, 6
              s_add_u32 s{sT0}, s{sT0}, s{sg}
              s_mul_i32 s{sKQ}, s{sT0}, 12288
              s_add_u32 s{sVX}, s{sKQ}, {WS_VT}
              s_mul_i32 s{sT0}, s{sg}, 86
              s_lshr_b32 s{sT0}, s{sT0}, 8
              s_mul_i32 s{sT0}, s{sT0}, 3
              s_sub_u32 s{sT0}, s{sg}, s{sT0}
              s_mul_i32 s{sLB}, s{sT0}, {LBUF_SZ}
              s_add_u32 s{sLB}, s{sLB}, {LBUF}''')

    def dma12(self, v, base, lds, pieces):
        a = self.a
        for k in pieces:
            a(f'''s_add_u32 s{sT2}, s{sG}, {k}
                  s_and_b32 s{sT2}, s{sT2}, 3
                  s_mul_i32 s{sT2}, s{sT2}, 3072
                  s_add_u32 s{sT1}, s{sLB}, s{sT2}
                  s_add_u32 m0, s{sT1}, {lds}
                  s_add_u32 s{sT1}, s{sKQ}, s{sT2}
                  s_add_u32 s{sT1}, s{sT1}, {base}''')
            for t in range(3):
                a(f'buffer_load_dwordx4 v{v}, s[{sWS}:{sWS+3}], s{sT1} offen offset:{1024*t} sc1 lds')

    def dma_q(self, vQx):
        a = self.a
        for p in range(3):
            a(f's_add_u32 m0, s{sLB}, {LQ_OFF + p*1024}')
            a(f's_add_u32 s{sT1}, s{sKQ}, {WS_Q + p*2048}')
            a(f'buffer_load_dwordx4 v{vQx}, s[{sWS}:{sWS+3}], s{sT1} offen sc1 lds')

    def stage(self, own, rest, first, nflags):
        a = self.a
        l1, l2 = a.newlabel('Lsg'), a.newlabel('Lsg')
        def part(ahead, fn, lab, wait):
            a(f"""s_add_u32 s{sT3}, s{sSTEP}, {ahead}
                  s_cmp_ge_u32 s{sT3}, 64
                  s_cbranch_scc1 {lab}""")
            if wait: self.wait_tiles(sT3, first, nflags)
            self.dma_seg_regs(sT3)
            if not self.opt.get('no_dma'): fn()
            a.label(lab)
        if self.opt.get('own_last'):
            part(2, rest, l2, False); part(3, own, l1, True)
        else:
            part(3, own, l1, True); part(2, rest, l2, False)

    def stage_first(self, own, rest, first, nflags):
        a = self.a
        self.wait_tiles(sSTEP, first, nflags)
        for sg in range(3):
            a(f's_mov_b32 s{sT3}, {sg}')
            self.dma_seg_regs(sT3); own()
            if sg < 2: rest()
        a('s_waitcnt vmcnt(0)')

    def wo_stage(self, pairs, vFrag, vIdx, F, vCoff, RR, skip):
        a = self.a
        for ks in range(3):
            a(f'ds_read_b128 v[{F+4*ks}:{F+4*ks+3}], v{vFrag} offset:{LO + 1024*ks}')
        a(f'v_lshlrev_b32 v{self.vT0}, 3, v{self.vQ}')
        a(f'ds_read_b64 v[{RR}:{RR+1}], v{self.vT0} offset:{LR}')
        a(f's_cmp_eq_u32 s{sSTEP}, 63')
        a(f's_cbranch_scc1 {skip}')
        for ks in range(3):
            a(f's_waitcnt lgkmcnt({3-ks})')
            for (WA, WB, TA, TB, coff) in pairs:
                a(f'v_smfmac_f32_16x16x64_bf16 v[{TA}:{TA+3}], v[{F+4*ks}:{F+4*ks+3}], v[{WA+8*ks}:{WA+8*ks+7}], v{vIdx}')
                a(f'v_smfmac_f32_16x16x64_bf16 v[{TB}:{TB+3}], v[{F+4*ks}:{F+4*ks+3}], v[{WB+8*ks}:{WB+8*ks+7}], v{vIdx}')
        a('s_waitcnt lgkmcnt(0)')
        a('s_nop 5')
        for (WA, WB, TA, TB, coff) in pairs:
            self.pair_epilogue(TA, TB, RR)
            a(f'buffer_store_dword v{TA}, v{vCoff}, s[{sWS}:{sWS+3}], s{sC_W} offen offset:{coff} sc1')
            a(f'buffer_store_dword v{TB}, v{vCoff}, s[{sWS}:{sWS+3}], s{sC_W} offen offset:{coff+128} sc1')

    def pair_epilogue(self, TA, TB, RR=None):
        a = self.a
        a(f"""v_pk_add_f32 v[{TA}:{TA+1}], v[{TA}:{TA+1}], v[{TA+2}:{TA+3}]
              v_pk_add_f32 v[{TB+2}:{TB+3}], v[{TB}:{TB+1}], v[{TB+2}:{TB+3}]""")
        if RR is not None:
            a(f"""v_pk_mul_f32 v[{TA}:{TA+1}], v[{TA}:{TA+1}], v[{RR}:{RR+1}]
                  v_pk_mul_f32 v[{TB+2}:{TB+3}], v[{TB+2}:{TB+3}], v[{RR}:{RR+1}]
                  v_add_u32 v{TA}, s{sPADD}, v{TA}
                  v_add_u32 v{TA+1}, s{sPADD}, v{TA+1}
                  v_and_or_b32 v{TA}, v{TA}, v{self.vMask}, s{sPOR}
                  v_and_or_b32 v{TA+1}, v{TA+1}, v{self.vMask}, s{sPOR}
                  v_cvt_pk_bf16_f32 v{TA}, v{TA}, v{TB+2}
                  v_cvt_pk_bf16_f32 v{TB}, v{TA+1}, v{TB+3}""")
            return
        a(f"""v_cvt_pk_bf16_f32 v{TA}, v{TA}, v{TB+2}
              v_cvt_pk_bf16_f32 v{TB}, v{TA+1}, v{TB+3}
              v_min_u32 v{TA}, -2, v{TA}
              v_min_u32 v{TB}, -2, v{TB}""")

    def zero(self, r, n):
        for k in range(n): self.a(f'v_mov_b32 v{r+k}, 0')

    def c_off(self, dst, pw_sgpr_or_int):
        a = self.a
        T0 = self.vT0
        a(f'''v_lshrrev_b32 v{dst}, 3, v{self.vN}
              v_lshlrev_b32 v{dst}, 14, v{dst}
              v_bfe_u32 v{T0}, v{self.vN}, 2, 1
              v_lshl_add_u32 v{dst}, v{T0}, 6, v{dst}
              v_lshl_add_u32 v{dst}, v{self.vQ}, 4, v{dst}
              v_and_b32 v{T0}, 3, v{self.vN}
              v_lshl_add_u32 v{dst}, v{T0}, 2, v{dst}
              s_mul_i32 s{sT0}, s{sG}, 163840''')
        if isinstance(pw_sgpr_or_int, int):
            a(f's_add_u32 s{sT0}, s{sT0}, {32768*pw_sgpr_or_int}')
        else:
            a(f's_lshl_b32 s{sT1}, {pw_sgpr_or_int}, 15')
            a(f's_add_u32 s{sT0}, s{sT0}, s{sT1}')
        a(f'v_add_u32 v{dst}, s{sT0}, v{dst}')

    def wo_weights(self, WA, WB, pw, vtmp, tmp, between=None):
        a = self.a
        srd(a, ptr(5), NH * DH * DM * 2)
        self.wrow_lane(vtmp, 1280)
        a(f'''s_mul_i32 s{sT0}, s{sH}, {DH*DM*2}
              s_mul_i32 s{sT1}, s{sG}, 320
              s_add_u32 s{sT0}, s{sT0}, s{sT1}''')
        if isinstance(pw, int):
            a(f's_add_u32 s{sT0}, s{sT0}, {64*pw}')
        else:
            a(f's_lshl_b32 s{sT1}, {pw}, 6')
            a(f's_add_u32 s{sT0}, s{sT0}, s{sT1}')
        a(f'''v_lshl_add_u32 v{vtmp}, v{self.vN}, 2, v{vtmp}
              v_add_u32 v{vtmp}, s{sT0}, v{vtmp}''')
        self.load_pair(WA, WB, 3, vtmp, 1280, tmp, between)

    def finish(self):
        self.dump_stamps()
        self.a('s_endpgm')

    def touch_weights(self):
        a = self.a
        T0, T1 = self.vT0, self.vT1
        a(f's_mov_b32 m0, {SWEEP_LDS}')
        srd(a, ptr(4), DM * NH * DH * 2)
        a(f"""s_mov_b32 s{sT0}, 12288
              v_mul_lo_u32 v{T0}, v{self.vL}, s{sT0}
              s_mul_i32 s{sT0}, s{sH}, 384
              s_mul_i32 s{sT1}, s{sG}, 96
              s_add_u32 s{sT0}, s{sT0}, s{sT1}
              s_mul_i32 s{sT1}, s{sRED}, {64*12288}
              s_add_u32 s{sT0}, s{sT0}, s{sT1}""")
        for i in range(4):
            a(f'buffer_load_dword v{T0}, s[{sT}:{sT+3}], s{sT0} offen lds')
            a(f'buffer_load_dword v{T0}, s[{sT}:{sT+3}], s{sT0} offen offset:92 lds')
            if i < 3: a(f's_add_u32 s{sT0}, s{sT0}, {192*12288}')
        srd(a, ptr(5), NH * DH * DM * 2)
        a(f"""v_mul_u32_u24 v{T1}, 1280, v{self.vL}
              s_mul_i32 s{sT0}, s{sH}, {DH*DM*2}
              s_mul_i32 s{sT1}, s{sG}, 320
              s_add_u32 s{sT0}, s{sT0}, s{sT1}
              s_mul_i32 s{sT1}, s{sRED}, {64*1280}
              s_add_u32 s{sT0}, s{sT0}, s{sT1}""")
        for off in (0, 128, 256, 316):
            a(f'buffer_load_dword v{T1}, s[{sT}:{sT+3}], s{sT0} offen offset:{off} lds')

    def c_page_init(self, R, vLin):
        a = self.a
        a(f's_add_u32 s{sT2}, s{sCI}, 4096')
        for k in range(5):
            a(f'buffer_store_dwordx4 v[{R}:{R+3}], v{vLin}, s[{sWS}:{sWS+3}], s{sT2 if k == 4 else sCI} offen offset:{1024*(k&3)} sc1')
        a(f's_add_u32 s{sCI}, s{sCI}, 0x200000')

    def init_job(self, R):
        a = self.a
        vLin = R + 20
        sU = sA_P
        a(f"""s_lshl_b32 s{sU}, s{sJ}, 4
              s_add_u32 s{sU}, s{sU}, s{sC}
              s_mul_i32 s{sU}, s{sU}, 3
              s_add_u32 s{sU}, s{sU}, s{sRED}
              v_lshlrev_b32 v{vLin}, 4, v{self.vL}""")
        for k in range(4): a(f'v_mov_b32 v{R+k}, -1')
        for k in range(4): a(f'v_mov_b32 v{R+4+k}, 0')
        l1, l2 = a.newlabel('Lin'), a.newlabel('Lin')
        a(f"""s_cmp_ge_u32 s{sU}, 368
              s_cbranch_scc1 {l1}
              s_lshl_b32 s{sT0}, s{sU}, 12
              s_add_u32 s{sT0}, s{sT0}, {WS_RA}""")
        l0 = a.newlabel('Lin')
        a(f"""s_cmp_lt_u32 s{sU}, 20
              s_cbranch_scc1 {l0}""")
        for k in range(4):
            a(f'buffer_store_dwordx4 v[{R}:{R+3}], v{vLin}, s[{sWS}:{sWS+3}], s{sT0} offen offset:{1024*k} sc1')
        a(f's_branch {l1}')
        a.label(l0)
        srd(a, ptr(1), 10240)
        a(f's_lshl_b32 s{sT1}, s{sU}, 12')
        for k in range(4):
            D = R + 24 + 4*k
            a(f"""s_add_u32 s{sT2}, s{sT1}, {1024*k}
                  s_lshr_b32 s{sT3}, s{sT2}, 10
                  s_mul_i32 s{sT3}, s{sT3}, 205
                  s_lshr_b32 s{sT3}, s{sT3}, 11
                  s_mul_i32 s{sT3}, s{sT3}, 10240
                  s_sub_u32 s{sT2}, s{sT2}, s{sT3}
                  s_lshr_b32 s{sT2}, s{sT2}, 3
                  v_lshrrev_b32 v{R+8}, 2, v{self.vN}
                  v_and_b32 v{R+9}, 1, v{self.vN}
                  v_lshl_add_u32 v{R+8}, v{R+8}, 1, v{R+9}
                  v_mul_u32_u24 v{R+8}, 1280, v{R+8}
                  v_lshl_add_u32 v{R+8}, v{self.vQ}, 5, v{R+8}
                  v_bfe_u32 v{R+9}, v{self.vN}, 1, 1
                  v_lshl_add_u32 v{R+8}, v{R+9}, 4, v{R+8}
                  buffer_load_dwordx4 v[{D}:{D+3}], v{R+8}, s[{sT}:{sT+3}], s{sT2} offen""")
        a('s_waitcnt vmcnt(0)')
        for k in range(4):
            D = R + 24 + 4*k
            for e in range(4): a(f'v_min_u32 v{D+e}, -2, v{D+e}')
            a(f'buffer_store_dwordx4 v[{D}:{D+3}], v{vLin}, s[{sWS}:{sWS+3}], s{sT0} offen offset:{1024*k} sc1')
        a('s_waitcnt vmcnt(0)')
        a.label(l1)
        a(f"""s_sub_u32 s{sT0}, s{sU}, 4
              s_cmp_ge_u32 s{sT0}, 252
              s_cbranch_scc1 {l2}
              s_lshl_b32 s{sT0}, s{sU}, 10
              s_add_u32 s{sT0}, s{sT0}, {WS_FLAG}
              buffer_store_dwordx4 v[{R+4}:{R+7}], v{vLin}, s[{sWS}:{sWS+3}], s{sT0} offen sc1""")
        a.label(l2)

    def arrive_init(self, R):
        t1, t2 = R + 14, R + 15
        self.a(f"""s_waitcnt vmcnt(0)
              v_mov_b32 v{t1}, 1
              v_mov_b32 v{t2}, 128
              s_mov_b64 exec, 1
              buffer_atomic_add v{t1}, v{t2}, s[{sDBG}:{sDBG+3}], 0 offen sc1
              s_mov_b64 exec, -1""")

    def role_qk(self):
        a = self.a
        al = Alloc(1, 256)
        self.lanes(al)
        WA, WB = al(80, 4), al(80, 4)
        M = al(40, 4)
        TA, TB = al(4, 4), al(4, 4)
        SEL = al(4, 4)
        RC = al(2)
        AC2 = al(4, 2)
        vFrag, vIdx, vB, vAst, vSent = al(3, 1), al(), al(), al(), al(2)
        T0, T1, T2 = self.vT0, self.vT1, self.vT2
        a(f'v_lshlrev_b32 v{vFrag}, 4, v{self.vL}'); self.idx_reg(vIdx)
        a(f'v_add_u32 v{vFrag+1}, 4096, v{vFrag}')
        a(f'v_add_u32 v{vFrag+2}, 8192, v{vFrag}')
        a(f'''s_mul_i32 s{sT2}, s{sG}, 3
              s_add_u32 s{sT2}, s{sT2}, s{sW}
              s_cmp_ge_u32 s{sT2}, 6
              s_cselect_b32 s{sT}, s{ptr(3)}, s{ptr(2)}
              s_cselect_b32 s{sT+1}, s{ptr(3)+1}, s{ptr(2)+1}
              s_cselect_b32 s{sT1}, 6, 0
              s_lshl_b32 s{sT3}, s{sT2}, 9
              s_sub_u32 s{sT2}, s{sT2}, s{sT1}
              s_mov_b32 s{sT+2}, {DM*NH*DH*2}
              s_mov_b32 s{sT+3}, 0x20000
              s_lshl_b32 s{sT2}, s{sT2}, 6
              v_lshlrev_b32 v{vB}, 7, v{self.vQ}
              v_lshl_add_u32 v{vB}, v{self.vN}, 2, v{vB}
              v_add_u32 v{vB}, s{sT3}, v{vB}''')
        a(f'''v_lshlrev_b32 v{T0}, 1, v{self.vN}
              v_and_b32 v{T1}, 0x13, v{T0}
              v_and_b32 v{T2}, 4, v{T0}
              v_lshl_add_u32 v{T1}, v{T2}, 1, v{T1}
              v_and_b32 v{T2}, 8, v{T0}
              v_lshrrev_b32 v{T2}, 1, v{T2}
              v_add_u32 v{T1}, v{T1}, v{T2}
              v_lshlrev_b32 v{T2}, 1, v{T1}
              s_mul_i32 s{sT0}, s{sH}, 384
              s_add_u32 s{sT0}, s{sT0}, s{sT2}''')
        self.load_w(WA, WB, 10, 12288, sT0, T2, M)
        a(f'''s_and_b32 s{sT0}, s{sJ}, 1
              s_lshl_b32 s{sT0}, s{sT0}, 4
              s_add_u32 s{sT0}, s{sT0}, s{sC}
              s_lshl_b32 s{sT1}, s{sW}, 5
              s_add_u32 s{sT0}, s{sT0}, s{sT1}
              s_lshr_b32 s{sRED}, s{sT0}, 1
              s_and_b32 s{sT2}, s{sT0}, 1
              s_lshl_b32 s{sT0}, s{sRED}, 8
              s_lshl_b32 s{sT3}, s{sT2}, 4
              s_add_u32 s{sT0}, s{sT0}, s{sT3}
              s_lshl_b32 s{sT1}, s{sRED}, 14
              s_lshl_b32 s{sT3}, s{sT2}, 7
              s_add_u32 s{sT1}, s{sT1}, s{sT3}
              v_lshlrev_b32 v{RC}, 8, v{self.vQ}
              v_lshrrev_b32 v{T0}, 3, v{self.vN}
              v_lshl_add_u32 v{RC}, v{T0}, 10, v{RC}
              v_and_b32 v{T0}, 7, v{self.vN}
              v_lshl_add_u32 v{RC}, v{T0}, 4, v{RC}
              v_add_u32 v{RC}, s{sT1}, v{RC}
              v_add_u32 v{RC+1}, 4096, v{RC}
              v_bfe_u32 v{T0}, v{self.vN}, 2, 1
              v_lshlrev_b32 v{vAst}, 5, v{T0}
              v_and_b32 v{T0}, 3, v{self.vN}
              v_lshl_add_u32 v{vAst}, v{T0}, 6, v{vAst}
              v_lshl_add_u32 v{vAst}, v{self.vQ}, 3, v{vAst}
              v_add_u32 v{vAst}, s{sT0}, v{vAst}
              s_mov_b32 s{sMA}, 0x00ff00ff
              s_mov_b32 s{sMA+1}, 0''')
        a(f'''s_nop 0
              v_mov_b32 v{vSent}, -1
              v_mov_b32 v{vSent+1}, -1''')
        for p in range(4):
            a(f'''v_mov_b32 v{SEL+p}, 0
                  v_mov_b32 v{T0}, 0x3f80
                  v_cmp_eq_u32 vcc, {2*p}, v{self.vN}
                  s_nop 1
                  v_cndmask_b32 v{SEL+p}, v{SEL+p}, v{T0}, vcc
                  v_mov_b32 v{T0}, 0x3f800000
                  v_cmp_eq_u32 vcc, {2*p+1}, v{self.vN}
                  s_nop 1
                  v_cndmask_b32 v{SEL+p}, v{SEL+p}, v{T0}, vcc''')
        self.zero(TA, 8)
        self.mark(1)
        self.wait_all_registered()
        a('s_barrier')
        self.mark(2)
        loop, end = a.newlabel('Lqk'), a.newlabel('Lqkend')
        a('s_barrier')
        a.label(loop)
        a('s_barrier')
        self.stamp(0)
        for ks in range(10):
            a(f'ds_read_b128 v[{M+4*ks}:{M+4*ks+3}], v{vFrag} offset:{LM + 1024*ks}')
        for ks in range(10):
            a(f's_waitcnt lgkmcnt({9-ks})')
            a(f'v_smfmac_f32_16x16x64_bf16 v[{TA}:{TA+3}], v[{M+4*ks}:{M+4*ks+3}], v[{WA+8*ks}:{WA+8*ks+7}], v{vIdx}')
            a(f'v_smfmac_f32_16x16x64_bf16 v[{TB}:{TB+3}], v[{M+4*ks}:{M+4*ks+3}], v[{WB+8*ks}:{WB+8*ks+7}], v{vIdx}')
        a('s_nop 7')
        self.pair_epilogue(TA, TB)
        self.lstore([f'buffer_store_dword v{TA}, v{vB}, s[{sWS}:{sWS+3}], s{sB_C} offen',
                     f'buffer_store_dword v{TB}, v{vB}, s[{sWS}:{sWS+3}], s{sB_C} offen offset:64'])
        a('s_barrier')
        self.stamp(1)
        def resets():
            self.lstore([f'buffer_store_dword v{vSent}, v{vB}, s[{sWS}:{sWS+3}], s{sB_R} offen',
                         f'buffer_store_dword v{vSent}, v{vB}, s[{sWS}:{sWS+3}], s{sB_R} offen offset:64'])
            sk = a.newlabel('Lqar')
            a(f's_cmp_ge_u32 s{sRED}, 40')
            a(f's_cbranch_scc1 {sk}')
            a(f's_mov_b64 exec, s[{sMA}:{sMA+1}]')
            self.lstore([f'buffer_store_dwordx2 v[{vSent}:{vSent+1}], v{vAst}, s[{sWS}:{sWS+3}], s{sA_R} offen'])
            a('s_mov_b64 exec, -1')
            a.label(sk)
        self.zero(TA, 8)
        a('s_barrier')
        resets()
        if self.opt.get('prof'):
            a(f'''s_memrealtime s[{sST+10}:{sST+11}]
                  s_lshl_b32 s{sT0}, s{sJ}, 4
                  s_add_u32 s{sT0}, s{sT0}, s{sC}
                  s_lshl_b32 s{sT0}, s{sT0}, 2
                  s_add_u32 s{sT0}, s{sT0}, s{sW}
                  s_lshl_b32 s{sT0}, s{sT0}, 6
                  s_add_u32 s{sT0}, s{sT0}, s{sSTEP}
                  s_lshl_b32 s{sT0}, s{sT0}, 2
                  s_add_u32 s{sT0}, s{sT0}, {WS_DBG + 0x200000}
                  v_mov_b32 v{T1}, 0
                  s_waitcnt lgkmcnt(0)
                  v_mov_b32 v{T0}, s{sST+10}
                  buffer_store_dword v{T0}, v{T1}, s[{sWS}:{sWS+3}], s{sT0} offen
                  s_memtime s[{sST+10}:{sST+11}]
                  s_add_u32 s{sT0}, s{sT0}, 0x40000
                  s_waitcnt lgkmcnt(0)
                  v_mov_b32 v{T0}, s{sST+10}
                  buffer_store_dword v{T0}, v{T1}, s[{sWS}:{sWS+3}], s{sT0} offen
                  s_add_u32 s{sT0}, s{sT0}, 0x40000
                  v_mov_b32 v{T0}, s{sBUD}
                  buffer_store_dword v{T0}, v{T1}, s[{sWS}:{sWS+3}], s{sT0} offen''')
        a('s_barrier')
        if self.opt.get('trace2'): a(f's_memtime s[{sST+0}:{sST+1}]')
        a(f'''s_cmp_eq_u32 s{sSTEP}, 63
              s_cbranch_scc1 {end}''')
        ok, fin = a.newlabel('LpCok'), a.newlabel('LpCfin')
        ACC = AC2
        entry = {(h, ph): a.newlabel('LpC') for h in range(2) for ph in range(2)}
        nored = a.newlabel('Lqnr')
        a(f'''s_cmp_ge_u32 s{sRED}, 40
              s_cbranch_scc1 {nored}
              s_bitcmp1_b32 s{sCS}, 8
              s_cbranch_scc1 {entry[(1,1)]}_in''')
        for half in (1,):
            nl = 4
            for ph in range(2):
                lp = entry[(half, ph)]
                a.label(lp + '_in')
                if self.opt.get('c_sleep'): a(f"s_sleep {self.opt['c_sleep']}")
                if self.opt.get('fine'): self.stamp(5)
                a.label(lp)
                for t in range(nl):
                    reg, off = (RC + (t >> 1), 2048 * (t & 1)) if half else (RC + (t >> 2), 1024 * (t & 3))
                    a(f'buffer_load_dwordx4 v[{M+4*t}:{M+4*t+3}], v{reg}, s[{sWS}:{sWS+3}], s{sC_RD} offen offset:{off} sc1')
                a('s_mov_b64 exec, -1')
                op3 = (lambda d, x, y, z: f'v_bitop3_b32 v{d}, v{x}, v{y}, v{z} bitop3:0x80') if ph else (lambda d, x, y, z: f'v_or3_b32 v{d}, v{x}, v{y}, v{z}')
                for t in range(nl):
                    a(f's_waitcnt vmcnt({nl-1-t})')
                    if t == 0 and self.opt.get('fine'): self.stamp(2)
                    a(f'v_mfma_f32_16x16x32_bf16 v[{ACC}:{ACC+3}], v[{SEL}:{SEL+3}], v[{M+4*t}:{M+4*t+3}], ' + ('0' if t == 0 else f'v[{ACC}:{ACC+3}]'))
                    if t == 0:
                        a(op3(T0, M, M+1, M+2)); a(op3(T0, T0, M+3, M+3))
                    else:
                        a(op3(T0, T0, M+4*t, M+4*t+1)); a(op3(T0, T0, M+4*t+2, M+4*t+3))
                rt, bk = a.newlabel('LpCr'), a.newlabel('LpCb')
                a(f'''v_and_b32 v{T0}, 1, v{T0}
                      v_cmp_ne_u32 vcc, {ph}, v{T0}
                      s_cbranch_vccnz {rt}''')
                a.label(bk)
                if self.opt.get('trace2'): a(f's_memtime s[{sST+2}:{sST+3}]')
                def tail(rt=rt, bk=bk, lp=lp):
                    a.label(rt)
                    a('s_mov_b64 exec, vcc')
                    self.retry(lp, 3)
                    a('s_mov_b64 exec, -1')
                    a(f's_branch {bk}')
                self.tails.append(tail)
                a('s_nop 2')
                if half:
                    for k in range(4):
                        a(f'v_add_f32_dpp v{ACC+k}, v{ACC+k}, v{ACC+k} row_ror:8 row_mask:0xf bank_mask:0xf')
                self.stamp(3)
                a(f'''v_cvt_pk_bf16_f32 v{ACC}, v{ACC}, v{ACC+1}
                      v_cvt_pk_bf16_f32 v{ACC+1}, v{ACC+2}, v{ACC+3}
                      s_mov_b64 exec, s[{sMA}:{sMA+1}]
                      v_min_u32 v{ACC}, -2, v{ACC}
                      v_min_u32 v{ACC+1}, -2, v{ACC+1}''')
                self.lstore([f'buffer_store_dwordx2 v[{ACC}:{ACC+1}], v{vAst}, s[{sWS}:{sWS+3}], s{sA_N} offen'])
                if not (half and ph): a(f's_branch {fin}')
        a(f's_branch {fin}')
        a.label(nored)
        a('s_waitcnt vmcnt(0)')
        a.label(fin)
        if self.opt.get('dump_mem'):
            l = a.newlabel('Ldm')
            a(f'''s_cmp_lg_u32 s{sJ}, 0
                  s_cbranch_scc1 {l}
                  s_mul_i32 s{sT0}, s{sSTEP}, 10240
                  s_add_u32 s{sT0}, s{sT0}, {WS_DBG}
                  buffer_store_dwordx2 v[{ACC}:{ACC+1}], v{vAst}, s[{sWS}:{sWS+3}], s{sT0} offen''')
            a.label(l)
        a('s_mov_b64 exec, -1')
        a('s_barrier')
        if self.opt.get('trace2'): a(f's_memtime s[{sST+4}:{sST+5}]')
        if self.opt.get('trace2'):
            a(f"""s_waitcnt lgkmcnt(0)
                  s_lshl_b32 s{sT0}, s{sJ}, 4
                  s_add_u32 s{sT0}, s{sT0}, s{sC}
                  s_lshl_b32 s{sT0}, s{sT0}, 2
                  s_add_u32 s{sT0}, s{sT0}, s{sW}
                  s_lshl_b32 s{sT0}, s{sT0}, 6
                  s_add_u32 s{sT0}, s{sT0}, s{sSTEP}
                  s_lshl_b32 s{sT0}, s{sT0}, 4
                  s_add_u32 s{sT0}, s{sT0}, {WS_DBG + 0x400000}
                  s_sub_u32 s{sT1}, s{sST+2}, s{sST}
                  v_mov_b32 v{M}, s{sT1}
                  s_sub_u32 s{sT1}, s{sST+4}, s{sST}
                  v_mov_b32 v{M+1}, s{sT1}
                  v_mov_b32 v{M+2}, s{sBUD}
                  v_mov_b32 v{T0}, 0
                  s_mov_b64 exec, 1
                  buffer_store_dwordx4 v[{M}:{M+3}], v{T0}, s[{sWS}:{sWS+3}], s{sT0} offen
                  s_mov_b64 exec, -1
                  s_nop 1""")
        self.stamp(4)
        self.next_step()
        a('s_waitcnt lgkmcnt(0)')
        a(f's_branch {loop}')
        a.label(end)
        a('s_barrier')
        self.finish()
        self.emit_tail()

    def role_v(self):
        a = self.a
        al = Alloc(1, 256)
        self.lanes(al)
        WA, WB = al(80, 4), al(80, 4)
        M = al(48, 4)
        TA, TB = al(4, 4), al(4, 4)
        F = al(12, 4); RR = al(2, 2)
        vFrag, vIdx, vB, vAoff, vV, vSent, vCoff, vOst = [al() for _ in range(8)]
        vLin = vV
        a(f"""v_lshrrev_b32 v{self.vT1}, 3, v{self.vL}
              v_lshlrev_b32 v{vOst}, 4, v{self.vT1}
              v_and_b32 v{self.vT1}, 7, v{self.vL}
              v_lshl_add_u32 v{vOst}, v{self.vT1}, 8, v{vOst}
              s_lshr_b32 s{sT0}, s{sG}, 1
              s_mul_i32 s{sT0}, s{sT0}, 192
              s_mul_i32 s{sT1}, s{sH}, 6
              s_add_u32 s{sT0}, s{sT0}, s{sT1}
              s_lshl_b32 s{sT0}, s{sT0}, 10
              s_and_b32 s{sT1}, s{sG}, 1
              s_lshl_b32 s{sT1}, s{sT1}, 7
              s_add_u32 s{sT0}, s{sT0}, s{sT1}
              v_add_u32 v{vOst}, s{sT0}, v{vOst}""")
        def o_store(back):
            if self.opt.get('no_ost'): return
            a(f's_sub_u32 s{sT0}, s{sO_C}, {back*32*12288}')
            a(f's_add_u32 s{sT1}, s{sT0}, 4096')
            for k in range(3):
                a(f'ds_read_b128 v[{F+4*k}:{F+4*k+3}], v{vLin} offset:{LOX + 1024*k}')
            for k in range(3):
                a(f's_waitcnt lgkmcnt({2-k})')
                a(f'buffer_store_dwordx4 v[{F+4*k}:{F+4*k+3}], v{vOst}, s[{sWS}:{sWS+3}], s{sT1 if k == 2 else sT0} offen offset:{2048*(k&1)} sc1')
        PX = al(8, 2)
        self.frag_addr(vFrag); self.idx_reg(vIdx)
        a(f"""v_lshlrev_b32 v{vV}, 4, v{self.vL}
              v_mov_b32 v{vSent}, -1""")
        a(f"""s_mul_i32 s{sT0}, s{sG}, 768
              s_add_u32 s{sT0}, s{sT0}, 6144
              v_lshlrev_b32 v{vB}, 5, v{self.vN}
              v_lshl_add_u32 v{vB}, v{self.vQ}, 2, v{vB}
              v_add_u32 v{vB}, s{sT0}, v{vB}""")
        srd(a, ptr(4), DM * NH * DH * 2)
        a(f"""s_mul_i32 s{sT0}, s{sH}, 384
              s_mul_i32 s{sT1}, s{sG}, 96
              s_add_u32 s{sT0}, s{sT0}, s{sT1}
              v_lshlrev_b32 v{self.vT2}, 2, v{self.vN}""")
        self.load_w(WA, WB, 10, 12288, sT0, self.vT2, M)
        self.mark(5)
        self.c_off(vCoff, 4)
        self.a_off(vAoff)
        self.zero(TA, 8)
        self.mark(1)
        self.wait_all_registered()
        own = lambda: self.dma12(vV, WS_VT, LV_OFF, [0])
        rest = lambda: self.dma12(vV, WS_VT, LV_OFF, [1, 2, 3])
        if not self.opt.get('early_stage'): self.stage_first(own, rest, 2, 1)
        a('s_barrier')
        self.mark(2)
        loop, end = a.newlabel('Lv'), a.newlabel('Lvend')
        self.a_poll(vAoff, [F], True)
        a.label(loop)
        self.stamp(0)
        for ks in range(10):
            a(f'ds_read_b128 v[{M+4*ks}:{M+4*ks+3}], v{vLin} offset:{LM + 1024*ks}')
        for ks in range(10):
            a(f's_waitcnt lgkmcnt({9-ks})')
            a(f'v_smfmac_f32_16x16x64_bf16 v[{TA}:{TA+3}], v[{M+4*ks}:{M+4*ks+3}], v[{WA+8*ks}:{WA+8*ks+7}], v{vIdx}')
            a(f'v_smfmac_f32_16x16x64_bf16 v[{TB}:{TB+3}], v[{M+4*ks}:{M+4*ks+3}], v[{WB+8*ks}:{WB+8*ks+7}], v{vIdx}')
            if ks == self.opt.get('v_bar', 8): a('s_barrier')
        a(f"""s_nop 7
              v_pk_add_f32 v[{TA}:{TA+1}], v[{TA}:{TA+1}], v[{TA+2}:{TA+3}]
              v_pk_add_f32 v[{TB}:{TB+1}], v[{TB}:{TB+1}], v[{TB+2}:{TB+3}]
              v_cvt_pk_bf16_f32 v{TA}, v{TA}, v{TA+1}
              v_cvt_pk_bf16_f32 v{TB}, v{TB}, v{TB+1}
              v_min_u32 v{TA}, -2, v{TA}
              v_min_u32 v{TB}, -2, v{TB}""")
        self.lstore([f'buffer_store_dword v{TA}, v{vB}, s[{sWS}:{sWS+3}], s{sB_C} offen',
                     f'buffer_store_dword v{TB}, v{vB}, s[{sWS}:{sWS+3}], s{sB_C} offen offset:16'])
        self.stamp(1)
        a('s_waitcnt vmcnt(2)')
        for k in range(12):
            a(f'ds_read_b128 v[{M+4*k}:{M+4*k+3}], v{vLin} offset:{LW5 + 1024*k}')
        self.zero(TA, 8)
        a('s_barrier')
        self.lstore([f'buffer_store_dword v{vSent}, v{vB}, s[{sWS}:{sWS+3}], s{sB_R} offen',
                     f'buffer_store_dword v{vSent}, v{vB}, s[{sWS}:{sWS+3}], s{sB_R} offen offset:16'])
        a(f"s_sleep {self.opt.get('d_sleep', 7)}" if self.opt.get('d_sleep', 7) else 's_nop 0')
        def o_prev():
            no0 = a.newlabel('Lvn0')
            a('s_waitcnt lgkmcnt(0)')
            a(f's_cmp_eq_u32 s{sSTEP}, 0')
            a(f's_cbranch_scc1 {no0}')
            o_store(1)
            a.label(no0)
        if not self.opt.get('o_late'): o_prev()
        self.stage(own, rest, 2, 1)
        if self.opt.get('o_late'): o_prev()
        if self.opt.get('fused'):
            nq = a.newlabel('Lvnq')
            a(f"""s_cmp_lt_u32 s{sSTEP}, {self.opt.get('of_all', 58)}
                  s_cbranch_scc1 {nq}
                  s_waitcnt vmcnt(0)""")
            self.o_flag(1)
            a.label(nq)
        a('s_waitcnt lgkmcnt(0)')
        self.stamp(5)
        a('s_barrier')
        self.stamp(2)
        self.wo_stage([(M, M + 24, TA, TB, 0)], vFrag, vIdx, F, vCoff, RR, end)
        self.stamp(3)
        self.zero(TA, 8)
        self.a_poll(vAoff, [F, PX, M + 40])
        a(f's_branch {loop}')
        a.label(end)
        a('s_waitcnt lgkmcnt(0)')
        a('s_barrier')
        o_store(0)
        a('s_waitcnt vmcnt(0)')
        self.o_flag(0)
        self.finish()
        self.emit_tail()

    def role_w7(self):
        a = self.a
        al = Alloc(1, 256)
        self.lanes(al)
        WV = al(80, 4)
        P = [(al(24, 4), al(24, 4), al(4, 4), al(4, 4), 0)]
        M = al(40, 4)
        TV = al(4, 4)
        SENT = al(4, 4); RR = al(2, 2)
        vFrag, vIdx, vB, vAoff, vK, vQx, vCoff, vCr = [al() for _ in range(8)]
        vSel = TV
        PX = al(24, 2)
        T0, T1 = self.vT0, self.vT1
        self.frag_addr(vFrag); self.idx_reg(vIdx)
        a(f"""v_lshlrev_b32 v{vK}, 4, v{self.vL}
              v_and_b32 v{T0}, 7, v{self.vL}
              v_lshlrev_b32 v{vQx}, 4, v{T0}
              v_lshrrev_b32 v{T0}, 5, v{self.vL}
              v_lshl_add_u32 v{vQx}, v{T0}, 10, v{vQx}
              v_bfe_u32 v{T0}, v{self.vL}, 3, 2
              v_lshl_add_u32 v{vQx}, v{T0}, 8, v{vQx}
              s_lshr_b32 s{sT0}, s{sG}, 1
              s_mul_i32 s{sT0}, s{sT0}, 6144
              s_and_b32 s{sT1}, s{sG}, 1
              s_lshl_b32 s{sT1}, s{sT1}, 7
              s_add_u32 s{sT0}, s{sT0}, s{sT1}
              v_add_u32 v{vQx}, s{sT0}, v{vQx}""")
        for k in range(4): a(f'v_mov_b32 v{SENT+k}, -1')
        a(f"""s_mul_i32 s{sT0}, s{sG}, 768
              s_add_u32 s{sT0}, s{sT0}, {6144 + 512}
              v_lshlrev_b32 v{vB}, 4, v{self.vN}
              v_lshl_add_u32 v{vB}, v{self.vQ}, 2, v{vB}
              v_add_u32 v{vB}, s{sT0}, v{vB}
              s_mul_i32 s{sT0}, s{sG}, 2560
              v_lshlrev_b32 v{vCr}, 4, v{self.vL}
              v_add_u32 v{vCr}, s{sT0}, v{vCr}""")
        self.c_off(vCoff, 3)
        srd(a, ptr(4), DM * NH * DH * 2)
        a(f"""s_mul_i32 s{sT0}, s{sH}, 384
              s_mul_i32 s{sT1}, s{sG}, 96
              s_add_u32 s{sT0}, s{sT0}, s{sT1}
              s_add_u32 s{sT0}, s{sT0}, 32
              v_and_b32 v{T0}, 14, v{self.vN}
              v_lshlrev_b32 v{self.vT2}, 1, v{T0}
              v_add_u32 v{self.vT2}, 32, v{self.vT2}
              v_and_b32 v{T0}, 1, v{self.vN}
              v_cmp_eq_u32 vcc, 1, v{T0}
              v_mov_b32 v{vSel}, s{sSELLO}
              v_mov_b32 v{T0}, s{sSELHI}
              s_nop 1
              v_cndmask_b32 v{vSel}, v{vSel}, v{T0}, vcc""")
        if self.opt.get('y_prio'): a('s_setprio 3')
        self.load_w(WV, None, 10, 12288, sT0, self.vT2, M, vSel)
        self.mark(5)
        self.a_off(vAoff)
        self.zero(TV, 4)
        for p in P: self.zero(p[2], 8)
        self.mark(1)
        self.wait_all_registered()
        assert P[0][1] == P[0][0] + 24
        for k in range(12):
            a(f'ds_read_b128 v[{P[0][0]+4*k}:{P[0][0]+4*k+3}], v{vK} offset:{1024*k}')
        a('s_waitcnt lgkmcnt(0)')
        def own():
            self.dma_q(vQx); self.dma12(vK, WS_K, LK_OFF, [0])
        rest = lambda: self.dma12(vK, WS_K, LK_OFF, [1, 2, 3])
        if not self.opt.get('early_stage'): self.stage_first(own, rest, 0, 2)
        a('s_barrier')
        self.mark(2)
        loop, end = a.newlabel('Lw7'), a.newlabel('Lw7end')
        self.a_poll(vAoff, [PX], True)
        a.label(loop)
        self.stamp(0)
        for ks in range(10):
            a(f'ds_read_b128 v[{M+4*ks}:{M+4*ks+3}], v{vK} offset:{LM + 1024*ks}')
        for ks in range(10):
            a(f's_waitcnt lgkmcnt({9-ks})')
            a(f'v_smfmac_f32_16x16x64_bf16 v[{TV}:{TV+3}], v[{M+4*ks}:{M+4*ks+3}], v[{WV+8*ks}:{WV+8*ks+7}], v{vIdx}')
            if ks == self.opt.get('w7_bar', 99): a('s_barrier')
        a(f"""s_nop 7
              v_pk_add_f32 v[{TV}:{TV+1}], v[{TV}:{TV+1}], v[{TV+2}:{TV+3}]
              v_cvt_pk_bf16_f32 v{TV}, v{TV}, v{TV+1}
              v_min_u32 v{TV}, -2, v{TV}""")
        self.lstore([f'buffer_store_dword v{TV}, v{vB}, s[{sWS}:{sWS+3}], s{sB_C} offen'])
        if self.opt.get('w7_bar', 99) > 9: a('s_barrier')
        self.stamp(1)
        self.zero(TV, 4)
        a('s_barrier')
        self.lstore([f'buffer_store_dword v{SENT}, v{vB}, s[{sWS}:{sWS+3}], s{sB_R} offen'])
        a(f"s_sleep {self.opt.get('d_sleep', 7)}" if self.opt.get('d_sleep', 7) else 's_nop 0')
        if self.opt.get('dma_time'): self.stamp(1)
        nf, yf = a.newlabel('Lw7nf'), a.newlabel('Lw7yf')
        a(f"""s_cmp_ge_u32 s{sSTEP}, {self.opt.get('of_all', 58)}
              s_cbranch_scc1 {nf}
              s_and_b32 s{sT0}, s{sSTEP}, {self.opt.get('of_every', 1) - 1}
              s_cmp_lg_u32 s{sT0}, {min(2, self.opt.get('of_every', 1) - 1)}
              s_cbranch_scc1 {nf}
              s_cmp_lt_u32 s{sSTEP}, 2
              s_cbranch_scc1 {nf}""")
        a.label(yf)
        self.o_flag(2)
        a.label(nf)
        self.stage(own, rest, 0, 2)
        if self.opt.get('dma_time'): a('s_waitcnt vmcnt(0)')
        self.stamp(5)
        a('s_barrier')
        self.stamp(2)
        self.wo_stage(P, vFrag, vIdx, M, vCoff, RR, end)
        self.stamp(3)
        for p in P: self.zero(p[2], 8)
        self.a_poll(vAoff, [PX, PX + 8, PX + 16])
        a(f's_branch {loop}')
        a.label(end)
        a('s_barrier')
        self.finish()
        self.emit_tail()

    def role_att(self):
        a = self.a
        al = Alloc(1, 256)
        self.lanes(al)
        TM = al(2, 2)
        WA, WB = al(24, 4), al(24, 4)
        TA, TB = al(4, 4), al(4, 4)
        KX = al(48, 4); X = al(24, 4); Y = al(24, 4)
        VX = al(16, 4); VM = al(8, 2)
        BI = al(12, 4); SS = al(12, 4)
        PP = al(6, 2); RR = PP
        OO = al(16, 4); LL = al(4, 4)
        ONES = al(4, 4)
        F = SS
        vFrag, vIdx, vAoff, vXY, vVM, vOw, vCoff, vLin, vQr, vBp, vRw, vOx = [al() for _ in range(12)]
        T0, T1, T2 = self.vT0, self.vT1, self.vT2
        sWP = sRED
        a(f's_sub_u32 s{sWP}, s{sW}, 4')
        self.frag_addr(vFrag); self.idx_reg(vIdx)
        self.c_off(vCoff, f's{sWP}')
        if self.opt.get('touch'): self.touch_weights()
        if self.opt.get('y_prio'): a('s_setprio 3')
        def mid():
            self.init_job(KX)
            arrive(a, 6, KX + 16)
            self.arrive_init(KX)
            self.mark(5)
        self.wo_weights(WA, WB, f's{sWP}', vAoff, T2, mid)
        nx = a.newlabel('Latnx')
        a(f"""s_cmp_ge_u32 s{sWP}, 2
              s_cbranch_scc1 {nx}
              s_add_u32 s{sA_P}, s{sWP}, 3""")
        self.wo_weights(KX, KX + 24, f's{sA_P}', vAoff, T2)
        a(f"""s_cmp_eq_u32 s{sWP}, 0
              s_cselect_b32 s{sT0}, 0, {LW5}
              v_lshlrev_b32 v{T0}, 4, v{self.vL}
              v_add_u32 v{T0}, s{sT0}, v{T0}""")
        for k in range(12):
            a(f'ds_write_b128 v{T0}, v[{KX+4*k}:{KX+4*k+3}] offset:{1024*k}')
        a('s_waitcnt lgkmcnt(0)')
        a.label(nx)
        if self.opt.get('early_stage'):
            vS, vQs = KX, KX + 1
            a(f"""v_lshlrev_b32 v{vS}, 4, v{self.vL}
                  v_and_b32 v{T0}, 7, v{self.vL}
                  v_lshlrev_b32 v{vQs}, 4, v{T0}
                  v_lshrrev_b32 v{T0}, 5, v{self.vL}
                  v_lshl_add_u32 v{vQs}, v{T0}, 10, v{vQs}
                  v_bfe_u32 v{T0}, v{self.vL}, 3, 2
                  v_lshl_add_u32 v{vQs}, v{T0}, 8, v{vQs}
                  s_lshr_b32 s{sT0}, s{sG}, 1
                  s_mul_i32 s{sT0}, s{sT0}, 6144
                  s_and_b32 s{sT1}, s{sG}, 1
                  s_lshl_b32 s{sT1}, s{sT1}, 7
                  s_add_u32 s{sT0}, s{sT0}, s{sT1}
                  v_add_u32 v{vQs}, s{sT0}, v{vQs}""")
            wait_registered(a, self.opt, T0, T1, self.vL)
            lq, lv2, ld = a.newlabel('Les'), a.newlabel('Les'), a.newlabel('Les')
            a(f"""s_cmp_eq_u32 s{sWP}, 2
                  s_cbranch_scc1 {lq}
                  s_cmp_eq_u32 s{sWP}, 1
                  s_cbranch_scc1 {lv2}""")
            self.stage_first(lambda: self.dma12(vS, WS_K, LK_OFF, [0]), lambda: self.dma12(vS, WS_K, LK_OFF, [1, 2, 3]), 1, 1)
            a(f's_branch {ld}')
            a.label(lv2)
            self.stage_first(lambda: self.dma12(vS, WS_VT, LV_OFF, [0]), lambda: self.dma12(vS, WS_VT, LV_OFF, [1, 2, 3]), 2, 1)
            a(f's_branch {ld}')
            a.label(lq)
            self.stage_first(lambda: self.dma_q(vQs), lambda: None, 0, 1)
            a.label(ld)
        self.a_off(vAoff)
        a(f"""v_lshlrev_b32 v{vXY}, 6, v{self.vN}
              v_lshl_add_u32 v{vXY}, v{self.vQ}, 4, v{vXY}
              s_lshl_b32 s{sT0}, s{sWP}, 10
              s_add_u32 s{sT0}, s{sT0}, 6144
              v_lshlrev_b32 v{vVM}, 4, v{self.vN}
              v_lshl_add_u32 v{vVM}, v{self.vQ}, 3, v{vVM}
              v_add_u32 v{vVM}, s{sT0}, v{vVM}
              v_lshlrev_b32 v{vLin}, 4, v{self.vL}
              s_lshl_b32 s{sT0}, s{sWP}, 11
              v_add_u32 v{vBp}, s{sT0}, v{vLin}
              v_and_b32 v{T0}, 7, v{self.vN}
              v_lshlrev_b32 v{vQr}, 4, v{T0}
              v_lshl_add_u32 v{vQr}, v{self.vQ}, 7, v{vQr}""")
        a(f"""v_lshlrev_b32 v{vRw}, 2, v{self.vL}
              v_add_u32 v{T1}, {LDUMMY}, v{vRw}
              v_add_u32 v{vRw}, {LR}, v{vRw}
              v_cmp_gt_u32 vcc, 8, v{self.vL}
              s_nop 1
              v_cndmask_b32 v{vRw}, v{T1}, v{vRw}, vcc""")
        a(f"""v_lshrrev_b32 v{T1}, 1, v{self.vQ}
              v_lshlrev_b32 v{vOw}, 7, v{T1}
              v_lshl_add_u32 v{vOw}, v{T0}, 4, v{vOw}
              v_and_b32 v{T1}, 1, v{self.vQ}
              v_lshl_add_u32 v{vOw}, v{T1}, 3, v{vOw}
              v_lshrrev_b32 v{T1}, 3, v{self.vN}
              v_mul_u32_u24 v{T1}, 3072, v{T1}
              v_add_u32 v{vOw}, v{vOw}, v{T1}
              s_lshl_b32 s{sT0}, s{sWP}, 10
              s_add_u32 s{sT0}, s{sT0}, {LO}
              v_add_u32 v{vOw}, s{sT0}, v{vOw}""")
        a(f"""s_lshl_b32 s{sT0}, s{sWP}, 10
              s_add_u32 s{sT0}, s{sT0}, {LOX}
              v_lshlrev_b32 v{vOx}, 7, v{T0}
              v_lshl_add_u32 v{vOx}, v{self.vQ}, 3, v{vOx}
              v_add_u32 v{vOx}, s{sT0}, v{vOx}""")
        a(f"""s_lshl_b32 s{sT0}, s{sG}, 3
              v_add_u32 v{T1}, s{sT0}, v{T0}
              v_cmp_gt_u32 vcc, 8, v{self.vN}
              v_mov_b32 v{T2}, 31
              s_nop 1
              v_cndmask_b32 v{T1}, v{T1}, v{T2}, vcc
              v_lshlrev_b32 v{T2}, 2, v{self.vQ}
              v_sub_u32 v{T1}, v{T1}, v{T2}
              v_mov_b32 v{T2}, 0xf149f2ca""")
        for tile in range(2):
            for r in range(4):
                a(f"""v_cmp_gt_i32 vcc, {16*tile + r}, v{T1}
                      v_mov_b32 v{BI+4*tile+r}, 0
                      s_nop 1
                      v_cndmask_b32 v{BI+4*tile+r}, v{BI+4*tile+r}, v{T2}, vcc""")
        a(f"""v_cmp_lt_u32 vcc, 1, v{self.vQ}
              v_mov_b32 v{BI+8}, 0
              s_nop 1
              v_cndmask_b32 v{BI+8}, v{BI+8}, v{T2}, vcc""")
        for r in range(1, 4): a(f'v_mov_b32 v{BI+8+r}, v{BI+8}')
        for k in range(4): a(f'v_mov_b32 v{ONES+k}, 0x3f803f80')
        self.zero(Y, 24); self.zero(VM, 8); self.zero(TA, 8)
        self.mark(1)
        self.wait_all_registered()
        def read_seg():
            a(f'v_add_u32 v{T0}, s{sLB}, v{vLin}')
            a(f'v_add_u32 v{T1}, s{sLB}, v{vQr}')
            a(f's_lshl_b32 s{sT0}, s{sWP}, 12')
            a(f'v_add_u32 v{T2}, s{sT0}, v{T0}')
            for k in range(12):
                a(f'ds_read_b128 v[{KX+4*k}:{KX+4*k+3}], v{T0} offset:{LK_OFF + 1024*k}')
            for ks in range(6):
                a(f'ds_read_b128 v[{X+4*ks}:{X+4*ks+3}], v{T1} offset:{LQ_OFF + 512*ks}')
            for t in range(4):
                a(f'ds_read_b128 v[{VX+4*t}:{VX+4*t+3}], v{T2} offset:{LV_OFF + 1024*t}')
        def vm_loads():
            a(f's_mov_b64 exec, s[{sML32}:{sML32+1}]')
            for t in range(4):
                a(f'buffer_load_dwordx2 v[{VM+2*t}:{VM+2*t+1}], v{vVM}, s[{sWS}:{sWS+3}], s{sB_C} offen offset:{256*t} sc1')
            a('s_mov_b64 exec, -1')
        a('s_barrier')
        self.mark(2)
        a(f's_mov_b32 s{sLB}, {LBUF}')
        read_seg()
        self.a_poll(vAoff, [F], True)
        loop, end = a.newlabel('Lat'), a.newlabel('Latend')
        lp, ok, vlp, vok, vrt = a.newlabel('LpB'), a.newlabel('LpBok'), a.newlabel('LpV'), a.newlabel('LpVok'), a.newlabel('LpVr')
        a.label(loop)
        if self.opt.get('trace2'): a(f's_memtime s[{sST+0}:{sST+1}]')
        a('s_barrier')
        if self.opt.get('trace2'): a(f's_memtime s[{sST+2}:{sST+3}]')
        if self.opt.get('b_sleep'): a(f"s_sleep {self.opt['b_sleep']}")
        if self.opt.get('fine'): self.stamp(0)
        self.poll2(vBp, sB_C, LQK, [OO, OO + 8][:self.opt.get('b_depth', 1)], 0, self.opt.get('b_gap', 0))
        if self.opt.get('trace2'): a(f's_memtime s[{sST+4}:{sST+5}]')
        if self.opt.get('vm_at') == -1: vm_loads()
        a(f's_mov_b64 exec, s[{sMN8}:{sMN8+1}]')
        a('s_waitcnt lgkmcnt(0)')
        a('s_barrier')
        for ks in range(6):
            a(f'ds_read_b128 v[{X+4*ks}:{X+4*ks+3}], v{vXY} offset:{LQK + 512*ks}')
        for ks in range(6):
            a(f'ds_read_b128 v[{Y+4*ks}:{Y+4*ks+3}], v{vXY} offset:{LQK + 3072 + 512*ks}')
        vm_loads()
        self.stamp(5)
        def smm(tile, ks):
            A = (KX, KX + 24, Y)[tile] + 4*ks
            c = BI + 4*tile if ks == 0 else SS + 4*tile
            a(f'v_mfma_f32_16x16x32_bf16 v[{SS+4*tile}:{SS+4*tile+3}], v[{A}:{A+3}], v[{X+4*ks}:{X+4*ks+3}], v[{c}:{c+3}]')
        for ks in range(6):
            a(f's_waitcnt lgkmcnt({11 - ks})')
            smm(0, ks); smm(1, ks)
        a('s_waitcnt lgkmcnt(0)')
        for ks in range(6):
            smm(2, ks)
            if ks == 3: a('s_waitcnt vmcnt(4)')
            if ks == 4: a(f'v_max3_f32 v{T0}, v{SS}, v{SS+1}, v{SS+2}'); a(f'v_max3_f32 v{T1}, v{SS+3}, v{SS+4}, v{SS+5}')
        self.stamp(1)
        a(f"""v_max3_f32 v{T0}, v{T0}, v{SS+6}, v{SS+7}
              v_max_f32 v{T0}, v{T0}, v{T1}
              s_nop 5
              v_max3_f32 v{T1}, v{SS+8}, v{SS+9}, v{SS+10}
              v_max3_f32 v{T0}, v{T0}, v{T1}, v{SS+11}
              v_mov_b32 v{T1}, v{T0}
              s_nop 1
              v_permlane32_swap_b32 v{T0}, v{T1}
              v_max_f32 v{T0}, v{T0}, v{T1}
              v_mov_b32 v{T1}, v{T0}
              s_nop 1
              v_permlane16_swap_b32 v{T0}, v{T1}
              v_max_f32 v{T0}, v{T0}, v{T1}
              v_mul_f32 v{TM}, s{sSCL}, v{T0}""")
        def pkfma(r):
            if self.opt.get('nopk'):
                for k in range(2): a(f'v_fma_f32 v{SS+r+k}, v{SS+r+k}, s{sSCL}, -v{TM}')
                return
            a(f'v_pk_fma_f32 v[{SS+r}:{SS+r+1}], v[{SS+r}:{SS+r+1}], s[{sSCL}:{sSCL+1}], v[{TM}:{TM+1}] op_sel_hi:[1,0,0] neg_lo:[0,0,1] neg_hi:[0,0,1]')
        for r in range(0, 8, 2): pkfma(r)
        for r in range(8): a(f'v_exp_f32 v{SS+r}, v{SS+r}')
        for r in range(8, 12, 2): pkfma(r)
        for r in range(4): a(f'v_cvt_pk_bf16_f32 v{PP+r}, v{SS+2*r}, v{SS+2*r+1}')
        a(f'v_exp_f32 v{SS+8}, v{SS+8}')
        a(f'v_exp_f32 v{SS+9}, v{SS+9}')
        a(f'v_mfma_f32_16x16x32_bf16 v[{LL}:{LL+3}], v[{ONES}:{ONES+3}], v[{PP}:{PP+3}], 0')
        a(f'v_exp_f32 v{SS+10}, v{SS+10}')
        a(f'v_mfma_f32_16x16x32_bf16 v[{OO}:{OO+3}], v[{VX}:{VX+3}], v[{PP}:{PP+3}], 0')
        a(f'v_exp_f32 v{SS+11}, v{SS+11}')
        a(f'v_mfma_f32_16x16x32_bf16 v[{OO+4}:{OO+7}], v[{VX+4}:{VX+7}], v[{PP}:{PP+3}], 0')
        a(f'v_cvt_pk_bf16_f32 v{PP+4}, v{SS+8}, v{SS+9}')
        a(f'v_cvt_pk_bf16_f32 v{PP+5}, v{SS+10}, v{SS+11}')
        a(f'v_mfma_f32_16x16x32_bf16 v[{OO+8}:{OO+11}], v[{VX+8}:{VX+11}], v[{PP}:{PP+3}], 0')
        a.label(vlp)
        a(f"""s_waitcnt vmcnt(0)
              v_max3_u32 v{T1}, v{VM}, v{VM+1}, v{VM+2}
              v_max3_u32 v{T2}, v{VM+3}, v{VM+4}, v{VM+5}
              v_mfma_f32_16x16x32_bf16 v[{OO+12}:{OO+15}], v[{VX+12}:{VX+15}], v[{PP}:{PP+3}], 0
              v_max3_u32 v{T1}, v{T1}, v{VM+6}, v{VM+7}
              v_max_u32 v{T1}, v{T1}, v{T2}
              v_cmp_eq_u32 vcc, -1, v{T1}
              s_cbranch_vccnz {vrt}""")
        a.label(vok)
        if self.opt.get('trace2'): a(f's_memtime s[{sST+6}:{sST+7}]')
        if not self.opt.get('fine'): self.stamp(0)
        a(f'v_mfma_f32_16x16x16_bf16 v[{LL}:{LL+3}], v[{ONES}:{ONES+1}], v[{PP+4}:{PP+5}], v[{LL}:{LL+3}]')
        for t in range(4):
            a(f'v_mfma_f32_16x16x16_bf16 v[{OO+4*t}:{OO+4*t+3}], v[{VM+2*t}:{VM+2*t+1}], v[{PP+4}:{PP+5}], v[{OO+4*t}:{OO+4*t+3}]')
        a(f"""s_nop 3
              v_rcp_f32 v{LL}, v{LL}""")
        for t in range(4):
            a(f'v_cvt_pk_bf16_f32 v{X+2*t}, v{OO+4*t}, v{OO+4*t+1}')
            a(f'v_cvt_pk_bf16_f32 v{X+2*t+1}, v{OO+4*t+2}, v{OO+4*t+3}')
            a(f'ds_write_b64 v{vOw}, v[{X+2*t}:{X+2*t+1}] offset:{256*t}')
            if t == 0: a(f'ds_write_b32 v{vRw}, v{LL}')
        a('s_waitcnt lgkmcnt(0)')
        a('s_barrier')
        self.stamp(2)
        skipwo = a.newlabel('Latsk')
        self.wo_stage([(WA, WB, TA, TB, 0)], vFrag, vIdx, F, vCoff, RR, skipwo)
        a.label(skipwo)
        if self.opt.get('trace2'): a(f's_memtime s[{sST+8}:{sST+9}]')
        if not self.opt.get('fine'): self.stamp(3)
        for t in range(4):
            for r in range(4):
                a(f'v_mul_f32 v{OO+4*t+r}, v{OO+4*t+r}, v{LL}')
            a(f'v_cvt_pk_bf16_f32 v{OO+4*t}, v{OO+4*t}, v{OO+4*t+1}')
            a(f'v_cvt_pk_bf16_f32 v{OO+4*t+1}, v{OO+4*t+2}, v{OO+4*t+3}')
        a(f's_mov_b64 exec, s[{sMH8}:{sMH8+1}]')
        for t in range(4):
            a(f'ds_write_b64 v{vOx}, v[{OO+4*t}:{OO+4*t+1}] offset:{32*t}')
        a('s_mov_b64 exec, -1')
        a(f"""s_cmp_eq_u32 s{sSTEP}, 63
              s_cbranch_scc1 {end}
              s_add_u32 s{sLB}, s{sLB}, {LBUF_SZ}
              s_cmp_eq_u32 s{sLB}, {LBUF + 3*LBUF_SZ}
              s_cselect_b32 s{sLB}, {LBUF}, s{sLB}""")
        if self.opt.get('trace2'):
            a(f"""s_waitcnt lgkmcnt(0)
                  s_lshl_b32 s{sT0}, s{sJ}, 4
                  s_add_u32 s{sT0}, s{sT0}, s{sC}
                  s_lshl_b32 s{sT0}, s{sT0}, 2
                  s_add_u32 s{sT0}, s{sT0}, s{sWP}
                  s_lshl_b32 s{sT0}, s{sT0}, 6
                  s_add_u32 s{sT0}, s{sT0}, s{sSTEP}
                  s_lshl_b32 s{sT0}, s{sT0}, 4
                  s_add_u32 s{sT0}, s{sT0}, {WS_DBG + 0x300000}""")
            for k in range(4):
                a(f's_sub_u32 s{sT1}, s{sST+2*k+2}, s{sST}' if k else f's_sub_u32 s{sT1}, s{sST}, s{sST+10}')
                a(f'v_mov_b32 v{LL+k}, s{sT1}')
            a(f's_mov_b32 s{sST+10}, s{sST+8}')
            a(f"""v_mov_b32 v{T0}, 0
                  s_mov_b64 exec, 1
                  buffer_store_dwordx4 v[{LL}:{LL+3}], v{T0}, s[{sWS}:{sWS+3}], s{sT0} offen
                  s_mov_b64 exec, -1
                  s_nop 1""")
        read_seg()
        self.zero(TA, 8)
        self.a_poll(vAoff, [F, OO, OO + 8])
        a(f's_branch {loop}')
        a.label(end)
        a('s_waitcnt lgkmcnt(0)')
        a('s_barrier')
        self.finish()
        a.label(vrt)
        vm_loads()
        self.retry(vlp, 1)
        a(f's_branch {vok}')
        self.emit_tail()

def emit_gates(a, sU, ntok, vL, R):
    G, acc, t1, t2, v4, Xr = R, R + 5, R + 6, R + 7, R + 8, R + 10
    a(f'v_lshlrev_b32 v{v4}, 2, v{vL}')
    srd(a, ptr(11), DM * 2)
    for i in range(5):
        a(f'buffer_load_dword v{G+i}, v{v4}, s[{sT}:{sT+3}], 0 offen offset:{256*i}')
    srd(a, ptr(0), S * DM * 2)
    a(f's_mul_i32 s{sT1}, s{sU}, 1280')
    for tk in range(ntok):
        for i in range(5):
            a(f'buffer_load_dword v{Xr+5*tk+i}, v{v4}, s[{sT}:{sT+3}], s{sT1} offen offset:{1280*tk + 256*i}')
    a('s_waitcnt vmcnt(0)')
    for tk in range(ntok):
        a(f'v_mov_b32 v{acc}, 0')
        for i in range(5):
            x = Xr + 5*tk + i
            a(f"""v_lshlrev_b32 v{t1}, 16, v{x}
                  v_lshlrev_b32 v{t2}, 16, v{G+i}
                  v_fmac_f32 v{acc}, v{t1}, v{t2}
                  v_and_b32 v{t1}, 0xffff0000, v{x}
                  v_and_b32 v{t2}, 0xffff0000, v{G+i}
                  v_fmac_f32 v{acc}, v{t1}, v{t2}""")
        for sh in (8, 4, 2, 1):
            a(f"""s_nop 1
                  v_add_f32_dpp v{acc}, v{acc}, v{acc} row_ror:{sh} row_mask:0xf bank_mask:0xf""")
        for sw in ('v_permlane16_swap_b32', 'v_permlane32_swap_b32'):
            a(f"""v_mov_b32 v{t1}, v{acc}
                  s_nop 1
                  {sw} v{acc}, v{t1}
                  v_add_f32 v{acc}, v{acc}, v{t1}""")
        a(f"""v_mul_f32 v{acc}, {hex(f32bits(-math.log2(math.e)))}, v{acc}
              v_exp_f32 v{acc}, v{acc}
              s_nop 0
              v_add_f32 v{acc}, 1.0, v{acc}
              v_rcp_f32 v{acc}, v{acc}
              v_mov_b32 v{t1}, 0
              s_lshl_b32 s{sT0}, s{sU}, 2
              s_add_u32 s{sT0}, s{sT0}, {WS_G + 4*tk}
              s_mov_b64 exec, 1
              buffer_store_dword v{acc}, v{t1}, s[{sWS}:{sWS+3}], s{sT0} offen sc1
              s_mov_b64 exec, -1""")

def arrive(a, wave, v):
    l = a.newlabel('Larr')
    a(f'''s_cmp_lg_u32 s{sW}, {wave}
          s_cbranch_scc1 {l}
          s_cmp_lg_u32 s{sARR}, 0
          s_cbranch_scc1 {l}
          s_mov_b64 exec, 1
          v_mov_b32 v{v}, 1
          v_mov_b32 v{v+1}, 32
          buffer_atomic_add v{v}, v{v+1}, s[{sDBG}:{sDBG+3}], 0 offen sc1
          s_mov_b64 exec, -1''')
    a.label(l)

def wait_registered(a, opt, T0, T1, vN, init=False):
    lp, done = a.newlabel('Lreg'), a.newlabel('Lregd')
    a(f'v_lshlrev_b32 v{T1}, 2, v{vN}')
    a.label(lp)
    a(f'''buffer_load_dword v{T0}, v{T1}, s[{sDBG}:{sDBG+3}], 0 offen sc0 sc1
          s_waitcnt vmcnt(0)
          v_readlane_b32 s{sT0}, v{T0}, 8
          v_readlane_b32 s{sT1}, v{T0}, {32 if init else 8}
          s_add_u32 s{sT0}, s{sT0}, s{sT1}
          s_cmp_ge_u32 s{sT0}, {256 + 384 if init else 512}
          s_cbranch_scc1 {done}
          s_sleep {opt.get('r_sleep', 24)}
          s_sub_u32 s{sBUD}, s{sBUD}, 1
          s_cbranch_scc0 {lp}
          s_mov_b32 s{sBUD}, 0''')
    a.label(done)
    a(f'''v_readlane_b32 s{sPOL}, v{T0}, 34
          v_cmp_ne_u32 vcc, 32, v{T0}
          s_and_b32 s{sPOL}, s{sPOL}, 1
          s_and_b32 s{sT0}, vcc_lo, 0xf
          s_and_b32 s{sT1}, vcc_hi, 0xf00
          s_or_b32 s{sT0}, s{sT0}, s{sT1}
          s_cselect_b32 s{sMIX}, 1, {1 if opt.get('force_mixed') else 0}''')

def emit_entry(a, opt, exit_label):
    a(f'''s_cmp_ge_u32 s2, 256
          s_cbranch_scc1 {exit_label}
          s_load_dwordx16 s[16:31], s[0:1], 0
          s_load_dwordx8 s[32:39], s[0:1], 64
          s_load_dwordx4 s[40:43], s[0:1], 96
          s_load_dwordx2 s[44:45], s[0:1], 112
          v_lshrrev_b32 v1, 6, v0
          s_getreg_b32 s{sJ}, hwreg(HW_REG_XCC_ID)
          v_readfirstlane_b32 s{sW}, v1
          s_and_b32 s{sJ}, s{sJ}, 15
          s_min_u32 s{sJ}, s{sJ}, 10
          s_cmp_lt_u32 s{sJ}, 8
          s_cselect_b32 s{sJ}, s{sJ}, 10
          s_mov_b32 s{sBUD}, {opt.get('budget', 1 << 20)}
          s_mov_b32 s{sSTEP}, 0
          s_mov_b32 s{sCS}, 0
          s_mov_b32 s{sPOL}, 0
          s_mov_b64 s[98:99], 0
          s_mov_b64 s[100:101], 0
          s_mov_b32 s{sMIX}, {1 if opt.get('force_mixed') else 0}
          s_mov_b32 s{sMN8}, 0x00ff00ff
          s_mov_b32 s{sMN8+1}, 0x00ff00ff
          s_mov_b32 s{sMH8}, 0xff00ff00
          s_mov_b32 s{sMH8+1}, 0xff00ff00
          s_mov_b32 s{sML32}, -1
          s_mov_b32 s{sML32+1}, 0
          s_mov_b32 s{sSELLO}, 0x05040100
          s_mov_b32 s{sSELHI}, 0x07060302
          s_mov_b32 s{sSCL}, {hex(f32bits(DH ** -0.5 * math.log2(math.e)))}
          s_waitcnt lgkmcnt(0)
          s_mov_b32 s{sWS}, s{ptr(14)}
          s_mov_b32 s{sWS+1}, s{ptr(14)+1}
          s_mov_b32 s{sWS+2}, {WS_SIZE}
          s_mov_b32 s{sWS+3}, 0x20000
          s_mov_b32 s{sDBG}, s{ptr(13)}
          s_mov_b32 s{sDBG+1}, s{ptr(13)+1}
          s_mov_b32 s{sDBG+2}, 256
          s_mov_b32 s{sDBG+3}, 0x20000''')
    if opt.get('prof'):
        a(f's_memrealtime s[{sST}:{sST+1}]')
        a('s_waitcnt lgkmcnt(0)')
    if opt.get('fake_xcc') == 1:
        a(f'''s_lshr_b32 s{sJ}, s2, 5''')
    if opt.get('fake_xcc') == 2:
        a(f'''s_cmp_lt_u32 s2, 200
              s_cselect_b32 s{sJ}, s{sJ}, 3
              s_cmp_lt_u32 s2, 250
              s_cselect_b32 s{sJ}, s{sJ}, 10''')
    l1, l2 = a.newlabel('Le'), a.newlabel('Le')
    def sweep():
        ls = a.newlabel('Lsw')
        a(f'''s_lshl_b32 s{sT0}, s{sC}, 3
              s_add_u32 s{sT0}, s{sT0}, s{sW}
              s_cmp_ge_u32 s{sT0}, 240
              s_cbranch_scc1 {ls}
              s_mov_b32 m0, {SWEEP_LDS}
              v_and_b32 v9, 63, v0
              v_lshlrev_b32 v9, 4, v9
              v_add_u32 v10, 1024, v9
              v_add_u32 v11, {12288 + 512}, v9
              v_add_u32 v12, {12288 - 512}, v9
              v_cmp_gt_u32 vcc, 512, v9
              s_mul_i32 s{sT1}, s{sT0}, 52429
              s_lshr_b32 s{sT1}, s{sT1}, 22
              v_cndmask_b32 v10, v12, v10, vcc
              s_cmp_eq_u32 s{sT1}, 1
              s_cselect_b32 s{sT}, s{ptr(3)}, s{ptr(2)}
              s_cselect_b32 s{sT+1}, s{ptr(3)+1}, s{ptr(2)+1}
              s_cmp_eq_u32 s{sT1}, 2
              s_cselect_b32 s{sT}, s{ptr(4)}, s{sT}
              s_cselect_b32 s{sT+1}, s{ptr(4)+1}, s{sT+1}
              s_mov_b32 s{sT+2}, {DM*NH*DH*2}
              s_mov_b32 s{sT+3}, 0x20000
              s_mul_i32 s{sT1}, s{sT1}, 80
              s_sub_u32 s{sT1}, s{sT0}, s{sT1}
              s_mul_i32 s{sT1}, s{sT1}, {8*12288}
              s_mul_i32 s{sT2}, s{sJ}, 1536
              s_add_u32 s{sT1}, s{sT1}, s{sT2}''')
        for rp in range(4):
            for v in (9, 10, 11):
                a(f'buffer_load_dwordx4 v{v}, s[{sT}:{sT+3}], s{sT1} offen lds')
            if rp < 3: a(f's_add_u32 s{sT1}, s{sT1}, {2*12288}')
        srd(a, ptr(5), NH * DH * DM * 2)
        a(f'''s_mul_i32 s{sT1}, s{sJ}, {4*DH*DM*2}
              s_lshl_b32 s{sT0}, s{sT0}, 12
              s_add_u32 s{sT1}, s{sT1}, s{sT0}''')
        for k in range(4):
            a(f'buffer_load_dwordx4 v9, s[{sT}:{sT+3}], s{sT1} offen offset:{1024*k} lds')
        a.label(ls)
    a(f'''s_cmp_lg_u32 s{sW}, 0
          s_cbranch_scc1 {l1}
          s_mov_b64 exec, 1
          v_mov_b32 v2, 1
          s_lshl_b32 s{sT0}, s{sJ}, 2
          s_and_b32 s{sT1}, s{sJ}, 12
          s_cmp_eq_u32 s{sT1}, 4
          s_cselect_b32 s{sT1}, 144, 0
          s_add_u32 s{sT0}, s{sT0}, s{sT1}
          v_mov_b32 v3, s{sT0}
          buffer_atomic_add v2, v3, s[{sDBG}:{sDBG+3}], 0 offen sc0 sc1
          s_mov_b64 exec, -1''')
    a.label(l1)
    l3, l4, l5, l6, l7 = [a.newlabel('Le') for _ in range(5)]
    a(f'''s_cmp_lg_u32 s{sW}, 1
          s_cbranch_scc1 {l5}
          s_mov_b64 exec, 1
          v_mov_b32 v2, 0
          v_mov_b32 v3, 0
          v_mov_b32 v4, 0
          v_mov_b32 v5, 0
          s_lshl_b32 s{sT0}, s2, 4
          s_add_u32 s{sT0}, s{sT0}, {WS_FLAG}
          buffer_store_dwordx4 v[2:5], v2, s[{sWS}:{sWS+3}], s{sT0} offen sc1
          s_mov_b64 exec, -1''')
    a.label(l5)
    a(f'''s_waitcnt vmcnt(0)
          s_cmp_lg_u32 s{sW}, 0
          s_cbranch_scc1 {l3}
          s_mov_b64 exec, 1
          v_readfirstlane_b32 s{sT0}, v2
          s_cmp_ge_u32 s{sJ}, 8
          s_cselect_b32 s{sT0}, 32, s{sT0}
          s_cmp_lt_u32 s{sT0}, 32
          s_cbranch_scc1 {l6}
          v_mov_b32 v2, 1
          v_mov_b32 v3, 36
          buffer_atomic_add v2, v3, s[{sDBG}:{sDBG+3}], 0 offen sc0 sc1
          s_waitcnt vmcnt(0)
          v_add_u32 v2, 32, v2''')
    a.label(l6)
    l8 = a.newlabel('Le')
    a(f'''v_mov_b32 v4, 0
          s_or_b32 s{sT0}, s{sT0}, s{sJ}
          s_cmp_lg_u32 s{sT0}, 0
          s_cbranch_scc1 {l8}
          s_lshr_b32 s{sT0}, s2, 6
          s_lshl_b32 s{sT0}, s{sT0}, 14
          s_and_b32 s{sT1}, s2, 63
          s_lshl_b32 s{sT1}, s{sT1}, 7
          s_add_u32 s{sT0}, s{sT0}, s{sT1}
          s_add_u32 s{sT0}, s{sT0}, {WS_RC + RC_PROBE}
          s_add_u32 s{sT1}, s{sT0}, 8192
          s_mov_b32 s{sT2}, -1
          s_mov_b32 s{sT3}, -1''')
    for rnd in range(2):
        for cp in range(2):
            a(f'''v_mov_b32 v5, 0
                  s_memtime s[98:99]
                  s_waitcnt lgkmcnt(0)
                  buffer_atomic_add v5, v4, s[{sWS}:{sWS+3}], s{sT1 if cp else sT0} offen sc0 sc1
                  s_waitcnt vmcnt(0)
                  s_memtime s[100:101]
                  s_waitcnt lgkmcnt(0)
                  s_sub_u32 s98, s100, s98
                  s_min_u32 s{sT3 if cp else sT2}, s{sT3 if cp else sT2}, s98''')
    a(f'''s_mov_b64 s[98:99], 0
          s_mov_b64 s[100:101], 0
          s_cmp_lt_u32 s{sT3}, s{sT2}
          s_cselect_b32 s{sT2}, 0x15, 0x0a
          v_mov_b32 v4, s{sT2}''')
    a(f'''v_mov_b32 v5, 136
          buffer_store_dword v4, v5, s[{sDBG}:{sDBG+3}], 0 offen sc1
          s_waitcnt vmcnt(0)''')
    a.label(l8)
    a(f'''v_mov_b32 v3, 0
          ds_write_b32 v3, v2
          s_mov_b64 exec, -1
          s_waitcnt lgkmcnt(0)''')
    a.label(l3)
    a(f'''s_barrier
          v_mov_b32 v3, 0
          ds_read_b32 v2, v3
          s_mov_b32 s{sARR}, 0
          s_waitcnt lgkmcnt(0)
          v_readfirstlane_b32 s{sC}, v2
          s_barrier
          s_cmp_lt_u32 s{sC}, 32
          s_cbranch_scc1 {l7}''')
    arrive(a, 0, 4)
    a(f's_mov_b32 s{sARR}, 1')
    a('v_and_b32 v4, 63, v0')
    wait_registered(a, opt, 2, 3, 4)
    a(f's_sub_u32 s{sT1}, s{sC}, 32')
    a(f's_mov_b32 s{sJ}, 0')
    a(f's_mov_b32 s{sC}, 0')
    for x in range(8):
        a(f'''v_readlane_b32 s{sT0}, v2, {x if x < 4 else 36 + x}
              s_min_u32 s{sT0}, s{sT0}, 32
              s_sub_u32 s{sT2}, 32, s{sT0}
              s_add_u32 s{sT0}, s{sT0}, s{sT1}
              s_cmp_lt_u32 s{sT1}, s{sT2}
              s_cselect_b32 s{sJ}, {x}, s{sJ}
              s_cselect_b32 s{sC}, s{sT0}, s{sC}
              s_sub_u32 s{sT1}, s{sT1}, s{sT2}''')
    a.label(l7)
    a(f'''s_lshr_b32 s{sT0}, s{sC}, 4
          s_lshr_b32 s{sT1}, s{sJ}, 2
          s_and_b32 s{sJ}, s{sJ}, 3
          s_lshl_b32 s{sJ}, s{sJ}, 1
          s_add_u32 s{sJ}, s{sJ}, s{sT0}
          s_and_b32 s{sC}, s{sC}, 15
          s_lshl_b32 s{sT1}, s{sT1}, 4
          s_add_u32 s{sC}, s{sC}, s{sT1}''')
    if opt.get('prof'):
        a(f's_memrealtime s[{sST+8}:{sST+9}]')
        a('s_waitcnt lgkmcnt(0)')

import struct
def f32bits(x): return struct.unpack('<I', struct.pack('<f', x))[0]

def emit_chain_body(a, opt):
    ch = Chain(a, opt)
    lv, l7, lat = a.newlabel('Lrole_v'), a.newlabel('Lrole_w7'), a.newlabel('Lrole_att')
    a(f'''s_lshr_b32 s{sH}, s{sC}, 2
          s_lshl_b32 s{sT0}, s{sJ}, 2
          s_add_u32 s{sH}, s{sH}, s{sT0}
          s_and_b32 s{sG}, s{sC}, 3
          s_setprio 2
          s_cmp_eq_u32 s{sW}, 3
          s_cbranch_scc1 {lv}
          s_cmp_eq_u32 s{sW}, 7
          s_cbranch_scc1 {l7}
          s_cmp_ge_u32 s{sW}, 4
          s_cbranch_scc1 {lat}''')
    ch.role_qk()
    a.label(lv); ch.role_v()
    a.label(l7); ch.role_w7()
    a.label(lat); ch.role_att()
```

```python
from asmlib import *
from layout import *
import math

LM, LO, LDUMMY, LQK, LW5, LR, LOX, LBUF = 0, 10240, 13312, 16384, 22528, 34816, 35840, 38912
LBUF_SZ = 27648
LK_OFF, LV_OFF, LQ_OFF = 0, 12288, 24576
CHAIN_LDS = LBUF + 3 * LBUF_SZ
SWEEP_LDS = 139264

sWS, sDBG, sT = 4, 8, 12
sPTR = 16
def ptr(i): return sPTR + 2 * i
sW, sJ, sC, sH, sG, sMIX, sBUD, sSTEP = 48, 49, 50, 51, 52, 53, 54, 55
sA_N, sA_R, sB_C, sB_R, sC_W, sC_RS, sC_RD, sO_C = 56, 57, 58, 59, 60, 61, 62, 63
sKQ, sVX, sLB, sRED, sSCL, sT0, sT1, sT2, sT3 = 64, 65, 66, 67, 68, 69, 76, 77, 78
sMN8, sML32, sMH8 = 70, 72, 74
sSELLO, sSELHI = 80, 81
sCI = 46
sARR = 3
sMA = 46
sST = 82
sPADD, sPOR, sA_P, sCS, sPOL, sC_W2 = 94, 95, 96, 97, 79, 61
NSTAMP = 6

def srd(a, base_ptr, nbytes):
    a(f'''s_mov_b32 s{sT}, s{base_ptr}
          s_mov_b32 s{sT+1}, s{base_ptr+1}
          s_mov_b32 s{sT+2}, {nbytes}
          s_mov_b32 s{sT+3}, 0x20000''')

class Chain:
    def __init__(self, a, opt):
        self.a = a
        self.opt = opt
        self.tail = []
        self.tails = []
        self.nstamp = 0
        self.wnt = ' nt' if opt.get('w_nt') else ''

    def lstore(self, insts):
        a = self.a
        slow, back = a.newlabel('Lslow'), a.newlabel('Lback')
        a(f's_cmp_lg_u32 s{sMIX}, 0')
        a(f's_cbranch_scc1 {slow}')
        for i in insts: a(i)
        a.label(back)
        self.tail.append((slow, [i + ' sc1' if i.startswith('buffer_') else i for i in insts], back))

    def emit_tail(self):
        a = self.a
        for slow, insts, back in self.tail:
            a.label(slow)
            for i in insts: a(i)
            a(f's_branch {back}')
        self.tail = []
        for t in self.tails: t()
        self.tails = []

    def stamp(self, k, ahead=0):
        if not self.opt.get('stamps'): return
        a = self.a
        l = a.newlabel('Lst')
        a(f'''s_cmp_lg_u32 s{sSTEP}, {self.opt['stamps'] + ahead}
              s_cbranch_scc1 {l}
              {self.opt.get('clock', 's_memtime')} s[{sST+2*k}:{sST+2*k+1}]
              s_waitcnt lgkmcnt(0)''')
        a.label(l)

    def mark(self, k):
        if not self.opt.get('prof'): return
        self.a(f's_memrealtime s[{sST+2*k}:{sST+2*k+1}]')
        self.a('s_waitcnt lgkmcnt(0)')

    def dump_stamps(self):
        self.mark(3)
        if not (self.opt.get('stamps') or self.opt.get('prof')): return
        a = self.a
        if self.opt.get('dbgout'):
            l = a.newlabel('Ldo')
            a(f'''s_and_b32 s{sT0}, s{sC}, 15
                  s_or_b32 s{sT0}, s{sT0}, s{sJ}
                  s_or_b32 s{sT0}, s{sT0}, s{sW}
                  s_cmp_lg_u32 s{sT0}, 0
                  s_cbranch_scc1 {l}
                  s_cmp_ge_u32 s{sC}, 16
                  s_cselect_b32 s{sT0}, s{sST+2}, s{sST+4}
                  s_cselect_b32 s{sT2}, 56, 48
                  s_sub_u32 s{sT0}, s{sT0}, s{sST}
                  s_sub_u32 s{sT1}, s{sST+6}, s{sST}
                  s_mov_b64 exec, 1
                  v_mov_b32 v2, s{sT0}
                  v_mov_b32 v3, s{sT1}
                  v_mov_b32 v4, s{sT2}
                  buffer_store_dwordx2 v[2:3], v4, s[{sDBG}:{sDBG+3}], 0 offen
                  s_mov_b64 exec, -1''')
            a.label(l)
        a(f'''s_lshl_b32 s{sT0}, s{sJ}, 5
              s_add_u32 s{sT0}, s{sT0}, s{sC}
              s_lshl_b32 s{sT0}, s{sT0}, 3
              s_add_u32 s{sT0}, s{sT0}, s{sW}
              s_lshl_b32 s{sT0}, s{sT0}, 6
              s_add_u32 s{sT0}, s{sT0}, {WS_DBG + 0x100000}
              s_mov_b64 exec, -1
              v_mov_b32 v2, 0''')
        for k in range(NSTAMP):
            a(f'v_mov_b32 v3, s{sST+2*k}')
            a(f'buffer_store_dword v3, v2, s[{sWS}:{sWS+3}], s{sT0} offen offset:{4*k}')
        for k in range(4):
            a(f'v_mov_b32 v3, s{98+k}')
            a(f'buffer_store_dword v3, v2, s[{sWS}:{sWS+3}], s{sT0} offen offset:{4*(8+k)}')
        a('s_waitcnt vmcnt(0)')

    def retry(self, label, kind=None):
        a = self.a
        if kind is not None and self.opt.get('stamps'):
            a(f's_add_u32 s{98+kind}, s{98+kind}, 1')
        a(f'''s_sub_u32 s{sBUD}, s{sBUD}, 1
              s_cbranch_scc0 {label}
              s_mov_b32 s{sBUD}, 0''')

    def slots(self):
        a = self.a
        a(f'''s_and_b32 s{sT0}, s{sSTEP}, 3
              s_add_u32 s{sT1}, s{sSTEP}, 1
              s_and_b32 s{sT1}, s{sT1}, 3
              s_xor_b32 s{sT2}, s{sT0}, 2
              s_lshr_b32 s{sT3}, s{sJ}, 1
              s_mul_i32 s{sT3}, s{sT3}, 10240
              s_add_u32 s{sT3}, s{sT3}, {WS_RA}
              s_mul_i32 s{sA_N}, s{sT1}, {RA_SLOT}
              s_add_u32 s{sA_N}, s{sA_N}, s{sT3}
              s_mul_i32 s{sA_R}, s{sT2}, {RA_SLOT}
              s_add_u32 s{sA_R}, s{sA_R}, s{sT3}
              s_mul_i32 s{sT3}, s{sH}, 9216
              s_add_u32 s{sT3}, s{sT3}, {WS_RB}
              s_mul_i32 s{sB_C}, s{sT0}, {RB_SLOT}
              s_add_u32 s{sB_C}, s{sB_C}, s{sT3}
              s_mul_i32 s{sB_R}, s{sT2}, {RB_SLOT}
              s_add_u32 s{sB_R}, s{sB_R}, s{sT3}
              s_and_b32 s{sT0}, s{sCS}, 255
              s_mul_i32 s{sT1}, s{sT0}, 86
              s_lshr_b32 s{sT1}, s{sT1}, 8
              s_mul_i32 s{sC_RD}, s{sT0}, {RC_SLOT}
              s_mul_i32 s{sT2}, s{sT1}, {0x200000 - 3*RC_SLOT}
              s_add_u32 s{sC_RD}, s{sC_RD}, s{sT2}
              s_add_u32 s{sC_RD}, s{sC_RD}, {WS_RC}
              s_xor_b32 s{sT1}, s{sPOL}, s{sT1}
              s_and_b32 s{sT1}, s{sT1}, 1
              s_lshl_b32 s{sT1}, s{sT1}, 13
              s_add_u32 s{sC_RD}, s{sC_RD}, s{sT1}
              s_lshl_b32 s{sT3}, s{sH}, 8
              s_add_u32 s{sC_W}, s{sC_RD}, s{sT3}
              s_lshl_b32 s{sPOR}, s{sCS}, 8
              s_and_b32 s{sPOR}, s{sPOR}, 0x10000
              s_xor_b32 s{sPADD}, s{sPOR}, 0x10000
              s_mul_i32 s{sO_C}, s{sSTEP}, {32*12288}
              s_add_u32 s{sO_C}, s{sO_C}, {WS_O}''')

    def next_step(self):
        a = self.a
        a(f'''s_add_u32 s{sSTEP}, s{sSTEP}, 1
              s_add_u32 s{sCS}, s{sCS}, 1
              s_and_b32 s{sT0}, s{sCS}, 255
              s_xor_b32 s{sT1}, s{sCS}, {256 + RC_N}
              s_cmp_eq_u32 s{sT0}, {RC_N}
              s_cselect_b32 s{sCS}, s{sT1}, s{sCS}''')
        self.slots()

    def load_pair(self, WA, WB, nks, voff, rowstride, tmp, between=None):
        a = self.a
        items = []
        for ks in range(nks):
            for R in range(8):
                hi, p = R >> 2, R & 3
                b, tt = p & 1, p >> 1
                d = 64 * ks + 32 * hi + 8 * b + 2 * tt
                items.append((WA + ks * 8 + R, WB + ks * 8 + R, d))
        def issue(it):
            ra, rb, d = it
            a(f's_mov_b32 s{sT0}, {d * rowstride}')
            a(f'buffer_load_dword v{ra}, v{voff}, s[{sT}:{sT+3}], s{sT0} offen' + self.wnt)
            a(f's_mov_b32 s{sT1}, {(d + 1) * rowstride}')
            a(f'buffer_load_dword v{rb}, v{voff}, s[{sT}:{sT+3}], s{sT1} offen' + self.wnt)
        def fix(it):
            ra, rb, d = it
            a(f'v_perm_b32 v{tmp}, v{rb}, v{ra}, s{sSELLO}')
            a(f'v_perm_b32 v{rb}, v{rb}, v{ra}, s{sSELHI}')
            a(f'v_mov_b32 v{ra}, v{tmp}')
        groups = [items[i:i + 8] for i in range(0, len(items), 8)]
        groups = [items[i:i + 4] for i in range(0, len(items), 4)]
        depth = 7
        for gi in range(min(depth, len(groups))):
            for it in groups[gi]: issue(it)
        if between:
            assert len(groups) <= depth
            between()
            a('s_waitcnt vmcnt(0)')
        for gi in range(len(groups)):
            inflight = min(len(groups), gi + depth) - gi - 1
            a(f's_waitcnt vmcnt({8 * inflight})')
            for it in groups[gi]: fix(it)
            if gi + depth < len(groups):
                for it in groups[gi + depth]: issue(it)

    def load_single(self, W, nks, voff, vsel, rowstride, tmps):
        a = self.a
        items = []
        for ks in range(nks):
            for R in range(8):
                hi, p = R >> 2, R & 3
                b, tt = p & 1, p >> 1
                items.append((W + ks * 8 + R, 64 * ks + 32 * hi + 8 * b + 2 * tt))
        groups = [items[i:i + 4] for i in range(0, len(items), 4)]
        depth = 7
        def issue(gi):
            for k, (r, d) in enumerate(groups[gi]):
                t = tmps + (gi % depth) * 4 + k
                a(f's_mov_b32 s{sT0}, {d * rowstride}')
                a(f'buffer_load_dword v{r}, v{voff}, s[{sT}:{sT+3}], s{sT0} offen' + self.wnt)
                a(f's_mov_b32 s{sT1}, {(d + 1) * rowstride}')
                a(f'buffer_load_dword v{t}, v{voff}, s[{sT}:{sT+3}], s{sT1} offen' + self.wnt)
        for gi in range(min(depth, len(groups))): issue(gi)
        for gi in range(len(groups)):
            inflight = min(len(groups), gi + depth) - gi - 1
            a(f's_waitcnt vmcnt({8 * inflight})')
            for k, (r, d) in enumerate(groups[gi]):
                t = tmps + (gi % depth) * 4 + k
                a(f'v_perm_b32 v{r}, v{t}, v{r}, v{vsel}')
            if gi + depth < len(groups): issue(gi + depth)

    def load_w(self, WA, WB, nks, rowstride, sbase, vcol, tmps, vsel=None):
        a = self.a
        NS = 5
        vG, vR, vA, X = tmps, tmps + 1, tmps + 2, tmps + 4
        sSl = sLB
        a(f"""s_min_u32 s{sSl}, s{sW}, 4
              s_mul_i32 s{sSl}, s{sSl}, {4096*NS}
              s_add_u32 s{sSl}, s{sSl}, {LBUF}
              v_lshrrev_b32 v{vG}, 2, v{self.vL}
              s_mov_b32 s{sT1}, {rowstride}
              v_mul_lo_u32 v{vG}, v{vG}, s{sT1}
              v_and_b32 v{vR}, 3, v{self.vL}
              v_lshl_add_u32 v{vG}, v{vR}, 4, v{vG}
              v_lshrrev_b32 v{vR}, 1, v{self.vQ}
              v_lshlrev_b32 v{vR}, 10, v{vR}
              v_and_b32 v{vA}, 1, v{self.vQ}
              v_lshl_add_u32 v{vR}, v{vA}, 8, v{vR}
              v_add_u32 v{vR}, v{vR}, v{vcol}
              v_add_u32 v{vR}, s{sSl}, v{vR}""")
        def issue(ks):
            for i in range(4):
                a(f's_add_u32 m0, s{sSl}, {(ks % NS)*4096 + i*1024}')
                a(f's_add_u32 s{sT1}, s{sbase}, {(64*ks + 16*i)*rowstride}')
                a(f'buffer_load_dwordx4 v{vG}, s[{sT}:{sT+3}], s{sT1} offen lds')
        for ks in range(min(NS, nks)): issue(ks)
        for ks in range(nks):
            a(f's_waitcnt vmcnt({4 * (min(nks, ks + NS) - ks - 1)})')
            for hi in range(2):
                a(f'v_add_u32 v{vA+hi}, {(ks % NS)*4096 + hi*2048}, v{vR}')
            for R in range(8):
                hi, p = R >> 2, R & 3
                row = 8 * (p & 1) + 2 * (p >> 1)
                a(f'ds_read2_b32 v[{X+2*R}:{X+2*R+1}], v{vA+hi} offset0:{16*row} offset1:{16*(row+1)}')
            a('s_waitcnt lgkmcnt(0)')
            if ks + NS < nks: issue(ks + NS)
            for R in range(8):
                if WB is None:
                    a(f'v_perm_b32 v{WA+8*ks+R}, v{X+2*R+1}, v{X+2*R}, v{vsel}')
                else:
                    a(f'v_perm_b32 v{WA+8*ks+R}, v{X+2*R+1}, v{X+2*R}, s{sSELLO}')
                    a(f'v_perm_b32 v{WB+8*ks+R}, v{X+2*R+1}, v{X+2*R}, s{sSELHI}')

    def lanes(self, al):
        a = self.a
        self.vL, self.vN, self.vQ = al(), al(), al()
        self.vT0, self.vT1, self.vT2 = al(), al(), al()
        self.vMask = 0
        a(f'''v_and_b32 v{self.vL}, 63, v0
              v_and_b32 v{self.vN}, 15, v0
              v_bfe_u32 v{self.vQ}, v0, 4, 2
              v_mov_b32 v0, 0xfffe0000''')

    def frag_addr(self, dst):
        a = self.a
        a(f'''v_lshlrev_b32 v{dst}, 8, v{self.vQ}
              v_bfe_u32 v{self.vT0}, v{self.vN}, 1, 1
              v_lshl_add_u32 v{dst}, v{self.vT0}, 7, v{dst}
              v_lshrrev_b32 v{self.vT0}, 2, v{self.vN}
              v_lshl_add_u32 v{dst}, v{self.vT0}, 5, v{dst}
              v_and_b32 v{self.vT0}, 1, v{self.vN}
              v_lshl_add_u32 v{dst}, v{self.vT0}, 4, v{dst}''')

    def idx_reg(self, dst):
        a = self.a
        a(f'''v_and_b32 v{self.vT0}, 2, v{self.vN}
              v_cmp_eq_u32 vcc, 2, v{self.vT0}
              v_mov_b32 v{dst}, 0x44444444
              v_mov_b32 v{self.vT0}, 0xeeeeeeee
              s_nop 1
              v_cndmask_b32 v{dst}, v{dst}, v{self.vT0}, vcc''')

    def wrow_lane(self, dst, rowstride):
        a = self.a
        a(f'''v_lshrrev_b32 v{self.vT0}, 1, v{self.vQ}
              v_lshlrev_b32 v{self.vT0}, 4, v{self.vT0}
              v_and_b32 v{self.vT1}, 1, v{self.vQ}
              v_lshl_add_u32 v{self.vT0}, v{self.vT1}, 2, v{self.vT0}
              s_mov_b32 s{sT0}, {rowstride}
              v_mul_lo_u32 v{dst}, v{self.vT0}, s{sT0}''')

    def wait_all_registered(self):
        a = self.a
        a(f's_setprio {self.prio}')
        a('s_barrier')
        w = a.newlabel('Lp0')
        a(f's_cmp_lg_u32 s{sW}, 0')
        a(f's_cbranch_scc1 {w}')
        wait_registered(a, self.opt, self.vT0, self.vT1, self.vL, True)
        a(f'''s_lshl_b32 s{sPOL}, s{sPOL}, 1
              s_or_b32 s{sPOL}, s{sPOL}, s{sMIX}
              v_mov_b32 v{self.vT0}, s{sPOL}
              v_mov_b32 v{self.vT1}, {LR + 64}
              ds_write_b32 v{self.vT1}, v{self.vT0}
              s_waitcnt lgkmcnt(0)''')
        a.label(w)
        a(f'''s_barrier
              v_mov_b32 v{self.vT1}, {LR + 64}
              ds_read_b32 v{self.vT0}, v{self.vT1}
              s_waitcnt lgkmcnt(0)
              v_readfirstlane_b32 s{sPOL}, v{self.vT0}
              s_and_b32 s{sMIX}, s{sPOL}, 1
              s_lshr_b32 s{sPOL}, s{sPOL}, 1''')
        if self.opt.get('pol') is not None: pass
        self.slots()

    def wait_tiles(self, seg, first, nflags):
        if not self.opt.get('fused'): return
        a = self.a
        lp, ok, skip = a.newlabel('Lwt'), a.newlabel('Lwtok'), a.newlabel('Lwts')
        T0, T1 = self.vT0, self.vT1
        a(f'''s_and_b32 s{sT0}, s{seg}, 7
              s_cbranch_scc1 {skip}
              s_lshr_b32 s{sT0}, s{seg}, 3
              s_mul_i32 s{sT0}, s{sT0}, 48
              s_lshl_b32 s{sT1}, s{sJ}, 9
              s_add_u32 s{sT0}, s{sT0}, s{sT1}
              s_and_b32 s{sT1}, s{sH}, 3
              s_lshl_b32 s{sT1}, s{sT1}, 2
              s_add_u32 s{sT0}, s{sT0}, s{sT1}
              s_add_u32 s{sT0}, s{sT0}, {WS_FLAG + 16*first}
              v_lshlrev_b32 v{T1}, 4, v{self.vL}
              s_mov_b64 exec, {(1 << nflags) - 1}''')
        a.label(lp)
        a(f'''buffer_load_dword v{T0}, v{T1}, s[{sWS}:{sWS+3}], s{sT0} offen sc1
              s_waitcnt vmcnt(0)
              v_cmp_eq_u32 vcc, 0, v{T0}
              s_cbranch_vccz {ok}
              s_sleep {self.opt.get('t_sleep', 2)}''')
        self.retry(lp)
        a.label(ok)
        a('s_mov_b64 exec, -1')
        a.label(skip)

    def o_flag(self, back):
        if not self.opt.get('fused'): return
        a = self.a
        if self.opt.get('no_oflag'): return
        a(f'''s_lshl_b32 s{sT0}, s{sJ}, 4
              s_add_u32 s{sT0}, s{sT0}, s{sC}
              s_lshl_b32 s{sT0}, s{sT0}, 7
              s_add_u32 s{sT0}, s{sT0}, {WS_OFLAG}
              s_add_u32 s{sT1}, s{sSTEP}, {1 - back}
              v_mov_b32 v{self.vT0}, s{sT1}
              v_mov_b32 v{self.vT1}, 0
              s_mov_b64 exec, 1''')
        a(f'buffer_store_dword v{self.vT0}, v{self.vT1}, s[{sWS}:{sWS+3}], s{sT0} offen sc1')
        a('s_mov_b64 exec, -1')

    def poll2(self, vOff, soff, lds, sets, kind, gap):
        a = self.a
        t, t2 = self.vT0, self.vT1
        n = len(sets)
        def issue(R):
            a(f'''buffer_load_dwordx4 v[{R}:{R+3}], v{vOff}, s[{sWS}:{sWS+3}], s{soff} offen sc1
                  buffer_load_dwordx4 v[{R+4}:{R+7}], v{vOff}, s[{sWS}:{sWS+3}], s{soff} offen offset:1024 sc1''')
        def check(R, br):
            a(f'''ds_write_b128 v{vOff}, v[{R}:{R+3}] offset:{lds}
                  ds_write_b128 v{vOff}, v[{R+4}:{R+7}] offset:{lds+1024}
                  v_max3_u32 v{t}, v{R}, v{R+1}, v{R+2}
                  v_max3_u32 v{t2}, v{R+3}, v{R+4}, v{R+5}
                  v_max3_u32 v{t}, v{t}, v{R+6}, v{R+7}
                  v_max_u32 v{t}, v{t}, v{t2}
                  v_cmp_eq_u32 vcc, -1, v{t}
                  {br}''')
        lp, ok = a.newlabel('Lp'), a.newlabel('Lpok')
        for k in range(n):
            issue(sets[k])
            if gap and k < n - 1: a(f's_sleep {gap}')
        a(f's_waitcnt vmcnt({2 * (n - 1)})')
        if kind == 0 and self.opt.get('fine'): self.stamp(3)
        check(sets[0], f's_cbranch_vccnz {lp}')
        a.label(ok)
        def tail():
            back = a.newlabel('Lpb')
            a.label(lp)
            for k in range(n):
                if self.opt.get('stamps'): a(f's_add_u32 s{98+kind}, s{98+kind}, 1')
                a('s_mov_b64 exec, vcc')
                issue(sets[k])
                a(f's_waitcnt vmcnt({2 * (n - 1)})')
                check(sets[(k + 1) % n], f's_cbranch_vccz {back}')
            self.retry(lp)
            a.label(back)
            a('s_mov_b64 exec, -1')
            a(f's_branch {ok}')
        self.tails.append(tail)

    def a_poll(self, vAoff, sets, first=False):
        a = self.a
        if first:
            a(f's_lshr_b32 s{sA_P}, s{sJ}, 1')
            a(f's_mul_i32 s{sA_P}, s{sA_P}, 10240')
            a(f's_add_u32 s{sA_P}, s{sA_P}, {WS_RA}')
        else:
            a(f's_mov_b32 s{sA_P}, s{sA_N}')
            self.next_step()
        a('s_barrier')
        if self.opt.get('a_first'): a(f"s_sleep {self.opt['a_first']}")
        self.poll2(vAoff, sA_P, LM, sets[:self.opt.get('a_depth', 1)], 2, self.opt.get('a_gap', 0))
        a('s_waitcnt lgkmcnt(0)')
        if not first: self.stamp(4, 1)
        a('s_barrier')

    def mem0_load(self, vAoff, R):
        a = self.a
        srd(a, ptr(1), 10240)
        T0, T1 = self.vT0, self.vT1
        a(f'''v_bfe_u32 v{T0}, v{vAoff}, 4, 3
              v_mul_u32_u24 v{T0}, 1280, v{T0}
              v_lshrrev_b32 v{T1}, 7, v{vAoff}
              v_lshl_add_u32 v{T0}, v{T1}, 4, v{T0}
              buffer_load_dwordx4 v[{R}:{R+3}], v{T0}, s[{sT}:{sT+3}], 0 offen
              buffer_load_dwordx4 v[{R+4}:{R+7}], v{T0}, s[{sT}:{sT+3}], 0 offen offset:128
              s_waitcnt vmcnt(0)
              ds_write_b128 v{vAoff}, v[{R}:{R+3}] offset:{LM}
              ds_write_b128 v{vAoff}, v[{R+4}:{R+7}] offset:{LM+1024}
              s_waitcnt lgkmcnt(0)''')

    def a_off(self, dst):
        a = self.a
        a(f'''s_sub_u32 s{sT0}, s{sW}, 3
              s_lshl_b32 s{sT0}, s{sT0}, 11
              v_lshlrev_b32 v{dst}, 4, v{self.vL}
              v_add_u32 v{dst}, s{sT0}, v{dst}''')

    def dma_seg_regs(self, seg_expr_sgpr):
        a = self.a
        sg = seg_expr_sgpr
        a(f'''s_lshl_b32 s{sT0}, s{sH}, 6
              s_add_u32 s{sT0}, s{sT0}, s{sg}
              s_mul_i32 s{sKQ}, s{sT0}, 12288
              s_add_u32 s{sVX}, s{sKQ}, {WS_VT}
              s_mul_i32 s{sT0}, s{sg}, 86
              s_lshr_b32 s{sT0}, s{sT0}, 8
              s_mul_i32 s{sT0}, s{sT0}, 3
              s_sub_u32 s{sT0}, s{sg}, s{sT0}
              s_mul_i32 s{sLB}, s{sT0}, {LBUF_SZ}
              s_add_u32 s{sLB}, s{sLB}, {LBUF}''')

    def dma12(self, v, base, lds, pieces):
        a = self.a
        for k in pieces:
            a(f'''s_add_u32 s{sT2}, s{sG}, {k}
                  s_and_b32 s{sT2}, s{sT2}, 3
                  s_mul_i32 s{sT2}, s{sT2}, 3072
                  s_add_u32 s{sT1}, s{sLB}, s{sT2}
                  s_add_u32 m0, s{sT1}, {lds}
                  s_add_u32 s{sT1}, s{sKQ}, s{sT2}
                  s_add_u32 s{sT1}, s{sT1}, {base}''')
            for t in range(3):
                a(f'buffer_load_dwordx4 v{v}, s[{sWS}:{sWS+3}], s{sT1} offen offset:{1024*t} sc1 lds')

    def dma_q(self, vQx):
        a = self.a
        for p in range(3):
            a(f's_add_u32 m0, s{sLB}, {LQ_OFF + p*1024}')
            a(f's_add_u32 s{sT1}, s{sKQ}, {WS_Q + p*2048}')
            a(f'buffer_load_dwordx4 v{vQx}, s[{sWS}:{sWS+3}], s{sT1} offen sc1 lds')

    def stage(self, own, rest, first, nflags):
        a = self.a
        l1, l2 = a.newlabel('Lsg'), a.newlabel('Lsg')
        def part(ahead, fn, lab, wait):
            a(f"""s_add_u32 s{sT3}, s{sSTEP}, {ahead}
                  s_cmp_ge_u32 s{sT3}, 64
                  s_cbranch_scc1 {lab}""")
            if wait: self.wait_tiles(sT3, first, nflags)
            self.dma_seg_regs(sT3)
            if not self.opt.get('no_dma'): fn()
            a.label(lab)
        if self.opt.get('own_last'):
            part(2, rest, l2, False); part(3, own, l1, True)
        else:
            part(3, own, l1, True); part(2, rest, l2, False)

    def stage_first(self, own, rest, first, nflags):
        a = self.a
        self.wait_tiles(sSTEP, first, nflags)
        for sg in range(3):
            a(f's_mov_b32 s{sT3}, {sg}')
            self.dma_seg_regs(sT3); own()
            if sg < 2: rest()
        a('s_waitcnt vmcnt(0)')

    def wo_stage(self, pairs, vFrag, vIdx, F, vCoff, RR, skip):
        a = self.a
        for ks in range(3):
            a(f'ds_read_b128 v[{F+4*ks}:{F+4*ks+3}], v{vFrag} offset:{LO + 1024*ks}')
        a(f'v_lshlrev_b32 v{self.vT0}, 3, v{self.vQ}')
        a(f'ds_read_b64 v[{RR}:{RR+1}], v{self.vT0} offset:{LR}')
        a(f's_cmp_eq_u32 s{sSTEP}, 63')
        a(f's_cbranch_scc1 {skip}')
        for ks in range(3):
            a(f's_waitcnt lgkmcnt({3-ks})')
            for (WA, WB, TA, TB, coff) in pairs:
                a(f'v_smfmac_f32_16x16x64_bf16 v[{TA}:{TA+3}], v[{F+4*ks}:{F+4*ks+3}], v[{WA+8*ks}:{WA+8*ks+7}], v{vIdx}')
                a(f'v_smfmac_f32_16x16x64_bf16 v[{TB}:{TB+3}], v[{F+4*ks}:{F+4*ks+3}], v[{WB+8*ks}:{WB+8*ks+7}], v{vIdx}')
        a('s_waitcnt lgkmcnt(0)')
        a('s_nop 5')
        for (WA, WB, TA, TB, coff) in pairs:
            self.pair_epilogue(TA, TB, RR)
            a(f'buffer_store_dword v{TA}, v{vCoff}, s[{sWS}:{sWS+3}], s{sC_W} offen offset:{coff} sc1')
            a(f'buffer_store_dword v{TB}, v{vCoff}, s[{sWS}:{sWS+3}], s{sC_W} offen offset:{coff+128} sc1')

    def pair_epilogue(self, TA, TB, RR=None):
        a = self.a
        a(f"""v_pk_add_f32 v[{TA}:{TA+1}], v[{TA}:{TA+1}], v[{TA+2}:{TA+3}]
              v_pk_add_f32 v[{TB+2}:{TB+3}], v[{TB}:{TB+1}], v[{TB+2}:{TB+3}]""")
        if RR is not None:
            a(f"""v_pk_mul_f32 v[{TA}:{TA+1}], v[{TA}:{TA+1}], v[{RR}:{RR+1}]
                  v_pk_mul_f32 v[{TB+2}:{TB+3}], v[{TB+2}:{TB+3}], v[{RR}:{RR+1}]
                  v_add_u32 v{TA}, s{sPADD}, v{TA}
                  v_add_u32 v{TA+1}, s{sPADD}, v{TA+1}
                  v_and_or_b32 v{TA}, v{TA}, v{self.vMask}, s{sPOR}
                  v_and_or_b32 v{TA+1}, v{TA+1}, v{self.vMask}, s{sPOR}
                  v_cvt_pk_bf16_f32 v{TA}, v{TA}, v{TB+2}
                  v_cvt_pk_bf16_f32 v{TB}, v{TA+1}, v{TB+3}""")
            return
        a(f"""v_cvt_pk_bf16_f32 v{TA}, v{TA}, v{TB+2}
              v_cvt_pk_bf16_f32 v{TB}, v{TA+1}, v{TB+3}
              v_min_u32 v{TA}, -2, v{TA}
              v_min_u32 v{TB}, -2, v{TB}""")

    def zero(self, r, n):
        for k in range(n): self.a(f'v_mov_b32 v{r+k}, 0')

    def c_off(self, dst, pw_sgpr_or_int):
        a = self.a
        T0 = self.vT0
        a(f'''v_lshrrev_b32 v{dst}, 3, v{self.vN}
              v_lshlrev_b32 v{dst}, 14, v{dst}
              v_bfe_u32 v{T0}, v{self.vN}, 2, 1
              v_lshl_add_u32 v{dst}, v{T0}, 6, v{dst}
              v_lshl_add_u32 v{dst}, v{self.vQ}, 4, v{dst}
              v_and_b32 v{T0}, 3, v{self.vN}
              v_lshl_add_u32 v{dst}, v{T0}, 2, v{dst}
              s_mul_i32 s{sT0}, s{sG}, 163840''')
        if isinstance(pw_sgpr_or_int, int):
            a(f's_add_u32 s{sT0}, s{sT0}, {32768*pw_sgpr_or_int}')
        else:
            a(f's_lshl_b32 s{sT1}, {pw_sgpr_or_int}, 15')
            a(f's_add_u32 s{sT0}, s{sT0}, s{sT1}')
        a(f'v_add_u32 v{dst}, s{sT0}, v{dst}')

    def wo_weights(self, WA, WB, pw, vtmp, tmp, between=None):
        a = self.a
        srd(a, ptr(5), NH * DH * DM * 2)
        self.wrow_lane(vtmp, 1280)
        a(f'''s_mul_i32 s{sT0}, s{sH}, {DH*DM*2}
              s_mul_i32 s{sT1}, s{sG}, 320
              s_add_u32 s{sT0}, s{sT0}, s{sT1}''')
        if isinstance(pw, int):
            a(f's_add_u32 s{sT0}, s{sT0}, {64*pw}')
        else:
            a(f's_lshl_b32 s{sT1}, {pw}, 6')
            a(f's_add_u32 s{sT0}, s{sT0}, s{sT1}')
        a(f'''v_lshl_add_u32 v{vtmp}, v{self.vN}, 2, v{vtmp}
              v_add_u32 v{vtmp}, s{sT0}, v{vtmp}''')
        self.load_pair(WA, WB, 3, vtmp, 1280, tmp, between)

    def finish(self):
        self.dump_stamps()
        self.a('s_endpgm')

    def touch_weights(self):
        a = self.a
        T0, T1 = self.vT0, self.vT1
        a(f's_mov_b32 m0, {SWEEP_LDS}')
        srd(a, ptr(4), DM * NH * DH * 2)
        a(f"""s_mov_b32 s{sT0}, 12288
              v_mul_lo_u32 v{T0}, v{self.vL}, s{sT0}
              s_mul_i32 s{sT0}, s{sH}, 384
              s_mul_i32 s{sT1}, s{sG}, 96
              s_add_u32 s{sT0}, s{sT0}, s{sT1}
              s_mul_i32 s{sT1}, s{sRED}, {64*12288}
              s_add_u32 s{sT0}, s{sT0}, s{sT1}""")
        for i in range(4):
            a(f'buffer_load_dword v{T0}, s[{sT}:{sT+3}], s{sT0} offen lds')
            a(f'buffer_load_dword v{T0}, s[{sT}:{sT+3}], s{sT0} offen offset:92 lds')
            if i < 3: a(f's_add_u32 s{sT0}, s{sT0}, {192*12288}')
        srd(a, ptr(5), NH * DH * DM * 2)
        a(f"""v_mul_u32_u24 v{T1}, 1280, v{self.vL}
              s_mul_i32 s{sT0}, s{sH}, {DH*DM*2}
              s_mul_i32 s{sT1}, s{sG}, 320
              s_add_u32 s{sT0}, s{sT0}, s{sT1}
              s_mul_i32 s{sT1}, s{sRED}, {64*1280}
              s_add_u32 s{sT0}, s{sT0}, s{sT1}""")
        for off in (0, 128, 256, 316):
            a(f'buffer_load_dword v{T1}, s[{sT}:{sT+3}], s{sT0} offen offset:{off} lds')

    def c_page_init(self, R, vLin):
        a = self.a
        a(f's_add_u32 s{sT2}, s{sCI}, 4096')
        for k in range(5):
            a(f'buffer_store_dwordx4 v[{R}:{R+3}], v{vLin}, s[{sWS}:{sWS+3}], s{sT2 if k == 4 else sCI} offen offset:{1024*(k&3)} sc1')
        a(f's_add_u32 s{sCI}, s{sCI}, 0x200000')

    def init_job(self, R):
        a = self.a
        vLin = R + 20
        sU = sA_P
        a(f"""s_lshl_b32 s{sU}, s{sJ}, 4
              s_add_u32 s{sU}, s{sU}, s{sC}
              s_mul_i32 s{sU}, s{sU}, 3
              s_add_u32 s{sU}, s{sU}, s{sRED}
              v_lshlrev_b32 v{vLin}, 4, v{self.vL}""")
        for k in range(4): a(f'v_mov_b32 v{R+k}, -1')
        for k in range(4): a(f'v_mov_b32 v{R+4+k}, 0')
        l1, l2 = a.newlabel('Lin'), a.newlabel('Lin')
        a(f"""s_cmp_ge_u32 s{sU}, 368
              s_cbranch_scc1 {l1}
              s_lshl_b32 s{sT0}, s{sU}, 12
              s_add_u32 s{sT0}, s{sT0}, {WS_RA}""")
        l0 = a.newlabel('Lin')
        a(f"""s_cmp_lt_u32 s{sU}, 20
              s_cbranch_scc1 {l0}""")
        for k in range(4):
            a(f'buffer_store_dwordx4 v[{R}:{R+3}], v{vLin}, s[{sWS}:{sWS+3}], s{sT0} offen offset:{1024*k} sc1')
        a(f's_branch {l1}')
        a.label(l0)
        srd(a, ptr(1), 10240)
        a(f's_lshl_b32 s{sT1}, s{sU}, 12')
        for k in range(4):
            D = R + 24 + 4*k
            a(f"""s_add_u32 s{sT2}, s{sT1}, {1024*k}
                  s_lshr_b32 s{sT3}, s{sT2}, 10
                  s_mul_i32 s{sT3}, s{sT3}, 205
                  s_lshr_b32 s{sT3}, s{sT3}, 11
                  s_mul_i32 s{sT3}, s{sT3}, 10240
                  s_sub_u32 s{sT2}, s{sT2}, s{sT3}
                  s_lshr_b32 s{sT2}, s{sT2}, 3
                  v_lshrrev_b32 v{R+8}, 2, v{self.vN}
                  v_and_b32 v{R+9}, 1, v{self.vN}
                  v_lshl_add_u32 v{R+8}, v{R+8}, 1, v{R+9}
                  v_mul_u32_u24 v{R+8}, 1280, v{R+8}
                  v_lshl_add_u32 v{R+8}, v{self.vQ}, 5, v{R+8}
                  v_bfe_u32 v{R+9}, v{self.vN}, 1, 1
                  v_lshl_add_u32 v{R+8}, v{R+9}, 4, v{R+8}
                  buffer_load_dwordx4 v[{D}:{D+3}], v{R+8}, s[{sT}:{sT+3}], s{sT2} offen""")
        a('s_waitcnt vmcnt(0)')
        for k in range(4):
            D = R + 24 + 4*k
            for e in range(4): a(f'v_min_u32 v{D+e}, -2, v{D+e}')
            a(f'buffer_store_dwordx4 v[{D}:{D+3}], v{vLin}, s[{sWS}:{sWS+3}], s{sT0} offen offset:{1024*k} sc1')
        a('s_waitcnt vmcnt(0)')
        a.label(l1)
        a(f"""s_sub_u32 s{sT0}, s{sU}, 4
              s_cmp_ge_u32 s{sT0}, 252
              s_cbranch_scc1 {l2}
              s_lshl_b32 s{sT0}, s{sU}, 10
              s_add_u32 s{sT0}, s{sT0}, {WS_FLAG}
              buffer_store_dwordx4 v[{R+4}:{R+7}], v{vLin}, s[{sWS}:{sWS+3}], s{sT0} offen sc1""")
        a.label(l2)

    def arrive_init(self, R):
        t1, t2 = R + 14, R + 15
        self.a(f"""s_waitcnt vmcnt(0)
              v_mov_b32 v{t1}, 1
              v_mov_b32 v{t2}, 128
              s_mov_b64 exec, 1
              buffer_atomic_add v{t1}, v{t2}, s[{sDBG}:{sDBG+3}], 0 offen sc1
              s_mov_b64 exec, -1""")

    def role_qk(self):
        a = self.a
        al = Alloc(1, 256)
        self.lanes(al)
        WA, WB = al(80, 4), al(80, 4)
        M = al(40, 4)
        TA, TB = al(4, 4), al(4, 4)
        SEL = al(4, 4)
        RC = al(2)
        AC2 = al(4, 2)
        vFrag, vIdx, vB, vAst, vSent = al(3, 1), al(), al(), al(), al(2)
        T0, T1, T2 = self.vT0, self.vT1, self.vT2
        a(f'v_lshlrev_b32 v{vFrag}, 4, v{self.vL}'); self.idx_reg(vIdx)
        a(f'v_add_u32 v{vFrag+1}, 4096, v{vFrag}')
        a(f'v_add_u32 v{vFrag+2}, 8192, v{vFrag}')
        a(f'''s_mul_i32 s{sT2}, s{sG}, 3
              s_add_u32 s{sT2}, s{sT2}, s{sW}
              s_cmp_ge_u32 s{sT2}, 6
              s_cselect_b32 s{sT}, s{ptr(3)}, s{ptr(2)}
              s_cselect_b32 s{sT+1}, s{ptr(3)+1}, s{ptr(2)+1}
              s_cselect_b32 s{sT1}, 6, 0
              s_lshl_b32 s{sT3}, s{sT2}, 9
              s_sub_u32 s{sT2}, s{sT2}, s{sT1}
              s_mov_b32 s{sT+2}, {DM*NH*DH*2}
              s_mov_b32 s{sT+3}, 0x20000
              s_lshl_b32 s{sT2}, s{sT2}, 6
              v_lshlrev_b32 v{vB}, 7, v{self.vQ}
              v_lshl_add_u32 v{vB}, v{self.vN}, 2, v{vB}
              v_add_u32 v{vB}, s{sT3}, v{vB}''')
        a(f'''v_lshlrev_b32 v{T0}, 1, v{self.vN}
              v_and_b32 v{T1}, 0x13, v{T0}
              v_and_b32 v{T2}, 4, v{T0}
              v_lshl_add_u32 v{T1}, v{T2}, 1, v{T1}
              v_and_b32 v{T2}, 8, v{T0}
              v_lshrrev_b32 v{T2}, 1, v{T2}
              v_add_u32 v{T1}, v{T1}, v{T2}
              v_lshlrev_b32 v{T2}, 1, v{T1}
              s_mul_i32 s{sT0}, s{sH}, 384
              s_add_u32 s{sT0}, s{sT0}, s{sT2}''')
        self.load_w(WA, WB, 10, 12288, sT0, T2, M)
        a(f'''s_and_b32 s{sT0}, s{sJ}, 1
              s_lshl_b32 s{sT0}, s{sT0}, 4
              s_add_u32 s{sT0}, s{sT0}, s{sC}
              s_lshl_b32 s{sT1}, s{sW}, 5
              s_add_u32 s{sT0}, s{sT0}, s{sT1}
              s_lshr_b32 s{sRED}, s{sT0}, 1
              s_and_b32 s{sT2}, s{sT0}, 1
              s_lshl_b32 s{sT0}, s{sRED}, 8
              s_lshl_b32 s{sT3}, s{sT2}, 4
              s_add_u32 s{sT0}, s{sT0}, s{sT3}
              s_lshl_b32 s{sT1}, s{sRED}, 14
              s_lshl_b32 s{sT3}, s{sT2}, 7
              s_add_u32 s{sT1}, s{sT1}, s{sT3}
              v_lshlrev_b32 v{RC}, 8, v{self.vQ}
              v_lshrrev_b32 v{T0}, 3, v{self.vN}
              v_lshl_add_u32 v{RC}, v{T0}, 10, v{RC}
              v_and_b32 v{T0}, 7, v{self.vN}
              v_lshl_add_u32 v{RC}, v{T0}, 4, v{RC}
              v_add_u32 v{RC}, s{sT1}, v{RC}
              v_add_u32 v{RC+1}, 4096, v{RC}
              v_bfe_u32 v{T0}, v{self.vN}, 2, 1
              v_lshlrev_b32 v{vAst}, 5, v{T0}
              v_and_b32 v{T0}, 3, v{self.vN}
              v_lshl_add_u32 v{vAst}, v{T0}, 6, v{vAst}
              v_lshl_add_u32 v{vAst}, v{self.vQ}, 3, v{vAst}
              v_add_u32 v{vAst}, s{sT0}, v{vAst}
              s_mov_b32 s{sMA}, 0x00ff00ff
              s_mov_b32 s{sMA+1}, 0''')
        a(f'''s_nop 0
              v_mov_b32 v{vSent}, -1
              v_mov_b32 v{vSent+1}, -1''')
        for p in range(4):
            a(f'''v_mov_b32 v{SEL+p}, 0
                  v_mov_b32 v{T0}, 0x3f80
                  v_cmp_eq_u32 vcc, {2*p}, v{self.vN}
                  s_nop 1
                  v_cndmask_b32 v{SEL+p}, v{SEL+p}, v{T0}, vcc
                  v_mov_b32 v{T0}, 0x3f800000
                  v_cmp_eq_u32 vcc, {2*p+1}, v{self.vN}
                  s_nop 1
                  v_cndmask_b32 v{SEL+p}, v{SEL+p}, v{T0}, vcc''')
        self.zero(TA, 8)
        self.mark(1)
        self.wait_all_registered()
        a('s_barrier')
        self.mark(2)
        loop, end = a.newlabel('Lqk'), a.newlabel('Lqkend')
        a('s_barrier')
        a.label(loop)
        a('s_barrier')
        self.stamp(0)
        for ks in range(10):
            a(f'ds_read_b128 v[{M+4*ks}:{M+4*ks+3}], v{vFrag} offset:{LM + 1024*ks}')
        for ks in range(10):
            a(f's_waitcnt lgkmcnt({9-ks})')
            a(f'v_smfmac_f32_16x16x64_bf16 v[{TA}:{TA+3}], v[{M+4*ks}:{M+4*ks+3}], v[{WA+8*ks}:{WA+8*ks+7}], v{vIdx}')
            a(f'v_smfmac_f32_16x16x64_bf16 v[{TB}:{TB+3}], v[{M+4*ks}:{M+4*ks+3}], v[{WB+8*ks}:{WB+8*ks+7}], v{vIdx}')
        a('s_nop 7')
        self.pair_epilogue(TA, TB)
        self.lstore([f'buffer_store_dword v{TA}, v{vB}, s[{sWS}:{sWS+3}], s{sB_C} offen',
                     f'buffer_store_dword v{TB}, v{vB}, s[{sWS}:{sWS+3}], s{sB_C} offen offset:64'])
        a('s_barrier')
        self.stamp(1)
        def resets():
            self.lstore([f'buffer_store_dword v{vSent}, v{vB}, s[{sWS}:{sWS+3}], s{sB_R} offen',
                         f'buffer_store_dword v{vSent}, v{vB}, s[{sWS}:{sWS+3}], s{sB_R} offen offset:64'])
            sk = a.newlabel('Lqar')
            a(f's_cmp_ge_u32 s{sRED}, 40')
            a(f's_cbranch_scc1 {sk}')
            a(f's_mov_b64 exec, s[{sMA}:{sMA+1}]')
            self.lstore([f'buffer_store_dwordx2 v[{vSent}:{vSent+1}], v{vAst}, s[{sWS}:{sWS+3}], s{sA_R} offen'])
            a('s_mov_b64 exec, -1')
            a.label(sk)
        self.zero(TA, 8)
        a('s_barrier')
        resets()
        if self.opt.get('prof'):
            a(f'''s_memrealtime s[{sST+10}:{sST+11}]
                  s_lshl_b32 s{sT0}, s{sJ}, 4
                  s_add_u32 s{sT0}, s{sT0}, s{sC}
                  s_lshl_b32 s{sT0}, s{sT0}, 2
                  s_add_u32 s{sT0}, s{sT0}, s{sW}
                  s_lshl_b32 s{sT0}, s{sT0}, 6
                  s_add_u32 s{sT0}, s{sT0}, s{sSTEP}
                  s_lshl_b32 s{sT0}, s{sT0}, 2
                  s_add_u32 s{sT0}, s{sT0}, {WS_DBG + 0x200000}
                  v_mov_b32 v{T1}, 0
                  s_waitcnt lgkmcnt(0)
                  v_mov_b32 v{T0}, s{sST+10}
                  buffer_store_dword v{T0}, v{T1}, s[{sWS}:{sWS+3}], s{sT0} offen
                  s_memtime s[{sST+10}:{sST+11}]
                  s_add_u32 s{sT0}, s{sT0}, 0x40000
                  s_waitcnt lgkmcnt(0)
                  v_mov_b32 v{T0}, s{sST+10}
                  buffer_store_dword v{T0}, v{T1}, s[{sWS}:{sWS+3}], s{sT0} offen
                  s_add_u32 s{sT0}, s{sT0}, 0x40000
                  v_mov_b32 v{T0}, s{sBUD}
                  buffer_store_dword v{T0}, v{T1}, s[{sWS}:{sWS+3}], s{sT0} offen''')
        a('s_barrier')
        if self.opt.get('trace2'): a(f's_memtime s[{sST+0}:{sST+1}]')
        a(f'''s_cmp_eq_u32 s{sSTEP}, 63
              s_cbranch_scc1 {end}''')
        ok, fin = a.newlabel('LpCok'), a.newlabel('LpCfin')
        ACC = AC2
        entry = {(h, ph): a.newlabel('LpC') for h in range(2) for ph in range(2)}
        nored = a.newlabel('Lqnr')
        a(f'''s_cmp_ge_u32 s{sRED}, 40
              s_cbranch_scc1 {nored}
              s_bitcmp1_b32 s{sCS}, 8
              s_cbranch_scc1 {entry[(1,1)]}_in''')
        for half in (1,):
            nl = 4
            for ph in range(2):
                lp = entry[(half, ph)]
                a.label(lp + '_in')
                if self.opt.get('c_sleep'): a(f"s_sleep {self.opt['c_sleep']}")
                if self.opt.get('fine'): self.stamp(5)
                a.label(lp)
                for t in range(nl):
                    reg, off = (RC + (t >> 1), 2048 * (t & 1)) if half else (RC + (t >> 2), 1024 * (t & 3))
                    a(f'buffer_load_dwordx4 v[{M+4*t}:{M+4*t+3}], v{reg}, s[{sWS}:{sWS+3}], s{sC_RD} offen offset:{off} sc1')
                a('s_mov_b64 exec, -1')
                op3 = (lambda d, x, y, z: f'v_bitop3_b32 v{d}, v{x}, v{y}, v{z} bitop3:0x80') if ph else (lambda d, x, y, z: f'v_or3_b32 v{d}, v{x}, v{y}, v{z}')
                for t in range(nl):
                    a(f's_waitcnt vmcnt({nl-1-t})')
                    if t == 0 and self.opt.get('fine'): self.stamp(2)
                    a(f'v_mfma_f32_16x16x32_bf16 v[{ACC}:{ACC+3}], v[{SEL}:{SEL+3}], v[{M+4*t}:{M+4*t+3}], ' + ('0' if t == 0 else f'v[{ACC}:{ACC+3}]'))
                    if t == 0:
                        a(op3(T0, M, M+1, M+2)); a(op3(T0, T0, M+3, M+3))
                    else:
                        a(op3(T0, T0, M+4*t, M+4*t+1)); a(op3(T0, T0, M+4*t+2, M+4*t+3))
                rt, bk = a.newlabel('LpCr'), a.newlabel('LpCb')
                a(f'''v_and_b32 v{T0}, 1, v{T0}
                      v_cmp_ne_u32 vcc, {ph}, v{T0}
                      s_cbranch_vccnz {rt}''')
                a.label(bk)
                if self.opt.get('trace2'): a(f's_memtime s[{sST+2}:{sST+3}]')
                def tail(rt=rt, bk=bk, lp=lp):
                    a.label(rt)
                    a('s_mov_b64 exec, vcc')
                    self.retry(lp, 3)
                    a('s_mov_b64 exec, -1')
                    a(f's_branch {bk}')
                self.tails.append(tail)
                a('s_nop 2')
                if half:
                    for k in range(4):
                        a(f'v_add_f32_dpp v{ACC+k}, v{ACC+k}, v{ACC+k} row_ror:8 row_mask:0xf bank_mask:0xf')
                self.stamp(3)
                a(f'''v_cvt_pk_bf16_f32 v{ACC}, v{ACC}, v{ACC+1}
                      v_cvt_pk_bf16_f32 v{ACC+1}, v{ACC+2}, v{ACC+3}
                      s_mov_b64 exec, s[{sMA}:{sMA+1}]
                      v_min_u32 v{ACC}, -2, v{ACC}
                      v_min_u32 v{ACC+1}, -2, v{ACC+1}''')
                self.lstore([f'buffer_store_dwordx2 v[{ACC}:{ACC+1}], v{vAst}, s[{sWS}:{sWS+3}], s{sA_N} offen'])
                if not (half and ph): a(f's_branch {fin}')
        a(f's_branch {fin}')
        a.label(nored)
        a('s_waitcnt vmcnt(0)')
        a.label(fin)
        if self.opt.get('dump_mem'):
            l = a.newlabel('Ldm')
            a(f'''s_cmp_lg_u32 s{sJ}, 0
                  s_cbranch_scc1 {l}
                  s_mul_i32 s{sT0}, s{sSTEP}, 10240
                  s_add_u32 s{sT0}, s{sT0}, {WS_DBG}
                  buffer_store_dwordx2 v[{ACC}:{ACC+1}], v{vAst}, s[{sWS}:{sWS+3}], s{sT0} offen''')
            a.label(l)
        a('s_mov_b64 exec, -1')
        a('s_barrier')
        if self.opt.get('trace2'): a(f's_memtime s[{sST+4}:{sST+5}]')
        if self.opt.get('trace2'):
            a(f"""s_waitcnt lgkmcnt(0)
                  s_lshl_b32 s{sT0}, s{sJ}, 4
                  s_add_u32 s{sT0}, s{sT0}, s{sC}
                  s_lshl_b32 s{sT0}, s{sT0}, 2
                  s_add_u32 s{sT0}, s{sT0}, s{sW}
                  s_lshl_b32 s{sT0}, s{sT0}, 6
                  s_add_u32 s{sT0}, s{sT0}, s{sSTEP}
                  s_lshl_b32 s{sT0}, s{sT0}, 4
                  s_add_u32 s{sT0}, s{sT0}, {WS_DBG + 0x400000}
                  s_sub_u32 s{sT1}, s{sST+2}, s{sST}
                  v_mov_b32 v{M}, s{sT1}
                  s_sub_u32 s{sT1}, s{sST+4}, s{sST}
                  v_mov_b32 v{M+1}, s{sT1}
                  v_mov_b32 v{M+2}, s{sBUD}
                  v_mov_b32 v{T0}, 0
                  s_mov_b64 exec, 1
                  buffer_store_dwordx4 v[{M}:{M+3}], v{T0}, s[{sWS}:{sWS+3}], s{sT0} offen
                  s_mov_b64 exec, -1
                  s_nop 1""")
        self.stamp(4)
        self.next_step()
        a('s_waitcnt lgkmcnt(0)')
        a(f's_branch {loop}')
        a.label(end)
        a('s_barrier')
        self.finish()
        self.emit_tail()

    def role_v(self):
        a = self.a
        al = Alloc(1, 256)
        self.lanes(al)
        WA, WB = al(80, 4), al(80, 4)
        M = al(48, 4)
        TA, TB = al(4, 4), al(4, 4)
        F = al(12, 4); RR = al(2, 2)
        vFrag, vIdx, vB, vAoff, vV, vSent, vCoff, vOst = [al() for _ in range(8)]
        vLin = vV
        a(f"""v_lshrrev_b32 v{self.vT1}, 3, v{self.vL}
              v_lshlrev_b32 v{vOst}, 4, v{self.vT1}
              v_and_b32 v{self.vT1}, 7, v{self.vL}
              v_lshl_add_u32 v{vOst}, v{self.vT1}, 8, v{vOst}
              s_lshr_b32 s{sT0}, s{sG}, 1
              s_mul_i32 s{sT0}, s{sT0}, 192
              s_mul_i32 s{sT1}, s{sH}, 6
              s_add_u32 s{sT0}, s{sT0}, s{sT1}
              s_lshl_b32 s{sT0}, s{sT0}, 10
              s_and_b32 s{sT1}, s{sG}, 1
              s_lshl_b32 s{sT1}, s{sT1}, 7
              s_add_u32 s{sT0}, s{sT0}, s{sT1}
              v_add_u32 v{vOst}, s{sT0}, v{vOst}""")
        def o_store(back):
            if self.opt.get('no_ost'): return
            a(f's_sub_u32 s{sT0}, s{sO_C}, {back*32*12288}')
            a(f's_add_u32 s{sT1}, s{sT0}, 4096')
            for k in range(3):
                a(f'ds_read_b128 v[{F+4*k}:{F+4*k+3}], v{vLin} offset:{LOX + 1024*k}')
            for k in range(3):
                a(f's_waitcnt lgkmcnt({2-k})')
                a(f'buffer_store_dwordx4 v[{F+4*k}:{F+4*k+3}], v{vOst}, s[{sWS}:{sWS+3}], s{sT1 if k == 2 else sT0} offen offset:{2048*(k&1)} sc1')
        PX = al(8, 2)
        self.frag_addr(vFrag); self.idx_reg(vIdx)
        a(f"""v_lshlrev_b32 v{vV}, 4, v{self.vL}
              v_mov_b32 v{vSent}, -1""")
        a(f"""s_mul_i32 s{sT0}, s{sG}, 768
              s_add_u32 s{sT0}, s{sT0}, 6144
              v_lshlrev_b32 v{vB}, 5, v{self.vN}
              v_lshl_add_u32 v{vB}, v{self.vQ}, 2, v{vB}
              v_add_u32 v{vB}, s{sT0}, v{vB}""")
        srd(a, ptr(4), DM * NH * DH * 2)
        a(f"""s_mul_i32 s{sT0}, s{sH}, 384
              s_mul_i32 s{sT1}, s{sG}, 96
              s_add_u32 s{sT0}, s{sT0}, s{sT1}
              v_lshlrev_b32 v{self.vT2}, 2, v{self.vN}""")
        self.load_w(WA, WB, 10, 12288, sT0, self.vT2, M)
        self.mark(5)
        self.c_off(vCoff, 4)
        self.a_off(vAoff)
        self.zero(TA, 8)
        self.mark(1)
        self.wait_all_registered()
        own = lambda: self.dma12(vV, WS_VT, LV_OFF, [0])
        rest = lambda: self.dma12(vV, WS_VT, LV_OFF, [1, 2, 3])
        if not self.opt.get('early_stage'): self.stage_first(own, rest, 2, 1)
        a('s_barrier')
        self.mark(2)
        loop, end = a.newlabel('Lv'), a.newlabel('Lvend')
        self.a_poll(vAoff, [F], True)
        a.label(loop)
        self.stamp(0)
        for ks in range(10):
            a(f'ds_read_b128 v[{M+4*ks}:{M+4*ks+3}], v{vLin} offset:{LM + 1024*ks}')
        for ks in range(10):
            a(f's_waitcnt lgkmcnt({9-ks})')
            a(f'v_smfmac_f32_16x16x64_bf16 v[{TA}:{TA+3}], v[{M+4*ks}:{M+4*ks+3}], v[{WA+8*ks}:{WA+8*ks+7}], v{vIdx}')
            a(f'v_smfmac_f32_16x16x64_bf16 v[{TB}:{TB+3}], v[{M+4*ks}:{M+4*ks+3}], v[{WB+8*ks}:{WB+8*ks+7}], v{vIdx}')
            if ks == self.opt.get('v_bar', 8): a('s_barrier')
        a(f"""s_nop 7
              v_pk_add_f32 v[{TA}:{TA+1}], v[{TA}:{TA+1}], v[{TA+2}:{TA+3}]
              v_pk_add_f32 v[{TB}:{TB+1}], v[{TB}:{TB+1}], v[{TB+2}:{TB+3}]
              v_cvt_pk_bf16_f32 v{TA}, v{TA}, v{TA+1}
              v_cvt_pk_bf16_f32 v{TB}, v{TB}, v{TB+1}
              v_min_u32 v{TA}, -2, v{TA}
              v_min_u32 v{TB}, -2, v{TB}""")
        self.lstore([f'buffer_store_dword v{TA}, v{vB}, s[{sWS}:{sWS+3}], s{sB_C} offen',
                     f'buffer_store_dword v{TB}, v{vB}, s[{sWS}:{sWS+3}], s{sB_C} offen offset:16'])
        self.stamp(1)
        a('s_waitcnt vmcnt(2)')
        for k in range(12):
            a(f'ds_read_b128 v[{M+4*k}:{M+4*k+3}], v{vLin} offset:{LW5 + 1024*k}')
        self.zero(TA, 8)
        a('s_barrier')
        self.lstore([f'buffer_store_dword v{vSent}, v{vB}, s[{sWS}:{sWS+3}], s{sB_R} offen',
                     f'buffer_store_dword v{vSent}, v{vB}, s[{sWS}:{sWS+3}], s{sB_R} offen offset:16'])
        a(f"s_sleep {self.opt.get('d_sleep', 7)}" if self.opt.get('d_sleep', 7) else 's_nop 0')
        def o_prev():
            no0 = a.newlabel('Lvn0')
            a('s_waitcnt lgkmcnt(0)')
            a(f's_cmp_eq_u32 s{sSTEP}, 0')
            a(f's_cbranch_scc1 {no0}')
            o_store(1)
            a.label(no0)
        if not self.opt.get('o_late'): o_prev()
        self.stage(own, rest, 2, 1)
        if self.opt.get('o_late'): o_prev()
        if self.opt.get('fused'):
            nq = a.newlabel('Lvnq')
            a(f"""s_cmp_lt_u32 s{sSTEP}, {self.opt.get('of_all', 58)}
                  s_cbranch_scc1 {nq}
                  s_waitcnt vmcnt(0)""")
            self.o_flag(1)
            a.label(nq)
        a('s_waitcnt lgkmcnt(0)')
        self.stamp(5)
        a('s_barrier')
        self.stamp(2)
        self.wo_stage([(M, M + 24, TA, TB, 0)], vFrag, vIdx, F, vCoff, RR, end)
        self.stamp(3)
        self.zero(TA, 8)
        self.a_poll(vAoff, [F, PX, M + 40])
        a(f's_branch {loop}')
        a.label(end)
        a('s_waitcnt lgkmcnt(0)')
        a('s_barrier')
        o_store(0)
        a('s_waitcnt vmcnt(0)')
        self.o_flag(0)
        self.finish()
        self.emit_tail()

    def role_w7(self):
        a = self.a
        al = Alloc(1, 256)
        self.lanes(al)
        WV = al(80, 4)
        P = [(al(24, 4), al(24, 4), al(4, 4), al(4, 4), 0)]
        M = al(40, 4)
        TV = al(4, 4)
        SENT = al(4, 4); RR = al(2, 2)
        vFrag, vIdx, vB, vAoff, vK, vQx, vCoff, vCr = [al() for _ in range(8)]
        vSel = TV
        PX = al(24, 2)
        T0, T1 = self.vT0, self.vT1
        self.frag_addr(vFrag); self.idx_reg(vIdx)
        a(f"""v_lshlrev_b32 v{vK}, 4, v{self.vL}
              v_and_b32 v{T0}, 7, v{self.vL}
              v_lshlrev_b32 v{vQx}, 4, v{T0}
              v_lshrrev_b32 v{T0}, 5, v{self.vL}
              v_lshl_add_u32 v{vQx}, v{T0}, 10, v{vQx}
              v_bfe_u32 v{T0}, v{self.vL}, 3, 2
              v_lshl_add_u32 v{vQx}, v{T0}, 8, v{vQx}
              s_lshr_b32 s{sT0}, s{sG}, 1
              s_mul_i32 s{sT0}, s{sT0}, 6144
              s_and_b32 s{sT1}, s{sG}, 1
              s_lshl_b32 s{sT1}, s{sT1}, 7
              s_add_u32 s{sT0}, s{sT0}, s{sT1}
              v_add_u32 v{vQx}, s{sT0}, v{vQx}""")
        for k in range(4): a(f'v_mov_b32 v{SENT+k}, -1')
        a(f"""s_mul_i32 s{sT0}, s{sG}, 768
              s_add_u32 s{sT0}, s{sT0}, {6144 + 512}
              v_lshlrev_b32 v{vB}, 4, v{self.vN}
              v_lshl_add_u32 v{vB}, v{self.vQ}, 2, v{vB}
              v_add_u32 v{vB}, s{sT0}, v{vB}
              s_mul_i32 s{sT0}, s{sG}, 2560
              v_lshlrev_b32 v{vCr}, 4, v{self.vL}
              v_add_u32 v{vCr}, s{sT0}, v{vCr}""")
        self.c_off(vCoff, 3)
        srd(a, ptr(4), DM * NH * DH * 2)
        a(f"""s_mul_i32 s{sT0}, s{sH}, 384
              s_mul_i32 s{sT1}, s{sG}, 96
              s_add_u32 s{sT0}, s{sT0}, s{sT1}
              s_add_u32 s{sT0}, s{sT0}, 32
              v_and_b32 v{T0}, 14, v{self.vN}
              v_lshlrev_b32 v{self.vT2}, 1, v{T0}
              v_add_u32 v{self.vT2}, 32, v{self.vT2}
              v_and_b32 v{T0}, 1, v{self.vN}
              v_cmp_eq_u32 vcc, 1, v{T0}
              v_mov_b32 v{vSel}, s{sSELLO}
              v_mov_b32 v{T0}, s{sSELHI}
              s_nop 1
              v_cndmask_b32 v{vSel}, v{vSel}, v{T0}, vcc""")
        if self.opt.get('y_prio'): a('s_setprio 3')
        self.load_w(WV, None, 10, 12288, sT0, self.vT2, M, vSel)
        self.mark(5)
        self.a_off(vAoff)
        self.zero(TV, 4)
        for p in P: self.zero(p[2], 8)
        self.mark(1)
        self.wait_all_registered()
        assert P[0][1] == P[0][0] + 24
        for k in range(12):
            a(f'ds_read_b128 v[{P[0][0]+4*k}:{P[0][0]+4*k+3}], v{vK} offset:{1024*k}')
        a('s_waitcnt lgkmcnt(0)')
        def own():
            self.dma_q(vQx); self.dma12(vK, WS_K, LK_OFF, [0])
        rest = lambda: self.dma12(vK, WS_K, LK_OFF, [1, 2, 3])
        if not self.opt.get('early_stage'): self.stage_first(own, rest, 0, 2)
        a('s_barrier')
        self.mark(2)
        loop, end = a.newlabel('Lw7'), a.newlabel('Lw7end')
        self.a_poll(vAoff, [PX], True)
        a.label(loop)
        self.stamp(0)
        for ks in range(10):
            a(f'ds_read_b128 v[{M+4*ks}:{M+4*ks+3}], v{vK} offset:{LM + 1024*ks}')
        for ks in range(10):
            a(f's_waitcnt lgkmcnt({9-ks})')
            a(f'v_smfmac_f32_16x16x64_bf16 v[{TV}:{TV+3}], v[{M+4*ks}:{M+4*ks+3}], v[{WV+8*ks}:{WV+8*ks+7}], v{vIdx}')
            if ks == self.opt.get('w7_bar', 99): a('s_barrier')
        a(f"""s_nop 7
              v_pk_add_f32 v[{TV}:{TV+1}], v[{TV}:{TV+1}], v[{TV+2}:{TV+3}]
              v_cvt_pk_bf16_f32 v{TV}, v{TV}, v{TV+1}
              v_min_u32 v{TV}, -2, v{TV}""")
        self.lstore([f'buffer_store_dword v{TV}, v{vB}, s[{sWS}:{sWS+3}], s{sB_C} offen'])
        if self.opt.get('w7_bar', 99) > 9: a('s_barrier')
        self.stamp(1)
        self.zero(TV, 4)
        a('s_barrier')
        self.lstore([f'buffer_store_dword v{SENT}, v{vB}, s[{sWS}:{sWS+3}], s{sB_R} offen'])
        a(f"s_sleep {self.opt.get('d_sleep', 7)}" if self.opt.get('d_sleep', 7) else 's_nop 0')
        if self.opt.get('dma_time'): self.stamp(1)
        nf, yf = a.newlabel('Lw7nf'), a.newlabel('Lw7yf')
        a(f"""s_cmp_ge_u32 s{sSTEP}, {self.opt.get('of_all', 58)}
              s_cbranch_scc1 {nf}
              s_and_b32 s{sT0}, s{sSTEP}, {self.opt.get('of_every', 1) - 1}
              s_cmp_lg_u32 s{sT0}, {min(2, self.opt.get('of_every', 1) - 1)}
              s_cbranch_scc1 {nf}
              s_cmp_lt_u32 s{sSTEP}, 2
              s_cbranch_scc1 {nf}""")
        a.label(yf)
        self.o_flag(2)
        a.label(nf)
        self.stage(own, rest, 0, 2)
        if self.opt.get('dma_time'): a('s_waitcnt vmcnt(0)')
        self.stamp(5)
        a('s_barrier')
        self.stamp(2)
        self.wo_stage(P, vFrag, vIdx, M, vCoff, RR, end)
        self.stamp(3)
        for p in P: self.zero(p[2], 8)
        self.a_poll(vAoff, [PX, PX + 8, PX + 16])
        a(f's_branch {loop}')
        a.label(end)
        a('s_barrier')
        self.finish()
        self.emit_tail()

    def role_att(self):
        a = self.a
        al = Alloc(1, 256)
        self.lanes(al)
        TM = al(2, 2)
        WA, WB = al(24, 4), al(24, 4)
        TA, TB = al(4, 4), al(4, 4)
        KX = al(48, 4); X = al(24, 4); Y = al(24, 4)
        VX = al(16, 4); VM = al(8, 2)
        BI = al(12, 4); SS = al(12, 4)
        PP = al(6, 2); RR = PP
        OO = al(16, 4); LL = al(4, 4)
        ONES = al(4, 4)
        F = SS
        vFrag, vIdx, vAoff, vXY, vVM, vOw, vCoff, vLin, vQr, vBp, vRw, vOx = [al() for _ in range(12)]
        T0, T1, T2 = self.vT0, self.vT1, self.vT2
        sWP = sRED
        a(f's_sub_u32 s{sWP}, s{sW}, 4')
        self.frag_addr(vFrag); self.idx_reg(vIdx)
        self.c_off(vCoff, f's{sWP}')
        if self.opt.get('touch'): self.touch_weights()
        if self.opt.get('y_prio'): a('s_setprio 3')
        def mid():
            self.init_job(KX)
            arrive(a, 6, KX + 16)
            self.arrive_init(KX)
            self.mark(5)
        self.wo_weights(WA, WB, f's{sWP}', vAoff, T2, mid)
        nx = a.newlabel('Latnx')
        a(f"""s_cmp_ge_u32 s{sWP}, 2
              s_cbranch_scc1 {nx}
              s_add_u32 s{sA_P}, s{sWP}, 3""")
        self.wo_weights(KX, KX + 24, f's{sA_P}', vAoff, T2)
        a(f"""s_cmp_eq_u32 s{sWP}, 0
              s_cselect_b32 s{sT0}, 0, {LW5}
              v_lshlrev_b32 v{T0}, 4, v{self.vL}
              v_add_u32 v{T0}, s{sT0}, v{T0}""")
        for k in range(12):
            a(f'ds_write_b128 v{T0}, v[{KX+4*k}:{KX+4*k+3}] offset:{1024*k}')
        a('s_waitcnt lgkmcnt(0)')
        a.label(nx)
        if self.opt.get('early_stage'):
            vS, vQs = KX, KX + 1
            a(f"""v_lshlrev_b32 v{vS}, 4, v{self.vL}
                  v_and_b32 v{T0}, 7, v{self.vL}
                  v_lshlrev_b32 v{vQs}, 4, v{T0}
                  v_lshrrev_b32 v{T0}, 5, v{self.vL}
                  v_lshl_add_u32 v{vQs}, v{T0}, 10, v{vQs}
                  v_bfe_u32 v{T0}, v{self.vL}, 3, 2
                  v_lshl_add_u32 v{vQs}, v{T0}, 8, v{vQs}
                  s_lshr_b32 s{sT0}, s{sG}, 1
                  s_mul_i32 s{sT0}, s{sT0}, 6144
                  s_and_b32 s{sT1}, s{sG}, 1
                  s_lshl_b32 s{sT1}, s{sT1}, 7
                  s_add_u32 s{sT0}, s{sT0}, s{sT1}
                  v_add_u32 v{vQs}, s{sT0}, v{vQs}""")
            wait_registered(a, self.opt, T0, T1, self.vL)
            lq, lv2, ld = a.newlabel('Les'), a.newlabel('Les'), a.newlabel('Les')
            a(f"""s_cmp_eq_u32 s{sWP}, 2
                  s_cbranch_scc1 {lq}
                  s_cmp_eq_u32 s{sWP}, 1
                  s_cbranch_scc1 {lv2}""")
            self.stage_first(lambda: self.dma12(vS, WS_K, LK_OFF, [0]), lambda: self.dma12(vS, WS_K, LK_OFF, [1, 2, 3]), 1, 1)
            a(f's_branch {ld}')
            a.label(lv2)
            self.stage_first(lambda: self.dma12(vS, WS_VT, LV_OFF, [0]), lambda: self.dma12(vS, WS_VT, LV_OFF, [1, 2, 3]), 2, 1)
            a(f's_branch {ld}')
            a.label(lq)
            self.stage_first(lambda: self.dma_q(vQs), lambda: None, 0, 1)
            a.label(ld)
        self.a_off(vAoff)
        a(f"""v_lshlrev_b32 v{vXY}, 6, v{self.vN}
              v_lshl_add_u32 v{vXY}, v{self.vQ}, 4, v{vXY}
              s_lshl_b32 s{sT0}, s{sWP}, 10
              s_add_u32 s{sT0}, s{sT0}, 6144
              v_lshlrev_b32 v{vVM}, 4, v{self.vN}
              v_lshl_add_u32 v{vVM}, v{self.vQ}, 3, v{vVM}
              v_add_u32 v{vVM}, s{sT0}, v{vVM}
              v_lshlrev_b32 v{vLin}, 4, v{self.vL}
              s_lshl_b32 s{sT0}, s{sWP}, 11
              v_add_u32 v{vBp}, s{sT0}, v{vLin}
              v_and_b32 v{T0}, 7, v{self.vN}
              v_lshlrev_b32 v{vQr}, 4, v{T0}
              v_lshl_add_u32 v{vQr}, v{self.vQ}, 7, v{vQr}""")
        a(f"""v_lshlrev_b32 v{vRw}, 2, v{self.vL}
              v_add_u32 v{T1}, {LDUMMY}, v{vRw}
              v_add_u32 v{vRw}, {LR}, v{vRw}
              v_cmp_gt_u32 vcc, 8, v{self.vL}
              s_nop 1
              v_cndmask_b32 v{vRw}, v{T1}, v{vRw}, vcc""")
        a(f"""v_lshrrev_b32 v{T1}, 1, v{self.vQ}
              v_lshlrev_b32 v{vOw}, 7, v{T1}
              v_lshl_add_u32 v{vOw}, v{T0}, 4, v{vOw}
              v_and_b32 v{T1}, 1, v{self.vQ}
              v_lshl_add_u32 v{vOw}, v{T1}, 3, v{vOw}
              v_lshrrev_b32 v{T1}, 3, v{self.vN}
              v_mul_u32_u24 v{T1}, 3072, v{T1}
              v_add_u32 v{vOw}, v{vOw}, v{T1}
              s_lshl_b32 s{sT0}, s{sWP}, 10
              s_add_u32 s{sT0}, s{sT0}, {LO}
              v_add_u32 v{vOw}, s{sT0}, v{vOw}""")
        a(f"""s_lshl_b32 s{sT0}, s{sWP}, 10
              s_add_u32 s{sT0}, s{sT0}, {LOX}
              v_lshlrev_b32 v{vOx}, 7, v{T0}
              v_lshl_add_u32 v{vOx}, v{self.vQ}, 3, v{vOx}
              v_add_u32 v{vOx}, s{sT0}, v{vOx}""")
        a(f"""s_lshl_b32 s{sT0}, s{sG}, 3
              v_add_u32 v{T1}, s{sT0}, v{T0}
              v_cmp_gt_u32 vcc, 8, v{self.vN}
              v_mov_b32 v{T2}, 31
              s_nop 1
              v_cndmask_b32 v{T1}, v{T1}, v{T2}, vcc
              v_lshlrev_b32 v{T2}, 2, v{self.vQ}
              v_sub_u32 v{T1}, v{T1}, v{T2}
              v_mov_b32 v{T2}, 0xf149f2ca""")
        for tile in range(2):
            for r in range(4):
                a(f"""v_cmp_gt_i32 vcc, {16*tile + r}, v{T1}
                      v_mov_b32 v{BI+4*tile+r}, 0
                      s_nop 1
                      v_cndmask_b32 v{BI+4*tile+r}, v{BI+4*tile+r}, v{T2}, vcc""")
        a(f"""v_cmp_lt_u32 vcc, 1, v{self.vQ}
              v_mov_b32 v{BI+8}, 0
              s_nop 1
              v_cndmask_b32 v{BI+8}, v{BI+8}, v{T2}, vcc""")
        for r in range(1, 4): a(f'v_mov_b32 v{BI+8+r}, v{BI+8}')
        for k in range(4): a(f'v_mov_b32 v{ONES+k}, 0x3f803f80')
        self.zero(Y, 24); self.zero(VM, 8); self.zero(TA, 8)
        self.mark(1)
        self.wait_all_registered()
        def read_seg():
            a(f'v_add_u32 v{T0}, s{sLB}, v{vLin}')
            a(f'v_add_u32 v{T1}, s{sLB}, v{vQr}')
            a(f's_lshl_b32 s{sT0}, s{sWP}, 12')
            a(f'v_add_u32 v{T2}, s{sT0}, v{T0}')
            for k in range(12):
                a(f'ds_read_b128 v[{KX+4*k}:{KX+4*k+3}], v{T0} offset:{LK_OFF + 1024*k}')
            for ks in range(6):
                a(f'ds_read_b128 v[{X+4*ks}:{X+4*ks+3}], v{T1} offset:{LQ_OFF + 512*ks}')
            for t in range(4):
                a(f'ds_read_b128 v[{VX+4*t}:{VX+4*t+3}], v{T2} offset:{LV_OFF + 1024*t}')
        def vm_loads():
            a(f's_mov_b64 exec, s[{sML32}:{sML32+1}]')
            for t in range(4):
                a(f'buffer_load_dwordx2 v[{VM+2*t}:{VM+2*t+1}], v{vVM}, s[{sWS}:{sWS+3}], s{sB_C} offen offset:{256*t} sc1')
            a('s_mov_b64 exec, -1')
        a('s_barrier')
        self.mark(2)
        a(f's_mov_b32 s{sLB}, {LBUF}')
        read_seg()
        self.a_poll(vAoff, [F], True)
        loop, end = a.newlabel('Lat'), a.newlabel('Latend')
        lp, ok, vlp, vok, vrt = a.newlabel('LpB'), a.newlabel('LpBok'), a.newlabel('LpV'), a.newlabel('LpVok'), a.newlabel('LpVr')
        a.label(loop)
        if self.opt.get('trace2'): a(f's_memtime s[{sST+0}:{sST+1}]')
        a('s_barrier')
        if self.opt.get('trace2'): a(f's_memtime s[{sST+2}:{sST+3}]')
        if self.opt.get('b_sleep'): a(f"s_sleep {self.opt['b_sleep']}")
        if self.opt.get('fine'): self.stamp(0)
        self.poll2(vBp, sB_C, LQK, [OO, OO + 8][:self.opt.get('b_depth', 1)], 0, self.opt.get('b_gap', 0))
        if self.opt.get('trace2'): a(f's_memtime s[{sST+4}:{sST+5}]')
        if self.opt.get('vm_at') == -1: vm_loads()
        a(f's_mov_b64 exec, s[{sMN8}:{sMN8+1}]')
        a('s_waitcnt lgkmcnt(0)')
        a('s_barrier')
        for ks in range(6):
            a(f'ds_read_b128 v[{X+4*ks}:{X+4*ks+3}], v{vXY} offset:{LQK + 512*ks}')
        for ks in range(6):
            a(f'ds_read_b128 v[{Y+4*ks}:{Y+4*ks+3}], v{vXY} offset:{LQK + 3072 + 512*ks}')
        vm_loads()
        self.stamp(5)
        def smm(tile, ks):
            A = (KX, KX + 24, Y)[tile] + 4*ks
            c = BI + 4*tile if ks == 0 else SS + 4*tile
            a(f'v_mfma_f32_16x16x32_bf16 v[{SS+4*tile}:{SS+4*tile+3}], v[{A}:{A+3}], v[{X+4*ks}:{X+4*ks+3}], v[{c}:{c+3}]')
        for ks in range(6):
            a(f's_waitcnt lgkmcnt({11 - ks})')
            smm(0, ks); smm(1, ks)
        a('s_waitcnt lgkmcnt(0)')
        for ks in range(6):
            smm(2, ks)
            if ks == 3: a('s_waitcnt vmcnt(4)')
            if ks == 4: a(f'v_max3_f32 v{T0}, v{SS}, v{SS+1}, v{SS+2}'); a(f'v_max3_f32 v{T1}, v{SS+3}, v{SS+4}, v{SS+5}')
        self.stamp(1)
        a(f"""v_max3_f32 v{T0}, v{T0}, v{SS+6}, v{SS+7}
              v_max_f32 v{T0}, v{T0}, v{T1}
              s_nop 5
              v_max3_f32 v{T1}, v{SS+8}, v{SS+9}, v{SS+10}
              v_max3_f32 v{T0}, v{T0}, v{T1}, v{SS+11}
              v_mov_b32 v{T1}, v{T0}
              s_nop 1
              v_permlane32_swap_b32 v{T0}, v{T1}
              v_max_f32 v{T0}, v{T0}, v{T1}
              v_mov_b32 v{T1}, v{T0}
              s_nop 1
              v_permlane16_swap_b32 v{T0}, v{T1}
              v_max_f32 v{T0}, v{T0}, v{T1}
              v_mul_f32 v{TM}, s{sSCL}, v{T0}""")
        def pkfma(r):
            if self.opt.get('nopk'):
                for k in range(2): a(f'v_fma_f32 v{SS+r+k}, v{SS+r+k}, s{sSCL}, -v{TM}')
                return
            a(f'v_pk_fma_f32 v[{SS+r}:{SS+r+1}], v[{SS+r}:{SS+r+1}], s[{sSCL}:{sSCL+1}], v[{TM}:{TM+1}] op_sel_hi:[1,0,0] neg_lo:[0,0,1] neg_hi:[0,0,1]')
        for r in range(0, 8, 2): pkfma(r)
        for r in range(8): a(f'v_exp_f32 v{SS+r}, v{SS+r}')
        for r in range(8, 12, 2): pkfma(r)
        for r in range(4): a(f'v_cvt_pk_bf16_f32 v{PP+r}, v{SS+2*r}, v{SS+2*r+1}')
        a(f'v_exp_f32 v{SS+8}, v{SS+8}')
        a(f'v_exp_f32 v{SS+9}, v{SS+9}')
        a(f'v_mfma_f32_16x16x32_bf16 v[{LL}:{LL+3}], v[{ONES}:{ONES+3}], v[{PP}:{PP+3}], 0')
        a(f'v_exp_f32 v{SS+10}, v{SS+10}')
        a(f'v_mfma_f32_16x16x32_bf16 v[{OO}:{OO+3}], v[{VX}:{VX+3}], v[{PP}:{PP+3}], 0')
        a(f'v_exp_f32 v{SS+11}, v{SS+11}')
        a(f'v_mfma_f32_16x16x32_bf16 v[{OO+4}:{OO+7}], v[{VX+4}:{VX+7}], v[{PP}:{PP+3}], 0')
        a(f'v_cvt_pk_bf16_f32 v{PP+4}, v{SS+8}, v{SS+9}')
        a(f'v_cvt_pk_bf16_f32 v{PP+5}, v{SS+10}, v{SS+11}')
        a(f'v_mfma_f32_16x16x32_bf16 v[{OO+8}:{OO+11}], v[{VX+8}:{VX+11}], v[{PP}:{PP+3}], 0')
        a.label(vlp)
        a(f"""s_waitcnt vmcnt(0)
              v_max3_u32 v{T1}, v{VM}, v{VM+1}, v{VM+2}
              v_max3_u32 v{T2}, v{VM+3}, v{VM+4}, v{VM+5}
              v_mfma_f32_16x16x32_bf16 v[{OO+12}:{OO+15}], v[{VX+12}:{VX+15}], v[{PP}:{PP+3}], 0
              v_max3_u32 v{T1}, v{T1}, v{VM+6}, v{VM+7}
              v_max_u32 v{T1}, v{T1}, v{T2}
              v_cmp_eq_u32 vcc, -1, v{T1}
              s_cbranch_vccnz {vrt}""")
        a.label(vok)
        if self.opt.get('trace2'): a(f's_memtime s[{sST+6}:{sST+7}]')
        if not self.opt.get('fine'): self.stamp(0)
        a(f'v_mfma_f32_16x16x16_bf16 v[{LL}:{LL+3}], v[{ONES}:{ONES+1}], v[{PP+4}:{PP+5}], v[{LL}:{LL+3}]')
        for t in range(4):
            a(f'v_mfma_f32_16x16x16_bf16 v[{OO+4*t}:{OO+4*t+3}], v[{VM+2*t}:{VM+2*t+1}], v[{PP+4}:{PP+5}], v[{OO+4*t}:{OO+4*t+3}]')
        a(f"""s_nop 3
              v_rcp_f32 v{LL}, v{LL}""")
        for t in range(4):
            a(f'v_cvt_pk_bf16_f32 v{X+2*t}, v{OO+4*t}, v{OO+4*t+1}')
            a(f'v_cvt_pk_bf16_f32 v{X+2*t+1}, v{OO+4*t+2}, v{OO+4*t+3}')
            a(f'ds_write_b64 v{vOw}, v[{X+2*t}:{X+2*t+1}] offset:{256*t}')
            if t == 0: a(f'ds_write_b32 v{vRw}, v{LL}')
        a('s_waitcnt lgkmcnt(0)')
        a('s_barrier')
        self.stamp(2)
        skipwo = a.newlabel('Latsk')
        self.wo_stage([(WA, WB, TA, TB, 0)], vFrag, vIdx, F, vCoff, RR, skipwo)
        a.label(skipwo)
        if self.opt.get('trace2'): a(f's_memtime s[{sST+8}:{sST+9}]')
        if not self.opt.get('fine'): self.stamp(3)
        for t in range(4):
            for r in range(4):
                a(f'v_mul_f32 v{OO+4*t+r}, v{OO+4*t+r}, v{LL}')
            a(f'v_cvt_pk_bf16_f32 v{OO+4*t}, v{OO+4*t}, v{OO+4*t+1}')
            a(f'v_cvt_pk_bf16_f32 v{OO+4*t+1}, v{OO+4*t+2}, v{OO+4*t+3}')
        a(f's_mov_b64 exec, s[{sMH8}:{sMH8+1}]')
        for t in range(4):
            a(f'ds_write_b64 v{vOx}, v[{OO+4*t}:{OO+4*t+1}] offset:{32*t}')
        a('s_mov_b64 exec, -1')
        a(f"""s_cmp_eq_u32 s{sSTEP}, 63
              s_cbranch_scc1 {end}
              s_add_u32 s{sLB}, s{sLB}, {LBUF_SZ}
              s_cmp_eq_u32 s{sLB}, {LBUF + 3*LBUF_SZ}
              s_cselect_b32 s{sLB}, {LBUF}, s{sLB}""")
        if self.opt.get('trace2'):
            a(f"""s_waitcnt lgkmcnt(0)
                  s_lshl_b32 s{sT0}, s{sJ}, 4
                  s_add_u32 s{sT0}, s{sT0}, s{sC}
                  s_lshl_b32 s{sT0}, s{sT0}, 2
                  s_add_u32 s{sT0}, s{sT0}, s{sWP}
                  s_lshl_b32 s{sT0}, s{sT0}, 6
                  s_add_u32 s{sT0}, s{sT0}, s{sSTEP}
                  s_lshl_b32 s{sT0}, s{sT0}, 4
                  s_add_u32 s{sT0}, s{sT0}, {WS_DBG + 0x300000}""")
            for k in range(4):
                a(f's_sub_u32 s{sT1}, s{sST+2*k+2}, s{sST}' if k else f's_sub_u32 s{sT1}, s{sST}, s{sST+10}')
                a(f'v_mov_b32 v{LL+k}, s{sT1}')
            a(f's_mov_b32 s{sST+10}, s{sST+8}')
            a(f"""v_mov_b32 v{T0}, 0
                  s_mov_b64 exec, 1
                  buffer_store_dwordx4 v[{LL}:{LL+3}], v{T0}, s[{sWS}:{sWS+3}], s{sT0} offen
                  s_mov_b64 exec, -1
                  s_nop 1""")
        read_seg()
        self.zero(TA, 8)
        self.a_poll(vAoff, [F, OO, OO + 8])
        a(f's_branch {loop}')
        a.label(end)
        a('s_waitcnt lgkmcnt(0)')
        a('s_barrier')
        self.finish()
        a.label(vrt)
        vm_loads()
        self.retry(vlp, 1)
        a(f's_branch {vok}')
        self.emit_tail()

def emit_gates(a, sU, ntok, vL, R):
    G, acc, t1, t2, v4, Xr = R, R + 5, R + 6, R + 7, R + 8, R + 10
    a(f'v_lshlrev_b32 v{v4}, 2, v{vL}')
    srd(a, ptr(11), DM * 2)
    for i in range(5):
        a(f'buffer_load_dword v{G+i}, v{v4}, s[{sT}:{sT+3}], 0 offen offset:{256*i}')
    srd(a, ptr(0), S * DM * 2)
    a(f's_mul_i32 s{sT1}, s{sU}, 1280')
    for tk in range(ntok):
        for i in range(5):
            a(f'buffer_load_dword v{Xr+5*tk+i}, v{v4}, s[{sT}:{sT+3}], s{sT1} offen offset:{1280*tk + 256*i}')
    a('s_waitcnt vmcnt(0)')
    for tk in range(ntok):
        a(f'v_mov_b32 v{acc}, 0')
        for i in range(5):
            x = Xr + 5*tk + i
            a(f"""v_lshlrev_b32 v{t1}, 16, v{x}
                  v_lshlrev_b32 v{t2}, 16, v{G+i}
                  v_fmac_f32 v{acc}, v{t1}, v{t2}
                  v_and_b32 v{t1}, 0xffff0000, v{x}
                  v_and_b32 v{t2}, 0xffff0000, v{G+i}
                  v_fmac_f32 v{acc}, v{t1}, v{t2}""")
        for sh in (8, 4, 2, 1):
            a(f"""s_nop 1
                  v_add_f32_dpp v{acc}, v{acc}, v{acc} row_ror:{sh} row_mask:0xf bank_mask:0xf""")
        for sw in ('v_permlane16_swap_b32', 'v_permlane32_swap_b32'):
            a(f"""v_mov_b32 v{t1}, v{acc}
                  s_nop 1
                  {sw} v{acc}, v{t1}
                  v_add_f32 v{acc}, v{acc}, v{t1}""")
        a(f"""v_mul_f32 v{acc}, {hex(f32bits(-math.log2(math.e)))}, v{acc}
              v_exp_f32 v{acc}, v{acc}
              s_nop 0
              v_add_f32 v{acc}, 1.0, v{acc}
              v_rcp_f32 v{acc}, v{acc}
              v_mov_b32 v{t1}, 0
              s_lshl_b32 s{sT0}, s{sU}, 2
              s_add_u32 s{sT0}, s{sT0}, {WS_G + 4*tk}
              s_mov_b64 exec, 1
              buffer_store_dword v{acc}, v{t1}, s[{sWS}:{sWS+3}], s{sT0} offen sc1
              s_mov_b64 exec, -1""")

def arrive(a, wave, v):
    l = a.newlabel('Larr')
    a(f'''s_cmp_lg_u32 s{sW}, {wave}
          s_cbranch_scc1 {l}
          s_cmp_lg_u32 s{sARR}, 0
          s_cbranch_scc1 {l}
          s_mov_b64 exec, 1
          v_mov_b32 v{v}, 1
          v_mov_b32 v{v+1}, 32
          buffer_atomic_add v{v}, v{v+1}, s[{sDBG}:{sDBG+3}], 0 offen sc1
          s_mov_b64 exec, -1''')
    a.label(l)

def wait_registered(a, opt, T0, T1, vN, init=False):
    lp, done = a.newlabel('Lreg'), a.newlabel('Lregd')
    a(f'v_lshlrev_b32 v{T1}, 2, v{vN}')
    a.label(lp)
    a(f'''buffer_load_dword v{T0}, v{T1}, s[{sDBG}:{sDBG+3}], 0 offen sc0 sc1
          s_waitcnt vmcnt(0)
          v_readlane_b32 s{sT0}, v{T0}, 8
          v_readlane_b32 s{sT1}, v{T0}, {32 if init else 8}
          s_add_u32 s{sT0}, s{sT0}, s{sT1}
          s_cmp_ge_u32 s{sT0}, {256 + 384 if init else 512}
          s_cbranch_scc1 {done}
          s_sleep {opt.get('r_sleep', 24)}
          s_sub_u32 s{sBUD}, s{sBUD}, 1
          s_cbranch_scc0 {lp}
          s_mov_b32 s{sBUD}, 0''')
    a.label(done)
    a(f'''v_readlane_b32 s{sPOL}, v{T0}, 34
          v_cmp_ne_u32 vcc, 32, v{T0}
          s_and_b32 s{sPOL}, s{sPOL}, 1
          s_and_b32 s{sT0}, vcc_lo, 0xf
          s_and_b32 s{sT1}, vcc_hi, 0xf00
          s_or_b32 s{sT0}, s{sT0}, s{sT1}
          s_cselect_b32 s{sMIX}, 1, {1 if opt.get('force_mixed') else 0}''')

def emit_entry(a, opt, exit_label):
    a(f'''s_cmp_ge_u32 s2, 256
          s_cbranch_scc1 {exit_label}
          s_load_dwordx16 s[16:31], s[0:1], 0
          s_load_dwordx8 s[32:39], s[0:1], 64
          s_load_dwordx4 s[40:43], s[0:1], 96
          s_load_dwordx2 s[44:45], s[0:1], 112
          v_lshrrev_b32 v1, 6, v0
          s_getreg_b32 s{sJ}, hwreg(HW_REG_XCC_ID)
          v_readfirstlane_b32 s{sW}, v1
          s_and_b32 s{sJ}, s{sJ}, 15
          s_min_u32 s{sJ}, s{sJ}, 10
          s_cmp_lt_u32 s{sJ}, 8
          s_cselect_b32 s{sJ}, s{sJ}, 10
          s_mov_b32 s{sBUD}, {opt.get('budget', 1 << 20)}
          s_mov_b32 s{sSTEP}, 0
          s_mov_b32 s{sCS}, 0
          s_mov_b32 s{sPOL}, 0
          s_mov_b64 s[98:99], 0
          s_mov_b64 s[100:101], 0
          s_mov_b32 s{sMIX}, {1 if opt.get('force_mixed') else 0}
          s_mov_b32 s{sMN8}, 0x00ff00ff
          s_mov_b32 s{sMN8+1}, 0x00ff00ff
          s_mov_b32 s{sMH8}, 0xff00ff00
          s_mov_b32 s{sMH8+1}, 0xff00ff00
          s_mov_b32 s{sML32}, -1
          s_mov_b32 s{sML32+1}, 0
          s_mov_b32 s{sSELLO}, 0x05040100
          s_mov_b32 s{sSELHI}, 0x07060302
          s_mov_b32 s{sSCL}, {hex(f32bits(DH ** -0.5 * math.log2(math.e)))}
          s_waitcnt lgkmcnt(0)
          s_mov_b32 s{sWS}, s{ptr(14)}
          s_mov_b32 s{sWS+1}, s{ptr(14)+1}
          s_mov_b32 s{sWS+2}, {WS_SIZE}
          s_mov_b32 s{sWS+3}, 0x20000
          s_mov_b32 s{sDBG}, s{ptr(13)}
          s_mov_b32 s{sDBG+1}, s{ptr(13)+1}
          s_mov_b32 s{sDBG+2}, 256
          s_mov_b32 s{sDBG+3}, 0x20000''')
    if opt.get('prof'):
        a(f's_memrealtime s[{sST}:{sST+1}]')
        a('s_waitcnt lgkmcnt(0)')
    if opt.get('fake_xcc') == 1:
        a(f'''s_lshr_b32 s{sJ}, s2, 5''')
    if opt.get('fake_xcc') == 2:
        a(f'''s_cmp_lt_u32 s2, 200
              s_cselect_b32 s{sJ}, s{sJ}, 3
              s_cmp_lt_u32 s2, 250
              s_cselect_b32 s{sJ}, s{sJ}, 10''')
    l1, l2 = a.newlabel('Le'), a.newlabel('Le')
    def sweep():
        ls = a.newlabel('Lsw')
        a(f'''s_lshl_b32 s{sT0}, s{sC}, 3
              s_add_u32 s{sT0}, s{sT0}, s{sW}
              s_cmp_ge_u32 s{sT0}, 240
              s_cbranch_scc1 {ls}
              s_mov_b32 m0, {SWEEP_LDS}
              v_and_b32 v9, 63, v0
              v_lshlrev_b32 v9, 4, v9
              v_add_u32 v10, 1024, v9
              v_add_u32 v11, {12288 + 512}, v9
              v_add_u32 v12, {12288 - 512}, v9
              v_cmp_gt_u32 vcc, 512, v9
              s_mul_i32 s{sT1}, s{sT0}, 52429
              s_lshr_b32 s{sT1}, s{sT1}, 22
              v_cndmask_b32 v10, v12, v10, vcc
              s_cmp_eq_u32 s{sT1}, 1
              s_cselect_b32 s{sT}, s{ptr(3)}, s{ptr(2)}
              s_cselect_b32 s{sT+1}, s{ptr(3)+1}, s{ptr(2)+1}
              s_cmp_eq_u32 s{sT1}, 2
              s_cselect_b32 s{sT}, s{ptr(4)}, s{sT}
              s_cselect_b32 s{sT+1}, s{ptr(4)+1}, s{sT+1}
              s_mov_b32 s{sT+2}, {DM*NH*DH*2}
              s_mov_b32 s{sT+3}, 0x20000
              s_mul_i32 s{sT1}, s{sT1}, 80
              s_sub_u32 s{sT1}, s{sT0}, s{sT1}
              s_mul_i32 s{sT1}, s{sT1}, {8*12288}
              s_mul_i32 s{sT2}, s{sJ}, 1536
              s_add_u32 s{sT1}, s{sT1}, s{sT2}''')
        for rp in range(4):
            for v in (9, 10, 11):
                a(f'buffer_load_dwordx4 v{v}, s[{sT}:{sT+3}], s{sT1} offen lds')
            if rp < 3: a(f's_add_u32 s{sT1}, s{sT1}, {2*12288}')
        srd(a, ptr(5), NH * DH * DM * 2)
        a(f'''s_mul_i32 s{sT1}, s{sJ}, {4*DH*DM*2}
              s_lshl_b32 s{sT0}, s{sT0}, 12
              s_add_u32 s{sT1}, s{sT1}, s{sT0}''')
        for k in range(4):
            a(f'buffer_load_dwordx4 v9, s[{sT}:{sT+3}], s{sT1} offen offset:{1024*k} lds')
        a.label(ls)
    a(f'''s_cmp_lg_u32 s{sW}, 0
          s_cbranch_scc1 {l1}
          s_mov_b64 exec, 1
          v_mov_b32 v2, 1
          s_lshl_b32 s{sT0}, s{sJ}, 2
          s_and_b32 s{sT1}, s{sJ}, 12
          s_cmp_eq_u32 s{sT1}, 4
          s_cselect_b32 s{sT1}, 144, 0
          s_add_u32 s{sT0}, s{sT0}, s{sT1}
          v_mov_b32 v3, s{sT0}
          buffer_atomic_add v2, v3, s[{sDBG}:{sDBG+3}], 0 offen sc0 sc1
          s_mov_b64 exec, -1''')
    a.label(l1)
    l3, l4, l5, l6, l7 = [a.newlabel('Le') for _ in range(5)]
    a(f'''s_cmp_lg_u32 s{sW}, 1
          s_cbranch_scc1 {l5}
          s_mov_b64 exec, 1
          v_mov_b32 v2, 0
          v_mov_b32 v3, 0
          v_mov_b32 v4, 0
          v_mov_b32 v5, 0
          s_lshl_b32 s{sT0}, s2, 4
          s_add_u32 s{sT0}, s{sT0}, {WS_FLAG}
          buffer_store_dwordx4 v[2:5], v2, s[{sWS}:{sWS+3}], s{sT0} offen sc1
          s_mov_b64 exec, -1''')
    a.label(l5)
    a(f'''s_waitcnt vmcnt(0)
          s_cmp_lg_u32 s{sW}, 0
          s_cbranch_scc1 {l3}
          s_mov_b64 exec, 1
          v_readfirstlane_b32 s{sT0}, v2
          s_cmp_ge_u32 s{sJ}, 8
          s_cselect_b32 s{sT0}, 32, s{sT0}
          s_cmp_lt_u32 s{sT0}, 32
          s_cbranch_scc1 {l6}
          v_mov_b32 v2, 1
          v_mov_b32 v3, 36
          buffer_atomic_add v2, v3, s[{sDBG}:{sDBG+3}], 0 offen sc0 sc1
          s_waitcnt vmcnt(0)
          v_add_u32 v2, 32, v2''')
    a.label(l6)
    l8 = a.newlabel('Le')
    a(f'''v_mov_b32 v4, 0
          s_or_b32 s{sT0}, s{sT0}, s{sJ}
          s_cmp_lg_u32 s{sT0}, 0
          s_cbranch_scc1 {l8}
          s_lshr_b32 s{sT0}, s2, 6
          s_lshl_b32 s{sT0}, s{sT0}, 14
          s_and_b32 s{sT1}, s2, 63
          s_lshl_b32 s{sT1}, s{sT1}, 7
          s_add_u32 s{sT0}, s{sT0}, s{sT1}
          s_add_u32 s{sT0}, s{sT0}, {WS_RC + RC_PROBE}
          s_add_u32 s{sT1}, s{sT0}, 8192
          s_mov_b32 s{sT2}, -1
          s_mov_b32 s{sT3}, -1''')
    for rnd in range(2):
        for cp in range(2):
            a(f'''v_mov_b32 v5, 0
                  s_memtime s[98:99]
                  s_waitcnt lgkmcnt(0)
                  buffer_atomic_add v5, v4, s[{sWS}:{sWS+3}], s{sT1 if cp else sT0} offen sc0 sc1
                  s_waitcnt vmcnt(0)
                  s_memtime s[100:101]
                  s_waitcnt lgkmcnt(0)
                  s_sub_u32 s98, s100, s98
                  s_min_u32 s{sT3 if cp else sT2}, s{sT3 if cp else sT2}, s98''')
    a(f'''s_mov_b64 s[98:99], 0
          s_mov_b64 s[100:101], 0
          s_cmp_lt_u32 s{sT3}, s{sT2}
          s_cselect_b32 s{sT2}, 0x15, 0x0a
          v_mov_b32 v4, s{sT2}''')
    a(f'''v_mov_b32 v5, 136
          buffer_store_dword v4, v5, s[{sDBG}:{sDBG+3}], 0 offen sc1
          s_waitcnt vmcnt(0)''')
    a.label(l8)
    a(f'''v_mov_b32 v3, 0
          ds_write_b32 v3, v2
          s_mov_b64 exec, -1
          s_waitcnt lgkmcnt(0)''')
    a.label(l3)
    a(f'''s_barrier
          v_mov_b32 v3, 0
          ds_read_b32 v2, v3
          s_mov_b32 s{sARR}, 0
          s_waitcnt lgkmcnt(0)
          v_readfirstlane_b32 s{sC}, v2
          s_barrier
          s_cmp_lt_u32 s{sC}, 32
          s_cbranch_scc1 {l7}''')
    arrive(a, 0, 4)
    a(f's_mov_b32 s{sARR}, 1')
    a('v_and_b32 v4, 63, v0')
    wait_registered(a, opt, 2, 3, 4)
    a(f's_sub_u32 s{sT1}, s{sC}, 32')
    a(f's_mov_b32 s{sJ}, 0')
    a(f's_mov_b32 s{sC}, 0')
    for x in range(8):
        a(f'''v_readlane_b32 s{sT0}, v2, {x if x < 4 else 36 + x}
              s_min_u32 s{sT0}, s{sT0}, 32
              s_sub_u32 s{sT2}, 32, s{sT0}
              s_add_u32 s{sT0}, s{sT0}, s{sT1}
              s_cmp_lt_u32 s{sT1}, s{sT2}
              s_cselect_b32 s{sJ}, {x}, s{sJ}
              s_cselect_b32 s{sC}, s{sT0}, s{sC}
              s_sub_u32 s{sT1}, s{sT1}, s{sT2}''')
    a.label(l7)
    a(f'''s_lshr_b32 s{sT0}, s{sC}, 4
          s_lshr_b32 s{sT1}, s{sJ}, 2
          s_and_b32 s{sJ}, s{sJ}, 3
          s_lshl_b32 s{sJ}, s{sJ}, 1
          s_add_u32 s{sJ}, s{sJ}, s{sT0}
          s_and_b32 s{sC}, s{sC}, 15
          s_lshl_b32 s{sT1}, s{sT1}, 4
          s_add_u32 s{sC}, s{sC}, s{sT1}''')
    if opt.get('prof'):
        a(f's_memrealtime s[{sST+8}:{sST+9}]')
        a('s_waitcnt lgkmcnt(0)')

import struct
def f32bits(x): return struct.unpack('<I', struct.pack('<f', x))[0]

def emit_chain_body(a, opt):
    ch = Chain(a, opt)
    lv, l7, lat = a.newlabel('Lrole_v'), a.newlabel('Lrole_w7'), a.newlabel('Lrole_att')
    a(f'''s_lshr_b32 s{sH}, s{sC}, 2
          s_lshl_b32 s{sT0}, s{sJ}, 2
          s_add_u32 s{sH}, s{sH}, s{sT0}
          s_and_b32 s{sG}, s{sC}, 3
          s_setprio 2
          s_cmp_eq_u32 s{sW}, 3
          s_cbranch_scc1 {lv}
          s_cmp_eq_u32 s{sW}, 7
          s_cbranch_scc1 {l7}
          s_cmp_ge_u32 s{sW}, 4
          s_cbranch_scc1 {lat}''')
    pr = opt.get('prios', [2, 2, 2, 2])
    ch.prio = pr[0]; ch.role_qk()
    a.label(lv); ch.prio = pr[1]; ch.role_v()
    a.label(l7); ch.prio = pr[2]; ch.role_w7()
    a.label(lat); ch.prio = pr[3]; ch.role_att()
```

```python
from asmlib import *
from layout import *
from chain import (sWS, sDBG, sT, ptr, sW, sJ, sC, sMIX, sBUD, sT0, sT1, sT2, sT3, f32bits, wait_registered, emit_gates, SWEEP_LDS, sPOL, srd, arrive)
import math

XB, WB_OFF, WSZ = 32768, 65536, 24576
STAGE = XB
GEMM1_LDS = WB_OFF + 3 * WSZ

sX = 56
sWD = 60
sTile, sXo, sWo, sWrs, sKind, sOut, sNK, sNOut, sIt, sM0x, sM0w, sWstep = 64, 65, 66, 67, 68, 70, 71, 72, 73, 74, 75, 47
sFlagP = 80
sNFlag = 81
sC1, sC2 = 98, 99
sXoN, sWrd, sWwr = 100, 101, 97

class Gemm1:
    def __init__(self, a, opt, nworkers, rank0):
        self.a, self.opt, self.NW, self.rank0 = a, opt, nworkers, rank0
        self.tail = []
        self.inloop = False
        self.pending = []

    def lstore(self, insts, nt=False, cross=False):
        a = self.a
        if cross:
            for i in insts: a(i + (' sc1' if i.startswith('buffer_') else ''))
            return
        slow, back = a.newlabel('Lgslow'), a.newlabel('Lgback')
        a(f's_cmp_lg_u32 s{sMIX}, 0')
        a(f's_cbranch_scc1 {slow}')
        for i in insts: a(i + (' nt' if nt and i.startswith('buffer_') else ''))
        a.label(back)
        self.tail.append((slow, [i + ' sc1' if i.startswith('buffer_') else i for i in insts], back))

    def emit_tail(self):
        a = self.a
        for slow, insts, back in self.tail:
            a.label(slow)
            for i in insts: a(i)
            a(f's_branch {back}')
        self.tail = []

    def decode(self):
        a = self.a
        lf, ln, ld = a.newlabel('Ldf'), a.newlabel('Ldn'), a.newlabel('Ldd')
        a(f'''s_cmp_ge_u32 s{sTile}, 112
              s_cbranch_scc1 {ln}
              s_cmp_ge_u32 s{sTile}, 96
              s_cbranch_scc1 {lf}
              s_mul_i32 s{sT0}, s{sTile}, 43691
              s_lshr_b32 s{sT0}, s{sT0}, 19
              s_mul_i32 s{sT1}, s{sT0}, 12
              s_sub_u32 s{sT1}, s{sTile}, s{sT1}
              s_lshr_b32 s{sNK}, s{sT1}, 2
              s_and_b32 s{sT1}, s{sT1}, 3
              s_lshl_b32 s{sT2}, s{sJ}, 2
              s_add_u32 s{sT1}, s{sT1}, s{sT2}
              s_mul_i32 s{sXoN}, s{sT0}, {256*1280}
              s_mul_i32 s{sWo}, s{sT1}, 384
              s_mov_b32 s{sWrs}, 12288
              s_cmp_eq_u32 s{sNK}, 1
              s_cselect_b32 s{sWD}, s{ptr(3)}, s{ptr(2)}
              s_cselect_b32 s{sWD+1}, s{ptr(3)+1}, s{ptr(2)+1}
              s_cmp_eq_u32 s{sNK}, 2
              s_cselect_b32 s{sWD}, s{ptr(4)}, s{sWD}
              s_cselect_b32 s{sWD+1}, s{ptr(4)+1}, s{sWD+1}
              s_mov_b32 s{sWD+2}, {DM*NH*DH*2}
              s_mul_i32 s{sNOut}, s{sNK}, {WS_K}
              s_mul_i32 s{sT2}, s{sT1}, {2048*384}
              s_add_u32 s{sNOut}, s{sNOut}, s{sT2}
              s_mul_i32 s{sT2}, s{sT0}, {256*384}
              s_add_u32 s{sNOut}, s{sNOut}, s{sT2}
              s_mul_i32 s{sT2}, s{sW}, 3
              s_lshr_b32 s{sT3}, s{sT2}, 2
              s_branch {ld}''')
        a.label(lf)
        a(f'''s_sub_u32 s{sT1}, s{sTile}, 96
              s_lshr_b32 s{sT0}, s{sT1}, 1
              s_and_b32 s{sT1}, s{sT1}, 1
              s_mov_b32 s{sNK}, 3
              s_mul_i32 s{sXoN}, s{sT0}, {256*1280}
              s_mul_i32 s{sWo}, s{sJ}, 384
              s_mul_i32 s{sT2}, s{sT1}, 192
              s_add_u32 s{sWo}, s{sWo}, s{sT2}
              s_mov_b32 s{sWrs}, 3072
              s_cmp_ge_u32 s{sW}, 4
              s_cselect_b32 s{sWD}, s{ptr(9)}, s{ptr(8)}
              s_cselect_b32 s{sWD+1}, s{ptr(9)+1}, s{ptr(8)+1}
              s_mov_b32 s{sWD+2}, {DM*DF*2}
              s_mul_i32 s{sNOut}, s{sT0}, {8*98304}
              s_lshl_b32 s{sT2}, s{sWo}, 4
              s_add_u32 s{sNOut}, s{sNOut}, s{sT2}
              s_add_u32 s{sNOut}, s{sNOut}, {WS_H}
              s_and_b32 s{sT2}, s{sW}, 3
              s_mul_i32 s{sT2}, s{sT2}, 3
              s_lshr_b32 s{sT3}, s{sT2}, 2
              s_branch {ld}''')
        a.label(ln)
        a(f'''s_mov_b32 s{sNK}, 4
              s_mov_b32 s{sWD+2}, 0
              s_mov_b32 s{sT2}, 0
              s_mov_b32 s{sT3}, 0''')
        a.label(ld)
        if self.opt.get('g_hit'):
            a(f's_mov_b32 s{sXoN}, 0')
            a(f's_mov_b32 s{sWo}, 0')
            a(f's_mov_b32 s{sWD}, s{ptr(2)}')
            a(f's_mov_b32 s{sWD+1}, s{ptr(2)+1}')
        for ii in range(3):
            a(f'''s_add_u32 s{sT0}, s{sT2}, {ii}
                  s_lshr_b32 s{sT1}, s{sT0}, 2
                  s_and_b32 s{sT0}, s{sT0}, 3
                  s_lshl_b32 s{sT0}, s{sT0}, 4
                  s_mul_i32 s{sT0}, s{sT0}, s{sWrs}
                  s_lshl_b32 s{sT1}, s{sT1}, 6
                  s_add_u32 s{sT0}, s{sT0}, s{sT1}
                  s_add_u32 s{self.sP+ii}, s{sT0}, s{sWo}''')
        a(f'''s_mul_i32 s{sT0}, s{sW}, {32*1280}
              s_add_u32 s{sXoN}, s{sXoN}, s{sT0}
              s_lshl_b32 s{sWstep}, s{sWrs}, 6
              v_mul_lo_u32 v{self.vWg}, v{self.vL2}, s{sWrs}
              v_add_u32 v{self.vWg}, v{self.vWg}, v{self.vL3}''')

    def dma_x(self, buf):
        a = self.a
        for ii in range(4):
            a(f's_add_u32 m0, s{sM0x}, {buf*STAGE + ii*1024}')
            a(f's_add_u32 s{sT0}, s{sXo}, {ii*10240}' if ii else 's_nop 0')
            a(f'buffer_load_dwordx4 v{self.vXg + (ii & 1)}, s[{sX}:{sX+3}], s{sT0 if ii else sXo} offen lds')
        a(f's_add_u32 s{sXo}, s{sXo}, 128')

    def rot(self, r):
        self.a(f'''s_add_u32 s{r}, s{r}, {WSZ}
                   s_cmp_eq_u32 s{r}, {3*WSZ}
                   s_cselect_b32 s{r}, 0, s{r}''')

    def dma_w(self):
        a = self.a
        a(f's_add_u32 s{sT1}, s{sM0w}, s{sWwr}')
        for ii in range(3):
            a(f's_add_u32 m0, s{sT1}, {ii*1024}')
            a('s_nop 0')
            a(f'buffer_load_dwordx4 v{self.vWg}, s[{sWD}:{sWD+3}], s{self.sP+ii} offen lds')
            a(f's_add_u32 s{self.sP+ii}, s{self.sP+ii}, s{sWstep}')
        self.rot(sWwr)

    def dma(self, buf):
        if self.opt.get('g_nodma') and self.inloop: return
        self.dma_x(buf)
        self.dma_w()

    def reads(self, var, buf, kk, fs):
        a = self.a
        MT, NT = var
        F = self.F + fs * 28
        xa = (self.vXr if MT == 2 else self.vXr1) + buf * 4 + kk
        out = []
        for mt in range(MT):
            out.append(f'ds_read_b128 v[{F+4*mt}:{F+4*mt+3}], v{xa} offset:{4096*mt}')
        wa = self.vWc
        for nt in range(NT):
            for j in range(2):
                r = F + 4*MT + 4*nt + 2*j
                out.append(f'ds_read_b64_tr_b16 v[{r}:{r+1}], v{wa} offset:{4096*nt + 1024*kk + 256*j}')
        return out

    def mfmas(self, var, swap, fs, first):
        MT, NT = var
        F = self.F + fs * 28
        out = []
        for mt in range(MT):
            for nt in range(NT):
                acc = self.ACC + 16 * (mt * NT + nt)
                x = f'v[{F+4*mt}:{F+4*mt+3}]'; w = f'v[{F+4*MT+4*nt}:{F+4*MT+4*nt+3}]'
                A, B = (x, w) if swap else (w, x)
                c = '0' if first else f'v[{acc}:{acc+15}]'
                if self.opt.get('g_fake16') and not first:
                    q = acc + 8 * fs
                    out.append(f'v_mfma_f32_16x16x32_bf16 v[{q}:{q+3}], {A}, {B}, v[{q}:{q+3}]\nv_mfma_f32_16x16x32_bf16 v[{q+4}:{q+7}], {B}, {A}, v[{q+4}:{q+7}]')
                    continue
                out.append(f'v_mfma_f32_32x32x16_bf16 v[{acc}:{acc+15}], {A}, {B}, {c}')
        return out

    def interleave(self, mf, other):
        a = self.a
        n = len(mf); per = (len(other) + n - 1) // n if other else 0
        k = 0
        for m in mf:
            a(m)
            for o in other[k:k + per]: a(o)
            k += per
        for o in other[k:]: a(o)

    def stage_top(self, var=None, full=0):
        a = self.a
        if var is not None:
            a(f'v_add_u32 v{self.vWn}, s{sWrd}, v{self.vWr if var[0] == 2 else self.vWr1}')
            self.rot(sWrd)
        a(f's_waitcnt vmcnt({full}) lgkmcnt(0)')
        if var is not None: a(f'v_mov_b32 v{self.vWc}, v{self.vWn}')
        a('s_barrier')

    def tile_loop(self, var, swap, name):
        a = self.a
        nr = var[0] + 2 * var[1]
        loop = a.newlabel('L' + name)
        self.stage_top(var, 15)
        if var == (1, 6) and self.opt.get('fused'):
            l = a.newlabel('Lgg')
            a(f'''s_cmp_lg_u32 s{sW}, 1
                  s_cbranch_scc1 {l}
                  v_mov_b32 v{self.vT0}, 132
                  s_mov_b64 exec, 1
                  buffer_atomic_add v{self.vOne}, v{self.vT0}, s[{sDBG}:{sDBG+3}], 0 offen sc1
                  s_mov_b64 exec, -1''')
            a.label(l)
        for r in self.reads(var, 0, 0, 0): a(r)
        self.dma(1)
        def body(buf, kstart_first):
            for kk in range(3):
                rd = self.reads(var, buf, kk + 1, (kk + 1) & 1)
                a(f's_waitcnt lgkmcnt(0)')
                self.interleave(self.mfmas(var, swap, kk & 1, kstart_first and kk == 0), rd)
        body(0, True)
        a(f's_mov_b32 s{sIt}, 0')
        a.label(loop)
        for buf in (1, 0):
            self.stage_top(var, 3)
            if buf == 1:
                nf = a.newlabel('Lgnf')
                a(f's_cmp_lg_u32 s{sIt}, 0')
                a(f's_cbranch_scc1 {nf}')
                self.after_top()
                a.label(nf)
            rd = self.reads(var, buf, 0, 0)
            self.interleave(self.mfmas(var, swap, 1, False), rd)
            skip = a.newlabel('Lgn')
            if buf == 0:
                a(f's_cmp_lg_u32 s{sIt}, 3')
                a(f's_cbranch_scc1 {skip}')
                a(f's_add_u32 s{sTile}, s{sTile}, {self.NW}')
                self.decode()
            else:
                a(f's_cmp_eq_u32 s{sIt}, 4')
                a(f's_cselect_b32 s{sXo}, s{sXoN}, s{sXo}')
            a.label(skip)
            self.dma(buf ^ 1)
            if self.opt.get('g_slow'):
                sk = a.newlabel('Lgs')
                a(f's_cmp_eq_u32 s{sFlagP}, 0')
                a(f's_cbranch_scc1 {sk}')
                a(f"s_sleep {self.opt['g_slow']}")
                a.label(sk)
            body(buf, False)
            if buf == 1:
                a(f's_cmp_eq_u32 s{sIt}, 4')
                a(f's_cbranch_scc1 {name}_done')
        a(f's_add_u32 s{sIt}, s{sIt}, 1')
        a(f's_branch {loop}')
        a.label(f'{name}_done')
        a('s_waitcnt lgkmcnt(0)')
        for m in self.mfmas(var, swap, 1, False): a(m)
        a('s_nop 7'); a('s_nop 3')
        if self.opt.get('fused'):
            l = a.newlabel('Lgreg')
            a(f's_cmp_lg_u32 s{sFlagP}, 0')
            a(f's_cbranch_scc1 {l}')
            if self.opt.get('prof'):
                a('s_memrealtime s[88:89]'); a('s_waitcnt lgkmcnt(0)')
            a(f'v_and_b32 v{self.vT2}, 63, v0')
            wait_registered(a, self.opt, self.vT0, self.vT1, self.vT2)
            a.label(l)

    def after_top(self):
        if not self.opt.get('fused'): return
        a = self.a
        l = a.newlabel('Lgf')
        a(f'''s_cmp_eq_u32 s{sFlagP}, 0
              s_cbranch_scc1 {l}
              s_cmp_lg_u32 s{sW}, 0
              s_cbranch_scc1 {l}
              s_mov_b64 exec, 1''')
        self.lstore([f'buffer_store_dword v{self.vOne}, v{self.vZero}, s[{sWS}:{sWS+3}], s{sFlagP} offen'], cross=True)
        a('s_mov_b64 exec, -1')
        a.label(l)

    def emit(self, done_label):
        a = self.a
        al = Alloc(1, 256)
        self.ACC = al(96, 2); self.F = al(56, 2)
        self.vXg = al(2); self.vWg = al()
        self.vXr = al(8); self.vXr1 = al(8); self.vWr = al(); self.vWr1 = al(); self.vWc = al(); self.vWn = al()
        self.vL2, self.vL3 = al(), al()
        vL, vT0, vT1, vT2 = al(), al(), al(), al()
        vQK, vV, vH = al(), al(), al()
        self.vT0, self.vT1, self.vT2 = vT0, vT1, vT2
        self.vOne, self.vZero = al(), al()
        self.sP = 94
        a(f'''v_and_b32 v{vL}, 63, v0
              v_mov_b32 v{self.vOne}, 1
              v_mov_b32 v{self.vZero}, 0
              s_mov_b32 s{sX}, s{ptr(0)}
              s_mov_b32 s{sX+1}, s{ptr(0)+1}
              s_mov_b32 s{sX+2}, {S*DM*2}
              s_mov_b32 s{sX+3}, 0x20000
              s_mov_b32 s{sWD}, s{ptr(2)}
              s_mov_b32 s{sWD+1}, s{ptr(2)+1}
              s_mov_b32 s{sWD+3}, 0x20000
              s_mov_b32 s{sWrs}, 0
              s_mov_b32 s{sWo}, 0
              s_mov_b32 s{sXo}, 0
              s_mov_b32 s{sXoN}, 0
              s_mov_b32 s{sWrd}, 0
              s_mov_b32 s{sWwr}, 0
              s_mov_b32 s{sNOut}, 0
              s_mov_b32 s{sFlagP}, 0
              s_mov_b32 s{sC1}, {hex(f32bits(-2 * math.sqrt(2 / math.pi) * math.log2(math.e)))}
              s_mov_b32 s{sC2}, {hex(f32bits(-2 * math.sqrt(2 / math.pi) * math.log2(math.e) * 0.044715))}
              s_lshl_b32 s{sM0x}, s{sW}, 12
              s_mul_i32 s{sM0w}, s{sW}, 3072
              s_add_u32 s{sM0w}, s{sM0w}, {WB_OFF}
              s_sub_u32 s{sTile}, s{sC}, {self.rank0}
              v_lshrrev_b32 v{self.vL2}, 2, v{vL}
              v_and_b32 v{self.vL3}, 3, v{vL}
              v_lshlrev_b32 v{self.vL3}, 4, v{self.vL3}''')
        for par in range(2):
            a(f'''v_lshrrev_b32 v{vT0}, 4, v{vL}
                  v_add_u32 v{vT0}, {4*par}, v{vT0}
                  v_and_b32 v{vT1}, 7, v{vL}
                  v_xor_b32 v{vT0}, v{vT0}, v{vT1}
                  v_lshlrev_b32 v{vT0}, 4, v{vT0}
                  v_lshrrev_b32 v{vT1}, 3, v{vL}
                  v_mul_u32_u24 v{vT1}, 1280, v{vT1}
                  v_add_u32 v{self.vXg+par}, v{vT0}, v{vT1}''')
        a(f'''v_and_b32 v{vT0}, 31, v{vL}
              v_bfe_u32 v{vT1}, v{vL}, 1, 3
              v_lshrrev_b32 v{vT2}, 5, v{vL}
              v_xor_b32 v{vT1}, v{vT1}, v{vT2}
              s_lshr_b32 s{sT0}, s{sW}, 1
              s_lshl_b32 s{sT0}, s{sT0}, 13
              s_lshl_b32 s{sT1}, s{sW}, 12''')
        for kk in range(4):
            a(f'''v_xor_b32 v{vT2}, {2*kk}, v{vT1}
                  v_lshlrev_b32 v{vT2}, 4, v{vT2}
                  v_lshl_add_u32 v{vT2}, v{vT0}, 7, v{vT2}
                  v_add_u32 v{self.vXr+kk}, s{sT0}, v{vT2}
                  v_add_u32 v{self.vXr1+kk}, s{sT1}, v{vT2}
                  v_add_u32 v{self.vXr+4+kk}, {STAGE}, v{self.vXr+kk}
                  v_add_u32 v{self.vXr1+4+kk}, {STAGE}, v{self.vXr1+kk}''')
        a(f'''v_lshrrev_b32 v{vT0}, 5, v{vL}
              v_lshlrev_b32 v{vT0}, 9, v{vT0}
              v_bfe_u32 v{vT1}, v{vL}, 2, 2
              v_lshl_add_u32 v{vT0}, v{vT1}, 6, v{vT0}
              v_bfe_u32 v{vT1}, v{vL}, 4, 1
              v_lshl_add_u32 v{vT0}, v{vT1}, 5, v{vT0}
              v_and_b32 v{vT1}, 3, v{vL}
              v_lshl_add_u32 v{vT0}, v{vT1}, 3, v{vT0}
              v_add_u32 v{self.vWr1}, {WB_OFF}, v{vT0}
              s_and_b32 s{sT0}, s{sW}, 1
              s_mul_i32 s{sT0}, s{sT0}, {3*4096}
              v_add_u32 v{self.vWr}, s{sT0}, v{self.vWr1}''')
        a(f'''v_and_b32 v{vT0}, 15, v{vL}
              v_lshlrev_b32 v{vT0}, 4, v{vT0}
              v_lshrrev_b32 v{vT1}, 5, v{vL}
              v_lshl_add_u32 v{vT0}, v{vT1}, 8, v{vT0}
              v_bfe_u32 v{vT1}, v{vL}, 4, 1
              s_lshr_b32 s{sT0}, s{sW}, 1
              s_and_b32 s{sT1}, s{sW}, 1
              s_mul_i32 s{sT0}, s{sT0}, 24576
              v_mul_u32_u24 v{vQK}, 6144, v{vT1}
              v_add_u32 v{vQK}, v{vQK}, v{vT0}
              s_mul_i32 s{sT3}, s{sT1}, 3072
              s_add_u32 s{sT2}, s{sT0}, s{sT3}
              v_add_u32 v{vQK}, s{sT2}, v{vQK}
              v_lshl_add_u32 v{vV}, v{vT1}, 10, v{vT0}
              s_mul_i32 s{sT3}, s{sT1}, 6144
              s_add_u32 s{sT2}, s{sT0}, s{sT3}
              v_add_u32 v{vV}, s{sT2}, v{vV}
              v_mul_u32_u24 v{vH}, 49152, v{vT1}
              v_add_u32 v{vH}, v{vH}, v{vT0}
              s_mul_i32 s{sT2}, s{sW}, 98304
              v_add_u32 v{vH}, s{sT2}, v{vH}''')
        self.decode()
        a(f's_mov_b32 s{sXo}, s{sXoN}')
        self.dma(0)
        self.dma_w()
        if self.opt.get('x_sweep'):
            a(f'''s_sub_u32 s{sT0}, s{sC}, {self.rank0}
                  s_lshl_b32 s{sT0}, s{sT0}, 3
                  s_add_u32 s{sT0}, s{sT0}, s{sW}
                  s_mul_i32 s{sT0}, s{sT0}, 5120
                  s_add_u32 s{sT1}, s{sT0}, 4096
                  s_mov_b32 m0, {SWEEP_LDS}
                  v_lshlrev_b32 v{vT0}, 4, v{vL}''')
            for k in range(5):
                a(f'buffer_load_dwordx4 v{vT0}, s[{sX}:{sX+3}], s{sT1 if k == 4 else sT0} offen offset:{1024*(k & 3)} lds')
        nsw = 0
        arrv = True
        if self.opt.get('wo_sweep'):
            srd(a, ptr(5), NH * DH * DM * 2)
            a(f'''s_lshl_b32 s{sT0}, s{sJ}, 4
                  s_add_u32 s{sT0}, s{sT0}, s{sC}
                  s_sub_u32 s{sT0}, s{sT0}, {self.rank0}
                  s_lshl_b32 s{sT0}, s{sT0}, 3
                  s_add_u32 s{sT0}, s{sT0}, s{sW}
                  s_mul_i32 s{sT0}, s{sT0}, 7680
                  s_add_u32 s{sT1}, s{sT0}, 4096''')
            for k in range(8):
                a(f'buffer_load_dwordx4 v{vT0}, s[{sT}:{sT+3}], s{sT1 if k >= 4 else sT0} offen offset:{1024*(k & 3)} lds')
            nsw = 8
        a('s_waitcnt vmcnt(%d)' % (nsw + (8 if self.opt.get('x_sweep') else 3)))
        arrive(a, 7, vT1)
        self.inloop = True
        nxt = a.newlabel('Lgnext')
        lqk, lv, lf = 'Lg_qk', 'Lg_v', 'Lg_f'
        a.label(nxt)
        a(f'''s_mov_b32 s{sKind}, s{sNK}
              s_mov_b32 s{sOut}, s{sNOut}
              s_lshl_b32 s{sNFlag}, s{sTile}, 2
              s_cmp_eq_u32 s{sKind}, 4
              s_cbranch_scc1 Lg_end
              s_cmp_eq_u32 s{sKind}, 2
              s_cbranch_scc1 {lv}
              s_cmp_eq_u32 s{sKind}, 3
              s_cbranch_scc1 {lf}''')
        def c_init():
            l = a.newlabel('Lgci')
            F = self.F
            a(f'''s_lshr_b32 s{sT0}, s{sNFlag}, 2
                  s_mul_i32 s{sT1}, s{sT0}, 43691
                  s_lshr_b32 s{sT1}, s{sT1}, 19
                  s_mul_i32 s{sT2}, s{sT1}, 12
                  s_sub_u32 s{sT0}, s{sT0}, s{sT2}
                  s_mul_i32 s{sT2}, s{sJ}, 12
                  s_add_u32 s{sT0}, s{sT0}, s{sT2}
                  s_lshl_b32 s{sT0}, s{sT0}, 3
                  s_add_u32 s{sT0}, s{sT0}, s{sW}
                  s_cmp_ge_u32 s{sT0}, 640
                  s_cbranch_scc1 {l}
                  s_mul_i32 s{sT2}, s{sT0}, 52429
                  s_lshr_b32 s{sT2}, s{sT2}, 22
                  s_mul_i32 s{sT3}, s{sT2}, 80
                  s_sub_u32 s{sT0}, s{sT0}, s{sT3}
                  s_lshl_b32 s{sT1}, s{sT1}, 3
                  s_add_u32 s{sT1}, s{sT1}, s{sT2}
                  s_cmp_ge_u32 s{sT1}, {RC_N}
                  s_cbranch_scc1 {l}
                  s_mul_i32 s{sT2}, s{sT1}, 86
                  s_lshr_b32 s{sT2}, s{sT2}, 8
                  s_mul_i32 s{sT1}, s{sT1}, {RC_SLOT}
                  s_mul_i32 s{sT3}, s{sT2}, {0x200000 - 3*RC_SLOT}
                  s_add_u32 s{sT1}, s{sT1}, s{sT3}
                  s_xor_b32 s{sT2}, s{sT2}, s{sPOL}
                  s_and_b32 s{sT2}, s{sT2}, 1
                  s_lshl_b32 s{sT2}, s{sT2}, 13
                  s_add_u32 s{sT1}, s{sT1}, s{sT2}
                  s_lshr_b32 s{sT2}, s{sT0}, 1
                  s_lshl_b32 s{sT2}, s{sT2}, 14
                  s_add_u32 s{sT1}, s{sT1}, s{sT2}
                  s_and_b32 s{sT2}, s{sT0}, 1
                  s_lshl_b32 s{sT2}, s{sT2}, 12
                  s_add_u32 s{sT1}, s{sT1}, s{sT2}
                  s_add_u32 s{sT1}, s{sT1}, {WS_RC}
                  v_mov_b32 v{F}, -1
                  v_mov_b32 v{F+1}, -1
                  v_mov_b32 v{F+2}, -1
                  v_mov_b32 v{F+3}, -1
                  v_lshlrev_b32 v{F+4}, 4, v{vL}''')
            for k in range(4):
                a(f'buffer_store_dwordx4 v[{F}:{F+3}], v{F+4}, s[{sWS}:{sWS+3}], s{sT1} offen offset:{1024*k} sc1')
            a.label(l)
        def set_flag():
            a(f'''s_mul_i32 s{sFlagP}, s{sJ}, 512
                  s_add_u32 s{sFlagP}, s{sFlagP}, s{sNFlag}
                  s_add_u32 s{sFlagP}, s{sFlagP}, {WS_FLAG}''')
        ACC = self.ACC
        self.tile_loop((2, 3), False, lqk)
        c_init()
        st = []
        for mt in range(2):
            a(f's_add_u32 s{sT0+0 if mt == 0 else sT1}, s{sOut}, {mt*12288}')
        for mt in range(2):
            for nt in range(3):
                c = ACC + 16 * (mt * 3 + nt)
                for r in range(8):
                    a(f'v_cvt_pk_bf16_f32 v{c+r}, v{c+2*r}, v{c+2*r+1}')
                for u in range(2):
                    st.append(f'buffer_store_dwordx4 v[{c+4*u}:{c+4*u+3}], v{vQK}, s[{sWS}:{sWS+3}], s{sT1 if mt else sT0} offen offset:{1024*nt + 512*u}')
        self.lstore(st, cross=True)
        set_flag()
        a(f's_branch {nxt}')
        a.label(lv)
        self.tile_loop((2, 3), True, lv + 'x')
        c_init()
        st = []
        for mt in range(2):
            a(f's_add_u32 s{sT1 if mt else sT0}, s{sOut}, {mt*12288}')
        for mt in range(2):
            for nt in range(3):
                c = ACC + 16 * (mt * 3 + nt)
                a(f'''v_cvt_pk_bf16_f32 v{c}, v{c}, v{c+1}
                      v_cvt_pk_bf16_f32 v{c+1}, v{c+2}, v{c+3}
                      v_cvt_pk_bf16_f32 v{c+2}, v{c+8}, v{c+9}
                      v_cvt_pk_bf16_f32 v{c+3}, v{c+10}, v{c+11}
                      v_cvt_pk_bf16_f32 v{c+4}, v{c+4}, v{c+5}
                      v_cvt_pk_bf16_f32 v{c+5}, v{c+6}, v{c+7}
                      v_cvt_pk_bf16_f32 v{c+6}, v{c+12}, v{c+13}
                      v_cvt_pk_bf16_f32 v{c+7}, v{c+14}, v{c+15}''')
                for u in range(2):
                    off = 2048*nt + 512*u
                    so = sT1 if mt else sT0
                    if off >= 4096:
                        st.append(f's_add_u32 s{sT2}, s{so}, 4096'); so = sT2; off -= 4096
                    st.append(f'buffer_store_dwordx4 v[{c+4*u}:{c+4*u+3}], v{vV}, s[{sWS}:{sWS+3}], s{so} offen offset:{off}')
        self.lstore(st, cross=True)
        set_flag()
        a(f's_branch {nxt}')
        a.label(lf)
        if self.opt.get('fused'):
            a(f'''s_lshl_b32 s{sIt}, s{sJ}, 4
                  s_add_u32 s{sIt}, s{sIt}, s{sC}
                  s_sub_u32 s{sIt}, s{sIt}, {self.rank0}
                  s_lshl_b32 s{sIt}, s{sIt}, 3
                  s_add_u32 s{sIt}, s{sIt}, s{sW}
                  s_lshl_b32 s{sIt}, s{sIt}, 1''')
            emit_gates(a, sIt, 2, vL, self.ACC)
        self.tile_loop((1, 6), False, lf + 'x')
        st = []
        T = self.F
        for nt in range(3):
            g, u = ACC + 16 * nt, ACC + 16 * (3 + nt)
            for r0 in range(0, 16, 8):
                R = range(r0, r0 + 8)
                for r in R: a(f'v_mul_f32 v{T+r-r0}, v{g+r}, v{g+r}')
                for r in R: a(f'v_mov_b32 v{T+8+r-r0}, s{sC1}')
                for r in R: a(f'v_fma_f32 v{T+r-r0}, v{T+r-r0}, s{sC2}, v{T+8+r-r0}')
                for r in R: a(f'v_mul_f32 v{T+r-r0}, v{T+r-r0}, v{g+r}')
                for r in R: a(f'v_exp_f32 v{T+r-r0}, v{T+r-r0}')
                for r in R: a(f'v_mul_f32 v{g+r}, v{g+r}, v{u+r}')
                for r in R: a(f'v_add_f32 v{T+r-r0}, 1.0, v{T+r-r0}')
                for r in R: a(f'v_rcp_f32 v{T+r-r0}, v{T+r-r0}')
                a('s_nop 0')
                for r in R: a(f'v_mul_f32 v{g+r}, v{g+r}, v{T+r-r0}')
            for r in range(8):
                a(f'v_cvt_pk_bf16_f32 v{g+r}, v{g+2*r}, v{g+2*r+1}')
            for uu in range(2):
                st.append(f'buffer_store_dwordx4 v[{g+4*uu}:{g+4*uu+3}], v{vH}, s[{sWS}:{sWS+3}], s{sOut} offen offset:{1024*nt + 512*uu}')
        self.lstore(st)
        set_flag()
        a(f's_branch {nxt}')
        a.label('Lg_end')
        self.stage_top()
        self.after_top()
        a(f's_branch {done_label}')
        self.emit_tail()
```

```python
from asmlib import *
from layout import *
from chain import (sWS, sDBG, sT, ptr, sW, sJ, sC, sMIX, sBUD, sT0, sT1, sT2, sT3, sSELLO, sSELHI, srd)

PBUF = 6 * 5120
P3_LDS = 2 * PBUF
sNN, sTH, sKG, sTT, sSeg, sAct, sActStep, sNKS, sLds, sPo, sOUT = 56, 57, 58, 59, 64, 65, 66, 67, 68, 70, 60
sOF, sPFo, sRdy = 71, 72, 46

class Phase3:
    def __init__(self, a, opt, nworkers, rank0):
        self.a, self.opt, self.NW, self.rank0 = a, opt, nworkers, rank0
        self.NTH = nworkers // 8

    def retry(self, label):
        self.a(f'''s_sub_u32 s{sBUD}, s{sBUD}, 1
                   s_cbranch_scc0 {label}
                   s_mov_b32 s{sBUD}, 0''')

    def wait_flags(self, nlanes, soff, vOff4, vT, seg=None, vT2=None):
        a = self.a
        lp, ok = a.newlabel('Lpf'), a.newlabel('Lpfok')
        a(f's_mov_b64 exec, {hex((1 << nlanes) - 1)}' if nlanes <= 32 else f's_mov_b64 exec, s[{self.sM48}:{self.sM48+1}]')
        if seg is not None:
            a(f'v_lshlrev_b32 v{vT2}, 5, v{vOff4}')
            vOff4 = vT2
        cmp = f'v_cmp_eq_u32 vcc, 0, v{vT}' if seg is None else f'v_cmp_ge_u32 vcc, s{seg}, v{vT}'
        a.label(lp)
        a(f'''buffer_load_dword v{vT}, v{vOff4}, s[{sWS}:{sWS+3}], s{soff} offen sc1
              s_waitcnt vmcnt(0)
              {cmp}
              s_cbranch_vccz {ok}
              s_sleep {self.opt.get('p_sleep', 4)}''')
        self.retry(lp)
        a.label(ok)
        a('s_mov_b64 exec, -1')

    def load_w(self, W, nks, rel, vP, vS, vSel, vtmp, tmps):
        a = self.a
        def issue(ks):
            for p in range(4):
                base = W + ks * 20
                a(f's_mov_b32 s{sT0}, {rel(ks, p) * 1280}')
                a(f's_mov_b32 s{sT1}, {(rel(ks, p) + 1) * 1280}')
                for pr in range(2):
                    a(f'buffer_load_dword v{base+8*pr+p}, v{vP}, s[{sT}:{sT+3}], s{sT0} offen offset:{64*pr}')
                    a(f'buffer_load_dword v{base+8*pr+4+p}, v{vP}, s[{sT}:{sT+3}], s{sT1} offen offset:{64*pr}')
                a(f'buffer_load_dword v{base+16+p}, v{vS}, s[{sT}:{sT+3}], s{sT0} offen')
                a(f'buffer_load_dword v{tmps+(ks&1)*4+p}, v{vS}, s[{sT}:{sT+3}], s{sT1} offen')
        def fix(ks):
            base = W + ks * 20
            for p in range(4):
                for pr in range(2):
                    ra, rb = base + 8*pr + p, base + 8*pr + 4 + p
                    a(f'v_perm_b32 v{vtmp}, v{rb}, v{ra}, s{sSELLO}')
                    a(f'v_perm_b32 v{rb}, v{rb}, v{ra}, s{sSELHI}')
                    a(f'v_mov_b32 v{ra}, v{vtmp}')
                a(f'v_perm_b32 v{base+16+p}, v{tmps+(ks&1)*4+p}, v{base+16+p}, v{vSel}')
        issue(0)
        for ks in range(nks):
            if ks + 1 < nks:
                issue(ks + 1); a('s_waitcnt vmcnt(24)')
            else:
                a('s_waitcnt vmcnt(0)')
            fix(ks)

    def emit(self, done_label):
        a = self.a
        fused = self.opt.get('fused')
        NTH = self.NTH
        al = Alloc(0, 256)
        vL4 = al()
        vQ, vT0, vT1 = al(), al(), al()
        W = al(160, 2); ACT = al(64, 2); ACC = al(20, 2)
        vAct, vG0, vG1, vGo, vLw, vPo, vFi, vFo = [al() for _ in range(8)]
        vL, vN, vT2, vSel = ACC, ACC + 1, ACC + 2, ACC + 3
        self.sM48 = 74
        sPre, sPend, sFin = 73, 80, 81
        a(f"""v_and_b32 v{vL}, 63, v0
              v_and_b32 v{vN}, 15, v0
              v_bfe_u32 v{vQ}, v0, 4, 2
              s_mov_b32 s{sSELLO}, 0x05040100
              s_mov_b32 s{sSELHI}, 0x07060302
              s_mov_b32 s{self.sM48}, -1
              s_mov_b32 s{self.sM48+1}, 0xffff
              s_sub_u32 s{sT0}, s{sC}, {self.rank0}
              s_and_b32 s{sNN}, s{sT0}, 7
              s_lshr_b32 s{sTH}, s{sT0}, 3
              s_lshr_b32 s{sKG}, s{sW}, 1
              s_and_b32 s{sTT}, s{sW}, 1
              s_mov_b32 s{sOUT}, s{ptr(12)}
              s_mov_b32 s{sOUT+1}, s{ptr(12)+1}
              s_mov_b32 s{sOUT+2}, {S*DM*2}
              s_mov_b32 s{sOUT+3}, 0x20000
              v_lshlrev_b32 v{vL4}, 2, v{vL}
              v_and_b32 v{vT0}, 1, v{vN}
              v_cmp_eq_u32 vcc, 1, v{vT0}
              v_mov_b32 v{vSel}, s{sSELLO}
              v_mov_b32 v{vT0}, s{sSELHI}
              s_nop 1
              v_cndmask_b32 v{vSel}, v{vSel}, v{vT0}, vcc""")
        lh, lw = a.newlabel('Lp3h'), a.newlabel('Lp3w')
        vP, vS = vAct, vGo
        a(f"""s_cmp_eq_u32 s{sKG}, 0
              s_cbranch_scc1 {lh}""")
        srd(a, ptr(5), NH * DH * DM * 2)
        a(f"""s_mul_i32 s{sT0}, s{sJ}, 768
              s_lshl_b32 s{sT1}, s{sKG}, 8
              s_add_u32 s{sT0}, s{sT0}, s{sT1}
              s_sub_u32 s{sT0}, s{sT0}, 256
              s_lshl_b32 s{sAct}, s{sT0}, 5
              s_add_u32 s{sAct}, s{sAct}, {WS_O}
              s_mul_i32 s{sT0}, s{sT0}, 1280
              s_mul_i32 s{sT1}, s{sNN}, 160
              s_add_u32 s{sT0}, s{sT0}, s{sT1}
              v_mul_u32_u24 v{vP}, {8*1280}, v{vQ}
              v_add_u32 v{vP}, s{sT0}, v{vP}
              v_and_b32 v{vT0}, 14, v{vN}
              v_lshl_add_u32 v{vS}, v{vT0}, 1, v{vP}
              v_add_u32 v{vS}, 128, v{vS}
              v_lshl_add_u32 v{vP}, v{vN}, 2, v{vP}""")
        self.load_w(W, 8, lambda ks, p: 32*ks + 2*p, vP, vS, vSel, vT0, ACT)
        a(f"""s_mov_b32 s{sActStep}, 12288
              s_branch {lw}""")
        a.label(lh)
        srd(a, ptr(10), DF * DM * 2)
        a(f"""s_mul_i32 s{sT0}, s{sJ}, 192
              s_lshl_b32 s{sAct}, s{sT0}, 5
              s_add_u32 s{sAct}, s{sAct}, {WS_H}
              s_mul_i32 s{sT0}, s{sT0}, 1280
              s_mul_i32 s{sT1}, s{sNN}, 160
              s_add_u32 s{sT0}, s{sT0}, s{sT1}
              v_lshrrev_b32 v{vT0}, 1, v{vQ}
              v_lshlrev_b32 v{vT0}, 4, v{vT0}
              v_and_b32 v{vT1}, 1, v{vQ}
              v_lshl_add_u32 v{vT0}, v{vT1}, 2, v{vT0}
              v_mul_u32_u24 v{vP}, 1280, v{vT0}
              v_add_u32 v{vP}, s{sT0}, v{vP}
              v_and_b32 v{vT0}, 14, v{vN}
              v_lshl_add_u32 v{vS}, v{vT0}, 1, v{vP}
              v_add_u32 v{vS}, 128, v{vS}
              v_lshl_add_u32 v{vP}, v{vN}, 2, v{vP}""")
        self.load_w(W, 6, lambda ks, p: 32*ks + 8*(p >> 1) + 2*(p & 1), vP, vS, vSel, vT0, ACT)
        a(f's_mov_b32 s{sActStep}, 3072')
        a.label(lw)
        a(f"""s_lshl_b32 s{sT0}, s{sTT}, 4
              v_add_u32 v{vT0}, s{sT0}, v{vN}
              s_mul_i32 s{sT1}, s{sT0}, s{sActStep}
              v_lshlrev_b32 v{vAct}, 4, v{vL}
              v_add_u32 v{vAct}, s{sT1}, v{vAct}
              v_lshlrev_b32 v{vGo}, 2, v{vT0}
              v_mul_u32_u24 v{vPo}, 160, v{vT0}
              s_lshl_b32 s{sActStep}, s{sActStep}, 5
              s_sub_u32 s{sT0}, s{sW}, 2
              s_cmp_eq_u32 s{sKG}, 0
              s_cselect_b32 s{sT0}, s{sW}, s{sT0}
              s_mul_i32 s{sT0}, s{sT0}, 5120
              v_lshlrev_b32 v{vLw}, 4, v{vL}
              v_add_u32 v{vLw}, s{sT0}, v{vLw}
              s_max_u32 s{sT0}, s{sW}, 3
              s_sub_u32 s{sT0}, s{sT0}, 3
              s_lshl_b32 s{sT0}, s{sT0}, 6
              v_add_u32 v{vT0}, s{sT0}, v{vL}
              v_lshlrev_b32 v{vFi}, 4, v{vT0}
              v_mul_u32_u24 v{vT1}, 6554, v{vT0}
              v_lshrrev_b32 v{vT1}, 16, v{vT1}
              v_mul_u32_u24 v{vT2}, 1120, v{vT1}
              v_add_u32 v{vFo}, v{vFi}, v{vT2}
              s_mov_b32 s{sSeg}, s{sTH}
              s_mov_b32 s{sPre}, 0
              s_mov_b32 s{sRdy}, 0
              s_mov_b32 s{sPend}, 0""")
        if not fused:
            lp, ok = a.newlabel('Lp3r'), a.newlabel('Lp3rok')
            a.label(lp)
            a(f"""buffer_load_dword v{vT0}, v{vL4}, s[{sDBG}:{sDBG+3}], 0 offen sc0 sc1
                  s_waitcnt vmcnt(0)
                  v_readlane_b32 s{sT0}, v{vT0}, 8
                  s_cmp_ge_u32 s{sT0}, 256
                  s_cbranch_scc1 {ok}
                  s_sleep 8""")
            self.retry(lp)
            a.label(ok)

        if fused:
            lp, ok = a.newlabel('Lp3g'), a.newlabel('Lp3gok')
            a.label(lp)
            a(f"""buffer_load_dword v{vT0}, v{vL4}, s[{sDBG}:{sDBG+3}], 0 offen sc0 sc1
                  s_waitcnt vmcnt(0)
                  v_readlane_b32 s{sT0}, v{vT0}, 33
                  v_readlane_b32 s{sT1}, v{vT0}, 32
                  s_add_u32 s{sT0}, s{sT0}, s{sT1}
                  s_cmp_ge_u32 s{sT0}, {128 + 384}
                  s_cbranch_scc1 {ok}
                  s_sleep 16""")
            self.retry(lp)
            a.label(ok)
        if self.opt.get('prof'):
            a('s_memrealtime s[92:93]'); a('s_waitcnt lgkmcnt(0)')
        def flag_off(isH, seg):
            if isH:
                a(f"""s_lshl_b32 s{sOF}, s{sJ}, 9
                      s_lshr_b32 s{sT0}, s{seg}, 3
                      s_lshl_b32 s{sT0}, s{sT0}, 3
                      s_add_u32 s{sOF}, s{sOF}, s{sT0}
                      s_add_u32 s{sOF}, s{sOF}, {WS_FLAG + 96*4}""")
            else:
                a(f"""s_lshl_b32 s{sOF}, s{sJ}, 11
                      s_add_u32 s{sOF}, s{sOF}, {WS_OFLAG}""")
        def loads(nks, seg, b):
            a(f"""s_mul_i32 s{sT2}, s{seg}, s{sActStep}
                  s_add_u32 s{sT2}, s{sT2}, s{sAct}
                  s_lshl_b32 s{sT3}, s{seg}, 7
                  s_add_u32 s{sT3}, s{sT3}, {WS_G}
                  buffer_load_dword v{vG1 if b else vG0}, v{vGo}, s[{sWS}:{sWS+3}], s{sT3} offen sc1""")
            for ks in range(nks):
                r = ACT + 32*b + 4*ks
                if ks == 4: a(f's_add_u32 s{sT2}, s{sT2}, 4096')
                a(f'buffer_load_dwordx4 v[{r}:{r+3}], v{vAct}, s[{sWS}:{sWS+3}], s{sT2} offen offset:{1024*(ks&3)} sc1')
        def set_pending_flag():
            l = a.newlabel('Lp3pf')
            a(f"""s_cmp_eq_u32 s{sPend}, 0
                  s_cbranch_scc1 {l}
                  v_mov_b32 v{vT0}, 0
                  v_mov_b32 v{vT1}, 1
                  s_mov_b64 exec, 1
                  buffer_store_dword v{vT1}, v{vT0}, s[{sWS}:{sWS+3}], s{sPend} offen sc1
                  s_mov_b64 exec, -1
                  s_mov_b32 s{sPend}, 0""")
            a.label(l)
        def progress(block, target):
            lp, ok = a.newlabel('Lpg'), a.newlabel('Lpgok')
            a(f"""s_lshl_b32 s{sOF}, s{sJ}, 11
                  s_add_u32 s{sOF}, s{sOF}, {WS_OFLAG}
                  v_and_b32 v{vT1}, 60, v{vL4}
                  v_lshlrev_b32 v{vT1}, 5, v{vT1}""")
            a.label(lp)
            a(f"""buffer_load_dword v{vT0}, v{vT1}, s[{sWS}:{sWS+3}], s{sOF} offen sc1
                  s_waitcnt vmcnt(0)""")
            for sh in (8, 4, 2, 1):
                a(f"""s_nop 1
                      v_min_u32_dpp v{vT0}, v{vT0}, v{vT0} row_ror:{sh} row_mask:0xf bank_mask:0xf""")
            a(f"""s_nop 1
                  v_readfirstlane_b32 s{sRdy}, v{vT0}""")
            if block:
                a(f"""s_cmp_gt_u32 s{sRdy}, s{target}
                      s_cbranch_scc1 {ok}
                      s_sleep {self.opt.get('p_sleep', 4)}""")
                self.retry(lp)
                a.label(ok)
        def front(isH, b):
            nks = 6 if isH else 8
            watch = fused and not isH
            have, nonext, go = a.newlabel('Lp3hv'), a.newlabel('Lp3nn'), a.newlabel('Lp3go')
            a(f"""s_cmp_lg_u32 s{sPre}, 0
                  s_cbranch_scc1 {have}""")
            if watch: progress(True, sSeg)
            if self.opt.get('prof2'): a('s_memrealtime s[94:95]')
            loads(nks, sSeg, b)
            a.label(have)
            a(f"""s_add_u32 s{sNKS}, s{sSeg}, {NTH}
                  s_mov_b32 s{sPre}, 0
                  s_cmp_ge_u32 s{sNKS}, 64
                  s_cbranch_scc1 {nonext}""")
            if watch:
                known = a.newlabel('Lp3kn')
                a(f"""s_cmp_gt_u32 s{sRdy}, s{sNKS}
                      s_cbranch_scc1 {known}""")
                progress(False, None)
                a(f"""s_cmp_le_u32 s{sRdy}, s{sNKS}
                      s_cbranch_scc1 {nonext}""")
                a.label(known)
            loads(nks, sNKS, b ^ 1)
            a(f's_mov_b32 s{sPre}, 1')
            if isH:
                a(f"""s_waitcnt vmcnt({nks + 4})
                      s_cmp_lg_u32 s{sPend}, 0
                      s_cbranch_scc1 {go}""")
            a(f"""s_waitcnt vmcnt({nks + 1})
                  s_branch {go}""")
            a.label(nonext)
            a('s_waitcnt vmcnt(0)')
            a.label(go)
            for ks in range(nks):
                for t in range(5):
                    w = W + ks*20 + (4*t if t < 4 else 16)
                    r = ACT + 32*b + 4*ks
                    c = '0' if ks == 0 else f'v[{ACC+4*t}:{ACC+4*t+3}]'
                    a(f'v_mfma_f32_16x16x32_bf16 v[{ACC+4*t}:{ACC+4*t+3}], v[{w}:{w+3}], v[{r}:{r+3}], {c}')
        def final(seg, b):
            nofin = a.newlabel('Lp3nf')
            R = ACT + 32*b
            a(f"""s_lshr_b32 s{sT0}, s{seg}, {NTH.bit_length() - 1}
                  s_and_b32 s{sT0}, s{sT0}, 7
                  s_cmp_lg_u32 s{sT0}, s{sJ}
                  s_cbranch_scc1 {nofin}
                  s_cmp_lt_u32 s{sW}, 3
                  s_cbranch_scc1 {nofin}
                  s_cmp_ge_u32 s{seg}, 64
                  s_cbranch_scc1 {nofin}
                  s_lshl_b32 s{sPFo}, s{seg}, 3
                  s_add_u32 s{sPFo}, s{sPFo}, s{sNN}
                  s_mul_i32 s{sPo}, s{sPFo}, 5120
                  s_add_u32 s{sPo}, s{sPo}, {WS_P}
                  s_lshl_b32 s{sPFo}, s{sPFo}, 7
                  s_add_u32 s{sPFo}, s{sPFo}, {WS_PFLAG}""")
            self.wait_flags(16, sPFo, vL4, vT0)
            if self.opt.get('prof2'): a('s_memrealtime s[98:99]'); a('s_waitcnt lgkmcnt(0)')
            for j in range(8):
                a(f'buffer_load_dwordx4 v[{R+4*j}:{R+4*j+3}], v{vFi}, s[{sWS}:{sWS+3}], s{sPo} offen sc1')
                if j < 7: a(f's_add_u32 s{sPo}, s{sPo}, {64*8*5120}')
            for j in range(8):
                a(f's_waitcnt vmcnt({7-j})')
                for k in range(4):
                    x = R + 4*j + k
                    if j == 0:
                        a(f'v_lshlrev_b32 v{ACC+2*k}, 16, v{x}')
                        a(f'v_and_b32 v{ACC+2*k+1}, 0xffff0000, v{x}')
                    else:
                        a(f'v_lshlrev_b32 v{vT0}, 16, v{x}')
                        a(f'v_and_b32 v{vT1}, 0xffff0000, v{x}')
                        a(f'v_add_f32 v{ACC+2*k}, v{ACC+2*k}, v{vT0}')
                        a(f'v_add_f32 v{ACC+2*k+1}, v{ACC+2*k+1}, v{vT1}')
            for k in range(4):
                a(f'v_cvt_pk_bf16_f32 v{ACC+8+k}, v{ACC+2*k}, v{ACC+2*k+1}')
            a(f"""s_mul_i32 s{sT0}, s{seg}, {32*1280}
                  s_mul_i32 s{sT1}, s{sNN}, 160
                  s_add_u32 s{sT0}, s{sT0}, s{sT1}
                  buffer_store_dwordx4 v[{ACC+8}:{ACC+11}], v{vFo}, s[{sOUT}:{sOUT+3}], s{sT0} offen{self.opt.get('out_flags', '')}
                  s_waitcnt vmcnt(0)""")
            a.label(nofin)

        lH = a.newlabel('Lp3H')
        a(f"""s_cmp_eq_u32 s{sKG}, 0
              s_cbranch_scc1 {lH}""")
        loop, end = a.newlabel('Lp3o'), a.newlabel('Lp3oe')
        a.label(loop)
        for b in range(2):
            vG = vG1 if b else vG0
            front(False, b)
            a('s_nop 3')
            for t in range(5):
                for r in range(4): a(f'v_mul_f32 v{ACC+4*t+r}, v{ACC+4*t+r}, v{vG}')
                a(f'ds_write_b128 v{vLw}, v[{ACC+4*t}:{ACC+4*t+3}] offset:{PBUF*b + 1024*t}')
            if self.opt.get('prof2'): a('s_memrealtime s[96:97]')
            a('s_waitcnt lgkmcnt(0)')
            a('s_barrier')
            a(f's_sub_u32 s{sFin}, s{sSeg}, {NTH}')
            final(sFin, b)
            a(f"""s_add_u32 s{sSeg}, s{sSeg}, {NTH}
                  s_cmp_ge_u32 s{sSeg}, 64
                  s_cbranch_scc1 {end}""")
        a(f's_branch {loop}')
        a.label(end)
        a(f's_sub_u32 s{sFin}, s{sSeg}, {NTH}')
        final(sFin, 0)
        a(f's_branch {done_label}')
        a.label(lH)
        loop, end = a.newlabel('Lp3hl'), a.newlabel('Lp3he')
        PR = W + 120
        if fused:
            a(f"""s_lshl_b32 s{sOF}, s{sJ}, 9
                  s_add_u32 s{sOF}, s{sOF}, {WS_FLAG + 96*4}""")
            self.wait_flags(16, sOF, vL4, vT0)
        a.label(loop)
        for b in range(2):
            vG = vG1 if b else vG0
            front(True, b)
            a(f"""v_sub_f32 v{vG}, 1.0, v{vG}
                  s_lshl_b32 s{sPo}, s{sJ}, 6
                  s_add_u32 s{sPo}, s{sPo}, s{sSeg}
                  s_lshl_b32 s{sPo}, s{sPo}, 3
                  s_add_u32 s{sPo}, s{sPo}, s{sNN}
                  s_mul_i32 s{sPo}, s{sPo}, 5120
                  s_add_u32 s{sPo}, s{sPo}, {WS_P}""")
            for k in range(20): a(f'v_mul_f32 v{ACC+k}, v{ACC+k}, v{vG}')
            a('s_waitcnt vmcnt(7)')
            set_pending_flag()
            a('s_barrier')
            def rd(kg, dst):
                for t in range(5):
                    a(f'ds_read_b128 v[{dst+4*t}:{dst+4*t+3}], v{vLw} offset:{PBUF*b + 10240*kg + 1024*t}')
            def add(src):
                for k in range(20): a(f'v_add_f32 v{ACC+k}, v{ACC+k}, v{src+k}')
            rd(0, PR); rd(1, PR + 20)
            a('s_waitcnt lgkmcnt(5)'); add(PR)
            rd(2, PR)
            a('s_waitcnt lgkmcnt(5)'); add(PR + 20)
            a('s_waitcnt lgkmcnt(0)'); add(PR)
            O = PR + 20
            for pr in range(2):
                for r in range(4):
                    a(f'v_cvt_pk_bf16_f32 v{O+4*pr+r}, v{ACC+8*pr+r}, v{ACC+8*pr+4+r}')
            nowait = a.newlabel('Lp3nw')
            a(f"""v_cvt_pk_bf16_f32 v{O+8}, v{ACC+16}, v{ACC+17}
                  v_cvt_pk_bf16_f32 v{O+9}, v{ACC+18}, v{ACC+19}
                  v_lshl_add_u32 v{vT0}, v{vQ}, 4, v{vPo}
                  v_lshl_add_u32 v{vT1}, v{vQ}, 3, v{vPo}
                  buffer_store_dwordx4 v[{O}:{O+3}], v{vT0}, s[{sWS}:{sWS+3}], s{sPo} offen sc1
                  buffer_store_dwordx4 v[{O+4}:{O+7}], v{vT0}, s[{sWS}:{sWS+3}], s{sPo} offen offset:64 sc1
                  buffer_store_dwordx2 v[{O+8}:{O+9}], v{vT1}, s[{sWS}:{sWS+3}], s{sPo} offen offset:128 sc1
                  s_lshl_b32 s{sPend}, s{sSeg}, 3
                  s_add_u32 s{sPend}, s{sPend}, s{sNN}
                  s_lshl_b32 s{sPend}, s{sPend}, 7
                  s_lshl_b32 s{sT0}, s{sJ}, 3
                  s_add_u32 s{sPend}, s{sPend}, s{sT0}
                  s_lshl_b32 s{sT0}, s{sTT}, 2
                  s_add_u32 s{sPend}, s{sPend}, s{sT0}
                  s_add_u32 s{sPend}, s{sPend}, {WS_PFLAG}
                  s_cmp_lg_u32 s{sPre}, 0
                  s_cbranch_scc1 {nowait}
                  s_waitcnt vmcnt(0)""")
            set_pending_flag()
            a.label(nowait)
            a(f"""s_add_u32 s{sSeg}, s{sSeg}, {NTH}
                  s_cmp_ge_u32 s{sSeg}, 64
                  s_cbranch_scc1 {end}""")
        a(f's_branch {loop}')
        a.label(end)
        a(f's_branch {done_label}')
```

```python
from asmlib import *
from layout import *
import math

LM, LO, LDUMMY, LQK, LW5, LR, LOX, LBUF = 0, 10240, 13312, 16384, 22528, 34816, 35840, 38912
LBUF_SZ = 27648
LK_OFF, LV_OFF, LQ_OFF = 0, 12288, 24576
CHAIN_LDS = LBUF + 3 * LBUF_SZ
SWEEP_LDS = 139264

sWS, sDBG, sT = 4, 8, 12
sPTR = 16
def ptr(i): return sPTR + 2 * i
sW, sJ, sC, sH, sG, sMIX, sBUD, sSTEP = 48, 49, 50, 51, 52, 53, 54, 55
sA_N, sA_R, sB_C, sB_R, sC_W, sC_RS, sC_RD, sO_C = 56, 57, 58, 59, 60, 61, 62, 63
sKQ, sVX, sLB, sRED, sSCL, sT0, sT1, sT2, sT3 = 64, 65, 66, 67, 68, 69, 76, 77, 78
sMN8, sML32, sMH8 = 70, 72, 74
sSELLO, sSELHI = 80, 81
sCI = 46
sARR = 3
sMA = 46
sST = 82
sPADD, sPOR, sA_P, sCS, sPOL, sC_W2 = 94, 95, 96, 97, 79, 61
NSTAMP = 6

def srd(a, base_ptr, nbytes):
    a(f'''s_mov_b32 s{sT}, s{base_ptr}
          s_mov_b32 s{sT+1}, s{base_ptr+1}
          s_mov_b32 s{sT+2}, {nbytes}
          s_mov_b32 s{sT+3}, 0x20000''')

class Chain:
    def __init__(self, a, opt):
        self.a = a
        self.opt = opt
        self.tail = []
        self.tails = []
        self.nstamp = 0
        self.wnt = ' nt' if opt.get('w_nt') else ''

    def lstore(self, insts):
        a = self.a
        slow, back = a.newlabel('Lslow'), a.newlabel('Lback')
        a(f's_cmp_lg_u32 s{sMIX}, 0')
        a(f's_cbranch_scc1 {slow}')
        for i in insts: a(i)
        a.label(back)
        self.tail.append((slow, [i + ' sc1' if i.startswith('buffer_') else i for i in insts], back))

    def emit_tail(self):
        a = self.a
        for slow, insts, back in self.tail:
            a.label(slow)
            for i in insts: a(i)
            a(f's_branch {back}')
        self.tail = []
        for t in self.tails: t()
        self.tails = []

    def stamp(self, k, ahead=0):
        if not self.opt.get('stamps'): return
        a = self.a
        l = a.newlabel('Lst')
        a(f'''s_cmp_lg_u32 s{sSTEP}, {self.opt['stamps'] + ahead}
              s_cbranch_scc1 {l}
              {self.opt.get('clock', 's_memtime')} s[{sST+2*k}:{sST+2*k+1}]
              s_waitcnt lgkmcnt(0)''')
        a.label(l)

    def mark(self, k):
        if not self.opt.get('prof'): return
        self.a(f's_memrealtime s[{sST+2*k}:{sST+2*k+1}]')
        self.a('s_waitcnt lgkmcnt(0)')

    def dump_stamps(self):
        self.mark(3)
        if not (self.opt.get('stamps') or self.opt.get('prof')): return
        a = self.a
        if self.opt.get('dbgout'):
            l = a.newlabel('Ldo')
            a(f'''s_and_b32 s{sT0}, s{sC}, 15
                  s_or_b32 s{sT0}, s{sT0}, s{sJ}
                  s_or_b32 s{sT0}, s{sT0}, s{sW}
                  s_cmp_lg_u32 s{sT0}, 0
                  s_cbranch_scc1 {l}
                  s_cmp_ge_u32 s{sC}, 16
                  s_cselect_b32 s{sT0}, s{sST+2}, s{sST+4}
                  s_cselect_b32 s{sT2}, 56, 48
                  s_sub_u32 s{sT0}, s{sT0}, s{sST}
                  s_sub_u32 s{sT1}, s{sST+6}, s{sST}
                  s_mov_b64 exec, 1
                  v_mov_b32 v2, s{sT0}
                  v_mov_b32 v3, s{sT1}
                  v_mov_b32 v4, s{sT2}
                  buffer_store_dwordx2 v[2:3], v4, s[{sDBG}:{sDBG+3}], 0 offen
                  s_mov_b64 exec, -1''')
            a.label(l)
        a(f'''s_lshl_b32 s{sT0}, s{sJ}, 5
              s_add_u32 s{sT0}, s{sT0}, s{sC}
              s_lshl_b32 s{sT0}, s{sT0}, 3
              s_add_u32 s{sT0}, s{sT0}, s{sW}
              s_lshl_b32 s{sT0}, s{sT0}, 6
              s_add_u32 s{sT0}, s{sT0}, {WS_DBG + 0x100000}
              s_mov_b64 exec, -1
              v_mov_b32 v2, 0''')
        for k in range(NSTAMP):
            a(f'v_mov_b32 v3, s{sST+2*k}')
            a(f'buffer_store_dword v3, v2, s[{sWS}:{sWS+3}], s{sT0} offen offset:{4*k}')
        for k in range(4):
            a(f'v_mov_b32 v3, s{98+k}')
            a(f'buffer_store_dword v3, v2, s[{sWS}:{sWS+3}], s{sT0} offen offset:{4*(8+k)}')
        a('s_waitcnt vmcnt(0)')

    def retry(self, label, kind=None):
        a = self.a
        if kind is not None and self.opt.get('stamps'):
            a(f's_add_u32 s{98+kind}, s{98+kind}, 1')
        a(f'''s_sub_u32 s{sBUD}, s{sBUD}, 1
              s_cbranch_scc0 {label}
              s_mov_b32 s{sBUD}, 0''')

    def slots(self):
        a = self.a
        a(f'''s_and_b32 s{sT0}, s{sSTEP}, 3
              s_add_u32 s{sT1}, s{sSTEP}, 1
              s_and_b32 s{sT1}, s{sT1}, 3
              s_xor_b32 s{sT2}, s{sT0}, 2
              s_lshr_b32 s{sT3}, s{sJ}, 1
              s_mul_i32 s{sT3}, s{sT3}, 10240
              s_add_u32 s{sT3}, s{sT3}, {WS_RA}
              s_mul_i32 s{sA_N}, s{sT1}, {RA_SLOT}
              s_add_u32 s{sA_N}, s{sA_N}, s{sT3}
              s_mul_i32 s{sA_R}, s{sT2}, {RA_SLOT}
              s_add_u32 s{sA_R}, s{sA_R}, s{sT3}
              s_mul_i32 s{sT3}, s{sH}, 9216
              s_add_u32 s{sT3}, s{sT3}, {WS_RB}
              s_mul_i32 s{sB_C}, s{sT0}, {RB_SLOT}
              s_add_u32 s{sB_C}, s{sB_C}, s{sT3}
              s_mul_i32 s{sB_R}, s{sT2}, {RB_SLOT}
              s_add_u32 s{sB_R}, s{sB_R}, s{sT3}
              s_and_b32 s{sT0}, s{sCS}, 255
              s_mul_i32 s{sT1}, s{sT0}, 86
              s_lshr_b32 s{sT1}, s{sT1}, 8
              s_mul_i32 s{sC_RD}, s{sT0}, {RC_SLOT}
              s_mul_i32 s{sT2}, s{sT1}, {0x200000 - 3*RC_SLOT}
              s_add_u32 s{sC_RD}, s{sC_RD}, s{sT2}
              s_add_u32 s{sC_RD}, s{sC_RD}, {WS_RC}
              s_xor_b32 s{sT1}, s{sPOL}, s{sT1}
              s_and_b32 s{sT1}, s{sT1}, 1
              s_lshl_b32 s{sT1}, s{sT1}, 13
              s_add_u32 s{sC_RD}, s{sC_RD}, s{sT1}
              s_lshl_b32 s{sT3}, s{sH}, 8
              s_add_u32 s{sC_W}, s{sC_RD}, s{sT3}
              s_lshl_b32 s{sPOR}, s{sCS}, 8
              s_and_b32 s{sPOR}, s{sPOR}, 0x10000
              s_xor_b32 s{sPADD}, s{sPOR}, 0x10000
              s_mul_i32 s{sO_C}, s{sSTEP}, {32*12288}
              s_add_u32 s{sO_C}, s{sO_C}, {WS_O}''')

    def next_step(self):
        a = self.a
        a(f'''s_add_u32 s{sSTEP}, s{sSTEP}, 1
              s_add_u32 s{sCS}, s{sCS}, 1
              s_and_b32 s{sT0}, s{sCS}, 255
              s_xor_b32 s{sT1}, s{sCS}, {256 + RC_N}
              s_cmp_eq_u32 s{sT0}, {RC_N}
              s_cselect_b32 s{sCS}, s{sT1}, s{sCS}''')
        self.slots()

    def load_pair(self, WA, WB, nks, voff, rowstride, tmp, between=None):
        a = self.a
        items = []
        for ks in range(nks):
            for R in range(8):
                hi, p = R >> 2, R & 3
                b, tt = p & 1, p >> 1
                d = 64 * ks + 32 * hi + 8 * b + 2 * tt
                items.append((WA + ks * 8 + R, WB + ks * 8 + R, d))
        def issue(it):
            ra, rb, d = it
            a(f's_mov_b32 s{sT0}, {d * rowstride}')
            a(f'buffer_load_dword v{ra}, v{voff}, s[{sT}:{sT+3}], s{sT0} offen' + self.wnt)
            a(f's_mov_b32 s{sT1}, {(d + 1) * rowstride}')
            a(f'buffer_load_dword v{rb}, v{voff}, s[{sT}:{sT+3}], s{sT1} offen' + self.wnt)
        def fix(it):
            ra, rb, d = it
            a(f'v_perm_b32 v{tmp}, v{rb}, v{ra}, s{sSELLO}')
            a(f'v_perm_b32 v{rb}, v{rb}, v{ra}, s{sSELHI}')
            a(f'v_mov_b32 v{ra}, v{tmp}')
        groups = [items[i:i + 8] for i in range(0, len(items), 8)]
        groups = [items[i:i + 4] for i in range(0, len(items), 4)]
        depth = 7
        for gi in range(min(depth, len(groups))):
            for it in groups[gi]: issue(it)
        if between:
            assert len(groups) <= depth
            between()
            a('s_waitcnt vmcnt(0)')
        for gi in range(len(groups)):
            inflight = min(len(groups), gi + depth) - gi - 1
            a(f's_waitcnt vmcnt({8 * inflight})')
            for it in groups[gi]: fix(it)
            if gi + depth < len(groups):
                for it in groups[gi + depth]: issue(it)

    def load_single(self, W, nks, voff, vsel, rowstride, tmps):
        a = self.a
        items = []
        for ks in range(nks):
            for R in range(8):
                hi, p = R >> 2, R & 3
                b, tt = p & 1, p >> 1
                items.append((W + ks * 8 + R, 64 * ks + 32 * hi + 8 * b + 2 * tt))
        groups = [items[i:i + 4] for i in range(0, len(items), 4)]
        depth = 7
        def issue(gi):
            for k, (r, d) in enumerate(groups[gi]):
                t = tmps + (gi % depth) * 4 + k
                a(f's_mov_b32 s{sT0}, {d * rowstride}')
                a(f'buffer_load_dword v{r}, v{voff}, s[{sT}:{sT+3}], s{sT0} offen' + self.wnt)
                a(f's_mov_b32 s{sT1}, {(d + 1) * rowstride}')
                a(f'buffer_load_dword v{t}, v{voff}, s[{sT}:{sT+3}], s{sT1} offen' + self.wnt)
        for gi in range(min(depth, len(groups))): issue(gi)
        for gi in range(len(groups)):
            inflight = min(len(groups), gi + depth) - gi - 1
            a(f's_waitcnt vmcnt({8 * inflight})')
            for k, (r, d) in enumerate(groups[gi]):
                t = tmps + (gi % depth) * 4 + k
                a(f'v_perm_b32 v{r}, v{t}, v{r}, v{vsel}')
            if gi + depth < len(groups): issue(gi + depth)

    def load_w(self, WA, WB, nks, rowstride, sbase, vcol, tmps, vsel=None):
        a = self.a
        NS = 5
        vG, vR, vA, X = tmps, tmps + 1, tmps + 2, tmps + 4
        sSl = sLB
        a(f"""s_min_u32 s{sSl}, s{sW}, 4
              s_mul_i32 s{sSl}, s{sSl}, {4096*NS}
              s_add_u32 s{sSl}, s{sSl}, {LBUF}
              v_lshrrev_b32 v{vG}, 2, v{self.vL}
              s_mov_b32 s{sT1}, {rowstride}
              v_mul_lo_u32 v{vG}, v{vG}, s{sT1}
              v_and_b32 v{vR}, 3, v{self.vL}
              v_lshl_add_u32 v{vG}, v{vR}, 4, v{vG}
              v_lshrrev_b32 v{vR}, 1, v{self.vQ}
              v_lshlrev_b32 v{vR}, 10, v{vR}
              v_and_b32 v{vA}, 1, v{self.vQ}
              v_lshl_add_u32 v{vR}, v{vA}, 8, v{vR}
              v_add_u32 v{vR}, v{vR}, v{vcol}
              v_add_u32 v{vR}, s{sSl}, v{vR}""")
        def issue(ks):
            for i in range(4):
                a(f's_add_u32 m0, s{sSl}, {(ks % NS)*4096 + i*1024}')
                a(f's_add_u32 s{sT1}, s{sbase}, {(64*ks + 16*i)*rowstride}')
                a(f'buffer_load_dwordx4 v{vG}, s[{sT}:{sT+3}], s{sT1} offen lds')
        for ks in range(min(NS, nks)): issue(ks)
        for ks in range(nks):
            a(f's_waitcnt vmcnt({4 * (min(nks, ks + NS) - ks - 1)})')
            for hi in range(2):
                a(f'v_add_u32 v{vA+hi}, {(ks % NS)*4096 + hi*2048}, v{vR}')
            for R in range(8):
                hi, p = R >> 2, R & 3
                row = 8 * (p & 1) + 2 * (p >> 1)
                a(f'ds_read2_b32 v[{X+2*R}:{X+2*R+1}], v{vA+hi} offset0:{16*row} offset1:{16*(row+1)}')
            a('s_waitcnt lgkmcnt(0)')
            if ks + NS < nks: issue(ks + NS)
            for R in range(8):
                if WB is None:
                    a(f'v_perm_b32 v{WA+8*ks+R}, v{X+2*R+1}, v{X+2*R}, v{vsel}')
                else:
                    a(f'v_perm_b32 v{WA+8*ks+R}, v{X+2*R+1}, v{X+2*R}, s{sSELLO}')
                    a(f'v_perm_b32 v{WB+8*ks+R}, v{X+2*R+1}, v{X+2*R}, s{sSELHI}')

    def lanes(self, al):
        a = self.a
        self.vL, self.vN, self.vQ = al(), al(), al()
        self.vT0, self.vT1, self.vT2 = al(), al(), al()
        self.vMask = 0
        a(f'''v_and_b32 v{self.vL}, 63, v0
              v_and_b32 v{self.vN}, 15, v0
              v_bfe_u32 v{self.vQ}, v0, 4, 2
              v_mov_b32 v0, 0xfffe0000''')

    def frag_addr(self, dst):
        a = self.a
        a(f'''v_lshlrev_b32 v{dst}, 8, v{self.vQ}
              v_bfe_u32 v{self.vT0}, v{self.vN}, 1, 1
              v_lshl_add_u32 v{dst}, v{self.vT0}, 7, v{dst}
              v_lshrrev_b32 v{self.vT0}, 2, v{self.vN}
              v_lshl_add_u32 v{dst}, v{self.vT0}, 5, v{dst}
              v_and_b32 v{self.vT0}, 1, v{self.vN}
              v_lshl_add_u32 v{dst}, v{self.vT0}, 4, v{dst}''')

    def idx_reg(self, dst):
        a = self.a
        a(f'''v_and_b32 v{self.vT0}, 2, v{self.vN}
              v_cmp_eq_u32 vcc, 2, v{self.vT0}
              v_mov_b32 v{dst}, 0x44444444
              v_mov_b32 v{self.vT0}, 0xeeeeeeee
              s_nop 1
              v_cndmask_b32 v{dst}, v{dst}, v{self.vT0}, vcc''')

    def wrow_lane(self, dst, rowstride):
        a = self.a
        a(f'''v_lshrrev_b32 v{self.vT0}, 1, v{self.vQ}
              v_lshlrev_b32 v{self.vT0}, 4, v{self.vT0}
              v_and_b32 v{self.vT1}, 1, v{self.vQ}
              v_lshl_add_u32 v{self.vT0}, v{self.vT1}, 2, v{self.vT0}
              s_mov_b32 s{sT0}, {rowstride}
              v_mul_lo_u32 v{dst}, v{self.vT0}, s{sT0}''')

    def wait_all_registered(self):
        a = self.a
        a(f's_setprio {self.prio}')
        a('s_barrier')
        w = a.newlabel('Lp0')
        a(f's_cmp_lg_u32 s{sW}, 0')
        a(f's_cbranch_scc1 {w}')
        wait_registered(a, self.opt, self.vT0, self.vT1, self.vL, True)
        a(f'''s_lshl_b32 s{sPOL}, s{sPOL}, 1
              s_or_b32 s{sPOL}, s{sPOL}, s{sMIX}
              v_mov_b32 v{self.vT0}, s{sPOL}
              v_mov_b32 v{self.vT1}, {LR + 64}
              ds_write_b32 v{self.vT1}, v{self.vT0}
              s_waitcnt lgkmcnt(0)''')
        a.label(w)
        a(f'''s_barrier
              v_mov_b32 v{self.vT1}, {LR + 64}
              ds_read_b32 v{self.vT0}, v{self.vT1}
              s_waitcnt lgkmcnt(0)
              v_readfirstlane_b32 s{sPOL}, v{self.vT0}
              s_and_b32 s{sMIX}, s{sPOL}, 1
              s_lshr_b32 s{sPOL}, s{sPOL}, 1''')
        if self.opt.get('pol') is not None: pass
        self.slots()

    def wait_tiles(self, seg, first, nflags):
        if not self.opt.get('fused'): return
        a = self.a
        lp, ok, skip = a.newlabel('Lwt'), a.newlabel('Lwtok'), a.newlabel('Lwts')
        T0, T1 = self.vT0, self.vT1
        a(f'''s_and_b32 s{sT0}, s{seg}, 7
              s_cbranch_scc1 {skip}
              s_lshr_b32 s{sT0}, s{seg}, 3
              s_mul_i32 s{sT0}, s{sT0}, 48
              s_lshl_b32 s{sT1}, s{sJ}, 9
              s_add_u32 s{sT0}, s{sT0}, s{sT1}
              s_and_b32 s{sT1}, s{sH}, 3
              s_lshl_b32 s{sT1}, s{sT1}, 2
              s_add_u32 s{sT0}, s{sT0}, s{sT1}
              s_add_u32 s{sT0}, s{sT0}, {WS_FLAG + 16*first}
              v_lshlrev_b32 v{T1}, 4, v{self.vL}
              s_mov_b64 exec, {(1 << nflags) - 1}''')
        a.label(lp)
        a(f'''buffer_load_dword v{T0}, v{T1}, s[{sWS}:{sWS+3}], s{sT0} offen sc1
              s_waitcnt vmcnt(0)
              v_cmp_eq_u32 vcc, 0, v{T0}
              s_cbranch_vccz {ok}
              s_sleep {self.opt.get('t_sleep', 2)}''')
        self.retry(lp)
        a.label(ok)
        a('s_mov_b64 exec, -1')
        a.label(skip)

    def o_flag(self, back):
        if not self.opt.get('fused'): return
        a = self.a
        if self.opt.get('no_oflag'): return
        a(f'''s_lshl_b32 s{sT0}, s{sJ}, 4
              s_add_u32 s{sT0}, s{sT0}, s{sC}
              s_lshl_b32 s{sT0}, s{sT0}, 7
              s_add_u32 s{sT0}, s{sT0}, {WS_OFLAG}
              s_add_u32 s{sT1}, s{sSTEP}, {1 - back}
              v_mov_b32 v{self.vT0}, s{sT1}
              v_mov_b32 v{self.vT1}, 0
              s_mov_b64 exec, 1''')
        a(f'buffer_store_dword v{self.vT0}, v{self.vT1}, s[{sWS}:{sWS+3}], s{sT0} offen sc1')
        a('s_mov_b64 exec, -1')

    def poll2(self, vOff, soff, lds, sets, kind, gap):
        a = self.a
        t, t2 = self.vT0, self.vT1
        n = len(sets)
        def issue(R):
            a(f'''buffer_load_dwordx4 v[{R}:{R+3}], v{vOff}, s[{sWS}:{sWS+3}], s{soff} offen sc1
                  buffer_load_dwordx4 v[{R+4}:{R+7}], v{vOff}, s[{sWS}:{sWS+3}], s{soff} offen offset:1024 sc1''')
        def check(R, br):
            a(f'''ds_write_b128 v{vOff}, v[{R}:{R+3}] offset:{lds}
                  ds_write_b128 v{vOff}, v[{R+4}:{R+7}] offset:{lds+1024}
                  v_max3_u32 v{t}, v{R}, v{R+1}, v{R+2}
                  v_max3_u32 v{t2}, v{R+3}, v{R+4}, v{R+5}
                  v_max3_u32 v{t}, v{t}, v{R+6}, v{R+7}
                  v_max_u32 v{t}, v{t}, v{t2}
                  v_cmp_eq_u32 vcc, -1, v{t}
                  {br}''')
        lp, ok = a.newlabel('Lp'), a.newlabel('Lpok')
        for k in range(n):
            issue(sets[k])
            if gap and k < n - 1: a(f's_sleep {gap}')
        a(f's_waitcnt vmcnt({2 * (n - 1)})')
        if kind == 0 and self.opt.get('fine'): self.stamp(3)
        check(sets[0], f's_cbranch_vccnz {lp}')
        a.label(ok)
        def tail():
            back = a.newlabel('Lpb')
            a.label(lp)
            for k in range(n):
                if self.opt.get('stamps'): a(f's_add_u32 s{98+kind}, s{98+kind}, 1')
                a('s_mov_b64 exec, vcc')
                issue(sets[k])
                a(f's_waitcnt vmcnt({2 * (n - 1)})')
                check(sets[(k + 1) % n], f's_cbranch_vccz {back}')
            self.retry(lp)
            a.label(back)
            a('s_mov_b64 exec, -1')
            a(f's_branch {ok}')
        self.tails.append(tail)

    def a_poll(self, vAoff, sets, first=False):
        a = self.a
        if first:
            a(f's_lshr_b32 s{sA_P}, s{sJ}, 1')
            a(f's_mul_i32 s{sA_P}, s{sA_P}, 10240')
            a(f's_add_u32 s{sA_P}, s{sA_P}, {WS_RA}')
        else:
            a(f's_mov_b32 s{sA_P}, s{sA_N}')
            self.next_step()
        a('s_barrier')
        if self.opt.get('a_first'): a(f"s_sleep {self.opt['a_first']}")
        self.poll2(vAoff, sA_P, LM, sets[:self.opt.get('a_depth', 1)], 2, self.opt.get('a_gap', 0))
        a('s_waitcnt lgkmcnt(0)')
        if not first: self.stamp(4, 1)
        a('s_barrier')

    def mem0_load(self, vAoff, R):
        a = self.a
        srd(a, ptr(1), 10240)
        T0, T1 = self.vT0, self.vT1
        a(f'''v_bfe_u32 v{T0}, v{vAoff}, 4, 3
              v_mul_u32_u24 v{T0}, 1280, v{T0}
              v_lshrrev_b32 v{T1}, 7, v{vAoff}
              v_lshl_add_u32 v{T0}, v{T1}, 4, v{T0}
              buffer_load_dwordx4 v[{R}:{R+3}], v{T0}, s[{sT}:{sT+3}], 0 offen
              buffer_load_dwordx4 v[{R+4}:{R+7}], v{T0}, s[{sT}:{sT+3}], 0 offen offset:128
              s_waitcnt vmcnt(0)
              ds_write_b128 v{vAoff}, v[{R}:{R+3}] offset:{LM}
              ds_write_b128 v{vAoff}, v[{R+4}:{R+7}] offset:{LM+1024}
              s_waitcnt lgkmcnt(0)''')

    def a_off(self, dst):
        a = self.a
        a(f'''s_sub_u32 s{sT0}, s{sW}, 3
              s_lshl_b32 s{sT0}, s{sT0}, 11
              v_lshlrev_b32 v{dst}, 4, v{self.vL}
              v_add_u32 v{dst}, s{sT0}, v{dst}''')

    def dma_seg_regs(self, seg_expr_sgpr):
        a = self.a
        sg = seg_expr_sgpr
        a(f'''s_lshl_b32 s{sT0}, s{sH}, 6
              s_add_u32 s{sT0}, s{sT0}, s{sg}
              s_mul_i32 s{sKQ}, s{sT0}, 12288
              s_add_u32 s{sVX}, s{sKQ}, {WS_VT}
              s_mul_i32 s{sT0}, s{sg}, 86
              s_lshr_b32 s{sT0}, s{sT0}, 8
              s_mul_i32 s{sT0}, s{sT0}, 3
              s_sub_u32 s{sT0}, s{sg}, s{sT0}
              s_mul_i32 s{sLB}, s{sT0}, {LBUF_SZ}
              s_add_u32 s{sLB}, s{sLB}, {LBUF}''')

    def dma12(self, v, base, lds, pieces):
        a = self.a
        for k in pieces:
            a(f'''s_add_u32 s{sT2}, s{sG}, {k}
                  s_and_b32 s{sT2}, s{sT2}, 3
                  s_mul_i32 s{sT2}, s{sT2}, 3072
                  s_add_u32 s{sT1}, s{sLB}, s{sT2}
                  s_add_u32 m0, s{sT1}, {lds}
                  s_add_u32 s{sT1}, s{sKQ}, s{sT2}
                  s_add_u32 s{sT1}, s{sT1}, {base}''')
            for t in range(3):
                a(f'buffer_load_dwordx4 v{v}, s[{sWS}:{sWS+3}], s{sT1} offen offset:{1024*t} sc1 lds')

    def dma_q(self, vQx):
        a = self.a
        for p in range(3):
            a(f's_add_u32 m0, s{sLB}, {LQ_OFF + p*1024}')
            a(f's_add_u32 s{sT1}, s{sKQ}, {WS_Q + p*2048}')
            a(f'buffer_load_dwordx4 v{vQx}, s[{sWS}:{sWS+3}], s{sT1} offen sc1 lds')

    def stage(self, own, rest, first, nflags):
        a = self.a
        l1, l2 = a.newlabel('Lsg'), a.newlabel('Lsg')
        def part(ahead, fn, lab, wait):
            a(f"""s_add_u32 s{sT3}, s{sSTEP}, {ahead}
                  s_cmp_ge_u32 s{sT3}, 64
                  s_cbranch_scc1 {lab}""")
            if wait: self.wait_tiles(sT3, first, nflags)
            self.dma_seg_regs(sT3)
            if not self.opt.get('no_dma'): fn()
            a.label(lab)
        if self.opt.get('own_last'):
            part(2, rest, l2, False); part(3, own, l1, True)
        else:
            part(3, own, l1, True); part(2, rest, l2, False)

    def stage_first(self, own, rest, first, nflags):
        a = self.a
        self.wait_tiles(sSTEP, first, nflags)
        for sg in range(3):
            a(f's_mov_b32 s{sT3}, {sg}')
            self.dma_seg_regs(sT3); own()
            if sg < 2: rest()
        a('s_waitcnt vmcnt(0)')

    def wo_stage(self, pairs, vFrag, vIdx, F, vCoff, RR, skip):
        a = self.a
        for ks in range(3):
            a(f'ds_read_b128 v[{F+4*ks}:{F+4*ks+3}], v{vFrag} offset:{LO + 1024*ks}')
        a(f'v_lshlrev_b32 v{self.vT0}, 3, v{self.vQ}')
        a(f'ds_read_b64 v[{RR}:{RR+1}], v{self.vT0} offset:{LR}')
        a(f's_cmp_eq_u32 s{sSTEP}, 63')
        a(f's_cbranch_scc1 {skip}')
        for ks in range(3):
            a(f's_waitcnt lgkmcnt({3-ks})')
            for (WA, WB, TA, TB, coff) in pairs:
                a(f'v_smfmac_f32_16x16x64_bf16 v[{TA}:{TA+3}], v[{F+4*ks}:{F+4*ks+3}], v[{WA+8*ks}:{WA+8*ks+7}], v{vIdx}')
                a(f'v_smfmac_f32_16x16x64_bf16 v[{TB}:{TB+3}], v[{F+4*ks}:{F+4*ks+3}], v[{WB+8*ks}:{WB+8*ks+7}], v{vIdx}')
        a('s_waitcnt lgkmcnt(0)')
        a('s_nop 5')
        for (WA, WB, TA, TB, coff) in pairs:
            self.pair_epilogue(TA, TB, RR)
            a(f'buffer_store_dword v{TA}, v{vCoff}, s[{sWS}:{sWS+3}], s{sC_W} offen offset:{coff} sc1')
            a(f'buffer_store_dword v{TB}, v{vCoff}, s[{sWS}:{sWS+3}], s{sC_W} offen offset:{coff+128} sc1')

    def pair_epilogue(self, TA, TB, RR=None):
        a = self.a
        a(f"""v_pk_add_f32 v[{TA}:{TA+1}], v[{TA}:{TA+1}], v[{TA+2}:{TA+3}]
              v_pk_add_f32 v[{TB+2}:{TB+3}], v[{TB}:{TB+1}], v[{TB+2}:{TB+3}]""")
        if RR is not None:
            a(f"""v_pk_mul_f32 v[{TA}:{TA+1}], v[{TA}:{TA+1}], v[{RR}:{RR+1}]
                  v_pk_mul_f32 v[{TB+2}:{TB+3}], v[{TB+2}:{TB+3}], v[{RR}:{RR+1}]
                  v_add_u32 v{TA}, s{sPADD}, v{TA}
                  v_add_u32 v{TA+1}, s{sPADD}, v{TA+1}
                  v_and_or_b32 v{TA}, v{TA}, v{self.vMask}, s{sPOR}
                  v_and_or_b32 v{TA+1}, v{TA+1}, v{self.vMask}, s{sPOR}
                  v_cvt_pk_bf16_f32 v{TA}, v{TA}, v{TB+2}
                  v_cvt_pk_bf16_f32 v{TB}, v{TA+1}, v{TB+3}""")
            return
        a(f"""v_cvt_pk_bf16_f32 v{TA}, v{TA}, v{TB+2}
              v_cvt_pk_bf16_f32 v{TB}, v{TA+1}, v{TB+3}
              v_min_u32 v{TA}, -2, v{TA}
              v_min_u32 v{TB}, -2, v{TB}""")

    def zero(self, r, n):
        for k in range(n): self.a(f'v_mov_b32 v{r+k}, 0')

    def c_off(self, dst, pw_sgpr_or_int):
        a = self.a
        T0 = self.vT0
        a(f'''v_lshrrev_b32 v{dst}, 3, v{self.vN}
              v_lshlrev_b32 v{dst}, 14, v{dst}
              v_bfe_u32 v{T0}, v{self.vN}, 2, 1
              v_lshl_add_u32 v{dst}, v{T0}, 6, v{dst}
              v_lshl_add_u32 v{dst}, v{self.vQ}, 4, v{dst}
              v_and_b32 v{T0}, 3, v{self.vN}
              v_lshl_add_u32 v{dst}, v{T0}, 2, v{dst}
              s_mul_i32 s{sT0}, s{sG}, 163840''')
        if isinstance(pw_sgpr_or_int, int):
            a(f's_add_u32 s{sT0}, s{sT0}, {32768*pw_sgpr_or_int}')
        else:
            a(f's_lshl_b32 s{sT1}, {pw_sgpr_or_int}, 15')
            a(f's_add_u32 s{sT0}, s{sT0}, s{sT1}')
        a(f'v_add_u32 v{dst}, s{sT0}, v{dst}')

    def wo_weights(self, WA, WB, pw, vtmp, tmp, between=None):
        a = self.a
        srd(a, ptr(5), NH * DH * DM * 2)
        self.wrow_lane(vtmp, 1280)
        a(f'''s_mul_i32 s{sT0}, s{sH}, {DH*DM*2}
              s_mul_i32 s{sT1}, s{sG}, 320
              s_add_u32 s{sT0}, s{sT0}, s{sT1}''')
        if isinstance(pw, int):
            a(f's_add_u32 s{sT0}, s{sT0}, {64*pw}')
        else:
            a(f's_lshl_b32 s{sT1}, {pw}, 6')
            a(f's_add_u32 s{sT0}, s{sT0}, s{sT1}')
        a(f'''v_lshl_add_u32 v{vtmp}, v{self.vN}, 2, v{vtmp}
              v_add_u32 v{vtmp}, s{sT0}, v{vtmp}''')
        self.load_pair(WA, WB, 3, vtmp, 1280, tmp, between)

    def finish(self):
        self.dump_stamps()
        self.a('s_endpgm')

    def touch_weights(self):
        a = self.a
        T0, T1 = self.vT0, self.vT1
        a(f's_mov_b32 m0, {SWEEP_LDS}')
        srd(a, ptr(4), DM * NH * DH * 2)
        a(f"""s_mov_b32 s{sT0}, 12288
              v_mul_lo_u32 v{T0}, v{self.vL}, s{sT0}
              s_mul_i32 s{sT0}, s{sH}, 384
              s_mul_i32 s{sT1}, s{sG}, 96
              s_add_u32 s{sT0}, s{sT0}, s{sT1}
              s_mul_i32 s{sT1}, s{sRED}, {64*12288}
              s_add_u32 s{sT0}, s{sT0}, s{sT1}""")
        for i in range(4):
            a(f'buffer_load_dword v{T0}, s[{sT}:{sT+3}], s{sT0} offen lds')
            a(f'buffer_load_dword v{T0}, s[{sT}:{sT+3}], s{sT0} offen offset:92 lds')
            if i < 3: a(f's_add_u32 s{sT0}, s{sT0}, {192*12288}')
        srd(a, ptr(5), NH * DH * DM * 2)
        a(f"""v_mul_u32_u24 v{T1}, 1280, v{self.vL}
              s_mul_i32 s{sT0}, s{sH}, {DH*DM*2}
              s_mul_i32 s{sT1}, s{sG}, 320
              s_add_u32 s{sT0}, s{sT0}, s{sT1}
              s_mul_i32 s{sT1}, s{sRED}, {64*1280}
              s_add_u32 s{sT0}, s{sT0}, s{sT1}""")
        for off in (0, 128, 256, 316):
            a(f'buffer_load_dword v{T1}, s[{sT}:{sT+3}], s{sT0} offen offset:{off} lds')

    def c_page_init(self, R, vLin):
        a = self.a
        a(f's_add_u32 s{sT2}, s{sCI}, 4096')
        for k in range(5):
            a(f'buffer_store_dwordx4 v[{R}:{R+3}], v{vLin}, s[{sWS}:{sWS+3}], s{sT2 if k == 4 else sCI} offen offset:{1024*(k&3)} sc1')
        a(f's_add_u32 s{sCI}, s{sCI}, 0x200000')

    def init_job(self, R):
        a = self.a
        vLin = R + 20
        sU = sA_P
        a(f"""s_lshl_b32 s{sU}, s{sJ}, 4
              s_add_u32 s{sU}, s{sU}, s{sC}
              s_mul_i32 s{sU}, s{sU}, 3
              s_add_u32 s{sU}, s{sU}, s{sRED}
              v_lshlrev_b32 v{vLin}, 4, v{self.vL}""")
        for k in range(4): a(f'v_mov_b32 v{R+k}, -1')
        for k in range(4): a(f'v_mov_b32 v{R+4+k}, 0')
        l1, l2 = a.newlabel('Lin'), a.newlabel('Lin')
        a(f"""s_cmp_ge_u32 s{sU}, 368
              s_cbranch_scc1 {l1}
              s_lshl_b32 s{sT0}, s{sU}, 12
              s_add_u32 s{sT0}, s{sT0}, {WS_RA}""")
        l0 = a.newlabel('Lin')
        a(f"""s_cmp_lt_u32 s{sU}, 20
              s_cbranch_scc1 {l0}""")
        for k in range(4):
            a(f'buffer_store_dwordx4 v[{R}:{R+3}], v{vLin}, s[{sWS}:{sWS+3}], s{sT0} offen offset:{1024*k} sc1')
        a(f's_branch {l1}')
        a.label(l0)
        srd(a, ptr(1), 10240)
        a(f's_lshl_b32 s{sT1}, s{sU}, 12')
        for k in range(4):
            D = R + 24 + 4*k
            a(f"""s_add_u32 s{sT2}, s{sT1}, {1024*k}
                  s_lshr_b32 s{sT3}, s{sT2}, 10
                  s_mul_i32 s{sT3}, s{sT3}, 205
                  s_lshr_b32 s{sT3}, s{sT3}, 11
                  s_mul_i32 s{sT3}, s{sT3}, 10240
                  s_sub_u32 s{sT2}, s{sT2}, s{sT3}
                  s_lshr_b32 s{sT2}, s{sT2}, 3
                  v_lshrrev_b32 v{R+8}, 2, v{self.vN}
                  v_and_b32 v{R+9}, 1, v{self.vN}
                  v_lshl_add_u32 v{R+8}, v{R+8}, 1, v{R+9}
                  v_mul_u32_u24 v{R+8}, 1280, v{R+8}
                  v_lshl_add_u32 v{R+8}, v{self.vQ}, 5, v{R+8}
                  v_bfe_u32 v{R+9}, v{self.vN}, 1, 1
                  v_lshl_add_u32 v{R+8}, v{R+9}, 4, v{R+8}
                  buffer_load_dwordx4 v[{D}:{D+3}], v{R+8}, s[{sT}:{sT+3}], s{sT2} offen""")
        a('s_waitcnt vmcnt(0)')
        for k in range(4):
            D = R + 24 + 4*k
            for e in range(4): a(f'v_min_u32 v{D+e}, -2, v{D+e}')
            a(f'buffer_store_dwordx4 v[{D}:{D+3}], v{vLin}, s[{sWS}:{sWS+3}], s{sT0} offen offset:{1024*k} sc1')
        a('s_waitcnt vmcnt(0)')
        a.label(l1)
        a(f"""s_sub_u32 s{sT0}, s{sU}, 4
              s_cmp_ge_u32 s{sT0}, 252
              s_cbranch_scc1 {l2}
              s_lshl_b32 s{sT0}, s{sU}, 10
              s_add_u32 s{sT0}, s{sT0}, {WS_FLAG}
              buffer_store_dwordx4 v[{R+4}:{R+7}], v{vLin}, s[{sWS}:{sWS+3}], s{sT0} offen sc1""")
        a.label(l2)

    def arrive_init(self, R):
        t1, t2 = R + 14, R + 15
        self.a(f"""s_waitcnt vmcnt(0)
              v_mov_b32 v{t1}, 1
              v_mov_b32 v{t2}, 128
              s_mov_b64 exec, 1
              buffer_atomic_add v{t1}, v{t2}, s[{sDBG}:{sDBG+3}], 0 offen sc1
              s_mov_b64 exec, -1""")

    def role_qk(self):
        a = self.a
        al = Alloc(1, 256)
        self.lanes(al)
        WA, WB = al(80, 4), al(80, 4)
        M = al(40, 4)
        TA, TB = al(4, 4), al(4, 4)
        SEL = al(4, 4)
        RC = al(2)
        AC2 = al(4, 2)
        vFrag, vIdx, vB, vAst, vSent = al(3, 1), al(), al(), al(), al(2)
        T0, T1, T2 = self.vT0, self.vT1, self.vT2
        a(f'v_lshlrev_b32 v{vFrag}, 4, v{self.vL}'); self.idx_reg(vIdx)
        a(f'v_add_u32 v{vFrag+1}, 4096, v{vFrag}')
        a(f'v_add_u32 v{vFrag+2}, 8192, v{vFrag}')
        a(f'''s_mul_i32 s{sT2}, s{sG}, 3
              s_add_u32 s{sT2}, s{sT2}, s{sW}
              s_cmp_ge_u32 s{sT2}, 6
              s_cselect_b32 s{sT}, s{ptr(3)}, s{ptr(2)}
              s_cselect_b32 s{sT+1}, s{ptr(3)+1}, s{ptr(2)+1}
              s_cselect_b32 s{sT1}, 6, 0
              s_lshl_b32 s{sT3}, s{sT2}, 9
              s_sub_u32 s{sT2}, s{sT2}, s{sT1}
              s_mov_b32 s{sT+2}, {DM*NH*DH*2}
              s_mov_b32 s{sT+3}, 0x20000
              s_lshl_b32 s{sT2}, s{sT2}, 6
              v_lshlrev_b32 v{vB}, 7, v{self.vQ}
              v_lshl_add_u32 v{vB}, v{self.vN}, 2, v{vB}
              v_add_u32 v{vB}, s{sT3}, v{vB}''')
        a(f'''v_and_b32 v{T1}, 12, v{self.vN}
              v_and_b32 v{T0}, 1, v{self.vN}
              v_lshl_add_u32 v{T1}, v{T0}, 1, v{T1}
              v_bfe_u32 v{T0}, v{self.vN}, 1, 1
              v_lshl_add_u32 v{T1}, v{T0}, 4, v{T1}
              v_lshlrev_b32 v{T2}, 1, v{T1}
              s_mul_i32 s{sT0}, s{sH}, 384
              s_add_u32 s{sT0}, s{sT0}, s{sT2}''')
        self.load_w(WA, WB, 10, 12288, sT0, T2, M)
        a(f'''s_and_b32 s{sT0}, s{sJ}, 1
              s_lshl_b32 s{sT0}, s{sT0}, 4
              s_add_u32 s{sT0}, s{sT0}, s{sC}
              s_lshl_b32 s{sT1}, s{sW}, 5
              s_add_u32 s{sT0}, s{sT0}, s{sT1}
              s_lshr_b32 s{sRED}, s{sT0}, 1
              s_and_b32 s{sT2}, s{sT0}, 1
              s_lshl_b32 s{sT0}, s{sRED}, 8
              s_lshl_b32 s{sT3}, s{sT2}, 4
              s_add_u32 s{sT0}, s{sT0}, s{sT3}
              s_lshl_b32 s{sT1}, s{sRED}, 14
              s_lshl_b32 s{sT3}, s{sT2}, 7
              s_add_u32 s{sT1}, s{sT1}, s{sT3}
              v_lshlrev_b32 v{RC}, 8, v{self.vQ}
              v_lshrrev_b32 v{T0}, 3, v{self.vN}
              v_lshl_add_u32 v{RC}, v{T0}, 10, v{RC}
              v_and_b32 v{T0}, 7, v{self.vN}
              v_lshl_add_u32 v{RC}, v{T0}, 4, v{RC}
              v_add_u32 v{RC}, s{sT1}, v{RC}
              v_add_u32 v{RC+1}, 4096, v{RC}
              v_bfe_u32 v{T0}, v{self.vN}, 2, 1
              v_lshlrev_b32 v{vAst}, 5, v{T0}
              v_and_b32 v{T0}, 3, v{self.vN}
              v_lshl_add_u32 v{vAst}, v{T0}, 6, v{vAst}
              v_lshl_add_u32 v{vAst}, v{self.vQ}, 3, v{vAst}
              v_add_u32 v{vAst}, s{sT0}, v{vAst}
              s_mov_b32 s{sMA}, 0x00ff00ff
              s_mov_b32 s{sMA+1}, 0''')
        a(f'''s_nop 0
              v_mov_b32 v{vSent}, -1
              v_mov_b32 v{vSent+1}, -1''')
        for p in range(4):
            a(f'''v_mov_b32 v{SEL+p}, 0
                  v_mov_b32 v{T0}, 0x3f80
                  v_cmp_eq_u32 vcc, {2*p}, v{self.vN}
                  s_nop 1
                  v_cndmask_b32 v{SEL+p}, v{SEL+p}, v{T0}, vcc
                  v_mov_b32 v{T0}, 0x3f800000
                  v_cmp_eq_u32 vcc, {2*p+1}, v{self.vN}
                  s_nop 1
                  v_cndmask_b32 v{SEL+p}, v{SEL+p}, v{T0}, vcc''')
        self.zero(TA, 8)
        self.mark(1)
        self.wait_all_registered()
        a('s_barrier')
        self.mark(2)
        loop, end = a.newlabel('Lqk'), a.newlabel('Lqkend')
        a('s_barrier')
        a.label(loop)
        a('s_barrier')
        self.stamp(0)
        for ks in range(10):
            a(f'ds_read_b128 v[{M+4*ks}:{M+4*ks+3}], v{vFrag} offset:{LM + 1024*ks}')
        for ks in range(10):
            a(f's_waitcnt lgkmcnt({9-ks})')
            a(f'v_smfmac_f32_16x16x64_bf16 v[{TA}:{TA+3}], v[{M+4*ks}:{M+4*ks+3}], v[{WA+8*ks}:{WA+8*ks+7}], v{vIdx}')
            a(f'v_smfmac_f32_16x16x64_bf16 v[{TB}:{TB+3}], v[{M+4*ks}:{M+4*ks+3}], v[{WB+8*ks}:{WB+8*ks+7}], v{vIdx}')
        a('s_nop 7')
        self.pair_epilogue(TA, TB)
        self.lstore([f'buffer_store_dword v{TA}, v{vB}, s[{sWS}:{sWS+3}], s{sB_C} offen',
                     f'buffer_store_dword v{TB}, v{vB}, s[{sWS}:{sWS+3}], s{sB_C} offen offset:64'])
        a('s_barrier')
        self.stamp(1)
        def resets():
            self.lstore([f'buffer_store_dword v{vSent}, v{vB}, s[{sWS}:{sWS+3}], s{sB_R} offen',
                         f'buffer_store_dword v{vSent}, v{vB}, s[{sWS}:{sWS+3}], s{sB_R} offen offset:64'])
            sk = a.newlabel('Lqar')
            a(f's_cmp_ge_u32 s{sRED}, 40')
            a(f's_cbranch_scc1 {sk}')
            a(f's_mov_b64 exec, s[{sMA}:{sMA+1}]')
            self.lstore([f'buffer_store_dwordx2 v[{vSent}:{vSent+1}], v{vAst}, s[{sWS}:{sWS+3}], s{sA_R} offen'])
            a('s_mov_b64 exec, -1')
            a.label(sk)
        self.zero(TA, 8)
        a('s_barrier')
        resets()
        if self.opt.get('prof'):
            a(f'''s_memrealtime s[{sST+10}:{sST+11}]
                  s_lshl_b32 s{sT0}, s{sJ}, 4
                  s_add_u32 s{sT0}, s{sT0}, s{sC}
                  s_lshl_b32 s{sT0}, s{sT0}, 2
                  s_add_u32 s{sT0}, s{sT0}, s{sW}
                  s_lshl_b32 s{sT0}, s{sT0}, 6
                  s_add_u32 s{sT0}, s{sT0}, s{sSTEP}
                  s_lshl_b32 s{sT0}, s{sT0}, 2
                  s_add_u32 s{sT0}, s{sT0}, {WS_DBG + 0x200000}
                  v_mov_b32 v{T1}, 0
                  s_waitcnt lgkmcnt(0)
                  v_mov_b32 v{T0}, s{sST+10}
                  buffer_store_dword v{T0}, v{T1}, s[{sWS}:{sWS+3}], s{sT0} offen
                  s_memtime s[{sST+10}:{sST+11}]
                  s_add_u32 s{sT0}, s{sT0}, 0x40000
                  s_waitcnt lgkmcnt(0)
                  v_mov_b32 v{T0}, s{sST+10}
                  buffer_store_dword v{T0}, v{T1}, s[{sWS}:{sWS+3}], s{sT0} offen
                  s_add_u32 s{sT0}, s{sT0}, 0x40000
                  v_mov_b32 v{T0}, s{sBUD}
                  buffer_store_dword v{T0}, v{T1}, s[{sWS}:{sWS+3}], s{sT0} offen''')
        a('s_barrier')
        if self.opt.get('trace2'): a(f's_memtime s[{sST+0}:{sST+1}]')
        a(f'''s_cmp_eq_u32 s{sSTEP}, 63
              s_cbranch_scc1 {end}''')
        ok, fin = a.newlabel('LpCok'), a.newlabel('LpCfin')
        ACC = AC2
        entry = {(h, ph): a.newlabel('LpC') for h in range(2) for ph in range(2)}
        nored = a.newlabel('Lqnr')
        a(f'''s_cmp_ge_u32 s{sRED}, 40
              s_cbranch_scc1 {nored}
              s_bitcmp1_b32 s{sCS}, 8
              s_cbranch_scc1 {entry[(1,1)]}_in''')
        for half in (1,):
            nl = 4
            for ph in range(2):
                lp = entry[(half, ph)]
                a.label(lp + '_in')
                if self.opt.get('c_sleep'): a(f"s_sleep {self.opt['c_sleep']}")
                if self.opt.get('fine'): self.stamp(5)
                a.label(lp)
                for t in range(nl):
                    reg, off = (RC + (t >> 1), 2048 * (t & 1)) if half else (RC + (t >> 2), 1024 * (t & 3))
                    a(f'buffer_load_dwordx4 v[{M+4*t}:{M+4*t+3}], v{reg}, s[{sWS}:{sWS+3}], s{sC_RD} offen offset:{off} sc1')
                a('s_mov_b64 exec, -1')
                op3 = (lambda d, x, y, z: f'v_bitop3_b32 v{d}, v{x}, v{y}, v{z} bitop3:0x80') if ph else (lambda d, x, y, z: f'v_or3_b32 v{d}, v{x}, v{y}, v{z}')
                for t in range(nl):
                    a(f's_waitcnt vmcnt({nl-1-t})')
                    if t == 0 and self.opt.get('fine'): self.stamp(2)
                    a(f'v_mfma_f32_16x16x32_bf16 v[{ACC}:{ACC+3}], v[{SEL}:{SEL+3}], v[{M+4*t}:{M+4*t+3}], ' + ('0' if t == 0 else f'v[{ACC}:{ACC+3}]'))
                    if t == 0:
                        a(op3(T0, M, M+1, M+2)); a(op3(T0, T0, M+3, M+3))
                    else:
                        a(op3(T0, T0, M+4*t, M+4*t+1)); a(op3(T0, T0, M+4*t+2, M+4*t+3))
                rt, bk = a.newlabel('LpCr'), a.newlabel('LpCb')
                a(f'''v_and_b32 v{T0}, 1, v{T0}
                      v_cmp_ne_u32 vcc, {ph}, v{T0}
                      s_cbranch_vccnz {rt}''')
                a.label(bk)
                if self.opt.get('trace2'): a(f's_memtime s[{sST+2}:{sST+3}]')
                def tail(rt=rt, bk=bk, lp=lp):
                    a.label(rt)
                    a('s_mov_b64 exec, vcc')
                    self.retry(lp, 3)
                    a('s_mov_b64 exec, -1')
                    a(f's_branch {bk}')
                self.tails.append(tail)
                a('s_nop 2')
                if half:
                    for k in range(4):
                        a(f'v_add_f32_dpp v{ACC+k}, v{ACC+k}, v{ACC+k} row_ror:8 row_mask:0xf bank_mask:0xf')
                self.stamp(3)
                a(f'''v_cvt_pk_bf16_f32 v{ACC}, v{ACC}, v{ACC+1}
                      v_cvt_pk_bf16_f32 v{ACC+1}, v{ACC+2}, v{ACC+3}
                      s_mov_b64 exec, s[{sMA}:{sMA+1}]
                      v_min_u32 v{ACC}, -2, v{ACC}
                      v_min_u32 v{ACC+1}, -2, v{ACC+1}''')
                self.lstore([f'buffer_store_dwordx2 v[{ACC}:{ACC+1}], v{vAst}, s[{sWS}:{sWS+3}], s{sA_N} offen'])
                if not (half and ph): a(f's_branch {fin}')
        a(f's_branch {fin}')
        a.label(nored)
        a('s_waitcnt vmcnt(0)')
        a.label(fin)
        if self.opt.get('dump_mem'):
            l = a.newlabel('Ldm')
            a(f'''s_cmp_lg_u32 s{sJ}, 0
                  s_cbranch_scc1 {l}
                  s_mul_i32 s{sT0}, s{sSTEP}, 10240
                  s_add_u32 s{sT0}, s{sT0}, {WS_DBG}
                  buffer_store_dwordx2 v[{ACC}:{ACC+1}], v{vAst}, s[{sWS}:{sWS+3}], s{sT0} offen''')
            a.label(l)
        a('s_mov_b64 exec, -1')
        a('s_barrier')
        if self.opt.get('trace2'): a(f's_memtime s[{sST+4}:{sST+5}]')
        if self.opt.get('trace2'):
            a(f"""s_waitcnt lgkmcnt(0)
                  s_lshl_b32 s{sT0}, s{sJ}, 4
                  s_add_u32 s{sT0}, s{sT0}, s{sC}
                  s_lshl_b32 s{sT0}, s{sT0}, 2
                  s_add_u32 s{sT0}, s{sT0}, s{sW}
                  s_lshl_b32 s{sT0}, s{sT0}, 6
                  s_add_u32 s{sT0}, s{sT0}, s{sSTEP}
                  s_lshl_b32 s{sT0}, s{sT0}, 4
                  s_add_u32 s{sT0}, s{sT0}, {WS_DBG + 0x400000}
                  s_sub_u32 s{sT1}, s{sST+2}, s{sST}
                  v_mov_b32 v{M}, s{sT1}
                  s_sub_u32 s{sT1}, s{sST+4}, s{sST}
                  v_mov_b32 v{M+1}, s{sT1}
                  v_mov_b32 v{M+2}, s{sBUD}
                  v_mov_b32 v{T0}, 0
                  s_mov_b64 exec, 1
                  buffer_store_dwordx4 v[{M}:{M+3}], v{T0}, s[{sWS}:{sWS+3}], s{sT0} offen
                  s_mov_b64 exec, -1
                  s_nop 1""")
        self.stamp(4)
        self.next_step()
        a('s_waitcnt lgkmcnt(0)')
        a(f's_branch {loop}')
        a.label(end)
        a('s_barrier')
        self.finish()
        self.emit_tail()

    def role_v(self):
        a = self.a
        al = Alloc(1, 256)
        self.lanes(al)
        WA, WB = al(80, 4), al(80, 4)
        M = al(48, 4)
        TA, TB = al(4, 4), al(4, 4)
        F = al(12, 4); RR = al(2, 2)
        vFrag, vIdx, vB, vAoff, vV, vSent, vCoff, vOst = [al() for _ in range(8)]
        vLin = vV
        a(f"""v_lshrrev_b32 v{self.vT1}, 3, v{self.vL}
              v_lshlrev_b32 v{vOst}, 4, v{self.vT1}
              v_and_b32 v{self.vT1}, 7, v{self.vL}
              v_lshl_add_u32 v{vOst}, v{self.vT1}, 8, v{vOst}
              s_lshr_b32 s{sT0}, s{sG}, 1
              s_mul_i32 s{sT0}, s{sT0}, 192
              s_mul_i32 s{sT1}, s{sH}, 6
              s_add_u32 s{sT0}, s{sT0}, s{sT1}
              s_lshl_b32 s{sT0}, s{sT0}, 10
              s_and_b32 s{sT1}, s{sG}, 1
              s_lshl_b32 s{sT1}, s{sT1}, 7
              s_add_u32 s{sT0}, s{sT0}, s{sT1}
              v_add_u32 v{vOst}, s{sT0}, v{vOst}""")
        def o_store(back):
            if self.opt.get('no_ost'): return
            a(f's_sub_u32 s{sT0}, s{sO_C}, {back*32*12288}')
            a(f's_add_u32 s{sT1}, s{sT0}, 4096')
            for k in range(3):
                a(f'ds_read_b128 v[{F+4*k}:{F+4*k+3}], v{vLin} offset:{LOX + 1024*k}')
            for k in range(3):
                a(f's_waitcnt lgkmcnt({2-k})')
                a(f'buffer_store_dwordx4 v[{F+4*k}:{F+4*k+3}], v{vOst}, s[{sWS}:{sWS+3}], s{sT1 if k == 2 else sT0} offen offset:{2048*(k&1)} sc1')
        PX = al(8, 2)
        self.frag_addr(vFrag); self.idx_reg(vIdx)
        a(f"""v_lshlrev_b32 v{vV}, 4, v{self.vL}
              v_mov_b32 v{vSent}, -1""")
        a(f"""s_mul_i32 s{sT0}, s{sG}, 768
              s_add_u32 s{sT0}, s{sT0}, 6144
              v_lshlrev_b32 v{vB}, 5, v{self.vN}
              v_lshl_add_u32 v{vB}, v{self.vQ}, 2, v{vB}
              v_add_u32 v{vB}, s{sT0}, v{vB}""")
        srd(a, ptr(4), DM * NH * DH * 2)
        a(f"""s_mul_i32 s{sT0}, s{sH}, 384
              s_mul_i32 s{sT1}, s{sG}, 96
              s_add_u32 s{sT0}, s{sT0}, s{sT1}
              v_lshlrev_b32 v{self.vT2}, 2, v{self.vN}""")
        self.load_w(WA, WB, 10, 12288, sT0, self.vT2, M)
        self.mark(5)
        self.c_off(vCoff, 4)
        self.a_off(vAoff)
        self.zero(TA, 8)
        self.mark(1)
        self.wait_all_registered()
        own = lambda: self.dma12(vV, WS_VT, LV_OFF, [0])
        rest = lambda: self.dma12(vV, WS_VT, LV_OFF, [1, 2, 3])
        if not self.opt.get('early_stage'): self.stage_first(own, rest, 2, 1)
        a('s_barrier')
        self.mark(2)
        loop, end = a.newlabel('Lv'), a.newlabel('Lvend')
        self.a_poll(vAoff, [F], True)
        a.label(loop)
        self.stamp(0)
        for ks in range(10):
            a(f'ds_read_b128 v[{M+4*ks}:{M+4*ks+3}], v{vLin} offset:{LM + 1024*ks}')
        for ks in range(10):
            a(f's_waitcnt lgkmcnt({9-ks})')
            a(f'v_smfmac_f32_16x16x64_bf16 v[{TA}:{TA+3}], v[{M+4*ks}:{M+4*ks+3}], v[{WA+8*ks}:{WA+8*ks+7}], v{vIdx}')
            a(f'v_smfmac_f32_16x16x64_bf16 v[{TB}:{TB+3}], v[{M+4*ks}:{M+4*ks+3}], v[{WB+8*ks}:{WB+8*ks+7}], v{vIdx}')
            if ks == self.opt.get('v_bar', 8): a('s_barrier')
        a(f"""s_nop 7
              v_pk_add_f32 v[{TA}:{TA+1}], v[{TA}:{TA+1}], v[{TA+2}:{TA+3}]
              v_pk_add_f32 v[{TB}:{TB+1}], v[{TB}:{TB+1}], v[{TB+2}:{TB+3}]
              v_cvt_pk_bf16_f32 v{TA}, v{TA}, v{TA+1}
              v_cvt_pk_bf16_f32 v{TB}, v{TB}, v{TB+1}
              v_min_u32 v{TA}, -2, v{TA}
              v_min_u32 v{TB}, -2, v{TB}""")
        self.lstore([f'buffer_store_dword v{TA}, v{vB}, s[{sWS}:{sWS+3}], s{sB_C} offen',
                     f'buffer_store_dword v{TB}, v{vB}, s[{sWS}:{sWS+3}], s{sB_C} offen offset:16'])
        self.stamp(1)
        a('s_waitcnt vmcnt(2)')
        for k in range(12):
            a(f'ds_read_b128 v[{M+4*k}:{M+4*k+3}], v{vLin} offset:{LW5 + 1024*k}')
        self.zero(TA, 8)
        a('s_barrier')
        self.lstore([f'buffer_store_dword v{vSent}, v{vB}, s[{sWS}:{sWS+3}], s{sB_R} offen',
                     f'buffer_store_dword v{vSent}, v{vB}, s[{sWS}:{sWS+3}], s{sB_R} offen offset:16'])
        a(f"s_sleep {self.opt.get('d_sleep', 7)}" if self.opt.get('d_sleep', 7) else 's_nop 0')
        def o_prev():
            no0 = a.newlabel('Lvn0')
            a('s_waitcnt lgkmcnt(0)')
            a(f's_cmp_eq_u32 s{sSTEP}, 0')
            a(f's_cbranch_scc1 {no0}')
            o_store(1)
            a.label(no0)
        if not self.opt.get('o_late'): o_prev()
        self.stage(own, rest, 2, 1)
        if self.opt.get('o_late'): o_prev()
        if self.opt.get('fused'):
            nq = a.newlabel('Lvnq')
            a(f"""s_cmp_lt_u32 s{sSTEP}, {self.opt.get('of_all', 58)}
                  s_cbranch_scc1 {nq}
                  s_waitcnt vmcnt(0)""")
            self.o_flag(1)
            a.label(nq)
        a('s_waitcnt lgkmcnt(0)')
        self.stamp(5)
        a('s_barrier')
        self.stamp(2)
        self.wo_stage([(M, M + 24, TA, TB, 0)], vFrag, vIdx, F, vCoff, RR, end)
        self.stamp(3)
        self.zero(TA, 8)
        self.a_poll(vAoff, [F, PX, M + 40])
        a(f's_branch {loop}')
        a.label(end)
        a('s_waitcnt lgkmcnt(0)')
        a('s_barrier')
        o_store(0)
        a('s_waitcnt vmcnt(0)')
        self.o_flag(0)
        self.finish()
        self.emit_tail()

    def role_w7(self):
        a = self.a
        al = Alloc(1, 256)
        self.lanes(al)
        WV = al(80, 4)
        P = [(al(24, 4), al(24, 4), al(4, 4), al(4, 4), 0)]
        M = al(40, 4)
        TV = al(4, 4)
        SENT = al(4, 4); RR = al(2, 2)
        vFrag, vIdx, vB, vAoff, vK, vQx, vCoff, vCr = [al() for _ in range(8)]
        vSel = TV
        PX = al(24, 2)
        T0, T1 = self.vT0, self.vT1
        self.frag_addr(vFrag); self.idx_reg(vIdx)
        a(f"""v_lshlrev_b32 v{vK}, 4, v{self.vL}
              v_and_b32 v{T0}, 7, v{self.vL}
              v_lshlrev_b32 v{vQx}, 4, v{T0}
              v_lshrrev_b32 v{T0}, 5, v{self.vL}
              v_lshl_add_u32 v{vQx}, v{T0}, 10, v{vQx}
              v_bfe_u32 v{T0}, v{self.vL}, 3, 2
              v_lshl_add_u32 v{vQx}, v{T0}, 8, v{vQx}
              s_lshr_b32 s{sT0}, s{sG}, 1
              s_mul_i32 s{sT0}, s{sT0}, 6144
              s_and_b32 s{sT1}, s{sG}, 1
              s_lshl_b32 s{sT1}, s{sT1}, 7
              s_add_u32 s{sT0}, s{sT0}, s{sT1}
              v_add_u32 v{vQx}, s{sT0}, v{vQx}""")
        for k in range(4): a(f'v_mov_b32 v{SENT+k}, -1')
        a(f"""s_mul_i32 s{sT0}, s{sG}, 768
              s_add_u32 s{sT0}, s{sT0}, {6144 + 512}
              v_lshlrev_b32 v{vB}, 4, v{self.vN}
              v_lshl_add_u32 v{vB}, v{self.vQ}, 2, v{vB}
              v_add_u32 v{vB}, s{sT0}, v{vB}
              s_mul_i32 s{sT0}, s{sG}, 2560
              v_lshlrev_b32 v{vCr}, 4, v{self.vL}
              v_add_u32 v{vCr}, s{sT0}, v{vCr}""")
        self.c_off(vCoff, 3)
        srd(a, ptr(4), DM * NH * DH * 2)
        a(f"""s_mul_i32 s{sT0}, s{sH}, 384
              s_mul_i32 s{sT1}, s{sG}, 96
              s_add_u32 s{sT0}, s{sT0}, s{sT1}
              s_add_u32 s{sT0}, s{sT0}, 32
              v_and_b32 v{T0}, 14, v{self.vN}
              v_lshlrev_b32 v{self.vT2}, 1, v{T0}
              v_add_u32 v{self.vT2}, 32, v{self.vT2}
              v_and_b32 v{T0}, 1, v{self.vN}
              v_cmp_eq_u32 vcc, 1, v{T0}
              v_mov_b32 v{vSel}, s{sSELLO}
              v_mov_b32 v{T0}, s{sSELHI}
              s_nop 1
              v_cndmask_b32 v{vSel}, v{vSel}, v{T0}, vcc""")
        if self.opt.get('y_prio'): a('s_setprio 3')
        self.load_w(WV, None, 10, 12288, sT0, self.vT2, M, vSel)
        self.mark(5)
        self.a_off(vAoff)
        self.zero(TV, 4)
        for p in P: self.zero(p[2], 8)
        self.mark(1)
        self.wait_all_registered()
        assert P[0][1] == P[0][0] + 24
        for k in range(12):
            a(f'ds_read_b128 v[{P[0][0]+4*k}:{P[0][0]+4*k+3}], v{vK} offset:{1024*k}')
        a('s_waitcnt lgkmcnt(0)')
        def own():
            self.dma_q(vQx); self.dma12(vK, WS_K, LK_OFF, [0])
        rest = lambda: self.dma12(vK, WS_K, LK_OFF, [1, 2, 3])
        if not self.opt.get('early_stage'): self.stage_first(own, rest, 0, 2)
        a('s_barrier')
        self.mark(2)
        loop, end = a.newlabel('Lw7'), a.newlabel('Lw7end')
        self.a_poll(vAoff, [PX], True)
        a.label(loop)
        self.stamp(0)
        for ks in range(10):
            a(f'ds_read_b128 v[{M+4*ks}:{M+4*ks+3}], v{vK} offset:{LM + 1024*ks}')
        for ks in range(10):
            a(f's_waitcnt lgkmcnt({9-ks})')
            a(f'v_smfmac_f32_16x16x64_bf16 v[{TV}:{TV+3}], v[{M+4*ks}:{M+4*ks+3}], v[{WV+8*ks}:{WV+8*ks+7}], v{vIdx}')
            if ks == self.opt.get('w7_bar', 99): a('s_barrier')
        a(f"""s_nop 7
              v_pk_add_f32 v[{TV}:{TV+1}], v[{TV}:{TV+1}], v[{TV+2}:{TV+3}]
              v_cvt_pk_bf16_f32 v{TV}, v{TV}, v{TV+1}
              v_min_u32 v{TV}, -2, v{TV}""")
        self.lstore([f'buffer_store_dword v{TV}, v{vB}, s[{sWS}:{sWS+3}], s{sB_C} offen'])
        if self.opt.get('w7_bar', 99) > 9: a('s_barrier')
        self.stamp(1)
        self.zero(TV, 4)
        a('s_barrier')
        self.lstore([f'buffer_store_dword v{SENT}, v{vB}, s[{sWS}:{sWS+3}], s{sB_R} offen'])
        a(f"s_sleep {self.opt.get('d_sleep', 7)}" if self.opt.get('d_sleep', 7) else 's_nop 0')
        if self.opt.get('dma_time'): self.stamp(1)
        nf, yf = a.newlabel('Lw7nf'), a.newlabel('Lw7yf')
        a(f"""s_cmp_ge_u32 s{sSTEP}, {self.opt.get('of_all', 58)}
              s_cbranch_scc1 {nf}
              s_and_b32 s{sT0}, s{sSTEP}, {self.opt.get('of_every', 1) - 1}
              s_cmp_lg_u32 s{sT0}, {min(2, self.opt.get('of_every', 1) - 1)}
              s_cbranch_scc1 {nf}
              s_cmp_lt_u32 s{sSTEP}, 2
              s_cbranch_scc1 {nf}""")
        a.label(yf)
        self.o_flag(2)
        a.label(nf)
        self.stage(own, rest, 0, 2)
        if self.opt.get('dma_time'): a('s_waitcnt vmcnt(0)')
        self.stamp(5)
        a('s_barrier')
        self.stamp(2)
        self.wo_stage(P, vFrag, vIdx, M, vCoff, RR, end)
        self.stamp(3)
        for p in P: self.zero(p[2], 8)
        self.a_poll(vAoff, [PX, PX + 8, PX + 16])
        a(f's_branch {loop}')
        a.label(end)
        a('s_barrier')
        self.finish()
        self.emit_tail()

    def role_att(self):
        a = self.a
        al = Alloc(1, 256)
        self.lanes(al)
        TM = al(2, 2)
        WA, WB = al(24, 4), al(24, 4)
        TA, TB = al(4, 4), al(4, 4)
        KX = al(48, 4); X = al(24, 4); Y = al(24, 4)
        VX = al(16, 4); VM = al(8, 2)
        BI = al(12, 4); SS = al(12, 4)
        PP = al(6, 2); RR = PP
        OO = al(16, 4); LL = al(4, 4)
        ONES = al(4, 4)
        F = SS
        vFrag, vIdx, vAoff, vXY, vVM, vOw, vCoff, vLin, vQr, vBp, vRw, vOx = [al() for _ in range(12)]
        T0, T1, T2 = self.vT0, self.vT1, self.vT2
        sWP = sRED
        a(f's_sub_u32 s{sWP}, s{sW}, 4')
        self.frag_addr(vFrag); self.idx_reg(vIdx)
        self.c_off(vCoff, f's{sWP}')
        if self.opt.get('touch'): self.touch_weights()
        if self.opt.get('y_prio'): a('s_setprio 3')
        def mid():
            self.init_job(KX)
            arrive(a, 6, KX + 16)
            self.arrive_init(KX)
            self.mark(5)
        self.wo_weights(WA, WB, f's{sWP}', vAoff, T2, mid)
        nx = a.newlabel('Latnx')
        a(f"""s_cmp_ge_u32 s{sWP}, 2
              s_cbranch_scc1 {nx}
              s_add_u32 s{sA_P}, s{sWP}, 3""")
        self.wo_weights(KX, KX + 24, f's{sA_P}', vAoff, T2)
        a(f"""s_cmp_eq_u32 s{sWP}, 0
              s_cselect_b32 s{sT0}, 0, {LW5}
              v_lshlrev_b32 v{T0}, 4, v{self.vL}
              v_add_u32 v{T0}, s{sT0}, v{T0}""")
        for k in range(12):
            a(f'ds_write_b128 v{T0}, v[{KX+4*k}:{KX+4*k+3}] offset:{1024*k}')
        a('s_waitcnt lgkmcnt(0)')
        a.label(nx)
        if self.opt.get('early_stage'):
            vS, vQs = KX, KX + 1
            a(f"""v_lshlrev_b32 v{vS}, 4, v{self.vL}
                  v_and_b32 v{T0}, 7, v{self.vL}
                  v_lshlrev_b32 v{vQs}, 4, v{T0}
                  v_lshrrev_b32 v{T0}, 5, v{self.vL}
                  v_lshl_add_u32 v{vQs}, v{T0}, 10, v{vQs}
                  v_bfe_u32 v{T0}, v{self.vL}, 3, 2
                  v_lshl_add_u32 v{vQs}, v{T0}, 8, v{vQs}
                  s_lshr_b32 s{sT0}, s{sG}, 1
                  s_mul_i32 s{sT0}, s{sT0}, 6144
                  s_and_b32 s{sT1}, s{sG}, 1
                  s_lshl_b32 s{sT1}, s{sT1}, 7
                  s_add_u32 s{sT0}, s{sT0}, s{sT1}
                  v_add_u32 v{vQs}, s{sT0}, v{vQs}""")
            wait_registered(a, self.opt, T0, T1, self.vL)
            lq, lv2, ld = a.newlabel('Les'), a.newlabel('Les'), a.newlabel('Les')
            a(f"""s_cmp_eq_u32 s{sWP}, 2
                  s_cbranch_scc1 {lq}
                  s_cmp_eq_u32 s{sWP}, 1
                  s_cbranch_scc1 {lv2}""")
            self.stage_first(lambda: self.dma12(vS, WS_K, LK_OFF, [0]), lambda: self.dma12(vS, WS_K, LK_OFF, [1, 2, 3]), 1, 1)
            a(f's_branch {ld}')
            a.label(lv2)
            self.stage_first(lambda: self.dma12(vS, WS_VT, LV_OFF, [0]), lambda: self.dma12(vS, WS_VT, LV_OFF, [1, 2, 3]), 2, 1)
            a(f's_branch {ld}')
            a.label(lq)
            self.stage_first(lambda: self.dma_q(vQs), lambda: None, 0, 1)
            a.label(ld)
        self.a_off(vAoff)
        a(f"""v_lshlrev_b32 v{vXY}, 6, v{self.vN}
              v_lshl_add_u32 v{vXY}, v{self.vQ}, 4, v{vXY}
              s_lshl_b32 s{sT0}, s{sWP}, 10
              s_add_u32 s{sT0}, s{sT0}, 6144
              v_lshlrev_b32 v{vVM}, 4, v{self.vN}
              v_lshl_add_u32 v{vVM}, v{self.vQ}, 3, v{vVM}
              v_add_u32 v{vVM}, s{sT0}, v{vVM}
              v_lshlrev_b32 v{vLin}, 4, v{self.vL}
              s_lshl_b32 s{sT0}, s{sWP}, 11
              v_add_u32 v{vBp}, s{sT0}, v{vLin}
              v_and_b32 v{T0}, 7, v{self.vN}
              v_lshlrev_b32 v{vQr}, 4, v{T0}
              v_lshl_add_u32 v{vQr}, v{self.vQ}, 7, v{vQr}""")
        a(f"""v_lshlrev_b32 v{vRw}, 2, v{self.vL}
              v_add_u32 v{T1}, {LDUMMY}, v{vRw}
              v_add_u32 v{vRw}, {LR}, v{vRw}
              v_cmp_gt_u32 vcc, 8, v{self.vL}
              s_nop 1
              v_cndmask_b32 v{vRw}, v{T1}, v{vRw}, vcc""")
        a(f"""v_lshrrev_b32 v{T1}, 1, v{self.vQ}
              v_lshlrev_b32 v{vOw}, 7, v{T1}
              v_lshl_add_u32 v{vOw}, v{T0}, 4, v{vOw}
              v_and_b32 v{T1}, 1, v{self.vQ}
              v_lshl_add_u32 v{vOw}, v{T1}, 3, v{vOw}
              v_lshrrev_b32 v{T1}, 3, v{self.vN}
              v_mul_u32_u24 v{T1}, 3072, v{T1}
              v_add_u32 v{vOw}, v{vOw}, v{T1}
              s_lshl_b32 s{sT0}, s{sWP}, 10
              s_add_u32 s{sT0}, s{sT0}, {LO}
              v_add_u32 v{vOw}, s{sT0}, v{vOw}""")
        a(f"""s_lshl_b32 s{sT0}, s{sWP}, 10
              s_add_u32 s{sT0}, s{sT0}, {LOX}
              v_lshlrev_b32 v{vOx}, 7, v{T0}
              v_lshl_add_u32 v{vOx}, v{self.vQ}, 3, v{vOx}
              v_add_u32 v{vOx}, s{sT0}, v{vOx}""")
        a(f"""s_lshl_b32 s{sT0}, s{sG}, 3
              v_add_u32 v{T1}, s{sT0}, v{T0}
              v_cmp_gt_u32 vcc, 8, v{self.vN}
              v_mov_b32 v{T2}, 31
              s_nop 1
              v_cndmask_b32 v{T1}, v{T1}, v{T2}, vcc
              v_lshlrev_b32 v{T2}, 2, v{self.vQ}
              v_sub_u32 v{T1}, v{T1}, v{T2}
              v_mov_b32 v{T2}, 0xf149f2ca""")
        for tile in range(2):
            for r in range(4):
                a(f"""v_cmp_gt_i32 vcc, {16*tile + r}, v{T1}
                      v_mov_b32 v{BI+4*tile+r}, 0
                      s_nop 1
                      v_cndmask_b32 v{BI+4*tile+r}, v{BI+4*tile+r}, v{T2}, vcc""")
        a(f"""v_cmp_lt_u32 vcc, 1, v{self.vQ}
              v_mov_b32 v{BI+8}, 0
              s_nop 1
              v_cndmask_b32 v{BI+8}, v{BI+8}, v{T2}, vcc""")
        for r in range(1, 4): a(f'v_mov_b32 v{BI+8+r}, v{BI+8}')
        for k in range(4): a(f'v_mov_b32 v{ONES+k}, 0x3f803f80')
        self.zero(Y, 24); self.zero(VM, 8); self.zero(TA, 8)
        self.mark(1)
        self.wait_all_registered()
        def read_seg():
            a(f'v_add_u32 v{T0}, s{sLB}, v{vLin}')
            a(f'v_add_u32 v{T1}, s{sLB}, v{vQr}')
            a(f's_lshl_b32 s{sT0}, s{sWP}, 12')
            a(f'v_add_u32 v{T2}, s{sT0}, v{T0}')
            for k in range(12):
                a(f'ds_read_b128 v[{KX+4*k}:{KX+4*k+3}], v{T0} offset:{LK_OFF + 1024*k}')
            for ks in range(6):
                a(f'ds_read_b128 v[{X+4*ks}:{X+4*ks+3}], v{T1} offset:{LQ_OFF + 512*ks}')
            for t in range(4):
                a(f'ds_read_b128 v[{VX+4*t}:{VX+4*t+3}], v{T2} offset:{LV_OFF + 1024*t}')
        def vm_loads():
            a(f's_mov_b64 exec, s[{sML32}:{sML32+1}]')
            for t in range(4):
                a(f'buffer_load_dwordx2 v[{VM+2*t}:{VM+2*t+1}], v{vVM}, s[{sWS}:{sWS+3}], s{sB_C} offen offset:{256*t} sc1')
            a('s_mov_b64 exec, -1')
        a('s_barrier')
        self.mark(2)
        a(f's_mov_b32 s{sLB}, {LBUF}')
        read_seg()
        self.a_poll(vAoff, [F], True)
        loop, end = a.newlabel('Lat'), a.newlabel('Latend')
        lp, ok, vlp, vok, vrt = a.newlabel('LpB'), a.newlabel('LpBok'), a.newlabel('LpV'), a.newlabel('LpVok'), a.newlabel('LpVr')
        a.label(loop)
        if self.opt.get('trace2'): a(f's_memtime s[{sST+0}:{sST+1}]')
        a('s_barrier')
        if self.opt.get('trace2'): a(f's_memtime s[{sST+2}:{sST+3}]')
        if self.opt.get('b_sleep'): a(f"s_sleep {self.opt['b_sleep']}")
        if self.opt.get('fine'): self.stamp(0)
        self.poll2(vBp, sB_C, LQK, [OO, OO + 8][:self.opt.get('b_depth', 1)], 0, self.opt.get('b_gap', 0))
        if self.opt.get('trace2'): a(f's_memtime s[{sST+4}:{sST+5}]')
        if self.opt.get('vm_at') == -1: vm_loads()
        a(f's_mov_b64 exec, s[{sMN8}:{sMN8+1}]')
        a('s_waitcnt lgkmcnt(0)')
        a('s_barrier')
        for ks in range(6):
            a(f'ds_read_b128 v[{X+4*ks}:{X+4*ks+3}], v{vXY} offset:{LQK + 512*ks}')
        for ks in range(6):
            a(f'ds_read_b128 v[{Y+4*ks}:{Y+4*ks+3}], v{vXY} offset:{LQK + 3072 + 512*ks}')
        vm_loads()
        self.stamp(5)
        def smm(tile, ks):
            A = (KX, KX + 24, Y)[tile] + 4*ks
            c = BI + 4*tile if ks == 0 else SS + 4*tile
            a(f'v_mfma_f32_16x16x32_bf16 v[{SS+4*tile}:{SS+4*tile+3}], v[{A}:{A+3}], v[{X+4*ks}:{X+4*ks+3}], v[{c}:{c+3}]')
        for ks in range(6):
            a(f's_waitcnt lgkmcnt({11 - ks})')
            smm(0, ks); smm(1, ks)
        a('s_waitcnt lgkmcnt(0)')
        for ks in range(6):
            smm(2, ks)
            if ks == 3: a('s_waitcnt vmcnt(4)')
            if ks == 4: a(f'v_max3_f32 v{T0}, v{SS}, v{SS+1}, v{SS+2}'); a(f'v_max3_f32 v{T1}, v{SS+3}, v{SS+4}, v{SS+5}')
        self.stamp(1)
        a(f"""v_max3_f32 v{T0}, v{T0}, v{SS+6}, v{SS+7}
              v_max_f32 v{T0}, v{T0}, v{T1}
              s_nop 5
              v_max3_f32 v{T1}, v{SS+8}, v{SS+9}, v{SS+10}
              v_max3_f32 v{T0}, v{T0}, v{T1}, v{SS+11}
              v_mov_b32 v{T1}, v{T0}
              s_nop 1
              v_permlane32_swap_b32 v{T0}, v{T1}
              v_max_f32 v{T0}, v{T0}, v{T1}
              v_mov_b32 v{T1}, v{T0}
              s_nop 1
              v_permlane16_swap_b32 v{T0}, v{T1}
              v_max_f32 v{T0}, v{T0}, v{T1}
              v_mul_f32 v{TM}, s{sSCL}, v{T0}""")
        def pkfma(r):
            if self.opt.get('nopk'):
                for k in range(2): a(f'v_fma_f32 v{SS+r+k}, v{SS+r+k}, s{sSCL}, -v{TM}')
                return
            a(f'v_pk_fma_f32 v[{SS+r}:{SS+r+1}], v[{SS+r}:{SS+r+1}], s[{sSCL}:{sSCL+1}], v[{TM}:{TM+1}] op_sel_hi:[1,0,0] neg_lo:[0,0,1] neg_hi:[0,0,1]')
        for r in range(0, 8, 2): pkfma(r)
        for r in range(8): a(f'v_exp_f32 v{SS+r}, v{SS+r}')
        for r in range(8, 12, 2): pkfma(r)
        for r in range(4): a(f'v_cvt_pk_bf16_f32 v{PP+r}, v{SS+2*r}, v{SS+2*r+1}')
        a(f'v_exp_f32 v{SS+8}, v{SS+8}')
        a(f'v_exp_f32 v{SS+9}, v{SS+9}')
        a(f'v_mfma_f32_16x16x32_bf16 v[{LL}:{LL+3}], v[{ONES}:{ONES+3}], v[{PP}:{PP+3}], 0')
        a(f'v_exp_f32 v{SS+10}, v{SS+10}')
        a(f'v_mfma_f32_16x16x32_bf16 v[{OO}:{OO+3}], v[{VX}:{VX+3}], v[{PP}:{PP+3}], 0')
        a(f'v_exp_f32 v{SS+11}, v{SS+11}')
        a(f'v_mfma_f32_16x16x32_bf16 v[{OO+4}:{OO+7}], v[{VX+4}:{VX+7}], v[{PP}:{PP+3}], 0')
        a(f'v_cvt_pk_bf16_f32 v{PP+4}, v{SS+8}, v{SS+9}')
        a(f'v_cvt_pk_bf16_f32 v{PP+5}, v{SS+10}, v{SS+11}')
        a(f'v_mfma_f32_16x16x32_bf16 v[{OO+8}:{OO+11}], v[{VX+8}:{VX+11}], v[{PP}:{PP+3}], 0')
        a.label(vlp)
        a(f"""s_waitcnt vmcnt(0)
              v_max3_u32 v{T1}, v{VM}, v{VM+1}, v{VM+2}
              v_max3_u32 v{T2}, v{VM+3}, v{VM+4}, v{VM+5}
              v_mfma_f32_16x16x32_bf16 v[{OO+12}:{OO+15}], v[{VX+12}:{VX+15}], v[{PP}:{PP+3}], 0
              v_max3_u32 v{T1}, v{T1}, v{VM+6}, v{VM+7}
              v_max_u32 v{T1}, v{T1}, v{T2}
              v_cmp_eq_u32 vcc, -1, v{T1}
              s_cbranch_vccnz {vrt}""")
        a.label(vok)
        if self.opt.get('trace2'): a(f's_memtime s[{sST+6}:{sST+7}]')
        if not self.opt.get('fine'): self.stamp(0)
        a(f'v_mfma_f32_16x16x16_bf16 v[{LL}:{LL+3}], v[{ONES}:{ONES+1}], v[{PP+4}:{PP+5}], v[{LL}:{LL+3}]')
        for t in range(4):
            a(f'v_mfma_f32_16x16x16_bf16 v[{OO+4*t}:{OO+4*t+3}], v[{VM+2*t}:{VM+2*t+1}], v[{PP+4}:{PP+5}], v[{OO+4*t}:{OO+4*t+3}]')
        a(f"""s_nop 3
              v_rcp_f32 v{LL}, v{LL}""")
        for t in range(4):
            a(f'v_cvt_pk_bf16_f32 v{X+2*t}, v{OO+4*t}, v{OO+4*t+1}')
            a(f'v_cvt_pk_bf16_f32 v{X+2*t+1}, v{OO+4*t+2}, v{OO+4*t+3}')
            a(f'ds_write_b64 v{vOw}, v[{X+2*t}:{X+2*t+1}] offset:{256*t}')
            if t == 0: a(f'ds_write_b32 v{vRw}, v{LL}')
        a('s_waitcnt lgkmcnt(0)')
        a('s_barrier')
        self.stamp(2)
        skipwo = a.newlabel('Latsk')
        self.wo_stage([(WA, WB, TA, TB, 0)], vFrag, vIdx, F, vCoff, RR, skipwo)
        a.label(skipwo)
        if self.opt.get('trace2'): a(f's_memtime s[{sST+8}:{sST+9}]')
        if not self.opt.get('fine'): self.stamp(3)
        for t in range(4):
            for r in range(4):
                a(f'v_mul_f32 v{OO+4*t+r}, v{OO+4*t+r}, v{LL}')
            a(f'v_cvt_pk_bf16_f32 v{OO+4*t}, v{OO+4*t}, v{OO+4*t+1}')
            a(f'v_cvt_pk_bf16_f32 v{OO+4*t+1}, v{OO+4*t+2}, v{OO+4*t+3}')
        a(f's_mov_b64 exec, s[{sMH8}:{sMH8+1}]')
        for t in range(4):
            a(f'ds_write_b64 v{vOx}, v[{OO+4*t}:{OO+4*t+1}] offset:{32*t}')
        a('s_mov_b64 exec, -1')
        a(f"""s_cmp_eq_u32 s{sSTEP}, 63
              s_cbranch_scc1 {end}
              s_add_u32 s{sLB}, s{sLB}, {LBUF_SZ}
              s_cmp_eq_u32 s{sLB}, {LBUF + 3*LBUF_SZ}
              s_cselect_b32 s{sLB}, {LBUF}, s{sLB}""")
        if self.opt.get('trace2'):
            a(f"""s_waitcnt lgkmcnt(0)
                  s_lshl_b32 s{sT0}, s{sJ}, 4
                  s_add_u32 s{sT0}, s{sT0}, s{sC}
                  s_lshl_b32 s{sT0}, s{sT0}, 2
                  s_add_u32 s{sT0}, s{sT0}, s{sWP}
                  s_lshl_b32 s{sT0}, s{sT0}, 6
                  s_add_u32 s{sT0}, s{sT0}, s{sSTEP}
                  s_lshl_b32 s{sT0}, s{sT0}, 4
                  s_add_u32 s{sT0}, s{sT0}, {WS_DBG + 0x300000}""")
            for k in range(4):
                a(f's_sub_u32 s{sT1}, s{sST+2*k+2}, s{sST}' if k else f's_sub_u32 s{sT1}, s{sST}, s{sST+10}')
                a(f'v_mov_b32 v{LL+k}, s{sT1}')
            a(f's_mov_b32 s{sST+10}, s{sST+8}')
            a(f"""v_mov_b32 v{T0}, 0
                  s_mov_b64 exec, 1
                  buffer_store_dwordx4 v[{LL}:{LL+3}], v{T0}, s[{sWS}:{sWS+3}], s{sT0} offen
                  s_mov_b64 exec, -1
                  s_nop 1""")
        read_seg()
        self.zero(TA, 8)
        self.a_poll(vAoff, [F, OO, OO + 8])
        a(f's_branch {loop}')
        a.label(end)
        a('s_waitcnt lgkmcnt(0)')
        a('s_barrier')
        self.finish()
        a.label(vrt)
        vm_loads()
        self.retry(vlp, 1)
        a(f's_branch {vok}')
        self.emit_tail()

def emit_gates(a, sU, ntok, vL, R):
    G, acc, t1, t2, v4, Xr = R, R + 5, R + 6, R + 7, R + 8, R + 10
    a(f'v_lshlrev_b32 v{v4}, 2, v{vL}')
    srd(a, ptr(11), DM * 2)
    for i in range(5):
        a(f'buffer_load_dword v{G+i}, v{v4}, s[{sT}:{sT+3}], 0 offen offset:{256*i}')
    srd(a, ptr(0), S * DM * 2)
    a(f's_mul_i32 s{sT1}, s{sU}, 1280')
    for tk in range(ntok):
        for i in range(5):
            a(f'buffer_load_dword v{Xr+5*tk+i}, v{v4}, s[{sT}:{sT+3}], s{sT1} offen offset:{1280*tk + 256*i}')
    a('s_waitcnt vmcnt(0)')
    for tk in range(ntok):
        a(f'v_mov_b32 v{acc}, 0')
        for i in range(5):
            x = Xr + 5*tk + i
            a(f"""v_lshlrev_b32 v{t1}, 16, v{x}
                  v_lshlrev_b32 v{t2}, 16, v{G+i}
                  v_fmac_f32 v{acc}, v{t1}, v{t2}
                  v_and_b32 v{t1}, 0xffff0000, v{x}
                  v_and_b32 v{t2}, 0xffff0000, v{G+i}
                  v_fmac_f32 v{acc}, v{t1}, v{t2}""")
        for sh in (8, 4, 2, 1):
            a(f"""s_nop 1
                  v_add_f32_dpp v{acc}, v{acc}, v{acc} row_ror:{sh} row_mask:0xf bank_mask:0xf""")
        for sw in ('v_permlane16_swap_b32', 'v_permlane32_swap_b32'):
            a(f"""v_mov_b32 v{t1}, v{acc}
                  s_nop 1
                  {sw} v{acc}, v{t1}
                  v_add_f32 v{acc}, v{acc}, v{t1}""")
        a(f"""v_mul_f32 v{acc}, {hex(f32bits(-math.log2(math.e)))}, v{acc}
              v_exp_f32 v{acc}, v{acc}
              s_nop 0
              v_add_f32 v{acc}, 1.0, v{acc}
              v_rcp_f32 v{acc}, v{acc}
              v_mov_b32 v{t1}, 0
              s_lshl_b32 s{sT0}, s{sU}, 2
              s_add_u32 s{sT0}, s{sT0}, {WS_G + 4*tk}
              s_mov_b64 exec, 1
              buffer_store_dword v{acc}, v{t1}, s[{sWS}:{sWS+3}], s{sT0} offen sc1
              s_mov_b64 exec, -1""")

def arrive(a, wave, v):
    l = a.newlabel('Larr')
    a(f'''s_cmp_lg_u32 s{sW}, {wave}
          s_cbranch_scc1 {l}
          s_cmp_lg_u32 s{sARR}, 0
          s_cbranch_scc1 {l}
          s_mov_b64 exec, 1
          v_mov_b32 v{v}, 1
          v_mov_b32 v{v+1}, 32
          buffer_atomic_add v{v}, v{v+1}, s[{sDBG}:{sDBG+3}], 0 offen sc1
          s_mov_b64 exec, -1''')
    a.label(l)

def wait_registered(a, opt, T0, T1, vN, init=False):
    lp, done = a.newlabel('Lreg'), a.newlabel('Lregd')
    a(f'v_lshlrev_b32 v{T1}, 2, v{vN}')
    a.label(lp)
    a(f'''buffer_load_dword v{T0}, v{T1}, s[{sDBG}:{sDBG+3}], 0 offen sc0 sc1
          s_waitcnt vmcnt(0)
          v_readlane_b32 s{sT0}, v{T0}, 8
          v_readlane_b32 s{sT1}, v{T0}, {32 if init else 8}
          s_add_u32 s{sT0}, s{sT0}, s{sT1}
          s_cmp_ge_u32 s{sT0}, {256 + 384 if init else 512}
          s_cbranch_scc1 {done}
          s_sleep {opt.get('r_sleep', 24)}
          s_sub_u32 s{sBUD}, s{sBUD}, 1
          s_cbranch_scc0 {lp}
          s_mov_b32 s{sBUD}, 0''')
    a.label(done)
    a(f'''v_readlane_b32 s{sPOL}, v{T0}, 34
          v_cmp_ne_u32 vcc, 32, v{T0}
          s_and_b32 s{sPOL}, s{sPOL}, 1
          s_and_b32 s{sT0}, vcc_lo, 0xf
          s_and_b32 s{sT1}, vcc_hi, 0xf00
          s_or_b32 s{sT0}, s{sT0}, s{sT1}
          s_cselect_b32 s{sMIX}, 1, {1 if opt.get('force_mixed') else 0}''')

def emit_entry(a, opt, exit_label):
    a(f'''s_cmp_ge_u32 s2, 256
          s_cbranch_scc1 {exit_label}
          s_load_dwordx16 s[16:31], s[0:1], 0
          s_load_dwordx8 s[32:39], s[0:1], 64
          s_load_dwordx4 s[40:43], s[0:1], 96
          s_load_dwordx2 s[44:45], s[0:1], 112
          v_lshrrev_b32 v1, 6, v0
          s_getreg_b32 s{sJ}, hwreg(HW_REG_XCC_ID)
          v_readfirstlane_b32 s{sW}, v1
          s_and_b32 s{sJ}, s{sJ}, 15
          s_min_u32 s{sJ}, s{sJ}, 10
          s_cmp_lt_u32 s{sJ}, 8
          s_cselect_b32 s{sJ}, s{sJ}, 10
          s_mov_b32 s{sBUD}, {opt.get('budget', 1 << 20)}
          s_mov_b32 s{sSTEP}, 0
          s_mov_b32 s{sCS}, 0
          s_mov_b32 s{sPOL}, 0
          s_mov_b64 s[98:99], 0
          s_mov_b64 s[100:101], 0
          s_mov_b32 s{sMIX}, {1 if opt.get('force_mixed') else 0}
          s_mov_b32 s{sMN8}, 0x00ff00ff
          s_mov_b32 s{sMN8+1}, 0x00ff00ff
          s_mov_b32 s{sMH8}, 0xff00ff00
          s_mov_b32 s{sMH8+1}, 0xff00ff00
          s_mov_b32 s{sML32}, -1
          s_mov_b32 s{sML32+1}, 0
          s_mov_b32 s{sSELLO}, 0x05040100
          s_mov_b32 s{sSELHI}, 0x07060302
          s_mov_b32 s{sSCL}, {hex(f32bits(DH ** -0.5 * math.log2(math.e)))}
          s_waitcnt lgkmcnt(0)
          s_mov_b32 s{sWS}, s{ptr(14)}
          s_mov_b32 s{sWS+1}, s{ptr(14)+1}
          s_mov_b32 s{sWS+2}, {WS_SIZE}
          s_mov_b32 s{sWS+3}, 0x20000
          s_mov_b32 s{sDBG}, s{ptr(13)}
          s_mov_b32 s{sDBG+1}, s{ptr(13)+1}
          s_mov_b32 s{sDBG+2}, 256
          s_mov_b32 s{sDBG+3}, 0x20000''')
    if opt.get('prof'):
        a(f's_memrealtime s[{sST}:{sST+1}]')
        a('s_waitcnt lgkmcnt(0)')
    if opt.get('fake_xcc') == 1:
        a(f'''s_lshr_b32 s{sJ}, s2, 5''')
    if opt.get('fake_xcc') == 2:
        a(f'''s_cmp_lt_u32 s2, 200
              s_cselect_b32 s{sJ}, s{sJ}, 3
              s_cmp_lt_u32 s2, 250
              s_cselect_b32 s{sJ}, s{sJ}, 10''')
    l1, l2 = a.newlabel('Le'), a.newlabel('Le')
    def sweep():
        ls = a.newlabel('Lsw')
        a(f'''s_lshl_b32 s{sT0}, s{sC}, 3
              s_add_u32 s{sT0}, s{sT0}, s{sW}
              s_cmp_ge_u32 s{sT0}, 240
              s_cbranch_scc1 {ls}
              s_mov_b32 m0, {SWEEP_LDS}
              v_and_b32 v9, 63, v0
              v_lshlrev_b32 v9, 4, v9
              v_add_u32 v10, 1024, v9
              v_add_u32 v11, {12288 + 512}, v9
              v_add_u32 v12, {12288 - 512}, v9
              v_cmp_gt_u32 vcc, 512, v9
              s_mul_i32 s{sT1}, s{sT0}, 52429
              s_lshr_b32 s{sT1}, s{sT1}, 22
              v_cndmask_b32 v10, v12, v10, vcc
              s_cmp_eq_u32 s{sT1}, 1
              s_cselect_b32 s{sT}, s{ptr(3)}, s{ptr(2)}
              s_cselect_b32 s{sT+1}, s{ptr(3)+1}, s{ptr(2)+1}
              s_cmp_eq_u32 s{sT1}, 2
              s_cselect_b32 s{sT}, s{ptr(4)}, s{sT}
              s_cselect_b32 s{sT+1}, s{ptr(4)+1}, s{sT+1}
              s_mov_b32 s{sT+2}, {DM*NH*DH*2}
              s_mov_b32 s{sT+3}, 0x20000
              s_mul_i32 s{sT1}, s{sT1}, 80
              s_sub_u32 s{sT1}, s{sT0}, s{sT1}
              s_mul_i32 s{sT1}, s{sT1}, {8*12288}
              s_mul_i32 s{sT2}, s{sJ}, 1536
              s_add_u32 s{sT1}, s{sT1}, s{sT2}''')
        for rp in range(4):
            for v in (9, 10, 11):
                a(f'buffer_load_dwordx4 v{v}, s[{sT}:{sT+3}], s{sT1} offen lds')
            if rp < 3: a(f's_add_u32 s{sT1}, s{sT1}, {2*12288}')
        srd(a, ptr(5), NH * DH * DM * 2)
        a(f'''s_mul_i32 s{sT1}, s{sJ}, {4*DH*DM*2}
              s_lshl_b32 s{sT0}, s{sT0}, 12
              s_add_u32 s{sT1}, s{sT1}, s{sT0}''')
        for k in range(4):
            a(f'buffer_load_dwordx4 v9, s[{sT}:{sT+3}], s{sT1} offen offset:{1024*k} lds')
        a.label(ls)
    a(f'''s_cmp_lg_u32 s{sW}, 0
          s_cbranch_scc1 {l1}
          s_mov_b64 exec, 1
          v_mov_b32 v2, 1
          s_lshl_b32 s{sT0}, s{sJ}, 2
          s_and_b32 s{sT1}, s{sJ}, 12
          s_cmp_eq_u32 s{sT1}, 4
          s_cselect_b32 s{sT1}, 144, 0
          s_add_u32 s{sT0}, s{sT0}, s{sT1}
          v_mov_b32 v3, s{sT0}
          buffer_atomic_add v2, v3, s[{sDBG}:{sDBG+3}], 0 offen sc0 sc1
          s_mov_b64 exec, -1''')
    a.label(l1)
    l3, l4, l5, l6, l7 = [a.newlabel('Le') for _ in range(5)]
    a(f'''s_cmp_lg_u32 s{sW}, 1
          s_cbranch_scc1 {l5}
          s_mov_b64 exec, 1
          v_mov_b32 v2, 0
          v_mov_b32 v3, 0
          v_mov_b32 v4, 0
          v_mov_b32 v5, 0
          s_lshl_b32 s{sT0}, s2, 4
          s_add_u32 s{sT0}, s{sT0}, {WS_FLAG}
          buffer_store_dwordx4 v[2:5], v2, s[{sWS}:{sWS+3}], s{sT0} offen sc1
          s_mov_b64 exec, -1''')
    a.label(l5)
    a(f'''s_waitcnt vmcnt(0)
          s_cmp_lg_u32 s{sW}, 0
          s_cbranch_scc1 {l3}
          s_mov_b64 exec, 1
          v_readfirstlane_b32 s{sT0}, v2
          s_cmp_ge_u32 s{sJ}, 8
          s_cselect_b32 s{sT0}, 32, s{sT0}
          s_cmp_lt_u32 s{sT0}, 32
          s_cbranch_scc1 {l6}
          v_mov_b32 v2, 1
          v_mov_b32 v3, 36
          buffer_atomic_add v2, v3, s[{sDBG}:{sDBG+3}], 0 offen sc0 sc1
          s_waitcnt vmcnt(0)
          v_add_u32 v2, 32, v2''')
    a.label(l6)
    l8 = a.newlabel('Le')
    a(f'''v_mov_b32 v4, 0
          s_or_b32 s{sT0}, s{sT0}, s{sJ}
          s_cmp_lg_u32 s{sT0}, 0
          s_cbranch_scc1 {l8}
          s_lshr_b32 s{sT0}, s2, 6
          s_lshl_b32 s{sT0}, s{sT0}, 14
          s_and_b32 s{sT1}, s2, 63
          s_lshl_b32 s{sT1}, s{sT1}, 7
          s_add_u32 s{sT0}, s{sT0}, s{sT1}
          s_add_u32 s{sT0}, s{sT0}, {WS_RC + RC_PROBE}
          s_add_u32 s{sT1}, s{sT0}, 8192
          s_mov_b32 s{sT2}, -1
          s_mov_b32 s{sT3}, -1''')
    for rnd in range(2):
        for cp in range(2):
            a(f'''v_mov_b32 v5, 0
                  s_memtime s[98:99]
                  s_waitcnt lgkmcnt(0)
                  buffer_atomic_add v5, v4, s[{sWS}:{sWS+3}], s{sT1 if cp else sT0} offen sc0 sc1
                  s_waitcnt vmcnt(0)
                  s_memtime s[100:101]
                  s_waitcnt lgkmcnt(0)
                  s_sub_u32 s98, s100, s98
                  s_min_u32 s{sT3 if cp else sT2}, s{sT3 if cp else sT2}, s98''')
    a(f'''s_mov_b64 s[98:99], 0
          s_mov_b64 s[100:101], 0
          s_cmp_lt_u32 s{sT3}, s{sT2}
          s_cselect_b32 s{sT2}, 0x15, 0x0a
          v_mov_b32 v4, s{sT2}''')
    a(f'''v_mov_b32 v5, 136
          buffer_store_dword v4, v5, s[{sDBG}:{sDBG+3}], 0 offen sc1
          s_waitcnt vmcnt(0)''')
    a.label(l8)
    a(f'''v_mov_b32 v3, 0
          ds_write_b32 v3, v2
          s_mov_b64 exec, -1
          s_waitcnt lgkmcnt(0)''')
    a.label(l3)
    a(f'''s_barrier
          v_mov_b32 v3, 0
          ds_read_b32 v2, v3
          s_mov_b32 s{sARR}, 0
          s_waitcnt lgkmcnt(0)
          v_readfirstlane_b32 s{sC}, v2
          s_barrier
          s_cmp_lt_u32 s{sC}, 32
          s_cbranch_scc1 {l7}''')
    arrive(a, 0, 4)
    a(f's_mov_b32 s{sARR}, 1')
    a('v_and_b32 v4, 63, v0')
    wait_registered(a, opt, 2, 3, 4)
    a(f's_sub_u32 s{sT1}, s{sC}, 32')
    a(f's_mov_b32 s{sJ}, 0')
    a(f's_mov_b32 s{sC}, 0')
    for x in range(8):
        a(f'''v_readlane_b32 s{sT0}, v2, {x if x < 4 else 36 + x}
              s_min_u32 s{sT0}, s{sT0}, 32
              s_sub_u32 s{sT2}, 32, s{sT0}
              s_add_u32 s{sT0}, s{sT0}, s{sT1}
              s_cmp_lt_u32 s{sT1}, s{sT2}
              s_cselect_b32 s{sJ}, {x}, s{sJ}
              s_cselect_b32 s{sC}, s{sT0}, s{sC}
              s_sub_u32 s{sT1}, s{sT1}, s{sT2}''')
    a.label(l7)
    a(f'''s_lshr_b32 s{sT0}, s{sC}, 4
          s_lshr_b32 s{sT1}, s{sJ}, 2
          s_and_b32 s{sJ}, s{sJ}, 3
          s_lshl_b32 s{sJ}, s{sJ}, 1
          s_add_u32 s{sJ}, s{sJ}, s{sT0}
          s_and_b32 s{sC}, s{sC}, 15
          s_lshl_b32 s{sT1}, s{sT1}, 4
          s_add_u32 s{sC}, s{sC}, s{sT1}''')
    if opt.get('prof'):
        a(f's_memrealtime s[{sST+8}:{sST+9}]')
        a('s_waitcnt lgkmcnt(0)')

import struct
def f32bits(x): return struct.unpack('<I', struct.pack('<f', x))[0]

def emit_chain_body(a, opt):
    ch = Chain(a, opt)
    lv, l7, lat = a.newlabel('Lrole_v'), a.newlabel('Lrole_w7'), a.newlabel('Lrole_att')
    a(f'''s_lshr_b32 s{sH}, s{sC}, 2
          s_lshl_b32 s{sT0}, s{sJ}, 2
          s_add_u32 s{sH}, s{sH}, s{sT0}
          s_and_b32 s{sG}, s{sC}, 3
          s_setprio 2
          s_cmp_eq_u32 s{sW}, 3
          s_cbranch_scc1 {lv}
          s_cmp_eq_u32 s{sW}, 7
          s_cbranch_scc1 {l7}
          s_cmp_ge_u32 s{sW}, 4
          s_cbranch_scc1 {lat}''')
    pr = opt.get('prios', [2, 2, 2, 2])
    ch.prio = pr[0]; ch.role_qk()
    a.label(lv); ch.prio = pr[1]; ch.role_v()
    a.label(l7); ch.prio = pr[2]; ch.role_w7()
    a.label(lat); ch.prio = pr[3]; ch.role_att()
```

```python
from asmlib import *
from layout import *
from chain import (sWS, sDBG, sT, ptr, sW, sJ, sC, sMIX, sBUD, sT0, sT1, sT2, sT3, f32bits, wait_registered, emit_gates, SWEEP_LDS, sPOL, srd, arrive)
import math

XB, WB_OFF, WSZ = 32768, 65536, 24576
STAGE = XB
GEMM1_LDS = WB_OFF + 3 * WSZ

sX = 56
sWD = 60
sTile, sXo, sWo, sWrs, sKind, sOut, sNK, sNOut, sIt, sM0x, sM0w, sWstep = 64, 65, 66, 67, 68, 70, 71, 72, 73, 74, 75, 47
sFlagP = 80
sNFlag = 81
sC1, sC2 = 98, 99
sXoN, sWrd, sWwr = 100, 101, 97

class Gemm1:
    def __init__(self, a, opt, nworkers, rank0):
        self.a, self.opt, self.NW, self.rank0 = a, opt, nworkers, rank0
        self.tail = []
        self.inloop = False
        self.pending = []

    def lstore(self, insts, nt=False, cross=False):
        a = self.a
        if cross:
            for i in insts: a(i + (' sc1' if i.startswith('buffer_') else ''))
            return
        slow, back = a.newlabel('Lgslow'), a.newlabel('Lgback')
        a(f's_cmp_lg_u32 s{sMIX}, 0')
        a(f's_cbranch_scc1 {slow}')
        for i in insts: a(i + (' nt' if nt and i.startswith('buffer_') else ''))
        a.label(back)
        self.tail.append((slow, [i + ' sc1' if i.startswith('buffer_') else i for i in insts], back))

    def emit_tail(self):
        a = self.a
        for slow, insts, back in self.tail:
            a.label(slow)
            for i in insts: a(i)
            a(f's_branch {back}')
        self.tail = []

    def decode(self):
        a = self.a
        lf, ln, ld = a.newlabel('Ldf'), a.newlabel('Ldn'), a.newlabel('Ldd')
        a(f'''s_cmp_ge_u32 s{sTile}, 112
              s_cbranch_scc1 {ln}
              s_cmp_ge_u32 s{sTile}, 96
              s_cbranch_scc1 {lf}
              s_mul_i32 s{sT0}, s{sTile}, 43691
              s_lshr_b32 s{sT0}, s{sT0}, 19
              s_mul_i32 s{sT1}, s{sT0}, 12
              s_sub_u32 s{sT1}, s{sTile}, s{sT1}
              s_lshr_b32 s{sNK}, s{sT1}, 2
              s_and_b32 s{sT1}, s{sT1}, 3
              s_lshl_b32 s{sT2}, s{sJ}, 2
              s_add_u32 s{sT1}, s{sT1}, s{sT2}
              s_mul_i32 s{sXoN}, s{sT0}, {256*1280}
              s_mul_i32 s{sWo}, s{sT1}, 384
              s_mov_b32 s{sWrs}, 12288
              s_cmp_eq_u32 s{sNK}, 1
              s_cselect_b32 s{sWD}, s{ptr(3)}, s{ptr(2)}
              s_cselect_b32 s{sWD+1}, s{ptr(3)+1}, s{ptr(2)+1}
              s_cmp_eq_u32 s{sNK}, 2
              s_cselect_b32 s{sWD}, s{ptr(4)}, s{sWD}
              s_cselect_b32 s{sWD+1}, s{ptr(4)+1}, s{sWD+1}
              s_mov_b32 s{sWD+2}, {DM*NH*DH*2}
              s_mul_i32 s{sNOut}, s{sNK}, {WS_K}
              s_mul_i32 s{sT2}, s{sT1}, {2048*384}
              s_add_u32 s{sNOut}, s{sNOut}, s{sT2}
              s_mul_i32 s{sT2}, s{sT0}, {256*384}
              s_add_u32 s{sNOut}, s{sNOut}, s{sT2}
              s_mul_i32 s{sT2}, s{sW}, 3
              s_lshr_b32 s{sT3}, s{sT2}, 2
              s_branch {ld}''')
        a.label(lf)
        a(f'''s_sub_u32 s{sT1}, s{sTile}, 96
              s_lshr_b32 s{sT0}, s{sT1}, 1
              s_and_b32 s{sT1}, s{sT1}, 1
              s_mov_b32 s{sNK}, 3
              s_mul_i32 s{sXoN}, s{sT0}, {256*1280}
              s_mul_i32 s{sWo}, s{sJ}, 384
              s_mul_i32 s{sT2}, s{sT1}, 192
              s_add_u32 s{sWo}, s{sWo}, s{sT2}
              s_mov_b32 s{sWrs}, 3072
              s_cmp_ge_u32 s{sW}, 4
              s_cselect_b32 s{sWD}, s{ptr(9)}, s{ptr(8)}
              s_cselect_b32 s{sWD+1}, s{ptr(9)+1}, s{ptr(8)+1}
              s_mov_b32 s{sWD+2}, {DM*DF*2}
              s_mul_i32 s{sNOut}, s{sT0}, {8*98304}
              s_lshl_b32 s{sT2}, s{sWo}, 4
              s_add_u32 s{sNOut}, s{sNOut}, s{sT2}
              s_add_u32 s{sNOut}, s{sNOut}, {WS_H}
              s_and_b32 s{sT2}, s{sW}, 3
              s_mul_i32 s{sT2}, s{sT2}, 3
              s_lshr_b32 s{sT3}, s{sT2}, 2
              s_branch {ld}''')
        a.label(ln)
        a(f'''s_mov_b32 s{sNK}, 4
              s_mov_b32 s{sWD+2}, 0
              s_mov_b32 s{sT2}, 0
              s_mov_b32 s{sT3}, 0''')
        a.label(ld)
        if self.opt.get('g_hit'):
            a(f's_mov_b32 s{sXoN}, 0')
            a(f's_mov_b32 s{sWo}, 0')
            a(f's_mov_b32 s{sWD}, s{ptr(2)}')
            a(f's_mov_b32 s{sWD+1}, s{ptr(2)+1}')
        for ii in range(3):
            a(f'''s_add_u32 s{sT0}, s{sT2}, {ii}
                  s_lshr_b32 s{sT1}, s{sT0}, 2
                  s_and_b32 s{sT0}, s{sT0}, 3
                  s_lshl_b32 s{sT0}, s{sT0}, 4
                  s_mul_i32 s{sT0}, s{sT0}, s{sWrs}
                  s_lshl_b32 s{sT1}, s{sT1}, 6
                  s_add_u32 s{sT0}, s{sT0}, s{sT1}
                  s_add_u32 s{self.sP+ii}, s{sT0}, s{sWo}''')
        a(f'''s_mul_i32 s{sT0}, s{sW}, {32*1280}
              s_add_u32 s{sXoN}, s{sXoN}, s{sT0}
              s_lshl_b32 s{sWstep}, s{sWrs}, 6
              v_mul_lo_u32 v{self.vWg}, v{self.vL2}, s{sWrs}
              v_add_u32 v{self.vWg}, v{self.vWg}, v{self.vL3}''')

    def dma_x(self, buf):
        a = self.a
        for ii in range(4):
            a(f's_add_u32 m0, s{sM0x}, {buf*STAGE + ii*1024}')
            a(f's_add_u32 s{sT0}, s{sXo}, {ii*10240}' if ii else 's_nop 0')
            a(f'buffer_load_dwordx4 v{self.vXg + (ii & 1)}, s[{sX}:{sX+3}], s{sT0 if ii else sXo} offen lds')
        a(f's_add_u32 s{sXo}, s{sXo}, 128')

    def rot(self, r):
        self.a(f'''s_add_u32 s{r}, s{r}, {WSZ}
                   s_cmp_eq_u32 s{r}, {3*WSZ}
                   s_cselect_b32 s{r}, 0, s{r}''')

    def dma_w(self):
        a = self.a
        a(f's_add_u32 s{sT1}, s{sM0w}, s{sWwr}')
        for ii in range(3):
            a(f's_add_u32 m0, s{sT1}, {ii*1024}')
            a('s_nop 0')
            a(f'buffer_load_dwordx4 v{self.vWg}, s[{sWD}:{sWD+3}], s{self.sP+ii} offen lds')
            a(f's_add_u32 s{self.sP+ii}, s{self.sP+ii}, s{sWstep}')
        self.rot(sWwr)

    def dma(self, buf):
        if self.opt.get('g_nodma') and self.inloop: return
        self.dma_x(buf)
        self.dma_w()

    def reads(self, var, buf, kk, fs):
        MT, NT = var
        F = self.F + fs * 56
        xa = (self.vXr if MT == 4 else self.vXr1) + buf * 2 + kk
        out = []
        for mt in range(MT):
            out.append(f'ds_read_b128 v[{F+4*mt}:{F+4*mt+3}], v{xa} offset:{2048*mt}')
        for nt in range(NT):
            for j in range(2):
                r = F + 4*MT + 4*nt + 2*j
                out.append(f'ds_read_b64_tr_b16 v[{r}:{r+1}], v{self.vWc + (nt & 1)} offset:{4096*(nt >> 1) + 2048*kk + 256*j}')
        return out

    def mfmas(self, var, swap, fs, first):
        MT, NT = var
        F = self.F + fs * 56
        out = []
        for nt in range(NT):
            for mt in range(MT):
                acc = self.ACC + 4 * (mt * NT + nt)
                x = f'v[{F+4*mt}:{F+4*mt+3}]'; w = f'v[{F+4*MT+4*nt}:{F+4*MT+4*nt+3}]'
                A, B = (x, w) if swap else (w, x)
                c = '0' if first else f'v[{acc}:{acc+3}]'
                out.append(f'v_mfma_f32_16x16x32_bf16 v[{acc}:{acc+3}], {A}, {B}, {c}')
        return out

    def interleave(self, mf, other):
        a = self.a
        n = len(mf); per = (len(other) + n - 1) // n if other else 0
        k = 0
        for m in mf:
            a(m)
            for o in other[k:k + per]: a(o)
            k += per
        for o in other[k:]: a(o)

    def stage_top(self, var=None, full=0):
        a = self.a
        if var is not None:
            base = self.vWr if var[0] == 4 else self.vWr1
            for h in range(2): a(f'v_add_u32 v{self.vWn+h}, s{sWrd}, v{base+h}')
            self.rot(sWrd)
        a(f's_waitcnt vmcnt({full}) lgkmcnt(0)')
        if var is not None:
            for h in range(2): a(f'v_mov_b32 v{self.vWc+h}, v{self.vWn+h}')
        a('s_barrier')

    def tile_loop(self, var, swap, name):
        a = self.a
        nr = var[0] + 2 * var[1]
        loop = a.newlabel('L' + name)
        self.stage_top(var, 15)
        if var == (2, 12) and self.opt.get('fused'):
            l = a.newlabel('Lgg')
            a(f'''s_cmp_lg_u32 s{sW}, 1
                  s_cbranch_scc1 {l}
                  v_mov_b32 v{self.vT0}, 132
                  s_mov_b64 exec, 1
                  buffer_atomic_add v{self.vOne}, v{self.vT0}, s[{sDBG}:{sDBG+3}], 0 offen sc1
                  s_mov_b64 exec, -1''')
            a.label(l)
        for r in self.reads(var, 0, 0, 0): a(r)
        self.dma(1)
        def body(buf, kstart_first):
            for kk in range(1):
                rd = self.reads(var, buf, kk + 1, (kk + 1) & 1)
                a(f's_waitcnt lgkmcnt(0)')
                self.interleave(self.mfmas(var, swap, kk & 1, kstart_first and kk == 0), rd)
        body(0, True)
        a(f's_mov_b32 s{sIt}, 0')
        a.label(loop)
        for buf in (1, 0):
            self.stage_top(var, 3)
            if buf == 1:
                nf = a.newlabel('Lgnf')
                a(f's_cmp_lg_u32 s{sIt}, 0')
                a(f's_cbranch_scc1 {nf}')
                self.after_top()
                a.label(nf)
            rd = self.reads(var, buf, 0, 0)
            self.interleave(self.mfmas(var, swap, 1, False), rd)
            skip = a.newlabel('Lgn')
            if buf == 0:
                a(f's_cmp_lg_u32 s{sIt}, 3')
                a(f's_cbranch_scc1 {skip}')
                a(f's_add_u32 s{sTile}, s{sTile}, {self.NW}')
                self.decode()
            else:
                a(f's_cmp_eq_u32 s{sIt}, 4')
                a(f's_cselect_b32 s{sXo}, s{sXoN}, s{sXo}')
            a.label(skip)
            self.dma(buf ^ 1)
            if self.opt.get('g_slow'):
                sk = a.newlabel('Lgs')
                a(f's_cmp_eq_u32 s{sFlagP}, 0')
                a(f's_cbranch_scc1 {sk}')
                a(f"s_sleep {self.opt['g_slow']}")
                a.label(sk)
            body(buf, False)
            if buf == 1:
                a(f's_cmp_eq_u32 s{sIt}, 4')
                a(f's_cbranch_scc1 {name}_done')
        a(f's_add_u32 s{sIt}, s{sIt}, 1')
        a(f's_branch {loop}')
        a.label(f'{name}_done')
        a('s_waitcnt lgkmcnt(0)')
        for m in self.mfmas(var, swap, 1, False): a(m)
        a('s_nop 7')
        if self.opt.get('fused'):
            l = a.newlabel('Lgreg')
            a(f's_cmp_lg_u32 s{sFlagP}, 0')
            a(f's_cbranch_scc1 {l}')
            if self.opt.get('prof'):
                a('s_memrealtime s[88:89]'); a('s_waitcnt lgkmcnt(0)')
            a(f'v_and_b32 v{self.vT2}, 63, v0')
            wait_registered(a, self.opt, self.vT0, self.vT1, self.vT2)
            a.label(l)

    def after_top(self):
        if not self.opt.get('fused'): return
        a = self.a
        l = a.newlabel('Lgf')
        a(f'''s_cmp_eq_u32 s{sFlagP}, 0
              s_cbranch_scc1 {l}
              s_cmp_lg_u32 s{sW}, 0
              s_cbranch_scc1 {l}
              s_mov_b64 exec, 1''')
        self.lstore([f'buffer_store_dword v{self.vOne}, v{self.vZero}, s[{sWS}:{sWS+3}], s{sFlagP} offen'], cross=True)
        a('s_mov_b64 exec, -1')
        a.label(l)

    def emit(self, done_label):
        a = self.a
        al = Alloc(1, 256)
        self.ACC = al(96, 2); self.F = al(112, 2)
        self.vXg = al(2); self.vWg = al()
        self.vXr = al(4); self.vXr1 = al(4); self.vWr = al(2); self.vWr1 = al(2); self.vWc = al(2); self.vWn = al(2)
        self.vL2, self.vL3 = al(), al()
        vL, vT0, vT1, vT2 = al(), al(), al(), al()
        vQK, vV, vH = al(), al(), al()
        self.vT0, self.vT1, self.vT2 = vT0, vT1, vT2
        self.vOne, self.vZero = al(), al()
        self.sP = 94
        a(f'''v_and_b32 v{vL}, 63, v0
              v_mov_b32 v{self.vOne}, 1
              v_mov_b32 v{self.vZero}, 0
              s_mov_b32 s{sX}, s{ptr(0)}
              s_mov_b32 s{sX+1}, s{ptr(0)+1}
              s_mov_b32 s{sX+2}, {S*DM*2}
              s_mov_b32 s{sX+3}, 0x20000
              s_mov_b32 s{sWD}, s{ptr(2)}
              s_mov_b32 s{sWD+1}, s{ptr(2)+1}
              s_mov_b32 s{sWD+3}, 0x20000
              s_mov_b32 s{sWrs}, 0
              s_mov_b32 s{sWo}, 0
              s_mov_b32 s{sXo}, 0
              s_mov_b32 s{sXoN}, 0
              s_mov_b32 s{sWrd}, 0
              s_mov_b32 s{sWwr}, 0
              s_mov_b32 s{sNOut}, 0
              s_mov_b32 s{sFlagP}, 0
              s_mov_b32 s{sC1}, {hex(f32bits(-2 * math.sqrt(2 / math.pi) * math.log2(math.e)))}
              s_mov_b32 s{sC2}, {hex(f32bits(-2 * math.sqrt(2 / math.pi) * math.log2(math.e) * 0.044715))}
              s_lshl_b32 s{sM0x}, s{sW}, 12
              s_mul_i32 s{sM0w}, s{sW}, 3072
              s_add_u32 s{sM0w}, s{sM0w}, {WB_OFF}
              s_sub_u32 s{sTile}, s{sC}, {self.rank0}
              v_lshrrev_b32 v{self.vL2}, 2, v{vL}
              v_lshrrev_b32 v{vT0}, 5, v{vL}
              v_lshlrev_b32 v{vT0}, 1, v{vT0}
              v_and_b32 v{self.vL3}, 3, v{vL}
              v_xor_b32 v{self.vL3}, v{self.vL3}, v{vT0}
              v_lshlrev_b32 v{self.vL3}, 4, v{self.vL3}''')
        for par in range(2):
            a(f'''v_lshrrev_b32 v{vT0}, 4, v{vL}
                  v_add_u32 v{vT0}, {4*par}, v{vT0}
                  v_and_b32 v{vT1}, 7, v{vL}
                  v_xor_b32 v{vT0}, v{vT0}, v{vT1}
                  v_lshlrev_b32 v{vT0}, 4, v{vT0}
                  v_lshrrev_b32 v{vT1}, 3, v{vL}
                  v_mul_u32_u24 v{vT1}, 1280, v{vT1}
                  v_add_u32 v{self.vXg+par}, v{vT0}, v{vT1}''')
        a(f'''v_and_b32 v{vT0}, 15, v{vL}
              v_bfe_u32 v{vT1}, v{vL}, 1, 3
              v_lshrrev_b32 v{vT2}, 4, v{vL}
              v_xor_b32 v{vT1}, v{vT1}, v{vT2}
              s_lshr_b32 s{sT0}, s{sW}, 1
              s_lshl_b32 s{sT0}, s{sT0}, 13
              s_lshl_b32 s{sT1}, s{sW}, 12''')
        for kk in range(2):
            a(f'''v_xor_b32 v{vT2}, {4*kk}, v{vT1}
                  v_lshlrev_b32 v{vT2}, 4, v{vT2}
                  v_lshl_add_u32 v{vT2}, v{vT0}, 7, v{vT2}
                  v_add_u32 v{self.vXr+kk}, s{sT0}, v{vT2}
                  v_add_u32 v{self.vXr1+kk}, s{sT1}, v{vT2}
                  v_add_u32 v{self.vXr+2+kk}, {STAGE}, v{self.vXr+kk}
                  v_add_u32 v{self.vXr1+2+kk}, {STAGE}, v{self.vXr1+kk}''')
        a(f'''v_lshrrev_b32 v{vT0}, 4, v{vL}
              v_lshlrev_b32 v{vT0}, 9, v{vT0}
              v_bfe_u32 v{vT1}, v{vL}, 2, 2
              v_lshl_add_u32 v{vT0}, v{vT1}, 6, v{vT0}
              v_bfe_u32 v{vT1}, v{vL}, 4, 1
              v_lshl_add_u32 v{vT0}, v{vT1}, 5, v{vT0}
              v_and_b32 v{vT1}, 3, v{vL}
              v_lshl_add_u32 v{vT0}, v{vT1}, 3, v{vT0}
              v_add_u32 v{self.vWr1}, {WB_OFF}, v{vT0}
              v_xor_b32 v{self.vWr1+1}, 32, v{self.vWr1}
              s_and_b32 s{sT0}, s{sW}, 1
              s_mul_i32 s{sT0}, s{sT0}, {3*4096}
              v_add_u32 v{self.vWr}, s{sT0}, v{self.vWr1}
              v_add_u32 v{self.vWr+1}, s{sT0}, v{self.vWr1+1}''')
        a(f'''v_lshlrev_b32 v{vT0}, 4, v{vL}
              s_lshr_b32 s{sT0}, s{sW}, 1
              s_and_b32 s{sT1}, s{sW}, 1
              s_mul_i32 s{sT0}, s{sT0}, 24576
              s_mul_i32 s{sT3}, s{sT1}, 3072
              s_add_u32 s{sT2}, s{sT0}, s{sT3}
              v_add_u32 v{vQK}, s{sT2}, v{vT0}
              s_mul_i32 s{sT3}, s{sT1}, 6144
              s_add_u32 s{sT2}, s{sT0}, s{sT3}
              v_add_u32 v{vV}, s{sT2}, v{vT0}
              s_mul_i32 s{sT2}, s{sW}, 98304
              v_add_u32 v{vH}, s{sT2}, v{vT0}''')
        self.decode()
        a(f's_mov_b32 s{sXo}, s{sXoN}')
        self.dma(0)
        self.dma_w()
        if self.opt.get('x_sweep'):
            a(f'''s_sub_u32 s{sT0}, s{sC}, {self.rank0}
                  s_lshl_b32 s{sT0}, s{sT0}, 3
                  s_add_u32 s{sT0}, s{sT0}, s{sW}
                  s_mul_i32 s{sT0}, s{sT0}, 5120
                  s_add_u32 s{sT1}, s{sT0}, 4096
                  s_mov_b32 m0, {SWEEP_LDS}
                  v_lshlrev_b32 v{vT0}, 4, v{vL}''')
            for k in range(5):
                a(f'buffer_load_dwordx4 v{vT0}, s[{sX}:{sX+3}], s{sT1 if k == 4 else sT0} offen offset:{1024*(k & 3)} lds')
        nsw = 0
        arrv = True
        if self.opt.get('wo_sweep'):
            srd(a, ptr(5), NH * DH * DM * 2)
            a(f'''s_lshl_b32 s{sT0}, s{sJ}, 4
                  s_add_u32 s{sT0}, s{sT0}, s{sC}
                  s_sub_u32 s{sT0}, s{sT0}, {self.rank0}
                  s_lshl_b32 s{sT0}, s{sT0}, 3
                  s_add_u32 s{sT0}, s{sT0}, s{sW}
                  s_mul_i32 s{sT0}, s{sT0}, 7680
                  s_add_u32 s{sT1}, s{sT0}, 4096''')
            for k in range(8):
                a(f'buffer_load_dwordx4 v{vT0}, s[{sT}:{sT+3}], s{sT1 if k >= 4 else sT0} offen offset:{1024*(k & 3)} lds')
            nsw = 8
        a('s_waitcnt vmcnt(%d)' % (nsw + (8 if self.opt.get('x_sweep') else 3)))
        arrive(a, 7, vT1)
        self.inloop = True
        nxt = a.newlabel('Lgnext')
        lqk, lv, lf = 'Lg_qk', 'Lg_v', 'Lg_f'
        a.label(nxt)
        a(f'''s_mov_b32 s{sKind}, s{sNK}
              s_mov_b32 s{sOut}, s{sNOut}
              s_lshl_b32 s{sNFlag}, s{sTile}, 2
              s_cmp_eq_u32 s{sKind}, 4
              s_cbranch_scc1 Lg_end
              s_cmp_eq_u32 s{sKind}, 2
              s_cbranch_scc1 {lv}
              s_cmp_eq_u32 s{sKind}, 3
              s_cbranch_scc1 {lf}''')
        def c_init():
            l = a.newlabel('Lgci')
            F = self.F
            a(f'''s_lshr_b32 s{sT0}, s{sNFlag}, 2
                  s_mul_i32 s{sT1}, s{sT0}, 43691
                  s_lshr_b32 s{sT1}, s{sT1}, 19
                  s_mul_i32 s{sT2}, s{sT1}, 12
                  s_sub_u32 s{sT0}, s{sT0}, s{sT2}
                  s_mul_i32 s{sT2}, s{sJ}, 12
                  s_add_u32 s{sT0}, s{sT0}, s{sT2}
                  s_lshl_b32 s{sT0}, s{sT0}, 3
                  s_add_u32 s{sT0}, s{sT0}, s{sW}
                  s_cmp_ge_u32 s{sT0}, 640
                  s_cbranch_scc1 {l}
                  s_mul_i32 s{sT2}, s{sT0}, 52429
                  s_lshr_b32 s{sT2}, s{sT2}, 22
                  s_mul_i32 s{sT3}, s{sT2}, 80
                  s_sub_u32 s{sT0}, s{sT0}, s{sT3}
                  s_lshl_b32 s{sT1}, s{sT1}, 3
                  s_add_u32 s{sT1}, s{sT1}, s{sT2}
                  s_cmp_ge_u32 s{sT1}, {RC_N}
                  s_cbranch_scc1 {l}
                  s_mul_i32 s{sT2}, s{sT1}, 86
                  s_lshr_b32 s{sT2}, s{sT2}, 8
                  s_mul_i32 s{sT1}, s{sT1}, {RC_SLOT}
                  s_mul_i32 s{sT3}, s{sT2}, {0x200000 - 3*RC_SLOT}
                  s_add_u32 s{sT1}, s{sT1}, s{sT3}
                  s_xor_b32 s{sT2}, s{sT2}, s{sPOL}
                  s_and_b32 s{sT2}, s{sT2}, 1
                  s_lshl_b32 s{sT2}, s{sT2}, 13
                  s_add_u32 s{sT1}, s{sT1}, s{sT2}
                  s_lshr_b32 s{sT2}, s{sT0}, 1
                  s_lshl_b32 s{sT2}, s{sT2}, 14
                  s_add_u32 s{sT1}, s{sT1}, s{sT2}
                  s_and_b32 s{sT2}, s{sT0}, 1
                  s_lshl_b32 s{sT2}, s{sT2}, 12
                  s_add_u32 s{sT1}, s{sT1}, s{sT2}
                  s_add_u32 s{sT1}, s{sT1}, {WS_RC}
                  v_mov_b32 v{F}, -1
                  v_mov_b32 v{F+1}, -1
                  v_mov_b32 v{F+2}, -1
                  v_mov_b32 v{F+3}, -1
                  v_lshlrev_b32 v{F+4}, 4, v{vL}''')
            for k in range(4):
                a(f'buffer_store_dwordx4 v[{F}:{F+3}], v{F+4}, s[{sWS}:{sWS+3}], s{sT1} offen offset:{1024*k} sc1')
            a.label(l)
        def set_flag():
            a(f'''s_mul_i32 s{sFlagP}, s{sJ}, 512
                  s_add_u32 s{sFlagP}, s{sFlagP}, s{sNFlag}
                  s_add_u32 s{sFlagP}, s{sFlagP}, {WS_FLAG}''')
        ACC = self.ACC
        def pack(dst, lo, hi):
            a(f'''v_cvt_pk_bf16_f32 v{dst}, v{lo}, v{lo+1}
                  v_cvt_pk_bf16_f32 v{dst+1}, v{lo+2}, v{lo+3}
                  v_cvt_pk_bf16_f32 v{dst+2}, v{hi}, v{hi+1}
                  v_cvt_pk_bf16_f32 v{dst+3}, v{hi+2}, v{hi+3}''')
        self.tile_loop((4, 6), False, lqk)
        c_init()
        st = []
        for mt in range(4):
            st.append(f's_add_u32 s{sT0}, s{sOut}, {mt*6144}')
            for p in range(3):
                c = ACC + 4 * (mt * 6 + 2 * p)
                pack(c, c, c + 4)
                st.append(f'buffer_store_dwordx4 v[{c}:{c+3}], v{vQK}, s[{sWS}:{sWS+3}], s{sT0} offen offset:{1024*p}')
        self.lstore(st, cross=True)
        set_flag()
        a(f's_branch {nxt}')
        a.label(lv)
        self.tile_loop((4, 6), True, lv + 'x')
        c_init()
        st = []
        for sg in range(2):
            for nt in range(6):
                if nt % 3 == 0: st.append(f's_add_u32 s{sT0}, s{sOut}, {sg*12288 + nt*1024}')
                c = ACC + 4 * (2 * sg * 6 + nt)
                pack(c, c, c + 24)
                st.append(f'buffer_store_dwordx4 v[{c}:{c+3}], v{vV}, s[{sWS}:{sWS+3}], s{sT0} offen offset:{1024*(nt % 3)}')
        self.lstore(st, cross=True)
        set_flag()
        a(f's_branch {nxt}')
        a.label(lf)
        if self.opt.get('fused'):
            a(f'''s_lshl_b32 s{sIt}, s{sJ}, 4
                  s_add_u32 s{sIt}, s{sIt}, s{sC}
                  s_sub_u32 s{sIt}, s{sIt}, {self.rank0}
                  s_lshl_b32 s{sIt}, s{sIt}, 3
                  s_add_u32 s{sIt}, s{sIt}, s{sW}
                  s_lshl_b32 s{sIt}, s{sIt}, 1''')
            emit_gates(a, sIt, 2, vL, self.ACC)
        self.tile_loop((2, 12), False, lf + 'x')
        st = []
        T = self.F
        for mt in range(2):
            st.append(f's_add_u32 s{sT0}, s{sOut}, {mt*49152}')
            for p in range(3):
                g = ACC + 4 * (mt * 12 + 2 * p); u = g + 24
                R = range(8)
                for r in R: a(f'v_mul_f32 v{T+r}, v{g+r}, v{g+r}')
                for r in R: a(f'v_mov_b32 v{T+8+r}, s{sC1}')
                for r in R: a(f'v_fma_f32 v{T+r}, v{T+r}, s{sC2}, v{T+8+r}')
                for r in R: a(f'v_mul_f32 v{T+r}, v{T+r}, v{g+r}')
                for r in R: a(f'v_exp_f32 v{T+r}, v{T+r}')
                for r in R: a(f'v_mul_f32 v{g+r}, v{g+r}, v{u+r}')
                for r in R: a(f'v_add_f32 v{T+r}, 1.0, v{T+r}')
                for r in R: a(f'v_rcp_f32 v{T+r}, v{T+r}')
                a('s_nop 0')
                for r in R: a(f'v_mul_f32 v{g+r}, v{g+r}, v{T+r}')
                pack(g, g, g + 4)
                st.append(f'buffer_store_dwordx4 v[{g}:{g+3}], v{vH}, s[{sWS}:{sWS+3}], s{sT0} offen offset:{1024*p}')
        self.lstore(st)
        set_flag()
        a(f's_branch {nxt}')
        a.label('Lg_end')
        self.stage_top()
        self.after_top()
        a(f's_branch {done_label}')
        self.emit_tail()
```

```python
from asmlib import *
from layout import *
from chain import (sWS, sDBG, sT, ptr, sW, sJ, sC, sMIX, sBUD, sT0, sT1, sT2, sT3, sSELLO, sSELHI, srd)

PBUF = 6 * 5120
P3_LDS = 2 * PBUF
sNN, sTH, sKG, sTT, sSeg, sAct, sActStep, sNKS, sLds, sPo, sOUT = 56, 57, 58, 59, 64, 65, 66, 67, 68, 70, 60
sOF, sPFo, sRdy = 71, 72, 46

class Phase3:
    def __init__(self, a, opt, nworkers, rank0):
        self.a, self.opt, self.NW, self.rank0 = a, opt, nworkers, rank0
        self.NTH = nworkers // 8

    def retry(self, label):
        self.a(f'''s_sub_u32 s{sBUD}, s{sBUD}, 1
                   s_cbranch_scc0 {label}
                   s_mov_b32 s{sBUD}, 0''')

    def wait_flags(self, nlanes, soff, vOff4, vT, seg=None, vT2=None):
        a = self.a
        lp, ok = a.newlabel('Lpf'), a.newlabel('Lpfok')
        a(f's_mov_b64 exec, {hex((1 << nlanes) - 1)}' if nlanes <= 32 else f's_mov_b64 exec, s[{self.sM48}:{self.sM48+1}]')
        if seg is not None:
            a(f'v_lshlrev_b32 v{vT2}, 5, v{vOff4}')
            vOff4 = vT2
        cmp = f'v_cmp_eq_u32 vcc, 0, v{vT}' if seg is None else f'v_cmp_ge_u32 vcc, s{seg}, v{vT}'
        a.label(lp)
        a(f'''buffer_load_dword v{vT}, v{vOff4}, s[{sWS}:{sWS+3}], s{soff} offen sc1
              s_waitcnt vmcnt(0)
              {cmp}
              s_cbranch_vccz {ok}
              s_sleep {self.opt.get('p_sleep', 4)}''')
        self.retry(lp)
        a.label(ok)
        a('s_mov_b64 exec, -1')

    def load_w(self, W, nks, rel, vP, vS, vSel, vtmp, tmps):
        a = self.a
        def issue(ks):
            for p in range(4):
                base = W + ks * 20
                a(f's_mov_b32 s{sT0}, {rel(ks, p) * 1280}')
                a(f's_mov_b32 s{sT1}, {(rel(ks, p) + 1) * 1280}')
                for pr in range(2):
                    a(f'buffer_load_dword v{base+8*pr+p}, v{vP}, s[{sT}:{sT+3}], s{sT0} offen offset:{64*pr}')
                    a(f'buffer_load_dword v{base+8*pr+4+p}, v{vP}, s[{sT}:{sT+3}], s{sT1} offen offset:{64*pr}')
                a(f'buffer_load_dword v{base+16+p}, v{vS}, s[{sT}:{sT+3}], s{sT0} offen')
                a(f'buffer_load_dword v{tmps+(ks&1)*4+p}, v{vS}, s[{sT}:{sT+3}], s{sT1} offen')
        def fix(ks):
            base = W + ks * 20
            for p in range(4):
                for pr in range(2):
                    ra, rb = base + 8*pr + p, base + 8*pr + 4 + p
                    a(f'v_perm_b32 v{vtmp}, v{rb}, v{ra}, s{sSELLO}')
                    a(f'v_perm_b32 v{rb}, v{rb}, v{ra}, s{sSELHI}')
                    a(f'v_mov_b32 v{ra}, v{vtmp}')
                a(f'v_perm_b32 v{base+16+p}, v{tmps+(ks&1)*4+p}, v{base+16+p}, v{vSel}')
        issue(0)
        for ks in range(nks):
            if ks + 1 < nks:
                issue(ks + 1); a('s_waitcnt vmcnt(24)')
            else:
                a('s_waitcnt vmcnt(0)')
            fix(ks)

    def emit(self, done_label):
        a = self.a
        fused = self.opt.get('fused')
        NTH = self.NTH
        al = Alloc(0, 256)
        vL4 = al()
        vQ, vT0, vT1 = al(), al(), al()
        W = al(160, 2); ACT = al(64, 2); ACC = al(20, 2)
        vAct, vG0, vG1, vGo, vLw, vPo, vFi, vFo = [al() for _ in range(8)]
        vL, vN, vT2, vSel = ACC, ACC + 1, ACC + 2, ACC + 3
        self.sM48 = 74
        sPre, sPend, sFin = 73, 80, 81
        a(f"""v_and_b32 v{vL}, 63, v0
              v_and_b32 v{vN}, 15, v0
              v_bfe_u32 v{vQ}, v0, 4, 2
              s_mov_b32 s{sSELLO}, 0x05040100
              s_mov_b32 s{sSELHI}, 0x07060302
              s_mov_b32 s{self.sM48}, -1
              s_mov_b32 s{self.sM48+1}, 0xffff
              s_sub_u32 s{sT0}, s{sC}, {self.rank0}
              s_and_b32 s{sNN}, s{sT0}, 7
              s_lshr_b32 s{sTH}, s{sT0}, 3
              s_lshr_b32 s{sKG}, s{sW}, 1
              s_and_b32 s{sTT}, s{sW}, 1
              s_mov_b32 s{sOUT}, s{ptr(12)}
              s_mov_b32 s{sOUT+1}, s{ptr(12)+1}
              s_mov_b32 s{sOUT+2}, {S*DM*2}
              s_mov_b32 s{sOUT+3}, 0x20000
              v_lshlrev_b32 v{vL4}, 2, v{vL}
              v_and_b32 v{vT0}, 1, v{vN}
              v_cmp_eq_u32 vcc, 1, v{vT0}
              v_mov_b32 v{vSel}, s{sSELLO}
              v_mov_b32 v{vT0}, s{sSELHI}
              s_nop 1
              v_cndmask_b32 v{vSel}, v{vSel}, v{vT0}, vcc""")
        lh, lw = a.newlabel('Lp3h'), a.newlabel('Lp3w')
        vP, vS = vAct, vGo
        a(f"""s_cmp_eq_u32 s{sKG}, 0
              s_cbranch_scc1 {lh}""")
        srd(a, ptr(5), NH * DH * DM * 2)
        a(f"""s_mul_i32 s{sT0}, s{sJ}, 768
              s_lshl_b32 s{sT1}, s{sKG}, 8
              s_add_u32 s{sT0}, s{sT0}, s{sT1}
              s_sub_u32 s{sT0}, s{sT0}, 256
              s_lshl_b32 s{sAct}, s{sT0}, 5
              s_add_u32 s{sAct}, s{sAct}, {WS_O}
              s_mul_i32 s{sT0}, s{sT0}, 1280
              s_mul_i32 s{sT1}, s{sNN}, 160
              s_add_u32 s{sT0}, s{sT0}, s{sT1}
              v_mul_u32_u24 v{vP}, {8*1280}, v{vQ}
              v_add_u32 v{vP}, s{sT0}, v{vP}
              v_and_b32 v{vT0}, 14, v{vN}
              v_lshl_add_u32 v{vS}, v{vT0}, 1, v{vP}
              v_add_u32 v{vS}, 128, v{vS}
              v_lshl_add_u32 v{vP}, v{vN}, 2, v{vP}""")
        self.load_w(W, 8, lambda ks, p: 32*ks + 2*p, vP, vS, vSel, vT0, ACT)
        a(f"""s_mov_b32 s{sActStep}, 12288
              s_branch {lw}""")
        a.label(lh)
        srd(a, ptr(10), DF * DM * 2)
        a(f"""s_mul_i32 s{sT0}, s{sJ}, 192
              s_lshl_b32 s{sAct}, s{sT0}, 5
              s_add_u32 s{sAct}, s{sAct}, {WS_H}
              s_mul_i32 s{sT0}, s{sT0}, 1280
              s_mul_i32 s{sT1}, s{sNN}, 160
              s_add_u32 s{sT0}, s{sT0}, s{sT1}
              v_mul_u32_u24 v{vP}, {4*1280}, v{vQ}
              v_add_u32 v{vP}, s{sT0}, v{vP}
              v_and_b32 v{vT0}, 14, v{vN}
              v_lshl_add_u32 v{vS}, v{vT0}, 1, v{vP}
              v_add_u32 v{vS}, 128, v{vS}
              v_lshl_add_u32 v{vP}, v{vN}, 2, v{vP}""")
        self.load_w(W, 6, lambda ks, p: 32*ks + 16*(p >> 1) + 2*(p & 1), vP, vS, vSel, vT0, ACT)
        a(f's_mov_b32 s{sActStep}, 3072')
        a.label(lw)
        a(f"""s_lshl_b32 s{sT0}, s{sTT}, 4
              v_add_u32 v{vT0}, s{sT0}, v{vN}
              s_mul_i32 s{sT1}, s{sT0}, s{sActStep}
              v_lshlrev_b32 v{vAct}, 4, v{vL}
              v_add_u32 v{vAct}, s{sT1}, v{vAct}
              v_lshlrev_b32 v{vGo}, 2, v{vT0}
              v_mul_u32_u24 v{vPo}, 160, v{vT0}
              s_lshl_b32 s{sActStep}, s{sActStep}, 5
              s_sub_u32 s{sT0}, s{sW}, 2
              s_cmp_eq_u32 s{sKG}, 0
              s_cselect_b32 s{sT0}, s{sW}, s{sT0}
              s_mul_i32 s{sT0}, s{sT0}, 5120
              v_lshlrev_b32 v{vLw}, 4, v{vL}
              v_add_u32 v{vLw}, s{sT0}, v{vLw}
              s_max_u32 s{sT0}, s{sW}, 3
              s_sub_u32 s{sT0}, s{sT0}, 3
              s_lshl_b32 s{sT0}, s{sT0}, 6
              v_add_u32 v{vT0}, s{sT0}, v{vL}
              v_lshlrev_b32 v{vFi}, 4, v{vT0}
              v_mul_u32_u24 v{vT1}, 6554, v{vT0}
              v_lshrrev_b32 v{vT1}, 16, v{vT1}
              v_mul_u32_u24 v{vT2}, 1120, v{vT1}
              v_add_u32 v{vFo}, v{vFi}, v{vT2}
              s_mov_b32 s{sSeg}, s{sTH}
              s_mov_b32 s{sPre}, 0
              s_mov_b32 s{sRdy}, 0
              s_mov_b32 s{sPend}, 0""")
        if not fused:
            lp, ok = a.newlabel('Lp3r'), a.newlabel('Lp3rok')
            a.label(lp)
            a(f"""buffer_load_dword v{vT0}, v{vL4}, s[{sDBG}:{sDBG+3}], 0 offen sc0 sc1
                  s_waitcnt vmcnt(0)
                  v_readlane_b32 s{sT0}, v{vT0}, 8
                  s_cmp_ge_u32 s{sT0}, 256
                  s_cbranch_scc1 {ok}
                  s_sleep 8""")
            self.retry(lp)
            a.label(ok)

        if fused:
            lp, ok = a.newlabel('Lp3g'), a.newlabel('Lp3gok')
            a.label(lp)
            a(f"""buffer_load_dword v{vT0}, v{vL4}, s[{sDBG}:{sDBG+3}], 0 offen sc0 sc1
                  s_waitcnt vmcnt(0)
                  v_readlane_b32 s{sT0}, v{vT0}, 33
                  v_readlane_b32 s{sT1}, v{vT0}, 32
                  s_add_u32 s{sT0}, s{sT0}, s{sT1}
                  s_cmp_ge_u32 s{sT0}, {128 + 384}
                  s_cbranch_scc1 {ok}
                  s_sleep 16""")
            self.retry(lp)
            a.label(ok)
        if self.opt.get('prof'):
            a('s_memrealtime s[92:93]'); a('s_waitcnt lgkmcnt(0)')
        def flag_off(isH, seg):
            if isH:
                a(f"""s_lshl_b32 s{sOF}, s{sJ}, 9
                      s_lshr_b32 s{sT0}, s{seg}, 3
                      s_lshl_b32 s{sT0}, s{sT0}, 3
                      s_add_u32 s{sOF}, s{sOF}, s{sT0}
                      s_add_u32 s{sOF}, s{sOF}, {WS_FLAG + 96*4}""")
            else:
                a(f"""s_lshl_b32 s{sOF}, s{sJ}, 11
                      s_add_u32 s{sOF}, s{sOF}, {WS_OFLAG}""")
        def loads(nks, seg, b):
            a(f"""s_mul_i32 s{sT2}, s{seg}, s{sActStep}
                  s_add_u32 s{sT2}, s{sT2}, s{sAct}
                  s_lshl_b32 s{sT3}, s{seg}, 7
                  s_add_u32 s{sT3}, s{sT3}, {WS_G}
                  buffer_load_dword v{vG1 if b else vG0}, v{vGo}, s[{sWS}:{sWS+3}], s{sT3} offen sc1""")
            for ks in range(nks):
                r = ACT + 32*b + 4*ks
                if ks == 4: a(f's_add_u32 s{sT2}, s{sT2}, 4096')
                a(f'buffer_load_dwordx4 v[{r}:{r+3}], v{vAct}, s[{sWS}:{sWS+3}], s{sT2} offen offset:{1024*(ks&3)} sc1')
        def set_pending_flag():
            l = a.newlabel('Lp3pf')
            a(f"""s_cmp_eq_u32 s{sPend}, 0
                  s_cbranch_scc1 {l}
                  v_mov_b32 v{vT0}, 0
                  v_mov_b32 v{vT1}, 1
                  s_mov_b64 exec, 1
                  buffer_store_dword v{vT1}, v{vT0}, s[{sWS}:{sWS+3}], s{sPend} offen sc1
                  s_mov_b64 exec, -1
                  s_mov_b32 s{sPend}, 0""")
            a.label(l)
        def progress(block, target):
            lp, ok = a.newlabel('Lpg'), a.newlabel('Lpgok')
            a(f"""s_lshl_b32 s{sOF}, s{sJ}, 11
                  s_add_u32 s{sOF}, s{sOF}, {WS_OFLAG}
                  v_and_b32 v{vT1}, 60, v{vL4}
                  v_lshlrev_b32 v{vT1}, 5, v{vT1}""")
            a.label(lp)
            a(f"""buffer_load_dword v{vT0}, v{vT1}, s[{sWS}:{sWS+3}], s{sOF} offen sc1
                  s_waitcnt vmcnt(0)""")
            for sh in (8, 4, 2, 1):
                a(f"""s_nop 1
                      v_min_u32_dpp v{vT0}, v{vT0}, v{vT0} row_ror:{sh} row_mask:0xf bank_mask:0xf""")
            a(f"""s_nop 1
                  v_readfirstlane_b32 s{sRdy}, v{vT0}""")
            if block:
                a(f"""s_cmp_gt_u32 s{sRdy}, s{target}
                      s_cbranch_scc1 {ok}
                      s_sleep {self.opt.get('p_sleep', 4)}""")
                self.retry(lp)
                a.label(ok)
        def front(isH, b):
            nks = 6 if isH else 8
            watch = fused and not isH
            have, nonext, go = a.newlabel('Lp3hv'), a.newlabel('Lp3nn'), a.newlabel('Lp3go')
            a(f"""s_cmp_lg_u32 s{sPre}, 0
                  s_cbranch_scc1 {have}""")
            if watch: progress(True, sSeg)
            if self.opt.get('prof2'): a('s_memrealtime s[94:95]')
            loads(nks, sSeg, b)
            a.label(have)
            a(f"""s_add_u32 s{sNKS}, s{sSeg}, {NTH}
                  s_mov_b32 s{sPre}, 0
                  s_cmp_ge_u32 s{sNKS}, 64
                  s_cbranch_scc1 {nonext}""")
            if watch:
                known = a.newlabel('Lp3kn')
                a(f"""s_cmp_gt_u32 s{sRdy}, s{sNKS}
                      s_cbranch_scc1 {known}""")
                progress(False, None)
                a(f"""s_cmp_le_u32 s{sRdy}, s{sNKS}
                      s_cbranch_scc1 {nonext}""")
                a.label(known)
            loads(nks, sNKS, b ^ 1)
            a(f's_mov_b32 s{sPre}, 1')
            if isH:
                a(f"""s_waitcnt vmcnt({nks + 4})
                      s_cmp_lg_u32 s{sPend}, 0
                      s_cbranch_scc1 {go}""")
            a(f"""s_waitcnt vmcnt({nks + 1})
                  s_branch {go}""")
            a.label(nonext)
            a('s_waitcnt vmcnt(0)')
            a.label(go)
            for ks in range(nks):
                for t in range(5):
                    w = W + ks*20 + (4*t if t < 4 else 16)
                    r = ACT + 32*b + 4*ks
                    c = '0' if ks == 0 else f'v[{ACC+4*t}:{ACC+4*t+3}]'
                    a(f'v_mfma_f32_16x16x32_bf16 v[{ACC+4*t}:{ACC+4*t+3}], v[{w}:{w+3}], v[{r}:{r+3}], {c}')
        def final(seg, b):
            nofin = a.newlabel('Lp3nf')
            R = ACT + 32*b
            a(f"""s_lshr_b32 s{sT0}, s{seg}, {NTH.bit_length() - 1}
                  s_and_b32 s{sT0}, s{sT0}, 7
                  s_cmp_lg_u32 s{sT0}, s{sJ}
                  s_cbranch_scc1 {nofin}
                  s_cmp_lt_u32 s{sW}, 3
                  s_cbranch_scc1 {nofin}
                  s_cmp_ge_u32 s{seg}, 64
                  s_cbranch_scc1 {nofin}
                  s_lshl_b32 s{sPFo}, s{seg}, 3
                  s_add_u32 s{sPFo}, s{sPFo}, s{sNN}
                  s_mul_i32 s{sPo}, s{sPFo}, 5120
                  s_add_u32 s{sPo}, s{sPo}, {WS_P}
                  s_lshl_b32 s{sPFo}, s{sPFo}, 7
                  s_add_u32 s{sPFo}, s{sPFo}, {WS_PFLAG}""")
            self.wait_flags(16, sPFo, vL4, vT0)
            if self.opt.get('prof2'): a('s_memrealtime s[98:99]'); a('s_waitcnt lgkmcnt(0)')
            for j in range(8):
                a(f'buffer_load_dwordx4 v[{R+4*j}:{R+4*j+3}], v{vFi}, s[{sWS}:{sWS+3}], s{sPo} offen sc1')
                if j < 7: a(f's_add_u32 s{sPo}, s{sPo}, {64*8*5120}')
            for j in range(8):
                a(f's_waitcnt vmcnt({7-j})')
                for k in range(4):
                    x = R + 4*j + k
                    if j == 0:
                        a(f'v_lshlrev_b32 v{ACC+2*k}, 16, v{x}')
                        a(f'v_and_b32 v{ACC+2*k+1}, 0xffff0000, v{x}')
                    else:
                        a(f'v_lshlrev_b32 v{vT0}, 16, v{x}')
                        a(f'v_and_b32 v{vT1}, 0xffff0000, v{x}')
                        a(f'v_add_f32 v{ACC+2*k}, v{ACC+2*k}, v{vT0}')
                        a(f'v_add_f32 v{ACC+2*k+1}, v{ACC+2*k+1}, v{vT1}')
            for k in range(4):
                a(f'v_cvt_pk_bf16_f32 v{ACC+8+k}, v{ACC+2*k}, v{ACC+2*k+1}')
            a(f"""s_mul_i32 s{sT0}, s{seg}, {32*1280}
                  s_mul_i32 s{sT1}, s{sNN}, 160
                  s_add_u32 s{sT0}, s{sT0}, s{sT1}
                  buffer_store_dwordx4 v[{ACC+8}:{ACC+11}], v{vFo}, s[{sOUT}:{sOUT+3}], s{sT0} offen{self.opt.get('out_flags', '')}
                  s_waitcnt vmcnt(0)""")
            a.label(nofin)

        lH = a.newlabel('Lp3H')
        a(f"""s_cmp_eq_u32 s{sKG}, 0
              s_cbranch_scc1 {lH}""")
        loop, end = a.newlabel('Lp3o'), a.newlabel('Lp3oe')
        a.label(loop)
        for b in range(2):
            vG = vG1 if b else vG0
            front(False, b)
            a('s_nop 3')
            for t in range(5):
                for r in range(4): a(f'v_mul_f32 v{ACC+4*t+r}, v{ACC+4*t+r}, v{vG}')
                a(f'ds_write_b128 v{vLw}, v[{ACC+4*t}:{ACC+4*t+3}] offset:{PBUF*b + 1024*t}')
            if self.opt.get('prof2'): a('s_memrealtime s[96:97]')
            a('s_waitcnt lgkmcnt(0)')
            a('s_barrier')
            a(f's_sub_u32 s{sFin}, s{sSeg}, {NTH}')
            final(sFin, b)
            a(f"""s_add_u32 s{sSeg}, s{sSeg}, {NTH}
                  s_cmp_ge_u32 s{sSeg}, 64
                  s_cbranch_scc1 {end}""")
        a(f's_branch {loop}')
        a.label(end)
        a(f's_sub_u32 s{sFin}, s{sSeg}, {NTH}')
        final(sFin, 0)
        a(f's_branch {done_label}')
        a.label(lH)
        loop, end = a.newlabel('Lp3hl'), a.newlabel('Lp3he')
        PR = W + 120
        if fused:
            a(f"""s_lshl_b32 s{sOF}, s{sJ}, 9
                  s_add_u32 s{sOF}, s{sOF}, {WS_FLAG + 96*4}""")
            self.wait_flags(16, sOF, vL4, vT0)
        a.label(loop)
        for b in range(2):
            vG = vG1 if b else vG0
            front(True, b)
            a(f"""v_sub_f32 v{vG}, 1.0, v{vG}
                  s_lshl_b32 s{sPo}, s{sJ}, 6
                  s_add_u32 s{sPo}, s{sPo}, s{sSeg}
                  s_lshl_b32 s{sPo}, s{sPo}, 3
                  s_add_u32 s{sPo}, s{sPo}, s{sNN}
                  s_mul_i32 s{sPo}, s{sPo}, 5120
                  s_add_u32 s{sPo}, s{sPo}, {WS_P}""")
            for k in range(20): a(f'v_mul_f32 v{ACC+k}, v{ACC+k}, v{vG}')
            a('s_waitcnt vmcnt(7)')
            set_pending_flag()
            a('s_barrier')
            def rd(kg, dst):
                for t in range(5):
                    a(f'ds_read_b128 v[{dst+4*t}:{dst+4*t+3}], v{vLw} offset:{PBUF*b + 10240*kg + 1024*t}')
            def add(src):
                for k in range(20): a(f'v_add_f32 v{ACC+k}, v{ACC+k}, v{src+k}')
            rd(0, PR); rd(1, PR + 20)
            a('s_waitcnt lgkmcnt(5)'); add(PR)
            rd(2, PR)
            a('s_waitcnt lgkmcnt(5)'); add(PR + 20)
            a('s_waitcnt lgkmcnt(0)'); add(PR)
            O = PR + 20
            for pr in range(2):
                for r in range(4):
                    a(f'v_cvt_pk_bf16_f32 v{O+4*pr+r}, v{ACC+8*pr+r}, v{ACC+8*pr+4+r}')
            nowait = a.newlabel('Lp3nw')
            a(f"""v_cvt_pk_bf16_f32 v{O+8}, v{ACC+16}, v{ACC+17}
                  v_cvt_pk_bf16_f32 v{O+9}, v{ACC+18}, v{ACC+19}
                  v_lshl_add_u32 v{vT0}, v{vQ}, 4, v{vPo}
                  v_lshl_add_u32 v{vT1}, v{vQ}, 3, v{vPo}
                  buffer_store_dwordx4 v[{O}:{O+3}], v{vT0}, s[{sWS}:{sWS+3}], s{sPo} offen sc1
                  buffer_store_dwordx4 v[{O+4}:{O+7}], v{vT0}, s[{sWS}:{sWS+3}], s{sPo} offen offset:64 sc1
                  buffer_store_dwordx2 v[{O+8}:{O+9}], v{vT1}, s[{sWS}:{sWS+3}], s{sPo} offen offset:128 sc1
                  s_lshl_b32 s{sPend}, s{sSeg}, 3
                  s_add_u32 s{sPend}, s{sPend}, s{sNN}
                  s_lshl_b32 s{sPend}, s{sPend}, 7
                  s_lshl_b32 s{sT0}, s{sJ}, 3
                  s_add_u32 s{sPend}, s{sPend}, s{sT0}
                  s_lshl_b32 s{sT0}, s{sTT}, 2
                  s_add_u32 s{sPend}, s{sPend}, s{sT0}
                  s_add_u32 s{sPend}, s{sPend}, {WS_PFLAG}
                  s_cmp_lg_u32 s{sPre}, 0
                  s_cbranch_scc1 {nowait}
                  s_waitcnt vmcnt(0)""")
            set_pending_flag()
            a.label(nowait)
            a(f"""s_add_u32 s{sSeg}, s{sSeg}, {NTH}
                  s_cmp_ge_u32 s{sSeg}, 64
                  s_cbranch_scc1 {end}""")
        a(f's_branch {loop}')
        a.label(end)
        a(f's_branch {done_label}')
```

```python
from asmlib import *
from layout import *
import math

LM, LO, LDUMMY, LQK, LW5, LR, LOX, LBUF = 0, 10240, 13312, 16384, 22528, 34816, 35840, 38912
LBUF_SZ = 27648
LK_OFF, LV_OFF, LQ_OFF = 0, 12288, 24576
CHAIN_LDS = LBUF + 3 * LBUF_SZ
SWEEP_LDS = 139264

sWS, sDBG, sT = 4, 8, 12
sPTR = 16
def ptr(i): return sPTR + 2 * i
sW, sJ, sC, sH, sG, sMIX, sBUD, sSTEP = 48, 49, 50, 51, 52, 53, 54, 55
sA_N, sA_R, sB_C, sB_R, sC_W, sC_RS, sC_RD, sO_C = 56, 57, 58, 59, 60, 61, 62, 63
sKQ, sVX, sLB, sRED, sSCL, sT0, sT1, sT2, sT3 = 64, 65, 66, 67, 68, 69, 76, 77, 78
sMN8, sML32, sMH8 = 70, 72, 74
sSELLO, sSELHI = 80, 81
sCI = 46
sARR = 3
sMA = 46
sST = 82
sPADD, sPOR, sA_P, sCS, sPOL, sC_W2 = 94, 95, 96, 97, 79, 61
NSTAMP = 6

def srd(a, base_ptr, nbytes):
    a(f'''s_mov_b32 s{sT}, s{base_ptr}
          s_mov_b32 s{sT+1}, s{base_ptr+1}
          s_mov_b32 s{sT+2}, {nbytes}
          s_mov_b32 s{sT+3}, 0x20000''')

class Chain:
    def __init__(self, a, opt):
        self.a = a
        self.opt = opt
        self.tail = []
        self.tails = []
        self.nstamp = 0
        self.wnt = ' nt' if opt.get('w_nt') else ''

    def lstore(self, insts):
        a = self.a
        slow, back = a.newlabel('Lslow'), a.newlabel('Lback')
        a(f's_cmp_lg_u32 s{sMIX}, 0')
        a(f's_cbranch_scc1 {slow}')
        for i in insts: a(i)
        a.label(back)
        self.tail.append((slow, [i + ' sc1' if i.startswith('buffer_') else i for i in insts], back))

    def emit_tail(self):
        a = self.a
        for slow, insts, back in self.tail:
            a.label(slow)
            for i in insts: a(i)
            a(f's_branch {back}')
        self.tail = []
        for t in self.tails: t()
        self.tails = []

    def stamp(self, k, ahead=0):
        if not self.opt.get('stamps'): return
        a = self.a
        l = a.newlabel('Lst')
        a(f'''s_cmp_lg_u32 s{sSTEP}, {self.opt['stamps'] + ahead}
              s_cbranch_scc1 {l}
              {self.opt.get('clock', 's_memtime')} s[{sST+2*k}:{sST+2*k+1}]
              s_waitcnt lgkmcnt(0)''')
        a.label(l)

    def mark(self, k):
        if not self.opt.get('prof'): return
        self.a(f's_memrealtime s[{sST+2*k}:{sST+2*k+1}]')
        self.a('s_waitcnt lgkmcnt(0)')

    def dump_stamps(self):
        self.mark(3)
        if not (self.opt.get('stamps') or self.opt.get('prof')): return
        a = self.a
        if self.opt.get('dbgout'):
            l = a.newlabel('Ldo')
            a(f'''s_and_b32 s{sT0}, s{sC}, 15
                  s_or_b32 s{sT0}, s{sT0}, s{sJ}
                  s_or_b32 s{sT0}, s{sT0}, s{sW}
                  s_cmp_lg_u32 s{sT0}, 0
                  s_cbranch_scc1 {l}
                  s_cmp_ge_u32 s{sC}, 16
                  s_cselect_b32 s{sT0}, s{sST+2}, s{sST+4}
                  s_cselect_b32 s{sT2}, 56, 48
                  s_sub_u32 s{sT0}, s{sT0}, s{sST}
                  s_sub_u32 s{sT1}, s{sST+6}, s{sST}
                  s_mov_b64 exec, 1
                  v_mov_b32 v2, s{sT0}
                  v_mov_b32 v3, s{sT1}
                  v_mov_b32 v4, s{sT2}
                  buffer_store_dwordx2 v[2:3], v4, s[{sDBG}:{sDBG+3}], 0 offen
                  s_mov_b64 exec, -1''')
            a.label(l)
        a(f'''s_lshl_b32 s{sT0}, s{sJ}, 5
              s_add_u32 s{sT0}, s{sT0}, s{sC}
              s_lshl_b32 s{sT0}, s{sT0}, 3
              s_add_u32 s{sT0}, s{sT0}, s{sW}
              s_lshl_b32 s{sT0}, s{sT0}, 6
              s_add_u32 s{sT0}, s{sT0}, {WS_DBG + 0x100000}
              s_mov_b64 exec, -1
              v_mov_b32 v2, 0''')
        for k in range(NSTAMP):
            a(f'v_mov_b32 v3, s{sST+2*k}')
            a(f'buffer_store_dword v3, v2, s[{sWS}:{sWS+3}], s{sT0} offen offset:{4*k}')
        for k in range(4):
            a(f'v_mov_b32 v3, s{98+k}')
            a(f'buffer_store_dword v3, v2, s[{sWS}:{sWS+3}], s{sT0} offen offset:{4*(8+k)}')
        a('s_waitcnt vmcnt(0)')

    def retry(self, label, kind=None):
        a = self.a
        if kind is not None and self.opt.get('stamps'):
            a(f's_add_u32 s{98+kind}, s{98+kind}, 1')
        a(f'''s_sub_u32 s{sBUD}, s{sBUD}, 1
              s_cbranch_scc0 {label}
              s_mov_b32 s{sBUD}, 0''')

    def slots(self):
        a = self.a
        a(f'''s_and_b32 s{sT0}, s{sSTEP}, 3
              s_add_u32 s{sT1}, s{sSTEP}, 1
              s_and_b32 s{sT1}, s{sT1}, 3
              s_xor_b32 s{sT2}, s{sT0}, 2
              s_lshr_b32 s{sT3}, s{sJ}, 1
              s_mul_i32 s{sT3}, s{sT3}, 10240
              s_add_u32 s{sT3}, s{sT3}, {WS_RA}
              s_mul_i32 s{sA_N}, s{sT1}, {RA_SLOT}
              s_add_u32 s{sA_N}, s{sA_N}, s{sT3}
              s_mul_i32 s{sA_R}, s{sT2}, {RA_SLOT}
              s_add_u32 s{sA_R}, s{sA_R}, s{sT3}
              s_mul_i32 s{sT3}, s{sH}, 9216
              s_add_u32 s{sT3}, s{sT3}, {WS_RB}
              s_mul_i32 s{sB_C}, s{sT0}, {RB_SLOT}
              s_add_u32 s{sB_C}, s{sB_C}, s{sT3}
              s_mul_i32 s{sB_R}, s{sT2}, {RB_SLOT}
              s_add_u32 s{sB_R}, s{sB_R}, s{sT3}
              s_and_b32 s{sT0}, s{sCS}, 255
              s_mul_i32 s{sT1}, s{sT0}, 86
              s_lshr_b32 s{sT1}, s{sT1}, 8
              s_mul_i32 s{sC_RD}, s{sT0}, {RC_SLOT}
              s_mul_i32 s{sT2}, s{sT1}, {0x200000 - 3*RC_SLOT}
              s_add_u32 s{sC_RD}, s{sC_RD}, s{sT2}
              s_add_u32 s{sC_RD}, s{sC_RD}, {WS_RC}
              s_xor_b32 s{sT1}, s{sPOL}, s{sT1}
              s_and_b32 s{sT1}, s{sT1}, 1
              s_lshl_b32 s{sT1}, s{sT1}, 13
              s_add_u32 s{sC_RD}, s{sC_RD}, s{sT1}
              s_lshl_b32 s{sT3}, s{sH}, 8
              s_add_u32 s{sC_W}, s{sC_RD}, s{sT3}
              s_lshl_b32 s{sPOR}, s{sCS}, 8
              s_and_b32 s{sPOR}, s{sPOR}, 0x10000
              s_xor_b32 s{sPADD}, s{sPOR}, 0x10000
              s_mul_i32 s{sO_C}, s{sSTEP}, {32*12288}
              s_add_u32 s{sO_C}, s{sO_C}, {WS_O}''')

    def next_step(self):
        a = self.a
        a(f'''s_add_u32 s{sSTEP}, s{sSTEP}, 1
              s_add_u32 s{sCS}, s{sCS}, 1
              s_and_b32 s{sT0}, s{sCS}, 255
              s_xor_b32 s{sT1}, s{sCS}, {256 + RC_N}
              s_cmp_eq_u32 s{sT0}, {RC_N}
              s_cselect_b32 s{sCS}, s{sT1}, s{sCS}''')
        self.slots()

    def load_pair(self, WA, WB, nks, voff, rowstride, tmp, between=None):
        a = self.a
        items = []
        for ks in range(nks):
            for R in range(8):
                hi, p = R >> 2, R & 3
                b, tt = p & 1, p >> 1
                d = 64 * ks + 32 * hi + 8 * b + 2 * tt
                items.append((WA + ks * 8 + R, WB + ks * 8 + R, d))
        def issue(it):
            ra, rb, d = it
            a(f's_mov_b32 s{sT0}, {d * rowstride}')
            a(f'buffer_load_dword v{ra}, v{voff}, s[{sT}:{sT+3}], s{sT0} offen' + self.wnt)
            a(f's_mov_b32 s{sT1}, {(d + 1) * rowstride}')
            a(f'buffer_load_dword v{rb}, v{voff}, s[{sT}:{sT+3}], s{sT1} offen' + self.wnt)
        def fix(it):
            ra, rb, d = it
            a(f'v_perm_b32 v{tmp}, v{rb}, v{ra}, s{sSELLO}')
            a(f'v_perm_b32 v{rb}, v{rb}, v{ra}, s{sSELHI}')
            a(f'v_mov_b32 v{ra}, v{tmp}')
        groups = [items[i:i + 8] for i in range(0, len(items), 8)]
        groups = [items[i:i + 4] for i in range(0, len(items), 4)]
        depth = 7
        for gi in range(min(depth, len(groups))):
            for it in groups[gi]: issue(it)
        if between:
            assert len(groups) <= depth
            between()
            a('s_waitcnt vmcnt(0)')
        for gi in range(len(groups)):
            inflight = min(len(groups), gi + depth) - gi - 1
            a(f's_waitcnt vmcnt({8 * inflight})')
            for it in groups[gi]: fix(it)
            if gi + depth < len(groups):
                for it in groups[gi + depth]: issue(it)

    def load_single(self, W, nks, voff, vsel, rowstride, tmps):
        a = self.a
        items = []
        for ks in range(nks):
            for R in range(8):
                hi, p = R >> 2, R & 3
                b, tt = p & 1, p >> 1
                items.append((W + ks * 8 + R, 64 * ks + 32 * hi + 8 * b + 2 * tt))
        groups = [items[i:i + 4] for i in range(0, len(items), 4)]
        depth = 7
        def issue(gi):
            for k, (r, d) in enumerate(groups[gi]):
                t = tmps + (gi % depth) * 4 + k
                a(f's_mov_b32 s{sT0}, {d * rowstride}')
                a(f'buffer_load_dword v{r}, v{voff}, s[{sT}:{sT+3}], s{sT0} offen' + self.wnt)
                a(f's_mov_b32 s{sT1}, {(d + 1) * rowstride}')
                a(f'buffer_load_dword v{t}, v{voff}, s[{sT}:{sT+3}], s{sT1} offen' + self.wnt)
        for gi in range(min(depth, len(groups))): issue(gi)
        for gi in range(len(groups)):
            inflight = min(len(groups), gi + depth) - gi - 1
            a(f's_waitcnt vmcnt({8 * inflight})')
            for k, (r, d) in enumerate(groups[gi]):
                t = tmps + (gi % depth) * 4 + k
                a(f'v_perm_b32 v{r}, v{t}, v{r}, v{vsel}')
            if gi + depth < len(groups): issue(gi + depth)

    def load_w(self, WA, WB, nks, rowstride, sbase, vcol, tmps, vsel=None):
        a = self.a
        NS = 5
        vG, vR, vA, X = tmps, tmps + 1, tmps + 2, tmps + 4
        sSl = sLB
        a(f"""s_min_u32 s{sSl}, s{sW}, 4
              s_mul_i32 s{sSl}, s{sSl}, {4096*NS}
              s_add_u32 s{sSl}, s{sSl}, {LBUF}
              v_lshrrev_b32 v{vG}, 2, v{self.vL}
              s_mov_b32 s{sT1}, {rowstride}
              v_mul_lo_u32 v{vG}, v{vG}, s{sT1}
              v_and_b32 v{vR}, 3, v{self.vL}
              v_lshl_add_u32 v{vG}, v{vR}, 4, v{vG}
              v_lshrrev_b32 v{vR}, 1, v{self.vQ}
              v_lshlrev_b32 v{vR}, 10, v{vR}
              v_and_b32 v{vA}, 1, v{self.vQ}
              v_lshl_add_u32 v{vR}, v{vA}, 8, v{vR}
              v_add_u32 v{vR}, v{vR}, v{vcol}
              v_add_u32 v{vR}, s{sSl}, v{vR}""")
        def issue(ks):
            for i in range(4):
                a(f's_add_u32 m0, s{sSl}, {(ks % NS)*4096 + i*1024}')
                a(f's_add_u32 s{sT1}, s{sbase}, {(64*ks + 16*i)*rowstride}')
                a(f'buffer_load_dwordx4 v{vG}, s[{sT}:{sT+3}], s{sT1} offen' + (' nt' if self.opt.get('w_nt') == 1 else '') + ' lds')
        for ks in range(min(NS, nks)): issue(ks)
        for ks in range(nks):
            a(f's_waitcnt vmcnt({4 * (min(nks, ks + NS) - ks - 1)})')
            for hi in range(2):
                a(f'v_add_u32 v{vA+hi}, {(ks % NS)*4096 + hi*2048}, v{vR}')
            for R in range(8):
                hi, p = R >> 2, R & 3
                row = 8 * (p & 1) + 2 * (p >> 1)
                a(f'ds_read2_b32 v[{X+2*R}:{X+2*R+1}], v{vA+hi} offset0:{16*row} offset1:{16*(row+1)}')
            a('s_waitcnt lgkmcnt(0)')
            if ks + NS < nks: issue(ks + NS)
            for R in range(8):
                if WB is None:
                    a(f'v_perm_b32 v{WA+8*ks+R}, v{X+2*R+1}, v{X+2*R}, v{vsel}')
                else:
                    a(f'v_perm_b32 v{WA+8*ks+R}, v{X+2*R+1}, v{X+2*R}, s{sSELLO}')
                    a(f'v_perm_b32 v{WB+8*ks+R}, v{X+2*R+1}, v{X+2*R}, s{sSELHI}')

    def lanes(self, al):
        a = self.a
        self.vL, self.vN, self.vQ = al(), al(), al()
        self.vT0, self.vT1, self.vT2 = al(), al(), al()
        self.vMask = 0
        a(f'''v_and_b32 v{self.vL}, 63, v0
              v_and_b32 v{self.vN}, 15, v0
              v_bfe_u32 v{self.vQ}, v0, 4, 2
              v_mov_b32 v0, 0xfffe0000''')

    def frag_addr(self, dst):
        a = self.a
        a(f'''v_lshlrev_b32 v{dst}, 8, v{self.vQ}
              v_bfe_u32 v{self.vT0}, v{self.vN}, 1, 1
              v_lshl_add_u32 v{dst}, v{self.vT0}, 7, v{dst}
              v_lshrrev_b32 v{self.vT0}, 2, v{self.vN}
              v_lshl_add_u32 v{dst}, v{self.vT0}, 5, v{dst}
              v_and_b32 v{self.vT0}, 1, v{self.vN}
              v_lshl_add_u32 v{dst}, v{self.vT0}, 4, v{dst}''')

    def idx_reg(self, dst):
        a = self.a
        a(f'''v_and_b32 v{self.vT0}, 2, v{self.vN}
              v_cmp_eq_u32 vcc, 2, v{self.vT0}
              v_mov_b32 v{dst}, 0x44444444
              v_mov_b32 v{self.vT0}, 0xeeeeeeee
              s_nop 1
              v_cndmask_b32 v{dst}, v{dst}, v{self.vT0}, vcc''')

    def wrow_lane(self, dst, rowstride):
        a = self.a
        a(f'''v_lshrrev_b32 v{self.vT0}, 1, v{self.vQ}
              v_lshlrev_b32 v{self.vT0}, 4, v{self.vT0}
              v_and_b32 v{self.vT1}, 1, v{self.vQ}
              v_lshl_add_u32 v{self.vT0}, v{self.vT1}, 2, v{self.vT0}
              s_mov_b32 s{sT0}, {rowstride}
              v_mul_lo_u32 v{dst}, v{self.vT0}, s{sT0}''')

    def wait_all_registered(self):
        a = self.a
        a(f's_setprio {self.prio}')
        a('s_barrier')
        w = a.newlabel('Lp0')
        a(f's_cmp_lg_u32 s{sW}, 0')
        a(f's_cbranch_scc1 {w}')
        wait_registered(a, self.opt, self.vT0, self.vT1, self.vL, True)
        a(f'''s_lshl_b32 s{sPOL}, s{sPOL}, 1
              s_or_b32 s{sPOL}, s{sPOL}, s{sMIX}
              v_mov_b32 v{self.vT0}, s{sPOL}
              v_mov_b32 v{self.vT1}, {LR + 64}
              ds_write_b32 v{self.vT1}, v{self.vT0}
              s_waitcnt lgkmcnt(0)''')
        a.label(w)
        a(f'''s_barrier
              v_mov_b32 v{self.vT1}, {LR + 64}
              ds_read_b32 v{self.vT0}, v{self.vT1}
              s_waitcnt lgkmcnt(0)
              v_readfirstlane_b32 s{sPOL}, v{self.vT0}
              s_and_b32 s{sMIX}, s{sPOL}, 1
              s_lshr_b32 s{sPOL}, s{sPOL}, 1''')
        if self.opt.get('pol') is not None: pass
        self.slots()

    def wait_tiles(self, seg, first, nflags):
        if not self.opt.get('fused'): return
        a = self.a
        lp, ok, skip = a.newlabel('Lwt'), a.newlabel('Lwtok'), a.newlabel('Lwts')
        T0, T1 = self.vT0, self.vT1
        a(f'''s_and_b32 s{sT0}, s{seg}, 7
              s_cbranch_scc1 {skip}
              s_lshr_b32 s{sT0}, s{seg}, 3
              s_mul_i32 s{sT0}, s{sT0}, 48
              s_lshl_b32 s{sT1}, s{sJ}, 9
              s_add_u32 s{sT0}, s{sT0}, s{sT1}
              s_and_b32 s{sT1}, s{sH}, 3
              s_lshl_b32 s{sT1}, s{sT1}, 2
              s_add_u32 s{sT0}, s{sT0}, s{sT1}
              s_add_u32 s{sT0}, s{sT0}, {WS_FLAG + 16*first}
              v_lshlrev_b32 v{T1}, 4, v{self.vL}
              s_mov_b64 exec, {(1 << nflags) - 1}''')
        a.label(lp)
        a(f'''buffer_load_dword v{T0}, v{T1}, s[{sWS}:{sWS+3}], s{sT0} offen sc1
              s_waitcnt vmcnt(0)
              v_cmp_eq_u32 vcc, 0, v{T0}
              s_cbranch_vccz {ok}
              s_sleep {self.opt.get('t_sleep', 2)}''')
        self.retry(lp)
        a.label(ok)
        a('s_mov_b64 exec, -1')
        a.label(skip)

    def o_flag(self, back):
        if not self.opt.get('fused'): return
        a = self.a
        if self.opt.get('no_oflag'): return
        a(f'''s_lshl_b32 s{sT0}, s{sJ}, 4
              s_add_u32 s{sT0}, s{sT0}, s{sC}
              s_lshl_b32 s{sT0}, s{sT0}, 7
              s_add_u32 s{sT0}, s{sT0}, {WS_OFLAG}
              s_add_u32 s{sT1}, s{sSTEP}, {1 - back}
              v_mov_b32 v{self.vT0}, s{sT1}
              v_mov_b32 v{self.vT1}, 0
              s_mov_b64 exec, 1''')
        a(f'buffer_store_dword v{self.vT0}, v{self.vT1}, s[{sWS}:{sWS+3}], s{sT0} offen sc1')
        a('s_mov_b64 exec, -1')

    def poll2(self, vOff, soff, lds, sets, kind, gap):
        a = self.a
        t, t2 = self.vT0, self.vT1
        n = len(sets)
        def issue(R):
            a(f'''buffer_load_dwordx4 v[{R}:{R+3}], v{vOff}, s[{sWS}:{sWS+3}], s{soff} offen sc1
                  buffer_load_dwordx4 v[{R+4}:{R+7}], v{vOff}, s[{sWS}:{sWS+3}], s{soff} offen offset:1024 sc1''')
        def check(R, br):
            a(f'''ds_write_b128 v{vOff}, v[{R}:{R+3}] offset:{lds}
                  ds_write_b128 v{vOff}, v[{R+4}:{R+7}] offset:{lds+1024}
                  v_max3_u32 v{t}, v{R}, v{R+1}, v{R+2}
                  v_max3_u32 v{t2}, v{R+3}, v{R+4}, v{R+5}
                  v_max3_u32 v{t}, v{t}, v{R+6}, v{R+7}
                  v_max_u32 v{t}, v{t}, v{t2}
                  v_cmp_eq_u32 vcc, -1, v{t}
                  {br}''')
        lp, ok = a.newlabel('Lp'), a.newlabel('Lpok')
        for k in range(n):
            issue(sets[k])
            if gap and k < n - 1: a(f's_sleep {gap}')
        a(f's_waitcnt vmcnt({2 * (n - 1)})')
        if kind == 0 and self.opt.get('fine'): self.stamp(3)
        check(sets[0], f's_cbranch_vccnz {lp}')
        a.label(ok)
        def tail():
            back = a.newlabel('Lpb')
            a.label(lp)
            for k in range(n):
                if self.opt.get('stamps'): a(f's_add_u32 s{98+kind}, s{98+kind}, 1')
                a('s_mov_b64 exec, vcc')
                issue(sets[k])
                a(f's_waitcnt vmcnt({2 * (n - 1)})')
                check(sets[(k + 1) % n], f's_cbranch_vccz {back}')
            self.retry(lp)
            a.label(back)
            a('s_mov_b64 exec, -1')
            a(f's_branch {ok}')
        self.tails.append(tail)

    def a_poll(self, vAoff, sets, first=False):
        a = self.a
        if first:
            a(f's_lshr_b32 s{sA_P}, s{sJ}, 1')
            a(f's_mul_i32 s{sA_P}, s{sA_P}, 10240')
            a(f's_add_u32 s{sA_P}, s{sA_P}, {WS_RA}')
        else:
            a(f's_mov_b32 s{sA_P}, s{sA_N}')
            self.next_step()
        a('s_barrier')
        if self.opt.get('a_first'): a(f"s_sleep {self.opt['a_first']}")
        self.poll2(vAoff, sA_P, LM, sets[:self.opt.get('a_depth', 1)], 2, self.opt.get('a_gap', 0))
        a('s_waitcnt lgkmcnt(0)')
        if not first: self.stamp(4, 1)
        a('s_barrier')

    def mem0_load(self, vAoff, R):
        a = self.a
        srd(a, ptr(1), 10240)
        T0, T1 = self.vT0, self.vT1
        a(f'''v_bfe_u32 v{T0}, v{vAoff}, 4, 3
              v_mul_u32_u24 v{T0}, 1280, v{T0}
              v_lshrrev_b32 v{T1}, 7, v{vAoff}
              v_lshl_add_u32 v{T0}, v{T1}, 4, v{T0}
              buffer_load_dwordx4 v[{R}:{R+3}], v{T0}, s[{sT}:{sT+3}], 0 offen
              buffer_load_dwordx4 v[{R+4}:{R+7}], v{T0}, s[{sT}:{sT+3}], 0 offen offset:128
              s_waitcnt vmcnt(0)
              ds_write_b128 v{vAoff}, v[{R}:{R+3}] offset:{LM}
              ds_write_b128 v{vAoff}, v[{R+4}:{R+7}] offset:{LM+1024}
              s_waitcnt lgkmcnt(0)''')

    def a_off(self, dst):
        a = self.a
        a(f'''s_sub_u32 s{sT0}, s{sW}, 3
              s_lshl_b32 s{sT0}, s{sT0}, 11
              v_lshlrev_b32 v{dst}, 4, v{self.vL}
              v_add_u32 v{dst}, s{sT0}, v{dst}''')

    def dma_seg_regs(self, seg_expr_sgpr):
        a = self.a
        sg = seg_expr_sgpr
        a(f'''s_lshl_b32 s{sT0}, s{sH}, 6
              s_add_u32 s{sT0}, s{sT0}, s{sg}
              s_mul_i32 s{sKQ}, s{sT0}, 12288
              s_add_u32 s{sVX}, s{sKQ}, {WS_VT}
              s_mul_i32 s{sT0}, s{sg}, 86
              s_lshr_b32 s{sT0}, s{sT0}, 8
              s_mul_i32 s{sT0}, s{sT0}, 3
              s_sub_u32 s{sT0}, s{sg}, s{sT0}
              s_mul_i32 s{sLB}, s{sT0}, {LBUF_SZ}
              s_add_u32 s{sLB}, s{sLB}, {LBUF}''')

    def dma12(self, v, base, lds, pieces):
        a = self.a
        for k in pieces:
            a(f'''s_add_u32 s{sT2}, s{sG}, {k}
                  s_and_b32 s{sT2}, s{sT2}, 3
                  s_mul_i32 s{sT2}, s{sT2}, 3072
                  s_add_u32 s{sT1}, s{sLB}, s{sT2}
                  s_add_u32 m0, s{sT1}, {lds}
                  s_add_u32 s{sT1}, s{sKQ}, s{sT2}
                  s_add_u32 s{sT1}, s{sT1}, {base}''')
            for t in range(3):
                a(f'buffer_load_dwordx4 v{v}, s[{sWS}:{sWS+3}], s{sT1} offen offset:{1024*t} sc1 lds')

    def dma_q(self, vQx):
        a = self.a
        for p in range(3):
            a(f's_add_u32 m0, s{sLB}, {LQ_OFF + p*1024}')
            a(f's_add_u32 s{sT1}, s{sKQ}, {WS_Q + p*2048}')
            a(f'buffer_load_dwordx4 v{vQx}, s[{sWS}:{sWS+3}], s{sT1} offen sc1 lds')

    def stage(self, own, rest, first, nflags):
        a = self.a
        l1, l2 = a.newlabel('Lsg'), a.newlabel('Lsg')
        def part(ahead, fn, lab, wait):
            a(f"""s_add_u32 s{sT3}, s{sSTEP}, {ahead}
                  s_cmp_ge_u32 s{sT3}, 64
                  s_cbranch_scc1 {lab}""")
            if wait: self.wait_tiles(sT3, first, nflags)
            self.dma_seg_regs(sT3)
            if not self.opt.get('no_dma'): fn()
            a.label(lab)
        if self.opt.get('own_last'):
            part(2, rest, l2, False); part(3, own, l1, True)
        else:
            part(3, own, l1, True); part(2, rest, l2, False)

    def stage_first(self, own, rest, first, nflags, later=0):
        a = self.a
        self.wait_tiles(sSTEP, first, nflags)
        for sg in range(3):
            a(f's_mov_b32 s{sT3}, {sg}')
            self.dma_seg_regs(sT3); own()
            if sg < 2: rest()
        a(f's_waitcnt vmcnt({later})' if self.opt.get('first_flag') else 's_waitcnt vmcnt(0)')

    def wo_stage(self, pairs, vFrag, vIdx, F, vCoff, RR, skip):
        a = self.a
        for ks in range(3):
            a(f'ds_read_b128 v[{F+4*ks}:{F+4*ks+3}], v{vFrag} offset:{LO + 1024*ks}')
        a(f'v_lshlrev_b32 v{self.vT0}, 3, v{self.vQ}')
        a(f'ds_read_b64 v[{RR}:{RR+1}], v{self.vT0} offset:{LR}')
        a(f's_cmp_eq_u32 s{sSTEP}, 63')
        a(f's_cbranch_scc1 {skip}')
        for ks in range(3):
            a(f's_waitcnt lgkmcnt({3-ks})')
            for (WA, WB, TA, TB, coff) in pairs:
                a(f'v_smfmac_f32_16x16x64_bf16 v[{TA}:{TA+3}], v[{F+4*ks}:{F+4*ks+3}], v[{WA+8*ks}:{WA+8*ks+7}], v{vIdx}')
                a(f'v_smfmac_f32_16x16x64_bf16 v[{TB}:{TB+3}], v[{F+4*ks}:{F+4*ks+3}], v[{WB+8*ks}:{WB+8*ks+7}], v{vIdx}')
        a('s_waitcnt lgkmcnt(0)')
        a('s_nop 5')
        for (WA, WB, TA, TB, coff) in pairs:
            self.pair_epilogue(TA, TB, RR)
            a(f'buffer_store_dword v{TA}, v{vCoff}, s[{sWS}:{sWS+3}], s{sC_W} offen offset:{coff} sc1')
            a(f'buffer_store_dword v{TB}, v{vCoff}, s[{sWS}:{sWS+3}], s{sC_W} offen offset:{coff+128} sc1')

    def pair_epilogue(self, TA, TB, RR=None):
        a = self.a
        a(f"""v_pk_add_f32 v[{TA}:{TA+1}], v[{TA}:{TA+1}], v[{TA+2}:{TA+3}]
              v_pk_add_f32 v[{TB+2}:{TB+3}], v[{TB}:{TB+1}], v[{TB+2}:{TB+3}]""")
        if RR is not None:
            a(f"""v_pk_mul_f32 v[{TA}:{TA+1}], v[{TA}:{TA+1}], v[{RR}:{RR+1}]
                  v_pk_mul_f32 v[{TB+2}:{TB+3}], v[{TB+2}:{TB+3}], v[{RR}:{RR+1}]
                  v_add_u32 v{TA}, s{sPADD}, v{TA}
                  v_add_u32 v{TA+1}, s{sPADD}, v{TA+1}
                  v_and_or_b32 v{TA}, v{TA}, v{self.vMask}, s{sPOR}
                  v_and_or_b32 v{TA+1}, v{TA+1}, v{self.vMask}, s{sPOR}
                  v_cvt_pk_bf16_f32 v{TA}, v{TA}, v{TB+2}
                  v_cvt_pk_bf16_f32 v{TB}, v{TA+1}, v{TB+3}""")
            return
        a(f"""v_cvt_pk_bf16_f32 v{TA}, v{TA}, v{TB+2}
              v_cvt_pk_bf16_f32 v{TB}, v{TA+1}, v{TB+3}
              v_min_u32 v{TA}, -2, v{TA}
              v_min_u32 v{TB}, -2, v{TB}""")

    def zero(self, r, n):
        for k in range(n): self.a(f'v_mov_b32 v{r+k}, 0')

    def c_off(self, dst, pw_sgpr_or_int):
        a = self.a
        T0 = self.vT0
        a(f'''v_lshrrev_b32 v{dst}, 3, v{self.vN}
              v_lshlrev_b32 v{dst}, 14, v{dst}
              v_bfe_u32 v{T0}, v{self.vN}, 2, 1
              v_lshl_add_u32 v{dst}, v{T0}, 6, v{dst}
              v_lshl_add_u32 v{dst}, v{self.vQ}, 4, v{dst}
              v_and_b32 v{T0}, 3, v{self.vN}
              v_lshl_add_u32 v{dst}, v{T0}, 2, v{dst}
              s_mul_i32 s{sT0}, s{sG}, 163840''')
        if isinstance(pw_sgpr_or_int, int):
            a(f's_add_u32 s{sT0}, s{sT0}, {32768*pw_sgpr_or_int}')
        else:
            a(f's_lshl_b32 s{sT1}, {pw_sgpr_or_int}, 15')
            a(f's_add_u32 s{sT0}, s{sT0}, s{sT1}')
        a(f'v_add_u32 v{dst}, s{sT0}, v{dst}')

    def wo_weights(self, WA, WB, pw, vtmp, tmp, between=None):
        a = self.a
        srd(a, ptr(5), NH * DH * DM * 2)
        self.wrow_lane(vtmp, 1280)
        a(f'''s_mul_i32 s{sT0}, s{sH}, {DH*DM*2}
              s_mul_i32 s{sT1}, s{sG}, 320
              s_add_u32 s{sT0}, s{sT0}, s{sT1}''')
        if isinstance(pw, int):
            a(f's_add_u32 s{sT0}, s{sT0}, {64*pw}')
        else:
            a(f's_lshl_b32 s{sT1}, {pw}, 6')
            a(f's_add_u32 s{sT0}, s{sT0}, s{sT1}')
        a(f'''v_lshl_add_u32 v{vtmp}, v{self.vN}, 2, v{vtmp}
              v_add_u32 v{vtmp}, s{sT0}, v{vtmp}''')
        self.load_pair(WA, WB, 3, vtmp, 1280, tmp, between)

    def finish(self):
        self.dump_stamps()
        self.a('s_endpgm')

    def touch_weights(self):
        a = self.a
        T0, T1 = self.vT0, self.vT1
        a(f's_mov_b32 m0, {SWEEP_LDS}')
        srd(a, ptr(4), DM * NH * DH * 2)
        a(f"""s_mov_b32 s{sT0}, 12288
              v_mul_lo_u32 v{T0}, v{self.vL}, s{sT0}
              s_mul_i32 s{sT0}, s{sH}, 384
              s_mul_i32 s{sT1}, s{sG}, 96
              s_add_u32 s{sT0}, s{sT0}, s{sT1}
              s_mul_i32 s{sT1}, s{sRED}, {64*12288}
              s_add_u32 s{sT0}, s{sT0}, s{sT1}""")
        for i in range(4):
            a(f'buffer_load_dword v{T0}, s[{sT}:{sT+3}], s{sT0} offen lds')
            a(f'buffer_load_dword v{T0}, s[{sT}:{sT+3}], s{sT0} offen offset:92 lds')
            if i < 3: a(f's_add_u32 s{sT0}, s{sT0}, {192*12288}')
        srd(a, ptr(5), NH * DH * DM * 2)
        a(f"""v_mul_u32_u24 v{T1}, 1280, v{self.vL}
              s_mul_i32 s{sT0}, s{sH}, {DH*DM*2}
              s_mul_i32 s{sT1}, s{sG}, 320
              s_add_u32 s{sT0}, s{sT0}, s{sT1}
              s_mul_i32 s{sT1}, s{sRED}, {64*1280}
              s_add_u32 s{sT0}, s{sT0}, s{sT1}""")
        for off in (0, 128, 256, 316):
            a(f'buffer_load_dword v{T1}, s[{sT}:{sT+3}], s{sT0} offen offset:{off} lds')

    def c_page_init(self, R, vLin):
        a = self.a
        a(f's_add_u32 s{sT2}, s{sCI}, 4096')
        for k in range(5):
            a(f'buffer_store_dwordx4 v[{R}:{R+3}], v{vLin}, s[{sWS}:{sWS+3}], s{sT2 if k == 4 else sCI} offen offset:{1024*(k&3)} sc1')
        a(f's_add_u32 s{sCI}, s{sCI}, 0x200000')

    def init_job(self, R):
        a = self.a
        vLin = R + 20
        sU = sA_P
        a(f"""s_lshl_b32 s{sU}, s{sJ}, 4
              s_add_u32 s{sU}, s{sU}, s{sC}
              s_mul_i32 s{sU}, s{sU}, 3
              s_add_u32 s{sU}, s{sU}, s{sRED}
              v_lshlrev_b32 v{vLin}, 4, v{self.vL}""")
        for k in range(4): a(f'v_mov_b32 v{R+k}, -1')
        for k in range(4): a(f'v_mov_b32 v{R+4+k}, 0')
        lc = a.newlabel('Lin')
        a(f"""s_cmp_ge_u32 s{sU}, 320
              s_cbranch_scc1 {lc}
              s_lshl_b32 s{sT0}, s{sU}, 11
              s_add_u32 s{sT0}, s{sT0}, {WS_RC}
              buffer_store_dwordx4 v[{R}:{R+3}], v{vLin}, s[{sWS}:{sWS+3}], s{sT0} offen sc1
              buffer_store_dwordx4 v[{R}:{R+3}], v{vLin}, s[{sWS}:{sWS+3}], s{sT0} offen offset:1024 sc1""")
        a.label(lc)
        l1, l2 = a.newlabel('Lin'), a.newlabel('Lin')
        a(f"""s_cmp_ge_u32 s{sU}, 368
              s_cbranch_scc1 {l1}
              s_lshl_b32 s{sT0}, s{sU}, 12
              s_add_u32 s{sT0}, s{sT0}, {WS_RA}""")
        l0 = a.newlabel('Lin')
        a(f"""s_cmp_lt_u32 s{sU}, 20
              s_cbranch_scc1 {l0}""")
        for k in range(4):
            a(f'buffer_store_dwordx4 v[{R}:{R+3}], v{vLin}, s[{sWS}:{sWS+3}], s{sT0} offen offset:{1024*k} sc1')
        a(f's_branch {l1}')
        a.label(l0)
        srd(a, ptr(1), 10240)
        a(f's_lshl_b32 s{sT1}, s{sU}, 12')
        for k in range(4):
            D = R + 24 + 4*k
            a(f"""s_add_u32 s{sT2}, s{sT1}, {1024*k}
                  s_lshr_b32 s{sT3}, s{sT2}, 10
                  s_mul_i32 s{sT3}, s{sT3}, 205
                  s_lshr_b32 s{sT3}, s{sT3}, 11
                  s_mul_i32 s{sT3}, s{sT3}, 10240
                  s_sub_u32 s{sT2}, s{sT2}, s{sT3}
                  s_lshr_b32 s{sT2}, s{sT2}, 3
                  v_lshrrev_b32 v{R+8}, 2, v{self.vN}
                  v_and_b32 v{R+9}, 1, v{self.vN}
                  v_lshl_add_u32 v{R+8}, v{R+8}, 1, v{R+9}
                  v_mul_u32_u24 v{R+8}, 1280, v{R+8}
                  v_lshl_add_u32 v{R+8}, v{self.vQ}, 5, v{R+8}
                  v_bfe_u32 v{R+9}, v{self.vN}, 1, 1
                  v_lshl_add_u32 v{R+8}, v{R+9}, 4, v{R+8}
                  buffer_load_dwordx4 v[{D}:{D+3}], v{R+8}, s[{sT}:{sT+3}], s{sT2} offen""")
        a('s_waitcnt vmcnt(0)')
        for k in range(4):
            D = R + 24 + 4*k
            for e in range(4): a(f'v_min_u32 v{D+e}, -2, v{D+e}')
            a(f'buffer_store_dwordx4 v[{D}:{D+3}], v{vLin}, s[{sWS}:{sWS+3}], s{sT0} offen offset:{1024*k} sc1')
        a('s_waitcnt vmcnt(0)')
        a.label(l1)
        a(f"""s_sub_u32 s{sT0}, s{sU}, 4
              s_cmp_ge_u32 s{sT0}, 252
              s_cbranch_scc1 {l2}
              s_lshl_b32 s{sT0}, s{sU}, 10
              s_add_u32 s{sT0}, s{sT0}, {WS_FLAG}
              buffer_store_dwordx4 v[{R+4}:{R+7}], v{vLin}, s[{sWS}:{sWS+3}], s{sT0} offen sc1""")
        a.label(l2)

    def arrive_init(self, R):
        t1, t2 = R + 14, R + 15
        self.a(f"""s_waitcnt vmcnt(0)
              v_mov_b32 v{t1}, 1
              v_mov_b32 v{t2}, 128
              s_mov_b64 exec, 1
              buffer_atomic_add v{t1}, v{t2}, s[{sDBG}:{sDBG+3}], 0 offen sc1
              s_mov_b64 exec, -1""")

    def role_qk(self):
        a = self.a
        al = Alloc(1, 256)
        self.lanes(al)
        WA, WB = al(80, 4), al(80, 4)
        M = al(40, 4)
        TA, TB = al(4, 4), al(4, 4)
        SEL = al(4, 4)
        RC = al(2)
        AC2 = al(4, 2)
        vFrag, vIdx, vB, vAst, vSent = al(3, 1), al(), al(), al(), al(2)
        T0, T1, T2 = self.vT0, self.vT1, self.vT2
        a(f'v_lshlrev_b32 v{vFrag}, 4, v{self.vL}'); self.idx_reg(vIdx)
        a(f'v_add_u32 v{vFrag+1}, 4096, v{vFrag}')
        a(f'v_add_u32 v{vFrag+2}, 8192, v{vFrag}')
        a(f'''s_mul_i32 s{sT2}, s{sG}, 3
              s_add_u32 s{sT2}, s{sT2}, s{sW}
              s_cmp_ge_u32 s{sT2}, 6
              s_cselect_b32 s{sT}, s{ptr(3)}, s{ptr(2)}
              s_cselect_b32 s{sT+1}, s{ptr(3)+1}, s{ptr(2)+1}
              s_cselect_b32 s{sT1}, 6, 0
              s_lshl_b32 s{sT3}, s{sT2}, 9
              s_sub_u32 s{sT2}, s{sT2}, s{sT1}
              s_mov_b32 s{sT+2}, {DM*NH*DH*2}
              s_mov_b32 s{sT+3}, 0x20000
              s_lshl_b32 s{sT2}, s{sT2}, 6
              v_lshlrev_b32 v{vB}, 7, v{self.vQ}
              v_lshl_add_u32 v{vB}, v{self.vN}, 2, v{vB}
              v_add_u32 v{vB}, s{sT3}, v{vB}''')
        a(f'''v_lshlrev_b32 v{T0}, 1, v{self.vN}
              v_and_b32 v{T1}, 0x13, v{T0}
              v_and_b32 v{T2}, 4, v{T0}
              v_lshl_add_u32 v{T1}, v{T2}, 1, v{T1}
              v_and_b32 v{T2}, 8, v{T0}
              v_lshrrev_b32 v{T2}, 1, v{T2}
              v_add_u32 v{T1}, v{T1}, v{T2}
              v_lshlrev_b32 v{T2}, 1, v{T1}
              s_mul_i32 s{sT0}, s{sH}, 384
              s_add_u32 s{sT0}, s{sT0}, s{sT2}''')
        self.load_w(WA, WB, 10, 12288, sT0, T2, M)
        a(f'''s_and_b32 s{sT0}, s{sJ}, 1
              s_lshl_b32 s{sT0}, s{sT0}, 4
              s_add_u32 s{sT0}, s{sT0}, s{sC}
              s_lshl_b32 s{sT1}, s{sW}, 5
              s_add_u32 s{sT0}, s{sT0}, s{sT1}
              s_lshr_b32 s{sRED}, s{sT0}, 1
              s_and_b32 s{sT2}, s{sT0}, 1
              s_lshl_b32 s{sT0}, s{sRED}, 8
              s_lshl_b32 s{sT3}, s{sT2}, 4
              s_add_u32 s{sT0}, s{sT0}, s{sT3}
              s_lshl_b32 s{sT1}, s{sRED}, 14
              s_lshl_b32 s{sT3}, s{sT2}, 7
              s_add_u32 s{sT1}, s{sT1}, s{sT3}
              v_lshlrev_b32 v{RC}, 8, v{self.vQ}
              v_lshrrev_b32 v{T0}, 3, v{self.vN}
              v_lshl_add_u32 v{RC}, v{T0}, 10, v{RC}
              v_and_b32 v{T0}, 7, v{self.vN}
              v_lshl_add_u32 v{RC}, v{T0}, 4, v{RC}
              v_add_u32 v{RC}, s{sT1}, v{RC}
              v_add_u32 v{RC+1}, 4096, v{RC}
              v_bfe_u32 v{T0}, v{self.vN}, 2, 1
              v_lshlrev_b32 v{vAst}, 5, v{T0}
              v_and_b32 v{T0}, 3, v{self.vN}
              v_lshl_add_u32 v{vAst}, v{T0}, 6, v{vAst}
              v_lshl_add_u32 v{vAst}, v{self.vQ}, 3, v{vAst}
              v_add_u32 v{vAst}, s{sT0}, v{vAst}
              s_mov_b32 s{sMA}, 0x00ff00ff
              s_mov_b32 s{sMA+1}, 0''')
        a(f'''s_nop 0
              v_mov_b32 v{vSent}, -1
              v_mov_b32 v{vSent+1}, -1''')
        for p in range(4):
            a(f'''v_mov_b32 v{SEL+p}, 0
                  v_mov_b32 v{T0}, 0x3f80
                  v_cmp_eq_u32 vcc, {2*p}, v{self.vN}
                  s_nop 1
                  v_cndmask_b32 v{SEL+p}, v{SEL+p}, v{T0}, vcc
                  v_mov_b32 v{T0}, 0x3f800000
                  v_cmp_eq_u32 vcc, {2*p+1}, v{self.vN}
                  s_nop 1
                  v_cndmask_b32 v{SEL+p}, v{SEL+p}, v{T0}, vcc''')
        self.zero(TA, 8)
        self.mark(1)
        self.wait_all_registered()
        a('s_barrier')
        self.mark(2)
        loop, end = a.newlabel('Lqk'), a.newlabel('Lqkend')
        a('s_barrier')
        a.label(loop)
        a('s_barrier')
        self.stamp(0)
        for ks in range(10):
            a(f'ds_read_b128 v[{M+4*ks}:{M+4*ks+3}], v{vFrag} offset:{LM + 1024*ks}')
        for ks in range(10):
            a(f's_waitcnt lgkmcnt({9-ks})')
            a(f'v_smfmac_f32_16x16x64_bf16 v[{TA}:{TA+3}], v[{M+4*ks}:{M+4*ks+3}], v[{WA+8*ks}:{WA+8*ks+7}], v{vIdx}')
            a(f'v_smfmac_f32_16x16x64_bf16 v[{TB}:{TB+3}], v[{M+4*ks}:{M+4*ks+3}], v[{WB+8*ks}:{WB+8*ks+7}], v{vIdx}')
        a('s_nop 7')
        self.pair_epilogue(TA, TB)
        self.lstore([f'buffer_store_dword v{TA}, v{vB}, s[{sWS}:{sWS+3}], s{sB_C} offen',
                     f'buffer_store_dword v{TB}, v{vB}, s[{sWS}:{sWS+3}], s{sB_C} offen offset:64'])
        a('s_barrier')
        self.stamp(1)
        def resets():
            self.lstore([f'buffer_store_dword v{vSent}, v{vB}, s[{sWS}:{sWS+3}], s{sB_R} offen',
                         f'buffer_store_dword v{vSent}, v{vB}, s[{sWS}:{sWS+3}], s{sB_R} offen offset:64'])
            sk = a.newlabel('Lqar')
            a(f's_cmp_ge_u32 s{sRED}, 40')
            a(f's_cbranch_scc1 {sk}')
            a(f's_mov_b64 exec, s[{sMA}:{sMA+1}]')
            self.lstore([f'buffer_store_dwordx2 v[{vSent}:{vSent+1}], v{vAst}, s[{sWS}:{sWS+3}], s{sA_R} offen'])
            a('s_mov_b64 exec, -1')
            a.label(sk)
        self.zero(TA, 8)
        a('s_barrier')
        resets()
        if self.opt.get('prof'):
            a(f'''s_memrealtime s[{sST+10}:{sST+11}]
                  s_lshl_b32 s{sT0}, s{sJ}, 4
                  s_add_u32 s{sT0}, s{sT0}, s{sC}
                  s_lshl_b32 s{sT0}, s{sT0}, 2
                  s_add_u32 s{sT0}, s{sT0}, s{sW}
                  s_lshl_b32 s{sT0}, s{sT0}, 6
                  s_add_u32 s{sT0}, s{sT0}, s{sSTEP}
                  s_lshl_b32 s{sT0}, s{sT0}, 2
                  s_add_u32 s{sT0}, s{sT0}, {WS_DBG + 0x200000}
                  v_mov_b32 v{T1}, 0
                  s_waitcnt lgkmcnt(0)
                  v_mov_b32 v{T0}, s{sST+10}
                  buffer_store_dword v{T0}, v{T1}, s[{sWS}:{sWS+3}], s{sT0} offen
                  s_memtime s[{sST+10}:{sST+11}]
                  s_add_u32 s{sT0}, s{sT0}, 0x40000
                  s_waitcnt lgkmcnt(0)
                  v_mov_b32 v{T0}, s{sST+10}
                  buffer_store_dword v{T0}, v{T1}, s[{sWS}:{sWS+3}], s{sT0} offen
                  s_add_u32 s{sT0}, s{sT0}, 0x40000
                  v_mov_b32 v{T0}, s{sBUD}
                  buffer_store_dword v{T0}, v{T1}, s[{sWS}:{sWS+3}], s{sT0} offen''')
        a('s_barrier')
        if self.opt.get('trace2'): a(f's_memtime s[{sST+0}:{sST+1}]')
        a(f'''s_cmp_eq_u32 s{sSTEP}, 63
              s_cbranch_scc1 {end}''')
        ok, fin = a.newlabel('LpCok'), a.newlabel('LpCfin')
        ACC = AC2
        entry = {(h, ph): a.newlabel('LpC') for h in range(2) for ph in range(2)}
        nored = a.newlabel('Lqnr')
        a(f'''s_cmp_ge_u32 s{sRED}, 40
              s_cbranch_scc1 {nored}
              s_bitcmp1_b32 s{sCS}, 8
              s_cbranch_scc1 {entry[(1,1)]}_in''')
        for half in (1,):
            nl = 4
            for ph in range(2):
                lp = entry[(half, ph)]
                a.label(lp + '_in')
                if self.opt.get('c_sleep'): a(f"s_sleep {self.opt['c_sleep']}")
                if self.opt.get('fine'): self.stamp(5)
                a.label(lp)
                for t in range(nl):
                    reg, off = (RC + (t >> 1), 2048 * (t & 1)) if half else (RC + (t >> 2), 1024 * (t & 3))
                    a(f'buffer_load_dwordx4 v[{M+4*t}:{M+4*t+3}], v{reg}, s[{sWS}:{sWS+3}], s{sC_RD} offen offset:{off} sc1')
                a('s_mov_b64 exec, -1')
                op3 = (lambda d, x, y, z: f'v_bitop3_b32 v{d}, v{x}, v{y}, v{z} bitop3:0x80') if ph else (lambda d, x, y, z: f'v_or3_b32 v{d}, v{x}, v{y}, v{z}')
                for t in range(nl):
                    a(f's_waitcnt vmcnt({nl-1-t})')
                    if t == 0 and self.opt.get('fine'): self.stamp(2)
                    a(f'v_mfma_f32_16x16x32_bf16 v[{ACC}:{ACC+3}], v[{SEL}:{SEL+3}], v[{M+4*t}:{M+4*t+3}], ' + ('0' if t == 0 else f'v[{ACC}:{ACC+3}]'))
                    if t == 0:
                        a(op3(T0, M, M+1, M+2)); a(op3(T0, T0, M+3, M+3))
                    else:
                        a(op3(T0, T0, M+4*t, M+4*t+1)); a(op3(T0, T0, M+4*t+2, M+4*t+3))
                rt, bk = a.newlabel('LpCr'), a.newlabel('LpCb')
                a(f'''v_and_b32 v{T0}, 1, v{T0}
                      v_cmp_ne_u32 vcc, {ph}, v{T0}
                      s_cbranch_vccnz {rt}''')
                a.label(bk)
                if self.opt.get('trace2'): a(f's_memtime s[{sST+2}:{sST+3}]')
                def tail(rt=rt, bk=bk, lp=lp):
                    a.label(rt)
                    a('s_mov_b64 exec, vcc')
                    self.retry(lp, 3)
                    a('s_mov_b64 exec, -1')
                    a(f's_branch {bk}')
                self.tails.append(tail)
                a('s_nop 2')
                if half:
                    for k in range(4):
                        a(f'v_add_f32_dpp v{ACC+k}, v{ACC+k}, v{ACC+k} row_ror:8 row_mask:0xf bank_mask:0xf')
                self.stamp(3)
                a(f'''v_cvt_pk_bf16_f32 v{ACC}, v{ACC}, v{ACC+1}
                      v_cvt_pk_bf16_f32 v{ACC+1}, v{ACC+2}, v{ACC+3}
                      s_mov_b64 exec, s[{sMA}:{sMA+1}]
                      v_min_u32 v{ACC}, -2, v{ACC}
                      v_min_u32 v{ACC+1}, -2, v{ACC+1}''')
                self.lstore([f'buffer_store_dwordx2 v[{ACC}:{ACC+1}], v{vAst}, s[{sWS}:{sWS+3}], s{sA_N} offen'])
                if not (half and ph): a(f's_branch {fin}')
        a(f's_branch {fin}')
        a.label(nored)
        a('s_waitcnt vmcnt(0)')
        a.label(fin)
        if self.opt.get('dump_mem'):
            l = a.newlabel('Ldm')
            a(f'''s_cmp_lg_u32 s{sJ}, 0
                  s_cbranch_scc1 {l}
                  s_mul_i32 s{sT0}, s{sSTEP}, 10240
                  s_add_u32 s{sT0}, s{sT0}, {WS_DBG}
                  buffer_store_dwordx2 v[{ACC}:{ACC+1}], v{vAst}, s[{sWS}:{sWS+3}], s{sT0} offen''')
            a.label(l)
        a('s_mov_b64 exec, -1')
        a('s_barrier')
        if self.opt.get('trace2'): a(f's_memtime s[{sST+4}:{sST+5}]')
        if self.opt.get('trace2'):
            a(f"""s_waitcnt lgkmcnt(0)
                  s_lshl_b32 s{sT0}, s{sJ}, 4
                  s_add_u32 s{sT0}, s{sT0}, s{sC}
                  s_lshl_b32 s{sT0}, s{sT0}, 2
                  s_add_u32 s{sT0}, s{sT0}, s{sW}
                  s_lshl_b32 s{sT0}, s{sT0}, 6
                  s_add_u32 s{sT0}, s{sT0}, s{sSTEP}
                  s_lshl_b32 s{sT0}, s{sT0}, 4
                  s_add_u32 s{sT0}, s{sT0}, {WS_DBG + 0x400000}
                  s_sub_u32 s{sT1}, s{sST+2}, s{sST}
                  v_mov_b32 v{M}, s{sT1}
                  s_sub_u32 s{sT1}, s{sST+4}, s{sST}
                  v_mov_b32 v{M+1}, s{sT1}
                  v_mov_b32 v{M+2}, s{sBUD}
                  v_mov_b32 v{T0}, 0
                  s_mov_b64 exec, 1
                  buffer_store_dwordx4 v[{M}:{M+3}], v{T0}, s[{sWS}:{sWS+3}], s{sT0} offen
                  s_mov_b64 exec, -1
                  s_nop 1""")
        self.stamp(4)
        self.next_step()
        a('s_waitcnt lgkmcnt(0)')
        a(f's_branch {loop}')
        a.label(end)
        a('s_barrier')
        self.finish()
        self.emit_tail()

    def role_v(self):
        a = self.a
        al = Alloc(1, 256)
        self.lanes(al)
        WA, WB = al(80, 4), al(80, 4)
        M = al(48, 4)
        TA, TB = al(4, 4), al(4, 4)
        F = al(12, 4); RR = al(2, 2)
        vFrag, vIdx, vB, vAoff, vV, vSent, vCoff, vOst = [al() for _ in range(8)]
        vLin = vV
        a(f"""v_lshrrev_b32 v{self.vT1}, 3, v{self.vL}
              v_lshlrev_b32 v{vOst}, 4, v{self.vT1}
              v_and_b32 v{self.vT1}, 7, v{self.vL}
              v_lshl_add_u32 v{vOst}, v{self.vT1}, 8, v{vOst}
              s_lshr_b32 s{sT0}, s{sG}, 1
              s_mul_i32 s{sT0}, s{sT0}, 192
              s_mul_i32 s{sT1}, s{sH}, 6
              s_add_u32 s{sT0}, s{sT0}, s{sT1}
              s_lshl_b32 s{sT0}, s{sT0}, 10
              s_and_b32 s{sT1}, s{sG}, 1
              s_lshl_b32 s{sT1}, s{sT1}, 7
              s_add_u32 s{sT0}, s{sT0}, s{sT1}
              v_add_u32 v{vOst}, s{sT0}, v{vOst}""")
        def o_store(back):
            if self.opt.get('no_ost'): return
            a(f's_sub_u32 s{sT0}, s{sO_C}, {back*32*12288}')
            a(f's_add_u32 s{sT1}, s{sT0}, 4096')
            for k in range(3):
                a(f'ds_read_b128 v[{F+4*k}:{F+4*k+3}], v{vLin} offset:{LOX + 1024*k}')
            for k in range(3):
                a(f's_waitcnt lgkmcnt({2-k})')
                a(f'buffer_store_dwordx4 v[{F+4*k}:{F+4*k+3}], v{vOst}, s[{sWS}:{sWS+3}], s{sT1 if k == 2 else sT0} offen offset:{2048*(k&1)} sc1')
        PX = al(8, 2)
        self.frag_addr(vFrag); self.idx_reg(vIdx)
        a(f"""v_lshlrev_b32 v{vV}, 4, v{self.vL}
              v_mov_b32 v{vSent}, -1""")
        a(f"""s_mul_i32 s{sT0}, s{sG}, 768
              s_add_u32 s{sT0}, s{sT0}, 6144
              v_lshlrev_b32 v{vB}, 5, v{self.vN}
              v_lshl_add_u32 v{vB}, v{self.vQ}, 2, v{vB}
              v_add_u32 v{vB}, s{sT0}, v{vB}""")
        srd(a, ptr(4), DM * NH * DH * 2)
        a(f"""s_mul_i32 s{sT0}, s{sH}, 384
              s_mul_i32 s{sT1}, s{sG}, 96
              s_add_u32 s{sT0}, s{sT0}, s{sT1}
              v_lshlrev_b32 v{self.vT2}, 2, v{self.vN}""")
        self.load_w(WA, WB, 10, 12288, sT0, self.vT2, M)
        self.mark(5)
        self.c_off(vCoff, 4)
        self.a_off(vAoff)
        self.zero(TA, 8)
        self.mark(1)
        self.wait_all_registered()
        own = lambda: self.dma12(vV, WS_VT, LV_OFF, [0])
        rest = lambda: self.dma12(vV, WS_VT, LV_OFF, [1, 2, 3])
        if not self.opt.get('early_stage'): self.stage_first(own, rest, 2, 1, 15)
        a('s_barrier')
        self.mark(2)
        loop, end = a.newlabel('Lv'), a.newlabel('Lvend')
        self.a_poll(vAoff, [F], True)
        a.label(loop)
        self.stamp(0)
        for ks in range(10):
            a(f'ds_read_b128 v[{M+4*ks}:{M+4*ks+3}], v{vLin} offset:{LM + 1024*ks}')
        for ks in range(10):
            a(f's_waitcnt lgkmcnt({9-ks})')
            a(f'v_smfmac_f32_16x16x64_bf16 v[{TA}:{TA+3}], v[{M+4*ks}:{M+4*ks+3}], v[{WA+8*ks}:{WA+8*ks+7}], v{vIdx}')
            a(f'v_smfmac_f32_16x16x64_bf16 v[{TB}:{TB+3}], v[{M+4*ks}:{M+4*ks+3}], v[{WB+8*ks}:{WB+8*ks+7}], v{vIdx}')
            if ks == self.opt.get('v_bar', 8): a('s_barrier')
        a(f"""s_nop 7
              v_pk_add_f32 v[{TA}:{TA+1}], v[{TA}:{TA+1}], v[{TA+2}:{TA+3}]
              v_pk_add_f32 v[{TB}:{TB+1}], v[{TB}:{TB+1}], v[{TB+2}:{TB+3}]
              v_cvt_pk_bf16_f32 v{TA}, v{TA}, v{TA+1}
              v_cvt_pk_bf16_f32 v{TB}, v{TB}, v{TB+1}
              v_min_u32 v{TA}, -2, v{TA}
              v_min_u32 v{TB}, -2, v{TB}""")
        self.lstore([f'buffer_store_dword v{TA}, v{vB}, s[{sWS}:{sWS+3}], s{sB_C} offen',
                     f'buffer_store_dword v{TB}, v{vB}, s[{sWS}:{sWS+3}], s{sB_C} offen offset:16'])
        self.stamp(1)
        a('s_waitcnt vmcnt(2)')
        for k in range(12):
            a(f'ds_read_b128 v[{M+4*k}:{M+4*k+3}], v{vLin} offset:{LW5 + 1024*k}')
        self.zero(TA, 8)
        a('s_barrier')
        self.lstore([f'buffer_store_dword v{vSent}, v{vB}, s[{sWS}:{sWS+3}], s{sB_R} offen',
                     f'buffer_store_dword v{vSent}, v{vB}, s[{sWS}:{sWS+3}], s{sB_R} offen offset:16'])
        a(f"s_sleep {self.opt.get('d_sleep', 7)}" if self.opt.get('d_sleep', 7) else 's_nop 0')
        def o_prev():
            no0 = a.newlabel('Lvn0')
            a('s_waitcnt lgkmcnt(0)')
            a(f's_cmp_eq_u32 s{sSTEP}, 0')
            a(f's_cbranch_scc1 {no0}')
            o_store(1)
            a.label(no0)
        if not self.opt.get('o_late'): o_prev()
        self.stage(own, rest, 2, 1)
        if self.opt.get('o_late'): o_prev()
        if self.opt.get('fused'):
            nq = a.newlabel('Lvnq')
            a(f"""s_cmp_lt_u32 s{sSTEP}, {self.opt.get('of_all', 58)}
                  s_cbranch_scc1 {nq}
                  s_waitcnt vmcnt(0)""")
            self.o_flag(1)
            a.label(nq)
        a('s_waitcnt lgkmcnt(0)')
        self.stamp(5)
        a('s_barrier')
        self.stamp(2)
        self.wo_stage([(M, M + 24, TA, TB, 0)], vFrag, vIdx, F, vCoff, RR, end)
        self.stamp(3)
        self.zero(TA, 8)
        self.a_poll(vAoff, [F, PX, M + 40])
        a(f's_branch {loop}')
        a.label(end)
        a('s_waitcnt lgkmcnt(0)')
        a('s_barrier')
        o_store(0)
        a('s_waitcnt vmcnt(0)')
        self.o_flag(0)
        self.finish()
        self.emit_tail()

    def role_w7(self):
        a = self.a
        al = Alloc(1, 256)
        self.lanes(al)
        WV = al(80, 4)
        P = [(al(24, 4), al(24, 4), al(4, 4), al(4, 4), 0)]
        M = al(40, 4)
        TV = al(4, 4)
        SENT = al(4, 4); RR = al(2, 2)
        vFrag, vIdx, vB, vAoff, vK, vQx, vCoff, vCr = [al() for _ in range(8)]
        vSel = TV
        PX = al(24, 2)
        T0, T1 = self.vT0, self.vT1
        self.frag_addr(vFrag); self.idx_reg(vIdx)
        a(f"""v_lshlrev_b32 v{vK}, 4, v{self.vL}
              v_and_b32 v{T0}, 7, v{self.vL}
              v_lshlrev_b32 v{vQx}, 4, v{T0}
              v_lshrrev_b32 v{T0}, 5, v{self.vL}
              v_lshl_add_u32 v{vQx}, v{T0}, 10, v{vQx}
              v_bfe_u32 v{T0}, v{self.vL}, 3, 2
              v_lshl_add_u32 v{vQx}, v{T0}, 8, v{vQx}
              s_lshr_b32 s{sT0}, s{sG}, 1
              s_mul_i32 s{sT0}, s{sT0}, 6144
              s_and_b32 s{sT1}, s{sG}, 1
              s_lshl_b32 s{sT1}, s{sT1}, 7
              s_add_u32 s{sT0}, s{sT0}, s{sT1}
              v_add_u32 v{vQx}, s{sT0}, v{vQx}""")
        for k in range(4): a(f'v_mov_b32 v{SENT+k}, -1')
        a(f"""s_mul_i32 s{sT0}, s{sG}, 768
              s_add_u32 s{sT0}, s{sT0}, {6144 + 512}
              v_lshlrev_b32 v{vB}, 4, v{self.vN}
              v_lshl_add_u32 v{vB}, v{self.vQ}, 2, v{vB}
              v_add_u32 v{vB}, s{sT0}, v{vB}
              s_mul_i32 s{sT0}, s{sG}, 2560
              v_lshlrev_b32 v{vCr}, 4, v{self.vL}
              v_add_u32 v{vCr}, s{sT0}, v{vCr}""")
        self.c_off(vCoff, 3)
        srd(a, ptr(4), DM * NH * DH * 2)
        a(f"""s_mul_i32 s{sT0}, s{sH}, 384
              s_mul_i32 s{sT1}, s{sG}, 96
              s_add_u32 s{sT0}, s{sT0}, s{sT1}
              s_add_u32 s{sT0}, s{sT0}, 32
              v_and_b32 v{T0}, 14, v{self.vN}
              v_lshlrev_b32 v{self.vT2}, 1, v{T0}
              v_add_u32 v{self.vT2}, 32, v{self.vT2}
              v_and_b32 v{T0}, 1, v{self.vN}
              v_cmp_eq_u32 vcc, 1, v{T0}
              v_mov_b32 v{vSel}, s{sSELLO}
              v_mov_b32 v{T0}, s{sSELHI}
              s_nop 1
              v_cndmask_b32 v{vSel}, v{vSel}, v{T0}, vcc""")
        if self.opt.get('y_prio'): a('s_setprio 3')
        self.load_w(WV, None, 10, 12288, sT0, self.vT2, M, vSel)
        self.mark(5)
        self.a_off(vAoff)
        self.zero(TV, 4)
        for p in P: self.zero(p[2], 8)
        self.mark(1)
        self.wait_all_registered()
        assert P[0][1] == P[0][0] + 24
        for k in range(12):
            a(f'ds_read_b128 v[{P[0][0]+4*k}:{P[0][0]+4*k+3}], v{vK} offset:{1024*k}')
        a('s_waitcnt lgkmcnt(0)')
        def own():
            self.dma_q(vQx); self.dma12(vK, WS_K, LK_OFF, [0])
        rest = lambda: self.dma12(vK, WS_K, LK_OFF, [1, 2, 3])
        if not self.opt.get('early_stage'): self.stage_first(own, rest, 0, 2, 21)
        a('s_barrier')
        self.mark(2)
        loop, end = a.newlabel('Lw7'), a.newlabel('Lw7end')
        self.a_poll(vAoff, [PX], True)
        a.label(loop)
        self.stamp(0)
        for ks in range(10):
            a(f'ds_read_b128 v[{M+4*ks}:{M+4*ks+3}], v{vK} offset:{LM + 1024*ks}')
        for ks in range(10):
            a(f's_waitcnt lgkmcnt({9-ks})')
            a(f'v_smfmac_f32_16x16x64_bf16 v[{TV}:{TV+3}], v[{M+4*ks}:{M+4*ks+3}], v[{WV+8*ks}:{WV+8*ks+7}], v{vIdx}')
            if ks == self.opt.get('w7_bar', 99): a('s_barrier')
        a(f"""s_nop 7
              v_pk_add_f32 v[{TV}:{TV+1}], v[{TV}:{TV+1}], v[{TV+2}:{TV+3}]
              v_cvt_pk_bf16_f32 v{TV}, v{TV}, v{TV+1}
              v_min_u32 v{TV}, -2, v{TV}""")
        self.lstore([f'buffer_store_dword v{TV}, v{vB}, s[{sWS}:{sWS+3}], s{sB_C} offen'])
        if self.opt.get('w7_bar', 99) > 9: a('s_barrier')
        self.stamp(1)
        self.zero(TV, 4)
        a('s_barrier')
        self.lstore([f'buffer_store_dword v{SENT}, v{vB}, s[{sWS}:{sWS+3}], s{sB_R} offen'])
        a(f"s_sleep {self.opt.get('d_sleep', 7)}" if self.opt.get('d_sleep', 7) else 's_nop 0')
        if self.opt.get('dma_time'): self.stamp(1)
        nf, yf = a.newlabel('Lw7nf'), a.newlabel('Lw7yf')
        a(f"""s_cmp_ge_u32 s{sSTEP}, {self.opt.get('of_all', 58)}
              s_cbranch_scc1 {nf}
              s_and_b32 s{sT0}, s{sSTEP}, {self.opt.get('of_every', 1) - 1}
              s_cmp_lg_u32 s{sT0}, {min(2, self.opt.get('of_every', 1) - 1)}
              s_cbranch_scc1 {nf}
              s_cmp_lt_u32 s{sSTEP}, 2
              s_cbranch_scc1 {nf}""")
        a.label(yf)
        self.o_flag(2)
        a.label(nf)
        self.stage(own, rest, 0, 2)
        if self.opt.get('dma_time'): a('s_waitcnt vmcnt(0)')
        self.stamp(5)
        a('s_barrier')
        self.stamp(2)
        self.wo_stage(P, vFrag, vIdx, M, vCoff, RR, end)
        self.stamp(3)
        for p in P: self.zero(p[2], 8)
        self.a_poll(vAoff, [PX, PX + 8, PX + 16])
        a(f's_branch {loop}')
        a.label(end)
        a('s_barrier')
        self.finish()
        self.emit_tail()

    def role_att(self):
        a = self.a
        al = Alloc(1, 256)
        self.lanes(al)
        TM = al(2, 2)
        WA, WB = al(24, 4), al(24, 4)
        TA, TB = al(4, 4), al(4, 4)
        KX = al(48, 4); X = al(24, 4); Y = al(24, 4)
        VX = al(16, 4); VM = al(8, 2)
        BI = al(12, 4); SS = al(12, 4)
        PP = al(6, 2); RR = PP
        OO = al(16, 4); LL = al(4, 4)
        ONES = al(4, 4)
        F = SS
        vFrag, vIdx, vAoff, vXY, vVM, vOw, vCoff, vLin, vQr, vBp, vRw, vOx = [al() for _ in range(12)]
        T0, T1, T2 = self.vT0, self.vT1, self.vT2
        sWP = sRED
        a(f's_sub_u32 s{sWP}, s{sW}, 4')
        self.frag_addr(vFrag); self.idx_reg(vIdx)
        self.c_off(vCoff, f's{sWP}')
        if self.opt.get('touch'): self.touch_weights()
        if self.opt.get('y_prio'): a('s_setprio 3')
        def mid():
            self.init_job(KX)
            arrive(a, 6, KX + 16)
            self.arrive_init(KX)
            self.mark(5)
        self.wo_weights(WA, WB, f's{sWP}', vAoff, T2, mid)
        nx = a.newlabel('Latnx')
        a(f"""s_cmp_ge_u32 s{sWP}, 2
              s_cbranch_scc1 {nx}
              s_add_u32 s{sA_P}, s{sWP}, 3""")
        self.wo_weights(KX, KX + 24, f's{sA_P}', vAoff, T2)
        a(f"""s_cmp_eq_u32 s{sWP}, 0
              s_cselect_b32 s{sT0}, 0, {LW5}
              v_lshlrev_b32 v{T0}, 4, v{self.vL}
              v_add_u32 v{T0}, s{sT0}, v{T0}""")
        for k in range(12):
            a(f'ds_write_b128 v{T0}, v[{KX+4*k}:{KX+4*k+3}] offset:{1024*k}')
        a('s_waitcnt lgkmcnt(0)')
        a.label(nx)
        if self.opt.get('early_stage'):
            vS, vQs = KX, KX + 1
            a(f"""v_lshlrev_b32 v{vS}, 4, v{self.vL}
                  v_and_b32 v{T0}, 7, v{self.vL}
                  v_lshlrev_b32 v{vQs}, 4, v{T0}
                  v_lshrrev_b32 v{T0}, 5, v{self.vL}
                  v_lshl_add_u32 v{vQs}, v{T0}, 10, v{vQs}
                  v_bfe_u32 v{T0}, v{self.vL}, 3, 2
                  v_lshl_add_u32 v{vQs}, v{T0}, 8, v{vQs}
                  s_lshr_b32 s{sT0}, s{sG}, 1
                  s_mul_i32 s{sT0}, s{sT0}, 6144
                  s_and_b32 s{sT1}, s{sG}, 1
                  s_lshl_b32 s{sT1}, s{sT1}, 7
                  s_add_u32 s{sT0}, s{sT0}, s{sT1}
                  v_add_u32 v{vQs}, s{sT0}, v{vQs}""")
            wait_registered(a, self.opt, T0, T1, self.vL)
            lq, lv2, ld = a.newlabel('Les'), a.newlabel('Les'), a.newlabel('Les')
            a(f"""s_cmp_eq_u32 s{sWP}, 2
                  s_cbranch_scc1 {lq}
                  s_cmp_eq_u32 s{sWP}, 1
                  s_cbranch_scc1 {lv2}""")
            self.stage_first(lambda: self.dma12(vS, WS_K, LK_OFF, [0]), lambda: self.dma12(vS, WS_K, LK_OFF, [1, 2, 3]), 1, 1)
            a(f's_branch {ld}')
            a.label(lv2)
            self.stage_first(lambda: self.dma12(vS, WS_VT, LV_OFF, [0]), lambda: self.dma12(vS, WS_VT, LV_OFF, [1, 2, 3]), 2, 1)
            a(f's_branch {ld}')
            a.label(lq)
            self.stage_first(lambda: self.dma_q(vQs), lambda: None, 0, 1)
            a.label(ld)
        self.a_off(vAoff)
        a(f"""v_lshlrev_b32 v{vXY}, 6, v{self.vN}
              v_lshl_add_u32 v{vXY}, v{self.vQ}, 4, v{vXY}
              s_lshl_b32 s{sT0}, s{sWP}, 10
              s_add_u32 s{sT0}, s{sT0}, 6144
              v_lshlrev_b32 v{vVM}, 4, v{self.vN}
              v_lshl_add_u32 v{vVM}, v{self.vQ}, 3, v{vVM}
              v_add_u32 v{vVM}, s{sT0}, v{vVM}
              v_lshlrev_b32 v{vLin}, 4, v{self.vL}
              s_lshl_b32 s{sT0}, s{sWP}, 11
              v_add_u32 v{vBp}, s{sT0}, v{vLin}
              v_and_b32 v{T0}, 7, v{self.vN}
              v_lshlrev_b32 v{vQr}, 4, v{T0}
              v_lshl_add_u32 v{vQr}, v{self.vQ}, 7, v{vQr}""")
        a(f"""v_lshlrev_b32 v{vRw}, 2, v{self.vL}
              v_add_u32 v{T1}, {LDUMMY}, v{vRw}
              v_add_u32 v{vRw}, {LR}, v{vRw}
              v_cmp_gt_u32 vcc, 8, v{self.vL}
              s_nop 1
              v_cndmask_b32 v{vRw}, v{T1}, v{vRw}, vcc""")
        a(f"""v_lshrrev_b32 v{T1}, 1, v{self.vQ}
              v_lshlrev_b32 v{vOw}, 7, v{T1}
              v_lshl_add_u32 v{vOw}, v{T0}, 4, v{vOw}
              v_and_b32 v{T1}, 1, v{self.vQ}
              v_lshl_add_u32 v{vOw}, v{T1}, 3, v{vOw}
              v_lshrrev_b32 v{T1}, 3, v{self.vN}
              v_mul_u32_u24 v{T1}, 3072, v{T1}
              v_add_u32 v{vOw}, v{vOw}, v{T1}
              s_lshl_b32 s{sT0}, s{sWP}, 10
              s_add_u32 s{sT0}, s{sT0}, {LO}
              v_add_u32 v{vOw}, s{sT0}, v{vOw}""")
        a(f"""s_lshl_b32 s{sT0}, s{sWP}, 10
              s_add_u32 s{sT0}, s{sT0}, {LOX}
              v_lshlrev_b32 v{vOx}, 7, v{T0}
              v_lshl_add_u32 v{vOx}, v{self.vQ}, 3, v{vOx}
              v_add_u32 v{vOx}, s{sT0}, v{vOx}""")
        a(f"""s_lshl_b32 s{sT0}, s{sG}, 3
              v_add_u32 v{T1}, s{sT0}, v{T0}
              v_cmp_gt_u32 vcc, 8, v{self.vN}
              v_mov_b32 v{T2}, 31
              s_nop 1
              v_cndmask_b32 v{T1}, v{T1}, v{T2}, vcc
              v_lshlrev_b32 v{T2}, 2, v{self.vQ}
              v_sub_u32 v{T1}, v{T1}, v{T2}
              v_mov_b32 v{T2}, 0xf149f2ca""")
        for tile in range(2):
            for r in range(4):
                a(f"""v_cmp_gt_i32 vcc, {16*tile + r}, v{T1}
                      v_mov_b32 v{BI+4*tile+r}, 0
                      s_nop 1
                      v_cndmask_b32 v{BI+4*tile+r}, v{BI+4*tile+r}, v{T2}, vcc""")
        a(f"""v_cmp_lt_u32 vcc, 1, v{self.vQ}
              v_mov_b32 v{BI+8}, 0
              s_nop 1
              v_cndmask_b32 v{BI+8}, v{BI+8}, v{T2}, vcc""")
        for r in range(1, 4): a(f'v_mov_b32 v{BI+8+r}, v{BI+8}')
        for k in range(4): a(f'v_mov_b32 v{ONES+k}, 0x3f803f80')
        self.zero(Y, 24); self.zero(VM, 8); self.zero(TA, 8)
        self.mark(1)
        self.wait_all_registered()
        def read_seg():
            a(f'v_add_u32 v{T0}, s{sLB}, v{vLin}')
            a(f'v_add_u32 v{T1}, s{sLB}, v{vQr}')
            a(f's_lshl_b32 s{sT0}, s{sWP}, 12')
            a(f'v_add_u32 v{T2}, s{sT0}, v{T0}')
            for k in range(12):
                a(f'ds_read_b128 v[{KX+4*k}:{KX+4*k+3}], v{T0} offset:{LK_OFF + 1024*k}')
            for ks in range(6):
                a(f'ds_read_b128 v[{X+4*ks}:{X+4*ks+3}], v{T1} offset:{LQ_OFF + 512*ks}')
            for t in range(4):
                a(f'ds_read_b128 v[{VX+4*t}:{VX+4*t+3}], v{T2} offset:{LV_OFF + 1024*t}')
        def vm_loads():
            a(f's_mov_b64 exec, s[{sML32}:{sML32+1}]')
            for t in range(4):
                a(f'buffer_load_dwordx2 v[{VM+2*t}:{VM+2*t+1}], v{vVM}, s[{sWS}:{sWS+3}], s{sB_C} offen offset:{256*t} sc1')
            a('s_mov_b64 exec, -1')
        a('s_barrier')
        self.mark(2)
        a(f's_mov_b32 s{sLB}, {LBUF}')
        read_seg()
        self.a_poll(vAoff, [F], True)
        loop, end = a.newlabel('Lat'), a.newlabel('Latend')
        lp, ok, vlp, vok, vrt = a.newlabel('LpB'), a.newlabel('LpBok'), a.newlabel('LpV'), a.newlabel('LpVok'), a.newlabel('LpVr')
        a.label(loop)
        if self.opt.get('trace2'): a(f's_memtime s[{sST+0}:{sST+1}]')
        a('s_barrier')
        if self.opt.get('trace2'): a(f's_memtime s[{sST+2}:{sST+3}]')
        if self.opt.get('b_sleep'): a(f"s_sleep {self.opt['b_sleep']}")
        if self.opt.get('fine'): self.stamp(0)
        self.poll2(vBp, sB_C, LQK, [OO, OO + 8][:self.opt.get('b_depth', 1)], 0, self.opt.get('b_gap', 0))
        if self.opt.get('trace2'): a(f's_memtime s[{sST+4}:{sST+5}]')
        if self.opt.get('vm_at') == -1: vm_loads()
        a(f's_mov_b64 exec, s[{sMN8}:{sMN8+1}]')
        a('s_waitcnt lgkmcnt(0)')
        a('s_barrier')
        for ks in range(6):
            a(f'ds_read_b128 v[{X+4*ks}:{X+4*ks+3}], v{vXY} offset:{LQK + 512*ks}')
        for ks in range(6):
            a(f'ds_read_b128 v[{Y+4*ks}:{Y+4*ks+3}], v{vXY} offset:{LQK + 3072 + 512*ks}')
        vm_loads()
        self.stamp(5)
        def smm(tile, ks):
            A = (KX, KX + 24, Y)[tile] + 4*ks
            c = BI + 4*tile if ks == 0 else SS + 4*tile
            a(f'v_mfma_f32_16x16x32_bf16 v[{SS+4*tile}:{SS+4*tile+3}], v[{A}:{A+3}], v[{X+4*ks}:{X+4*ks+3}], v[{c}:{c+3}]')
        for ks in range(6):
            a(f's_waitcnt lgkmcnt({11 - ks})')
            smm(0, ks); smm(1, ks)
        a('s_waitcnt lgkmcnt(0)')
        for ks in range(6):
            smm(2, ks)
            if ks == 3: a('s_waitcnt vmcnt(4)')
            if ks == 4: a(f'v_max3_f32 v{T0}, v{SS}, v{SS+1}, v{SS+2}'); a(f'v_max3_f32 v{T1}, v{SS+3}, v{SS+4}, v{SS+5}')
        self.stamp(1)
        a(f"""v_max3_f32 v{T0}, v{T0}, v{SS+6}, v{SS+7}
              v_max_f32 v{T0}, v{T0}, v{T1}
              s_nop 5
              v_max3_f32 v{T1}, v{SS+8}, v{SS+9}, v{SS+10}
              v_max3_f32 v{T0}, v{T0}, v{T1}, v{SS+11}
              v_mov_b32 v{T1}, v{T0}
              s_nop 1
              v_permlane32_swap_b32 v{T0}, v{T1}
              v_max_f32 v{T0}, v{T0}, v{T1}
              v_mov_b32 v{T1}, v{T0}
              s_nop 1
              v_permlane16_swap_b32 v{T0}, v{T1}
              v_max_f32 v{T0}, v{T0}, v{T1}
              v_mul_f32 v{TM}, s{sSCL}, v{T0}""")
        def pkfma(r):
            if self.opt.get('nopk'):
                for k in range(2): a(f'v_fma_f32 v{SS+r+k}, v{SS+r+k}, s{sSCL}, -v{TM}')
                return
            a(f'v_pk_fma_f32 v[{SS+r}:{SS+r+1}], v[{SS+r}:{SS+r+1}], s[{sSCL}:{sSCL+1}], v[{TM}:{TM+1}] op_sel_hi:[1,0,0] neg_lo:[0,0,1] neg_hi:[0,0,1]')
        for r in range(0, 8, 2): pkfma(r)
        for r in range(8): a(f'v_exp_f32 v{SS+r}, v{SS+r}')
        for r in range(8, 12, 2): pkfma(r)
        for r in range(4): a(f'v_cvt_pk_bf16_f32 v{PP+r}, v{SS+2*r}, v{SS+2*r+1}')
        a(f'v_exp_f32 v{SS+8}, v{SS+8}')
        a(f'v_exp_f32 v{SS+9}, v{SS+9}')
        a(f'v_mfma_f32_16x16x32_bf16 v[{LL}:{LL+3}], v[{ONES}:{ONES+3}], v[{PP}:{PP+3}], 0')
        a(f'v_exp_f32 v{SS+10}, v{SS+10}')
        a(f'v_mfma_f32_16x16x32_bf16 v[{OO}:{OO+3}], v[{VX}:{VX+3}], v[{PP}:{PP+3}], 0')
        a(f'v_exp_f32 v{SS+11}, v{SS+11}')
        a(f'v_mfma_f32_16x16x32_bf16 v[{OO+4}:{OO+7}], v[{VX+4}:{VX+7}], v[{PP}:{PP+3}], 0')
        a(f'v_cvt_pk_bf16_f32 v{PP+4}, v{SS+8}, v{SS+9}')
        a(f'v_cvt_pk_bf16_f32 v{PP+5}, v{SS+10}, v{SS+11}')
        a(f'v_mfma_f32_16x16x32_bf16 v[{OO+8}:{OO+11}], v[{VX+8}:{VX+11}], v[{PP}:{PP+3}], 0')
        a.label(vlp)
        a(f"""s_waitcnt vmcnt(0)
              v_max3_u32 v{T1}, v{VM}, v{VM+1}, v{VM+2}
              v_max3_u32 v{T2}, v{VM+3}, v{VM+4}, v{VM+5}
              v_mfma_f32_16x16x32_bf16 v[{OO+12}:{OO+15}], v[{VX+12}:{VX+15}], v[{PP}:{PP+3}], 0
              v_max3_u32 v{T1}, v{T1}, v{VM+6}, v{VM+7}
              v_max_u32 v{T1}, v{T1}, v{T2}
              v_cmp_eq_u32 vcc, -1, v{T1}
              s_cbranch_vccnz {vrt}""")
        a.label(vok)
        if self.opt.get('trace2'): a(f's_memtime s[{sST+6}:{sST+7}]')
        if not self.opt.get('fine'): self.stamp(0)
        a(f'v_mfma_f32_16x16x16_bf16 v[{LL}:{LL+3}], v[{ONES}:{ONES+1}], v[{PP+4}:{PP+5}], v[{LL}:{LL+3}]')
        for t in range(4):
            a(f'v_mfma_f32_16x16x16_bf16 v[{OO+4*t}:{OO+4*t+3}], v[{VM+2*t}:{VM+2*t+1}], v[{PP+4}:{PP+5}], v[{OO+4*t}:{OO+4*t+3}]')
        a(f"""s_nop 3
              v_rcp_f32 v{LL}, v{LL}""")
        for t in range(4):
            a(f'v_cvt_pk_bf16_f32 v{X+2*t}, v{OO+4*t}, v{OO+4*t+1}')
            a(f'v_cvt_pk_bf16_f32 v{X+2*t+1}, v{OO+4*t+2}, v{OO+4*t+3}')
            a(f'ds_write_b64 v{vOw}, v[{X+2*t}:{X+2*t+1}] offset:{256*t}')
            if t == 0: a(f'ds_write_b32 v{vRw}, v{LL}')
        a('s_waitcnt lgkmcnt(0)')
        a('s_barrier')
        self.stamp(2)
        skipwo = a.newlabel('Latsk')
        self.wo_stage([(WA, WB, TA, TB, 0)], vFrag, vIdx, F, vCoff, RR, skipwo)
        a.label(skipwo)
        if self.opt.get('trace2'): a(f's_memtime s[{sST+8}:{sST+9}]')
        if not self.opt.get('fine'): self.stamp(3)
        for t in range(4):
            for r in range(4):
                a(f'v_mul_f32 v{OO+4*t+r}, v{OO+4*t+r}, v{LL}')
            a(f'v_cvt_pk_bf16_f32 v{OO+4*t}, v{OO+4*t}, v{OO+4*t+1}')
            a(f'v_cvt_pk_bf16_f32 v{OO+4*t+1}, v{OO+4*t+2}, v{OO+4*t+3}')
        a(f's_mov_b64 exec, s[{sMH8}:{sMH8+1}]')
        for t in range(4):
            a(f'ds_write_b64 v{vOx}, v[{OO+4*t}:{OO+4*t+1}] offset:{32*t}')
        a('s_mov_b64 exec, -1')
        a(f"""s_cmp_eq_u32 s{sSTEP}, 63
              s_cbranch_scc1 {end}
              s_add_u32 s{sLB}, s{sLB}, {LBUF_SZ}
              s_cmp_eq_u32 s{sLB}, {LBUF + 3*LBUF_SZ}
              s_cselect_b32 s{sLB}, {LBUF}, s{sLB}""")
        if self.opt.get('trace2'):
            a(f"""s_waitcnt lgkmcnt(0)
                  s_lshl_b32 s{sT0}, s{sJ}, 4
                  s_add_u32 s{sT0}, s{sT0}, s{sC}
                  s_lshl_b32 s{sT0}, s{sT0}, 2
                  s_add_u32 s{sT0}, s{sT0}, s{sWP}
                  s_lshl_b32 s{sT0}, s{sT0}, 6
                  s_add_u32 s{sT0}, s{sT0}, s{sSTEP}
                  s_lshl_b32 s{sT0}, s{sT0}, 4
                  s_add_u32 s{sT0}, s{sT0}, {WS_DBG + 0x300000}""")
            for k in range(4):
                a(f's_sub_u32 s{sT1}, s{sST+2*k+2}, s{sST}' if k else f's_sub_u32 s{sT1}, s{sST}, s{sST+10}')
                a(f'v_mov_b32 v{LL+k}, s{sT1}')
            a(f's_mov_b32 s{sST+10}, s{sST+8}')
            a(f"""v_mov_b32 v{T0}, 0
                  s_mov_b64 exec, 1
                  buffer_store_dwordx4 v[{LL}:{LL+3}], v{T0}, s[{sWS}:{sWS+3}], s{sT0} offen
                  s_mov_b64 exec, -1
                  s_nop 1""")
        read_seg()
        self.zero(TA, 8)
        self.a_poll(vAoff, [F, OO, OO + 8])
        a(f's_branch {loop}')
        a.label(end)
        a('s_waitcnt lgkmcnt(0)')
        a('s_barrier')
        self.finish()
        a.label(vrt)
        vm_loads()
        self.retry(vlp, 1)
        a(f's_branch {vok}')
        self.emit_tail()

def emit_gates(a, sU, ntok, vL, R):
    G, acc, t1, t2, v4, Xr = R, R + 5, R + 6, R + 7, R + 8, R + 10
    a(f'v_lshlrev_b32 v{v4}, 2, v{vL}')
    srd(a, ptr(11), DM * 2)
    for i in range(5):
        a(f'buffer_load_dword v{G+i}, v{v4}, s[{sT}:{sT+3}], 0 offen offset:{256*i}')
    srd(a, ptr(0), S * DM * 2)
    a(f's_mul_i32 s{sT1}, s{sU}, 1280')
    for tk in range(ntok):
        for i in range(5):
            a(f'buffer_load_dword v{Xr+5*tk+i}, v{v4}, s[{sT}:{sT+3}], s{sT1} offen offset:{1280*tk + 256*i}')
    a('s_waitcnt vmcnt(0)')
    for tk in range(ntok):
        a(f'v_mov_b32 v{acc}, 0')
        for i in range(5):
            x = Xr + 5*tk + i
            a(f"""v_lshlrev_b32 v{t1}, 16, v{x}
                  v_lshlrev_b32 v{t2}, 16, v{G+i}
                  v_fmac_f32 v{acc}, v{t1}, v{t2}
                  v_and_b32 v{t1}, 0xffff0000, v{x}
                  v_and_b32 v{t2}, 0xffff0000, v{G+i}
                  v_fmac_f32 v{acc}, v{t1}, v{t2}""")
        for sh in (8, 4, 2, 1):
            a(f"""s_nop 1
                  v_add_f32_dpp v{acc}, v{acc}, v{acc} row_ror:{sh} row_mask:0xf bank_mask:0xf""")
        for sw in ('v_permlane16_swap_b32', 'v_permlane32_swap_b32'):
            a(f"""v_mov_b32 v{t1}, v{acc}
                  s_nop 1
                  {sw} v{acc}, v{t1}
                  v_add_f32 v{acc}, v{acc}, v{t1}""")
        a(f"""v_mul_f32 v{acc}, {hex(f32bits(-math.log2(math.e)))}, v{acc}
              v_exp_f32 v{acc}, v{acc}
              s_nop 0
              v_add_f32 v{acc}, 1.0, v{acc}
              v_rcp_f32 v{acc}, v{acc}
              v_mov_b32 v{t1}, 0
              s_lshl_b32 s{sT0}, s{sU}, 2
              s_add_u32 s{sT0}, s{sT0}, {WS_G + 4*tk}
              s_mov_b64 exec, 1
              buffer_store_dword v{acc}, v{t1}, s[{sWS}:{sWS+3}], s{sT0} offen sc1
              s_mov_b64 exec, -1""")

def arrive(a, wave, v):
    l = a.newlabel('Larr')
    a(f'''s_cmp_lg_u32 s{sW}, {wave}
          s_cbranch_scc1 {l}
          s_cmp_lg_u32 s{sARR}, 0
          s_cbranch_scc1 {l}
          s_mov_b64 exec, 1
          v_mov_b32 v{v}, 1
          v_mov_b32 v{v+1}, 32
          buffer_atomic_add v{v}, v{v+1}, s[{sDBG}:{sDBG+3}], 0 offen sc1
          s_mov_b64 exec, -1''')
    a.label(l)

def wait_registered(a, opt, T0, T1, vN, init=False):
    lp, done = a.newlabel('Lreg'), a.newlabel('Lregd')
    a(f'v_lshlrev_b32 v{T1}, 2, v{vN}')
    a.label(lp)
    a(f'''buffer_load_dword v{T0}, v{T1}, s[{sDBG}:{sDBG+3}], 0 offen sc0 sc1
          s_waitcnt vmcnt(0)
          v_readlane_b32 s{sT0}, v{T0}, 8
          v_readlane_b32 s{sT1}, v{T0}, {32 if init else 8}
          s_add_u32 s{sT0}, s{sT0}, s{sT1}
          s_cmp_ge_u32 s{sT0}, {256 + 384 if init else 512}
          s_cbranch_scc1 {done}
          s_sleep {opt.get('r_sleep', 24)}
          s_sub_u32 s{sBUD}, s{sBUD}, 1
          s_cbranch_scc0 {lp}
          s_mov_b32 s{sBUD}, 0''')
    a.label(done)
    a(f'''v_readlane_b32 s{sPOL}, v{T0}, 34
          v_cmp_ne_u32 vcc, 32, v{T0}
          s_and_b32 s{sPOL}, s{sPOL}, 1
          s_and_b32 s{sT0}, vcc_lo, 0xf
          s_and_b32 s{sT1}, vcc_hi, 0xf00
          s_or_b32 s{sT0}, s{sT0}, s{sT1}
          s_cselect_b32 s{sMIX}, 1, {1 if opt.get('force_mixed') else 0}''')

def emit_entry(a, opt, exit_label):
    a(f'''s_cmp_ge_u32 s2, 256
          s_cbranch_scc1 {exit_label}
          s_load_dwordx16 s[16:31], s[0:1], 0
          s_load_dwordx8 s[32:39], s[0:1], 64
          s_load_dwordx4 s[40:43], s[0:1], 96
          s_load_dwordx2 s[44:45], s[0:1], 112
          v_lshrrev_b32 v1, 6, v0
          s_getreg_b32 s{sJ}, hwreg(HW_REG_XCC_ID)
          v_readfirstlane_b32 s{sW}, v1
          s_and_b32 s{sJ}, s{sJ}, 15
          s_min_u32 s{sJ}, s{sJ}, 10
          s_cmp_lt_u32 s{sJ}, 8
          s_cselect_b32 s{sJ}, s{sJ}, 10
          s_mov_b32 s{sBUD}, {opt.get('budget', 1 << 20)}
          s_mov_b32 s{sSTEP}, 0
          s_mov_b32 s{sCS}, 0
          s_mov_b32 s{sPOL}, 0
          s_mov_b64 s[98:99], 0
          s_mov_b64 s[100:101], 0
          s_mov_b32 s{sMIX}, {1 if opt.get('force_mixed') else 0}
          s_mov_b32 s{sMN8}, 0x00ff00ff
          s_mov_b32 s{sMN8+1}, 0x00ff00ff
          s_mov_b32 s{sMH8}, 0xff00ff00
          s_mov_b32 s{sMH8+1}, 0xff00ff00
          s_mov_b32 s{sML32}, -1
          s_mov_b32 s{sML32+1}, 0
          s_mov_b32 s{sSELLO}, 0x05040100
          s_mov_b32 s{sSELHI}, 0x07060302
          s_mov_b32 s{sSCL}, {hex(f32bits(DH ** -0.5 * math.log2(math.e)))}
          s_waitcnt lgkmcnt(0)
          s_mov_b32 s{sWS}, s{ptr(14)}
          s_mov_b32 s{sWS+1}, s{ptr(14)+1}
          s_mov_b32 s{sWS+2}, {WS_SIZE}
          s_mov_b32 s{sWS+3}, 0x20000
          s_mov_b32 s{sDBG}, s{ptr(13)}
          s_mov_b32 s{sDBG+1}, s{ptr(13)+1}
          s_mov_b32 s{sDBG+2}, 256
          s_mov_b32 s{sDBG+3}, 0x20000''')
    if opt.get('prof'):
        a(f's_memrealtime s[{sST}:{sST+1}]')
        a('s_waitcnt lgkmcnt(0)')
    if opt.get('fake_xcc') == 1:
        a(f'''s_lshr_b32 s{sJ}, s2, 5''')
    if opt.get('fake_xcc') == 2:
        a(f'''s_cmp_lt_u32 s2, 200
              s_cselect_b32 s{sJ}, s{sJ}, 3
              s_cmp_lt_u32 s2, 250
              s_cselect_b32 s{sJ}, s{sJ}, 10''')
    l1, l2 = a.newlabel('Le'), a.newlabel('Le')
    def sweep():
        ls = a.newlabel('Lsw')
        a(f'''s_lshl_b32 s{sT0}, s{sC}, 3
              s_add_u32 s{sT0}, s{sT0}, s{sW}
              s_cmp_ge_u32 s{sT0}, 240
              s_cbranch_scc1 {ls}
              s_mov_b32 m0, {SWEEP_LDS}
              v_and_b32 v9, 63, v0
              v_lshlrev_b32 v9, 4, v9
              v_add_u32 v10, 1024, v9
              v_add_u32 v11, {12288 + 512}, v9
              v_add_u32 v12, {12288 - 512}, v9
              v_cmp_gt_u32 vcc, 512, v9
              s_mul_i32 s{sT1}, s{sT0}, 52429
              s_lshr_b32 s{sT1}, s{sT1}, 22
              v_cndmask_b32 v10, v12, v10, vcc
              s_cmp_eq_u32 s{sT1}, 1
              s_cselect_b32 s{sT}, s{ptr(3)}, s{ptr(2)}
              s_cselect_b32 s{sT+1}, s{ptr(3)+1}, s{ptr(2)+1}
              s_cmp_eq_u32 s{sT1}, 2
              s_cselect_b32 s{sT}, s{ptr(4)}, s{sT}
              s_cselect_b32 s{sT+1}, s{ptr(4)+1}, s{sT+1}
              s_mov_b32 s{sT+2}, {DM*NH*DH*2}
              s_mov_b32 s{sT+3}, 0x20000
              s_mul_i32 s{sT1}, s{sT1}, 80
              s_sub_u32 s{sT1}, s{sT0}, s{sT1}
              s_mul_i32 s{sT1}, s{sT1}, {8*12288}
              s_mul_i32 s{sT2}, s{sJ}, 1536
              s_add_u32 s{sT1}, s{sT1}, s{sT2}''')
        for rp in range(4):
            for v in (9, 10, 11):
                a(f'buffer_load_dwordx4 v{v}, s[{sT}:{sT+3}], s{sT1} offen lds')
            if rp < 3: a(f's_add_u32 s{sT1}, s{sT1}, {2*12288}')
        srd(a, ptr(5), NH * DH * DM * 2)
        a(f'''s_mul_i32 s{sT1}, s{sJ}, {4*DH*DM*2}
              s_lshl_b32 s{sT0}, s{sT0}, 12
              s_add_u32 s{sT1}, s{sT1}, s{sT0}''')
        for k in range(4):
            a(f'buffer_load_dwordx4 v9, s[{sT}:{sT+3}], s{sT1} offen offset:{1024*k} lds')
        a.label(ls)
    a(f'''s_cmp_lg_u32 s{sW}, 0
          s_cbranch_scc1 {l1}
          s_mov_b64 exec, 1
          v_mov_b32 v2, 1
          s_lshl_b32 s{sT0}, s{sJ}, 2
          s_and_b32 s{sT1}, s{sJ}, 12
          s_cmp_eq_u32 s{sT1}, 4
          s_cselect_b32 s{sT1}, 144, 0
          s_add_u32 s{sT0}, s{sT0}, s{sT1}
          v_mov_b32 v3, s{sT0}
          buffer_atomic_add v2, v3, s[{sDBG}:{sDBG+3}], 0 offen sc0 sc1
          s_mov_b64 exec, -1''')
    a.label(l1)
    l3, l4, l5, l6, l7 = [a.newlabel('Le') for _ in range(5)]
    a(f'''s_cmp_lg_u32 s{sW}, 1
          s_cbranch_scc1 {l5}
          s_mov_b64 exec, 1
          v_mov_b32 v2, 0
          v_mov_b32 v3, 0
          v_mov_b32 v4, 0
          v_mov_b32 v5, 0
          s_lshl_b32 s{sT0}, s2, 4
          s_add_u32 s{sT0}, s{sT0}, {WS_FLAG}
          buffer_store_dwordx4 v[2:5], v2, s[{sWS}:{sWS+3}], s{sT0} offen sc1
          s_mov_b64 exec, -1''')
    a.label(l5)
    a(f'''s_waitcnt vmcnt(0)
          s_cmp_lg_u32 s{sW}, 0
          s_cbranch_scc1 {l3}
          s_mov_b64 exec, 1
          v_readfirstlane_b32 s{sT0}, v2
          s_cmp_ge_u32 s{sJ}, 8
          s_cselect_b32 s{sT0}, 32, s{sT0}
          s_cmp_lt_u32 s{sT0}, 32
          s_cbranch_scc1 {l6}
          v_mov_b32 v2, 1
          v_mov_b32 v3, 36
          buffer_atomic_add v2, v3, s[{sDBG}:{sDBG+3}], 0 offen sc0 sc1
          s_waitcnt vmcnt(0)
          v_add_u32 v2, 32, v2''')
    a.label(l6)
    l8 = a.newlabel('Le')
    a(f'''v_mov_b32 v4, 0
          s_or_b32 s{sT0}, s{sT0}, s{sJ}
          s_cmp_lg_u32 s{sT0}, 0
          s_cbranch_scc1 {l8}
          s_lshr_b32 s{sT0}, s2, 6
          s_lshl_b32 s{sT0}, s{sT0}, 14
          s_and_b32 s{sT1}, s2, 63
          s_lshl_b32 s{sT1}, s{sT1}, 7
          s_add_u32 s{sT0}, s{sT0}, s{sT1}
          s_add_u32 s{sT0}, s{sT0}, {WS_RC + RC_PROBE}
          s_add_u32 s{sT1}, s{sT0}, 8192
          s_mov_b32 s{sT2}, -1
          s_mov_b32 s{sT3}, -1''')
    for rnd in range(2):
        for cp in range(2):
            a(f'''v_mov_b32 v5, 0
                  s_memtime s[98:99]
                  s_waitcnt lgkmcnt(0)
                  buffer_atomic_add v5, v4, s[{sWS}:{sWS+3}], s{sT1 if cp else sT0} offen sc0 sc1
                  s_waitcnt vmcnt(0)
                  s_memtime s[100:101]
                  s_waitcnt lgkmcnt(0)
                  s_sub_u32 s98, s100, s98
                  s_min_u32 s{sT3 if cp else sT2}, s{sT3 if cp else sT2}, s98''')
    a(f'''s_mov_b64 s[98:99], 0
          s_mov_b64 s[100:101], 0
          s_cmp_lt_u32 s{sT3}, s{sT2}
          s_cselect_b32 s{sT2}, 0x15, 0x0a
          v_mov_b32 v4, s{sT2}''')
    a(f'''v_mov_b32 v5, 136
          buffer_store_dword v4, v5, s[{sDBG}:{sDBG+3}], 0 offen sc1
          s_waitcnt vmcnt(0)''')
    a.label(l8)
    a(f'''v_mov_b32 v3, 0
          ds_write_b32 v3, v2
          s_mov_b64 exec, -1
          s_waitcnt lgkmcnt(0)''')
    a.label(l3)
    a(f'''s_barrier
          v_mov_b32 v3, 0
          ds_read_b32 v2, v3
          s_mov_b32 s{sARR}, 0
          s_waitcnt lgkmcnt(0)
          v_readfirstlane_b32 s{sC}, v2
          s_barrier
          s_cmp_lt_u32 s{sC}, 32
          s_cbranch_scc1 {l7}''')
    arrive(a, 0, 4)
    a(f's_mov_b32 s{sARR}, 1')
    a('v_and_b32 v4, 63, v0')
    wait_registered(a, opt, 2, 3, 4)
    a(f's_sub_u32 s{sT1}, s{sC}, 32')
    a(f's_mov_b32 s{sJ}, 0')
    a(f's_mov_b32 s{sC}, 0')
    for x in range(8):
        a(f'''v_readlane_b32 s{sT0}, v2, {x if x < 4 else 36 + x}
              s_min_u32 s{sT0}, s{sT0}, 32
              s_sub_u32 s{sT2}, 32, s{sT0}
              s_add_u32 s{sT0}, s{sT0}, s{sT1}
              s_cmp_lt_u32 s{sT1}, s{sT2}
              s_cselect_b32 s{sJ}, {x}, s{sJ}
              s_cselect_b32 s{sC}, s{sT0}, s{sC}
              s_sub_u32 s{sT1}, s{sT1}, s{sT2}''')
    a.label(l7)
    a(f'''s_lshr_b32 s{sT0}, s{sC}, 4
          s_lshr_b32 s{sT1}, s{sJ}, 2
          s_and_b32 s{sJ}, s{sJ}, 3
          s_lshl_b32 s{sJ}, s{sJ}, 1
          s_add_u32 s{sJ}, s{sJ}, s{sT0}
          s_and_b32 s{sC}, s{sC}, 15
          s_lshl_b32 s{sT1}, s{sT1}, 4
          s_add_u32 s{sC}, s{sC}, s{sT1}''')
    if opt.get('prof'):
        a(f's_memrealtime s[{sST+8}:{sST+9}]')
        a('s_waitcnt lgkmcnt(0)')

import struct
def f32bits(x): return struct.unpack('<I', struct.pack('<f', x))[0]

def emit_chain_body(a, opt):
    ch = Chain(a, opt)
    lv, l7, lat = a.newlabel('Lrole_v'), a.newlabel('Lrole_w7'), a.newlabel('Lrole_att')
    a(f'''s_lshr_b32 s{sH}, s{sC}, 2
          s_lshl_b32 s{sT0}, s{sJ}, 2
          s_add_u32 s{sH}, s{sH}, s{sT0}
          s_and_b32 s{sG}, s{sC}, 3
          s_setprio 2
          s_cmp_eq_u32 s{sW}, 3
          s_cbranch_scc1 {lv}
          s_cmp_eq_u32 s{sW}, 7
          s_cbranch_scc1 {l7}
          s_cmp_ge_u32 s{sW}, 4
          s_cbranch_scc1 {lat}''')
    pr = opt.get('prios', [2, 2, 2, 2])
    ch.prio = pr[0]; ch.role_qk()
    a.label(lv); ch.prio = pr[1]; ch.role_v()
    a.label(l7); ch.prio = pr[2]; ch.role_w7()
    a.label(lat); ch.prio = pr[3]; ch.role_att()
```

```python
from asmlib import *
from layout import *
from chain import (sWS, sDBG, sT, ptr, sW, sJ, sC, sMIX, sBUD, sT0, sT1, sT2, sT3, f32bits, wait_registered, emit_gates, SWEEP_LDS, sPOL, srd, arrive)
import math

XB, WB_OFF, WSZ = 32768, 65536, 24576
STAGE = XB
GEMM1_LDS = WB_OFF + 3 * WSZ

sX = 56
sWD = 60
sTile, sXo, sWo, sWrs, sKind, sOut, sNK, sNOut, sIt, sM0x, sM0w, sWstep = 64, 65, 66, 67, 68, 70, 71, 72, 73, 74, 75, 47
sFlagP = 80
sNFlag = 81
sC1, sC2 = 98, 99
sXoN, sWrd, sWwr = 100, 101, 97

class Gemm1:
    def __init__(self, a, opt, nworkers, rank0):
        self.a, self.opt, self.NW, self.rank0 = a, opt, nworkers, rank0
        self.tail = []
        self.inloop = False
        self.pending = []

    def lstore(self, insts, nt=False, cross=False):
        a = self.a
        if cross:
            for i in insts: a(i + (' sc1' if i.startswith('buffer_') else ''))
            return
        slow, back = a.newlabel('Lgslow'), a.newlabel('Lgback')
        a(f's_cmp_lg_u32 s{sMIX}, 0')
        a(f's_cbranch_scc1 {slow}')
        for i in insts: a(i + (' nt' if nt and i.startswith('buffer_') else ''))
        a.label(back)
        self.tail.append((slow, [i + ' sc1' if i.startswith('buffer_') else i for i in insts], back))

    def emit_tail(self):
        a = self.a
        for slow, insts, back in self.tail:
            a.label(slow)
            for i in insts: a(i)
            a(f's_branch {back}')
        self.tail = []

    def decode(self):
        a = self.a
        lf, ln, ld = a.newlabel('Ldf'), a.newlabel('Ldn'), a.newlabel('Ldd')
        a(f'''s_cmp_ge_u32 s{sTile}, 112
              s_cbranch_scc1 {ln}
              s_cmp_ge_u32 s{sTile}, 96
              s_cbranch_scc1 {lf}
              s_mul_i32 s{sT0}, s{sTile}, 43691
              s_lshr_b32 s{sT0}, s{sT0}, 19
              s_mul_i32 s{sT1}, s{sT0}, 12
              s_sub_u32 s{sT1}, s{sTile}, s{sT1}
              s_lshr_b32 s{sNK}, s{sT1}, 2
              s_and_b32 s{sT1}, s{sT1}, 3
              s_lshl_b32 s{sT2}, s{sJ}, 2
              s_add_u32 s{sT1}, s{sT1}, s{sT2}
              s_mul_i32 s{sXoN}, s{sT0}, {256*1280}
              s_mul_i32 s{sWo}, s{sT1}, 384
              s_mov_b32 s{sWrs}, 12288
              s_cmp_eq_u32 s{sNK}, 1
              s_cselect_b32 s{sWD}, s{ptr(3)}, s{ptr(2)}
              s_cselect_b32 s{sWD+1}, s{ptr(3)+1}, s{ptr(2)+1}
              s_cmp_eq_u32 s{sNK}, 2
              s_cselect_b32 s{sWD}, s{ptr(4)}, s{sWD}
              s_cselect_b32 s{sWD+1}, s{ptr(4)+1}, s{sWD+1}
              s_mov_b32 s{sWD+2}, {DM*NH*DH*2}
              s_mul_i32 s{sNOut}, s{sNK}, {WS_K}
              s_mul_i32 s{sT2}, s{sT1}, {2048*384}
              s_add_u32 s{sNOut}, s{sNOut}, s{sT2}
              s_mul_i32 s{sT2}, s{sT0}, {256*384}
              s_add_u32 s{sNOut}, s{sNOut}, s{sT2}
              s_mul_i32 s{sT2}, s{sW}, 3
              s_lshr_b32 s{sT3}, s{sT2}, 2
              s_branch {ld}''')
        a.label(lf)
        a(f'''s_sub_u32 s{sT1}, s{sTile}, 96
              s_lshr_b32 s{sT0}, s{sT1}, 1
              s_and_b32 s{sT1}, s{sT1}, 1
              s_mov_b32 s{sNK}, 3
              s_mul_i32 s{sXoN}, s{sT0}, {256*1280}
              s_mul_i32 s{sWo}, s{sJ}, 384
              s_mul_i32 s{sT2}, s{sT1}, 192
              s_add_u32 s{sWo}, s{sWo}, s{sT2}
              s_mov_b32 s{sWrs}, 3072
              s_cmp_ge_u32 s{sW}, 4
              s_cselect_b32 s{sWD}, s{ptr(9)}, s{ptr(8)}
              s_cselect_b32 s{sWD+1}, s{ptr(9)+1}, s{ptr(8)+1}
              s_mov_b32 s{sWD+2}, {DM*DF*2}
              s_mul_i32 s{sNOut}, s{sT0}, {8*98304}
              s_lshl_b32 s{sT2}, s{sWo}, 4
              s_add_u32 s{sNOut}, s{sNOut}, s{sT2}
              s_add_u32 s{sNOut}, s{sNOut}, {WS_H}
              s_and_b32 s{sT2}, s{sW}, 3
              s_mul_i32 s{sT2}, s{sT2}, 3
              s_lshr_b32 s{sT3}, s{sT2}, 2
              s_branch {ld}''')
        a.label(ln)
        a(f'''s_mov_b32 s{sNK}, 4
              s_mov_b32 s{sWD+2}, 0
              s_mov_b32 s{sT2}, 0
              s_mov_b32 s{sT3}, 0''')
        a.label(ld)
        if self.opt.get('g_hit'):
            a(f's_mov_b32 s{sXoN}, 0')
            a(f's_mov_b32 s{sWo}, 0')
            a(f's_mov_b32 s{sWD}, s{ptr(2)}')
            a(f's_mov_b32 s{sWD+1}, s{ptr(2)+1}')
        for ii in range(3):
            a(f'''s_add_u32 s{sT0}, s{sT2}, {ii}
                  s_lshr_b32 s{sT1}, s{sT0}, 2
                  s_and_b32 s{sT0}, s{sT0}, 3
                  s_lshl_b32 s{sT0}, s{sT0}, 4
                  s_mul_i32 s{sT0}, s{sT0}, s{sWrs}
                  s_lshl_b32 s{sT1}, s{sT1}, 6
                  s_add_u32 s{sT0}, s{sT0}, s{sT1}
                  s_add_u32 s{self.sP+ii}, s{sT0}, s{sWo}''')
        a(f'''s_mul_i32 s{sT0}, s{sW}, {32*1280}
              s_add_u32 s{sXoN}, s{sXoN}, s{sT0}
              s_lshl_b32 s{sWstep}, s{sWrs}, 6
              v_mul_lo_u32 v{self.vWg}, v{self.vL2}, s{sWrs}
              v_add_u32 v{self.vWg}, v{self.vWg}, v{self.vL3}''')

    def dma_x(self, buf):
        a = self.a
        for ii in range(4):
            a(f's_add_u32 m0, s{sM0x}, {buf*STAGE + ii*1024}')
            a(f's_add_u32 s{sT0}, s{sXo}, {ii*10240}' if ii else 's_nop 0')
            a(f'buffer_load_dwordx4 v{self.vXg + (ii & 1)}, s[{sX}:{sX+3}], s{sT0 if ii else sXo} offen lds')
        a(f's_add_u32 s{sXo}, s{sXo}, 128')

    def rot(self, r):
        self.a(f'''s_add_u32 s{r}, s{r}, {WSZ}
                   s_cmp_eq_u32 s{r}, {3*WSZ}
                   s_cselect_b32 s{r}, 0, s{r}''')

    def dma_w(self):
        a = self.a
        a(f's_add_u32 s{sT1}, s{sM0w}, s{sWwr}')
        for ii in range(3):
            a(f's_add_u32 m0, s{sT1}, {ii*1024}')
            a('s_nop 0')
            a(f'buffer_load_dwordx4 v{self.vWg}, s[{sWD}:{sWD+3}], s{self.sP+ii} offen lds')
            a(f's_add_u32 s{self.sP+ii}, s{self.sP+ii}, s{sWstep}')
        self.rot(sWwr)

    def dma(self, buf):
        if self.opt.get('g_nodma') and self.inloop: return
        self.dma_x(buf)
        self.dma_w()

    def reads(self, var, buf, kk, fs):
        a = self.a
        MT, NT = var
        F = self.F + fs * 28
        xa = (self.vXr if MT == 2 else self.vXr1) + buf * 4 + kk
        out = []
        for mt in range(MT):
            out.append(f'ds_read_b128 v[{F+4*mt}:{F+4*mt+3}], v{xa} offset:{4096*mt}')
        wa = self.vWc
        for nt in range(NT):
            for j in range(2):
                r = F + 4*MT + 4*nt + 2*j
                out.append(f'ds_read_b64_tr_b16 v[{r}:{r+1}], v{wa} offset:{4096*nt + 1024*kk + 256*j}')
        return out

    def mfmas(self, var, swap, fs, first):
        MT, NT = var
        F = self.F + fs * 28
        out = []
        for mt in range(MT):
            for nt in range(NT):
                acc = self.ACC + 16 * (mt * NT + nt)
                x = f'v[{F+4*mt}:{F+4*mt+3}]'; w = f'v[{F+4*MT+4*nt}:{F+4*MT+4*nt+3}]'
                A, B = (x, w) if swap else (w, x)
                c = '0' if first else f'v[{acc}:{acc+15}]'
                if self.opt.get('g_fake16') and not first:
                    q = acc + 8 * fs
                    out.append(f'v_mfma_f32_16x16x32_bf16 v[{q}:{q+3}], {A}, {B}, v[{q}:{q+3}]\nv_mfma_f32_16x16x32_bf16 v[{q+4}:{q+7}], {B}, {A}, v[{q+4}:{q+7}]')
                    continue
                out.append(f'v_mfma_f32_32x32x16_bf16 v[{acc}:{acc+15}], {A}, {B}, {c}')
        return out

    def interleave(self, mf, other):
        a = self.a
        n = len(mf); per = (len(other) + n - 1) // n if other else 0
        k = 0
        for m in mf:
            a(m)
            for o in other[k:k + per]: a(o)
            k += per
        for o in other[k:]: a(o)

    def stage_top(self, var=None, full=0):
        a = self.a
        if var is not None:
            a(f'v_add_u32 v{self.vWn}, s{sWrd}, v{self.vWr if var[0] == 2 else self.vWr1}')
            self.rot(sWrd)
        a(f's_waitcnt vmcnt({full}) lgkmcnt(0)')
        if var is not None: a(f'v_mov_b32 v{self.vWc}, v{self.vWn}')
        a('s_barrier')

    def tile_loop(self, var, swap, name):
        a = self.a
        nr = var[0] + 2 * var[1]
        loop = a.newlabel('L' + name)
        self.stage_top(var, 15)
        if var == (1, 6) and self.opt.get('fused'):
            l = a.newlabel('Lgg')
            a(f'''s_cmp_lg_u32 s{sW}, 1
                  s_cbranch_scc1 {l}
                  v_mov_b32 v{self.vT0}, 132
                  s_mov_b64 exec, 1
                  buffer_atomic_add v{self.vOne}, v{self.vT0}, s[{sDBG}:{sDBG+3}], 0 offen sc1
                  s_mov_b64 exec, -1''')
            a.label(l)
        for r in self.reads(var, 0, 0, 0): a(r)
        self.dma(1)
        def body(buf, kstart_first):
            for kk in range(3):
                rd = self.reads(var, buf, kk + 1, (kk + 1) & 1)
                a(f's_waitcnt lgkmcnt(0)')
                self.interleave(self.mfmas(var, swap, kk & 1, kstart_first and kk == 0), rd)
        body(0, True)
        a(f's_mov_b32 s{sIt}, 0')
        a.label(loop)
        for buf in (1, 0):
            self.stage_top(var, 3)
            if buf == 1:
                nf = a.newlabel('Lgnf')
                a(f's_cmp_lg_u32 s{sIt}, 0')
                a(f's_cbranch_scc1 {nf}')
                self.after_top()
                a.label(nf)
            rd = self.reads(var, buf, 0, 0)
            self.interleave(self.mfmas(var, swap, 1, False), rd)
            skip = a.newlabel('Lgn')
            if buf == 0:
                a(f's_cmp_lg_u32 s{sIt}, 3')
                a(f's_cbranch_scc1 {skip}')
                a(f's_add_u32 s{sTile}, s{sTile}, {self.NW}')
                self.decode()
            else:
                a(f's_cmp_eq_u32 s{sIt}, 4')
                a(f's_cselect_b32 s{sXo}, s{sXoN}, s{sXo}')
            a.label(skip)
            self.dma(buf ^ 1)
            if self.opt.get('g_slow'):
                sk = a.newlabel('Lgs')
                a(f's_cmp_eq_u32 s{sFlagP}, 0')
                a(f's_cbranch_scc1 {sk}')
                a(f"s_sleep {self.opt['g_slow']}")
                a.label(sk)
            body(buf, False)
            if buf == 1:
                a(f's_cmp_eq_u32 s{sIt}, 4')
                a(f's_cbranch_scc1 {name}_done')
        a(f's_add_u32 s{sIt}, s{sIt}, 1')
        a(f's_branch {loop}')
        a.label(f'{name}_done')
        a('s_waitcnt lgkmcnt(0)')
        for m in self.mfmas(var, swap, 1, False): a(m)
        a('s_nop 7'); a('s_nop 3')
        if self.opt.get('fused'):
            l = a.newlabel('Lgreg')
            a(f's_cmp_lg_u32 s{sFlagP}, 0')
            a(f's_cbranch_scc1 {l}')
            if self.opt.get('prof'):
                a('s_memrealtime s[88:89]'); a('s_waitcnt lgkmcnt(0)')
            a(f'v_and_b32 v{self.vT2}, 63, v0')
            wait_registered(a, self.opt, self.vT0, self.vT1, self.vT2)
            a.label(l)

    def after_top(self):
        if not self.opt.get('fused'): return
        a = self.a
        l = a.newlabel('Lgf')
        a(f'''s_cmp_eq_u32 s{sFlagP}, 0
              s_cbranch_scc1 {l}
              s_cmp_lg_u32 s{sW}, 0
              s_cbranch_scc1 {l}
              s_mov_b64 exec, 1''')
        self.lstore([f'buffer_store_dword v{self.vOne}, v{self.vZero}, s[{sWS}:{sWS+3}], s{sFlagP} offen'], cross=True)
        a('s_mov_b64 exec, -1')
        a.label(l)

    def emit(self, done_label):
        a = self.a
        al = Alloc(1, 256)
        self.ACC = al(96, 2); self.F = al(56, 2)
        self.vXg = al(2); self.vWg = al()
        self.vXr = al(8); self.vXr1 = al(8); self.vWr = al(); self.vWr1 = al(); self.vWc = al(); self.vWn = al()
        self.vL2, self.vL3 = al(), al()
        vL, vT0, vT1, vT2 = al(), al(), al(), al()
        vQK, vV, vH = al(), al(), al()
        self.vT0, self.vT1, self.vT2 = vT0, vT1, vT2
        self.vOne, self.vZero = al(), al()
        self.sP = 94
        a(f'''v_and_b32 v{vL}, 63, v0
              v_mov_b32 v{self.vOne}, 1
              v_mov_b32 v{self.vZero}, 0
              s_mov_b32 s{sX}, s{ptr(0)}
              s_mov_b32 s{sX+1}, s{ptr(0)+1}
              s_mov_b32 s{sX+2}, {S*DM*2}
              s_mov_b32 s{sX+3}, 0x20000
              s_mov_b32 s{sWD}, s{ptr(2)}
              s_mov_b32 s{sWD+1}, s{ptr(2)+1}
              s_mov_b32 s{sWD+3}, 0x20000
              s_mov_b32 s{sWrs}, 0
              s_mov_b32 s{sWo}, 0
              s_mov_b32 s{sXo}, 0
              s_mov_b32 s{sXoN}, 0
              s_mov_b32 s{sWrd}, 0
              s_mov_b32 s{sWwr}, 0
              s_mov_b32 s{sNOut}, 0
              s_mov_b32 s{sFlagP}, 0
              s_mov_b32 s{sC1}, {hex(f32bits(-2 * math.sqrt(2 / math.pi) * math.log2(math.e)))}
              s_mov_b32 s{sC2}, {hex(f32bits(-2 * math.sqrt(2 / math.pi) * math.log2(math.e) * 0.044715))}
              s_lshl_b32 s{sM0x}, s{sW}, 12
              s_mul_i32 s{sM0w}, s{sW}, 3072
              s_add_u32 s{sM0w}, s{sM0w}, {WB_OFF}
              s_sub_u32 s{sTile}, s{sC}, {self.rank0}
              v_lshrrev_b32 v{self.vL2}, 2, v{vL}
              v_and_b32 v{self.vL3}, 3, v{vL}
              v_lshlrev_b32 v{self.vL3}, 4, v{self.vL3}''')
        for par in range(2):
            a(f'''v_lshrrev_b32 v{vT0}, 4, v{vL}
                  v_add_u32 v{vT0}, {4*par}, v{vT0}
                  v_and_b32 v{vT1}, 7, v{vL}
                  v_xor_b32 v{vT0}, v{vT0}, v{vT1}
                  v_lshlrev_b32 v{vT0}, 4, v{vT0}
                  v_lshrrev_b32 v{vT1}, 3, v{vL}
                  v_mul_u32_u24 v{vT1}, 1280, v{vT1}
                  v_add_u32 v{self.vXg+par}, v{vT0}, v{vT1}''')
        a(f'''v_and_b32 v{vT0}, 31, v{vL}
              v_bfe_u32 v{vT1}, v{vL}, 1, 3
              v_lshrrev_b32 v{vT2}, 5, v{vL}
              v_xor_b32 v{vT1}, v{vT1}, v{vT2}
              s_lshr_b32 s{sT0}, s{sW}, 1
              s_lshl_b32 s{sT0}, s{sT0}, 13
              s_lshl_b32 s{sT1}, s{sW}, 12''')
        for kk in range(4):
            a(f'''v_xor_b32 v{vT2}, {2*kk}, v{vT1}
                  v_lshlrev_b32 v{vT2}, 4, v{vT2}
                  v_lshl_add_u32 v{vT2}, v{vT0}, 7, v{vT2}
                  v_add_u32 v{self.vXr+kk}, s{sT0}, v{vT2}
                  v_add_u32 v{self.vXr1+kk}, s{sT1}, v{vT2}
                  v_add_u32 v{self.vXr+4+kk}, {STAGE}, v{self.vXr+kk}
                  v_add_u32 v{self.vXr1+4+kk}, {STAGE}, v{self.vXr1+kk}''')
        a(f'''v_lshrrev_b32 v{vT0}, 5, v{vL}
              v_lshlrev_b32 v{vT0}, 9, v{vT0}
              v_bfe_u32 v{vT1}, v{vL}, 2, 2
              v_lshl_add_u32 v{vT0}, v{vT1}, 6, v{vT0}
              v_bfe_u32 v{vT1}, v{vL}, 4, 1
              v_lshl_add_u32 v{vT0}, v{vT1}, 5, v{vT0}
              v_and_b32 v{vT1}, 3, v{vL}
              v_lshl_add_u32 v{vT0}, v{vT1}, 3, v{vT0}
              v_add_u32 v{self.vWr1}, {WB_OFF}, v{vT0}
              s_and_b32 s{sT0}, s{sW}, 1
              s_mul_i32 s{sT0}, s{sT0}, {3*4096}
              v_add_u32 v{self.vWr}, s{sT0}, v{self.vWr1}''')
        a(f'''v_and_b32 v{vT0}, 15, v{vL}
              v_lshlrev_b32 v{vT0}, 4, v{vT0}
              v_lshrrev_b32 v{vT1}, 5, v{vL}
              v_lshl_add_u32 v{vT0}, v{vT1}, 8, v{vT0}
              v_bfe_u32 v{vT1}, v{vL}, 4, 1
              s_lshr_b32 s{sT0}, s{sW}, 1
              s_and_b32 s{sT1}, s{sW}, 1
              s_mul_i32 s{sT0}, s{sT0}, 24576
              v_mul_u32_u24 v{vQK}, 6144, v{vT1}
              v_add_u32 v{vQK}, v{vQK}, v{vT0}
              s_mul_i32 s{sT3}, s{sT1}, 3072
              s_add_u32 s{sT2}, s{sT0}, s{sT3}
              v_add_u32 v{vQK}, s{sT2}, v{vQK}
              v_lshl_add_u32 v{vV}, v{vT1}, 10, v{vT0}
              s_mul_i32 s{sT3}, s{sT1}, 6144
              s_add_u32 s{sT2}, s{sT0}, s{sT3}
              v_add_u32 v{vV}, s{sT2}, v{vV}
              v_mul_u32_u24 v{vH}, 49152, v{vT1}
              v_add_u32 v{vH}, v{vH}, v{vT0}
              s_mul_i32 s{sT2}, s{sW}, 98304
              v_add_u32 v{vH}, s{sT2}, v{vH}''')
        self.decode()
        a(f's_mov_b32 s{sXo}, s{sXoN}')
        self.dma(0)
        self.dma_w()
        if self.opt.get('x_sweep'):
            a(f'''s_sub_u32 s{sT0}, s{sC}, {self.rank0}
                  s_lshl_b32 s{sT0}, s{sT0}, 3
                  s_add_u32 s{sT0}, s{sT0}, s{sW}
                  s_mul_i32 s{sT0}, s{sT0}, 5120
                  s_add_u32 s{sT1}, s{sT0}, 4096
                  s_mov_b32 m0, {SWEEP_LDS}
                  v_lshlrev_b32 v{vT0}, 4, v{vL}''')
            for k in range(5):
                a(f'buffer_load_dwordx4 v{vT0}, s[{sX}:{sX+3}], s{sT1 if k == 4 else sT0} offen offset:{1024*(k & 3)} lds')
        nsw = 0
        arrv = True
        if self.opt.get('wo_sweep'):
            srd(a, ptr(5), NH * DH * DM * 2)
            a(f'''s_lshl_b32 s{sT0}, s{sJ}, 4
                  s_add_u32 s{sT0}, s{sT0}, s{sC}
                  s_sub_u32 s{sT0}, s{sT0}, {self.rank0}
                  s_lshl_b32 s{sT0}, s{sT0}, 3
                  s_add_u32 s{sT0}, s{sT0}, s{sW}
                  s_mul_i32 s{sT0}, s{sT0}, 7680
                  s_add_u32 s{sT1}, s{sT0}, 4096''')
            for k in range(8):
                a(f'buffer_load_dwordx4 v{vT0}, s[{sT}:{sT+3}], s{sT1 if k >= 4 else sT0} offen offset:{1024*(k & 3)} lds')
            nsw = 8
        a('s_waitcnt vmcnt(%d)' % (nsw + (8 if self.opt.get('x_sweep') else 3)))
        arrive(a, 7, vT1)
        self.inloop = True
        nxt = a.newlabel('Lgnext')
        lqk, lv, lf = 'Lg_qk', 'Lg_v', 'Lg_f'
        a.label(nxt)
        a(f'''s_mov_b32 s{sKind}, s{sNK}
              s_mov_b32 s{sOut}, s{sNOut}
              s_lshl_b32 s{sNFlag}, s{sTile}, 2
              s_cmp_eq_u32 s{sKind}, 4
              s_cbranch_scc1 Lg_end
              s_cmp_eq_u32 s{sKind}, 2
              s_cbranch_scc1 {lv}
              s_cmp_eq_u32 s{sKind}, 3
              s_cbranch_scc1 {lf}''')
        def c_init():
            l = a.newlabel('Lgci')
            F = self.F
            a(f'''s_lshr_b32 s{sT0}, s{sNFlag}, 2
                  s_mul_i32 s{sT1}, s{sT0}, 43691
                  s_lshr_b32 s{sT1}, s{sT1}, 19
                  s_mul_i32 s{sT2}, s{sT1}, 12
                  s_sub_u32 s{sT0}, s{sT0}, s{sT2}
                  s_mul_i32 s{sT2}, s{sJ}, 12
                  s_add_u32 s{sT0}, s{sT0}, s{sT2}
                  s_lshl_b32 s{sT0}, s{sT0}, 3
                  s_add_u32 s{sT0}, s{sT0}, s{sW}
                  s_cmp_ge_u32 s{sT0}, 640
                  s_cbranch_scc1 {l}
                  s_mul_i32 s{sT2}, s{sT0}, 52429
                  s_lshr_b32 s{sT2}, s{sT2}, 22
                  s_mul_i32 s{sT3}, s{sT2}, 80
                  s_sub_u32 s{sT0}, s{sT0}, s{sT3}
                  s_lshl_b32 s{sT1}, s{sT1}, 3
                  s_add_u32 s{sT1}, s{sT1}, s{sT2}
                  s_cmp_ge_u32 s{sT1}, {RC_N}
                  s_cbranch_scc1 {l}
                  s_cmp_eq_u32 s{sT1}, 0
                  s_cbranch_scc1 {l}
                  s_mul_i32 s{sT2}, s{sT1}, 86
                  s_lshr_b32 s{sT2}, s{sT2}, 8
                  s_mul_i32 s{sT1}, s{sT1}, {RC_SLOT}
                  s_mul_i32 s{sT3}, s{sT2}, {0x200000 - 3*RC_SLOT}
                  s_add_u32 s{sT1}, s{sT1}, s{sT3}
                  s_xor_b32 s{sT2}, s{sT2}, s{sPOL}
                  s_and_b32 s{sT2}, s{sT2}, 1
                  s_lshl_b32 s{sT2}, s{sT2}, 13
                  s_add_u32 s{sT1}, s{sT1}, s{sT2}
                  s_lshr_b32 s{sT2}, s{sT0}, 1
                  s_lshl_b32 s{sT2}, s{sT2}, 14
                  s_add_u32 s{sT1}, s{sT1}, s{sT2}
                  s_and_b32 s{sT2}, s{sT0}, 1
                  s_lshl_b32 s{sT2}, s{sT2}, 12
                  s_add_u32 s{sT1}, s{sT1}, s{sT2}
                  s_add_u32 s{sT1}, s{sT1}, {WS_RC}
                  v_mov_b32 v{F}, -1
                  v_mov_b32 v{F+1}, -1
                  v_mov_b32 v{F+2}, -1
                  v_mov_b32 v{F+3}, -1
                  v_lshlrev_b32 v{F+4}, 4, v{vL}''')
            for k in range(4):
                a(f'buffer_store_dwordx4 v[{F}:{F+3}], v{F+4}, s[{sWS}:{sWS+3}], s{sT1} offen offset:{1024*k} sc1')
            a.label(l)
        def set_flag():
            a(f'''s_mul_i32 s{sFlagP}, s{sJ}, 512
                  s_add_u32 s{sFlagP}, s{sFlagP}, s{sNFlag}
                  s_add_u32 s{sFlagP}, s{sFlagP}, {WS_FLAG}''')
            if self.opt.get('first_flag'):
                l = a.newlabel('Lgff')
                a(f'''s_cmp_ge_u32 s{sNFlag}, {4*16}
                      s_cbranch_scc1 {l}
                      s_waitcnt vmcnt(0)
                      s_barrier''')
                self.after_top()
                a.label(l)
        ACC = self.ACC
        self.tile_loop((2, 3), False, lqk)
        c_init()
        st = []
        for mt in range(2):
            a(f's_add_u32 s{sT0+0 if mt == 0 else sT1}, s{sOut}, {mt*12288}')
        for mt in range(2):
            for nt in range(3):
                c = ACC + 16 * (mt * 3 + nt)
                for r in range(8):
                    a(f'v_cvt_pk_bf16_f32 v{c+r}, v{c+2*r}, v{c+2*r+1}')
                for u in range(2):
                    st.append(f'buffer_store_dwordx4 v[{c+4*u}:{c+4*u+3}], v{vQK}, s[{sWS}:{sWS+3}], s{sT1 if mt else sT0} offen offset:{1024*nt + 512*u}')
        self.lstore(st, cross=True)
        set_flag()
        a(f's_branch {nxt}')
        a.label(lv)
        self.tile_loop((2, 3), True, lv + 'x')
        c_init()
        st = []
        for mt in range(2):
            a(f's_add_u32 s{sT1 if mt else sT0}, s{sOut}, {mt*12288}')
        for mt in range(2):
            for nt in range(3):
                c = ACC + 16 * (mt * 3 + nt)
                a(f'''v_cvt_pk_bf16_f32 v{c}, v{c}, v{c+1}
                      v_cvt_pk_bf16_f32 v{c+1}, v{c+2}, v{c+3}
                      v_cvt_pk_bf16_f32 v{c+2}, v{c+8}, v{c+9}
                      v_cvt_pk_bf16_f32 v{c+3}, v{c+10}, v{c+11}
                      v_cvt_pk_bf16_f32 v{c+4}, v{c+4}, v{c+5}
                      v_cvt_pk_bf16_f32 v{c+5}, v{c+6}, v{c+7}
                      v_cvt_pk_bf16_f32 v{c+6}, v{c+12}, v{c+13}
                      v_cvt_pk_bf16_f32 v{c+7}, v{c+14}, v{c+15}''')
                for u in range(2):
                    off = 2048*nt + 512*u
                    so = sT1 if mt else sT0
                    if off >= 4096:
                        st.append(f's_add_u32 s{sT2}, s{so}, 4096'); so = sT2; off -= 4096
                    st.append(f'buffer_store_dwordx4 v[{c+4*u}:{c+4*u+3}], v{vV}, s[{sWS}:{sWS+3}], s{so} offen offset:{off}')
        self.lstore(st, cross=True)
        set_flag()
        a(f's_branch {nxt}')
        a.label(lf)
        if self.opt.get('fused'):
            a(f'''s_lshl_b32 s{sIt}, s{sJ}, 4
                  s_add_u32 s{sIt}, s{sIt}, s{sC}
                  s_sub_u32 s{sIt}, s{sIt}, {self.rank0}
                  s_lshl_b32 s{sIt}, s{sIt}, 3
                  s_add_u32 s{sIt}, s{sIt}, s{sW}
                  s_lshl_b32 s{sIt}, s{sIt}, 1''')
            emit_gates(a, sIt, 2, vL, self.ACC)
            a('s_waitcnt vmcnt(0)')
        self.tile_loop((1, 6), False, lf + 'x')
        st = []
        T = self.F
        for nt in range(3):
            g, u = ACC + 16 * nt, ACC + 16 * (3 + nt)
            for r0 in range(0, 16, 8):
                R = range(r0, r0 + 8)
                for r in R: a(f'v_mul_f32 v{T+r-r0}, v{g+r}, v{g+r}')
                for r in R: a(f'v_mov_b32 v{T+8+r-r0}, s{sC1}')
                for r in R: a(f'v_fma_f32 v{T+r-r0}, v{T+r-r0}, s{sC2}, v{T+8+r-r0}')
                for r in R: a(f'v_mul_f32 v{T+r-r0}, v{T+r-r0}, v{g+r}')
                for r in R: a(f'v_exp_f32 v{T+r-r0}, v{T+r-r0}')
                for r in R: a(f'v_mul_f32 v{g+r}, v{g+r}, v{u+r}')
                for r in R: a(f'v_add_f32 v{T+r-r0}, 1.0, v{T+r-r0}')
                for r in R: a(f'v_rcp_f32 v{T+r-r0}, v{T+r-r0}')
                a('s_nop 0')
                for r in R: a(f'v_mul_f32 v{g+r}, v{g+r}, v{T+r-r0}')
            for r in range(8):
                a(f'v_cvt_pk_bf16_f32 v{g+r}, v{g+2*r}, v{g+2*r+1}')
            for uu in range(2):
                st.append(f'buffer_store_dwordx4 v[{g+4*uu}:{g+4*uu+3}], v{vH}, s[{sWS}:{sWS+3}], s{sOut} offen offset:{1024*nt + 512*uu}')
        self.lstore(st)
        set_flag()
        a(f's_branch {nxt}')
        a.label('Lg_end')
        self.stage_top()
        self.after_top()
        a(f's_branch {done_label}')
        self.emit_tail()
```

```python
from asmlib import *
from layout import *
from chain import (sWS, sDBG, sT, ptr, sW, sJ, sC, sMIX, sBUD, sT0, sT1, sT2, sT3, f32bits, wait_registered, emit_gates, SWEEP_LDS, sPOL, srd, arrive)
import math

XB, WB_OFF, WSZ = 32768, 65536, 24576
STAGE = XB
GEMM1_LDS = WB_OFF + 3 * WSZ

sX = 56
sWD = 60
sTile, sXo, sWo, sWrs, sKind, sOut, sNK, sNOut, sIt, sM0x, sM0w, sWstep = 64, 65, 66, 67, 68, 70, 71, 72, 73, 74, 75, 47
sFlagP = 80
sNFlag = 81
sC1, sC2 = 98, 99
sXoN, sWrd, sWwr = 100, 101, 97

class Gemm1:
    def __init__(self, a, opt, nworkers, rank0):
        self.a, self.opt, self.NW, self.rank0 = a, opt, nworkers, rank0
        self.tail = []
        self.inloop = False
        self.pending = []

    def lstore(self, insts, nt=False, cross=False):
        a = self.a
        if cross:
            for i in insts: a(i + (' sc1' if i.startswith('buffer_') else ''))
            return
        slow, back = a.newlabel('Lgslow'), a.newlabel('Lgback')
        a(f's_cmp_lg_u32 s{sMIX}, 0')
        a(f's_cbranch_scc1 {slow}')
        for i in insts: a(i + (' nt' if nt and i.startswith('buffer_') else ''))
        a.label(back)
        self.tail.append((slow, [i + ' sc1' if i.startswith('buffer_') else i for i in insts], back))

    def emit_tail(self):
        a = self.a
        for slow, insts, back in self.tail:
            a.label(slow)
            for i in insts: a(i)
            a(f's_branch {back}')
        self.tail = []

    def decode(self):
        a = self.a
        lf, ln, ld = a.newlabel('Ldf'), a.newlabel('Ldn'), a.newlabel('Ldd')
        a(f'''s_cmp_ge_u32 s{sTile}, 112
              s_cbranch_scc1 {ln}
              s_cmp_ge_u32 s{sTile}, 96
              s_cbranch_scc1 {lf}
              s_mul_i32 s{sT0}, s{sTile}, 43691
              s_lshr_b32 s{sT0}, s{sT0}, 19
              s_mul_i32 s{sT1}, s{sT0}, 12
              s_sub_u32 s{sT1}, s{sTile}, s{sT1}
              s_lshr_b32 s{sNK}, s{sT1}, 2
              s_and_b32 s{sT1}, s{sT1}, 3
              s_lshl_b32 s{sT2}, s{sJ}, 2
              s_add_u32 s{sT1}, s{sT1}, s{sT2}
              s_mul_i32 s{sXoN}, s{sT0}, {256*1280}
              s_mul_i32 s{sWo}, s{sT1}, 384
              s_mov_b32 s{sWrs}, 12288
              s_cmp_eq_u32 s{sNK}, 1
              s_cselect_b32 s{sWD}, s{ptr(3)}, s{ptr(2)}
              s_cselect_b32 s{sWD+1}, s{ptr(3)+1}, s{ptr(2)+1}
              s_cmp_eq_u32 s{sNK}, 2
              s_cselect_b32 s{sWD}, s{ptr(4)}, s{sWD}
              s_cselect_b32 s{sWD+1}, s{ptr(4)+1}, s{sWD+1}
              s_mov_b32 s{sWD+2}, {DM*NH*DH*2}
              s_mul_i32 s{sNOut}, s{sNK}, {WS_K}
              s_mul_i32 s{sT2}, s{sT1}, {2048*384}
              s_add_u32 s{sNOut}, s{sNOut}, s{sT2}
              s_mul_i32 s{sT2}, s{sT0}, {256*384}
              s_add_u32 s{sNOut}, s{sNOut}, s{sT2}
              s_mul_i32 s{sT2}, s{sW}, 3
              s_lshr_b32 s{sT3}, s{sT2}, 2
              s_branch {ld}''')
        a.label(lf)
        a(f'''s_sub_u32 s{sT1}, s{sTile}, 96
              s_lshr_b32 s{sT0}, s{sT1}, 1
              s_and_b32 s{sT1}, s{sT1}, 1
              s_mov_b32 s{sNK}, 3
              s_mul_i32 s{sXoN}, s{sT0}, {256*1280}
              s_mul_i32 s{sWo}, s{sJ}, 384
              s_mul_i32 s{sT2}, s{sT1}, 192
              s_add_u32 s{sWo}, s{sWo}, s{sT2}
              s_mov_b32 s{sWrs}, 3072
              s_cmp_ge_u32 s{sW}, 4
              s_cselect_b32 s{sWD}, s{ptr(9)}, s{ptr(8)}
              s_cselect_b32 s{sWD+1}, s{ptr(9)+1}, s{ptr(8)+1}
              s_mov_b32 s{sWD+2}, {DM*DF*2}
              s_mul_i32 s{sNOut}, s{sT0}, {8*98304}
              s_lshl_b32 s{sT2}, s{sWo}, 4
              s_add_u32 s{sNOut}, s{sNOut}, s{sT2}
              s_add_u32 s{sNOut}, s{sNOut}, {WS_H}
              s_and_b32 s{sT2}, s{sW}, 3
              s_mul_i32 s{sT2}, s{sT2}, 3
              s_lshr_b32 s{sT3}, s{sT2}, 2
              s_branch {ld}''')
        a.label(ln)
        a(f'''s_mov_b32 s{sNK}, 4
              s_mov_b32 s{sWD+2}, 0
              s_mov_b32 s{sT2}, 0
              s_mov_b32 s{sT3}, 0''')
        a.label(ld)
        if self.opt.get('g_hit'):
            a(f's_mov_b32 s{sXoN}, 0')
            a(f's_mov_b32 s{sWo}, 0')
            a(f's_mov_b32 s{sWD}, s{ptr(2)}')
            a(f's_mov_b32 s{sWD+1}, s{ptr(2)+1}')
        for ii in range(3):
            a(f'''s_add_u32 s{sT0}, s{sT2}, {ii}
                  s_lshr_b32 s{sT1}, s{sT0}, 2
                  s_and_b32 s{sT0}, s{sT0}, 3
                  s_lshl_b32 s{sT0}, s{sT0}, 4
                  s_mul_i32 s{sT0}, s{sT0}, s{sWrs}
                  s_lshl_b32 s{sT1}, s{sT1}, 6
                  s_add_u32 s{sT0}, s{sT0}, s{sT1}
                  s_add_u32 s{self.sP+ii}, s{sT0}, s{sWo}''')
        a(f'''s_mul_i32 s{sT0}, s{sW}, {32*1280}
              s_add_u32 s{sXoN}, s{sXoN}, s{sT0}
              s_lshl_b32 s{sWstep}, s{sWrs}, 6
              v_mul_lo_u32 v{self.vWg}, v{self.vL2}, s{sWrs}
              v_add_u32 v{self.vWg}, v{self.vWg}, v{self.vL3}''')

    def dma_x(self, buf):
        a = self.a
        for ii in range(4):
            a(f's_add_u32 m0, s{sM0x}, {buf*STAGE + ii*1024}')
            a(f's_add_u32 s{sT0}, s{sXo}, {ii*10240}' if ii else 's_nop 0')
            a(f'buffer_load_dwordx4 v{self.vXg + (ii & 1)}, s[{sX}:{sX+3}], s{sT0 if ii else sXo} offen lds')
        a(f's_add_u32 s{sXo}, s{sXo}, 128')

    def rot(self, r):
        self.a(f'''s_add_u32 s{r}, s{r}, {WSZ}
                   s_cmp_eq_u32 s{r}, {3*WSZ}
                   s_cselect_b32 s{r}, 0, s{r}''')

    def dma_w(self):
        a = self.a
        a(f's_add_u32 s{sT1}, s{sM0w}, s{sWwr}')
        for ii in range(3):
            a(f's_add_u32 m0, s{sT1}, {ii*1024}')
            a('s_nop 0')
            a(f'buffer_load_dwordx4 v{self.vWg}, s[{sWD}:{sWD+3}], s{self.sP+ii} offen lds')
            a(f's_add_u32 s{self.sP+ii}, s{self.sP+ii}, s{sWstep}')
        self.rot(sWwr)

    def dma(self, buf):
        if self.opt.get('g_nodma') and self.inloop: return
        self.dma_x(buf)
        self.dma_w()

    def reads(self, var, buf, kk, fs):
        a = self.a
        MT, NT = var
        F = self.F + fs * 28
        xa = (self.vXr if MT == 2 else self.vXr1) + buf * 4 + kk
        out = []
        for mt in range(MT):
            out.append(f'ds_read_b128 v[{F+4*mt}:{F+4*mt+3}], v{xa} offset:{4096*mt}')
        wa = self.vWc
        for nt in range(NT):
            for j in range(2):
                r = F + 4*MT + 4*nt + 2*j
                out.append(f'ds_read_b64_tr_b16 v[{r}:{r+1}], v{wa} offset:{4096*nt + 1024*kk + 256*j}')
        return out

    def mfmas(self, var, swap, fs, first):
        MT, NT = var
        F = self.F + fs * 28
        out = []
        for mt in range(MT):
            for nt in range(NT):
                acc = self.ACC + 16 * (mt * NT + nt)
                x = f'v[{F+4*mt}:{F+4*mt+3}]'; w = f'v[{F+4*MT+4*nt}:{F+4*MT+4*nt+3}]'
                A, B = (x, w) if swap else (w, x)
                c = '0' if first else f'v[{acc}:{acc+15}]'
                if self.opt.get('g_fake16') and not first:
                    q = acc + 8 * fs
                    out.append(f'v_mfma_f32_16x16x32_bf16 v[{q}:{q+3}], {A}, {B}, v[{q}:{q+3}]\nv_mfma_f32_16x16x32_bf16 v[{q+4}:{q+7}], {B}, {A}, v[{q+4}:{q+7}]')
                    continue
                out.append(f'v_mfma_f32_32x32x16_bf16 v[{acc}:{acc+15}], {A}, {B}, {c}')
        return out

    def interleave(self, mf, other):
        a = self.a
        n = len(mf); per = (len(other) + n - 1) // n if other else 0
        k = 0
        for m in mf:
            a(m)
            for o in other[k:k + per]: a(o)
            k += per
        for o in other[k:]: a(o)

    def stage_top(self, var=None, full=0):
        a = self.a
        if var is not None:
            a(f'v_add_u32 v{self.vWn}, s{sWrd}, v{self.vWr if var[0] == 2 else self.vWr1}')
            self.rot(sWrd)
        a(f's_waitcnt vmcnt({full}) lgkmcnt(0)')
        if var is not None: a(f'v_mov_b32 v{self.vWc}, v{self.vWn}')
        a('s_barrier')

    def tile_loop(self, var, swap, name):
        a = self.a
        nr = var[0] + 2 * var[1]
        loop = a.newlabel('L' + name)
        self.stage_top(var, 15)
        if var == (1, 6) and self.opt.get('fused'):
            l = a.newlabel('Lgg')
            a(f'''s_cmp_lg_u32 s{sW}, 1
                  s_cbranch_scc1 {l}
                  v_mov_b32 v{self.vT0}, 132
                  s_mov_b64 exec, 1
                  buffer_atomic_add v{self.vOne}, v{self.vT0}, s[{sDBG}:{sDBG+3}], 0 offen sc1
                  s_mov_b64 exec, -1''')
            a.label(l)
        for r in self.reads(var, 0, 0, 0): a(r)
        self.dma(1)
        def body(buf, kstart_first):
            for kk in range(3):
                rd = self.reads(var, buf, kk + 1, (kk + 1) & 1)
                a(f's_waitcnt lgkmcnt(0)')
                self.interleave(self.mfmas(var, swap, kk & 1, kstart_first and kk == 0), rd)
        body(0, True)
        a(f's_mov_b32 s{sIt}, 0')
        a.label(loop)
        for buf in (1, 0):
            self.stage_top(var, 3)
            if buf == 1:
                nf = a.newlabel('Lgnf')
                a(f's_cmp_lg_u32 s{sIt}, 0')
                a(f's_cbranch_scc1 {nf}')
                self.after_top()
                a.label(nf)
            rd = self.reads(var, buf, 0, 0)
            self.interleave(self.mfmas(var, swap, 1, False), rd)
            skip = a.newlabel('Lgn')
            if buf == 0:
                a(f's_cmp_lg_u32 s{sIt}, 3')
                a(f's_cbranch_scc1 {skip}')
                a(f's_add_u32 s{sTile}, s{sTile}, {self.NW}')
                self.decode()
            else:
                a(f's_cmp_eq_u32 s{sIt}, 4')
                a(f's_cselect_b32 s{sXo}, s{sXoN}, s{sXo}')
            a.label(skip)
            self.dma(buf ^ 1)
            if self.opt.get('g_slow'):
                sk = a.newlabel('Lgs')
                a(f's_cmp_eq_u32 s{sFlagP}, 0')
                a(f's_cbranch_scc1 {sk}')
                a(f"s_sleep {self.opt['g_slow']}")
                a.label(sk)
            body(buf, False)
            if buf == 1:
                a(f's_cmp_eq_u32 s{sIt}, 4')
                a(f's_cbranch_scc1 {name}_done')
        a(f's_add_u32 s{sIt}, s{sIt}, 1')
        a(f's_branch {loop}')
        a.label(f'{name}_done')
        a('s_waitcnt lgkmcnt(0)')
        for m in self.mfmas(var, swap, 1, False): a(m)
        a('s_nop 7'); a('s_nop 3')
        if self.opt.get('fused'):
            l = a.newlabel('Lgreg')
            a(f's_cmp_lg_u32 s{sFlagP}, 0')
            a(f's_cbranch_scc1 {l}')
            if self.opt.get('prof'):
                a('s_memrealtime s[88:89]'); a('s_waitcnt lgkmcnt(0)')
            a(f'v_and_b32 v{self.vT2}, 63, v0')
            wait_registered(a, self.opt, self.vT0, self.vT1, self.vT2)
            a.label(l)

    def after_top(self):
        if not self.opt.get('fused'): return
        a = self.a
        l = a.newlabel('Lgf')
        a(f'''s_cmp_eq_u32 s{sFlagP}, 0
              s_cbranch_scc1 {l}
              s_cmp_lg_u32 s{sW}, 0
              s_cbranch_scc1 {l}
              s_mov_b64 exec, 1''')
        self.lstore([f'buffer_store_dword v{self.vOne}, v{self.vZero}, s[{sWS}:{sWS+3}], s{sFlagP} offen'], cross=True)
        a('s_mov_b64 exec, -1')
        a.label(l)

    def emit(self, done_label):
        a = self.a
        al = Alloc(1, 256)
        self.ACC = al(96, 2); self.F = al(56, 2)
        self.vXg = al(2); self.vWg = al()
        self.vXr = al(8); self.vXr1 = al(8); self.vWr = al(); self.vWr1 = al(); self.vWc = al(); self.vWn = al()
        self.vL2, self.vL3 = al(), al()
        vL, vT0, vT1, vT2 = al(), al(), al(), al()
        vQK, vV, vH = al(), al(), al()
        self.vT0, self.vT1, self.vT2 = vT0, vT1, vT2
        self.vOne, self.vZero = al(), al()
        self.sP = 94
        a(f'''v_and_b32 v{vL}, 63, v0
              v_mov_b32 v{self.vOne}, 1
              v_mov_b32 v{self.vZero}, 0
              s_mov_b32 s{sX}, s{ptr(0)}
              s_mov_b32 s{sX+1}, s{ptr(0)+1}
              s_mov_b32 s{sX+2}, {S*DM*2}
              s_mov_b32 s{sX+3}, 0x20000
              s_mov_b32 s{sWD}, s{ptr(2)}
              s_mov_b32 s{sWD+1}, s{ptr(2)+1}
              s_mov_b32 s{sWD+3}, 0x20000
              s_mov_b32 s{sWrs}, 0
              s_mov_b32 s{sWo}, 0
              s_mov_b32 s{sXo}, 0
              s_mov_b32 s{sXoN}, 0
              s_mov_b32 s{sWrd}, 0
              s_mov_b32 s{sWwr}, 0
              s_mov_b32 s{sNOut}, 0
              s_mov_b32 s{sFlagP}, 0
              s_mov_b32 s{sC1}, {hex(f32bits(-2 * math.sqrt(2 / math.pi) * math.log2(math.e)))}
              s_mov_b32 s{sC2}, {hex(f32bits(-2 * math.sqrt(2 / math.pi) * math.log2(math.e) * 0.044715))}
              s_lshl_b32 s{sM0x}, s{sW}, 12
              s_mul_i32 s{sM0w}, s{sW}, 3072
              s_add_u32 s{sM0w}, s{sM0w}, {WB_OFF}
              s_sub_u32 s{sTile}, s{sC}, {self.rank0}
              v_lshrrev_b32 v{self.vL2}, 2, v{vL}
              v_and_b32 v{self.vL3}, 3, v{vL}
              v_lshlrev_b32 v{self.vL3}, 4, v{self.vL3}''')
        for par in range(2):
            a(f'''v_lshrrev_b32 v{vT0}, 4, v{vL}
                  v_add_u32 v{vT0}, {4*par}, v{vT0}
                  v_and_b32 v{vT1}, 7, v{vL}
                  v_xor_b32 v{vT0}, v{vT0}, v{vT1}
                  v_lshlrev_b32 v{vT0}, 4, v{vT0}
                  v_lshrrev_b32 v{vT1}, 3, v{vL}
                  v_mul_u32_u24 v{vT1}, 1280, v{vT1}
                  v_add_u32 v{self.vXg+par}, v{vT0}, v{vT1}''')
        a(f'''v_and_b32 v{vT0}, 31, v{vL}
              v_bfe_u32 v{vT1}, v{vL}, 1, 3
              v_lshrrev_b32 v{vT2}, 5, v{vL}
              v_xor_b32 v{vT1}, v{vT1}, v{vT2}
              s_lshr_b32 s{sT0}, s{sW}, 1
              s_lshl_b32 s{sT0}, s{sT0}, 13
              s_lshl_b32 s{sT1}, s{sW}, 12''')
        for kk in range(4):
            a(f'''v_xor_b32 v{vT2}, {2*kk}, v{vT1}
                  v_lshlrev_b32 v{vT2}, 4, v{vT2}
                  v_lshl_add_u32 v{vT2}, v{vT0}, 7, v{vT2}
                  v_add_u32 v{self.vXr+kk}, s{sT0}, v{vT2}
                  v_add_u32 v{self.vXr1+kk}, s{sT1}, v{vT2}
                  v_add_u32 v{self.vXr+4+kk}, {STAGE}, v{self.vXr+kk}
                  v_add_u32 v{self.vXr1+4+kk}, {STAGE}, v{self.vXr1+kk}''')
        a(f'''v_lshrrev_b32 v{vT0}, 5, v{vL}
              v_lshlrev_b32 v{vT0}, 9, v{vT0}
              v_bfe_u32 v{vT1}, v{vL}, 2, 2
              v_lshl_add_u32 v{vT0}, v{vT1}, 6, v{vT0}
              v_bfe_u32 v{vT1}, v{vL}, 4, 1
              v_lshl_add_u32 v{vT0}, v{vT1}, 5, v{vT0}
              v_and_b32 v{vT1}, 3, v{vL}
              v_lshl_add_u32 v{vT0}, v{vT1}, 3, v{vT0}
              v_add_u32 v{self.vWr1}, {WB_OFF}, v{vT0}
              s_and_b32 s{sT0}, s{sW}, 1
              s_mul_i32 s{sT0}, s{sT0}, {3*4096}
              v_add_u32 v{self.vWr}, s{sT0}, v{self.vWr1}''')
        a(f'''v_and_b32 v{vT0}, 15, v{vL}
              v_lshlrev_b32 v{vT0}, 4, v{vT0}
              v_lshrrev_b32 v{vT1}, 5, v{vL}
              v_lshl_add_u32 v{vT0}, v{vT1}, 8, v{vT0}
              v_bfe_u32 v{vT1}, v{vL}, 4, 1
              s_lshr_b32 s{sT0}, s{sW}, 1
              s_and_b32 s{sT1}, s{sW}, 1
              s_mul_i32 s{sT0}, s{sT0}, 24576
              v_mul_u32_u24 v{vQK}, 6144, v{vT1}
              v_add_u32 v{vQK}, v{vQK}, v{vT0}
              s_mul_i32 s{sT3}, s{sT1}, 3072
              s_add_u32 s{sT2}, s{sT0}, s{sT3}
              v_add_u32 v{vQK}, s{sT2}, v{vQK}
              v_lshl_add_u32 v{vV}, v{vT1}, 10, v{vT0}
              s_mul_i32 s{sT3}, s{sT1}, 6144
              s_add_u32 s{sT2}, s{sT0}, s{sT3}
              v_add_u32 v{vV}, s{sT2}, v{vV}
              v_mul_u32_u24 v{vH}, 49152, v{vT1}
              v_add_u32 v{vH}, v{vH}, v{vT0}
              s_mul_i32 s{sT2}, s{sW}, 98304
              v_add_u32 v{vH}, s{sT2}, v{vH}''')
        if self.opt.get('g_prio'):
            l = a.newlabel('Lgp')
            a(f's_cmp_lt_u32 s{sW}, 4')
            a(f's_cbranch_scc1 {l}')
            a('s_setprio 1')
            a.label(l)
        if self.opt.get('w_help'):
            l, lp = a.newlabel('Lgh'), a.newlabel('Lghl')
            H = self.F
            a(f'''s_cmp_lt_u32 s{sTile}, 12
                  s_cbranch_scc1 {l}
                  s_mov_b32 m0, {SWEEP_LDS}
                  v_lshlrev_b32 v{H}, 4, v{vL}
                  v_add_u32 v{H+1}, 1024, v{H}
                  v_add_u32 v{H+2}, {12288 + 512}, v{H}
                  v_add_u32 v{H+3}, {12288 - 512}, v{H}
                  v_cmp_gt_u32 vcc, 512, v{H}
                  s_sub_u32 s{sT0}, s{sTile}, 12
                  s_lshl_b32 s{sT0}, s{sT0}, 3
                  v_cndmask_b32 v{H+1}, v{H+3}, v{H+1}, vcc
                  s_add_u32 s{sT0}, s{sT0}, s{sW}
                  s_mul_i32 s{sT0}, s{sT0}, {2*12288}
                  s_mul_i32 s{sT1}, s{sJ}, 1536
                  s_add_u32 s{sT0}, s{sT0}, s{sT1}
                  s_mov_b32 s{sT+2}, {DM*NH*DH*2}
                  s_mov_b32 s{sT+3}, 0x20000
                  s_mov_b32 s{sIt}, 0''')
            a.label(lp)
            for m in (2, 3, 4):
                a(f's_mov_b32 s{sT}, s{ptr(m)}')
                a(f's_mov_b32 s{sT+1}, s{ptr(m)+1}')
                for k in range(3):
                    a(f'buffer_load_dwordx4 v{H+k}, s[{sT}:{sT+3}], s{sT0} offen lds')
            a(f'''s_add_u32 s{sT0}, s{sT0}, {64*12288}
                  s_add_u32 s{sIt}, s{sIt}, 1
                  s_cmp_lt_u32 s{sIt}, 10
                  s_cbranch_scc1 {lp}''')
            a.label(l)
        self.decode()
        a(f's_mov_b32 s{sXo}, s{sXoN}')
        self.dma(0)
        self.dma_w()
        if self.opt.get('x_sweep'):
            a(f'''s_sub_u32 s{sT0}, s{sC}, {self.rank0}
                  s_lshl_b32 s{sT0}, s{sT0}, 3
                  s_add_u32 s{sT0}, s{sT0}, s{sW}
                  s_mul_i32 s{sT0}, s{sT0}, 5120
                  s_add_u32 s{sT1}, s{sT0}, 4096
                  s_mov_b32 m0, {SWEEP_LDS}
                  v_lshlrev_b32 v{vT0}, 4, v{vL}''')
            for k in range(5):
                a(f'buffer_load_dwordx4 v{vT0}, s[{sX}:{sX+3}], s{sT1 if k == 4 else sT0} offen offset:{1024*(k & 3)} lds')
        nsw = 0
        arrv = True
        if self.opt.get('wo_sweep'):
            srd(a, ptr(5), NH * DH * DM * 2)
            a(f'''s_lshl_b32 s{sT0}, s{sJ}, 4
                  s_add_u32 s{sT0}, s{sT0}, s{sC}
                  s_sub_u32 s{sT0}, s{sT0}, {self.rank0}
                  s_lshl_b32 s{sT0}, s{sT0}, 3
                  s_add_u32 s{sT0}, s{sT0}, s{sW}
                  s_mul_i32 s{sT0}, s{sT0}, 7680
                  s_add_u32 s{sT1}, s{sT0}, 4096''')
            for k in range(8):
                a(f'buffer_load_dwordx4 v{vT0}, s[{sT}:{sT+3}], s{sT1 if k >= 4 else sT0} offen offset:{1024*(k & 3)} lds')
            nsw = 8
        a('s_waitcnt vmcnt(%d)' % (nsw + (8 if self.opt.get('x_sweep') else 3)))
        arrive(a, 7, vT1)
        self.inloop = True
        nxt = a.newlabel('Lgnext')
        lqk, lv, lf = 'Lg_qk', 'Lg_v', 'Lg_f'
        a.label(nxt)
        a(f'''s_mov_b32 s{sKind}, s{sNK}
              s_mov_b32 s{sOut}, s{sNOut}
              s_lshl_b32 s{sNFlag}, s{sTile}, 2
              s_cmp_eq_u32 s{sKind}, 4
              s_cbranch_scc1 Lg_end
              s_cmp_eq_u32 s{sKind}, 2
              s_cbranch_scc1 {lv}
              s_cmp_eq_u32 s{sKind}, 3
              s_cbranch_scc1 {lf}''')
        def c_init():
            l = a.newlabel('Lgci')
            F = self.F
            a(f'''s_lshr_b32 s{sT0}, s{sNFlag}, 2
                  s_mul_i32 s{sT1}, s{sT0}, 43691
                  s_lshr_b32 s{sT1}, s{sT1}, 19
                  s_mul_i32 s{sT2}, s{sT1}, 12
                  s_sub_u32 s{sT0}, s{sT0}, s{sT2}
                  s_mul_i32 s{sT2}, s{sJ}, 12
                  s_add_u32 s{sT0}, s{sT0}, s{sT2}
                  s_lshl_b32 s{sT0}, s{sT0}, 3
                  s_add_u32 s{sT0}, s{sT0}, s{sW}
                  s_cmp_ge_u32 s{sT0}, 640
                  s_cbranch_scc1 {l}
                  s_mul_i32 s{sT2}, s{sT0}, 52429
                  s_lshr_b32 s{sT2}, s{sT2}, 22
                  s_mul_i32 s{sT3}, s{sT2}, 80
                  s_sub_u32 s{sT0}, s{sT0}, s{sT3}
                  s_lshl_b32 s{sT1}, s{sT1}, 3
                  s_add_u32 s{sT1}, s{sT1}, s{sT2}
                  s_cmp_ge_u32 s{sT1}, {RC_N}
                  s_cbranch_scc1 {l}
                  s_cmp_eq_u32 s{sT1}, 0
                  s_cbranch_scc1 {l}
                  s_mul_i32 s{sT2}, s{sT1}, 86
                  s_lshr_b32 s{sT2}, s{sT2}, 8
                  s_mul_i32 s{sT1}, s{sT1}, {RC_SLOT}
                  s_mul_i32 s{sT3}, s{sT2}, {0x200000 - 3*RC_SLOT}
                  s_add_u32 s{sT1}, s{sT1}, s{sT3}
                  s_xor_b32 s{sT2}, s{sT2}, s{sPOL}
                  s_and_b32 s{sT2}, s{sT2}, 1
                  s_lshl_b32 s{sT2}, s{sT2}, 13
                  s_add_u32 s{sT1}, s{sT1}, s{sT2}
                  s_lshr_b32 s{sT2}, s{sT0}, 1
                  s_lshl_b32 s{sT2}, s{sT2}, 14
                  s_add_u32 s{sT1}, s{sT1}, s{sT2}
                  s_and_b32 s{sT2}, s{sT0}, 1
                  s_lshl_b32 s{sT2}, s{sT2}, 12
                  s_add_u32 s{sT1}, s{sT1}, s{sT2}
                  s_add_u32 s{sT1}, s{sT1}, {WS_RC}
                  v_mov_b32 v{F}, -1
                  v_mov_b32 v{F+1}, -1
                  v_mov_b32 v{F+2}, -1
                  v_mov_b32 v{F+3}, -1
                  v_lshlrev_b32 v{F+4}, 4, v{vL}''')
            for k in range(4):
                a(f'buffer_store_dwordx4 v[{F}:{F+3}], v{F+4}, s[{sWS}:{sWS+3}], s{sT1} offen offset:{1024*k} sc1')
            a.label(l)
        def set_flag():
            a(f'''s_mul_i32 s{sFlagP}, s{sJ}, 512
                  s_add_u32 s{sFlagP}, s{sFlagP}, s{sNFlag}
                  s_add_u32 s{sFlagP}, s{sFlagP}, {WS_FLAG}''')
            if self.opt.get('first_flag'):
                l = a.newlabel('Lgff')
                a(f'''s_cmp_ge_u32 s{sNFlag}, {4*16}
                      s_cbranch_scc1 {l}
                      s_waitcnt vmcnt(0)
                      s_barrier''')
                self.after_top()
                a.label(l)
        ACC = self.ACC
        self.tile_loop((2, 3), False, lqk)
        c_init()
        st = []
        for mt in range(2):
            a(f's_add_u32 s{sT0+0 if mt == 0 else sT1}, s{sOut}, {mt*12288}')
        for mt in range(2):
            for nt in range(3):
                c = ACC + 16 * (mt * 3 + nt)
                for r in range(8):
                    a(f'v_cvt_pk_bf16_f32 v{c+r}, v{c+2*r}, v{c+2*r+1}')
                for u in range(2):
                    st.append(f'buffer_store_dwordx4 v[{c+4*u}:{c+4*u+3}], v{vQK}, s[{sWS}:{sWS+3}], s{sT1 if mt else sT0} offen offset:{1024*nt + 512*u}')
        self.lstore(st, cross=True)
        set_flag()
        a(f's_branch {nxt}')
        a.label(lv)
        self.tile_loop((2, 3), True, lv + 'x')
        c_init()
        st = []
        for mt in range(2):
            a(f's_add_u32 s{sT1 if mt else sT0}, s{sOut}, {mt*12288}')
        for mt in range(2):
            for nt in range(3):
                c = ACC + 16 * (mt * 3 + nt)
                a(f'''v_cvt_pk_bf16_f32 v{c}, v{c}, v{c+1}
                      v_cvt_pk_bf16_f32 v{c+1}, v{c+2}, v{c+3}
                      v_cvt_pk_bf16_f32 v{c+2}, v{c+8}, v{c+9}
                      v_cvt_pk_bf16_f32 v{c+3}, v{c+10}, v{c+11}
                      v_cvt_pk_bf16_f32 v{c+4}, v{c+4}, v{c+5}
                      v_cvt_pk_bf16_f32 v{c+5}, v{c+6}, v{c+7}
                      v_cvt_pk_bf16_f32 v{c+6}, v{c+12}, v{c+13}
                      v_cvt_pk_bf16_f32 v{c+7}, v{c+14}, v{c+15}''')
                for u in range(2):
                    off = 2048*nt + 512*u
                    so = sT1 if mt else sT0
                    if off >= 4096:
                        st.append(f's_add_u32 s{sT2}, s{so}, 4096'); so = sT2; off -= 4096
                    st.append(f'buffer_store_dwordx4 v[{c+4*u}:{c+4*u+3}], v{vV}, s[{sWS}:{sWS+3}], s{so} offen offset:{off}')
        self.lstore(st, cross=True)
        set_flag()
        a(f's_branch {nxt}')
        a.label(lf)
        if self.opt.get('fused'):
            a(f'''s_lshl_b32 s{sIt}, s{sJ}, 4
                  s_add_u32 s{sIt}, s{sIt}, s{sC}
                  s_sub_u32 s{sIt}, s{sIt}, {self.rank0}
                  s_lshl_b32 s{sIt}, s{sIt}, 3
                  s_add_u32 s{sIt}, s{sIt}, s{sW}
                  s_lshl_b32 s{sIt}, s{sIt}, 1''')
            emit_gates(a, sIt, 2, vL, self.ACC)
            a('s_waitcnt vmcnt(0)')
        self.tile_loop((1, 6), False, lf + 'x')
        st = []
        T = self.F
        for nt in range(3):
            g, u = ACC + 16 * nt, ACC + 16 * (3 + nt)
            for r0 in range(0, 16, 8):
                R = range(r0, r0 + 8)
                for r in R: a(f'v_mul_f32 v{T+r-r0}, v{g+r}, v{g+r}')
                for r in R: a(f'v_mov_b32 v{T+8+r-r0}, s{sC1}')
                for r in R: a(f'v_fma_f32 v{T+r-r0}, v{T+r-r0}, s{sC2}, v{T+8+r-r0}')
                for r in R: a(f'v_mul_f32 v{T+r-r0}, v{T+r-r0}, v{g+r}')
                for r in R: a(f'v_exp_f32 v{T+r-r0}, v{T+r-r0}')
                for r in R: a(f'v_mul_f32 v{g+r}, v{g+r}, v{u+r}')
                for r in R: a(f'v_add_f32 v{T+r-r0}, 1.0, v{T+r-r0}')
                for r in R: a(f'v_rcp_f32 v{T+r-r0}, v{T+r-r0}')
                a('s_nop 0')
                for r in R: a(f'v_mul_f32 v{g+r}, v{g+r}, v{T+r-r0}')
            for r in range(8):
                a(f'v_cvt_pk_bf16_f32 v{g+r}, v{g+2*r}, v{g+2*r+1}')
            for uu in range(2):
                st.append(f'buffer_store_dwordx4 v[{g+4*uu}:{g+4*uu+3}], v{vH}, s[{sWS}:{sWS+3}], s{sOut} offen offset:{1024*nt + 512*uu}')
        self.lstore(st)
        set_flag()
        a(f's_branch {nxt}')
        a.label('Lg_end')
        self.stage_top()
        self.after_top()
        a(f's_branch {done_label}')
        self.emit_tail()
```

```python
from asmlib import *
from layout import *
import math

LM, LO, LDUMMY, LQK, LW5, LR, LOX, LBUF = 0, 10240, 13312, 16384, 22528, 34816, 35840, 38912
LBUF_SZ = 27648
LK_OFF, LV_OFF, LQ_OFF = 0, 12288, 24576
CHAIN_LDS = LBUF + 3 * LBUF_SZ
SWEEP_LDS = 139264

sWS, sDBG, sT = 4, 8, 12
sPTR = 16
def ptr(i): return sPTR + 2 * i
sW, sJ, sC, sH, sG, sMIX, sBUD, sSTEP = 48, 49, 50, 51, 52, 53, 54, 55
sA_N, sA_R, sB_C, sB_R, sC_W, sC_RS, sC_RD, sO_C = 56, 57, 58, 59, 60, 61, 62, 63
sKQ, sVX, sLB, sRED, sSCL, sT0, sT1, sT2, sT3 = 64, 65, 66, 67, 68, 69, 76, 77, 78
sMN8, sML32, sMH8 = 70, 72, 74
sSELLO, sSELHI = 80, 81
sCI = 46
sARR = 3
sMA = 46
sST = 82
sPADD, sPOR, sA_P, sCS, sPOL, sC_W2 = 94, 95, 96, 97, 79, 61
NSTAMP = 6

def srd(a, base_ptr, nbytes):
    a(f'''s_mov_b32 s{sT}, s{base_ptr}
          s_mov_b32 s{sT+1}, s{base_ptr+1}
          s_mov_b32 s{sT+2}, {nbytes}
          s_mov_b32 s{sT+3}, 0x20000''')

class Chain:
    def __init__(self, a, opt):
        self.a = a
        self.opt = opt
        self.tail = []
        self.tails = []
        self.nstamp = 0
        self.wnt = ' nt' if opt.get('w_nt') else ''

    def lstore(self, insts):
        a = self.a
        slow, back = a.newlabel('Lslow'), a.newlabel('Lback')
        a(f's_cmp_lg_u32 s{sMIX}, 0')
        a(f's_cbranch_scc1 {slow}')
        for i in insts: a(i)
        a.label(back)
        self.tail.append((slow, [i + ' sc1' if i.startswith('buffer_') else i for i in insts], back))

    def emit_tail(self):
        a = self.a
        for slow, insts, back in self.tail:
            a.label(slow)
            for i in insts: a(i)
            a(f's_branch {back}')
        self.tail = []
        for t in self.tails: t()
        self.tails = []

    def stamp(self, k, ahead=0):
        if not self.opt.get('stamps'): return
        a = self.a
        l = a.newlabel('Lst')
        a(f'''s_cmp_lg_u32 s{sSTEP}, {self.opt['stamps'] + ahead}
              s_cbranch_scc1 {l}
              {self.opt.get('clock', 's_memtime')} s[{sST+2*k}:{sST+2*k+1}]
              s_waitcnt lgkmcnt(0)''')
        a.label(l)

    def mark(self, k):
        if not self.opt.get('prof'): return
        self.a(f's_memrealtime s[{sST+2*k}:{sST+2*k+1}]')
        self.a('s_waitcnt lgkmcnt(0)')

    def dump_stamps(self):
        self.mark(3)
        if not (self.opt.get('stamps') or self.opt.get('prof')): return
        a = self.a
        if self.opt.get('dbgout'):
            l = a.newlabel('Ldo')
            a(f'''s_and_b32 s{sT0}, s{sC}, 15
                  s_or_b32 s{sT0}, s{sT0}, s{sJ}
                  s_or_b32 s{sT0}, s{sT0}, s{sW}
                  s_cmp_lg_u32 s{sT0}, 0
                  s_cbranch_scc1 {l}
                  s_cmp_ge_u32 s{sC}, 16
                  s_cselect_b32 s{sT0}, s{sST+2}, s{sST+4}
                  s_cselect_b32 s{sT2}, 56, 48
                  s_sub_u32 s{sT0}, s{sT0}, s{sST}
                  s_sub_u32 s{sT1}, s{sST+6}, s{sST}
                  s_mov_b64 exec, 1
                  v_mov_b32 v2, s{sT0}
                  v_mov_b32 v3, s{sT1}
                  v_mov_b32 v4, s{sT2}
                  buffer_store_dwordx2 v[2:3], v4, s[{sDBG}:{sDBG+3}], 0 offen
                  s_mov_b64 exec, -1''')
            a.label(l)
        a(f'''s_lshl_b32 s{sT0}, s{sJ}, 5
              s_add_u32 s{sT0}, s{sT0}, s{sC}
              s_lshl_b32 s{sT0}, s{sT0}, 3
              s_add_u32 s{sT0}, s{sT0}, s{sW}
              s_lshl_b32 s{sT0}, s{sT0}, 6
              s_add_u32 s{sT0}, s{sT0}, {WS_DBG + 0x100000}
              s_mov_b64 exec, -1
              v_mov_b32 v2, 0''')
        for k in range(NSTAMP):
            a(f'v_mov_b32 v3, s{sST+2*k}')
            a(f'buffer_store_dword v3, v2, s[{sWS}:{sWS+3}], s{sT0} offen offset:{4*k}')
        for k in range(4):
            a(f'v_mov_b32 v3, s{98+k}')
            a(f'buffer_store_dword v3, v2, s[{sWS}:{sWS+3}], s{sT0} offen offset:{4*(8+k)}')
        a('s_waitcnt vmcnt(0)')

    def retry(self, label, kind=None):
        a = self.a
        if kind is not None and self.opt.get('stamps'):
            a(f's_add_u32 s{98+kind}, s{98+kind}, 1')
        a(f'''s_sub_u32 s{sBUD}, s{sBUD}, 1
              s_cbranch_scc0 {label}
              s_mov_b32 s{sBUD}, 0''')

    def slots(self):
        a = self.a
        a(f'''s_and_b32 s{sT0}, s{sSTEP}, 3
              s_add_u32 s{sT1}, s{sSTEP}, 1
              s_and_b32 s{sT1}, s{sT1}, 3
              s_xor_b32 s{sT2}, s{sT0}, 2
              s_lshr_b32 s{sT3}, s{sJ}, 1
              s_mul_i32 s{sT3}, s{sT3}, 10240
              s_add_u32 s{sT3}, s{sT3}, {WS_RA}
              s_mul_i32 s{sA_N}, s{sT1}, {RA_SLOT}
              s_add_u32 s{sA_N}, s{sA_N}, s{sT3}
              s_mul_i32 s{sA_R}, s{sT2}, {RA_SLOT}
              s_add_u32 s{sA_R}, s{sA_R}, s{sT3}
              s_mul_i32 s{sT3}, s{sH}, 9216
              s_add_u32 s{sT3}, s{sT3}, {WS_RB}
              s_mul_i32 s{sB_C}, s{sT0}, {RB_SLOT}
              s_add_u32 s{sB_C}, s{sB_C}, s{sT3}
              s_mul_i32 s{sB_R}, s{sT2}, {RB_SLOT}
              s_add_u32 s{sB_R}, s{sB_R}, s{sT3}
              s_and_b32 s{sT0}, s{sCS}, 255
              s_mul_i32 s{sT1}, s{sT0}, 86
              s_lshr_b32 s{sT1}, s{sT1}, 8
              s_mul_i32 s{sC_RD}, s{sT0}, {RC_SLOT}
              s_mul_i32 s{sT2}, s{sT1}, {0x200000 - 3*RC_SLOT}
              s_add_u32 s{sC_RD}, s{sC_RD}, s{sT2}
              s_add_u32 s{sC_RD}, s{sC_RD}, {WS_RC}
              s_xor_b32 s{sT1}, s{sPOL}, s{sT1}
              s_and_b32 s{sT1}, s{sT1}, 1
              s_lshl_b32 s{sT1}, s{sT1}, 13
              s_add_u32 s{sC_RD}, s{sC_RD}, s{sT1}
              s_lshl_b32 s{sT3}, s{sH}, 8
              s_add_u32 s{sC_W}, s{sC_RD}, s{sT3}
              s_lshl_b32 s{sPOR}, s{sCS}, 8
              s_and_b32 s{sPOR}, s{sPOR}, 0x10000
              s_xor_b32 s{sPADD}, s{sPOR}, 0x10000
              s_mul_i32 s{sO_C}, s{sSTEP}, {32*12288}
              s_add_u32 s{sO_C}, s{sO_C}, {WS_O}''')

    def next_step(self):
        a = self.a
        a(f'''s_add_u32 s{sSTEP}, s{sSTEP}, 1
              s_add_u32 s{sCS}, s{sCS}, 1
              s_and_b32 s{sT0}, s{sCS}, 255
              s_xor_b32 s{sT1}, s{sCS}, {256 + RC_N}
              s_cmp_eq_u32 s{sT0}, {RC_N}
              s_cselect_b32 s{sCS}, s{sT1}, s{sCS}''')
        self.slots()

    def load_pair(self, WA, WB, nks, voff, rowstride, tmp, between=None):
        a = self.a
        items = []
        for ks in range(nks):
            for R in range(8):
                hi, p = R >> 2, R & 3
                b, tt = p & 1, p >> 1
                d = 64 * ks + 32 * hi + 8 * b + 2 * tt
                items.append((WA + ks * 8 + R, WB + ks * 8 + R, d))
        def issue(it):
            ra, rb, d = it
            a(f's_mov_b32 s{sT0}, {d * rowstride}')
            a(f'buffer_load_dword v{ra}, v{voff}, s[{sT}:{sT+3}], s{sT0} offen' + self.wnt)
            a(f's_mov_b32 s{sT1}, {(d + 1) * rowstride}')
            a(f'buffer_load_dword v{rb}, v{voff}, s[{sT}:{sT+3}], s{sT1} offen' + self.wnt)
        def fix(it):
            ra, rb, d = it
            a(f'v_perm_b32 v{tmp}, v{rb}, v{ra}, s{sSELLO}')
            a(f'v_perm_b32 v{rb}, v{rb}, v{ra}, s{sSELHI}')
            a(f'v_mov_b32 v{ra}, v{tmp}')
        groups = [items[i:i + 8] for i in range(0, len(items), 8)]
        groups = [items[i:i + 4] for i in range(0, len(items), 4)]
        depth = 7
        for gi in range(min(depth, len(groups))):
            for it in groups[gi]: issue(it)
        if between:
            assert len(groups) <= depth
            between()
            a('s_waitcnt vmcnt(0)')
        for gi in range(len(groups)):
            inflight = min(len(groups), gi + depth) - gi - 1
            a(f's_waitcnt vmcnt({8 * inflight})')
            for it in groups[gi]: fix(it)
            if gi + depth < len(groups):
                for it in groups[gi + depth]: issue(it)

    def load_single(self, W, nks, voff, vsel, rowstride, tmps):
        a = self.a
        items = []
        for ks in range(nks):
            for R in range(8):
                hi, p = R >> 2, R & 3
                b, tt = p & 1, p >> 1
                items.append((W + ks * 8 + R, 64 * ks + 32 * hi + 8 * b + 2 * tt))
        groups = [items[i:i + 4] for i in range(0, len(items), 4)]
        depth = 7
        def issue(gi):
            for k, (r, d) in enumerate(groups[gi]):
                t = tmps + (gi % depth) * 4 + k
                a(f's_mov_b32 s{sT0}, {d * rowstride}')
                a(f'buffer_load_dword v{r}, v{voff}, s[{sT}:{sT+3}], s{sT0} offen' + self.wnt)
                a(f's_mov_b32 s{sT1}, {(d + 1) * rowstride}')
                a(f'buffer_load_dword v{t}, v{voff}, s[{sT}:{sT+3}], s{sT1} offen' + self.wnt)
        for gi in range(min(depth, len(groups))): issue(gi)
        for gi in range(len(groups)):
            inflight = min(len(groups), gi + depth) - gi - 1
            a(f's_waitcnt vmcnt({8 * inflight})')
            for k, (r, d) in enumerate(groups[gi]):
                t = tmps + (gi % depth) * 4 + k
                a(f'v_perm_b32 v{r}, v{t}, v{r}, v{vsel}')
            if gi + depth < len(groups): issue(gi + depth)

    def load_w(self, WA, WB, nks, rowstride, sbase, vcol, tmps, vsel=None):
        a = self.a
        NS = 5
        vG, vR, vA, X = tmps, tmps + 1, tmps + 2, tmps + 4
        sSl = sLB
        a(f"""s_min_u32 s{sSl}, s{sW}, 4
              s_mul_i32 s{sSl}, s{sSl}, {4096*NS}
              s_add_u32 s{sSl}, s{sSl}, {LBUF}
              v_lshrrev_b32 v{vG}, 2, v{self.vL}
              s_mov_b32 s{sT1}, {rowstride}
              v_mul_lo_u32 v{vG}, v{vG}, s{sT1}
              v_and_b32 v{vR}, 3, v{self.vL}
              v_lshl_add_u32 v{vG}, v{vR}, 4, v{vG}
              v_lshrrev_b32 v{vR}, 1, v{self.vQ}
              v_lshlrev_b32 v{vR}, 10, v{vR}
              v_and_b32 v{vA}, 1, v{self.vQ}
              v_lshl_add_u32 v{vR}, v{vA}, 8, v{vR}
              v_add_u32 v{vR}, v{vR}, v{vcol}
              v_add_u32 v{vR}, s{sSl}, v{vR}""")
        def issue(ks):
            for i in range(4):
                a(f's_add_u32 m0, s{sSl}, {(ks % NS)*4096 + i*1024}')
                a(f's_add_u32 s{sT1}, s{sbase}, {(64*ks + 16*i)*rowstride}')
                a(f'buffer_load_dwordx4 v{vG}, s[{sT}:{sT+3}], s{sT1} offen' + (' nt' if self.opt.get('w_nt') == 1 else '') + ' lds')
        for ks in range(min(NS, nks)): issue(ks)
        for ks in range(nks):
            a(f's_waitcnt vmcnt({4 * (min(nks, ks + NS) - ks - 1)})')
            for hi in range(2):
                a(f'v_add_u32 v{vA+hi}, {(ks % NS)*4096 + hi*2048}, v{vR}')
            for R in range(8):
                hi, p = R >> 2, R & 3
                row = 8 * (p & 1) + 2 * (p >> 1)
                a(f'ds_read2_b32 v[{X+2*R}:{X+2*R+1}], v{vA+hi} offset0:{16*row} offset1:{16*(row+1)}')
            a('s_waitcnt lgkmcnt(0)')
            if ks + NS < nks: issue(ks + NS)
            for R in range(8):
                if WB is None:
                    a(f'v_perm_b32 v{WA+8*ks+R}, v{X+2*R+1}, v{X+2*R}, v{vsel}')
                else:
                    a(f'v_perm_b32 v{WA+8*ks+R}, v{X+2*R+1}, v{X+2*R}, s{sSELLO}')
                    a(f'v_perm_b32 v{WB+8*ks+R}, v{X+2*R+1}, v{X+2*R}, s{sSELHI}')

    def lanes(self, al):
        a = self.a
        self.vL, self.vN, self.vQ = al(), al(), al()
        self.vT0, self.vT1, self.vT2 = al(), al(), al()
        self.vMask = 0
        a(f'''v_and_b32 v{self.vL}, 63, v0
              v_and_b32 v{self.vN}, 15, v0
              v_bfe_u32 v{self.vQ}, v0, 4, 2
              v_mov_b32 v0, 0xfffe0000''')

    def frag_addr(self, dst):
        a = self.a
        a(f'''v_lshlrev_b32 v{dst}, 8, v{self.vQ}
              v_bfe_u32 v{self.vT0}, v{self.vN}, 1, 1
              v_lshl_add_u32 v{dst}, v{self.vT0}, 7, v{dst}
              v_lshrrev_b32 v{self.vT0}, 2, v{self.vN}
              v_lshl_add_u32 v{dst}, v{self.vT0}, 5, v{dst}
              v_and_b32 v{self.vT0}, 1, v{self.vN}
              v_lshl_add_u32 v{dst}, v{self.vT0}, 4, v{dst}''')

    def idx_reg(self, dst):
        a = self.a
        a(f'''v_and_b32 v{self.vT0}, 2, v{self.vN}
              v_cmp_eq_u32 vcc, 2, v{self.vT0}
              v_mov_b32 v{dst}, 0x44444444
              v_mov_b32 v{self.vT0}, 0xeeeeeeee
              s_nop 1
              v_cndmask_b32 v{dst}, v{dst}, v{self.vT0}, vcc''')

    def wrow_lane(self, dst, rowstride):
        a = self.a
        a(f'''v_lshrrev_b32 v{self.vT0}, 1, v{self.vQ}
              v_lshlrev_b32 v{self.vT0}, 4, v{self.vT0}
              v_and_b32 v{self.vT1}, 1, v{self.vQ}
              v_lshl_add_u32 v{self.vT0}, v{self.vT1}, 2, v{self.vT0}
              s_mov_b32 s{sT0}, {rowstride}
              v_mul_lo_u32 v{dst}, v{self.vT0}, s{sT0}''')

    def wait_all_registered(self):
        a = self.a
        a(f's_setprio {self.prio}')
        a('s_barrier')
        w = a.newlabel('Lp0')
        a(f's_cmp_lg_u32 s{sW}, 0')
        a(f's_cbranch_scc1 {w}')
        wait_registered(a, self.opt, self.vT0, self.vT1, self.vL, True)
        a(f'''s_lshl_b32 s{sPOL}, s{sPOL}, 1
              s_or_b32 s{sPOL}, s{sPOL}, s{sMIX}
              v_mov_b32 v{self.vT0}, s{sPOL}
              v_mov_b32 v{self.vT1}, {LR + 64}
              ds_write_b32 v{self.vT1}, v{self.vT0}
              s_waitcnt lgkmcnt(0)''')
        a.label(w)
        a(f'''s_barrier
              v_mov_b32 v{self.vT1}, {LR + 64}
              ds_read_b32 v{self.vT0}, v{self.vT1}
              s_waitcnt lgkmcnt(0)
              v_readfirstlane_b32 s{sPOL}, v{self.vT0}
              s_and_b32 s{sMIX}, s{sPOL}, 1
              s_lshr_b32 s{sPOL}, s{sPOL}, 1''')
        if self.opt.get('pol') is not None: pass
        self.slots()

    def wait_tiles(self, seg, first, nflags):
        if not self.opt.get('fused'): return
        a = self.a
        lp, ok, skip = a.newlabel('Lwt'), a.newlabel('Lwtok'), a.newlabel('Lwts')
        T0, T1 = self.vT0, self.vT1
        a(f'''s_and_b32 s{sT0}, s{seg}, 7
              s_cbranch_scc1 {skip}
              s_lshr_b32 s{sT0}, s{seg}, 3
              s_mul_i32 s{sT0}, s{sT0}, 48
              s_lshl_b32 s{sT1}, s{sJ}, 9
              s_add_u32 s{sT0}, s{sT0}, s{sT1}
              s_and_b32 s{sT1}, s{sH}, 3
              s_lshl_b32 s{sT1}, s{sT1}, 2
              s_add_u32 s{sT0}, s{sT0}, s{sT1}
              s_add_u32 s{sT0}, s{sT0}, {WS_FLAG + 16*first}
              v_lshlrev_b32 v{T1}, 4, v{self.vL}
              s_mov_b64 exec, {(1 << nflags) - 1}''')
        a.label(lp)
        a(f'''buffer_load_dword v{T0}, v{T1}, s[{sWS}:{sWS+3}], s{sT0} offen sc1
              s_waitcnt vmcnt(0)
              v_cmp_eq_u32 vcc, 0, v{T0}
              s_cbranch_vccz {ok}
              s_sleep {self.opt.get('t_sleep', 2)}''')
        self.retry(lp)
        a.label(ok)
        a('s_mov_b64 exec, -1')
        a.label(skip)

    def o_flag(self, back):
        if not self.opt.get('fused'): return
        a = self.a
        if self.opt.get('no_oflag'): return
        a(f'''s_lshl_b32 s{sT0}, s{sJ}, 4
              s_add_u32 s{sT0}, s{sT0}, s{sC}
              s_lshl_b32 s{sT0}, s{sT0}, 7
              s_add_u32 s{sT0}, s{sT0}, {WS_OFLAG}
              s_add_u32 s{sT1}, s{sSTEP}, {1 - back}
              v_mov_b32 v{self.vT0}, s{sT1}
              v_mov_b32 v{self.vT1}, 0
              s_mov_b64 exec, 1''')
        a(f'buffer_store_dword v{self.vT0}, v{self.vT1}, s[{sWS}:{sWS+3}], s{sT0} offen sc1')
        a('s_mov_b64 exec, -1')

    def poll2(self, vOff, soff, lds, sets, kind, gap, after):
        a = self.a
        t, t2 = self.vT0, self.vT1
        n = len(sets)
        def issue(R):
            a(f'''buffer_load_dwordx4 v[{R}:{R+3}], v{vOff}, s[{sWS}:{sWS+3}], s{soff} offen sc1
                  buffer_load_dwordx4 v[{R+4}:{R+7}], v{vOff}, s[{sWS}:{sWS+3}], s{soff} offen offset:1024 sc1''')
        def check(R, br):
            a(f'''ds_write_b128 v{vOff}, v[{R}:{R+3}] offset:{lds}
                  ds_write_b128 v{vOff}, v[{R+4}:{R+7}] offset:{lds+1024}
                  v_max3_u32 v{t}, v{R}, v{R+1}, v{R+2}
                  v_max3_u32 v{t2}, v{R+3}, v{R+4}, v{R+5}
                  v_max3_u32 v{t}, v{t}, v{R+6}, v{R+7}
                  v_max_u32 v{t}, v{t}, v{t2}
                  v_cmp_eq_u32 vcc, -1, v{t}
                  {br}''')
        lp, ok = a.newlabel('Lp'), a.newlabel('Lpok')
        for k in range(n):
            issue(sets[k])
            if gap and k < n - 1: a(f's_sleep {gap}')
        a(f's_waitcnt vmcnt({2 * (n - 1)})')
        if kind == 0 and self.opt.get('fine'): self.stamp(3)
        check(sets[0], f's_cbranch_vccnz {lp}')
        after()
        a.label(ok)
        def tail():
            a.label(lp)
            for k in range(n):
                nxt = a.newlabel('Lpn')
                if self.opt.get('stamps'): a(f's_add_u32 s{98+kind}, s{98+kind}, 1')
                a('s_mov_b64 exec, vcc')
                issue(sets[k])
                a(f's_waitcnt vmcnt({2 * (n - 1)})')
                check(sets[(k + 1) % n], f's_cbranch_vccnz {nxt}')
                a('s_mov_b64 exec, -1')
                after()
                a(f's_branch {ok}')
                a.label(nxt)
            self.retry(lp)
            a('s_mov_b64 exec, -1')
            after()
            a(f's_branch {ok}')
        self.tails.append(tail)

    def a_poll(self, vAoff, sets, first=False):
        a = self.a
        if first:
            a(f's_lshr_b32 s{sA_P}, s{sJ}, 1')
            a(f's_mul_i32 s{sA_P}, s{sA_P}, 10240')
            a(f's_add_u32 s{sA_P}, s{sA_P}, {WS_RA}')
        else:
            a(f's_mov_b32 s{sA_P}, s{sA_N}')
            self.next_step()
        a('s_barrier')
        if self.opt.get('a_first'): a(f"s_sleep {self.opt['a_first']}")
        def after():
            a('s_waitcnt lgkmcnt(0)')
            if not first: self.stamp(4, 1)
            a('s_barrier')
        self.poll2(vAoff, sA_P, LM, sets[:self.opt.get('a_depth', 1)], 2, self.opt.get('a_gap', 0), after)

    def mem0_load(self, vAoff, R):
        a = self.a
        srd(a, ptr(1), 10240)
        T0, T1 = self.vT0, self.vT1
        a(f'''v_bfe_u32 v{T0}, v{vAoff}, 4, 3
              v_mul_u32_u24 v{T0}, 1280, v{T0}
              v_lshrrev_b32 v{T1}, 7, v{vAoff}
              v_lshl_add_u32 v{T0}, v{T1}, 4, v{T0}
              buffer_load_dwordx4 v[{R}:{R+3}], v{T0}, s[{sT}:{sT+3}], 0 offen
              buffer_load_dwordx4 v[{R+4}:{R+7}], v{T0}, s[{sT}:{sT+3}], 0 offen offset:128
              s_waitcnt vmcnt(0)
              ds_write_b128 v{vAoff}, v[{R}:{R+3}] offset:{LM}
              ds_write_b128 v{vAoff}, v[{R+4}:{R+7}] offset:{LM+1024}
              s_waitcnt lgkmcnt(0)''')

    def a_off(self, dst):
        a = self.a
        a(f'''s_sub_u32 s{sT0}, s{sW}, 3
              s_lshl_b32 s{sT0}, s{sT0}, 11
              v_lshlrev_b32 v{dst}, 4, v{self.vL}
              v_add_u32 v{dst}, s{sT0}, v{dst}''')

    def dma_seg_regs(self, seg_expr_sgpr):
        a = self.a
        sg = seg_expr_sgpr
        a(f'''s_lshl_b32 s{sT0}, s{sH}, 6
              s_add_u32 s{sT0}, s{sT0}, s{sg}
              s_mul_i32 s{sKQ}, s{sT0}, 12288
              s_add_u32 s{sVX}, s{sKQ}, {WS_VT}
              s_mul_i32 s{sT0}, s{sg}, 86
              s_lshr_b32 s{sT0}, s{sT0}, 8
              s_mul_i32 s{sT0}, s{sT0}, 3
              s_sub_u32 s{sT0}, s{sg}, s{sT0}
              s_mul_i32 s{sLB}, s{sT0}, {LBUF_SZ}
              s_add_u32 s{sLB}, s{sLB}, {LBUF}''')

    def dma12(self, v, base, lds, pieces):
        a = self.a
        for k in pieces:
            a(f'''s_add_u32 s{sT2}, s{sG}, {k}
                  s_and_b32 s{sT2}, s{sT2}, 3
                  s_mul_i32 s{sT2}, s{sT2}, 3072
                  s_add_u32 s{sT1}, s{sLB}, s{sT2}
                  s_add_u32 m0, s{sT1}, {lds}
                  s_add_u32 s{sT1}, s{sKQ}, s{sT2}
                  s_add_u32 s{sT1}, s{sT1}, {base}''')
            for t in range(3):
                a(f'buffer_load_dwordx4 v{v}, s[{sWS}:{sWS+3}], s{sT1} offen offset:{1024*t} sc1 lds')

    def dma_q(self, vQx):
        a = self.a
        for p in range(3):
            a(f's_add_u32 m0, s{sLB}, {LQ_OFF + p*1024}')
            a(f's_add_u32 s{sT1}, s{sKQ}, {WS_Q + p*2048}')
            a(f'buffer_load_dwordx4 v{vQx}, s[{sWS}:{sWS+3}], s{sT1} offen sc1 lds')

    def stage(self, own, rest, first, nflags):
        a = self.a
        l1, l2 = a.newlabel('Lsg'), a.newlabel('Lsg')
        def part(ahead, fn, lab, wait):
            a(f"""s_add_u32 s{sT3}, s{sSTEP}, {ahead}
                  s_cmp_ge_u32 s{sT3}, 64
                  s_cbranch_scc1 {lab}""")
            if wait: self.wait_tiles(sT3, first, nflags)
            self.dma_seg_regs(sT3)
            if not self.opt.get('no_dma'): fn()
            a.label(lab)
        if self.opt.get('own_last'):
            part(2, rest, l2, False); part(3, own, l1, True)
        else:
            part(3, own, l1, True); part(2, rest, l2, False)

    def stage_first(self, own, rest, first, nflags, later=0):
        a = self.a
        self.wait_tiles(sSTEP, first, nflags)
        for sg in range(3):
            a(f's_mov_b32 s{sT3}, {sg}')
            self.dma_seg_regs(sT3); own()
            if sg < 2: rest()
        a(f's_waitcnt vmcnt({later})' if self.opt.get('first_flag') else 's_waitcnt vmcnt(0)')

    def wo_stage(self, pairs, vFrag, vIdx, F, vCoff, RR, skip):
        a = self.a
        for ks in range(3):
            a(f'ds_read_b128 v[{F+4*ks}:{F+4*ks+3}], v{vFrag} offset:{LO + 1024*ks}')
        a(f'v_lshlrev_b32 v{self.vT0}, 3, v{self.vQ}')
        a(f'ds_read_b64 v[{RR}:{RR+1}], v{self.vT0} offset:{LR}')
        a(f's_cmp_eq_u32 s{sSTEP}, 63')
        a(f's_cbranch_scc1 {skip}')
        for ks in range(3):
            a(f's_waitcnt lgkmcnt({3-ks})')
            for (WA, WB, TA, TB, coff) in pairs:
                a(f'v_smfmac_f32_16x16x64_bf16 v[{TA}:{TA+3}], v[{F+4*ks}:{F+4*ks+3}], v[{WA+8*ks}:{WA+8*ks+7}], v{vIdx}')
                a(f'v_smfmac_f32_16x16x64_bf16 v[{TB}:{TB+3}], v[{F+4*ks}:{F+4*ks+3}], v[{WB+8*ks}:{WB+8*ks+7}], v{vIdx}')
        a('s_waitcnt lgkmcnt(0)')
        a('s_nop 5')
        for (WA, WB, TA, TB, coff) in pairs:
            self.pair_epilogue(TA, TB, RR)
            a(f'buffer_store_dword v{TA}, v{vCoff}, s[{sWS}:{sWS+3}], s{sC_W} offen offset:{coff} sc1')
            a(f'buffer_store_dword v{TB}, v{vCoff}, s[{sWS}:{sWS+3}], s{sC_W} offen offset:{coff+128} sc1')

    def pair_epilogue(self, TA, TB, RR=None):
        a = self.a
        a(f"""v_pk_add_f32 v[{TA}:{TA+1}], v[{TA}:{TA+1}], v[{TA+2}:{TA+3}]
              v_pk_add_f32 v[{TB+2}:{TB+3}], v[{TB}:{TB+1}], v[{TB+2}:{TB+3}]""")
        if RR is not None:
            a(f"""v_pk_mul_f32 v[{TA}:{TA+1}], v[{TA}:{TA+1}], v[{RR}:{RR+1}]
                  v_pk_mul_f32 v[{TB+2}:{TB+3}], v[{TB+2}:{TB+3}], v[{RR}:{RR+1}]
                  v_add_u32 v{TA}, s{sPADD}, v{TA}
                  v_add_u32 v{TA+1}, s{sPADD}, v{TA+1}
                  v_and_or_b32 v{TA}, v{TA}, v{self.vMask}, s{sPOR}
                  v_and_or_b32 v{TA+1}, v{TA+1}, v{self.vMask}, s{sPOR}
                  v_cvt_pk_bf16_f32 v{TA}, v{TA}, v{TB+2}
                  v_cvt_pk_bf16_f32 v{TB}, v{TA+1}, v{TB+3}""")
            return
        a(f"""v_cvt_pk_bf16_f32 v{TA}, v{TA}, v{TB+2}
              v_cvt_pk_bf16_f32 v{TB}, v{TA+1}, v{TB+3}
              v_min_u32 v{TA}, -2, v{TA}
              v_min_u32 v{TB}, -2, v{TB}""")

    def zero(self, r, n):
        for k in range(n): self.a(f'v_mov_b32 v{r+k}, 0')

    def c_off(self, dst, pw_sgpr_or_int):
        a = self.a
        T0 = self.vT0
        a(f'''v_lshrrev_b32 v{dst}, 3, v{self.vN}
              v_lshlrev_b32 v{dst}, 14, v{dst}
              v_bfe_u32 v{T0}, v{self.vN}, 2, 1
              v_lshl_add_u32 v{dst}, v{T0}, 6, v{dst}
              v_lshl_add_u32 v{dst}, v{self.vQ}, 4, v{dst}
              v_and_b32 v{T0}, 3, v{self.vN}
              v_lshl_add_u32 v{dst}, v{T0}, 2, v{dst}
              s_mul_i32 s{sT0}, s{sG}, 163840''')
        if isinstance(pw_sgpr_or_int, int):
            a(f's_add_u32 s{sT0}, s{sT0}, {32768*pw_sgpr_or_int}')
        else:
            a(f's_lshl_b32 s{sT1}, {pw_sgpr_or_int}, 15')
            a(f's_add_u32 s{sT0}, s{sT0}, s{sT1}')
        a(f'v_add_u32 v{dst}, s{sT0}, v{dst}')

    def wo_weights(self, WA, WB, pw, vtmp, tmp, between=None):
        a = self.a
        srd(a, ptr(5), NH * DH * DM * 2)
        self.wrow_lane(vtmp, 1280)
        a(f'''s_mul_i32 s{sT0}, s{sH}, {DH*DM*2}
              s_mul_i32 s{sT1}, s{sG}, 320
              s_add_u32 s{sT0}, s{sT0}, s{sT1}''')
        if isinstance(pw, int):
            a(f's_add_u32 s{sT0}, s{sT0}, {64*pw}')
        else:
            a(f's_lshl_b32 s{sT1}, {pw}, 6')
            a(f's_add_u32 s{sT0}, s{sT0}, s{sT1}')
        a(f'''v_lshl_add_u32 v{vtmp}, v{self.vN}, 2, v{vtmp}
              v_add_u32 v{vtmp}, s{sT0}, v{vtmp}''')
        self.load_pair(WA, WB, 3, vtmp, 1280, tmp, between)

    def finish(self):
        self.dump_stamps()
        self.a('s_endpgm')

    def touch_weights(self):
        a = self.a
        T0, T1 = self.vT0, self.vT1
        a(f's_mov_b32 m0, {SWEEP_LDS}')
        srd(a, ptr(4), DM * NH * DH * 2)
        a(f"""s_mov_b32 s{sT0}, 12288
              v_mul_lo_u32 v{T0}, v{self.vL}, s{sT0}
              s_mul_i32 s{sT0}, s{sH}, 384
              s_mul_i32 s{sT1}, s{sG}, 96
              s_add_u32 s{sT0}, s{sT0}, s{sT1}
              s_mul_i32 s{sT1}, s{sRED}, {64*12288}
              s_add_u32 s{sT0}, s{sT0}, s{sT1}""")
        for i in range(4):
            a(f'buffer_load_dword v{T0}, s[{sT}:{sT+3}], s{sT0} offen lds')
            a(f'buffer_load_dword v{T0}, s[{sT}:{sT+3}], s{sT0} offen offset:92 lds')
            if i < 3: a(f's_add_u32 s{sT0}, s{sT0}, {192*12288}')
        srd(a, ptr(5), NH * DH * DM * 2)
        a(f"""v_mul_u32_u24 v{T1}, 1280, v{self.vL}
              s_mul_i32 s{sT0}, s{sH}, {DH*DM*2}
              s_mul_i32 s{sT1}, s{sG}, 320
              s_add_u32 s{sT0}, s{sT0}, s{sT1}
              s_mul_i32 s{sT1}, s{sRED}, {64*1280}
              s_add_u32 s{sT0}, s{sT0}, s{sT1}""")
        for off in (0, 128, 256, 316):
            a(f'buffer_load_dword v{T1}, s[{sT}:{sT+3}], s{sT0} offen offset:{off} lds')

    def c_page_init(self, R, vLin):
        a = self.a
        a(f's_add_u32 s{sT2}, s{sCI}, 4096')
        for k in range(5):
            a(f'buffer_store_dwordx4 v[{R}:{R+3}], v{vLin}, s[{sWS}:{sWS+3}], s{sT2 if k == 4 else sCI} offen offset:{1024*(k&3)} sc1')
        a(f's_add_u32 s{sCI}, s{sCI}, 0x200000')

    def init_job(self, R):
        a = self.a
        vLin = R + 20
        sU = sA_P
        a(f"""s_lshl_b32 s{sU}, s{sJ}, 4
              s_add_u32 s{sU}, s{sU}, s{sC}
              s_mul_i32 s{sU}, s{sU}, 3
              s_add_u32 s{sU}, s{sU}, s{sRED}
              v_lshlrev_b32 v{vLin}, 4, v{self.vL}""")
        for k in range(4): a(f'v_mov_b32 v{R+k}, -1')
        for k in range(4): a(f'v_mov_b32 v{R+4+k}, 0')
        lc = a.newlabel('Lin')
        a(f"""s_cmp_ge_u32 s{sU}, 320
              s_cbranch_scc1 {lc}
              s_lshl_b32 s{sT0}, s{sU}, 11
              s_add_u32 s{sT0}, s{sT0}, {WS_RC}
              buffer_store_dwordx4 v[{R}:{R+3}], v{vLin}, s[{sWS}:{sWS+3}], s{sT0} offen sc1
              buffer_store_dwordx4 v[{R}:{R+3}], v{vLin}, s[{sWS}:{sWS+3}], s{sT0} offen offset:1024 sc1""")
        a.label(lc)
        l1, l2 = a.newlabel('Lin'), a.newlabel('Lin')
        a(f"""s_cmp_ge_u32 s{sU}, 368
              s_cbranch_scc1 {l1}
              s_lshl_b32 s{sT0}, s{sU}, 12
              s_add_u32 s{sT0}, s{sT0}, {WS_RA}""")
        l0 = a.newlabel('Lin')
        a(f"""s_cmp_lt_u32 s{sU}, 20
              s_cbranch_scc1 {l0}""")
        for k in range(4):
            a(f'buffer_store_dwordx4 v[{R}:{R+3}], v{vLin}, s[{sWS}:{sWS+3}], s{sT0} offen offset:{1024*k} sc1')
        a(f's_branch {l1}')
        a.label(l0)
        srd(a, ptr(1), 10240)
        a(f's_lshl_b32 s{sT1}, s{sU}, 12')
        for k in range(4):
            D = R + 24 + 4*k
            a(f"""s_add_u32 s{sT2}, s{sT1}, {1024*k}
                  s_lshr_b32 s{sT3}, s{sT2}, 10
                  s_mul_i32 s{sT3}, s{sT3}, 205
                  s_lshr_b32 s{sT3}, s{sT3}, 11
                  s_mul_i32 s{sT3}, s{sT3}, 10240
                  s_sub_u32 s{sT2}, s{sT2}, s{sT3}
                  s_lshr_b32 s{sT2}, s{sT2}, 3
                  v_lshrrev_b32 v{R+8}, 2, v{self.vN}
                  v_and_b32 v{R+9}, 1, v{self.vN}
                  v_lshl_add_u32 v{R+8}, v{R+8}, 1, v{R+9}
                  v_mul_u32_u24 v{R+8}, 1280, v{R+8}
                  v_lshl_add_u32 v{R+8}, v{self.vQ}, 5, v{R+8}
                  v_bfe_u32 v{R+9}, v{self.vN}, 1, 1
                  v_lshl_add_u32 v{R+8}, v{R+9}, 4, v{R+8}
                  buffer_load_dwordx4 v[{D}:{D+3}], v{R+8}, s[{sT}:{sT+3}], s{sT2} offen""")
        a('s_waitcnt vmcnt(0)')
        for k in range(4):
            D = R + 24 + 4*k
            for e in range(4): a(f'v_min_u32 v{D+e}, -2, v{D+e}')
            a(f'buffer_store_dwordx4 v[{D}:{D+3}], v{vLin}, s[{sWS}:{sWS+3}], s{sT0} offen offset:{1024*k} sc1')
        a('s_waitcnt vmcnt(0)')
        a.label(l1)
        a(f"""s_sub_u32 s{sT0}, s{sU}, 4
              s_cmp_ge_u32 s{sT0}, 252
              s_cbranch_scc1 {l2}
              s_lshl_b32 s{sT0}, s{sU}, 10
              s_add_u32 s{sT0}, s{sT0}, {WS_FLAG}
              buffer_store_dwordx4 v[{R+4}:{R+7}], v{vLin}, s[{sWS}:{sWS+3}], s{sT0} offen sc1""")
        a.label(l2)

    def arrive_init(self, R):
        t1, t2 = R + 14, R + 15
        self.a(f"""s_waitcnt vmcnt(0)
              v_mov_b32 v{t1}, 1
              v_mov_b32 v{t2}, 128
              s_mov_b64 exec, 1
              buffer_atomic_add v{t1}, v{t2}, s[{sDBG}:{sDBG+3}], 0 offen sc1
              s_mov_b64 exec, -1""")

    def role_qk(self):
        a = self.a
        al = Alloc(1, 256)
        self.lanes(al)
        WA, WB = al(80, 4), al(80, 4)
        M = al(40, 4)
        TA, TB = al(4, 4), al(4, 4)
        SEL = al(4, 4)
        RC = al(2)
        AC2 = al(4, 2)
        vFrag, vIdx, vB, vAst, vSent = al(3, 1), al(), al(), al(), al(2)
        T0, T1, T2 = self.vT0, self.vT1, self.vT2
        a(f'v_lshlrev_b32 v{vFrag}, 4, v{self.vL}'); self.idx_reg(vIdx)
        a(f'v_add_u32 v{vFrag+1}, 4096, v{vFrag}')
        a(f'v_add_u32 v{vFrag+2}, 8192, v{vFrag}')
        a(f'''s_mul_i32 s{sT2}, s{sG}, 3
              s_add_u32 s{sT2}, s{sT2}, s{sW}
              s_cmp_ge_u32 s{sT2}, 6
              s_cselect_b32 s{sT}, s{ptr(3)}, s{ptr(2)}
              s_cselect_b32 s{sT+1}, s{ptr(3)+1}, s{ptr(2)+1}
              s_cselect_b32 s{sT1}, 6, 0
              s_lshl_b32 s{sT3}, s{sT2}, 9
              s_sub_u32 s{sT2}, s{sT2}, s{sT1}
              s_mov_b32 s{sT+2}, {DM*NH*DH*2}
              s_mov_b32 s{sT+3}, 0x20000
              s_lshl_b32 s{sT2}, s{sT2}, 6
              v_lshlrev_b32 v{vB}, 7, v{self.vQ}
              v_lshl_add_u32 v{vB}, v{self.vN}, 2, v{vB}
              v_add_u32 v{vB}, s{sT3}, v{vB}''')
        a(f'''v_lshlrev_b32 v{T0}, 1, v{self.vN}
              v_and_b32 v{T1}, 0x13, v{T0}
              v_and_b32 v{T2}, 4, v{T0}
              v_lshl_add_u32 v{T1}, v{T2}, 1, v{T1}
              v_and_b32 v{T2}, 8, v{T0}
              v_lshrrev_b32 v{T2}, 1, v{T2}
              v_add_u32 v{T1}, v{T1}, v{T2}
              v_lshlrev_b32 v{T2}, 1, v{T1}
              s_mul_i32 s{sT0}, s{sH}, 384
              s_add_u32 s{sT0}, s{sT0}, s{sT2}''')
        self.load_w(WA, WB, 10, 12288, sT0, T2, M)
        a(f'''s_and_b32 s{sT0}, s{sJ}, 1
              s_lshl_b32 s{sT0}, s{sT0}, 4
              s_add_u32 s{sT0}, s{sT0}, s{sC}
              s_lshl_b32 s{sT1}, s{sW}, 5
              s_add_u32 s{sT0}, s{sT0}, s{sT1}
              s_lshr_b32 s{sRED}, s{sT0}, 1
              s_and_b32 s{sT2}, s{sT0}, 1
              s_lshl_b32 s{sT0}, s{sRED}, 8
              s_lshl_b32 s{sT3}, s{sT2}, 4
              s_add_u32 s{sT0}, s{sT0}, s{sT3}
              s_lshl_b32 s{sT1}, s{sRED}, 14
              s_lshl_b32 s{sT3}, s{sT2}, 7
              s_add_u32 s{sT1}, s{sT1}, s{sT3}
              v_lshlrev_b32 v{RC}, 8, v{self.vQ}
              v_lshrrev_b32 v{T0}, 3, v{self.vN}
              v_lshl_add_u32 v{RC}, v{T0}, 10, v{RC}
              v_and_b32 v{T0}, 7, v{self.vN}
              v_lshl_add_u32 v{RC}, v{T0}, 4, v{RC}
              v_add_u32 v{RC}, s{sT1}, v{RC}
              v_add_u32 v{RC+1}, 4096, v{RC}
              v_bfe_u32 v{T0}, v{self.vN}, 2, 1
              v_lshlrev_b32 v{vAst}, 5, v{T0}
              v_and_b32 v{T0}, 3, v{self.vN}
              v_lshl_add_u32 v{vAst}, v{T0}, 6, v{vAst}
              v_lshl_add_u32 v{vAst}, v{self.vQ}, 3, v{vAst}
              v_add_u32 v{vAst}, s{sT0}, v{vAst}
              s_mov_b32 s{sMA}, 0x00ff00ff
              s_mov_b32 s{sMA+1}, 0''')
        a(f'''s_nop 0
              v_mov_b32 v{vSent}, -1
              v_mov_b32 v{vSent+1}, -1''')
        for p in range(4):
            a(f'''v_mov_b32 v{SEL+p}, 0
                  v_mov_b32 v{T0}, 0x3f80
                  v_cmp_eq_u32 vcc, {2*p}, v{self.vN}
                  s_nop 1
                  v_cndmask_b32 v{SEL+p}, v{SEL+p}, v{T0}, vcc
                  v_mov_b32 v{T0}, 0x3f800000
                  v_cmp_eq_u32 vcc, {2*p+1}, v{self.vN}
                  s_nop 1
                  v_cndmask_b32 v{SEL+p}, v{SEL+p}, v{T0}, vcc''')
        self.zero(TA, 8)
        self.mark(1)
        self.wait_all_registered()
        a('s_barrier')
        self.mark(2)
        loop, end = a.newlabel('Lqk'), a.newlabel('Lqkend')
        a('s_barrier')
        a.label(loop)
        a('s_barrier')
        self.stamp(0)
        for ks in range(10):
            a(f'ds_read_b128 v[{M+4*ks}:{M+4*ks+3}], v{vFrag} offset:{LM + 1024*ks}')
        for ks in range(10):
            a(f's_waitcnt lgkmcnt({9-ks})')
            a(f'v_smfmac_f32_16x16x64_bf16 v[{TA}:{TA+3}], v[{M+4*ks}:{M+4*ks+3}], v[{WA+8*ks}:{WA+8*ks+7}], v{vIdx}')
            a(f'v_smfmac_f32_16x16x64_bf16 v[{TB}:{TB+3}], v[{M+4*ks}:{M+4*ks+3}], v[{WB+8*ks}:{WB+8*ks+7}], v{vIdx}')
        a('s_nop 7')
        self.pair_epilogue(TA, TB)
        self.lstore([f'buffer_store_dword v{TA}, v{vB}, s[{sWS}:{sWS+3}], s{sB_C} offen',
                     f'buffer_store_dword v{TB}, v{vB}, s[{sWS}:{sWS+3}], s{sB_C} offen offset:64'])
        a('s_barrier')
        self.stamp(1)
        def resets():
            self.lstore([f'buffer_store_dword v{vSent}, v{vB}, s[{sWS}:{sWS+3}], s{sB_R} offen',
                         f'buffer_store_dword v{vSent}, v{vB}, s[{sWS}:{sWS+3}], s{sB_R} offen offset:64'])
            sk = a.newlabel('Lqar')
            a(f's_cmp_ge_u32 s{sRED}, 40')
            a(f's_cbranch_scc1 {sk}')
            a(f's_mov_b64 exec, s[{sMA}:{sMA+1}]')
            self.lstore([f'buffer_store_dwordx2 v[{vSent}:{vSent+1}], v{vAst}, s[{sWS}:{sWS+3}], s{sA_R} offen'])
            a('s_mov_b64 exec, -1')
            a.label(sk)
        self.zero(TA, 8)
        a('s_barrier')
        resets()
        if self.opt.get('prof'):
            a(f'''s_memrealtime s[{sST+10}:{sST+11}]
                  s_lshl_b32 s{sT0}, s{sJ}, 4
                  s_add_u32 s{sT0}, s{sT0}, s{sC}
                  s_lshl_b32 s{sT0}, s{sT0}, 2
                  s_add_u32 s{sT0}, s{sT0}, s{sW}
                  s_lshl_b32 s{sT0}, s{sT0}, 6
                  s_add_u32 s{sT0}, s{sT0}, s{sSTEP}
                  s_lshl_b32 s{sT0}, s{sT0}, 2
                  s_add_u32 s{sT0}, s{sT0}, {WS_DBG + 0x200000}
                  v_mov_b32 v{T1}, 0
                  s_waitcnt lgkmcnt(0)
                  v_mov_b32 v{T0}, s{sST+10}
                  buffer_store_dword v{T0}, v{T1}, s[{sWS}:{sWS+3}], s{sT0} offen
                  s_memtime s[{sST+10}:{sST+11}]
                  s_add_u32 s{sT0}, s{sT0}, 0x40000
                  s_waitcnt lgkmcnt(0)
                  v_mov_b32 v{T0}, s{sST+10}
                  buffer_store_dword v{T0}, v{T1}, s[{sWS}:{sWS+3}], s{sT0} offen
                  s_add_u32 s{sT0}, s{sT0}, 0x40000
                  v_mov_b32 v{T0}, s{sBUD}
                  buffer_store_dword v{T0}, v{T1}, s[{sWS}:{sWS+3}], s{sT0} offen''')
        a('s_barrier')
        if self.opt.get('trace2'): a(f's_memtime s[{sST+0}:{sST+1}]')
        a(f'''s_cmp_eq_u32 s{sSTEP}, 63
              s_cbranch_scc1 {end}''')
        ok, fin = a.newlabel('LpCok'), a.newlabel('LpCfin')
        ACC = AC2
        entry = {(h, ph): a.newlabel('LpC') for h in range(2) for ph in range(2)}
        nored = a.newlabel('Lqnr')
        a(f'''s_cmp_ge_u32 s{sRED}, 40
              s_cbranch_scc1 {nored}
              s_bitcmp1_b32 s{sCS}, 8
              s_cbranch_scc1 {entry[(1,1)]}_in''')
        for half in (1,):
            nl = 4
            for ph in range(2):
                lp = entry[(half, ph)]
                a.label(lp + '_in')
                if self.opt.get('c_sleep'): a(f"s_sleep {self.opt['c_sleep']}")
                if self.opt.get('fine'): self.stamp(5)
                a.label(lp)
                for t in range(nl):
                    reg, off = (RC + (t >> 1), 2048 * (t & 1)) if half else (RC + (t >> 2), 1024 * (t & 3))
                    a(f'buffer_load_dwordx4 v[{M+4*t}:{M+4*t+3}], v{reg}, s[{sWS}:{sWS+3}], s{sC_RD} offen offset:{off} sc1')
                a('s_mov_b64 exec, -1')
                op3 = (lambda d, x, y, z: f'v_bitop3_b32 v{d}, v{x}, v{y}, v{z} bitop3:0x80') if ph else (lambda d, x, y, z: f'v_or3_b32 v{d}, v{x}, v{y}, v{z}')
                for t in range(nl):
                    a(f's_waitcnt vmcnt({nl-1-t})')
                    if t == 0 and self.opt.get('fine'): self.stamp(2)
                    a(f'v_mfma_f32_16x16x32_bf16 v[{ACC}:{ACC+3}], v[{SEL}:{SEL+3}], v[{M+4*t}:{M+4*t+3}], ' + ('0' if t == 0 else f'v[{ACC}:{ACC+3}]'))
                    if t == 0:
                        a(op3(T0, M, M+1, M+2)); a(op3(T0, T0, M+3, M+3))
                    else:
                        a(op3(T0, T0, M+4*t, M+4*t+1)); a(op3(T0, T0, M+4*t+2, M+4*t+3))
                rt, bk = a.newlabel('LpCr'), a.newlabel('LpCb')
                a(f'''v_and_b32 v{T0}, 1, v{T0}
                      v_cmp_ne_u32 vcc, {ph}, v{T0}
                      s_cbranch_vccnz {rt}''')
                a.label(bk)
                if self.opt.get('trace2'): a(f's_memtime s[{sST+2}:{sST+3}]')
                def tail(rt=rt, bk=bk, lp=lp):
                    a.label(rt)
                    a('s_mov_b64 exec, vcc')
                    self.retry(lp, 3)
                    a('s_mov_b64 exec, -1')
                    a(f's_branch {bk}')
                self.tails.append(tail)
                a('s_nop 2')
                if half:
                    for k in range(4):
                        a(f'v_add_f32_dpp v{ACC+k}, v{ACC+k}, v{ACC+k} row_ror:8 row_mask:0xf bank_mask:0xf')
                self.stamp(3)
                a(f'''v_cvt_pk_bf16_f32 v{ACC}, v{ACC}, v{ACC+1}
                      v_cvt_pk_bf16_f32 v{ACC+1}, v{ACC+2}, v{ACC+3}
                      s_mov_b64 exec, s[{sMA}:{sMA+1}]
                      v_min_u32 v{ACC}, -2, v{ACC}
                      v_min_u32 v{ACC+1}, -2, v{ACC+1}''')
                self.lstore([f'buffer_store_dwordx2 v[{ACC}:{ACC+1}], v{vAst}, s[{sWS}:{sWS+3}], s{sA_N} offen'])
                if not (half and ph): a(f's_branch {fin}')
        a(f's_branch {fin}')
        a.label(nored)
        a('s_waitcnt vmcnt(0)')
        a.label(fin)
        if self.opt.get('dump_mem'):
            l = a.newlabel('Ldm')
            a(f'''s_cmp_lg_u32 s{sJ}, 0
                  s_cbranch_scc1 {l}
                  s_mul_i32 s{sT0}, s{sSTEP}, 10240
                  s_add_u32 s{sT0}, s{sT0}, {WS_DBG}
                  buffer_store_dwordx2 v[{ACC}:{ACC+1}], v{vAst}, s[{sWS}:{sWS+3}], s{sT0} offen''')
            a.label(l)
        a('s_mov_b64 exec, -1')
        a('s_barrier')
        if self.opt.get('trace2'): a(f's_memtime s[{sST+4}:{sST+5}]')
        if self.opt.get('trace2'):
            a(f"""s_waitcnt lgkmcnt(0)
                  s_lshl_b32 s{sT0}, s{sJ}, 4
                  s_add_u32 s{sT0}, s{sT0}, s{sC}
                  s_lshl_b32 s{sT0}, s{sT0}, 2
                  s_add_u32 s{sT0}, s{sT0}, s{sW}
                  s_lshl_b32 s{sT0}, s{sT0}, 6
                  s_add_u32 s{sT0}, s{sT0}, s{sSTEP}
                  s_lshl_b32 s{sT0}, s{sT0}, 4
                  s_add_u32 s{sT0}, s{sT0}, {WS_DBG + 0x400000}
                  s_sub_u32 s{sT1}, s{sST+2}, s{sST}
                  v_mov_b32 v{M}, s{sT1}
                  s_sub_u32 s{sT1}, s{sST+4}, s{sST}
                  v_mov_b32 v{M+1}, s{sT1}
                  v_mov_b32 v{M+2}, s{sBUD}
                  v_mov_b32 v{T0}, 0
                  s_mov_b64 exec, 1
                  buffer_store_dwordx4 v[{M}:{M+3}], v{T0}, s[{sWS}:{sWS+3}], s{sT0} offen
                  s_mov_b64 exec, -1
                  s_nop 1""")
        self.stamp(4)
        self.next_step()
        a('s_waitcnt lgkmcnt(0)')
        a(f's_branch {loop}')
        a.label(end)
        a('s_barrier')
        self.finish()
        self.emit_tail()

    def role_v(self):
        a = self.a
        al = Alloc(1, 256)
        self.lanes(al)
        WA, WB = al(80, 4), al(80, 4)
        M = al(48, 4)
        TA, TB = al(4, 4), al(4, 4)
        F = al(12, 4); RR = al(2, 2)
        vFrag, vIdx, vB, vAoff, vV, vSent, vCoff, vOst = [al() for _ in range(8)]
        vLin = vV
        a(f"""v_lshrrev_b32 v{self.vT1}, 3, v{self.vL}
              v_lshlrev_b32 v{vOst}, 4, v{self.vT1}
              v_and_b32 v{self.vT1}, 7, v{self.vL}
              v_lshl_add_u32 v{vOst}, v{self.vT1}, 8, v{vOst}
              s_lshr_b32 s{sT0}, s{sG}, 1
              s_mul_i32 s{sT0}, s{sT0}, 192
              s_mul_i32 s{sT1}, s{sH}, 6
              s_add_u32 s{sT0}, s{sT0}, s{sT1}
              s_lshl_b32 s{sT0}, s{sT0}, 10
              s_and_b32 s{sT1}, s{sG}, 1
              s_lshl_b32 s{sT1}, s{sT1}, 7
              s_add_u32 s{sT0}, s{sT0}, s{sT1}
              v_add_u32 v{vOst}, s{sT0}, v{vOst}""")
        def o_store(back):
            if self.opt.get('no_ost'): return
            a(f's_sub_u32 s{sT0}, s{sO_C}, {back*32*12288}')
            a(f's_add_u32 s{sT1}, s{sT0}, 4096')
            for k in range(3):
                a(f'ds_read_b128 v[{F+4*k}:{F+4*k+3}], v{vLin} offset:{LOX + 1024*k}')
            for k in range(3):
                a(f's_waitcnt lgkmcnt({2-k})')
                a(f'buffer_store_dwordx4 v[{F+4*k}:{F+4*k+3}], v{vOst}, s[{sWS}:{sWS+3}], s{sT1 if k == 2 else sT0} offen offset:{2048*(k&1)} sc1')
        PX = al(8, 2)
        self.frag_addr(vFrag); self.idx_reg(vIdx)
        a(f"""v_lshlrev_b32 v{vV}, 4, v{self.vL}
              v_mov_b32 v{vSent}, -1""")
        a(f"""s_mul_i32 s{sT0}, s{sG}, 768
              s_add_u32 s{sT0}, s{sT0}, 6144
              v_lshlrev_b32 v{vB}, 5, v{self.vN}
              v_lshl_add_u32 v{vB}, v{self.vQ}, 2, v{vB}
              v_add_u32 v{vB}, s{sT0}, v{vB}""")
        srd(a, ptr(4), DM * NH * DH * 2)
        a(f"""s_mul_i32 s{sT0}, s{sH}, 384
              s_mul_i32 s{sT1}, s{sG}, 96
              s_add_u32 s{sT0}, s{sT0}, s{sT1}
              v_lshlrev_b32 v{self.vT2}, 2, v{self.vN}""")
        self.load_w(WA, WB, 10, 12288, sT0, self.vT2, M)
        self.mark(5)
        self.c_off(vCoff, 4)
        self.a_off(vAoff)
        self.zero(TA, 8)
        self.mark(1)
        self.wait_all_registered()
        own = lambda: self.dma12(vV, WS_VT, LV_OFF, [0])
        rest = lambda: self.dma12(vV, WS_VT, LV_OFF, [1, 2, 3])
        if not self.opt.get('early_stage'): self.stage_first(own, rest, 2, 1, 15)
        a('s_barrier')
        self.mark(2)
        loop, end = a.newlabel('Lv'), a.newlabel('Lvend')
        self.a_poll(vAoff, [F], True)
        a.label(loop)
        self.stamp(0)
        for ks in range(10):
            a(f'ds_read_b128 v[{M+4*ks}:{M+4*ks+3}], v{vLin} offset:{LM + 1024*ks}')
        for ks in range(10):
            a(f's_waitcnt lgkmcnt({9-ks})')
            a(f'v_smfmac_f32_16x16x64_bf16 v[{TA}:{TA+3}], v[{M+4*ks}:{M+4*ks+3}], v[{WA+8*ks}:{WA+8*ks+7}], v{vIdx}')
            a(f'v_smfmac_f32_16x16x64_bf16 v[{TB}:{TB+3}], v[{M+4*ks}:{M+4*ks+3}], v[{WB+8*ks}:{WB+8*ks+7}], v{vIdx}')
            if ks == self.opt.get('v_bar', 8): a('s_barrier')
        a(f"""s_nop 7
              v_pk_add_f32 v[{TA}:{TA+1}], v[{TA}:{TA+1}], v[{TA+2}:{TA+3}]
              v_pk_add_f32 v[{TB}:{TB+1}], v[{TB}:{TB+1}], v[{TB+2}:{TB+3}]
              v_cvt_pk_bf16_f32 v{TA}, v{TA}, v{TA+1}
              v_cvt_pk_bf16_f32 v{TB}, v{TB}, v{TB+1}
              v_min_u32 v{TA}, -2, v{TA}
              v_min_u32 v{TB}, -2, v{TB}""")
        self.lstore([f'buffer_store_dword v{TA}, v{vB}, s[{sWS}:{sWS+3}], s{sB_C} offen',
                     f'buffer_store_dword v{TB}, v{vB}, s[{sWS}:{sWS+3}], s{sB_C} offen offset:16'])
        self.stamp(1)
        a('s_waitcnt vmcnt(2)')
        for k in range(12):
            a(f'ds_read_b128 v[{M+4*k}:{M+4*k+3}], v{vLin} offset:{LW5 + 1024*k}')
        self.zero(TA, 8)
        a('s_barrier')
        self.lstore([f'buffer_store_dword v{vSent}, v{vB}, s[{sWS}:{sWS+3}], s{sB_R} offen',
                     f'buffer_store_dword v{vSent}, v{vB}, s[{sWS}:{sWS+3}], s{sB_R} offen offset:16'])
        a(f"s_sleep {self.opt.get('d_sleep', 7)}" if self.opt.get('d_sleep', 7) else 's_nop 0')
        def o_prev():
            no0 = a.newlabel('Lvn0')
            a('s_waitcnt lgkmcnt(0)')
            a(f's_cmp_eq_u32 s{sSTEP}, 0')
            a(f's_cbranch_scc1 {no0}')
            o_store(1)
            a.label(no0)
        if not self.opt.get('o_late'): o_prev()
        self.stage(own, rest, 2, 1)
        if self.opt.get('o_late'): o_prev()
        if self.opt.get('fused'):
            nq = a.newlabel('Lvnq')
            a(f"""s_cmp_lt_u32 s{sSTEP}, {self.opt.get('of_all', 58)}
                  s_cbranch_scc1 {nq}
                  s_waitcnt vmcnt(0)""")
            self.o_flag(1)
            a.label(nq)
        a('s_waitcnt lgkmcnt(0)')
        self.stamp(5)
        a('s_barrier')
        self.stamp(2)
        self.wo_stage([(M, M + 24, TA, TB, 0)], vFrag, vIdx, F, vCoff, RR, end)
        self.stamp(3)
        self.zero(TA, 8)
        self.a_poll(vAoff, [F, PX, M + 40])
        a(f's_branch {loop}')
        a.label(end)
        a('s_waitcnt lgkmcnt(0)')
        a('s_barrier')
        o_store(0)
        a('s_waitcnt vmcnt(0)')
        self.o_flag(0)
        self.finish()
        self.emit_tail()

    def role_w7(self):
        a = self.a
        al = Alloc(1, 256)
        self.lanes(al)
        WV = al(80, 4)
        P = [(al(24, 4), al(24, 4), al(4, 4), al(4, 4), 0)]
        M = al(40, 4)
        TV = al(4, 4)
        SENT = al(4, 4); RR = al(2, 2)
        vFrag, vIdx, vB, vAoff, vK, vQx, vCoff, vCr = [al() for _ in range(8)]
        vSel = TV
        PX = al(24, 2)
        T0, T1 = self.vT0, self.vT1
        self.frag_addr(vFrag); self.idx_reg(vIdx)
        a(f"""v_lshlrev_b32 v{vK}, 4, v{self.vL}
              v_and_b32 v{T0}, 7, v{self.vL}
              v_lshlrev_b32 v{vQx}, 4, v{T0}
              v_lshrrev_b32 v{T0}, 5, v{self.vL}
              v_lshl_add_u32 v{vQx}, v{T0}, 10, v{vQx}
              v_bfe_u32 v{T0}, v{self.vL}, 3, 2
              v_lshl_add_u32 v{vQx}, v{T0}, 8, v{vQx}
              s_lshr_b32 s{sT0}, s{sG}, 1
              s_mul_i32 s{sT0}, s{sT0}, 6144
              s_and_b32 s{sT1}, s{sG}, 1
              s_lshl_b32 s{sT1}, s{sT1}, 7
              s_add_u32 s{sT0}, s{sT0}, s{sT1}
              v_add_u32 v{vQx}, s{sT0}, v{vQx}""")
        for k in range(4): a(f'v_mov_b32 v{SENT+k}, -1')
        a(f"""s_mul_i32 s{sT0}, s{sG}, 768
              s_add_u32 s{sT0}, s{sT0}, {6144 + 512}
              v_lshlrev_b32 v{vB}, 4, v{self.vN}
              v_lshl_add_u32 v{vB}, v{self.vQ}, 2, v{vB}
              v_add_u32 v{vB}, s{sT0}, v{vB}
              s_mul_i32 s{sT0}, s{sG}, 2560
              v_lshlrev_b32 v{vCr}, 4, v{self.vL}
              v_add_u32 v{vCr}, s{sT0}, v{vCr}""")
        self.c_off(vCoff, 3)
        srd(a, ptr(4), DM * NH * DH * 2)
        a(f"""s_mul_i32 s{sT0}, s{sH}, 384
              s_mul_i32 s{sT1}, s{sG}, 96
              s_add_u32 s{sT0}, s{sT0}, s{sT1}
              s_add_u32 s{sT0}, s{sT0}, 32
              v_and_b32 v{T0}, 14, v{self.vN}
              v_lshlrev_b32 v{self.vT2}, 1, v{T0}
              v_add_u32 v{self.vT2}, 32, v{self.vT2}
              v_and_b32 v{T0}, 1, v{self.vN}
              v_cmp_eq_u32 vcc, 1, v{T0}
              v_mov_b32 v{vSel}, s{sSELLO}
              v_mov_b32 v{T0}, s{sSELHI}
              s_nop 1
              v_cndmask_b32 v{vSel}, v{vSel}, v{T0}, vcc""")
        if self.opt.get('y_prio'): a('s_setprio 3')
        self.load_w(WV, None, 10, 12288, sT0, self.vT2, M, vSel)
        self.mark(5)
        self.a_off(vAoff)
        self.zero(TV, 4)
        for p in P: self.zero(p[2], 8)
        self.mark(1)
        self.wait_all_registered()
        assert P[0][1] == P[0][0] + 24
        for k in range(12):
            a(f'ds_read_b128 v[{P[0][0]+4*k}:{P[0][0]+4*k+3}], v{vK} offset:{1024*k}')
        a('s_waitcnt lgkmcnt(0)')
        def own():
            self.dma_q(vQx); self.dma12(vK, WS_K, LK_OFF, [0])
        rest = lambda: self.dma12(vK, WS_K, LK_OFF, [1, 2, 3])
        if not self.opt.get('early_stage'): self.stage_first(own, rest, 0, 2, 21)
        a('s_barrier')
        self.mark(2)
        loop, end = a.newlabel('Lw7'), a.newlabel('Lw7end')
        self.a_poll(vAoff, [PX], True)
        a.label(loop)
        self.stamp(0)
        for ks in range(10):
            a(f'ds_read_b128 v[{M+4*ks}:{M+4*ks+3}], v{vK} offset:{LM + 1024*ks}')
        for ks in range(10):
            a(f's_waitcnt lgkmcnt({9-ks})')
            a(f'v_smfmac_f32_16x16x64_bf16 v[{TV}:{TV+3}], v[{M+4*ks}:{M+4*ks+3}], v[{WV+8*ks}:{WV+8*ks+7}], v{vIdx}')
            if ks == self.opt.get('w7_bar', 99): a('s_barrier')
        a(f"""s_nop 7
              v_pk_add_f32 v[{TV}:{TV+1}], v[{TV}:{TV+1}], v[{TV+2}:{TV+3}]
              v_cvt_pk_bf16_f32 v{TV}, v{TV}, v{TV+1}
              v_min_u32 v{TV}, -2, v{TV}""")
        self.lstore([f'buffer_store_dword v{TV}, v{vB}, s[{sWS}:{sWS+3}], s{sB_C} offen'])
        if self.opt.get('w7_bar', 99) > 9: a('s_barrier')
        self.stamp(1)
        self.zero(TV, 4)
        a('s_barrier')
        self.lstore([f'buffer_store_dword v{SENT}, v{vB}, s[{sWS}:{sWS+3}], s{sB_R} offen'])
        a(f"s_sleep {self.opt.get('d_sleep', 7)}" if self.opt.get('d_sleep', 7) else 's_nop 0')
        if self.opt.get('dma_time'): self.stamp(1)
        nf, yf = a.newlabel('Lw7nf'), a.newlabel('Lw7yf')
        a(f"""s_cmp_ge_u32 s{sSTEP}, {self.opt.get('of_all', 58)}
              s_cbranch_scc1 {nf}
              s_and_b32 s{sT0}, s{sSTEP}, {self.opt.get('of_every', 1) - 1}
              s_cmp_lg_u32 s{sT0}, {min(2, self.opt.get('of_every', 1) - 1)}
              s_cbranch_scc1 {nf}
              s_cmp_lt_u32 s{sSTEP}, 2
              s_cbranch_scc1 {nf}""")
        a.label(yf)
        self.o_flag(2)
        a.label(nf)
        self.stage(own, rest, 0, 2)
        if self.opt.get('dma_time'): a('s_waitcnt vmcnt(0)')
        self.stamp(5)
        a('s_barrier')
        self.stamp(2)
        self.wo_stage(P, vFrag, vIdx, M, vCoff, RR, end)
        self.stamp(3)
        for p in P: self.zero(p[2], 8)
        self.a_poll(vAoff, [PX, PX + 8, PX + 16])
        a(f's_branch {loop}')
        a.label(end)
        a('s_barrier')
        self.finish()
        self.emit_tail()

    def role_att(self):
        a = self.a
        al = Alloc(1, 256)
        self.lanes(al)
        TM = al(2, 2)
        WA, WB = al(24, 4), al(24, 4)
        TA, TB = al(4, 4), al(4, 4)
        KX = al(48, 4); X = al(24, 4); Y = al(24, 4)
        VX = al(16, 4); VM = al(8, 2)
        BI = al(12, 4); SS = al(12, 4)
        PP = al(6, 2); RR = PP
        OO = al(16, 4); LL = al(4, 4)
        ONES = al(4, 4)
        F = SS
        vFrag, vIdx, vAoff, vXY, vVM, vOw, vCoff, vLin, vQr, vBp, vRw, vOx = [al() for _ in range(12)]
        T0, T1, T2 = self.vT0, self.vT1, self.vT2
        sWP = sRED
        a(f's_sub_u32 s{sWP}, s{sW}, 4')
        self.frag_addr(vFrag); self.idx_reg(vIdx)
        self.c_off(vCoff, f's{sWP}')
        if self.opt.get('touch'): self.touch_weights()
        if self.opt.get('y_prio'): a('s_setprio 3')
        if self.opt.get('y_prio') == 3:
            self.init_job(KX); arrive(a, 6, KX + 16); self.arrive_init(KX); a('s_setprio 2')
        def mid():
            if self.opt.get('y_prio') == 3: return
            self.init_job(KX)
            arrive(a, 6, KX + 16)
            self.arrive_init(KX)
            self.mark(5)
            if self.opt.get('y_prio') == 2: a('s_setprio 1')
        self.wo_weights(WA, WB, f's{sWP}', vAoff, T2, mid)
        nx = a.newlabel('Latnx')
        a(f"""s_cmp_ge_u32 s{sWP}, 2
              s_cbranch_scc1 {nx}
              s_add_u32 s{sA_P}, s{sWP}, 3""")
        self.wo_weights(KX, KX + 24, f's{sA_P}', vAoff, T2)
        a(f"""s_cmp_eq_u32 s{sWP}, 0
              s_cselect_b32 s{sT0}, 0, {LW5}
              v_lshlrev_b32 v{T0}, 4, v{self.vL}
              v_add_u32 v{T0}, s{sT0}, v{T0}""")
        for k in range(12):
            a(f'ds_write_b128 v{T0}, v[{KX+4*k}:{KX+4*k+3}] offset:{1024*k}')
        a('s_waitcnt lgkmcnt(0)')
        a.label(nx)
        if self.opt.get('early_stage'):
            vS, vQs = KX, KX + 1
            a(f"""v_lshlrev_b32 v{vS}, 4, v{self.vL}
                  v_and_b32 v{T0}, 7, v{self.vL}
                  v_lshlrev_b32 v{vQs}, 4, v{T0}
                  v_lshrrev_b32 v{T0}, 5, v{self.vL}
                  v_lshl_add_u32 v{vQs}, v{T0}, 10, v{vQs}
                  v_bfe_u32 v{T0}, v{self.vL}, 3, 2
                  v_lshl_add_u32 v{vQs}, v{T0}, 8, v{vQs}
                  s_lshr_b32 s{sT0}, s{sG}, 1
                  s_mul_i32 s{sT0}, s{sT0}, 6144
                  s_and_b32 s{sT1}, s{sG}, 1
                  s_lshl_b32 s{sT1}, s{sT1}, 7
                  s_add_u32 s{sT0}, s{sT0}, s{sT1}
                  v_add_u32 v{vQs}, s{sT0}, v{vQs}""")
            wait_registered(a, self.opt, T0, T1, self.vL)
            lq, lv2, ld = a.newlabel('Les'), a.newlabel('Les'), a.newlabel('Les')
            a(f"""s_cmp_eq_u32 s{sWP}, 2
                  s_cbranch_scc1 {lq}
                  s_cmp_eq_u32 s{sWP}, 1
                  s_cbranch_scc1 {lv2}""")
            self.stage_first(lambda: self.dma12(vS, WS_K, LK_OFF, [0]), lambda: self.dma12(vS, WS_K, LK_OFF, [1, 2, 3]), 1, 1)
            a(f's_branch {ld}')
            a.label(lv2)
            self.stage_first(lambda: self.dma12(vS, WS_VT, LV_OFF, [0]), lambda: self.dma12(vS, WS_VT, LV_OFF, [1, 2, 3]), 2, 1)
            a(f's_branch {ld}')
            a.label(lq)
            self.stage_first(lambda: self.dma_q(vQs), lambda: None, 0, 1)
            a.label(ld)
        self.a_off(vAoff)
        a(f"""v_lshlrev_b32 v{vXY}, 6, v{self.vN}
              v_lshl_add_u32 v{vXY}, v{self.vQ}, 4, v{vXY}
              s_lshl_b32 s{sT0}, s{sWP}, 10
              s_add_u32 s{sT0}, s{sT0}, 6144
              v_lshlrev_b32 v{vVM}, 4, v{self.vN}
              v_lshl_add_u32 v{vVM}, v{self.vQ}, 3, v{vVM}
              v_add_u32 v{vVM}, s{sT0}, v{vVM}
              v_lshlrev_b32 v{vLin}, 4, v{self.vL}
              s_lshl_b32 s{sT0}, s{sWP}, 11
              v_add_u32 v{vBp}, s{sT0}, v{vLin}
              v_and_b32 v{T0}, 7, v{self.vN}
              v_lshlrev_b32 v{vQr}, 4, v{T0}
              v_lshl_add_u32 v{vQr}, v{self.vQ}, 7, v{vQr}""")
        a(f"""v_lshlrev_b32 v{vRw}, 2, v{self.vL}
              v_add_u32 v{T1}, {LDUMMY}, v{vRw}
              v_add_u32 v{vRw}, {LR}, v{vRw}
              v_cmp_gt_u32 vcc, 8, v{self.vL}
              s_nop 1
              v_cndmask_b32 v{vRw}, v{T1}, v{vRw}, vcc""")
        a(f"""v_lshrrev_b32 v{T1}, 1, v{self.vQ}
              v_lshlrev_b32 v{vOw}, 7, v{T1}
              v_lshl_add_u32 v{vOw}, v{T0}, 4, v{vOw}
              v_and_b32 v{T1}, 1, v{self.vQ}
              v_lshl_add_u32 v{vOw}, v{T1}, 3, v{vOw}
              v_lshrrev_b32 v{T1}, 3, v{self.vN}
              v_mul_u32_u24 v{T1}, 3072, v{T1}
              v_add_u32 v{vOw}, v{vOw}, v{T1}
              s_lshl_b32 s{sT0}, s{sWP}, 10
              s_add_u32 s{sT0}, s{sT0}, {LO}
              v_add_u32 v{vOw}, s{sT0}, v{vOw}""")
        a(f"""s_lshl_b32 s{sT0}, s{sWP}, 10
              s_add_u32 s{sT0}, s{sT0}, {LOX}
              v_lshlrev_b32 v{vOx}, 7, v{T0}
              v_lshl_add_u32 v{vOx}, v{self.vQ}, 3, v{vOx}
              v_add_u32 v{vOx}, s{sT0}, v{vOx}""")
        a(f"""s_lshl_b32 s{sT0}, s{sG}, 3
              v_add_u32 v{T1}, s{sT0}, v{T0}
              v_cmp_gt_u32 vcc, 8, v{self.vN}
              v_mov_b32 v{T2}, 31
              s_nop 1
              v_cndmask_b32 v{T1}, v{T1}, v{T2}, vcc
              v_lshlrev_b32 v{T2}, 2, v{self.vQ}
              v_sub_u32 v{T1}, v{T1}, v{T2}
              v_mov_b32 v{T2}, 0xf149f2ca""")
        for tile in range(2):
            for r in range(4):
                a(f"""v_cmp_gt_i32 vcc, {16*tile + r}, v{T1}
                      v_mov_b32 v{BI+4*tile+r}, 0
                      s_nop 1
                      v_cndmask_b32 v{BI+4*tile+r}, v{BI+4*tile+r}, v{T2}, vcc""")
        a(f"""v_cmp_lt_u32 vcc, 1, v{self.vQ}
              v_mov_b32 v{BI+8}, 0
              s_nop 1
              v_cndmask_b32 v{BI+8}, v{BI+8}, v{T2}, vcc""")
        for r in range(1, 4): a(f'v_mov_b32 v{BI+8+r}, v{BI+8}')
        for k in range(4): a(f'v_mov_b32 v{ONES+k}, 0x3f803f80')
        self.zero(Y, 24); self.zero(VM, 8); self.zero(TA, 8)
        self.mark(1)
        self.wait_all_registered()
        def read_seg():
            a(f'v_add_u32 v{T0}, s{sLB}, v{vLin}')
            a(f'v_add_u32 v{T1}, s{sLB}, v{vQr}')
            a(f's_lshl_b32 s{sT0}, s{sWP}, 12')
            a(f'v_add_u32 v{T2}, s{sT0}, v{T0}')
            for k in range(12):
                a(f'ds_read_b128 v[{KX+4*k}:{KX+4*k+3}], v{T0} offset:{LK_OFF + 1024*k}')
            for ks in range(6):
                a(f'ds_read_b128 v[{X+4*ks}:{X+4*ks+3}], v{T1} offset:{LQ_OFF + 512*ks}')
            for t in range(4):
                a(f'ds_read_b128 v[{VX+4*t}:{VX+4*t+3}], v{T2} offset:{LV_OFF + 1024*t}')
        def vm_loads():
            a(f's_mov_b64 exec, s[{sML32}:{sML32+1}]')
            for t in range(4):
                a(f'buffer_load_dwordx2 v[{VM+2*t}:{VM+2*t+1}], v{vVM}, s[{sWS}:{sWS+3}], s{sB_C} offen offset:{256*t} sc1')
            a('s_mov_b64 exec, -1')
        a('s_barrier')
        self.mark(2)
        a(f's_mov_b32 s{sLB}, {LBUF}')
        read_seg()
        self.a_poll(vAoff, [F], True)
        loop, end = a.newlabel('Lat'), a.newlabel('Latend')
        lp, ok, vlp, vok, vrt = a.newlabel('LpB'), a.newlabel('LpBok'), a.newlabel('LpV'), a.newlabel('LpVok'), a.newlabel('LpVr')
        a.label(loop)
        if self.opt.get('trace2'): a(f's_memtime s[{sST+0}:{sST+1}]')
        a('s_barrier')
        if self.opt.get('trace2'): a(f's_memtime s[{sST+2}:{sST+3}]')
        if self.opt.get('b_sleep'): a(f"s_sleep {self.opt['b_sleep']}")
        if self.opt.get('fine'): self.stamp(0)
        def after_b():
            if self.opt.get('trace2'): a(f's_memtime s[{sST+4}:{sST+5}]')
            a(f's_mov_b64 exec, s[{sMN8}:{sMN8+1}]')
            a('s_waitcnt lgkmcnt(0)')
            a('s_barrier')
        self.poll2(vBp, sB_C, LQK, [OO, OO + 8][:self.opt.get('b_depth', 1)], 0, self.opt.get('b_gap', 0), after_b)
        for ks in range(6):
            a(f'ds_read_b128 v[{X+4*ks}:{X+4*ks+3}], v{vXY} offset:{LQK + 512*ks}')
        for ks in range(6):
            a(f'ds_read_b128 v[{Y+4*ks}:{Y+4*ks+3}], v{vXY} offset:{LQK + 3072 + 512*ks}')
        vm_loads()
        self.stamp(5)
        def smm(tile, ks):
            A = (KX, KX + 24, Y)[tile] + 4*ks
            c = BI + 4*tile if ks == 0 else SS + 4*tile
            a(f'v_mfma_f32_16x16x32_bf16 v[{SS+4*tile}:{SS+4*tile+3}], v[{A}:{A+3}], v[{X+4*ks}:{X+4*ks+3}], v[{c}:{c+3}]')
        for ks in range(6):
            a(f's_waitcnt lgkmcnt({11 - ks})')
            smm(0, ks); smm(1, ks)
        a('s_waitcnt lgkmcnt(0)')
        for ks in range(6):
            smm(2, ks)
            if ks == 3: a('s_waitcnt vmcnt(4)')
            if ks == 4: a(f'v_max3_f32 v{T0}, v{SS}, v{SS+1}, v{SS+2}'); a(f'v_max3_f32 v{T1}, v{SS+3}, v{SS+4}, v{SS+5}')
        self.stamp(1)
        a(f"""v_max3_f32 v{T0}, v{T0}, v{SS+6}, v{SS+7}
              v_max_f32 v{T0}, v{T0}, v{T1}
              s_nop 5
              v_max3_f32 v{T1}, v{SS+8}, v{SS+9}, v{SS+10}
              v_max3_f32 v{T0}, v{T0}, v{T1}, v{SS+11}
              v_mov_b32 v{T1}, v{T0}
              s_nop 1
              v_permlane32_swap_b32 v{T0}, v{T1}
              v_max_f32 v{T0}, v{T0}, v{T1}
              v_mov_b32 v{T1}, v{T0}
              s_nop 1
              v_permlane16_swap_b32 v{T0}, v{T1}
              v_max_f32 v{T0}, v{T0}, v{T1}
              v_mul_f32 v{TM}, s{sSCL}, v{T0}""")
        def pkfma(r):
            if self.opt.get('nopk'):
                for k in range(2): a(f'v_fma_f32 v{SS+r+k}, v{SS+r+k}, s{sSCL}, -v{TM}')
                return
            a(f'v_pk_fma_f32 v[{SS+r}:{SS+r+1}], v[{SS+r}:{SS+r+1}], s[{sSCL}:{sSCL+1}], v[{TM}:{TM+1}] op_sel_hi:[1,0,0] neg_lo:[0,0,1] neg_hi:[0,0,1]')
        for r in range(0, 8, 2): pkfma(r)
        for r in range(8): a(f'v_exp_f32 v{SS+r}, v{SS+r}')
        for r in range(8, 12, 2): pkfma(r)
        for r in range(4): a(f'v_cvt_pk_bf16_f32 v{PP+r}, v{SS+2*r}, v{SS+2*r+1}')
        a(f'v_exp_f32 v{SS+8}, v{SS+8}')
        a(f'v_exp_f32 v{SS+9}, v{SS+9}')
        a(f'v_mfma_f32_16x16x32_bf16 v[{LL}:{LL+3}], v[{ONES}:{ONES+3}], v[{PP}:{PP+3}], 0')
        a(f'v_exp_f32 v{SS+10}, v{SS+10}')
        a(f'v_mfma_f32_16x16x32_bf16 v[{OO}:{OO+3}], v[{VX}:{VX+3}], v[{PP}:{PP+3}], 0')
        a(f'v_exp_f32 v{SS+11}, v{SS+11}')
        a(f'v_mfma_f32_16x16x32_bf16 v[{OO+4}:{OO+7}], v[{VX+4}:{VX+7}], v[{PP}:{PP+3}], 0')
        a(f'v_cvt_pk_bf16_f32 v{PP+4}, v{SS+8}, v{SS+9}')
        a(f'v_cvt_pk_bf16_f32 v{PP+5}, v{SS+10}, v{SS+11}')
        a(f'v_mfma_f32_16x16x32_bf16 v[{OO+8}:{OO+11}], v[{VX+8}:{VX+11}], v[{PP}:{PP+3}], 0')
        a.label(vlp)
        a(f"""s_waitcnt vmcnt(0)
              v_max3_u32 v{T1}, v{VM}, v{VM+1}, v{VM+2}
              v_max3_u32 v{T2}, v{VM+3}, v{VM+4}, v{VM+5}
              v_mfma_f32_16x16x32_bf16 v[{OO+12}:{OO+15}], v[{VX+12}:{VX+15}], v[{PP}:{PP+3}], 0
              v_max3_u32 v{T1}, v{T1}, v{VM+6}, v{VM+7}
              v_max_u32 v{T1}, v{T1}, v{T2}
              v_cmp_eq_u32 vcc, -1, v{T1}
              s_cbranch_vccnz {vrt}""")
        a.label(vok)
        if self.opt.get('trace2'): a(f's_memtime s[{sST+6}:{sST+7}]')
        if not self.opt.get('fine'): self.stamp(0)
        a(f'v_mfma_f32_16x16x16_bf16 v[{LL}:{LL+3}], v[{ONES}:{ONES+1}], v[{PP+4}:{PP+5}], v[{LL}:{LL+3}]')
        for t in range(4):
            a(f'v_mfma_f32_16x16x16_bf16 v[{OO+4*t}:{OO+4*t+3}], v[{VM+2*t}:{VM+2*t+1}], v[{PP+4}:{PP+5}], v[{OO+4*t}:{OO+4*t+3}]')
        a(f"""s_nop 3
              v_rcp_f32 v{LL}, v{LL}""")
        for t in range(4):
            a(f'v_cvt_pk_bf16_f32 v{X+2*t}, v{OO+4*t}, v{OO+4*t+1}')
            a(f'v_cvt_pk_bf16_f32 v{X+2*t+1}, v{OO+4*t+2}, v{OO+4*t+3}')
            a(f'ds_write_b64 v{vOw}, v[{X+2*t}:{X+2*t+1}] offset:{256*t}')
            if t == 0: a(f'ds_write_b32 v{vRw}, v{LL}')
        a('s_waitcnt lgkmcnt(0)')
        a('s_barrier')
        self.stamp(2)
        skipwo = a.newlabel('Latsk')
        self.wo_stage([(WA, WB, TA, TB, 0)], vFrag, vIdx, F, vCoff, RR, skipwo)
        a.label(skipwo)
        if self.opt.get('trace2'): a(f's_memtime s[{sST+8}:{sST+9}]')
        if not self.opt.get('fine'): self.stamp(3)
        for t in range(4):
            for r in range(4):
                a(f'v_mul_f32 v{OO+4*t+r}, v{OO+4*t+r}, v{LL}')
            a(f'v_cvt_pk_bf16_f32 v{OO+4*t}, v{OO+4*t}, v{OO+4*t+1}')
            a(f'v_cvt_pk_bf16_f32 v{OO+4*t+1}, v{OO+4*t+2}, v{OO+4*t+3}')
        a(f's_mov_b64 exec, s[{sMH8}:{sMH8+1}]')
        for t in range(4):
            a(f'ds_write_b64 v{vOx}, v[{OO+4*t}:{OO+4*t+1}] offset:{32*t}')
        a('s_mov_b64 exec, -1')
        a(f"""s_cmp_eq_u32 s{sSTEP}, 63
              s_cbranch_scc1 {end}
              s_add_u32 s{sLB}, s{sLB}, {LBUF_SZ}
              s_cmp_eq_u32 s{sLB}, {LBUF + 3*LBUF_SZ}
              s_cselect_b32 s{sLB}, {LBUF}, s{sLB}""")
        if self.opt.get('trace2'):
            a(f"""s_waitcnt lgkmcnt(0)
                  s_lshl_b32 s{sT0}, s{sJ}, 4
                  s_add_u32 s{sT0}, s{sT0}, s{sC}
                  s_lshl_b32 s{sT0}, s{sT0}, 2
                  s_add_u32 s{sT0}, s{sT0}, s{sWP}
                  s_lshl_b32 s{sT0}, s{sT0}, 6
                  s_add_u32 s{sT0}, s{sT0}, s{sSTEP}
                  s_lshl_b32 s{sT0}, s{sT0}, 4
                  s_add_u32 s{sT0}, s{sT0}, {WS_DBG + 0x300000}""")
            for k in range(4):
                a(f's_sub_u32 s{sT1}, s{sST+2*k+2}, s{sST}' if k else f's_sub_u32 s{sT1}, s{sST}, s{sST+10}')
                a(f'v_mov_b32 v{LL+k}, s{sT1}')
            a(f's_mov_b32 s{sST+10}, s{sST+8}')
            a(f"""v_mov_b32 v{T0}, 0
                  s_mov_b64 exec, 1
                  buffer_store_dwordx4 v[{LL}:{LL+3}], v{T0}, s[{sWS}:{sWS+3}], s{sT0} offen
                  s_mov_b64 exec, -1
                  s_nop 1""")
        read_seg()
        self.zero(TA, 8)
        self.a_poll(vAoff, [F, OO, OO + 8])
        a(f's_branch {loop}')
        a.label(end)
        a('s_waitcnt lgkmcnt(0)')
        a('s_barrier')
        self.finish()
        a.label(vrt)
        vm_loads()
        self.retry(vlp, 1)
        a(f's_branch {vok}')
        self.emit_tail()

def emit_gates(a, sU, ntok, vL, R):
    G, acc, t1, t2, v4, Xr = R, R + 5, R + 6, R + 7, R + 8, R + 10
    a(f'v_lshlrev_b32 v{v4}, 2, v{vL}')
    srd(a, ptr(11), DM * 2)
    for i in range(5):
        a(f'buffer_load_dword v{G+i}, v{v4}, s[{sT}:{sT+3}], 0 offen offset:{256*i}')
    srd(a, ptr(0), S * DM * 2)
    a(f's_mul_i32 s{sT1}, s{sU}, 1280')
    for tk in range(ntok):
        for i in range(5):
            a(f'buffer_load_dword v{Xr+5*tk+i}, v{v4}, s[{sT}:{sT+3}], s{sT1} offen offset:{1280*tk + 256*i}')
    a('s_waitcnt vmcnt(0)')
    for tk in range(ntok):
        a(f'v_mov_b32 v{acc}, 0')
        for i in range(5):
            x = Xr + 5*tk + i
            a(f"""v_lshlrev_b32 v{t1}, 16, v{x}
                  v_lshlrev_b32 v{t2}, 16, v{G+i}
                  v_fmac_f32 v{acc}, v{t1}, v{t2}
                  v_and_b32 v{t1}, 0xffff0000, v{x}
                  v_and_b32 v{t2}, 0xffff0000, v{G+i}
                  v_fmac_f32 v{acc}, v{t1}, v{t2}""")
        for sh in (8, 4, 2, 1):
            a(f"""s_nop 1
                  v_add_f32_dpp v{acc}, v{acc}, v{acc} row_ror:{sh} row_mask:0xf bank_mask:0xf""")
        for sw in ('v_permlane16_swap_b32', 'v_permlane32_swap_b32'):
            a(f"""v_mov_b32 v{t1}, v{acc}
                  s_nop 1
                  {sw} v{acc}, v{t1}
                  v_add_f32 v{acc}, v{acc}, v{t1}""")
        a(f"""v_mul_f32 v{acc}, {hex(f32bits(-math.log2(math.e)))}, v{acc}
              v_exp_f32 v{acc}, v{acc}
              s_nop 0
              v_add_f32 v{acc}, 1.0, v{acc}
              v_rcp_f32 v{acc}, v{acc}
              v_mov_b32 v{t1}, 0
              s_lshl_b32 s{sT0}, s{sU}, 2
              s_add_u32 s{sT0}, s{sT0}, {WS_G + 4*tk}
              s_mov_b64 exec, 1
              buffer_store_dword v{acc}, v{t1}, s[{sWS}:{sWS+3}], s{sT0} offen sc1
              s_mov_b64 exec, -1""")

def arrive(a, wave, v):
    l = a.newlabel('Larr')
    a(f'''s_cmp_lg_u32 s{sW}, {wave}
          s_cbranch_scc1 {l}
          s_cmp_lg_u32 s{sARR}, 0
          s_cbranch_scc1 {l}
          s_mov_b64 exec, 1
          v_mov_b32 v{v}, 1
          v_mov_b32 v{v+1}, 32
          buffer_atomic_add v{v}, v{v+1}, s[{sDBG}:{sDBG+3}], 0 offen sc1
          s_mov_b64 exec, -1''')
    a.label(l)

def wait_registered(a, opt, T0, T1, vN, init=False):
    lp, done = a.newlabel('Lreg'), a.newlabel('Lregd')
    a(f'v_lshlrev_b32 v{T1}, 2, v{vN}')
    a.label(lp)
    a(f'''buffer_load_dword v{T0}, v{T1}, s[{sDBG}:{sDBG+3}], 0 offen sc0 sc1
          s_waitcnt vmcnt(0)
          v_readlane_b32 s{sT0}, v{T0}, 8
          v_readlane_b32 s{sT1}, v{T0}, {32 if init else 8}
          s_add_u32 s{sT0}, s{sT0}, s{sT1}
          s_cmp_ge_u32 s{sT0}, {256 + 384 if init else 512}
          s_cbranch_scc1 {done}
          s_sleep {opt.get('r_sleep', 24)}
          s_sub_u32 s{sBUD}, s{sBUD}, 1
          s_cbranch_scc0 {lp}
          s_mov_b32 s{sBUD}, 0''')
    a.label(done)
    a(f'''v_readlane_b32 s{sPOL}, v{T0}, 34
          v_cmp_ne_u32 vcc, 32, v{T0}
          s_and_b32 s{sPOL}, s{sPOL}, 1
          s_and_b32 s{sT0}, vcc_lo, 0xf
          s_and_b32 s{sT1}, vcc_hi, 0xf00
          s_or_b32 s{sT0}, s{sT0}, s{sT1}
          s_cselect_b32 s{sMIX}, 1, {1 if opt.get('force_mixed') else 0}''')

def emit_entry(a, opt, exit_label):
    a(f'''s_cmp_ge_u32 s2, 256
          s_cbranch_scc1 {exit_label}
          s_load_dwordx16 s[16:31], s[0:1], 0
          s_load_dwordx8 s[32:39], s[0:1], 64
          s_load_dwordx4 s[40:43], s[0:1], 96
          s_load_dwordx2 s[44:45], s[0:1], 112
          v_lshrrev_b32 v1, 6, v0
          s_getreg_b32 s{sJ}, hwreg(HW_REG_XCC_ID)
          v_readfirstlane_b32 s{sW}, v1
          s_and_b32 s{sJ}, s{sJ}, 15
          s_min_u32 s{sJ}, s{sJ}, 10
          s_cmp_lt_u32 s{sJ}, 8
          s_cselect_b32 s{sJ}, s{sJ}, 10
          s_mov_b32 s{sBUD}, {opt.get('budget', 1 << 20)}
          s_mov_b32 s{sSTEP}, 0
          s_mov_b32 s{sCS}, 0
          s_mov_b32 s{sPOL}, 0
          s_mov_b64 s[98:99], 0
          s_mov_b64 s[100:101], 0
          s_mov_b32 s{sMIX}, {1 if opt.get('force_mixed') else 0}
          s_mov_b32 s{sMN8}, 0x00ff00ff
          s_mov_b32 s{sMN8+1}, 0x00ff00ff
          s_mov_b32 s{sMH8}, 0xff00ff00
          s_mov_b32 s{sMH8+1}, 0xff00ff00
          s_mov_b32 s{sML32}, -1
          s_mov_b32 s{sML32+1}, 0
          s_mov_b32 s{sSELLO}, 0x05040100
          s_mov_b32 s{sSELHI}, 0x07060302
          s_mov_b32 s{sSCL}, {hex(f32bits(DH ** -0.5 * math.log2(math.e)))}
          s_waitcnt lgkmcnt(0)
          s_mov_b32 s{sWS}, s{ptr(14)}
          s_mov_b32 s{sWS+1}, s{ptr(14)+1}
          s_mov_b32 s{sWS+2}, {WS_SIZE}
          s_mov_b32 s{sWS+3}, 0x20000
          s_mov_b32 s{sDBG}, s{ptr(13)}
          s_mov_b32 s{sDBG+1}, s{ptr(13)+1}
          s_mov_b32 s{sDBG+2}, 256
          s_mov_b32 s{sDBG+3}, 0x20000''')
    if opt.get('prof'):
        a(f's_memrealtime s[{sST}:{sST+1}]')
        a('s_waitcnt lgkmcnt(0)')
    if opt.get('fake_xcc') == 1:
        a(f'''s_lshr_b32 s{sJ}, s2, 5''')
    if opt.get('fake_xcc') == 2:
        a(f'''s_cmp_lt_u32 s2, 200
              s_cselect_b32 s{sJ}, s{sJ}, 3
              s_cmp_lt_u32 s2, 250
              s_cselect_b32 s{sJ}, s{sJ}, 10''')
    l1, l2 = a.newlabel('Le'), a.newlabel('Le')
    def sweep():
        ls = a.newlabel('Lsw')
        a(f'''s_lshl_b32 s{sT0}, s{sC}, 3
              s_add_u32 s{sT0}, s{sT0}, s{sW}
              s_cmp_ge_u32 s{sT0}, 240
              s_cbranch_scc1 {ls}
              s_mov_b32 m0, {SWEEP_LDS}
              v_and_b32 v9, 63, v0
              v_lshlrev_b32 v9, 4, v9
              v_add_u32 v10, 1024, v9
              v_add_u32 v11, {12288 + 512}, v9
              v_add_u32 v12, {12288 - 512}, v9
              v_cmp_gt_u32 vcc, 512, v9
              s_mul_i32 s{sT1}, s{sT0}, 52429
              s_lshr_b32 s{sT1}, s{sT1}, 22
              v_cndmask_b32 v10, v12, v10, vcc
              s_cmp_eq_u32 s{sT1}, 1
              s_cselect_b32 s{sT}, s{ptr(3)}, s{ptr(2)}
              s_cselect_b32 s{sT+1}, s{ptr(3)+1}, s{ptr(2)+1}
              s_cmp_eq_u32 s{sT1}, 2
              s_cselect_b32 s{sT}, s{ptr(4)}, s{sT}
              s_cselect_b32 s{sT+1}, s{ptr(4)+1}, s{sT+1}
              s_mov_b32 s{sT+2}, {DM*NH*DH*2}
              s_mov_b32 s{sT+3}, 0x20000
              s_mul_i32 s{sT1}, s{sT1}, 80
              s_sub_u32 s{sT1}, s{sT0}, s{sT1}
              s_mul_i32 s{sT1}, s{sT1}, {8*12288}
              s_mul_i32 s{sT2}, s{sJ}, 1536
              s_add_u32 s{sT1}, s{sT1}, s{sT2}''')
        for rp in range(4):
            for v in (9, 10, 11):
                a(f'buffer_load_dwordx4 v{v}, s[{sT}:{sT+3}], s{sT1} offen lds')
            if rp < 3: a(f's_add_u32 s{sT1}, s{sT1}, {2*12288}')
        srd(a, ptr(5), NH * DH * DM * 2)
        a(f'''s_mul_i32 s{sT1}, s{sJ}, {4*DH*DM*2}
              s_lshl_b32 s{sT0}, s{sT0}, 12
              s_add_u32 s{sT1}, s{sT1}, s{sT0}''')
        for k in range(4):
            a(f'buffer_load_dwordx4 v9, s[{sT}:{sT+3}], s{sT1} offen offset:{1024*k} lds')
        a.label(ls)
    a(f'''s_cmp_lg_u32 s{sW}, 0
          s_cbranch_scc1 {l1}
          s_mov_b64 exec, 1
          v_mov_b32 v2, 1
          s_lshl_b32 s{sT0}, s{sJ}, 2
          s_and_b32 s{sT1}, s{sJ}, 12
          s_cmp_eq_u32 s{sT1}, 4
          s_cselect_b32 s{sT1}, 144, 0
          s_add_u32 s{sT0}, s{sT0}, s{sT1}
          v_mov_b32 v3, s{sT0}
          buffer_atomic_add v2, v3, s[{sDBG}:{sDBG+3}], 0 offen sc0 sc1
          s_mov_b64 exec, -1''')
    a.label(l1)
    l3, l4, l5, l6, l7 = [a.newlabel('Le') for _ in range(5)]
    a(f'''s_cmp_lg_u32 s{sW}, 1
          s_cbranch_scc1 {l5}
          s_mov_b64 exec, 1
          v_mov_b32 v2, 0
          v_mov_b32 v3, 0
          v_mov_b32 v4, 0
          v_mov_b32 v5, 0
          s_lshl_b32 s{sT0}, s2, 4
          s_add_u32 s{sT0}, s{sT0}, {WS_FLAG}
          buffer_store_dwordx4 v[2:5], v2, s[{sWS}:{sWS+3}], s{sT0} offen sc1
          s_mov_b64 exec, -1''')
    a.label(l5)
    a(f'''s_waitcnt vmcnt(0)
          s_cmp_lg_u32 s{sW}, 0
          s_cbranch_scc1 {l3}
          s_mov_b64 exec, 1
          v_readfirstlane_b32 s{sT0}, v2
          s_cmp_ge_u32 s{sJ}, 8
          s_cselect_b32 s{sT0}, 32, s{sT0}
          s_cmp_lt_u32 s{sT0}, 32
          s_cbranch_scc1 {l6}
          v_mov_b32 v2, 1
          v_mov_b32 v3, 36
          buffer_atomic_add v2, v3, s[{sDBG}:{sDBG+3}], 0 offen sc0 sc1
          s_waitcnt vmcnt(0)
          v_add_u32 v2, 32, v2''')
    a.label(l6)
    l8 = a.newlabel('Le')
    a(f'''v_mov_b32 v4, 0
          s_or_b32 s{sT0}, s{sT0}, s{sJ}
          s_cmp_lg_u32 s{sT0}, 0
          s_cbranch_scc1 {l8}
          s_lshr_b32 s{sT0}, s2, 6
          s_lshl_b32 s{sT0}, s{sT0}, 14
          s_and_b32 s{sT1}, s2, 63
          s_lshl_b32 s{sT1}, s{sT1}, 7
          s_add_u32 s{sT0}, s{sT0}, s{sT1}
          s_add_u32 s{sT0}, s{sT0}, {WS_RC + RC_PROBE}
          s_add_u32 s{sT1}, s{sT0}, 8192
          s_mov_b32 s{sT2}, -1
          s_mov_b32 s{sT3}, -1''')
    for rnd in range(2):
        for cp in range(2):
            a(f'''v_mov_b32 v5, 0
                  s_memtime s[98:99]
                  s_waitcnt lgkmcnt(0)
                  buffer_atomic_add v5, v4, s[{sWS}:{sWS+3}], s{sT1 if cp else sT0} offen sc0 sc1
                  s_waitcnt vmcnt(0)
                  s_memtime s[100:101]
                  s_waitcnt lgkmcnt(0)
                  s_sub_u32 s98, s100, s98
                  s_min_u32 s{sT3 if cp else sT2}, s{sT3 if cp else sT2}, s98''')
    a(f'''s_mov_b64 s[98:99], 0
          s_mov_b64 s[100:101], 0
          s_cmp_lt_u32 s{sT3}, s{sT2}
          s_cselect_b32 s{sT2}, 0x15, 0x0a
          v_mov_b32 v4, s{sT2}''')
    a(f'''v_mov_b32 v5, 136
          buffer_store_dword v4, v5, s[{sDBG}:{sDBG+3}], 0 offen sc1
          s_waitcnt vmcnt(0)''')
    a.label(l8)
    a(f'''v_mov_b32 v3, 0
          ds_write_b32 v3, v2
          s_mov_b64 exec, -1
          s_waitcnt lgkmcnt(0)''')
    a.label(l3)
    a(f'''s_barrier
          v_mov_b32 v3, 0
          ds_read_b32 v2, v3
          s_mov_b32 s{sARR}, 0
          s_waitcnt lgkmcnt(0)
          v_readfirstlane_b32 s{sC}, v2
          s_barrier
          s_cmp_lt_u32 s{sC}, 32
          s_cbranch_scc1 {l7}''')
    arrive(a, 0, 4)
    a(f's_mov_b32 s{sARR}, 1')
    a('v_and_b32 v4, 63, v0')
    wait_registered(a, opt, 2, 3, 4)
    a(f's_sub_u32 s{sT1}, s{sC}, 32')
    a(f's_mov_b32 s{sJ}, 0')
    a(f's_mov_b32 s{sC}, 0')
    for x in range(8):
        a(f'''v_readlane_b32 s{sT0}, v2, {x if x < 4 else 36 + x}
              s_min_u32 s{sT0}, s{sT0}, 32
              s_sub_u32 s{sT2}, 32, s{sT0}
              s_add_u32 s{sT0}, s{sT0}, s{sT1}
              s_cmp_lt_u32 s{sT1}, s{sT2}
              s_cselect_b32 s{sJ}, {x}, s{sJ}
              s_cselect_b32 s{sC}, s{sT0}, s{sC}
              s_sub_u32 s{sT1}, s{sT1}, s{sT2}''')
    a.label(l7)
    a(f'''s_lshr_b32 s{sT0}, s{sC}, 4
          s_lshr_b32 s{sT1}, s{sJ}, 2
          s_and_b32 s{sJ}, s{sJ}, 3
          s_lshl_b32 s{sJ}, s{sJ}, 1
          s_add_u32 s{sJ}, s{sJ}, s{sT0}
          s_and_b32 s{sC}, s{sC}, 15
          s_lshl_b32 s{sT1}, s{sT1}, 4
          s_add_u32 s{sC}, s{sC}, s{sT1}''')
    if opt.get('prof'):
        a(f's_memrealtime s[{sST+8}:{sST+9}]')
        a('s_waitcnt lgkmcnt(0)')

import struct
def f32bits(x): return struct.unpack('<I', struct.pack('<f', x))[0]

def emit_chain_body(a, opt):
    ch = Chain(a, opt)
    lv, l7, lat = a.newlabel('Lrole_v'), a.newlabel('Lrole_w7'), a.newlabel('Lrole_att')
    a(f'''s_lshr_b32 s{sH}, s{sC}, 2
          s_lshl_b32 s{sT0}, s{sJ}, 2
          s_add_u32 s{sH}, s{sH}, s{sT0}
          s_and_b32 s{sG}, s{sC}, 3
          s_setprio 2
          s_cmp_eq_u32 s{sW}, 3
          s_cbranch_scc1 {lv}
          s_cmp_eq_u32 s{sW}, 7
          s_cbranch_scc1 {l7}
          s_cmp_ge_u32 s{sW}, 4
          s_cbranch_scc1 {lat}''')
    pr = opt.get('prios', [2, 2, 2, 2])
    ch.prio = pr[0]; ch.role_qk()
    a.label(lv); ch.prio = pr[1]; ch.role_v()
    a.label(l7); ch.prio = pr[2]; ch.role_w7()
    a.label(lat); ch.prio = pr[3]; ch.role_att()
```

```python
import sys, json
from asmlib import *
from layout import *
import chain, gemm1, phase3

HEADER = open('cdna_kernels/%s.s.ref' % KNAME).read().split('; Override launch')[0]

def kd(name, vgpr=256, sgpr=102):
    return f'''.section .rodata,"a"
.p2align 6
.amdhsa_kernel {name}
  .amdhsa_next_free_vgpr {vgpr}
  .amdhsa_next_free_sgpr {sgpr}
  .amdhsa_accum_offset {min(256, (vgpr + 3) // 4 * 4)}
  .amdhsa_group_segment_fixed_size 0
  .amdhsa_kernarg_size 120
  .amdhsa_user_sgpr_count 2
  .amdhsa_user_sgpr_kernarg_segment_ptr 1
  .amdhsa_system_sgpr_workgroup_id_x 1
  .amdhsa_float_denorm_mode_32 3
.end_amdhsa_kernel
.text
'''

def kernel_begin(a, name):
    a(f'''.text
          .globl {name}
          .p2align 8
          .type {name},@function''')
    a.label(name)

def build(opt):
    a = Asm()
    launches = []
    body = Asm()
    if 'gemm1' in opt['kernels']:
        name = 'gemm1_kernel'
        kernel_begin(body, name)
        chain.emit_entry(body, opt, 'Lg1_exit')
        nw = opt.get('g1_workers', 32)
        if nw == 16:
            body(f'''s_cmp_lt_u32 s{chain.sC}, 16
                     s_cbranch_scc1 Lg1_exit''')
        gemm1.Gemm1(body, opt, nw, 32 - nw).emit('Lg1_exit')
        body.label('Lg1_exit')
        body('s_endpgm')
        body.lines.append(kd(name))
        launches.append((name, 256, 512, gemm1.GEMM1_LDS))
    if 'chain' in opt['kernels']:
        name = 'chain_kernel'
        kernel_begin(body, name)
        chain.emit_entry(body, opt, 'Lchain_exit')
        body(f'''s_cmp_ge_u32 s{chain.sC}, 16
                 s_cbranch_scc1 Lchain_exit''')
        chain.emit_chain_body(body, opt)
        body.label('Lchain_exit')
        body('s_endpgm')
        body.lines.append(kd(name))
        launches.append((name, 256, 512, 102400))
    if 'phase3' in opt['kernels']:
        name = 'phase3_kernel'
        kernel_begin(body, name)
        chain.emit_entry(body, opt, 'Lp3_exit')
        nw = opt.get('p3_workers', 32)
        if nw == 16:
            body(f'''s_cmp_lt_u32 s{chain.sC}, 16
                     s_cbranch_scc1 Lp3_exit''')
        phase3.Phase3(body, opt, nw, 32 - nw).emit('Lp3_exit')
        body.label('Lp3_exit')
        body('s_endpgm')
        body.lines.append(kd(name))
        launches.append((name, 256, 512, 102400))
    if 'fused' in opt['kernels']:
        opt['fused'] = 1
        name = KNAME + '_kernel'
        kernel_begin(body, name)
        chain.emit_entry(body, opt, 'Lexit')
        if opt.get('jit') in (1, 2, 4):
            cond = {1: f's_lshr_b32 s69, s{chain.sJ}, 1\ns_lshr_b32 s76, s{chain.sC}, 4\ns_xor_b32 s76, s76, 1\ns_or_b32 s69, s69, s76\ns_cmp_lg_u32 s69, 0',
                    2: f's_xor_b32 s69, s{chain.sJ}, 3\ns_lshr_b32 s76, s{chain.sC}, 4\ns_or_b32 s69, s69, s76\ns_cmp_lg_u32 s69, 0',
                    4: f's_and_b32 s69, s{chain.sC}, 5\ns_cmp_lg_u32 s69, 5'}[opt['jit']]
            body(cond)
            body('s_cbranch_scc1 Ljit')
            for _ in range(8): body('s_sleep 127')
            body.label('Ljit')
        body(f'''s_cmp_ge_u32 s{chain.sC}, 16
                 s_cbranch_scc1 Lworker''')
        chain.emit_chain_body(body, opt)
        body.label('Lworker')
        gemm1.Gemm1(body, opt, 16, 16).emit('Lphase3')
        body.label('Lphase3')
        if opt.get('prof'):
            body('s_memrealtime s[90:91]'); body('s_waitcnt lgkmcnt(0)')
            phase3.Phase3(body, opt, 16, 16).emit('Lwdone')
            body.label('Lwdone')
            body('s_mov_b64 s[84:85], s[90:91]'); body('s_mov_b64 s[86:87], s[92:93]'); body('s_mov_b64 s[90:91], s[88:89]')
            if opt.get('prof2'):
                body('s_waitcnt lgkmcnt(0)'); body('s_mov_b64 s[84:85], s[94:95]'); body('s_mov_b64 s[86:87], s[96:97]'); body('s_mov_b64 s[90:91], s[98:99]')
            chain.Chain(body, opt).finish()
        else:
            phase3.Phase3(body, opt, 16, 16).emit('Lexit')
        body.label('Lexit')
        body('s_endpgm')
        body.lines.append(kd(name))
        launches.append((name, 256, 512, gemm1.GEMM1_LDS + 4096))
    out = HEADER
    for (n, g, b, l) in launches:
        out += (f'; @launch grid=({g},1,1) block=({b},1,1) lds={l}\n' if opt.get('single') else f'; @launch kernel={n} grid=({g},1,1) block=({b},1,1) lds={l}\n')
    out += '.amdgcn_target "amdgcn-amd-amdhsa--gfx950"\n'
    txt = body.text()
    if opt.get('jit') == 3:
        n = [0]
        def rep(m):
            n[0] += 1
            k = n[0]
            return (f'    s_getreg_b32 s61, hwreg(HW_REG_HW_ID)\n    s_add_u32 s61, s61, s{chain.sBUD}\n    s_add_u32 s61, s61, s{chain.sSTEP}\n    s_mul_i32 s61, s61, {2654435761 + 2*k}\n    s_lshr_b32 s61, s61, 29\nLj{k}:\n    s_sleep 3\n    s_sub_u32 s61, s61, 1\n    s_cbranch_scc0 Lj{k}\n    s_barrier\n')
        import re
        head, rest = txt.split('Lworker:\n')
        head = re.sub(r'    s_barrier\n', rep, head)
        txt = head + 'Lworker:\n' + rest
    out += txt
    return out

if __name__ == '__main__':
    opt = json.loads(sys.argv[2]) if len(sys.argv) > 2 else {}
    opt.setdefault('kernels', ['chain'])
    open(sys.argv[1], 'w').write(build(opt))
```
